```python
import torch

def _softmax(x, axis=-1):
    return torch.softmax(x, dim=axis)
def _gelu(x):
    return torch.nn.functional.gelu(x, approximate="tanh")
def _silu(x):
    return torch.nn.functional.silu(x)
def _sigmoid(x):
    return torch.sigmoid(x)
def _layernorm(x, axis=-1, eps=1e-5):
    m = x.mean(dim=axis, keepdim=True)
    v = x.var(dim=axis, keepdim=True, unbiased=False)
    return (x - m) / torch.sqrt(v + eps)
def _scatter_add(tgt, idx, src, axis=0):
    return tgt.clone().index_add_(axis, idx, src)
def _segment_sum(src, seg, n):
    out = torch.zeros((n,) + src.shape[1:], dtype=src.dtype)
    return out.index_add_(0, seg, src)
def _pad(x, pw):
    flat = tuple(v for pair in reversed(pw) for v in pair)
    return torch.nn.functional.pad(x, flat)

kernel_name = 'gather_scatter__cheap_equivariant_egnn__graph'

def setup_inputs():

    _w = (lambda a: (lambda t: t.to(torch.bfloat16) if t.is_floating_point() else t)(torch.as_tensor(a)))
    N, deg, D, De = 25000, 32, 64, max(4, 1)
    E = N * deg
    return {
        "h": _w((lambda *s: torch.randn(*s, dtype=torch.bfloat16) * 0.2)(N, D)),
        "pos": _w((lambda *s: torch.randn(*s, dtype=torch.bfloat16) * 0.8)(N, 3)),
        "e_attr": _w((lambda *s: torch.randn(*s, dtype=torch.bfloat16) * 0.8)(E, De)),
        "src": _w((lambda lo, hi, *s: torch.randint(lo, hi, s))(0, N, E).to(torch.int64)),
        "dst": _w((lambda lo, hi, *s: torch.randint(lo, hi, s))(0, N, E).to(torch.int64)),
        "w_e": _w(0.1 * (lambda *s: torch.randn(*s, dtype=torch.bfloat16) * 0.8)(2 * D + 1 + De, D)),
        "w_x": _w(0.1 * (lambda *s: torch.randn(*s, dtype=torch.bfloat16) * 0.2)(D, 1)),
        "w_h": _w(0.1 * (lambda *s: torch.randn(*s, dtype=torch.bfloat16) * 0.2)(2 * D, D)),
    }

def reference(h, pos, e_attr, src, dst, w_e, w_x, w_h):
    N, D = h.shape[0], h.shape[1]
    diff = pos[dst] - pos[src]
    dist2 = torch.sum(diff * diff, axis=-1, keepdims=True)
    e_in = torch.concatenate([h[dst], h[src], dist2, e_attr], axis=-1)
    m_ij = _silu(e_in @ w_e)
    coord_scale = m_ij @ w_x
    pos_new = pos + _segment_sum(diff * coord_scale, dst, N)
    m_i = _segment_sum(m_ij, dst, N)
    h_new = h + _silu(torch.concatenate([h, m_i], axis=-1) @ w_h)
    return h_new, pos_new
```

```python
import sys, struct

N = 25000; E = 800000; NB = 256; BN = 98; CH = 3136
REC_STRIDE = CH * 12
WS_REC = 0
WS_TAB = NB * REC_STRIDE
WS_P4 = WS_TAB + NB * 1024
WS_FRAG = WS_P4 + 200704
OUT_POS = N * 128

def f2u(x): return struct.unpack("<I", struct.pack("<f", x))[0]
LOG2E = 1.4426950408889634
LN2 = 0.6931471805599453

class Opt:
    sc1 = False
    warm = True
    k1_store = ""
opt = Opt()

class Asm:
    def __init__(self): self.L = []
    def __call__(self, s):
        for x in s.strip("\n").split("\n"):
            self.L.append("    " + x.strip() if not x.strip().endswith(":") else x.strip())
    def label(self, n): self.L.append(n + ":")
    def text(self): return "\n".join(self.L) + "\n"

def v(i, n=1): return f"v{i}" if n == 1 else f"v[{i}:{i+n-1}]"
def s(i, n=1): return f"s{i}" if n == 1 else f"s[{i}:{i+n-1}]"

def srd(a, d, lo, hi, size):
    a(f"s_mov_b32 s{d}, {lo}\ns_mov_b32 s{d+1}, {hi}\ns_mov_b32 s{d+2}, {size}\ns_mov_b32 s{d+3}, 0x00020000")

def srd_off(a, d, blo, bhi, off, size):
    a(f"s_add_u32 s{d}, s{blo}, {off}\ns_addc_u32 s{d+1}, s{bhi}, 0\ns_mov_b32 s{d+2}, {size}\ns_mov_b32 s{d+3}, 0x00020000")

def wave_scan(a, r):
    for sh in (1, 2, 4, 8):
        a(f"s_nop 1\nv_add_u32_dpp v{r}, v{r}, v{r} row_shr:{sh} row_mask:0xf bank_mask:0xf bound_ctrl:0")
    a(f"s_nop 1\nv_add_u32_dpp v{r}, v{r}, v{r} row_bcast:15 row_mask:0xa bank_mask:0xf")
    a(f"s_nop 1\nv_add_u32_dpp v{r}, v{r}, v{r} row_bcast:31 row_mask:0xc bank_mask:0xf")

def descriptor(name, nvgpr, nsgpr=102):
    acc = (nvgpr + 3) // 4 * 4
    return f"""
.section .rodata,"a"
.p2align 6
.amdhsa_kernel {name}
  .amdhsa_next_free_vgpr {nvgpr}
  .amdhsa_next_free_sgpr {nsgpr}
  .amdhsa_accum_offset {acc}
  .amdhsa_group_segment_fixed_size 0
  .amdhsa_kernarg_size 88
  .amdhsa_user_sgpr_count 2
  .amdhsa_user_sgpr_kernarg_segment_ptr 1
  .amdhsa_system_sgpr_workgroup_id_x 1
  .amdhsa_float_denorm_mode_32 3
.end_amdhsa_kernel
.text
"""

K1_THREADS = 832
K1_HIST = 0; K1_OFF = 1024; K1_REC = 4096
K1_LDS = K1_REC + CH * 16

def gen_k1():
    a = Asm()
    a.label("bin_kernel")
    a(f"""
    s_cmp_gt_u32 s2, {NB}
    s_cbranch_scc1 K1_done
    s_load_dwordx8 s[8:15], s[0:1], 8
    s_load_dwordx2 s[16:17], s[0:1], 80
    s_load_dwordx2 s[4:5], s[0:1], 40
    s_load_dwordx2 s[6:7], s[0:1], 56
    v_lshlrev_b32 v1, 2, v0
    v_mov_b32 v2, 0
    ds_write_b32 v1, v2
    v_lshlrev_b32 v3, 4, v0
    v_lshlrev_b32 v4, 5, v0
    s_mul_i32 s18, s2, {CH*4}
    s_lshl_b32 s19, s18, 1
    s_mov_b32 s50, {CH//4}
    s_cmp_eq_u32 s2, {NB-1}
    s_cselect_b32 s50, {(E-(NB-1)*CH)//4}, s50
    s_mul_i32 s51, s50, 48
    s_mul_i32 s52, s2, {REC_STRIDE}
    s_mul_i32 s53, s2, {BN}
    v_add_u32 v5, s53, v0
    v_mul_u32_u24 v6, 6, v5
    v_lshlrev_b32 v7, 3, v5
    s_waitcnt lgkmcnt(0)
    s_cmp_eq_u32 s2, {NB}
    s_cbranch_scc1 K1_prep
    """)
    srd(a, 20, "s14", "s15", E * 4)
    srd(a, 24, "s12", "s13", E * 4)
    srd(a, 28, "s10", "s11", E * 8)
    srd(a, 32, "s8", "s9", N * 6)
    srd_off(a, 36, 16, 17, "s52", "s51")
    srd_off(a, 40, 16, 17, WS_TAB, NB * 1024)
    srd_off(a, 44, 16, 17, WS_P4, N * 8)
    a(f"""
    v_cmp_gt_u32 vcc, {BN}, v0
    s_and_saveexec_b64 s[58:59], vcc
    s_mov_b64 s[60:61], exec
    buffer_load_ushort v24, v6, s[32:35], 0 offen
    buffer_load_ushort v25, v6, s[32:35], 0 offen offset:2
    buffer_load_ushort v26, v6, s[32:35], 0 offen offset:4
    s_mov_b64 exec, -1
    v_cmp_gt_u32 vcc, s50, v0
    s_and_saveexec_b64 s[54:55], vcc
    s_mov_b64 s[56:57], exec
    buffer_load_dwordx4 v[8:11], v3, s[20:23], s18 offen
    buffer_load_dwordx4 v[12:15], v3, s[24:27], s18 offen
    buffer_load_dwordx4 v[16:19], v4, s[28:31], s19 offen
    buffer_load_dwordx4 v[20:23], v4, s[28:31], s19 offen offset:16
    s_mov_b32 s62, 5350
    s_mov_b32 s63, {BN}
    v_mov_b32 v27, 1
    s_barrier
    s_waitcnt vmcnt(3)
    """)
    for k in range(4):
        a(f"""
        v_mul_u32_u24 v{28+k}, s62, v{8+k}
        v_lshrrev_b32 v{28+k}, 19, v{28+k}
        v_mul_u32_u24 v{32+k}, s63, v{28+k}
        v_lshlrev_b32 v{28+k}, 2, v{28+k}
        ds_add_rtn_u32 v{36+k}, v{28+k}, v27
        v_sub_u32 v{32+k}, v{8+k}, v{32+k}
        """)
    a("s_waitcnt vmcnt(2)")
    for k in range(4):
        a(f"v_lshl_or_b32 v{32+k}, v{12+k}, 7, v{32+k}")
    a(f"""
    s_mov_b64 exec, -1
    v_and_b32 v40, 63, v0
    v_lshlrev_b32 v40, 4, v40
    s_waitcnt lgkmcnt(0)
    s_barrier
    ds_read_b128 v[44:47], v40
    s_waitcnt lgkmcnt(0)
    v_add_u32 v49, v44, v45
    v_add_u32 v50, v49, v46
    v_add_u32 v51, v50, v47
    v_mov_b32 v52, v51
    """)
    wave_scan(a, 52)
    a(f"""
    v_sub_u32 v56, v52, v51
    v_add_u32 v57, v56, v44
    v_add_u32 v58, v56, v49
    v_add_u32 v59, v56, v50
    ds_write_b128 v40, v[56:59] offset:{K1_OFF}
    s_mov_b64 exec, s[56:57]
    """)
    for k in range(4):
        a(f"ds_read_b32 v{8+k}, v{28+k} offset:{K1_OFF}")
    a(f"""
    s_mov_b64 exec, -1
    v_cmp_gt_u32 vcc, 64, v0
    s_and_saveexec_b64 s[58:59], vcc
    s_cbranch_execz K1_notab
    v_lshl_or_b32 v56, v44, 16, v56
    v_lshl_or_b32 v57, v45, 16, v57
    v_lshl_or_b32 v58, v46, 16, v58
    v_lshl_or_b32 v59, v47, 16, v59
    s_lshl_b32 s3, s2, 10
    buffer_store_dwordx4 v[56:59], v40, s[40:43], s3 offen {opt.k1_store}
    K1_notab:
    s_mov_b64 exec, s[56:57]
    s_waitcnt lgkmcnt(0)
    """)
    for k in range(4):
        a(f"v_add_lshl_u32 v{8+k}, v{8+k}, v{36+k}, 4")
        a(f"ds_write_b32 v{8+k}, v{32+k} offset:{K1_REC+8}")
    a("s_waitcnt vmcnt(0)")
    for k in range(4):
        a(f"ds_write_b64 v{8+k}, v[{16+2*k}:{17+2*k}] offset:{K1_REC}")
    a(f"""
    s_mov_b64 exec, s[60:61]
    v_lshl_or_b32 v24, v25, 16, v24
    v_mov_b32 v25, v26
    buffer_store_dwordx2 v[24:25], v7, s[44:47], 0 offen {opt.k1_store}
    s_mov_b64 exec, -1
    v_mul_u32_u24 v6, 12, v0
    s_waitcnt lgkmcnt(0)
    s_barrier
    """)
    for k in range(4):
        a(f"ds_read_b96 v[{8+4*k}:{10+4*k}], v3 offset:{K1_REC + k*K1_THREADS*16}")
    for k in range(4):
        a(f"s_mov_b32 s3, {k*K1_THREADS*12}")
        a(f"s_waitcnt lgkmcnt({3-k})")
        a(f"buffer_store_dwordx3 v[{8+4*k}:{10+4*k}], v6, s[36:39], s3 offen {opt.k1_store}")
    a("s_endpgm")
    a.label("K1_prep")
    srd(a, 20, "s4", "s5", 133 * 128)
    srd(a, 24, "s6", "s7", 128 * 128)
    srd_off(a, 28, 16, 17, WS_FRAG, 34 * 1024)
    a(f"""
    v_lshrrev_b32 v1, 6, v0
    s_nop 0
    v_readfirstlane_b32 s40, v1
    v_and_b32 v2, 63, v0
    v_and_b32 v3, 31, v0
    v_lshrrev_b32 v4, 5, v2
    v_lshlrev_b32 v5, 10, v4
    v_lshl_add_u32 v5, v3, 1, v5
    v_lshlrev_b32 v6, 4, v2
    s_mov_b32 s45, 0x{f2u(-LOG2E):08x}
    K1_qloop:
    s_cmp_ge_u32 s40, 32
    s_cbranch_scc1 K1_q5
    s_cmp_lt_u32 s40, 16
    s_cselect_b32 s32, s20, s24
    s_cselect_b32 s33, s21, s25
    s_cselect_b32 s34, s22, s26
    s_mov_b32 s35, 0x00020000
    s_and_b32 s41, s40, 15
    s_lshr_b32 s42, s41, 1
    s_lshl_b32 s42, s42, 11
    s_and_b32 s43, s40, 1
    s_lshl_b32 s43, s43, 6
    s_add_u32 s42, s42, s43
    """)
    for j in range(8):
        a(f"buffer_load_ushort v{8+j}, v5, s[32:35], s42 offen offset:{j*128}")
    a("s_waitcnt vmcnt(0)")
    if opt.sc1:
        a("""
        s_lshr_b32 s44, s40, 3
        s_cmp_eq_u32 s44, 1
        s_cbranch_scc0 K1_noscale
        """)
        for j in range(8):
            a(f"v_lshlrev_b32 v{8+j}, 16, v{8+j}\nv_mul_f32 v{8+j}, s45, v{8+j}")
        for j in range(4):
            a(f"v_cvt_pk_bf16_f32 v{16+j}, v{8+2*j}, v{9+2*j}")
        a("s_branch K1_qstore\nK1_noscale:")
    for j in range(4):
        a(f"v_lshl_or_b32 v{16+j}, v{9+2*j}, 16, v{8+2*j}")
    a(f"""
    K1_qstore:
    s_lshl_b32 s46, s40, 10
    buffer_store_dwordx4 v[16:19], v6, s[28:31], s46 offen
    s_add_u32 s40, s40, 13
    s_branch K1_qloop
    K1_q5:
    s_cmp_ge_u32 s40, 34
    s_cbranch_scc1 K1_done
    s_and_b32 s43, s40, 1
    s_lshl_b32 s43, s43, 6
    s_add_u32 s42, s43, {128*128}
    v_lshlrev_b32 v7, 1, v3
    """)
    for j in range(4):
        a(f"buffer_load_ushort v{8+j}, v7, s[20:23], s42 offen offset:{(1+j)*128}")
    a("buffer_load_ushort v12, v7, s[20:23], s42 offen")
    a("v_cmp_eq_u32 vcc, 0, v4\ns_waitcnt vmcnt(0)\ns_nop 0")
    if opt.sc1:
        for j in range(5):
            a(f"""
            v_lshlrev_b32 v{8+j}, 16, v{8+j}
            v_mul_f32 v{8+j}, s45, v{8+j}
            v_cvt_pk_bf16_f32 v20, v{8+j}, v{8+j}
            v_and_b32 v21, 0xffff0000, v20
            v_sub_f32 v21, v{8+j}, v21
            v_cvt_pk_bf16_f32 v21, v21, v21
            v_cndmask_b32 v20, v21, v20, vcc
            v_and_b32 v{8+j}, 0xffff, v20
            """)
    else:
        for j in range(5):
            a(f"v_cndmask_b32 v{8+j}, 0, v{8+j}, vcc")
    a(f"""
    v_lshl_or_b32 v16, v9, 16, v8
    v_lshl_or_b32 v17, v11, 16, v10
    v_mov_b32 v18, 0
    v_lshlrev_b32 v19, 16, v12
    s_lshl_b32 s46, s40, 10
    buffer_store_dwordx4 v[16:19], v6, s[28:31], s46 offen
    K1_done:
    s_endpgm
    """)
    return a.text(), 64

CAPT = 116
L_REC = 0
L_RING = 45056
L_SIMG = L_RING + 8 * 4096
L_AT = L_SIMG + 8 * 2048
L_ACC = L_AT + 13 * 2048
ACC_ROW = 272
L_NT = L_ACC + 104 * ACC_ROW
L_WX = L_NT + 104 * 32
L_CNT = L_WX + 256
L_FLAG = L_CNT + 512
L_OFF = L_FLAG + 16
L_WEND = L_OFF + 512
K2_LDS = L_WEND + 64

class R: pass
def alloc_k2():
    r = R(); n = [1]
    def al(cnt, align=1):
        n[0] = (n[0] + align - 1) // align * align
        x = n[0]; n[0] += cnt; return x
    r.lane = al(1); r.t0 = al(1); r.t1 = al(1)
    r.D0 = al(16, 4); r.D1 = al(16); r.A0 = al(16); r.A1 = al(16)
    r.W2 = al(32); r.W5 = al(8); r.AW = al(8); r.H = al(16)
    r.X5 = al(4); r.X6 = al(4); r.S = al(8)
    r.M = al(16); r.T = al(16); r.U = al(16); r.HR = al(8)
    r.K4 = al(4); r.PD = al(4); r.PS = al(2); r.HA = al(4); r.XK = al(4)
    for nm in "A1a A2a SB TR0 TR1 AWl AWa Desc Zero FlM FlP WXa K PI NA Q SA t2 t3 t4 t5".split():
        setattr(r, nm, al(1))
    r.n = n[0]
    return r

def mfma(d, a_, b_, c=None):
    cc = "0" if c is None else v(c, 16)
    return f"v_mfma_f32_32x32x16_bf16 {v(d,16)}, {v(a_,4)}, {v(b_,4)}, {cc}"

S_B = 2
S_H = 4; S_WX = 6; S_OUT = 8; S_WS = 10
SR_HD = 12
SR_P4 = 16
SR_REC = 20; SR_TAB = 24; SR_FR = 28; SR_H = 32; SR_OUT = 36; SR_X = 40
S_V = 44; S_RT = 45; S_T = 46; S_NODE0 = 47; S_NN = 48
S_C = 50
S_ONE = 52
S_NL = 54; S_NH = 55
S_MSK = 56
S_SO0 = 57; S_SO1 = 58; S_SO2 = 59
S_NT = 60
S_I = 61; S_NTL = 62; S_CNT = 63; S_W = 64; S_WP = 65; S_D = 66; S_TMP = 67; S_TMP2 = 68; S_T0 = 69
S_MODE = 49; S_SEG = 3
S_M = 70

def silu_stage(a, r, D, Mo, mf_exp, mf_rcp, ins_exp, ins_rcp, pre=(), post=()):
    T = r.T
    for x in pre: a(x)
    if not opt.sc1:
        for i in range(0, 16, 2):
            a(f"v_pk_mul_f32 {v(T+i,2)}, {v(D+i,2)}, {s(S_C,2)}")
    for i in range(16):
        if i % 4 == 0: a(mf_exp[i // 4])
        a(f"v_exp_f32 v{T+i}, v{(D if opt.sc1 else T)+i}")
        for x in ins_exp.get(i, ()): a(x)
    for i in range(0, 16, 2):
        a(f"v_pk_add_f32 {v(T+i,2)}, {v(T+i,2)}, {s(S_ONE,2)}")
    for i in range(16):
        if i % 4 == 0: a(mf_rcp[i // 4])
        a(f"v_rcp_f32 v{T+i}, v{T+i}")
        for x in ins_rcp.get(i, ()): a(x)
    for i in range(0, 16, 2):
        a(f"v_pk_mul_f32 {v(T+i,2)}, {v(T+i,2)}, {v(D+i,2)}")
    for i in range(0, 16, 2):
        a(f"v_cvt_pk_bf16_f32 v{Mo+i//2}, v{T+i}, v{T+i+1}")
    for x in post: a(x)

def diff_valu(r):
    return [
        f"v_dot2_f32_bf16 v{r.t2}, v{r.PS}, s{S_NL}, v{r.PD}",
        f"v_dot2_f32_bf16 v{r.t3}, v{r.PS}, s{S_NH}, v{r.PD+1}",
        f"v_dot2_f32_bf16 v{r.t4}, v{r.PS+1}, s{S_NL}, v{r.PD+2}",
        f"v_xor_b32 v{r.SA}, v{r.SB}, v{r.PD+3}",
        "s_nop 1",
        f"v_cvt_pk_bf16_f32 v{r.X5+2}, v{r.t2}, v{r.t3}",
        f"v_cvt_pk_bf16_f32 v{r.t5}, v{r.t4}, 0",
        f"v_cvt_pk_bf16_f32 v{r.Q}, v{r.t4}, 1.0",
        f"v_dot2_f32_bf16 v{r.t2}, v{r.X5+2}, v{r.X5+2}, 0",
        f"v_dot2_f32_bf16 v{r.t2}, v{r.t5}, v{r.t5}, v{r.t2}",
        "s_nop 2",
        f"v_cvt_pk_bf16_f32 v{r.X5+3}, v{r.t4}, v{r.t2}",
    ]

def k_reads(r, tile_off):
    o = tile_off * 384 + 8
    return [f"ds_read_b32 v{r.K}, v{r.A1a} offset:{o}",
            f"ds_read2_b32 {v(r.K4,2)}, v{r.A2a} offset0:{o//4} offset1:{o//4+3}",
            f"ds_read2_b32 {v(r.K4+2,2)}, v{r.A2a} offset0:{o//4+6} offset1:{o//4+9}"]
def dma_addr(r):
    return [f"v_and_or_b32 v{r.K4+k}, v{r.K4+k}, s{S_MSK}, v{r.XK+k}" for k in range(4)]
def dma_issue(r):
    so = [f"s{S_SO0}", f"s{S_SO1}", f"s{S_SO2}", "0"]
    return [f"buffer_load_dwordx4 v{r.K4+k}, {s(SR_HD,4)}, {so[k]} offen offset:{1024*k} lds" for k in range(4)]
def h_reads(r):
    return [f"ds_read_b128 {v(r.H+4*k,4)}, v{r.HA+k}" for k in range(4)]
def posg(r):
    return [f"v_lshrrev_b32 v{r.PI}, 7, v{r.K}",
            f"v_and_b32 v{r.NA}, 0x7f, v{r.K}",
            f"buffer_load_dwordx2 {v(r.PS,2)}, v{r.PI}, {s(SR_P4,4)}, 0 idxen",
            f"v_lshl_add_u32 v{r.NA}, v{r.NA}, 5, s{S_NT}"]
def x_reads(r, tile_off):
    o = tile_off * 384
    return [f"ds_read_b128 {v(r.X6,4)}, v{r.NA}",
            f"ds_read2_b32 {v(r.X5,2)}, v{r.A1a} offset0:{o//4} offset1:{o//4+1}",
            f"ds_read_b128 {v(r.AW,4)}, v{r.AWa}",
            f"ds_read_b128 {v(r.AW+4,4)}, v{r.AWa} offset:1024"]
def s_set(r):
    return [f"s_bfm_b64 exec, s{S_CNT}, 0",
            f"ds_write2_b32 v{r.SA}, v{r.X5+2}, v{r.Q} offset0:0 offset1:1",
            "s_mov_b64 exec, -1"]
def s_reads(r):
    return [f"ds_read_b64_tr_b16 {v(r.S,2)}, v{r.TR0}",
            f"ds_read_b64_tr_b16 {v(r.S+2,2)}, v{r.TR1}",
            f"ds_read_b64_tr_b16 {v(r.S+4,2)}, v{r.TR0} offset:1024",
            f"ds_read_b64_tr_b16 {v(r.S+6,2)}, v{r.TR1} offset:1024",
            f"ds_write2_b32 v{r.SA}, v{r.Zero}, v{r.Zero} offset0:0 offset1:1"]

def flush(a, r):
    a(f"s_mul_i32 s{S_TMP}, s{S_WP}, {8*ACC_ROW}")
    for q in range(4):
        a(f"ds_read_b128 {v(r.T+4*q,4)}, v{r.WXa} offset:{16*q}")
    for q in range(4):
        a(f"ds_read_b128 {v(r.D0+4*q,4)}, v{r.WXa} offset:{64+16*q}")
    a(f"""
    v_add_u32 v{r.t2}, s{S_TMP}, v{r.FlM}
    v_add_u32 v{r.t3}, s{S_TMP}, v{r.FlP}
    s_mov_b32 exec_lo, 0x88888888
    s_mov_b32 exec_hi, 0x88888888
    """)
    for t, A in ((0, r.A0), (1, r.A1)):
        for i in range(16):
            a(f"ds_add_f32 v{r.t2}, v{A+i} offset:{(32*t + 8*(i>>2) + (i&3))*4}")
    a("s_mov_b64 exec, -1\ns_waitcnt lgkmcnt(15)")
    a(f"v_pk_mul_f32 {v(r.T,2)}, {v(r.T,2)}, {v(r.A0,2)}")
    a(f"v_pk_mul_f32 {v(r.D0,2)}, {v(r.D0,2)}, {v(r.A1,2)}")
    for i in range(2, 16, 2):
        a(f"v_pk_fma_f32 {v(r.T,2)}, {v(r.T+i,2)}, {v(r.A0+i,2)}, {v(r.T,2)}")
        a(f"v_pk_fma_f32 {v(r.D0,2)}, {v(r.D0+i,2)}, {v(r.A1+i,2)}, {v(r.D0,2)}")
    a(f"""
    v_pk_add_f32 {v(r.T,2)}, {v(r.T,2)}, {v(r.D0,2)}
    v_add_f32 v{r.T}, v{r.T}, v{r.T+1}
    s_mov_b32 exec_lo, 0x77777777
    s_mov_b32 exec_hi, 0x77777777
    ds_add_f32 v{r.t3}, v{r.T}
    s_mov_b64 exec, -1
    """)
    for i in range(0, 32, 2):
        a(f"v_mov_b64 {v(r.A0+i,2)}, 0")


def gen_k2():
    a = Asm(); r = alloc_k2()
    def REC(q): return r.D0 + 4 * q
    TABV = r.K4
    W1F = r.T; WH1F = r.M; AD = r.X5
    a.label("edge_kernel")
    a(f"""
    s_cmp_ge_u32 s2, {NB}
    s_cbranch_scc1 K2_done
    s_load_dwordx2 {s(S_H,2)}, s[0:1], 0
    s_load_dwordx2 {s(S_WX,2)}, s[0:1], 48
    s_load_dwordx2 {s(S_OUT,2)}, s[0:1], 64
    s_load_dwordx2 {s(S_WS,2)}, s[0:1], 80
    v_lshrrev_b32 v{r.t0}, 6, v0
    v_and_b32 v{r.lane}, 63, v0
    v_readfirstlane_b32 s{S_V}, v{r.t0}
    v_mov_b32 v{r.Zero}, 0
    s_mul_i32 s{S_NODE0}, s2, {BN}
    s_sub_u32 s{S_NN}, {N}, s{S_NODE0}
    s_min_u32 s{S_NN}, s{S_NN}, {BN}
    s_lshr_b32 s{S_RT}, s{S_V}, 1
    s_and_b32 s{S_T}, s{S_V}, 1
    s_mov_b32 s{S_MODE}, 0
    v_lshrrev_b32 v{r.t1}, 4, v0
    v_lshlrev_b32 v{r.t2}, 10, v{r.t1}
    s_lshl_b32 s{S_TMP}, s2, 2
    s_waitcnt lgkmcnt(0)
    """)
    srd_off(a, SR_TAB, S_WS, S_WS+1, WS_TAB, NB * 1024)
    for rr in range(8):
        a(f"buffer_load_dword v{TABV+rr}, v{r.t2}, {s(SR_TAB,4)}, s{S_TMP} offen")
        if rr < 7: a(f"s_add_u32 s{S_TMP}, s{S_TMP}, 32768")
    srd(a, SR_H, f"s{S_H}", f"s{S_H+1}", N * 128)
    a(f"""
    s_sub_u32 s{SR_HD}, s{S_H}, 3072
    s_subb_u32 s{SR_HD+1}, s{S_H+1}, 0
    s_mov_b32 s{SR_HD+2}, {N*128+3072}
    s_mov_b32 s{SR_HD+3}, 0x00020000
    """)
    srd(a, SR_REC, f"s{S_WS}", f"s{S_WS+1}", NB * REC_STRIDE)
    srd_off(a, SR_FR, S_WS, S_WS+1, WS_FRAG, 34 * 1024)
    srd_off(a, SR_P4, S_WS, S_WS+1, WS_P4, N)
    a(f"s_and_b32 s{SR_P4+1}, s{SR_P4+1}, 0xffff\ns_or_b32 s{SR_P4+1}, s{SR_P4+1}, 0x80000")
    srd(a, SR_X, f"s{S_WX}", f"s{S_WX+1}", 128)
    a(f"s_lshl_b32 s{S_TMP}, s{S_NODE0}, 7\ns_lshl_b32 s{S_TMP2}, s{S_NN}, 7")
    srd_off(a, SR_OUT, S_OUT, S_OUT+1, f"s{S_TMP}", f"s{S_TMP2}")
    a(f"""
    v_lshrrev_b32 v{r.t2}, 3, v{r.lane}
    v_and_b32 v{r.t3}, 7, v{r.lane}
    v_lshrrev_b32 v{r.t4}, 4, v{r.lane}
    s_lshl_b32 s{S_TMP}, s{S_T}, 2
    v_or_b32 v{r.t4}, s{S_TMP}, v{r.t4}
    v_xor_b32 v{r.t3}, v{r.t3}, v{r.t4}
    v_lshlrev_b32 v{r.t3}, 4, v{r.t3}
    v_lshl_add_u32 v{r.t3}, v{r.t2}, 7, v{r.t3}
    s_lshl_b32 s{S_TMP}, s{S_V}, 3
    s_add_u32 s{S_TMP}, s{S_TMP}, s{S_NODE0}
    s_lshl_b32 s{S_TMP}, s{S_TMP}, 7
    s_lshl_b32 s{S_TMP2}, s{S_V}, 10
    s_add_u32 m0, s{S_TMP2}, {L_RING}
    s_nop 0
    buffer_load_dwordx4 v{r.t3}, {s(SR_H,4)}, s{S_TMP} offen lds
    s_add_u32 m0, s{S_TMP2}, {L_RING + 8192}
    s_add_u32 s{S_TMP}, s{S_TMP}, 8192
    buffer_load_dwordx4 v{r.t3}, {s(SR_H,4)}, s{S_TMP} offen lds
    """)
    a(f"""
    v_add_u32 v{r.t2}, s{S_NODE0}, v0
    buffer_load_dwordx2 {v(r.PS,2)}, v{r.t2}, {s(SR_P4,4)}, 0 idxen
    v_and_b32 v{r.t2}, 3, v{r.lane}
    v_bfe_u32 v{r.t3}, v{r.lane}, 2, 3
    v_lshl_or_b32 v{r.t2}, v{r.t3}, 3, v{r.t2}
    v_lshrrev_b32 v{r.t3}, 5, v{r.lane}
    v_lshl_or_b32 v{r.t2}, v{r.t3}, 2, v{r.t2}
    v_lshlrev_b32 v{r.t2}, 1, v{r.t2}
    buffer_load_ushort v{r.Q}, v{r.t2}, {s(SR_X,4)}, 0 offen
    """)
    a(f"v_lshlrev_b32 v{r.t5}, 4, v{r.lane}\ns_lshl_b32 s{S_TMP}, s{S_T}, 10")
    nfr = 0
    for sidx in range(4):
        a(f"s_add_u32 s{S_TMP2}, s{S_TMP}, {sidx*2048}")
        a(f"buffer_load_dwordx4 {v(W1F+4*sidx,4)}, v{r.t5}, {s(SR_FR,4)}, s{S_TMP2} offen"); nfr += 1
        a(f"s_add_u32 s{S_TMP2}, s{S_TMP}, {16*1024 + sidx*2048}")
        a(f"buffer_load_dwordx4 {v(WH1F+4*sidx,4)}, v{r.t5}, {s(SR_FR,4)}, s{S_TMP2} offen"); nfr += 1
    for t in range(2):
        for sidx in range(4):
            a(f"s_mov_b32 s{S_TMP2}, {(8 + 2*sidx + t)*1024}")
            a(f"buffer_load_dwordx4 {v(r.W2+16*t+4*sidx,4)}, v{r.t5}, {s(SR_FR,4)}, s{S_TMP2} offen"); nfr += 1
        a(f"s_mov_b32 s{S_TMP2}, {(32 + t)*1024}")
        a(f"buffer_load_dwordx4 {v(r.W5+4*t,4)}, v{r.t5}, {s(SR_FR,4)}, s{S_TMP2} offen"); nfr += 1
    nyoung = 2 + 2 + nfr
    Z4 = r.U
    a(f"v_mov_b64 {v(Z4,2)}, 0\nv_mov_b64 {v(Z4+2,2)}, 0\nv_lshlrev_b32 v{r.t2}, 4, v0")
    def zero_region(base, size):
        assert base % 16 == 0 and size % 16 == 0
        full = size // 8192; rem = size % 8192
        a(f"v_add_u32 v{r.t3}, {base}, v{r.t2}")
        for k in range(full):
            a(f"ds_write_b128 v{r.t3}, {v(Z4,4)} offset:{k*8192}")
        if rem:
            a(f"v_cmp_gt_u32 vcc, {rem//16}, v0\ns_and_saveexec_b64 {s(S_M,2)}, vcc")
            a(f"ds_write_b128 v{r.t3}, {v(Z4,4)} offset:{full*8192}")
            a(f"s_mov_b64 exec, -1")
    zero_region(L_CNT, 512 + 16)
    zero_region(L_REC, L_RING)
    zero_region(L_SIMG, 8 * 2048)
    zero_region(L_ACC, 104 * ACC_ROW)
    a(f"""
    s_mov_b32 s{S_C}, 0x{f2u(-LOG2E):08x}
    s_mov_b32 s{S_C+1}, 0x{f2u(-LOG2E):08x}
    s_mov_b32 s{S_ONE}, 1.0
    s_mov_b32 s{S_ONE+1}, 1.0
    s_mov_b32 s{S_NL}, 0x0000bf80
    s_mov_b32 s{S_NH}, 0xbf800000
    s_mov_b32 s{S_MSK}, 0xffffff80
    s_mov_b32 s{S_SO0}, 3072
    s_mov_b32 s{S_SO1}, 2048
    s_mov_b32 s{S_SO2}, 1024
    s_mov_b32 s{S_NT}, {L_NT}
    """)
    JJ = r.SA; LB = r.K; J16 = r.PI; MX = r.NA
    a(f"""
    v_and_b32 v{JJ}, 15, v0
    v_add_u32 v{J16}, 16, v{JJ}
    s_mov_b32 s{S_TMP}, {REC_STRIDE}
    v_mul_lo_u32 v{LB}, v{r.t1}, s{S_TMP}
    v_mad_u32_u24 v{LB}, v{JJ}, 12, v{LB}
    v_mov_b32 v{MX}, 0
    s_waitcnt vmcnt({nyoung})
    """)
    for rr in range(8):
        a(f"""
        v_lshrrev_b32 v{r.t2}, 16, v{TABV+rr}
        v_and_b32 v{TABV+rr}, 0xffff, v{TABV+rr}
        v_max_u32 v{MX}, v{MX}, v{r.t2}
        v_mad_u32_u24 v{TABV+rr}, v{TABV+rr}, 12, v{LB}
        v_cmp_lt_u32 {s(S_M+2*rr,2)}, v{JJ}, v{r.t2}
        v_cmp_lt_u32 {s(S_M+16+2*rr,2)}, v{J16}, v{r.t2}
        s_mov_b32 s{S_TMP}, {rr*32*REC_STRIDE}
        s_mov_b64 exec, {s(S_M+2*rr,2)}
        buffer_load_dwordx3 {v(REC(rr),3)}, v{TABV+rr}, {s(SR_REC,4)}, s{S_TMP} offen
        s_mov_b64 exec, {s(S_M+16+2*rr,2)}
        buffer_load_dwordx3 {v(REC(8+rr),3)}, v{TABV+rr}, {s(SR_REC,4)}, s{S_TMP} offen offset:192
        s_mov_b64 exec, -1
        """)
    e_, hh_, t2, t3, t4 = r.t0, r.t1, r.t2, r.t3, r.t4
    a(f"""
    v_and_b32 v{e_}, 31, v{r.lane}
    v_lshrrev_b32 v{hh_}, 5, v{r.lane}
    s_lshl_b32 s{S_TMP}, s{S_V}, 12
    s_add_u32 s{S_TMP}, s{S_TMP}, {L_RING}
    v_and_b32 v{t2}, 3, v{e_}
    v_lshlrev_b32 v{t3}, 10, v{t2}
    v_lshrrev_b32 v{t4}, 2, v{e_}
    v_lshl_add_u32 v{t3}, v{t4}, 7, v{t3}
    v_add_u32 v{t3}, s{S_TMP}, v{t3}
    v_bfe_u32 v{t4}, v{e_}, 3, 1
    v_lshl_or_b32 v{t2}, v{t4}, 2, v{t2}
    v_xor_b32 v{t2}, v{t2}, v{hh_}
    """)
    for k in range(4):
        a(f"v_xor_b32 v{t4}, {2*k}, v{t2}\nv_lshl_add_u32 v{r.HA+k}, v{t4}, 4, v{t3}")
    a(f"""
    v_and_b32 v{t2}, 7, v{r.lane}
    v_bfe_u32 v{t3}, v{r.lane}, 4, 1
    v_lshlrev_b32 v{t3}, 2, v{t3}
    v_xor_b32 v{t2}, v{t2}, v{t3}
    """)
    for k in range(4):
        a(f"v_xor_b32 v{t4}, {k}, v{t2}\nv_lshlrev_b32 v{r.XK+k}, 4, v{t4}")
    a(f"""
    s_lshl_b32 s{S_TMP}, s{S_V}, 11
    s_add_u32 s{S_TMP}, s{S_TMP}, {L_SIMG}
    v_bfe_u32 v{t2}, v{e_}, 1, 3
    v_lshlrev_b32 v{t2}, 3, v{t2}
    v_lshl_add_u32 v{t2}, v{e_}, 6, v{t2}
    v_add_u32 v{r.SB}, s{S_TMP}, v{t2}
    v_bfe_u32 v{t2}, v{r.lane}, 2, 2
    v_lshl_add_u32 v{t2}, v{hh_}, 2, v{t2}
    v_bfe_u32 v{t3}, v{r.lane}, 4, 1
    v_and_b32 v{t4}, 3, v{r.lane}
    v_lshl_or_b32 v{t3}, v{t3}, 2, v{t4}
    v_lshrrev_b32 v{t4}, 1, v{t2}
    v_xor_b32 v{t3}, v{t3}, v{t4}
    v_lshlrev_b32 v{t2}, 6, v{t2}
    v_add_u32 v{t2}, s{S_TMP}, v{t2}
    v_lshl_add_u32 v{r.TR0}, v{t3}, 3, v{t2}
    v_xor_b32 v{t3}, 4, v{t3}
    v_lshl_add_u32 v{r.TR1}, v{t3}, 3, v{t2}
    v_add_u32 v{r.TR1}, 512, v{r.TR1}
    v_lshlrev_b32 v{t2}, 4, v{r.lane}
    v_add_u32 v{r.AWl}, {L_AT}, v{t2}
    v_lshrrev_b32 v{t2}, 2, v{e_}
    v_mul_u32_u24 v{t2}, {ACC_ROW}, v{t2}
    v_add_u32 v{t2}, {L_ACC}, v{t2}
    v_lshl_add_u32 v{r.FlM}, v{hh_}, 4, v{t2}
    v_and_b32 v{t3}, 3, v{e_}
    v_lshl_add_u32 v{r.FlP}, v{t3}, 2, v{t2}
    v_add_u32 v{r.FlP}, 256, v{r.FlP}
    v_lshlrev_b32 v{t2}, 7, v{hh_}
    v_add_u32 v{r.WXa}, {L_WX}, v{t2}
    s_waitcnt vmcnt(16) lgkmcnt(0)
    s_barrier
    """)
    a(f"""
    v_cmp_lt_u32 vcc, 32, v{MX}
    s_and_saveexec_b64 {s(S_D,2)}, vcc
    v_mov_b32 v{t2}, {L_FLAG}
    v_mov_b32 v{t3}, 1
    ds_write_b32 v{t2}, v{t3}
    s_mov_b64 exec, -1
    """)
    a(f"""
    s_lshl_b32 s{S_TMP}, s{S_RT}, 12
    s_add_u32 s{S_TMP}, s{S_TMP}, {L_RING}
    v_lshlrev_b32 v{t2}, 7, v{e_}
    v_add_u32 v{t2}, s{S_TMP}, v{t2}
    v_bfe_u32 v{t3}, v{e_}, 1, 3
    v_xor_b32 v{r.t5}, v{t3}, v{hh_}
    """)
    for k in range(4):
        a(f"v_xor_b32 v{t4}, {2*k}, v{r.t5}\nv_lshl_add_u32 v{t4}, v{t4}, 4, v{t2}\nds_read_b128 {v(r.H+4*k,4)}, v{t4}")
    a(f"""
    s_lshl_b32 s{S_TMP}, s{S_T}, 2
    v_xor_b32 v{r.t5}, s{S_TMP}, v{t3}
    v_lshl_add_u32 v{t2}, v{hh_}, 3, v{t2}
    """)
    for g in range(4):
        a(f"v_xor_b32 v{t4}, {g}, v{r.t5}\nv_lshl_add_u32 v{t4}, v{t4}, 4, v{t2}\nds_read_b64 {v(r.HR+2*g,2)}, v{t4}")
    NTD = r.AW
    a(f"""
    v_cmp_gt_u32 vcc, 104, v0
    s_and_saveexec_b64 {s(S_D,2)}, vcc
    v_and_b32 v{t2}, 1, v0
    v_lshlrev_b32 v{t2}, 4, v{t2}
    v_mov_b32 v{t3}, 0x3f80
    v_lshlrev_b32 v{t2}, v{t2}, v{t3}
    v_bfe_u32 v{t3}, v0, 1, 2
    """)
    for d in range(4):
        a(f"v_cmp_eq_u32 vcc, {d}, v{t3}\ns_nop 1\nv_cndmask_b32 v{NTD+d}, 0, v{t2}, vcc")
    a(f"""
    v_lshlrev_b32 v{NTD+4}, 16, v{r.PS}
    v_and_b32 v{NTD+5}, 0xffff0000, v{r.PS}
    v_lshlrev_b32 v{NTD+6}, 16, v{r.PS+1}
    v_and_b32 v{t3}, 7, v0
    v_lshlrev_b32 v{NTD+7}, 3, v{t3}
    v_lshlrev_b32 v{t3}, 5, v0
    v_add_u32 v{t3}, {L_NT}, v{t3}
    ds_write_b128 v{t3}, {v(NTD,4)}
    ds_write_b128 v{t3}, {v(NTD+4,4)} offset:16
    v_cmp_gt_u32 vcc, 64, v0
    s_and_b64 exec, exec, vcc
    v_lshlrev_b32 v{r.Q}, 16, v{r.Q}
    """)
    if opt.sc1:
        a(f"v_mul_f32 v{r.Q}, 0x{f2u(-LN2):08x}, v{r.Q}")
    a(f"""
    v_lshlrev_b32 v{t3}, 2, v0
    v_add_u32 v{t3}, {L_WX}, v{t3}
    ds_write_b32 v{t3}, v{r.Q}
    s_mov_b64 exec, -1
    s_waitcnt lgkmcnt(0)
    """)
    for k in range(4):
        a(mfma(AD, r.H+4*k, W1F+4*k, AD if k else None))
    for k in range(4):
        a(mfma(r.U, WH1F+4*k, r.H+4*k, r.U if k else None))
    a(f"""
    s_lshl_b32 s{S_TMP}, s{S_RT}, 13
    s_lshl_b32 s{S_TMP2}, s{S_T}, 10
    s_add_u32 s{S_TMP}, s{S_TMP}, s{S_TMP2}
    s_add_u32 s{S_TMP}, s{S_TMP}, {L_AT}
    v_lshlrev_b32 v{t2}, 4, v{e_}
    v_lshl_add_u32 v{t2}, v{hh_}, 3, v{t2}
    v_add_u32 v{t2}, s{S_TMP}, v{t2}
    s_nop 7
    """)
    HI = r.T; UP = r.T + 4; LO = r.T + 8
    for g in range(4):
        x = AD + 4 * g
        if g == 1:
            a(f"s_cmp_eq_u32 s{S_RT}, 3\ns_cbranch_scc1 K2_at_done")
        if opt.sc1:
            a(f"v_pk_mul_f32 {v(x,2)}, {v(x,2)}, {s(S_C,2)}\nv_pk_mul_f32 {v(x+2,2)}, {v(x+2,2)}, {s(S_C,2)}")
        a(f"""
        v_cvt_pk_bf16_f32 v{HI}, v{x}, v{x+1}
        v_cvt_pk_bf16_f32 v{HI+1}, v{x+2}, v{x+3}
        v_lshlrev_b32 v{UP}, 16, v{HI}
        v_and_b32 v{UP+1}, 0xffff0000, v{HI}
        v_lshlrev_b32 v{UP+2}, 16, v{HI+1}
        v_and_b32 v{UP+3}, 0xffff0000, v{HI+1}
        v_sub_f32 v{UP}, v{x}, v{UP}
        v_sub_f32 v{UP+1}, v{x+1}, v{UP+1}
        v_sub_f32 v{UP+2}, v{x+2}, v{UP+2}
        v_sub_f32 v{UP+3}, v{x+3}, v{UP+3}
        v_cvt_pk_bf16_f32 v{LO}, v{UP}, v{UP+1}
        v_cvt_pk_bf16_f32 v{LO+1}, v{UP+2}, v{UP+3}
        ds_write_b64 v{t2}, {v(HI,2)} offset:{g*2048}
        ds_write_b64 v{t2}, {v(LO,2)} offset:{g*2048+512}
        """)
    a.label("K2_at_done")
    ONE = r.Q; ADR = r.T
    a(f"v_mov_b32 v{ONE}, 1\ns_waitcnt vmcnt(0)")
    a.label("K2_rank")
    a(f"s_mov_b32 s{S_TMP}, {L_CNT}")
    for q in range(16):
        if q >= 8:
            a(f"s_cmp_eq_u64 {s(S_M+2*q,2)}, 0\ns_cbranch_scc1 K2_rk{q}")
        a(f"""
        s_mov_b64 exec, {s(S_M+2*q,2)}
        v_and_b32 v{ADR+q}, 0x7f, v{REC(q)+2}
        v_lshl_add_u32 v{ADR+q}, v{ADR+q}, 2, s{S_TMP}
        ds_add_rtn_u32 v{REC(q)+3}, v{ADR+q}, v{ONE}
        """)
        if q >= 8: a.label(f"K2_rk{q}")
    a(f"""
    s_mov_b64 exec, -1
    v_lshlrev_b32 v{t2}, 3, v{r.lane}
    v_add_u32 v{t2}, {L_CNT}, v{t2}
    v_mov_b32 v{t3}, {L_FLAG}
    s_waitcnt lgkmcnt(0)
    s_barrier
    """)
    C0 = r.K4; C1 = r.K4 + 1; FL = r.K4 + 2; SS = r.K4 + 3; TT = r.PD; PADR = r.PD + 1; SP = r.PD + 2; INC = r.PD + 3
    a(f"""
    ds_read_b64 {v(C0,2)}, v{t2}
    ds_read_b32 v{FL}, v{t3}
    v_and_b32 v{t4}, 3, v{r.lane}
    v_cmp_eq_u32 vcc, 3, v{t4}
    s_waitcnt lgkmcnt(0)
    v_add_u32 v{SS}, v{C0}, v{C1}
    v_readfirstlane_b32 s{S_TMP2}, v{FL}
    s_nop 0
    v_add_u32_dpp v{TT}, v{SS}, v{SS} quad_perm:[1,0,3,2] row_mask:0xf bank_mask:0xf
    s_nop 1
    v_add_u32_dpp v{TT}, v{TT}, v{TT} quad_perm:[2,3,0,1] row_mask:0xf bank_mask:0xf
    v_sub_u32 v{PADR}, 0, v{TT}
    v_and_b32 v{PADR}, 31, v{PADR}
    v_cndmask_b32 v{PADR}, 0, v{PADR}, vcc
    v_add_u32 v{SP}, v{SS}, v{PADR}
    v_mov_b32 v{INC}, v{SP}
    """)
    wave_scan(a, INC)
    a(f"""
    s_nop 0
    v_readlane_b32 s{S_TMP}, v{INC}, 63
    v_sub_u32 v{SP}, v{INC}, v{SP}
    v_add_u32 v{INC}, v{SP}, v{C0}
    ds_write_b64 v{t2}, {v(SP,2)} offset:{L_OFF-L_CNT}
    v_mov_b32_dpp v{PADR}, v{SP} quad_perm:[0,0,0,0] row_mask:0xf bank_mask:0xf
    v_add_u32 v{PADR}, v{PADR}, v{TT}
    v_and_b32 v{t3}, 60, v{r.lane}
    v_add_u32 v{t3}, {L_WEND}, v{t3}
    ds_write_b32 v{t3}, v{PADR}
    s_lshr_b32 s{S_TMP}, s{S_TMP}, 5
    s_cmp_gt_u32 s{S_TMP}, {CAPT}
    s_cselect_b32 s{S_TMP2}, 1, s{S_TMP2}
    s_cmp_lg_u32 s{S_TMP2}, 0
    s_cbranch_scc1 K2_slow
    s_mul_i32 s{S_T0}, s{S_TMP}, s{S_V}
    s_add_u32 s{S_NTL}, s{S_T0}, s{S_TMP}
    s_lshr_b32 s{S_T0}, s{S_T0}, 3
    s_lshr_b32 s{S_NTL}, s{S_NTL}, 3
    s_sub_u32 s{S_NTL}, s{S_NTL}, s{S_T0}
    """)
    for q in range(16):
        if q >= 8:
            a(f"s_cmp_eq_u64 {s(S_M+2*q,2)}, 0\ns_cbranch_scc1 K2_pa{q}")
        a(f"s_mov_b64 exec, {s(S_M+2*q,2)}\nds_read_b32 v{ADR+q}, v{ADR+q} offset:{L_OFF-L_CNT}")
        if q >= 8: a.label(f"K2_pa{q}")
    a("s_waitcnt lgkmcnt(0)")
    for q in range(16):
        if q >= 8:
            a(f"s_cmp_eq_u64 {s(S_M+2*q,2)}, 0\ns_cbranch_scc1 K2_pb{q}")
        a(f"""
        s_mov_b64 exec, {s(S_M+2*q,2)}
        v_add_u32 v{ADR+q}, v{ADR+q}, v{REC(q)+3}
        v_mul_u32_u24 v{ADR+q}, 12, v{ADR+q}
        ds_write_b96 v{ADR+q}, {v(REC(q),3)}
        """)
        if q >= 8: a.label(f"K2_pb{q}")
    a(f"""
    s_mov_b64 exec, -1
    s_mul_i32 s{S_TMP}, s{S_T0}, 384
    v_and_b32 v{t2}, 31, v{r.lane}
    v_mul_u32_u24 v{t2}, 12, v{t2}
    v_add_u32 v{r.A1a}, s{S_TMP}, v{t2}
    v_lshrrev_b32 v{t2}, 3, v{r.lane}
    v_mul_u32_u24 v{t2}, 48, v{t2}
    v_add_u32 v{r.A2a}, s{S_TMP}, v{t2}
    v_add_u32 v{t3}, s{S_T0}, v{r.lane}
    v_mul_u32_u24 v{t2}, 384, v{t3}
    s_lshl_b32 s{S_TMP}, s{S_V}, 12
    s_add_u32 m0, s{S_TMP}, {L_RING}
    s_waitcnt lgkmcnt(0)
    s_barrier
    s_cmp_eq_u32 s{S_NTL}, 0
    s_cbranch_scc1 K2_main_end
    ds_read_b32 v{t4}, v{t2} offset:8
    """)
    for x in k_reads(r, 0): a(x)
    for i in range(0, 32, 2): a(f"v_mov_b64 {v(r.A0+i,2)}, 0")
    for i in range(0, 8, 2): a(f"v_mov_b64 {v(r.M+8+i,2)}, 0\nv_mov_b64 {v(r.S+i,2)}, 0")
    a("s_waitcnt lgkmcnt(0)")
    for x in dma_addr(r) + dma_issue(r) + posg(r): a(x)
    a(f"""
    v_bfe_u32 v{t4}, v{t4}, 3, 4
    v_lshlrev_b32 v{t2}, 2, v{t4}
    v_add_u32 v{t2}, {L_WEND}, v{t2}
    ds_read_b32 v{t2}, v{t2}
    ds_read_b128 {v(r.PD,4)}, v{r.NA} offset:16
    v_lshlrev_b32 v{t3}, 5, v{t3}
    s_waitcnt lgkmcnt(1)
    v_sub_u32 v{t2}, v{t2}, v{t3}
    v_min_u32 v{t2}, 32, v{t2}
    v_lshl_or_b32 v{r.Desc}, v{t2}, 8, v{t4}
    s_nop 0
    v_readlane_b32 s{S_D}, v{r.Desc}, 0
    s_nop 1
    s_and_b32 s{S_W}, s{S_D}, 0xff
    s_mov_b32 s{S_WP}, s{S_W}
    s_lshr_b32 s{S_CNT}, s{S_D}, 8
    s_lshl_b32 s{S_TMP}, s{S_W}, 11
    v_add_u32 v{r.AWa}, s{S_TMP}, v{r.AWl}
    """)
    for x in x_reads(r, 0): a(x)
    for x in k_reads(r, 1): a(x)
    a("s_waitcnt vmcnt(1)")
    for x in h_reads(r): a(x)
    a("s_waitcnt lgkmcnt(0)")
    for x in dma_addr(r) + dma_issue(r): a(x)
    a("s_waitcnt vmcnt(4)")
    for x in diff_valu(r) + posg(r): a(x)
    a("s_nop 1")
    for k in range(4):
        a(mfma(r.D0, r.H+4*k, r.W2+4*k, r.D0 if k else None))
    a(mfma(r.D0, r.X5, r.W5, r.D0)); a(mfma(r.D0, r.X6, r.AW, r.D0))
    a(f"s_mov_b32 s{S_I}, 1\ns_nop 7\ns_nop 3")
    a(".p2align 6")
    a.label("K2_loop")
    pre = k_reads(r, 2) + [f"ds_read_b128 {v(r.PD,4)}, v{r.NA} offset:16",
                           f"v_readlane_b32 s{S_D}, v{r.Desc}, s{S_I}"] + s_set(r)
    mf_exp = [mfma(r.D1, r.H+4*k, r.W2+16+4*k, r.D1 if k else None) for k in range(4)]
    mf_rcp = [mfma(r.D1, r.X5, r.W5+4, r.D1), mfma(r.D1, r.X6, r.AW+4, r.D1),
              mfma(r.A1, r.M+8, r.S, r.A1), mfma(r.A1, r.M+12, r.S+4, r.A1)]
    ins_exp = {2: [f"s_and_b32 s{S_TMP2}, s{S_D}, 0xff", f"s_lshl_b32 s{S_TMP}, s{S_TMP2}, 11"],
               5: [f"v_add_u32 v{r.AWa}, s{S_TMP}, v{r.AWl}"],
               13: ["s_waitcnt vmcnt(1)"] + h_reads(r)}
    ins_rcp = {2: ["s_waitcnt lgkmcnt(4)"] + dma_addr(r),
               5: ["s_waitcnt lgkmcnt(0)"] + dma_issue(r),
               6: x_reads(r, 1),
               13: s_reads(r)}
    silu_stage(a, r, r.D0, r.M, mf_exp, mf_rcp, ins_exp, ins_rcp, pre)
    a(f"s_cmp_eq_u32 s{S_W}, s{S_WP}\ns_cbranch_scc1 K2_noflush")
    flush(a, r)
    a.label("K2_noflush")
    pre = [f"s_mov_b32 s{S_WP}, s{S_W}", f"s_mov_b32 s{S_W}, s{S_TMP2}", f"s_lshr_b32 s{S_CNT}, s{S_D}, 8",
           "s_waitcnt vmcnt(4)"] + diff_valu(r) + posg(r) + \
          [f"v_add_u32 v{r.A1a}, 384, v{r.A1a}", f"v_add_u32 v{r.A2a}, 384, v{r.A2a}"]
    mf_exp = [mfma(r.D0, r.H+4*k, r.W2+4*k, r.D0 if k else None) for k in range(4)]
    mf_rcp = [mfma(r.D0, r.X5, r.W5, r.D0), mfma(r.D0, r.X6, r.AW, r.D0),
              mfma(r.A0, r.M, r.S, r.A0), mfma(r.A0, r.M+4, r.S+4, r.A0)]
    ins_exp = {15: ["s_waitcnt lgkmcnt(0)"]}
    silu_stage(a, r, r.D1, r.M+8, mf_exp, mf_rcp, ins_exp, {}, pre)
    a(f"""
    s_add_u32 s{S_I}, s{S_I}, 1
    s_cmp_le_u32 s{S_I}, s{S_NTL}
    s_cbranch_scc1 K2_loop
    s_nop 0
    """)
    a(mfma(r.A1, r.M+8, r.S, r.A1)); a(mfma(r.A1, r.M+12, r.S+4, r.A1))
    a("s_nop 15\ns_waitcnt vmcnt(0)")
    flush(a, r)
    a.label("K2_main_end")
    a(f"s_cmp_lg_u32 s{S_MODE}, 0\ns_cbranch_scc1 K2_slow_next")
    a.label("K2_epi")
    WH2 = r.W2; MR = r.D0
    a(f"v_lshlrev_b32 v{r.t5}, 4, v{r.lane}\ns_lshl_b32 s{S_TMP}, s{S_T}, 10")
    for sidx in range(4):
        a(f"s_add_u32 s{S_TMP2}, s{S_TMP}, {24*1024 + sidx*2048}")
        a(f"buffer_load_dwordx4 {v(WH2+4*sidx,4)}, v{r.t5}, {s(SR_FR,4)}, s{S_TMP2} offen")
    a(f"""
    s_mul_i32 s{S_TMP}, s{S_NODE0}, 6
    s_add_u32 s{S_TMP}, s{S_TMP}, {OUT_POS}
    s_mul_i32 s{S_TMP2}, s{S_NN}, 6
    """)
    srd_off(a, SR_X, S_OUT, S_OUT+1, f"s{S_TMP}", f"s{S_TMP2}")
    a(f"""
    v_and_b32 v{e_}, 31, v{r.lane}
    v_lshrrev_b32 v{hh_}, 5, v{r.lane}
    s_mul_i32 s{S_TMP}, s{S_RT}, {32*ACC_ROW}
    s_add_u32 s{S_TMP}, s{S_TMP}, {L_ACC}
    v_mul_u32_u24 v{t2}, {ACC_ROW}, v{e_}
    v_lshl_add_u32 v{t2}, v{hh_}, 5, v{t2}
    v_add_u32 v{t2}, s{S_TMP}, v{t2}
    ; pos output addresses: node=tid/3, c=tid%3
    v_min_u32 v{t3}, 311, v0
    v_mul_u32_u24 v{t4}, 171, v{t3}
    v_lshrrev_b32 v{t4}, 9, v{t4}
    v_mul_u32_u24 v{r.t5}, 3, v{t4}
    v_sub_u32 v{r.t5}, v{t3}, v{r.t5}
    v_lshlrev_b32 v{r.t5}, 2, v{r.t5}
    v_lshl_add_u32 v{r.K}, v{t4}, 5, v{r.t5}
    v_add_u32 v{r.K}, {L_NT+16}, v{r.K}
    v_mul_u32_u24 v{r.PI}, {ACC_ROW}, v{t4}
    v_add_u32 v{r.PI}, v{r.PI}, v{r.t5}
    v_add_u32 v{r.PI}, {L_ACC+256}, v{r.PI}
    s_waitcnt lgkmcnt(0)
    s_barrier
    """)
    for k in range(4):
        a(f"ds_read_b128 {v(MR+8*k,4)}, v{t2} offset:{64*k}\nds_read_b128 {v(MR+8*k+4,4)}, v{t2} offset:{64*k+16}")
    a(f"ds_read_b32 v{r.K}, v{r.K}\nds_read_b32 v{r.PI}, v{r.PI}")
    if opt.sc1:
        a(f"s_mov_b32 s{S_D}, 0x{f2u(-LN2):08x}\ns_mov_b32 s{S_D+1}, 0x{f2u(-LN2):08x}")
    for k in range(4):
        a(f"s_waitcnt lgkmcnt({8-2*k})")
        if opt.sc1:
            for j in range(0, 8, 2):
                a(f"v_pk_mul_f32 {v(MR+8*k+j,2)}, {v(MR+8*k+j,2)}, {s(S_D,2)}")
        for j in range(4):
            a(f"v_cvt_pk_bf16_f32 v{r.H+4*k+j}, v{MR+8*k+2*j}, v{MR+8*k+2*j+1}")
    a("s_waitcnt vmcnt(0)")
    for k in range(4):
        a(mfma(r.U, WH2+4*k, r.H+4*k, r.U))
    a(f"""
    s_waitcnt lgkmcnt(0)
    v_add_f32 v{r.K}, v{r.K}, v{r.PI}
    v_cvt_pk_bf16_f32 v{r.K}, v{r.K}, v{r.K}
    v_lshlrev_b32 v{r.PI}, 1, v0
    buffer_store_short v{r.K}, v{r.PI}, {s(SR_X,4)}, 0 offen
    s_lshl_b32 s{S_TMP}, s{S_V}, 12
    s_add_u32 s{S_TMP}, s{S_TMP}, {L_RING}
    v_mul_u32_u24 v{t2}, 80, v{e_}
    v_lshl_add_u32 v{t2}, v{hh_}, 3, v{t2}
    v_add_u32 v{t2}, s{S_TMP}, v{t2}
    v_lshrrev_b32 v{t3}, 2, v{r.lane}
    v_and_b32 v{t4}, 3, v{r.lane}
    v_lshlrev_b32 v{t4}, 4, v{t4}
    v_lshl_add_u32 v{r.t5}, v{t3}, 7, v{t4}
    v_mul_u32_u24 v{t3}, 80, v{t3}
    v_add3_u32 v{t3}, v{t3}, v{t4}, s{S_TMP}
    s_lshl_b32 s{S_TMP}, s{S_RT}, 12
    s_lshl_b32 s{S_TMP2}, s{S_T}, 6
    s_add_u32 s{S_TMP}, s{S_TMP}, s{S_TMP2}
    s_nop 3
    """)
    T = r.T; U = r.U
    for i in range(0, 16, 2): a(f"v_pk_mul_f32 {v(T+i,2)}, {v(U+i,2)}, {s(S_C,2)}")
    for i in range(16): a(f"v_exp_f32 v{T+i}, v{T+i}")
    for i in range(0, 16, 2): a(f"v_pk_add_f32 {v(T+i,2)}, {v(T+i,2)}, {s(S_ONE,2)}")
    for i in range(16): a(f"v_rcp_f32 v{T+i}, v{T+i}")
    for j in range(8):
        a(f"v_lshlrev_b32 v{MR+2*j}, 16, v{r.HR+j}\nv_and_b32 v{MR+2*j+1}, 0xffff0000, v{r.HR+j}")
    for i in range(0, 16, 2):
        a(f"v_pk_fma_f32 {v(T+i,2)}, {v(T+i,2)}, {v(U+i,2)}, {v(MR+i,2)}")
    for i in range(0, 16, 2):
        a(f"v_cvt_pk_bf16_f32 v{r.M+i//2}, v{T+i}, v{T+i+1}")
    for g in range(4):
        a(f"ds_write_b64 v{t2}, {v(r.M+2*g,2)} offset:{16*g}")
    a(f"""
    s_waitcnt lgkmcnt(0)
    ds_read_b128 {v(r.H,4)}, v{t3}
    ds_read_b128 {v(r.H+4,4)}, v{t3} offset:1280
    s_waitcnt lgkmcnt(1)
    buffer_store_dwordx4 {v(r.H,4)}, v{r.t5}, {s(SR_OUT,4)}, s{S_TMP} offen
    s_waitcnt lgkmcnt(0)
    buffer_store_dwordx4 {v(r.H+4,4)}, v{r.t5}, {s(SR_OUT,4)}, s{S_TMP} offen offset:2048
    K2_done:
    s_endpgm
    """)
    a(f"""
    K2_slow:
    s_mov_b32 s{S_MODE}, 1
    s_mov_b32 s{S_SEG}, 0
    K2_slow_round:
    s_waitcnt lgkmcnt(0)
    s_barrier
    v_cmp_gt_u32 vcc, 33, v0
    s_and_saveexec_b64 {s(S_D,2)}, vcc
    v_lshlrev_b32 v{t2}, 4, v0
    v_add_u32 v{t2}, {L_CNT}, v{t2}
    v_mov_b64 {v(r.K4,2)}, 0
    v_mov_b64 {v(r.K4+2,2)}, 0
    ds_write_b128 v{t2}, {v(r.K4,4)}
    s_mov_b64 exec, -1
    s_lshl_b32 s{S_TMP}, s{S_SEG}, 10
    s_lshl_b32 s{S_TMP2}, s2, 2
    s_add_u32 s{S_TMP}, s{S_TMP}, s{S_TMP2}
    buffer_load_dword v{t3}, v{r.Zero}, {s(SR_TAB,4)}, s{S_TMP} offen
    s_mul_i32 s{S_TMP}, s{S_SEG}, {REC_STRIDE}
    s_waitcnt vmcnt(0)
    v_lshrrev_b32 v{t4}, 16, v{t3}
    v_and_b32 v{t3}, 0xffff, v{t3}
    v_add_u32 v{t3}, v{t3}, v0
    v_mul_u32_u24 v{t3}, 12, v{t3}
    v_mov_b32 v{t2}, v0
    """)
    for q in range(7):
        a(f"""
        v_cmp_lt_u32 {s(S_M+2*q,2)}, v{t2}, v{t4}
        s_mov_b64 exec, {s(S_M+2*q,2)}
        buffer_load_dwordx3 {v(REC(q),3)}, v{t3}, {s(SR_REC,4)}, s{S_TMP} offen
        s_mov_b64 exec, -1
        v_add_u32 v{t2}, 512, v{t2}
        s_add_u32 s{S_TMP}, s{S_TMP}, {512*12}
        """)
    for q in range(7, 16):
        a(f"s_mov_b64 {s(S_M+2*q,2)}, 0")
    a(f"""
    v_mov_b32 v{ONE}, 1
    s_waitcnt vmcnt(0) lgkmcnt(0)
    s_barrier
    s_branch K2_rank
    K2_slow_next:
    s_add_u32 s{S_SEG}, s{S_SEG}, 1
    s_cmp_lt_u32 s{S_SEG}, {NB}
    s_cbranch_scc1 K2_slow_round
    s_branch K2_epi
    """)
    return a.text(), r.n

def build():
    k1, n1 = gen_k1(); k2, n2 = gen_k2()
    hdr = open("gather_scatter__cheap_equivariant_egnn__graph.s.ref").read().split("; Override")[0]
    out = hdr
    out += f"; @launch kernel=bin_kernel grid=({NB+1},1,1) block=({K1_THREADS},1,1) lds={K1_LDS}\n"
    out += f"; @launch kernel=edge_kernel grid=({NB},1,1) block=(512,1,1) lds={K2_LDS}\n"
    out += '.amdgcn_target "amdgcn-amd-amdhsa--gfx950"\n.text\n'
    for name, body, nv in (("bin_kernel", k1, n1), ("edge_kernel", k2, n2)):
        out += f".globl {name}\n.p2align 8\n.type {name},@function\n" + body + descriptor(name, nv)
    return out

if __name__ == "__main__":
    for arg in sys.argv[2:]:
        k, val = arg.split("=")
        cur = getattr(opt, k)
        setattr(opt, k, (val not in ("0", "False")) if isinstance(cur, bool) else type(cur)(val.replace("_", " ")))
    open(sys.argv[1], "w").write(build())
    print("K1 lds", K1_LDS, "K2 lds", K2_LDS, "K2 vgprs", alloc_k2().n)
```

```python
import sys, struct

N = 25000; E = 800000; NB = 256; BN = 98; CH = 3136
REC_STRIDE = CH * 12
WS_REC = 0
WS_TAB = NB * REC_STRIDE
WS_P4 = WS_TAB + NB * 1024
WS_FRAG = WS_P4 + 200704
OUT_POS = N * 128

def f2u(x): return struct.unpack("<I", struct.pack("<f", x))[0]
LOG2E = 1.4426950408889634
LN2 = 0.6931471805599453

class Opt:
    sc1 = False
    warm = True
    k1_store = ""
    abl = ""
    prio = 0
    stamp = False
opt = Opt()

class Asm:
    def __init__(self): self.L = []
    def __call__(self, s):
        for x in s.strip("\n").split("\n"):
            self.L.append("    " + x.strip() if not x.strip().endswith(":") else x.strip())
    def label(self, n): self.L.append(n + ":")
    def text(self): return "\n".join(self.L) + "\n"

def v(i, n=1): return f"v{i}" if n == 1 else f"v[{i}:{i+n-1}]"
def s(i, n=1): return f"s{i}" if n == 1 else f"s[{i}:{i+n-1}]"

def srd(a, d, lo, hi, size):
    a(f"s_mov_b32 s{d}, {lo}\ns_mov_b32 s{d+1}, {hi}\ns_mov_b32 s{d+2}, {size}\ns_mov_b32 s{d+3}, 0x00020000")

def srd_off(a, d, blo, bhi, off, size):
    a(f"s_add_u32 s{d}, s{blo}, {off}\ns_addc_u32 s{d+1}, s{bhi}, 0\ns_mov_b32 s{d+2}, {size}\ns_mov_b32 s{d+3}, 0x00020000")

def wave_scan(a, r):
    for sh in (1, 2, 4, 8):
        a(f"s_nop 1\nv_add_u32_dpp v{r}, v{r}, v{r} row_shr:{sh} row_mask:0xf bank_mask:0xf bound_ctrl:0")
    a(f"s_nop 1\nv_add_u32_dpp v{r}, v{r}, v{r} row_bcast:15 row_mask:0xa bank_mask:0xf")
    a(f"s_nop 1\nv_add_u32_dpp v{r}, v{r}, v{r} row_bcast:31 row_mask:0xc bank_mask:0xf")

def descriptor(name, nvgpr, nsgpr=102):
    acc = (nvgpr + 3) // 4 * 4
    return f"""
.section .rodata,"a"
.p2align 6
.amdhsa_kernel {name}
  .amdhsa_next_free_vgpr {nvgpr}
  .amdhsa_next_free_sgpr {nsgpr}
  .amdhsa_accum_offset {acc}
  .amdhsa_group_segment_fixed_size 0
  .amdhsa_kernarg_size 88
  .amdhsa_user_sgpr_count 2
  .amdhsa_user_sgpr_kernarg_segment_ptr 1
  .amdhsa_system_sgpr_workgroup_id_x 1
  .amdhsa_float_denorm_mode_32 3
.end_amdhsa_kernel
.text
"""

K1_THREADS = 832
K1_HIST = 0; K1_OFF = 1024; K1_REC = 4096
K1_LDS = K1_REC + CH * 16

def gen_k1():
    a = Asm()
    a.label("bin_kernel")
    a(f"""
    s_cmp_gt_u32 s2, {NB}
    s_cbranch_scc1 K1_done
    s_load_dwordx8 s[8:15], s[0:1], 8
    s_load_dwordx2 s[16:17], s[0:1], 80
    s_load_dwordx2 s[4:5], s[0:1], 40
    s_load_dwordx2 s[6:7], s[0:1], 56
    v_lshlrev_b32 v1, 2, v0
    v_mov_b32 v2, 0
    ds_write_b32 v1, v2
    v_lshlrev_b32 v3, 4, v0
    v_lshlrev_b32 v4, 5, v0
    s_mul_i32 s18, s2, {CH*4}
    s_lshl_b32 s19, s18, 1
    s_mov_b32 s50, {CH//4}
    s_cmp_eq_u32 s2, {NB-1}
    s_cselect_b32 s50, {(E-(NB-1)*CH)//4}, s50
    s_mul_i32 s51, s50, 48
    s_mul_i32 s52, s2, {REC_STRIDE}
    s_mul_i32 s53, s2, {BN}
    v_add_u32 v5, s53, v0
    v_mul_u32_u24 v6, 6, v5
    v_lshlrev_b32 v7, 3, v5
    s_waitcnt lgkmcnt(0)
    s_cmp_eq_u32 s2, {NB}
    s_cbranch_scc1 K1_prep
    """)
    srd(a, 20, "s14", "s15", E * 4)
    srd(a, 24, "s12", "s13", E * 4)
    srd(a, 28, "s10", "s11", E * 8)
    srd(a, 32, "s8", "s9", N * 6)
    srd_off(a, 36, 16, 17, "s52", "s51")
    srd_off(a, 40, 16, 17, WS_TAB, NB * 1024)
    srd_off(a, 44, 16, 17, WS_P4, N * 8)
    a(f"""
    v_cmp_gt_u32 vcc, {BN}, v0
    s_and_saveexec_b64 s[58:59], vcc
    s_mov_b64 s[60:61], exec
    buffer_load_ushort v24, v6, s[32:35], 0 offen
    buffer_load_ushort v25, v6, s[32:35], 0 offen offset:2
    buffer_load_ushort v26, v6, s[32:35], 0 offen offset:4
    s_mov_b64 exec, -1
    v_cmp_gt_u32 vcc, s50, v0
    s_and_saveexec_b64 s[54:55], vcc
    s_mov_b64 s[56:57], exec
    buffer_load_dwordx4 v[8:11], v3, s[20:23], s18 offen
    buffer_load_dwordx4 v[12:15], v3, s[24:27], s18 offen
    buffer_load_dwordx4 v[16:19], v4, s[28:31], s19 offen
    buffer_load_dwordx4 v[20:23], v4, s[28:31], s19 offen offset:16
    s_mov_b32 s62, 5350
    s_mov_b32 s63, {BN}
    v_mov_b32 v27, 1
    s_barrier
    s_waitcnt vmcnt(3)
    """)
    for k in range(4):
        a(f"""
        v_mul_u32_u24 v{28+k}, s62, v{8+k}
        v_lshrrev_b32 v{28+k}, 19, v{28+k}
        v_mul_u32_u24 v{32+k}, s63, v{28+k}
        v_lshlrev_b32 v{28+k}, 2, v{28+k}
        ds_add_rtn_u32 v{36+k}, v{28+k}, v27
        v_sub_u32 v{32+k}, v{8+k}, v{32+k}
        """)
    a("s_waitcnt vmcnt(2)")
    for k in range(4):
        a(f"v_lshl_or_b32 v{32+k}, v{12+k}, 7, v{32+k}")
    a(f"""
    s_mov_b64 exec, -1
    v_and_b32 v40, 63, v0
    v_lshlrev_b32 v40, 4, v40
    s_waitcnt lgkmcnt(0)
    s_barrier
    ds_read_b128 v[44:47], v40
    s_waitcnt lgkmcnt(0)
    v_add_u32 v49, v44, v45
    v_add_u32 v50, v49, v46
    v_add_u32 v51, v50, v47
    v_mov_b32 v52, v51
    """)
    wave_scan(a, 52)
    a(f"""
    v_sub_u32 v56, v52, v51
    v_add_u32 v57, v56, v44
    v_add_u32 v58, v56, v49
    v_add_u32 v59, v56, v50
    ds_write_b128 v40, v[56:59] offset:{K1_OFF}
    s_mov_b64 exec, s[56:57]
    """)
    for k in range(4):
        a(f"ds_read_b32 v{8+k}, v{28+k} offset:{K1_OFF}")
    a(f"""
    s_mov_b64 exec, -1
    v_cmp_gt_u32 vcc, 64, v0
    s_and_saveexec_b64 s[58:59], vcc
    s_cbranch_execz K1_notab
    v_lshl_or_b32 v56, v44, 16, v56
    v_lshl_or_b32 v57, v45, 16, v57
    v_lshl_or_b32 v58, v46, 16, v58
    v_lshl_or_b32 v59, v47, 16, v59
    s_lshl_b32 s3, s2, 10
    buffer_store_dwordx4 v[56:59], v40, s[40:43], s3 offen {opt.k1_store}
    K1_notab:
    s_mov_b64 exec, s[56:57]
    s_waitcnt lgkmcnt(0)
    """)
    for k in range(4):
        a(f"v_add_lshl_u32 v{8+k}, v{8+k}, v{36+k}, 4")
        a(f"ds_write_b32 v{8+k}, v{32+k} offset:{K1_REC+8}")
    a("s_waitcnt vmcnt(0)")
    for k in range(4):
        a(f"ds_write_b64 v{8+k}, v[{16+2*k}:{17+2*k}] offset:{K1_REC}")
    a(f"""
    s_mov_b64 exec, s[60:61]
    v_lshl_or_b32 v24, v25, 16, v24
    v_mov_b32 v25, v26
    buffer_store_dwordx2 v[24:25], v7, s[44:47], 0 offen {opt.k1_store}
    s_mov_b64 exec, -1
    v_mul_u32_u24 v6, 12, v0
    s_waitcnt lgkmcnt(0)
    s_barrier
    """)
    for k in range(4):
        a(f"ds_read_b96 v[{8+4*k}:{10+4*k}], v3 offset:{K1_REC + k*K1_THREADS*16}")
    for k in range(4):
        a(f"s_mov_b32 s3, {k*K1_THREADS*12}")
        a(f"s_waitcnt lgkmcnt({3-k})")
        a(f"buffer_store_dwordx3 v[{8+4*k}:{10+4*k}], v6, s[36:39], s3 offen {opt.k1_store}")
    a("s_endpgm")
    a.label("K1_prep")
    srd(a, 20, "s4", "s5", 133 * 128)
    srd(a, 24, "s6", "s7", 128 * 128)
    srd_off(a, 28, 16, 17, WS_FRAG, 34 * 1024)
    a(f"""
    v_lshrrev_b32 v1, 6, v0
    s_nop 0
    v_readfirstlane_b32 s40, v1
    v_and_b32 v2, 63, v0
    v_and_b32 v3, 31, v0
    v_lshrrev_b32 v4, 5, v2
    v_lshlrev_b32 v5, 10, v4
    v_lshl_add_u32 v5, v3, 1, v5
    v_lshlrev_b32 v6, 4, v2
    s_mov_b32 s45, 0x{f2u(-LOG2E):08x}
    K1_qloop:
    s_cmp_ge_u32 s40, 32
    s_cbranch_scc1 K1_q5
    s_cmp_lt_u32 s40, 16
    s_cselect_b32 s32, s20, s24
    s_cselect_b32 s33, s21, s25
    s_cselect_b32 s34, s22, s26
    s_mov_b32 s35, 0x00020000
    s_and_b32 s41, s40, 15
    s_lshr_b32 s42, s41, 1
    s_lshl_b32 s42, s42, 11
    s_and_b32 s43, s40, 1
    s_lshl_b32 s43, s43, 6
    s_add_u32 s42, s42, s43
    """)
    for j in range(8):
        a(f"buffer_load_ushort v{8+j}, v5, s[32:35], s42 offen offset:{j*128}")
    a("s_waitcnt vmcnt(0)")
    if opt.sc1:
        a("""
        s_lshr_b32 s44, s40, 3
        s_cmp_eq_u32 s44, 1
        s_cbranch_scc0 K1_noscale
        """)
        for j in range(8):
            a(f"v_lshlrev_b32 v{8+j}, 16, v{8+j}\nv_mul_f32 v{8+j}, s45, v{8+j}")
        for j in range(4):
            a(f"v_cvt_pk_bf16_f32 v{16+j}, v{8+2*j}, v{9+2*j}")
        a("s_branch K1_qstore\nK1_noscale:")
    for j in range(4):
        a(f"v_lshl_or_b32 v{16+j}, v{9+2*j}, 16, v{8+2*j}")
    a(f"""
    K1_qstore:
    s_lshl_b32 s46, s40, 10
    buffer_store_dwordx4 v[16:19], v6, s[28:31], s46 offen
    s_add_u32 s40, s40, 13
    s_branch K1_qloop
    K1_q5:
    s_cmp_ge_u32 s40, 34
    s_cbranch_scc1 K1_done
    s_and_b32 s43, s40, 1
    s_lshl_b32 s43, s43, 6
    s_add_u32 s42, s43, {128*128}
    v_lshlrev_b32 v7, 1, v3
    """)
    for j in range(4):
        a(f"buffer_load_ushort v{8+j}, v7, s[20:23], s42 offen offset:{(1+j)*128}")
    a("buffer_load_ushort v12, v7, s[20:23], s42 offen")
    a("v_cmp_eq_u32 vcc, 0, v4\ns_waitcnt vmcnt(0)\ns_nop 0")
    if opt.sc1:
        for j in range(5):
            a(f"""
            v_lshlrev_b32 v{8+j}, 16, v{8+j}
            v_mul_f32 v{8+j}, s45, v{8+j}
            v_cvt_pk_bf16_f32 v20, v{8+j}, v{8+j}
            v_and_b32 v21, 0xffff0000, v20
            v_sub_f32 v21, v{8+j}, v21
            v_cvt_pk_bf16_f32 v21, v21, v21
            v_cndmask_b32 v20, v21, v20, vcc
            v_and_b32 v{8+j}, 0xffff, v20
            """)
    else:
        for j in range(5):
            a(f"v_cndmask_b32 v{8+j}, 0, v{8+j}, vcc")
    a(f"""
    v_lshl_or_b32 v16, v9, 16, v8
    v_lshl_or_b32 v17, v11, 16, v10
    v_mov_b32 v18, 0
    v_lshlrev_b32 v19, 16, v12
    s_lshl_b32 s46, s40, 10
    buffer_store_dwordx4 v[16:19], v6, s[28:31], s46 offen
    K1_done:
    s_endpgm
    """)
    return a.text(), 64

CAPT = 116
L_REC = 0
L_RING = 45056
L_SIMG = L_RING + 8 * 4096
L_AT = L_SIMG + 8 * 2048
L_ACC = L_AT + 13 * 2048
ACC_ROW = 272
L_NT = L_ACC + 104 * ACC_ROW
L_WX = L_NT + 104 * 32
L_CNT = L_WX + 256
L_FLAG = L_CNT + 512
L_OFF = L_FLAG + 16
L_WEND = L_OFF + 512
K2_LDS = L_WEND + 64

WS_STAMP = 64 << 20
def stamp(a, r, i, real=False):
    if not opt.stamp: return
    a(f"s_waitcnt lgkmcnt(0)\n{'s_memrealtime' if real else 's_memtime'} s[4:5]\ns_waitcnt lgkmcnt(0)\nv_writelane_b32 v{r.ST}, s4, {i}")
def stamp_out(a, r, wsp, tmp, wave_sgpr, base):
    if not opt.stamp: return
    a(f"""
    s_lshl_b32 s4, s2, 4
    s_add_u32 s4, s4, s{wave_sgpr}
    s_lshl_b32 s4, s4, 8
    s_add_u32 s4, s4, {base}
    s_add_u32 s4, s{wsp}, s4
    s_addc_u32 s5, s{wsp+1}, 0
    v_and_b32 v{tmp}, 63, v0
    v_lshlrev_b32 v{tmp}, 2, v{tmp}
    global_store_dword v{tmp}, v{r.ST}, s[4:5]
    """)

class R: pass
def alloc_k2():
    r = R(); n = [1]
    def al(cnt, align=1):
        n[0] = (n[0] + align - 1) // align * align
        x = n[0]; n[0] += cnt; return x
    r.lane = al(1); r.t0 = al(1); r.t1 = al(1)
    r.D0 = al(16, 4); r.D1 = al(16); r.A0 = al(16); r.A1 = al(16)
    r.W2 = al(32); r.W5 = al(8); r.AW = al(8); r.H = al(16)
    r.X5 = al(4); r.X6 = al(4); r.S = al(8)
    r.M = al(16); r.T = al(16); r.U = al(16); r.HR = al(8)
    r.K4 = al(4); r.PD = al(4); r.PS = al(2); r.HA = al(4); r.XK = al(4)
    for nm in "A1a A2a SB TR0 TR1 AWl AWa Desc Zero FlM FlP WXa K PI NA Q SA t2 t3 t4 t5 ST".split():
        setattr(r, nm, al(1))
    r.n = n[0]
    return r

def mfma(d, a_, b_, c=None):
    cc = "0" if c is None else v(c, 16)
    return f"v_mfma_f32_32x32x16_bf16 {v(d,16)}, {v(a_,4)}, {v(b_,4)}, {cc}"

S_B = 2
S_H = 4; S_WX = 6; S_OUT = 8; S_WS = 10
SR_HD = 12
SR_P4 = 16
SR_REC = 20; SR_TAB = 24; SR_FR = 28; SR_H = 32; SR_OUT = 36; SR_X = 40
S_V = 44; S_RT = 45; S_T = 46; S_NODE0 = 47; S_NN = 48
S_C = 50
S_ONE = 52
S_NL = 54; S_NH = 55
S_MSK = 56
S_SO0 = 57; S_SO1 = 58; S_SO2 = 59
S_NT = 60
S_I = 61; S_NTL = 62; S_CNT = 63; S_W = 64; S_WP = 65; S_D = 66; S_TMP = 67; S_TMP2 = 68; S_T0 = 69
S_MODE = 49; S_SEG = 3; S_NFL = 6
S_M = 70

def silu_stage(a, r, D, Mo, mf_exp, mf_rcp, ins_exp, ins_rcp, pre=(), post=()):
    T = r.T
    if opt.abl:
        a0 = a
        def flt(x):
            for y in x.split("\n"):
                y = y.strip()
                if "vmem" in opt.abl and (y.startswith("buffer_") or "vmcnt" in y): continue
                if "lds" in opt.abl and (y.startswith("ds_") or "lgkmcnt" in y): continue
                if "misc" in opt.abl and (y.startswith("v_") and not y.startswith("v_mfma") and not y.startswith("v_readlane") and "A1a" not in y and not insilu[0]): continue
                if "dot" in opt.abl and (y.startswith("v_dot2") or y.startswith("s_nop")): continue
                if "mfma" in opt.abl and y.startswith("v_mfma"): continue
                a0(y)
        insilu = [False]
        pre = list(pre); ins_exp = dict(ins_exp); ins_rcp = dict(ins_rcp)
        class W:
            def __call__(self, x):
                insilu[0] = any(x.startswith(p) for p in ("v_pk_mul", "v_pk_add", "v_exp", "v_rcp")) or (x.startswith("v_cvt_pk") and f"v{T}" <= x.split(",")[1].strip() <= f"v{T+15}")
                flt(x)
        a = W()
    for x in pre: a(x)
    if not opt.sc1:
        for i in range(0, 16, 2):
            a(f"v_pk_mul_f32 {v(T+i,2)}, {v(D+i,2)}, {s(S_C,2)}")
    for i in range(16):
        if i % 4 == 0: a(mf_exp[i // 4])
        a(f"v_exp_f32 v{T+i}, v{(D if opt.sc1 else T)+i}")
        for x in ins_exp.get(i, ()): a(x)
    for i in range(0, 16, 2):
        a(f"v_pk_add_f32 {v(T+i,2)}, {v(T+i,2)}, {s(S_ONE,2)}")
    for i in range(16):
        if i % 4 == 0: a(mf_rcp[i // 4])
        a(f"v_rcp_f32 v{T+i}, v{T+i}")
        for x in ins_rcp.get(i, ()): a(x)
    for i in range(0, 16, 2):
        a(f"v_pk_mul_f32 {v(T+i,2)}, {v(T+i,2)}, {v(D+i,2)}")
    for i in range(0, 16, 2):
        a(f"v_cvt_pk_bf16_f32 v{Mo+i//2}, v{T+i}, v{T+i+1}")
    for x in post: a(x)

def diff_valu(r):
    return [
        f"v_dot2_f32_bf16 v{r.t2}, v{r.PS}, s{S_NL}, v{r.PD}",
        f"v_dot2_f32_bf16 v{r.t3}, v{r.PS}, s{S_NH}, v{r.PD+1}",
        f"v_dot2_f32_bf16 v{r.t4}, v{r.PS+1}, s{S_NL}, v{r.PD+2}",
        f"v_xor_b32 v{r.SA}, v{r.SB}, v{r.PD+3}",
        "s_nop 1",
        f"v_cvt_pk_bf16_f32 v{r.X5+2}, v{r.t2}, v{r.t3}",
        f"v_cvt_pk_bf16_f32 v{r.t5}, v{r.t4}, 0",
        f"v_cvt_pk_bf16_f32 v{r.Q}, v{r.t4}, 1.0",
        f"v_dot2_f32_bf16 v{r.t2}, v{r.X5+2}, v{r.X5+2}, 0",
        f"v_dot2_f32_bf16 v{r.t2}, v{r.t5}, v{r.t5}, v{r.t2}",
        "s_nop 2",
        f"v_cvt_pk_bf16_f32 v{r.X5+3}, v{r.t4}, v{r.t2}",
    ]

def k_reads(r, tile_off):
    o = tile_off * 384 + 8
    return [f"ds_read_b32 v{r.K}, v{r.A1a} offset:{o}",
            f"ds_read2_b32 {v(r.K4,2)}, v{r.A2a} offset0:{o//4} offset1:{o//4+3}",
            f"ds_read2_b32 {v(r.K4+2,2)}, v{r.A2a} offset0:{o//4+6} offset1:{o//4+9}"]
def dma_addr(r):
    return [f"v_and_or_b32 v{r.K4+k}, v{r.K4+k}, s{S_MSK}, v{r.XK+k}" for k in range(4)]
def dma_issue(r):
    so = [f"s{S_SO0}", f"s{S_SO1}", f"s{S_SO2}", "0"]
    return [f"buffer_load_dwordx4 v{r.K4+k}, {s(SR_HD,4)}, {so[k]} offen offset:{1024*k} lds" for k in range(4)]
def h_reads(r):
    return [f"ds_read_b128 {v(r.H+4*k,4)}, v{r.HA+k}" for k in range(4)]
def posg(r):
    return [f"v_lshrrev_b32 v{r.PI}, 7, v{r.K}",
            f"v_and_b32 v{r.NA}, 0x7f, v{r.K}",
            f"buffer_load_dwordx2 {v(r.PS,2)}, v{r.PI}, {s(SR_P4,4)}, 0 idxen",
            f"v_lshl_add_u32 v{r.NA}, v{r.NA}, 5, s{S_NT}"]
def x_reads(r, tile_off):
    o = tile_off * 384
    return [f"ds_read_b128 {v(r.X6,4)}, v{r.NA}",
            f"ds_read2_b32 {v(r.X5,2)}, v{r.A1a} offset0:{o//4} offset1:{o//4+1}",
            f"ds_read_b128 {v(r.AW,4)}, v{r.AWa}",
            f"ds_read_b128 {v(r.AW+4,4)}, v{r.AWa} offset:1024"]
def s_set(r):
    return [f"s_bfm_b64 exec, s{S_CNT}, 0",
            f"ds_write2_b32 v{r.SA}, v{r.X5+2}, v{r.Q} offset0:0 offset1:1",
            "s_mov_b64 exec, -1"]
def s_reads(r):
    return [f"ds_read_b64_tr_b16 {v(r.S,2)}, v{r.TR0}",
            f"ds_read_b64_tr_b16 {v(r.S+2,2)}, v{r.TR1}",
            f"ds_read_b64_tr_b16 {v(r.S+4,2)}, v{r.TR0} offset:1024",
            f"ds_read_b64_tr_b16 {v(r.S+6,2)}, v{r.TR1} offset:1024",
            f"ds_write2_b32 v{r.SA}, v{r.Zero}, v{r.Zero} offset0:0 offset1:1"]

def flush_dot(a, r):
    a(f"s_mul_i32 s{S_TMP}, s{S_WP}, {8*ACC_ROW}")
    for q in range(4):
        a(f"ds_read_b128 {v(r.T+4*q,4)}, v{r.WXa} offset:{16*q}")
    for q in range(4):
        a(f"ds_read_b128 {v(r.D0+4*q,4)}, v{r.WXa} offset:{64+16*q}")
    a(f"""
    v_add_u32 v{r.t2}, s{S_TMP}, v{r.FlM}
    v_add_u32 v{r.t3}, s{S_TMP}, v{r.FlP}
    """)
def flush_dot2(a, r):
    a(f"v_pk_mul_f32 {v(r.T,2)}, {v(r.T,2)}, {v(r.A0,2)}")
    a(f"v_pk_mul_f32 {v(r.D0,2)}, {v(r.D0,2)}, {v(r.A1,2)}")
    for i in range(2, 16, 2):
        a(f"v_pk_fma_f32 {v(r.T,2)}, {v(r.T+i,2)}, {v(r.A0+i,2)}, {v(r.T,2)}")
        a(f"v_pk_fma_f32 {v(r.D0,2)}, {v(r.D0+i,2)}, {v(r.A1+i,2)}, {v(r.D0,2)}")
    a(f"""
    v_pk_add_f32 {v(r.T,2)}, {v(r.T,2)}, {v(r.D0,2)}
    v_add_f32 v{r.t4}, v{r.T}, v{r.T+1}
    v_add_f32 v{r.t5}, v{r.T}, v{r.T+1}
    s_nop 1
    v_permlane32_swap_b32 v{r.t4}, v{r.t5}
    s_nop 1
    v_add_f32 v{r.t4}, v{r.t4}, v{r.t5}
    """)
EX3 = "s_mov_b32 exec_lo, 0x88888888\ns_mov_b32 exec_hi, 0x88888888"
EXP = "s_mov_b32 exec_lo, 0x77777777\ns_mov_b32 exec_hi, 0"
def acc_zero(a, r):
    for i in range(0, 32, 2):
        a(f"v_mov_b64 {v(r.A0+i,2)}, 0")
def flush_plain(a, r):
    flush_dot(a, r)
    a(EX3)
    for q in range(8):
        a(f"ds_write_b128 v{r.t2}, {v(r.A0+4*q,4)} offset:{32*q}")
    a("s_mov_b64 exec, -1\ns_waitcnt lgkmcnt(8)")
    flush_dot2(a, r)
    a(EXP + f"\nds_write_b32 v{r.t3}, v{r.t4}\ns_mov_b64 exec, -1")
    acc_zero(a, r)
def flush_atomic_tail(a, r):
    a(EX3)
    for t, A in ((0, r.A0), (1, r.A1)):
        for i in range(16):
            a(f"ds_add_f32 v{r.t2}, v{A+i} offset:{(32*t + 8*(i>>2) + (i&3))*4}")
    a(EXP + f"\nds_add_f32 v{r.t3}, v{r.t4}\ns_mov_b64 exec, -1")
def flush_rmw_tail(a, r):
    a(f"ds_read_b32 v{r.K}, v{r.K}")
    a(EX3)
    for q in range(8):
        a(f"ds_read_b128 {v(r.D0+4*q,4)}, v{r.t2} offset:{32*q}")
    a(EXP + f"\nds_read_b32 v{r.t5}, v{r.t3}\ns_mov_b64 exec, -1\ns_waitcnt lgkmcnt(9)")
    a(f"""
    v_readfirstlane_b32 s{S_TMP}, v{r.K}
    s_nop 3
    s_cmp_lg_u32 s{S_TMP}, 0
    s_cbranch_scc1 K2_final_atomic
    """)
    a(EX3)
    for q in range(8):
        a(f"s_waitcnt lgkmcnt(8)")
        a(f"v_pk_add_f32 {v(r.D0+4*q,2)}, {v(r.D0+4*q,2)}, {v(r.A0+4*q,2)}")
        a(f"v_pk_add_f32 {v(r.D0+4*q+2,2)}, {v(r.D0+4*q+2,2)}, {v(r.A0+4*q+2,2)}")
        a(f"ds_write_b128 v{r.t2}, {v(r.D0+4*q,4)} offset:{32*q}")
    a(EXP + f"""
    s_waitcnt lgkmcnt(8)
    v_add_f32 v{r.t4}, v{r.t4}, v{r.t5}
    ds_write_b32 v{r.t3}, v{r.t4}
    s_mov_b64 exec, -1
    """)

def gen_k2():
    a = Asm(); r = alloc_k2()
    def REC(q): return r.D0 + 4 * q
    TABV = r.K4
    W1F = r.T; WH1F = r.M; AD = r.X5
    a.label("edge_kernel")
    a(f"""
    s_cmp_ge_u32 s2, {NB}
    s_cbranch_scc1 K2_done
    s_and_b32 s3, s2, 7
    s_lshl_b32 s3, s3, 5
    s_lshr_b32 s2, s2, 3
    s_or_b32 s2, s2, s3
    s_load_dwordx2 {s(S_H,2)}, s[0:1], 0
    s_load_dwordx2 {s(S_WX,2)}, s[0:1], 48
    s_load_dwordx2 {s(S_OUT,2)}, s[0:1], 64
    s_load_dwordx2 {s(S_WS,2)}, s[0:1], 80
    v_lshrrev_b32 v{r.t0}, 6, v0
    v_and_b32 v{r.lane}, 63, v0
    v_readfirstlane_b32 s{S_V}, v{r.t0}
    v_mov_b32 v{r.Zero}, 0
    s_mul_i32 s{S_NODE0}, s2, {BN}
    s_sub_u32 s{S_NN}, {N}, s{S_NODE0}
    s_min_u32 s{S_NN}, s{S_NN}, {BN}
    s_lshr_b32 s{S_RT}, s{S_V}, 1
    s_and_b32 s{S_T}, s{S_V}, 1
    s_mov_b32 s{S_MODE}, 0
    v_lshrrev_b32 v{r.t1}, 4, v0
    v_lshlrev_b32 v{r.t2}, 10, v{r.t1}
    s_lshl_b32 s{S_TMP}, s2, 2
    s_waitcnt lgkmcnt(0)
    """)
    srd_off(a, SR_TAB, S_WS, S_WS+1, WS_TAB, NB * 1024)
    for rr in range(8):
        a(f"buffer_load_dword v{TABV+rr}, v{r.t2}, {s(SR_TAB,4)}, s{S_TMP} offen")
        if rr < 7: a(f"s_add_u32 s{S_TMP}, s{S_TMP}, 32768")
    srd(a, SR_H, f"s{S_H}", f"s{S_H+1}", N * 128)
    a(f"""
    s_sub_u32 s{SR_HD}, s{S_H}, 3072
    s_subb_u32 s{SR_HD+1}, s{S_H+1}, 0
    s_mov_b32 s{SR_HD+2}, {N*128+3072}
    s_mov_b32 s{SR_HD+3}, 0x00020000
    """)
    srd(a, SR_REC, f"s{S_WS}", f"s{S_WS+1}", NB * REC_STRIDE)
    srd_off(a, SR_FR, S_WS, S_WS+1, WS_FRAG, 34 * 1024)
    srd_off(a, SR_P4, S_WS, S_WS+1, WS_P4, N)
    a(f"s_and_b32 s{SR_P4+1}, s{SR_P4+1}, 0xffff\ns_or_b32 s{SR_P4+1}, s{SR_P4+1}, 0x80000")
    srd(a, SR_X, f"s{S_WX}", f"s{S_WX+1}", 128)
    if opt.stamp: a(f"v_mov_b32 v{r.ST}, 0")
    stamp(a, r, 0, True); stamp(a, r, 1)
    a(f"s_lshl_b32 s{S_TMP}, s{S_NODE0}, 7\ns_lshl_b32 s{S_TMP2}, s{S_NN}, 7")
    srd_off(a, SR_OUT, S_OUT, S_OUT+1, f"s{S_TMP}", f"s{S_TMP2}")
    a(f"""
    v_lshrrev_b32 v{r.t2}, 3, v{r.lane}
    v_and_b32 v{r.t3}, 7, v{r.lane}
    v_lshrrev_b32 v{r.t4}, 4, v{r.lane}
    s_lshl_b32 s{S_TMP}, s{S_T}, 2
    v_or_b32 v{r.t4}, s{S_TMP}, v{r.t4}
    v_xor_b32 v{r.t3}, v{r.t3}, v{r.t4}
    v_lshlrev_b32 v{r.t3}, 4, v{r.t3}
    v_lshl_add_u32 v{r.t3}, v{r.t2}, 7, v{r.t3}
    s_lshl_b32 s{S_TMP}, s{S_V}, 3
    s_add_u32 s{S_TMP}, s{S_TMP}, s{S_NODE0}
    s_lshl_b32 s{S_TMP}, s{S_TMP}, 7
    s_lshl_b32 s{S_TMP2}, s{S_V}, 10
    s_add_u32 m0, s{S_TMP2}, {L_RING}
    s_nop 0
    buffer_load_dwordx4 v{r.t3}, {s(SR_H,4)}, s{S_TMP} offen lds
    s_add_u32 m0, s{S_TMP2}, {L_RING + 8192}
    s_add_u32 s{S_TMP}, s{S_TMP}, 8192
    buffer_load_dwordx4 v{r.t3}, {s(SR_H,4)}, s{S_TMP} offen lds
    """)
    a(f"""
    v_add_u32 v{r.t2}, s{S_NODE0}, v0
    buffer_load_dwordx2 {v(r.PS,2)}, v{r.t2}, {s(SR_P4,4)}, 0 idxen
    v_and_b32 v{r.t2}, 3, v{r.lane}
    v_bfe_u32 v{r.t3}, v{r.lane}, 2, 3
    v_lshl_or_b32 v{r.t2}, v{r.t3}, 3, v{r.t2}
    v_lshrrev_b32 v{r.t3}, 5, v{r.lane}
    v_lshl_or_b32 v{r.t2}, v{r.t3}, 2, v{r.t2}
    v_lshlrev_b32 v{r.t2}, 1, v{r.t2}
    buffer_load_ushort v{r.Q}, v{r.t2}, {s(SR_X,4)}, 0 offen
    """)
    Z4 = r.U
    a(f"v_mov_b64 {v(Z4,2)}, 0\nv_mov_b64 {v(Z4+2,2)}, 0\nv_lshlrev_b32 v{r.t2}, 4, v0")
    def zero_region(base, size):
        assert base % 16 == 0 and size % 16 == 0
        full = size // 8192; rem = size % 8192
        a(f"v_add_u32 v{r.t3}, {base}, v{r.t2}")
        for k in range(full):
            a(f"ds_write_b128 v{r.t3}, {v(Z4,4)} offset:{k*8192}")
        if rem:
            a(f"v_cmp_gt_u32 vcc, {rem//16}, v0\ns_and_saveexec_b64 {s(S_M,2)}, vcc")
            a(f"ds_write_b128 v{r.t3}, {v(Z4,4)} offset:{full*8192}")
            a(f"s_mov_b64 exec, -1")
    zero_region(L_CNT, 512 + 16)
    zero_region(L_REC, L_RING)
    zero_region(L_SIMG, 8 * 2048)
    zero_region(L_ACC, 104 * ACC_ROW)
    FA = r.Desc
    a(f"v_lshlrev_b32 v{FA}, 4, v{r.lane}\ns_lshl_b32 s{S_TMP}, s{S_T}, 10")
    for base, dst in ((0, W1F), (4096, W1F + 8), (16384, WH1F), (20480, WH1F + 8)):
        a(f"s_add_u32 s{S_TMP2}, s{S_TMP}, {base}")
        a(f"buffer_load_dwordx4 {v(dst,4)}, v{FA}, {s(SR_FR,4)}, s{S_TMP2} offen")
        a(f"buffer_load_dwordx4 {v(dst+4,4)}, v{FA}, {s(SR_FR,4)}, s{S_TMP2} offen offset:2048")
    a(f"""
    s_mov_b32 s{S_C}, 0x{f2u(-LOG2E):08x}
    s_mov_b32 s{S_C+1}, 0x{f2u(-LOG2E):08x}
    s_mov_b32 s{S_ONE}, 1.0
    s_mov_b32 s{S_ONE+1}, 1.0
    s_mov_b32 s{S_NL}, 0x0000bf80
    s_mov_b32 s{S_NH}, 0xbf800000
    s_mov_b32 s{S_MSK}, 0xffffff80
    s_mov_b32 s{S_SO0}, 3072
    s_mov_b32 s{S_SO1}, 2048
    s_mov_b32 s{S_SO2}, 1024
    s_mov_b32 s{S_NT}, {L_NT}
    """)
    JJ = r.SA; LB = r.K; J16 = r.PI; MX = r.NA
    a(f"""
    v_and_b32 v{JJ}, 15, v0
    v_add_u32 v{J16}, 16, v{JJ}
    s_mov_b32 s{S_TMP}, {REC_STRIDE}
    v_mul_lo_u32 v{LB}, v{r.t1}, s{S_TMP}
    v_mad_u32_u24 v{LB}, v{JJ}, 12, v{LB}
    v_mov_b32 v{MX}, 0
    """)
    e_, hh_, t2, t3, t4 = r.t0, r.t1, r.t2, r.t3, r.t4
    a(f"""
    v_and_b32 v{e_}, 31, v{r.lane}
    v_lshrrev_b32 v{hh_}, 5, v{r.lane}
    s_lshl_b32 s{S_TMP}, s{S_V}, 12
    s_add_u32 s{S_TMP}, s{S_TMP}, {L_RING}
    v_and_b32 v{t2}, 3, v{e_}
    v_lshlrev_b32 v{t3}, 10, v{t2}
    v_lshrrev_b32 v{t4}, 2, v{e_}
    v_lshl_add_u32 v{t3}, v{t4}, 7, v{t3}
    v_add_u32 v{t3}, s{S_TMP}, v{t3}
    v_bfe_u32 v{t4}, v{e_}, 3, 1
    v_lshl_or_b32 v{t2}, v{t4}, 2, v{t2}
    v_xor_b32 v{t2}, v{t2}, v{hh_}
    """)
    for k in range(4):
        a(f"v_xor_b32 v{t4}, {2*k}, v{t2}\nv_lshl_add_u32 v{r.HA+k}, v{t4}, 4, v{t3}")
    a(f"""
    v_and_b32 v{t2}, 7, v{r.lane}
    v_bfe_u32 v{t3}, v{r.lane}, 4, 1
    v_lshlrev_b32 v{t3}, 2, v{t3}
    v_xor_b32 v{t2}, v{t2}, v{t3}
    """)
    for k in range(4):
        a(f"v_xor_b32 v{t4}, {k}, v{t2}\nv_lshlrev_b32 v{r.XK+k}, 4, v{t4}")
    a(f"""
    s_lshl_b32 s{S_TMP}, s{S_V}, 11
    s_add_u32 s{S_TMP}, s{S_TMP}, {L_SIMG}
    v_bfe_u32 v{t2}, v{e_}, 1, 3
    v_lshlrev_b32 v{t2}, 3, v{t2}
    v_lshl_add_u32 v{t2}, v{e_}, 6, v{t2}
    v_add_u32 v{r.SB}, s{S_TMP}, v{t2}
    v_bfe_u32 v{t2}, v{r.lane}, 2, 2
    v_lshl_add_u32 v{t2}, v{hh_}, 2, v{t2}
    v_bfe_u32 v{t3}, v{r.lane}, 4, 1
    v_and_b32 v{t4}, 3, v{r.lane}
    v_lshl_or_b32 v{t3}, v{t3}, 2, v{t4}
    v_lshrrev_b32 v{t4}, 1, v{t2}
    v_xor_b32 v{t3}, v{t3}, v{t4}
    v_lshlrev_b32 v{t2}, 6, v{t2}
    v_add_u32 v{t2}, s{S_TMP}, v{t2}
    v_lshl_add_u32 v{r.TR0}, v{t3}, 3, v{t2}
    v_xor_b32 v{t3}, 4, v{t3}
    v_lshl_add_u32 v{r.TR1}, v{t3}, 3, v{t2}
    v_add_u32 v{r.TR1}, 512, v{r.TR1}
    v_lshlrev_b32 v{t2}, 4, v{r.lane}
    v_add_u32 v{r.AWl}, {L_AT}, v{t2}
    ; flush addresses
    v_lshrrev_b32 v{t2}, 2, v{e_}
    v_mul_u32_u24 v{t2}, {ACC_ROW}, v{t2}
    v_add_u32 v{t2}, {L_ACC}, v{t2}
    v_lshl_add_u32 v{r.FlM}, v{hh_}, 4, v{t2}
    v_and_b32 v{t3}, 3, v{e_}
    v_lshl_add_u32 v{r.FlP}, v{t3}, 2, v{t2}
    v_add_u32 v{r.FlP}, 256, v{r.FlP}
    v_lshlrev_b32 v{t2}, 7, v{hh_}
    v_add_u32 v{r.WXa}, {L_WX}, v{t2}
    """)
    a("s_waitcnt vmcnt(12)")
    stamp(a, r, 2)
    for rr in range(8):
        a(f"""
        v_lshrrev_b32 v{r.t2}, 16, v{TABV+rr}
        v_and_b32 v{TABV+rr}, 0xffff, v{TABV+rr}
        v_max_u32 v{MX}, v{MX}, v{r.t2}
        v_mad_u32_u24 v{TABV+rr}, v{TABV+rr}, 12, v{LB}
        v_cmp_lt_u32 {s(S_M+2*rr,2)}, v{JJ}, v{r.t2}
        v_cmp_lt_u32 {s(S_M+16+2*rr,2)}, v{J16}, v{r.t2}
        s_mov_b32 s{S_TMP}, {rr*32*REC_STRIDE}
        s_mov_b64 exec, {s(S_M+2*rr,2)}
        buffer_load_dwordx3 {v(REC(rr),3)}, v{TABV+rr}, {s(SR_REC,4)}, s{S_TMP} offen
        s_mov_b64 exec, {s(S_M+16+2*rr,2)}
        buffer_load_dwordx3 {v(REC(8+rr),3)}, v{TABV+rr}, {s(SR_REC,4)}, s{S_TMP} offen offset:192
        s_mov_b64 exec, -1
        """)
    a("s_waitcnt vmcnt(16) lgkmcnt(0)\ns_barrier")
    for base, dst in ((8192, 0), (12288, 8)):
        a(f"s_mov_b32 s{S_TMP2}, {base}")
        for k, off in enumerate((0, 1024, 2048, 3072)):
            a(f"buffer_load_dwordx4 {v(r.W2 + 16*(k&1) + dst + 4*(k>>1),4)}, v{FA}, {s(SR_FR,4)}, s{S_TMP2} offen offset:{off}")
    a(f"s_mov_b32 s{S_TMP2}, 32768")
    a(f"buffer_load_dwordx4 {v(r.W5,4)}, v{FA}, {s(SR_FR,4)}, s{S_TMP2} offen")
    a(f"buffer_load_dwordx4 {v(r.W5+4,4)}, v{FA}, {s(SR_FR,4)}, s{S_TMP2} offen offset:1024")
    stamp(a, r, 3)
    a(f"""
    v_cmp_lt_u32 vcc, 32, v{MX}
    s_and_saveexec_b64 {s(S_D,2)}, vcc
    v_mov_b32 v{t2}, {L_FLAG}
    v_mov_b32 v{t3}, 1
    ds_write_b32 v{t2}, v{t3}
    s_mov_b64 exec, -1
    """)
    a(f"""
    s_lshl_b32 s{S_TMP}, s{S_RT}, 12
    s_add_u32 s{S_TMP}, s{S_TMP}, {L_RING}
    v_lshlrev_b32 v{t2}, 7, v{e_}
    v_add_u32 v{t2}, s{S_TMP}, v{t2}
    v_bfe_u32 v{t3}, v{e_}, 1, 3
    v_xor_b32 v{r.t5}, v{t3}, v{hh_}
    """)
    for k in range(4):
        a(f"v_xor_b32 v{t4}, {2*k}, v{r.t5}\nv_lshl_add_u32 v{t4}, v{t4}, 4, v{t2}\nds_read_b128 {v(r.H+4*k,4)}, v{t4}")
    a(f"""
    s_lshl_b32 s{S_TMP}, s{S_T}, 2
    v_xor_b32 v{r.t5}, s{S_TMP}, v{t3}
    v_lshl_add_u32 v{t2}, v{hh_}, 3, v{t2}
    """)
    for g in range(4):
        a(f"v_xor_b32 v{t4}, {g}, v{r.t5}\nv_lshl_add_u32 v{t4}, v{t4}, 4, v{t2}\nds_read_b64 {v(r.HR+2*g,2)}, v{t4}")
    NTD = r.AW
    a(f"""
    v_cmp_gt_u32 vcc, 104, v0
    s_and_saveexec_b64 {s(S_D,2)}, vcc
    v_and_b32 v{t2}, 1, v0
    v_lshlrev_b32 v{t2}, 4, v{t2}
    v_mov_b32 v{t3}, 0x3f80
    v_lshlrev_b32 v{t2}, v{t2}, v{t3}
    v_bfe_u32 v{t3}, v0, 1, 2
    """)
    for d in range(4):
        a(f"v_cmp_eq_u32 vcc, {d}, v{t3}\ns_nop 1\nv_cndmask_b32 v{NTD+d}, 0, v{t2}, vcc")
    a(f"""
    v_lshlrev_b32 v{NTD+4}, 16, v{r.PS}
    v_and_b32 v{NTD+5}, 0xffff0000, v{r.PS}
    v_lshlrev_b32 v{NTD+6}, 16, v{r.PS+1}
    v_and_b32 v{t3}, 7, v0
    v_lshlrev_b32 v{NTD+7}, 3, v{t3}
    v_lshlrev_b32 v{t3}, 5, v0
    v_add_u32 v{t3}, {L_NT}, v{t3}
    ds_write_b128 v{t3}, {v(NTD,4)}
    ds_write_b128 v{t3}, {v(NTD+4,4)} offset:16
    v_cmp_gt_u32 vcc, 64, v0
    s_and_b64 exec, exec, vcc
    v_lshlrev_b32 v{r.Q}, 16, v{r.Q}
    """)
    if opt.sc1:
        a(f"v_mul_f32 v{r.Q}, 0x{f2u(-LN2):08x}, v{r.Q}")
    a(f"""
    v_lshlrev_b32 v{t3}, 2, v0
    v_add_u32 v{t3}, {L_WX}, v{t3}
    ds_write_b32 v{t3}, v{r.Q}
    s_mov_b64 exec, -1
    s_waitcnt lgkmcnt(0)
    """)
    for k in range(4):
        a(mfma(AD, r.H+4*k, W1F+4*k, AD if k else None))
    for k in range(4):
        a(mfma(r.U, WH1F+4*k, r.H+4*k, r.U if k else None))
    a(f"""
    s_lshl_b32 s{S_TMP}, s{S_RT}, 13
    s_lshl_b32 s{S_TMP2}, s{S_T}, 10
    s_add_u32 s{S_TMP}, s{S_TMP}, s{S_TMP2}
    s_add_u32 s{S_TMP}, s{S_TMP}, {L_AT}
    v_lshlrev_b32 v{t2}, 4, v{e_}
    v_lshl_add_u32 v{t2}, v{hh_}, 3, v{t2}
    v_add_u32 v{t2}, s{S_TMP}, v{t2}
    s_nop 7
    """)
    HI = r.T; UP = r.T + 4; LO = r.T + 8
    for g in range(4):
        x = AD + 4 * g
        if g == 1:
            a(f"s_cmp_eq_u32 s{S_RT}, 3\ns_cbranch_scc1 K2_at_done")
        if opt.sc1:
            a(f"v_pk_mul_f32 {v(x,2)}, {v(x,2)}, {s(S_C,2)}\nv_pk_mul_f32 {v(x+2,2)}, {v(x+2,2)}, {s(S_C,2)}")
        a(f"""
        v_cvt_pk_bf16_f32 v{HI}, v{x}, v{x+1}
        v_cvt_pk_bf16_f32 v{HI+1}, v{x+2}, v{x+3}
        v_lshlrev_b32 v{UP}, 16, v{HI}
        v_and_b32 v{UP+1}, 0xffff0000, v{HI}
        v_lshlrev_b32 v{UP+2}, 16, v{HI+1}
        v_and_b32 v{UP+3}, 0xffff0000, v{HI+1}
        v_sub_f32 v{UP}, v{x}, v{UP}
        v_sub_f32 v{UP+1}, v{x+1}, v{UP+1}
        v_sub_f32 v{UP+2}, v{x+2}, v{UP+2}
        v_sub_f32 v{UP+3}, v{x+3}, v{UP+3}
        v_cvt_pk_bf16_f32 v{LO}, v{UP}, v{UP+1}
        v_cvt_pk_bf16_f32 v{LO+1}, v{UP+2}, v{UP+3}
        ds_write_b64 v{t2}, {v(HI,2)} offset:{g*2048}
        ds_write_b64 v{t2}, {v(LO,2)} offset:{g*2048+512}
        """)
    a.label("K2_at_done")
    ONE = r.Q; ADR = r.T
    a(f"v_mov_b32 v{ONE}, 1\ns_waitcnt vmcnt(10)")
    stamp(a, r, 4)
    a.label("K2_rank")
    a(f"s_mov_b32 s{S_TMP}, {L_CNT}")
    for q in range(16):
        if q >= 8:
            a(f"s_cmp_eq_u64 {s(S_M+2*q,2)}, 0\ns_cbranch_scc1 K2_rk{q}")
        a(f"""
        s_mov_b64 exec, {s(S_M+2*q,2)}
        v_and_b32 v{ADR+q}, 0x7f, v{REC(q)+2}
        v_lshl_add_u32 v{ADR+q}, v{ADR+q}, 2, s{S_TMP}
        ds_add_rtn_u32 v{REC(q)+3}, v{ADR+q}, v{ONE}
        """)
        if q >= 8: a.label(f"K2_rk{q}")
    a(f"""
    s_mov_b64 exec, -1
    v_lshlrev_b32 v{t2}, 3, v{r.lane}
    v_add_u32 v{t2}, {L_CNT}, v{t2}
    v_mov_b32 v{t3}, {L_FLAG}
    s_waitcnt lgkmcnt(0)
    s_barrier
    """)
    stamp(a, r, 5)
    C0 = r.K4; C1 = r.K4 + 1; FL = r.K4 + 2; SS = r.K4 + 3; TT = r.PD; PADR = r.PD + 1; SP = r.PD + 2; INC = r.PD + 3
    a(f"""
    ds_read_b64 {v(C0,2)}, v{t2}
    ds_read_b32 v{FL}, v{t3}
    v_and_b32 v{t4}, 3, v{r.lane}
    v_cmp_eq_u32 vcc, 3, v{t4}
    s_waitcnt lgkmcnt(0)
    v_add_u32 v{SS}, v{C0}, v{C1}
    v_readfirstlane_b32 s{S_TMP2}, v{FL}
    s_nop 0
    v_add_u32_dpp v{TT}, v{SS}, v{SS} quad_perm:[1,0,3,2] row_mask:0xf bank_mask:0xf
    s_nop 1
    v_add_u32_dpp v{TT}, v{TT}, v{TT} quad_perm:[2,3,0,1] row_mask:0xf bank_mask:0xf
    v_sub_u32 v{PADR}, 0, v{TT}
    v_and_b32 v{PADR}, 31, v{PADR}
    v_cndmask_b32 v{PADR}, 0, v{PADR}, vcc
    v_add_u32 v{SP}, v{SS}, v{PADR}
    v_mov_b32 v{INC}, v{SP}
    """)
    wave_scan(a, INC)
    a(f"""
    s_nop 0
    v_readlane_b32 s{S_TMP}, v{INC}, 63
    v_sub_u32 v{SP}, v{INC}, v{SP}
    v_add_u32 v{INC}, v{SP}, v{C0}
    ds_write_b64 v{t2}, {v(SP,2)} offset:{L_OFF-L_CNT}
    v_mov_b32_dpp v{PADR}, v{SP} quad_perm:[0,0,0,0] row_mask:0xf bank_mask:0xf
    v_add_u32 v{PADR}, v{PADR}, v{TT}
    v_and_b32 v{t3}, 60, v{r.lane}
    v_add_u32 v{t3}, {L_WEND}, v{t3}
    ds_write_b32 v{t3}, v{PADR}
    s_lshr_b32 s{S_TMP}, s{S_TMP}, 5
    s_cmp_gt_u32 s{S_TMP}, {CAPT}
    s_cselect_b32 s{S_TMP2}, 1, s{S_TMP2}
    s_cmp_lg_u32 s{S_TMP2}, 0
    s_cbranch_scc1 K2_slow
    s_and_b32 s{S_T0}, s{S_V}, 3
    s_lshl_b32 s{S_T0}, s{S_T0}, 1
    s_lshr_b32 s{S_NTL}, s{S_V}, 2
    s_add_u32 s{S_T0}, s{S_T0}, s{S_NTL}
    s_mul_i32 s{S_T0}, s{S_TMP}, s{S_T0}
    s_add_u32 s{S_NTL}, s{S_T0}, s{S_TMP}
    s_lshr_b32 s{S_T0}, s{S_T0}, 3
    s_lshr_b32 s{S_NTL}, s{S_NTL}, 3
    s_sub_u32 s{S_NTL}, s{S_NTL}, s{S_T0}
    """)
    for q in range(16):
        if q >= 8:
            a(f"s_cmp_eq_u64 {s(S_M+2*q,2)}, 0\ns_cbranch_scc1 K2_pa{q}")
        a(f"s_mov_b64 exec, {s(S_M+2*q,2)}\nds_read_b32 v{ADR+q}, v{ADR+q} offset:{L_OFF-L_CNT}")
        if q >= 8: a.label(f"K2_pa{q}")
    a("s_waitcnt lgkmcnt(0)")
    for q in range(16):
        if q >= 8:
            a(f"s_cmp_eq_u64 {s(S_M+2*q,2)}, 0\ns_cbranch_scc1 K2_pb{q}")
        a(f"""
        s_mov_b64 exec, {s(S_M+2*q,2)}
        v_add_u32 v{ADR+q}, v{ADR+q}, v{REC(q)+3}
        v_mul_u32_u24 v{ADR+q}, 12, v{ADR+q}
        ds_write2_b32 v{ADR+q}, v{REC(q)}, v{REC(q)+1} offset0:0 offset1:1
        ds_write_b32 v{ADR+q}, v{REC(q)+2} offset:8
        """)
        if q >= 8: a.label(f"K2_pb{q}")
    a(f"""
    s_mov_b64 exec, -1
    s_mul_i32 s{S_TMP}, s{S_T0}, 384
    v_and_b32 v{t2}, 31, v{r.lane}
    v_mul_u32_u24 v{t2}, 12, v{t2}
    v_add_u32 v{r.A1a}, s{S_TMP}, v{t2}
    v_lshrrev_b32 v{t2}, 3, v{r.lane}
    v_mul_u32_u24 v{t2}, 48, v{t2}
    v_add_u32 v{r.A2a}, s{S_TMP}, v{t2}
    v_add_u32 v{t3}, s{S_T0}, v{r.lane}
    v_mul_u32_u24 v{t2}, 384, v{t3}
    s_lshl_b32 s{S_TMP}, s{S_V}, 12
    s_add_u32 m0, s{S_TMP}, {L_RING}
    s_waitcnt lgkmcnt(0)
    s_barrier
    """)
    stamp(a, r, 6)
    a(f"""
    s_cmp_eq_u32 s{S_NTL}, 0
    s_cbranch_scc1 K2_main_end
    ds_read_b32 v{t4}, v{t2} offset:8
    """)
    for x in k_reads(r, 0): a(x)
    for i in range(0, 32, 2): a(f"v_mov_b64 {v(r.A0+i,2)}, 0")
    for i in range(0, 8, 2): a(f"v_mov_b64 {v(r.M+8+i,2)}, 0\nv_mov_b64 {v(r.S+i,2)}, 0")
    a("s_waitcnt lgkmcnt(0)")
    for x in dma_addr(r) + dma_issue(r) + posg(r): a(x)
    a(f"""
    v_bfe_u32 v{t4}, v{t4}, 3, 4
    v_lshlrev_b32 v{t2}, 2, v{t4}
    v_add_u32 v{t2}, {L_WEND}, v{t2}
    ds_read_b32 v{t2}, v{t2}
    ds_read_b128 {v(r.PD,4)}, v{r.NA} offset:16
    v_lshlrev_b32 v{t3}, 5, v{t3}
    s_waitcnt lgkmcnt(1)
    v_sub_u32 v{t2}, v{t2}, v{t3}
    v_min_u32 v{t2}, 32, v{t2}
    v_lshl_or_b32 v{r.Desc}, v{t2}, 8, v{t4}
    s_nop 0
    v_readlane_b32 s{S_D}, v{r.Desc}, 0
    s_nop 1
    s_and_b32 s{S_W}, s{S_D}, 0xff
    s_mov_b32 s{S_WP}, s{S_W}
    s_lshr_b32 s{S_CNT}, s{S_D}, 8
    s_lshl_b32 s{S_TMP}, s{S_W}, 11
    v_add_u32 v{r.AWa}, s{S_TMP}, v{r.AWl}
    """)
    for x in x_reads(r, 0): a(x)
    for x in k_reads(r, 1): a(x)
    a("s_waitcnt vmcnt(1)")
    for x in h_reads(r): a(x)
    a("s_waitcnt lgkmcnt(0)")
    for x in dma_addr(r) + dma_issue(r): a(x)
    a("s_waitcnt vmcnt(4)")
    for x in diff_valu(r) + posg(r): a(x)
    a("s_nop 1")
    for k in range(4):
        a(mfma(r.D0, r.H+4*k, r.W2+4*k, r.D0 if k else None))
    a(mfma(r.D0, r.X5, r.W5, r.D0)); a(mfma(r.D0, r.X6, r.AW, r.D0))
    a(f"s_mov_b32 s{S_I}, 1\ns_mov_b32 s{S_NFL}, 0\ns_nop 7\ns_nop 3")
    if opt.prio:
        a(f"s_cmp_lt_u32 s{S_V}, 4\ns_cbranch_scc1 K2_np\ns_setprio 1\nK2_np:")
    stamp(a, r, 7)
    a(".p2align 6")
    a.label("K2_loop")
    pre = k_reads(r, 2) + [f"ds_read_b128 {v(r.PD,4)}, v{r.NA} offset:16",
                           f"v_readlane_b32 s{S_D}, v{r.Desc}, s{S_I}"] + s_set(r)
    mf_exp = [mfma(r.D1, r.H+4*k, r.W2+16+4*k, r.D1 if k else None) for k in range(4)]
    mf_rcp = [mfma(r.D1, r.X5, r.W5+4, r.D1), mfma(r.D1, r.X6, r.AW+4, r.D1),
              mfma(r.A1, r.M+8, r.S, r.A1), mfma(r.A1, r.M+12, r.S+4, r.A1)]
    ins_exp = {2: [f"s_and_b32 s{S_TMP2}, s{S_D}, 0xff", f"s_lshl_b32 s{S_TMP}, s{S_TMP2}, 11"],
               5: [f"v_add_u32 v{r.AWa}, s{S_TMP}, v{r.AWl}"],
               13: ["s_waitcnt vmcnt(1)"] + h_reads(r)}
    ins_rcp = {2: ["s_waitcnt lgkmcnt(4)"] + dma_addr(r),
               5: ["s_waitcnt lgkmcnt(0)"] + dma_issue(r),
               6: x_reads(r, 1),
               13: s_reads(r)}
    silu_stage(a, r, r.D0, r.M, mf_exp, mf_rcp, ins_exp, ins_rcp, pre)
    a(f"s_cmp_eq_u32 s{S_W}, s{S_WP}\ns_cbranch_scc1 K2_noflush")
    if "flush" in opt.abl: a("s_branch K2_noflush")
    a(f"s_cmp_lg_u32 s{S_MODE}, 0\ns_cbranch_scc1 K2_flush_slow")
    a(f"s_mov_b32 s{S_NFL}, 1")
    flush_plain(a, r)
    a.label("K2_noflush")
    pre = [f"s_mov_b32 s{S_WP}, s{S_W}", f"s_mov_b32 s{S_W}, s{S_TMP2}", f"s_lshr_b32 s{S_CNT}, s{S_D}, 8",
           "s_waitcnt vmcnt(4)"] + diff_valu(r) + posg(r) + \
          [f"v_add_u32 v{r.A1a}, 384, v{r.A1a}", f"v_add_u32 v{r.A2a}, 384, v{r.A2a}"]
    mf_exp = [mfma(r.D0, r.H+4*k, r.W2+4*k, r.D0 if k else None) for k in range(4)]
    mf_rcp = [mfma(r.D0, r.X5, r.W5, r.D0), mfma(r.D0, r.X6, r.AW, r.D0),
              mfma(r.A0, r.M, r.S, r.A0), mfma(r.A0, r.M+4, r.S+4, r.A0)]
    ins_exp = {15: ["s_waitcnt lgkmcnt(0)"]}
    silu_stage(a, r, r.D1, r.M+8, mf_exp, mf_rcp, ins_exp, {}, pre)
    a(f"""
    s_add_u32 s{S_I}, s{S_I}, 1
    s_cmp_le_u32 s{S_I}, s{S_NTL}
    s_cbranch_scc1 K2_loop
    s_nop 0
    """)
    stamp(a, r, 8)
    a(mfma(r.A1, r.M+8, r.S, r.A1)); a(mfma(r.A1, r.M+12, r.S+4, r.A1))
    a("s_nop 15\ns_waitcnt vmcnt(0)")
    flush_dot(a, r)
    a("s_waitcnt lgkmcnt(0)")
    flush_dot2(a, r)
    a(f"s_cmp_lg_u32 s{S_MODE}, 0\ns_cbranch_scc1 K2_final_slow")
    a(f"""
    s_cmp_lg_u32 s{S_NFL}, 0
    s_cbranch_scc1 K2_main_end
    v_mov_b32 v{r.K}, {L_FLAG+4}
    v_mov_b32 v{r.PI}, 1
    ds_write_b32 v{r.K}, v{r.PI}
    """)
    a.label("K2_main_end")
    a(f"s_cmp_lg_u32 s{S_MODE}, 0\ns_cbranch_scc1 K2_slow_next")
    stamp(a, r, 9)
    a(f"""
    v_mov_b32 v{r.K}, {L_FLAG+4}
    s_waitcnt lgkmcnt(0)
    s_barrier
    s_cmp_eq_u32 s{S_NTL}, 0
    s_cbranch_scc1 K2_epi
    """)
    flush_rmw_tail(a, r)
    a.label("K2_epi")
    if opt.stamp: a(f"v_writelane_b32 v{r.ST}, s{S_NTL}, 20")
    WH2 = r.W2; MR = r.D0
    a(f"v_lshlrev_b32 v{r.t5}, 4, v{r.lane}\ns_lshl_b32 s{S_TMP}, s{S_T}, 10")
    for sidx in range(4):
        a(f"s_add_u32 s{S_TMP2}, s{S_TMP}, {24*1024 + sidx*2048}")
        a(f"buffer_load_dwordx4 {v(WH2+4*sidx,4)}, v{r.t5}, {s(SR_FR,4)}, s{S_TMP2} offen")
    a(f"""
    s_mul_i32 s{S_TMP}, s{S_NODE0}, 6
    s_add_u32 s{S_TMP}, s{S_TMP}, {OUT_POS}
    s_mul_i32 s{S_TMP2}, s{S_NN}, 6
    """)
    srd_off(a, SR_X, S_OUT, S_OUT+1, f"s{S_TMP}", f"s{S_TMP2}")
    a(f"""
    v_and_b32 v{e_}, 31, v{r.lane}
    v_lshrrev_b32 v{hh_}, 5, v{r.lane}
    s_mul_i32 s{S_TMP}, s{S_RT}, {32*ACC_ROW}
    s_add_u32 s{S_TMP}, s{S_TMP}, {L_ACC}
    v_mul_u32_u24 v{t2}, {ACC_ROW}, v{e_}
    v_lshl_add_u32 v{t2}, v{hh_}, 5, v{t2}
    v_add_u32 v{t2}, s{S_TMP}, v{t2}
    ; pos output addresses: node=tid/3, c=tid%3
    v_min_u32 v{t3}, 311, v0
    v_mul_u32_u24 v{t4}, 171, v{t3}
    v_lshrrev_b32 v{t4}, 9, v{t4}
    v_mul_u32_u24 v{r.t5}, 3, v{t4}
    v_sub_u32 v{r.t5}, v{t3}, v{r.t5}
    v_lshlrev_b32 v{r.t5}, 2, v{r.t5}
    v_lshl_add_u32 v{r.K}, v{t4}, 5, v{r.t5}
    v_add_u32 v{r.K}, {L_NT+16}, v{r.K}
    v_mul_u32_u24 v{r.PI}, {ACC_ROW}, v{t4}
    v_add_u32 v{r.PI}, v{r.PI}, v{r.t5}
    v_add_u32 v{r.PI}, {L_ACC+256}, v{r.PI}
    s_waitcnt lgkmcnt(0)
    s_barrier
    """)
    stamp(a, r, 10)
    for k in range(4):
        a(f"ds_read_b128 {v(MR+8*k,4)}, v{t2} offset:{64*k}\nds_read_b128 {v(MR+8*k+4,4)}, v{t2} offset:{64*k+16}")
    a(f"ds_read_b32 v{r.K}, v{r.K}\nds_read_b32 v{r.PI}, v{r.PI}")
    if opt.sc1:
        a(f"s_mov_b32 s{S_D}, 0x{f2u(-LN2):08x}\ns_mov_b32 s{S_D+1}, 0x{f2u(-LN2):08x}")
    for k in range(4):
        a(f"s_waitcnt lgkmcnt({8-2*k})")
        if opt.sc1:
            for j in range(0, 8, 2):
                a(f"v_pk_mul_f32 {v(MR+8*k+j,2)}, {v(MR+8*k+j,2)}, {s(S_D,2)}")
        for j in range(4):
            a(f"v_cvt_pk_bf16_f32 v{r.H+4*k+j}, v{MR+8*k+2*j}, v{MR+8*k+2*j+1}")
    a("s_waitcnt vmcnt(0)")
    for k in range(4):
        a(mfma(r.U, WH2+4*k, r.H+4*k, r.U))
    a(f"""
    s_waitcnt lgkmcnt(0)
    v_add_f32 v{r.K}, v{r.K}, v{r.PI}
    v_cvt_pk_bf16_f32 v{r.K}, v{r.K}, v{r.K}
    v_lshlrev_b32 v{r.PI}, 1, v0
    buffer_store_short v{r.K}, v{r.PI}, {s(SR_X,4)}, 0 offen
    s_lshl_b32 s{S_TMP}, s{S_V}, 12
    s_add_u32 s{S_TMP}, s{S_TMP}, {L_RING}
    v_mul_u32_u24 v{t2}, 80, v{e_}
    v_lshl_add_u32 v{t2}, v{hh_}, 3, v{t2}
    v_add_u32 v{t2}, s{S_TMP}, v{t2}
    v_lshrrev_b32 v{t3}, 2, v{r.lane}
    v_and_b32 v{t4}, 3, v{r.lane}
    v_lshlrev_b32 v{t4}, 4, v{t4}
    v_lshl_add_u32 v{r.t5}, v{t3}, 7, v{t4}
    v_mul_u32_u24 v{t3}, 80, v{t3}
    v_add3_u32 v{t3}, v{t3}, v{t4}, s{S_TMP}
    s_lshl_b32 s{S_TMP}, s{S_RT}, 12
    s_lshl_b32 s{S_TMP2}, s{S_T}, 6
    s_add_u32 s{S_TMP}, s{S_TMP}, s{S_TMP2}
    s_nop 3
    """)
    T = r.T; U = r.U
    for i in range(0, 16, 2): a(f"v_pk_mul_f32 {v(T+i,2)}, {v(U+i,2)}, {s(S_C,2)}")
    for i in range(16): a(f"v_exp_f32 v{T+i}, v{T+i}")
    for i in range(0, 16, 2): a(f"v_pk_add_f32 {v(T+i,2)}, {v(T+i,2)}, {s(S_ONE,2)}")
    for i in range(16): a(f"v_rcp_f32 v{T+i}, v{T+i}")
    for j in range(8):
        a(f"v_lshlrev_b32 v{MR+2*j}, 16, v{r.HR+j}\nv_and_b32 v{MR+2*j+1}, 0xffff0000, v{r.HR+j}")
    for i in range(0, 16, 2):
        a(f"v_pk_fma_f32 {v(T+i,2)}, {v(T+i,2)}, {v(U+i,2)}, {v(MR+i,2)}")
    for i in range(0, 16, 2):
        a(f"v_cvt_pk_bf16_f32 v{r.M+i//2}, v{T+i}, v{T+i+1}")
    for g in range(4):
        a(f"ds_write_b64 v{t2}, {v(r.M+2*g,2)} offset:{16*g}")
    a(f"""
    s_waitcnt lgkmcnt(0)
    ds_read_b128 {v(r.H,4)}, v{t3}
    ds_read_b128 {v(r.H+4,4)}, v{t3} offset:1280
    s_waitcnt lgkmcnt(1)
    buffer_store_dwordx4 {v(r.H,4)}, v{r.t5}, {s(SR_OUT,4)}, s{S_TMP} offen
    s_waitcnt lgkmcnt(0)
    buffer_store_dwordx4 {v(r.H+4,4)}, v{r.t5}, {s(SR_OUT,4)}, s{S_TMP} offen offset:2048
    """)
    if opt.stamp: a("s_waitcnt vmcnt(0)")
    stamp(a, r, 11); stamp(a, r, 12, True)
    stamp_out(a, r, S_WS, r.t2, S_V, WS_STAMP)
    a(f"""
    K2_done:
    s_endpgm
    """)
    a.label("K2_final_atomic")
    flush_atomic_tail(a, r)
    a("s_branch K2_epi")
    a.label("K2_final_slow")
    flush_atomic_tail(a, r)
    a("s_branch K2_slow_next")
    a.label("K2_flush_slow")
    flush_dot(a, r)
    a("s_waitcnt lgkmcnt(0)")
    flush_dot2(a, r)
    flush_atomic_tail(a, r)
    acc_zero(a, r)
    a("s_branch K2_noflush")
    a(f"""
    K2_slow:
    s_mov_b32 s{S_MODE}, 1
    s_mov_b32 s{S_SEG}, 0
    K2_slow_round:
    s_waitcnt lgkmcnt(0)
    s_barrier
    v_cmp_gt_u32 vcc, 33, v0
    s_and_saveexec_b64 {s(S_D,2)}, vcc
    v_lshlrev_b32 v{t2}, 4, v0
    v_add_u32 v{t2}, {L_CNT}, v{t2}
    v_mov_b64 {v(r.K4,2)}, 0
    v_mov_b64 {v(r.K4+2,2)}, 0
    ds_write_b128 v{t2}, {v(r.K4,4)}
    s_mov_b64 exec, -1
    s_lshl_b32 s{S_TMP}, s{S_SEG}, 10
    s_lshl_b32 s{S_TMP2}, s2, 2
    s_add_u32 s{S_TMP}, s{S_TMP}, s{S_TMP2}
    buffer_load_dword v{t3}, v{r.Zero}, {s(SR_TAB,4)}, s{S_TMP} offen
    s_mul_i32 s{S_TMP}, s{S_SEG}, {REC_STRIDE}
    s_waitcnt vmcnt(0)
    v_lshrrev_b32 v{t4}, 16, v{t3}
    v_and_b32 v{t3}, 0xffff, v{t3}
    v_add_u32 v{t3}, v{t3}, v0
    v_mul_u32_u24 v{t3}, 12, v{t3}
    v_mov_b32 v{t2}, v0
    """)
    for q in range(7):
        a(f"""
        v_cmp_lt_u32 {s(S_M+2*q,2)}, v{t2}, v{t4}
        s_mov_b64 exec, {s(S_M+2*q,2)}
        buffer_load_dwordx3 {v(REC(q),3)}, v{t3}, {s(SR_REC,4)}, s{S_TMP} offen
        s_mov_b64 exec, -1
        v_add_u32 v{t2}, 512, v{t2}
        s_add_u32 s{S_TMP}, s{S_TMP}, {512*12}
        """)
    for q in range(7, 16):
        a(f"s_mov_b64 {s(S_M+2*q,2)}, 0")
    a(f"""
    v_mov_b32 v{ONE}, 1
    s_waitcnt vmcnt(0) lgkmcnt(0)
    s_barrier
    s_branch K2_rank
    K2_slow_next:
    s_add_u32 s{S_SEG}, s{S_SEG}, 1
    s_cmp_lt_u32 s{S_SEG}, {NB}
    s_cbranch_scc1 K2_slow_round
    s_branch K2_epi
    """)
    return a.text(), r.n

def build():
    k1, n1 = gen_k1(); k2, n2 = gen_k2()
    hdr = open("gather_scatter__cheap_equivariant_egnn__graph.s.ref").read().split("; Override")[0]
    out = hdr
    out += f"; @launch kernel=bin_kernel grid=({NB+1},1,1) block=({K1_THREADS},1,1) lds={K1_LDS}\n"
    out += f"; @launch kernel=edge_kernel grid=({NB},1,1) block=(512,1,1) lds={K2_LDS}\n"
    out += '.amdgcn_target "amdgcn-amd-amdhsa--gfx950"\n.text\n'
    for name, body, nv in (("bin_kernel", k1, n1), ("edge_kernel", k2, n2)):
        out += f".globl {name}\n.p2align 8\n.type {name},@function\n" + body + descriptor(name, nv)
    return out

if __name__ == "__main__":
    for arg in sys.argv[2:]:
        k, val = arg.split("=")
        cur = getattr(opt, k)
        setattr(opt, k, (val not in ("0", "False")) if isinstance(cur, bool) else type(cur)(val.replace("_", " ")))
    open(sys.argv[1], "w").write(build())
    print("K1 lds", K1_LDS, "K2 lds", K2_LDS, "K2 vgprs", alloc_k2().n)
```

```python
import sys, struct

N = 25000; E = 800000; NB = 256; BN = 98; CH = 3136
REC_STRIDE = CH * 12
WS_REC = 0
WS_TAB = NB * REC_STRIDE
WS_P4 = WS_TAB + NB * 1024
WS_FRAG = WS_P4 + 200704
OUT_POS = N * 128

def f2u(x): return struct.unpack("<I", struct.pack("<f", x))[0]
LOG2E = 1.4426950408889634
LN2 = 0.6931471805599453

class Opt:
    sc1 = False
    warm = True
    k1_store = "sc1"
    k1_load = ""
    abl = ""
    prio = 0
    stamp = False
opt = Opt()

class Asm:
    def __init__(self): self.L = []
    def __call__(self, s):
        for x in s.strip("\n").split("\n"):
            self.L.append("    " + x.strip() if not x.strip().endswith(":") else x.strip())
    def label(self, n): self.L.append(n + ":")
    def text(self): return "\n".join(self.L) + "\n"

def v(i, n=1): return f"v{i}" if n == 1 else f"v[{i}:{i+n-1}]"
def s(i, n=1): return f"s{i}" if n == 1 else f"s[{i}:{i+n-1}]"

def srd(a, d, lo, hi, size):
    a(f"s_mov_b32 s{d}, {lo}\ns_mov_b32 s{d+1}, {hi}\ns_mov_b32 s{d+2}, {size}\ns_mov_b32 s{d+3}, 0x00020000")

def srd_off(a, d, blo, bhi, off, size):
    a(f"s_add_u32 s{d}, s{blo}, {off}\ns_addc_u32 s{d+1}, s{bhi}, 0\ns_mov_b32 s{d+2}, {size}\ns_mov_b32 s{d+3}, 0x00020000")

def wave_scan(a, r):
    for sh in (1, 2, 4, 8):
        a(f"s_nop 1\nv_add_u32_dpp v{r}, v{r}, v{r} row_shr:{sh} row_mask:0xf bank_mask:0xf bound_ctrl:0")
    a(f"s_nop 1\nv_add_u32_dpp v{r}, v{r}, v{r} row_bcast:15 row_mask:0xa bank_mask:0xf")
    a(f"s_nop 1\nv_add_u32_dpp v{r}, v{r}, v{r} row_bcast:31 row_mask:0xc bank_mask:0xf")

def descriptor(name, nvgpr, nsgpr=102):
    acc = (nvgpr + 3) // 4 * 4
    return f"""
.section .rodata,"a"
.p2align 6
.amdhsa_kernel {name}
  .amdhsa_next_free_vgpr {nvgpr}
  .amdhsa_next_free_sgpr {nsgpr}
  .amdhsa_accum_offset {acc}
  .amdhsa_group_segment_fixed_size 0
  .amdhsa_kernarg_size 88
  .amdhsa_user_sgpr_count 2
  .amdhsa_user_sgpr_kernarg_segment_ptr 1
  .amdhsa_system_sgpr_workgroup_id_x 1
  .amdhsa_float_denorm_mode_32 3
.end_amdhsa_kernel
.text
"""

K1_THREADS = 832
K1_HIST = 0; K1_OFF = 1024; K1_REC = 4096
K1_LDS = K1_REC + CH * 16

def k1stamp(a, i, real=False):
    if not opt.stamp: return
    a(f"s_waitcnt lgkmcnt(0)\n{'s_memrealtime' if real else 's_memtime'} s[64:65]\ns_waitcnt lgkmcnt(0)\nv_writelane_b32 v63, s64, {i}")

def gen_k1():
    a = Asm()
    a.label("bin_kernel")
    a(f"""
    s_cmp_gt_u32 s2, {NB}
    s_cbranch_scc1 K1_done
    s_load_dwordx8 s[8:15], s[0:1], 8
    s_load_dwordx2 s[16:17], s[0:1], 80
    s_load_dwordx2 s[4:5], s[0:1], 40
    s_load_dwordx2 s[6:7], s[0:1], 56
    v_lshlrev_b32 v1, 2, v0
    v_mov_b32 v2, 0
    ds_write_b32 v1, v2
    v_lshlrev_b32 v3, 4, v0
    v_lshlrev_b32 v4, 5, v0
    s_mul_i32 s18, s2, {CH*4}
    s_lshl_b32 s19, s18, 1
    s_mov_b32 s50, {CH//4}
    s_cmp_eq_u32 s2, {NB-1}
    s_cselect_b32 s50, {(E-(NB-1)*CH)//4}, s50
    s_mul_i32 s51, s50, 48
    s_mul_i32 s52, s2, {REC_STRIDE}
    s_mul_i32 s53, s2, {BN}
    v_add_u32 v5, s53, v0
    v_mul_u32_u24 v6, 6, v5
    v_lshlrev_b32 v7, 3, v5
    s_waitcnt lgkmcnt(0)
    s_cmp_eq_u32 s2, {NB}
    s_cbranch_scc1 K1_prep
    """)
    if opt.stamp: a("v_mov_b32 v63, 0")
    k1stamp(a, 0, True); k1stamp(a, 1)
    srd(a, 20, "s14", "s15", E * 4)
    srd(a, 24, "s12", "s13", E * 4)
    srd(a, 28, "s10", "s11", E * 8)
    srd(a, 32, "s8", "s9", N * 6)
    srd_off(a, 36, 16, 17, "s52", "s51")
    srd_off(a, 40, 16, 17, WS_TAB, NB * 1024)
    srd_off(a, 44, 16, 17, WS_P4, N * 8)
    a(f"""
    v_cmp_gt_u32 vcc, {BN}, v0
    s_and_saveexec_b64 s[58:59], vcc
    s_mov_b64 s[60:61], exec
    buffer_load_ushort v24, v6, s[32:35], 0 offen
    buffer_load_ushort v25, v6, s[32:35], 0 offen offset:2
    buffer_load_ushort v26, v6, s[32:35], 0 offen offset:4
    s_mov_b64 exec, -1
    v_cmp_gt_u32 vcc, s50, v0
    s_and_saveexec_b64 s[54:55], vcc
    s_mov_b64 s[56:57], exec
    buffer_load_dwordx4 v[8:11], v3, s[20:23], s18 offen {opt.k1_load}
    buffer_load_dwordx4 v[12:15], v3, s[24:27], s18 offen {opt.k1_load}
    buffer_load_dwordx4 v[16:19], v4, s[28:31], s19 offen {opt.k1_load}
    buffer_load_dwordx4 v[20:23], v4, s[28:31], s19 offen offset:16 {opt.k1_load}
    s_mov_b32 s62, 5350
    s_mov_b32 s63, {BN}
    v_mov_b32 v27, 1
    s_barrier
    s_waitcnt vmcnt(3)
    """)
    k1stamp(a, 2)
    for k in range(4):
        a(f"""
        v_mul_u32_u24 v{28+k}, s62, v{8+k}
        v_lshrrev_b32 v{28+k}, 19, v{28+k}
        v_mul_u32_u24 v{32+k}, s63, v{28+k}
        v_lshlrev_b32 v{28+k}, 2, v{28+k}
        ds_add_rtn_u32 v{36+k}, v{28+k}, v27
        v_sub_u32 v{32+k}, v{8+k}, v{32+k}
        """)
    a("s_waitcnt vmcnt(2)")
    for k in range(4):
        a(f"v_lshl_or_b32 v{32+k}, v{12+k}, 7, v{32+k}")
    a(f"""
    s_mov_b64 exec, -1
    v_and_b32 v40, 63, v0
    v_lshlrev_b32 v40, 4, v40
    s_waitcnt lgkmcnt(0)
    s_barrier
    """)
    k1stamp(a, 3)
    a(f"""
    ds_read_b128 v[44:47], v40
    s_waitcnt lgkmcnt(0)
    v_add_u32 v49, v44, v45
    v_add_u32 v50, v49, v46
    v_add_u32 v51, v50, v47
    v_mov_b32 v52, v51
    """)
    wave_scan(a, 52)
    a(f"""
    v_sub_u32 v56, v52, v51
    v_add_u32 v57, v56, v44
    v_add_u32 v58, v56, v49
    v_add_u32 v59, v56, v50
    ds_write_b128 v40, v[56:59] offset:{K1_OFF}
    s_mov_b64 exec, s[56:57]
    """)
    for k in range(4):
        a(f"ds_read_b32 v{8+k}, v{28+k} offset:{K1_OFF}")
    a(f"""
    s_mov_b64 exec, -1
    v_cmp_gt_u32 vcc, 64, v0
    s_and_saveexec_b64 s[58:59], vcc
    s_cbranch_execz K1_notab
    v_lshl_or_b32 v56, v44, 16, v56
    v_lshl_or_b32 v57, v45, 16, v57
    v_lshl_or_b32 v58, v46, 16, v58
    v_lshl_or_b32 v59, v47, 16, v59
    s_lshl_b32 s3, s2, 10
    buffer_store_dwordx4 v[56:59], v40, s[40:43], s3 offen {opt.k1_store}
    K1_notab:
    s_mov_b64 exec, s[56:57]
    s_waitcnt lgkmcnt(0)
    """)
    for k in range(4):
        a(f"v_add_lshl_u32 v{8+k}, v{8+k}, v{36+k}, 4")
        a(f"ds_write_b32 v{8+k}, v{32+k} offset:{K1_REC+8}")
    k1stamp(a, 4)
    a("s_waitcnt vmcnt(0)")
    k1stamp(a, 5)
    for k in range(4):
        a(f"ds_write_b64 v{8+k}, v[{16+2*k}:{17+2*k}] offset:{K1_REC}")
    a(f"""
    s_mov_b64 exec, s[60:61]
    v_lshl_or_b32 v24, v25, 16, v24
    v_mov_b32 v25, v26
    buffer_store_dwordx2 v[24:25], v7, s[44:47], 0 offen {opt.k1_store}
    s_mov_b64 exec, -1
    v_mul_u32_u24 v6, 12, v0
    s_waitcnt lgkmcnt(0)
    s_barrier
    """)
    k1stamp(a, 6)
    for k in range(4):
        a(f"ds_read_b96 v[{8+4*k}:{10+4*k}], v3 offset:{K1_REC + k*K1_THREADS*16}")
    for k in range(4):
        a(f"s_mov_b32 s3, {k*K1_THREADS*12}")
        a(f"s_waitcnt lgkmcnt({3-k})")
        a(f"buffer_store_dwordx3 v[{8+4*k}:{10+4*k}], v6, s[36:39], s3 offen {opt.k1_store}")
    if opt.stamp:
        k1stamp(a, 7); a("s_waitcnt vmcnt(0)"); k1stamp(a, 8); k1stamp(a, 12, True)
        a(f"""
        v_lshrrev_b32 v1, 6, v0
        s_nop 0
        v_readfirstlane_b32 s66, v1
        s_lshl_b32 s64, s2, 4
        s_add_u32 s64, s64, s66
        s_lshl_b32 s64, s64, 8
        s_add_u32 s64, s64, {(64<<20) + (2<<20)}
        s_add_u32 s64, s16, s64
        s_addc_u32 s65, s17, 0
        v_and_b32 v1, 63, v0
        v_lshlrev_b32 v1, 2, v1
        global_store_dword v1, v63, s[64:65]
        """)
    a("s_endpgm")
    a.label("K1_prep")
    srd(a, 20, "s4", "s5", 133 * 128)
    srd(a, 24, "s6", "s7", 128 * 128)
    srd_off(a, 28, 16, 17, WS_FRAG, 34 * 1024)
    a(f"""
    v_lshrrev_b32 v1, 6, v0
    s_nop 0
    v_readfirstlane_b32 s40, v1
    v_and_b32 v2, 63, v0
    v_and_b32 v3, 31, v0
    v_lshrrev_b32 v4, 5, v2
    v_lshlrev_b32 v5, 10, v4
    v_lshl_add_u32 v5, v3, 1, v5
    v_lshlrev_b32 v6, 4, v2
    s_mov_b32 s45, 0x{f2u(-LOG2E):08x}
    K1_qloop:
    s_cmp_ge_u32 s40, 32
    s_cbranch_scc1 K1_q5
    s_cmp_lt_u32 s40, 16
    s_cselect_b32 s32, s20, s24
    s_cselect_b32 s33, s21, s25
    s_cselect_b32 s34, s22, s26
    s_mov_b32 s35, 0x00020000
    s_and_b32 s41, s40, 15
    s_lshr_b32 s42, s41, 1
    s_lshl_b32 s42, s42, 11
    s_and_b32 s43, s40, 1
    s_lshl_b32 s43, s43, 6
    s_add_u32 s42, s42, s43
    """)
    for j in range(8):
        a(f"buffer_load_ushort v{8+j}, v5, s[32:35], s42 offen offset:{j*128}")
    a("s_waitcnt vmcnt(0)")
    if opt.sc1:
        a("""
        s_lshr_b32 s44, s40, 3
        s_cmp_eq_u32 s44, 1
        s_cbranch_scc0 K1_noscale
        """)
        for j in range(8):
            a(f"v_lshlrev_b32 v{8+j}, 16, v{8+j}\nv_mul_f32 v{8+j}, s45, v{8+j}")
        for j in range(4):
            a(f"v_cvt_pk_bf16_f32 v{16+j}, v{8+2*j}, v{9+2*j}")
        a("s_branch K1_qstore\nK1_noscale:")
    for j in range(4):
        a(f"v_lshl_or_b32 v{16+j}, v{9+2*j}, 16, v{8+2*j}")
    a(f"""
    K1_qstore:
    s_lshl_b32 s46, s40, 10
    buffer_store_dwordx4 v[16:19], v6, s[28:31], s46 offen
    s_add_u32 s40, s40, 13
    s_branch K1_qloop
    K1_q5:
    s_cmp_ge_u32 s40, 34
    s_cbranch_scc1 K1_done
    s_and_b32 s43, s40, 1
    s_lshl_b32 s43, s43, 6
    s_add_u32 s42, s43, {128*128}
    v_lshlrev_b32 v7, 1, v3
    """)
    for j in range(4):
        a(f"buffer_load_ushort v{8+j}, v7, s[20:23], s42 offen offset:{(1+j)*128}")
    a("buffer_load_ushort v12, v7, s[20:23], s42 offen")
    a("v_cmp_eq_u32 vcc, 0, v4\ns_waitcnt vmcnt(0)\ns_nop 0")
    if opt.sc1:
        for j in range(5):
            a(f"""
            v_lshlrev_b32 v{8+j}, 16, v{8+j}
            v_mul_f32 v{8+j}, s45, v{8+j}
            v_cvt_pk_bf16_f32 v20, v{8+j}, v{8+j}
            v_and_b32 v21, 0xffff0000, v20
            v_sub_f32 v21, v{8+j}, v21
            v_cvt_pk_bf16_f32 v21, v21, v21
            v_cndmask_b32 v20, v21, v20, vcc
            v_and_b32 v{8+j}, 0xffff, v20
            """)
    else:
        for j in range(5):
            a(f"v_cndmask_b32 v{8+j}, 0, v{8+j}, vcc")
    a(f"""
    v_lshl_or_b32 v16, v9, 16, v8
    v_lshl_or_b32 v17, v11, 16, v10
    v_mov_b32 v18, 0
    v_lshlrev_b32 v19, 16, v12
    s_lshl_b32 s46, s40, 10
    buffer_store_dwordx4 v[16:19], v6, s[28:31], s46 offen
    K1_done:
    s_endpgm
    """)
    return a.text(), 64

CAPT = 116
L_REC = 0
L_RING = 45056
L_SIMG = L_RING + 8 * 4096
L_AT = L_SIMG + 8 * 2048
L_ACC = L_AT + 13 * 2048
ACC_ROW = 272
L_NT = L_ACC + 104 * ACC_ROW
L_WX = L_NT + 104 * 32
L_CNT = L_WX + 256
L_FLAG = L_CNT + 512
L_OFF = L_FLAG + 16
L_WEND = L_OFF + 512
K2_LDS = L_WEND + 64

WS_STAMP = 64 << 20
def stamp(a, r, i, real=False):
    if not opt.stamp: return
    a(f"s_waitcnt lgkmcnt(0)\n{'s_memrealtime' if real else 's_memtime'} s[4:5]\ns_waitcnt lgkmcnt(0)\nv_writelane_b32 v{r.ST}, s4, {i}")
def stamp_out(a, r, wsp, tmp, wave_sgpr, base):
    if not opt.stamp: return
    a(f"""
    s_lshl_b32 s4, s2, 4
    s_add_u32 s4, s4, s{wave_sgpr}
    s_lshl_b32 s4, s4, 8
    s_add_u32 s4, s4, {base}
    s_add_u32 s4, s{wsp}, s4
    s_addc_u32 s5, s{wsp+1}, 0
    v_and_b32 v{tmp}, 63, v0
    v_lshlrev_b32 v{tmp}, 2, v{tmp}
    global_store_dword v{tmp}, v{r.ST}, s[4:5]
    """)

class R: pass
def alloc_k2():
    r = R(); n = [1]
    def al(cnt, align=1):
        n[0] = (n[0] + align - 1) // align * align
        x = n[0]; n[0] += cnt; return x
    r.lane = al(1); r.t0 = al(1); r.t1 = al(1)
    r.D0 = al(16, 4); r.D1 = al(16); r.A0 = al(16); r.A1 = al(16)
    r.W2 = al(32); r.W5 = al(8); r.AW = al(8); r.H = al(16)
    r.X5 = al(4); r.X6 = al(4); r.S = al(8)
    r.M = al(16); r.T = al(16); r.U = al(16); r.HR = al(8)
    r.K4 = al(4); r.PD = al(4); r.PS = al(2); r.HA = al(4); r.XK = al(4)
    for nm in "A1a A2a SB TR0 TR1 AWl AWa Desc Zero FlM FlP WXa K PI NA Q SA t2 t3 t4 t5 ST".split():
        setattr(r, nm, al(1))
    r.n = n[0]
    return r

def mfma(d, a_, b_, c=None):
    cc = "0" if c is None else v(c, 16)
    return f"v_mfma_f32_32x32x16_bf16 {v(d,16)}, {v(a_,4)}, {v(b_,4)}, {cc}"

S_B = 2
S_H = 4; S_WX = 6; S_OUT = 8; S_WS = 10
SR_HD = 12
SR_P4 = 16
SR_REC = 20; SR_TAB = 24; SR_FR = 28; SR_H = 32; SR_OUT = 36; SR_X = 40
S_V = 44; S_RT = 45; S_T = 46; S_NODE0 = 47; S_NN = 48
S_C = 50
S_ONE = 52
S_NL = 54; S_NH = 55
S_MSK = 56
S_SO0 = 57; S_SO1 = 58; S_SO2 = 59
S_NT = 60
S_I = 61; S_NTL = 62; S_CNT = 63; S_W = 64; S_WP = 65; S_D = 66; S_TMP = 67; S_TMP2 = 68; S_T0 = 69
S_MODE = 49; S_SEG = 3; S_NFL = 6
S_M = 70

def silu_stage(a, r, D, Mo, mf_exp, mf_rcp, ins_exp, ins_rcp, pre=(), post=()):
    T = r.T
    if opt.abl:
        a0 = a
        def flt(x):
            for y in x.split("\n"):
                y = y.strip()
                if "vmem" in opt.abl and (y.startswith("buffer_") or "vmcnt" in y): continue
                if "lds" in opt.abl and (y.startswith("ds_") or "lgkmcnt" in y): continue
                if "misc" in opt.abl and (y.startswith("v_") and not y.startswith("v_mfma") and not y.startswith("v_readlane") and "A1a" not in y and not insilu[0]): continue
                if "dot" in opt.abl and (y.startswith("v_dot2") or y.startswith("s_nop")): continue
                if "mfma" in opt.abl and y.startswith("v_mfma"): continue
                a0(y)
        insilu = [False]
        pre = list(pre); ins_exp = dict(ins_exp); ins_rcp = dict(ins_rcp)
        class W:
            def __call__(self, x):
                insilu[0] = any(x.startswith(p) for p in ("v_pk_mul", "v_pk_add", "v_exp", "v_rcp")) or (x.startswith("v_cvt_pk") and f"v{T}" <= x.split(",")[1].strip() <= f"v{T+15}")
                flt(x)
        a = W()
    for x in pre: a(x)
    if not opt.sc1:
        for i in range(0, 16, 2):
            a(f"v_pk_mul_f32 {v(T+i,2)}, {v(D+i,2)}, {s(S_C,2)}")
    for i in range(16):
        if i % 4 == 0: a(mf_exp[i // 4])
        a(f"v_exp_f32 v{T+i}, v{(D if opt.sc1 else T)+i}")
        for x in ins_exp.get(i, ()): a(x)
    for i in range(0, 16, 2):
        a(f"v_pk_add_f32 {v(T+i,2)}, {v(T+i,2)}, {s(S_ONE,2)}")
    for i in range(16):
        if i % 4 == 0: a(mf_rcp[i // 4])
        a(f"v_rcp_f32 v{T+i}, v{T+i}")
        for x in ins_rcp.get(i, ()): a(x)
    for i in range(0, 16, 2):
        a(f"v_pk_mul_f32 {v(T+i,2)}, {v(T+i,2)}, {v(D+i,2)}")
    for i in range(0, 16, 2):
        a(f"v_cvt_pk_bf16_f32 v{Mo+i//2}, v{T+i}, v{T+i+1}")
    for x in post: a(x)

def diff_valu(r):
    return [
        f"v_dot2_f32_bf16 v{r.t2}, v{r.PS}, s{S_NL}, v{r.PD}",
        f"v_dot2_f32_bf16 v{r.t3}, v{r.PS}, s{S_NH}, v{r.PD+1}",
        f"v_dot2_f32_bf16 v{r.t4}, v{r.PS+1}, s{S_NL}, v{r.PD+2}",
        f"v_xor_b32 v{r.SA}, v{r.SB}, v{r.PD+3}",
        "s_nop 1",
        f"v_cvt_pk_bf16_f32 v{r.X5+2}, v{r.t2}, v{r.t3}",
        f"v_cvt_pk_bf16_f32 v{r.t5}, v{r.t4}, 0",
        f"v_cvt_pk_bf16_f32 v{r.Q}, v{r.t4}, 1.0",
        f"v_dot2_f32_bf16 v{r.t2}, v{r.X5+2}, v{r.X5+2}, 0",
        f"v_dot2_f32_bf16 v{r.t2}, v{r.t5}, v{r.t5}, v{r.t2}",
        "s_nop 2",
        f"v_cvt_pk_bf16_f32 v{r.X5+3}, v{r.t4}, v{r.t2}",
    ]

def k_reads(r, tile_off):
    o = tile_off * 384 + 8
    return [f"ds_read_b32 v{r.K}, v{r.A1a} offset:{o}",
            f"ds_read2_b32 {v(r.K4,2)}, v{r.A2a} offset0:{o//4} offset1:{o//4+3}",
            f"ds_read2_b32 {v(r.K4+2,2)}, v{r.A2a} offset0:{o//4+6} offset1:{o//4+9}"]
def dma_addr(r):
    return [f"v_and_or_b32 v{r.K4+k}, v{r.K4+k}, s{S_MSK}, v{r.XK+k}" for k in range(4)]
def dma_issue(r):
    so = [f"s{S_SO0}", f"s{S_SO1}", f"s{S_SO2}", "0"]
    return [f"buffer_load_dwordx4 v{r.K4+k}, {s(SR_HD,4)}, {so[k]} offen offset:{1024*k} lds" for k in range(4)]
def h_reads(r):
    return [f"ds_read_b128 {v(r.H+4*k,4)}, v{r.HA+k}" for k in range(4)]
def posg(r):
    return [f"v_lshrrev_b32 v{r.PI}, 7, v{r.K}",
            f"v_and_b32 v{r.NA}, 0x7f, v{r.K}",
            f"buffer_load_dwordx2 {v(r.PS,2)}, v{r.PI}, {s(SR_P4,4)}, 0 idxen",
            f"v_lshl_add_u32 v{r.NA}, v{r.NA}, 5, s{S_NT}"]
def x_reads(r, tile_off):
    o = tile_off * 384
    return [f"ds_read_b128 {v(r.X6,4)}, v{r.NA}",
            f"ds_read2_b32 {v(r.X5,2)}, v{r.A1a} offset0:{o//4} offset1:{o//4+1}",
            f"ds_read_b128 {v(r.AW,4)}, v{r.AWa}",
            f"ds_read_b128 {v(r.AW+4,4)}, v{r.AWa} offset:1024"]
def s_set(r):
    return [f"s_bfm_b64 exec, s{S_CNT}, 0",
            f"ds_write2_b32 v{r.SA}, v{r.X5+2}, v{r.Q} offset0:0 offset1:1",
            "s_mov_b64 exec, -1"]
def s_reads(r):
    return [f"ds_read_b64_tr_b16 {v(r.S,2)}, v{r.TR0}",
            f"ds_read_b64_tr_b16 {v(r.S+2,2)}, v{r.TR1}",
            f"ds_read_b64_tr_b16 {v(r.S+4,2)}, v{r.TR0} offset:1024",
            f"ds_read_b64_tr_b16 {v(r.S+6,2)}, v{r.TR1} offset:1024",
            f"ds_write2_b32 v{r.SA}, v{r.Zero}, v{r.Zero} offset0:0 offset1:1"]

def flush_dot(a, r):
    a(f"s_mul_i32 s{S_TMP}, s{S_WP}, {8*ACC_ROW}")
    for q in range(4):
        a(f"ds_read_b128 {v(r.T+4*q,4)}, v{r.WXa} offset:{16*q}")
    for q in range(4):
        a(f"ds_read_b128 {v(r.D0+4*q,4)}, v{r.WXa} offset:{64+16*q}")
    a(f"""
    v_add_u32 v{r.t2}, s{S_TMP}, v{r.FlM}
    v_add_u32 v{r.t3}, s{S_TMP}, v{r.FlP}
    """)
def flush_dot2(a, r):
    a(f"v_pk_mul_f32 {v(r.T,2)}, {v(r.T,2)}, {v(r.A0,2)}")
    a(f"v_pk_mul_f32 {v(r.D0,2)}, {v(r.D0,2)}, {v(r.A1,2)}")
    for i in range(2, 16, 2):
        a(f"v_pk_fma_f32 {v(r.T,2)}, {v(r.T+i,2)}, {v(r.A0+i,2)}, {v(r.T,2)}")
        a(f"v_pk_fma_f32 {v(r.D0,2)}, {v(r.D0+i,2)}, {v(r.A1+i,2)}, {v(r.D0,2)}")
    a(f"""
    v_pk_add_f32 {v(r.T,2)}, {v(r.T,2)}, {v(r.D0,2)}
    v_add_f32 v{r.t4}, v{r.T}, v{r.T+1}
    v_add_f32 v{r.t5}, v{r.T}, v{r.T+1}
    s_nop 1
    v_permlane32_swap_b32 v{r.t4}, v{r.t5}
    s_nop 1
    v_add_f32 v{r.t4}, v{r.t4}, v{r.t5}
    """)
EX3 = "s_mov_b32 exec_lo, 0x88888888\ns_mov_b32 exec_hi, 0x88888888"
EXP = "s_mov_b32 exec_lo, 0x77777777\ns_mov_b32 exec_hi, 0"
def acc_zero(a, r):
    for i in range(0, 32, 2):
        a(f"v_mov_b64 {v(r.A0+i,2)}, 0")
def flush_plain(a, r):
    flush_dot(a, r)
    a(EX3)
    for q in range(8):
        a(f"ds_write_b128 v{r.t2}, {v(r.A0+4*q,4)} offset:{32*q}")
    a("s_mov_b64 exec, -1\ns_waitcnt lgkmcnt(8)")
    flush_dot2(a, r)
    a(EXP + f"\nds_write_b32 v{r.t3}, v{r.t4}\ns_mov_b64 exec, -1")
    acc_zero(a, r)
def flush_atomic_tail(a, r):
    a(EX3)
    for t, A in ((0, r.A0), (1, r.A1)):
        for i in range(16):
            a(f"ds_add_f32 v{r.t2}, v{A+i} offset:{(32*t + 8*(i>>2) + (i&3))*4}")
    a(EXP + f"\nds_add_f32 v{r.t3}, v{r.t4}\ns_mov_b64 exec, -1")
def flush_rmw_tail(a, r):
    a(f"ds_read_b32 v{r.K}, v{r.K}")
    a(EX3)
    for q in range(8):
        a(f"ds_read_b128 {v(r.D0+4*q,4)}, v{r.t2} offset:{32*q}")
    a(EXP + f"\nds_read_b32 v{r.t5}, v{r.t3}\ns_mov_b64 exec, -1\ns_waitcnt lgkmcnt(9)")
    a(f"""
    v_readfirstlane_b32 s{S_TMP}, v{r.K}
    s_nop 3
    s_cmp_lg_u32 s{S_TMP}, 0
    s_cbranch_scc1 K2_final_atomic
    """)
    a(EX3)
    for q in range(8):
        a(f"s_waitcnt lgkmcnt(8)")
        a(f"v_pk_add_f32 {v(r.D0+4*q,2)}, {v(r.D0+4*q,2)}, {v(r.A0+4*q,2)}")
        a(f"v_pk_add_f32 {v(r.D0+4*q+2,2)}, {v(r.D0+4*q+2,2)}, {v(r.A0+4*q+2,2)}")
        a(f"ds_write_b128 v{r.t2}, {v(r.D0+4*q,4)} offset:{32*q}")
    a(EXP + f"""
    s_waitcnt lgkmcnt(8)
    v_add_f32 v{r.t4}, v{r.t4}, v{r.t5}
    ds_write_b32 v{r.t3}, v{r.t4}
    s_mov_b64 exec, -1
    """)

def gen_k2():
    a = Asm(); r = alloc_k2()
    def REC(q): return r.D0 + 4 * q
    TABV = r.K4
    W1F = r.T; WH1F = r.M; AD = r.X5
    a.label("edge_kernel")
    a(f"""
    s_cmp_ge_u32 s2, {NB}
    s_cbranch_scc1 K2_done
    s_and_b32 s3, s2, 7
    s_lshl_b32 s3, s3, 5
    s_lshr_b32 s2, s2, 3
    s_or_b32 s2, s2, s3
    s_load_dwordx2 {s(S_H,2)}, s[0:1], 0
    s_load_dwordx2 {s(S_WX,2)}, s[0:1], 48
    s_load_dwordx2 {s(S_OUT,2)}, s[0:1], 64
    s_load_dwordx2 {s(S_WS,2)}, s[0:1], 80
    v_lshrrev_b32 v{r.t0}, 6, v0
    v_and_b32 v{r.lane}, 63, v0
    v_readfirstlane_b32 s{S_V}, v{r.t0}
    v_mov_b32 v{r.Zero}, 0
    s_mul_i32 s{S_NODE0}, s2, {BN}
    s_sub_u32 s{S_NN}, {N}, s{S_NODE0}
    s_min_u32 s{S_NN}, s{S_NN}, {BN}
    s_lshr_b32 s{S_RT}, s{S_V}, 1
    s_and_b32 s{S_T}, s{S_V}, 1
    s_mov_b32 s{S_MODE}, 0
    v_lshrrev_b32 v{r.t1}, 4, v0
    v_lshlrev_b32 v{r.t2}, 10, v{r.t1}
    s_lshl_b32 s{S_TMP}, s2, 2
    s_waitcnt lgkmcnt(0)
    """)
    srd_off(a, SR_TAB, S_WS, S_WS+1, WS_TAB, NB * 1024)
    for rr in range(8):
        a(f"buffer_load_dword v{TABV+rr}, v{r.t2}, {s(SR_TAB,4)}, s{S_TMP} offen")
        if rr < 7: a(f"s_add_u32 s{S_TMP}, s{S_TMP}, 32768")
    srd(a, SR_H, f"s{S_H}", f"s{S_H+1}", N * 128)
    a(f"""
    s_sub_u32 s{SR_HD}, s{S_H}, 3072
    s_subb_u32 s{SR_HD+1}, s{S_H+1}, 0
    s_mov_b32 s{SR_HD+2}, {N*128+3072}
    s_mov_b32 s{SR_HD+3}, 0x00020000
    """)
    srd(a, SR_REC, f"s{S_WS}", f"s{S_WS+1}", NB * REC_STRIDE)
    srd_off(a, SR_FR, S_WS, S_WS+1, WS_FRAG, 34 * 1024)
    srd_off(a, SR_P4, S_WS, S_WS+1, WS_P4, N)
    a(f"s_and_b32 s{SR_P4+1}, s{SR_P4+1}, 0xffff\ns_or_b32 s{SR_P4+1}, s{SR_P4+1}, 0x80000")
    srd(a, SR_X, f"s{S_WX}", f"s{S_WX+1}", 128)
    if opt.stamp: a(f"v_mov_b32 v{r.ST}, 0")
    stamp(a, r, 0, True); stamp(a, r, 1)
    a(f"s_lshl_b32 s{S_TMP}, s{S_NODE0}, 7\ns_lshl_b32 s{S_TMP2}, s{S_NN}, 7")
    srd_off(a, SR_OUT, S_OUT, S_OUT+1, f"s{S_TMP}", f"s{S_TMP2}")
    a(f"""
    v_lshrrev_b32 v{r.t2}, 3, v{r.lane}
    v_and_b32 v{r.t3}, 7, v{r.lane}
    v_lshrrev_b32 v{r.t4}, 4, v{r.lane}
    s_lshl_b32 s{S_TMP}, s{S_T}, 2
    v_or_b32 v{r.t4}, s{S_TMP}, v{r.t4}
    v_xor_b32 v{r.t3}, v{r.t3}, v{r.t4}
    v_lshlrev_b32 v{r.t3}, 4, v{r.t3}
    v_lshl_add_u32 v{r.t3}, v{r.t2}, 7, v{r.t3}
    s_lshl_b32 s{S_TMP}, s{S_V}, 3
    s_add_u32 s{S_TMP}, s{S_TMP}, s{S_NODE0}
    s_lshl_b32 s{S_TMP}, s{S_TMP}, 7
    s_lshl_b32 s{S_TMP2}, s{S_V}, 10
    s_add_u32 m0, s{S_TMP2}, {L_RING}
    s_nop 0
    buffer_load_dwordx4 v{r.t3}, {s(SR_H,4)}, s{S_TMP} offen lds
    s_add_u32 m0, s{S_TMP2}, {L_RING + 8192}
    s_add_u32 s{S_TMP}, s{S_TMP}, 8192
    buffer_load_dwordx4 v{r.t3}, {s(SR_H,4)}, s{S_TMP} offen lds
    """)
    a(f"""
    v_add_u32 v{r.t2}, s{S_NODE0}, v0
    buffer_load_dwordx2 {v(r.PS,2)}, v{r.t2}, {s(SR_P4,4)}, 0 idxen
    v_and_b32 v{r.t2}, 3, v{r.lane}
    v_bfe_u32 v{r.t3}, v{r.lane}, 2, 3
    v_lshl_or_b32 v{r.t2}, v{r.t3}, 3, v{r.t2}
    v_lshrrev_b32 v{r.t3}, 5, v{r.lane}
    v_lshl_or_b32 v{r.t2}, v{r.t3}, 2, v{r.t2}
    v_lshlrev_b32 v{r.t2}, 1, v{r.t2}
    buffer_load_ushort v{r.Q}, v{r.t2}, {s(SR_X,4)}, 0 offen
    """)
    Z4 = r.U
    a(f"v_mov_b64 {v(Z4,2)}, 0\nv_mov_b64 {v(Z4+2,2)}, 0\nv_lshlrev_b32 v{r.t2}, 4, v0")
    def zero_region(base, size):
        assert base % 16 == 0 and size % 16 == 0
        full = size // 8192; rem = size % 8192
        a(f"v_add_u32 v{r.t3}, {base}, v{r.t2}")
        for k in range(full):
            a(f"ds_write_b128 v{r.t3}, {v(Z4,4)} offset:{k*8192}")
        if rem:
            a(f"v_cmp_gt_u32 vcc, {rem//16}, v0\ns_and_saveexec_b64 {s(S_M,2)}, vcc")
            a(f"ds_write_b128 v{r.t3}, {v(Z4,4)} offset:{full*8192}")
            a(f"s_mov_b64 exec, -1")
    zero_region(L_CNT, 512 + 16)
    zero_region(L_REC, L_RING)
    zero_region(L_SIMG, 8 * 2048)
    zero_region(L_ACC, 104 * ACC_ROW)
    FA = r.Desc
    a(f"v_lshlrev_b32 v{FA}, 4, v{r.lane}\ns_lshl_b32 s{S_TMP}, s{S_T}, 10")
    for base, dst in ((0, W1F), (4096, W1F + 8), (16384, WH1F), (20480, WH1F + 8)):
        a(f"s_add_u32 s{S_TMP2}, s{S_TMP}, {base}")
        a(f"buffer_load_dwordx4 {v(dst,4)}, v{FA}, {s(SR_FR,4)}, s{S_TMP2} offen")
        a(f"buffer_load_dwordx4 {v(dst+4,4)}, v{FA}, {s(SR_FR,4)}, s{S_TMP2} offen offset:2048")
    a(f"""
    s_mov_b32 s{S_C}, 0x{f2u(-LOG2E):08x}
    s_mov_b32 s{S_C+1}, 0x{f2u(-LOG2E):08x}
    s_mov_b32 s{S_ONE}, 1.0
    s_mov_b32 s{S_ONE+1}, 1.0
    s_mov_b32 s{S_NL}, 0x0000bf80
    s_mov_b32 s{S_NH}, 0xbf800000
    s_mov_b32 s{S_MSK}, 0xffffff80
    s_mov_b32 s{S_SO0}, 3072
    s_mov_b32 s{S_SO1}, 2048
    s_mov_b32 s{S_SO2}, 1024
    s_mov_b32 s{S_NT}, {L_NT}
    """)
    JJ = r.SA; LB = r.K; J16 = r.PI; MX = r.NA
    a(f"""
    v_and_b32 v{JJ}, 15, v0
    v_add_u32 v{J16}, 16, v{JJ}
    s_mov_b32 s{S_TMP}, {REC_STRIDE}
    v_mul_lo_u32 v{LB}, v{r.t1}, s{S_TMP}
    v_mad_u32_u24 v{LB}, v{JJ}, 12, v{LB}
    v_mov_b32 v{MX}, 0
    """)
    e_, hh_, t2, t3, t4 = r.t0, r.t1, r.t2, r.t3, r.t4
    a(f"""
    v_and_b32 v{e_}, 31, v{r.lane}
    v_lshrrev_b32 v{hh_}, 5, v{r.lane}
    s_lshl_b32 s{S_TMP}, s{S_V}, 12
    s_add_u32 s{S_TMP}, s{S_TMP}, {L_RING}
    v_and_b32 v{t2}, 3, v{e_}
    v_lshlrev_b32 v{t3}, 10, v{t2}
    v_lshrrev_b32 v{t4}, 2, v{e_}
    v_lshl_add_u32 v{t3}, v{t4}, 7, v{t3}
    v_add_u32 v{t3}, s{S_TMP}, v{t3}
    v_bfe_u32 v{t4}, v{e_}, 3, 1
    v_lshl_or_b32 v{t2}, v{t4}, 2, v{t2}
    v_xor_b32 v{t2}, v{t2}, v{hh_}
    """)
    for k in range(4):
        a(f"v_xor_b32 v{t4}, {2*k}, v{t2}\nv_lshl_add_u32 v{r.HA+k}, v{t4}, 4, v{t3}")
    a(f"""
    v_and_b32 v{t2}, 7, v{r.lane}
    v_bfe_u32 v{t3}, v{r.lane}, 4, 1
    v_lshlrev_b32 v{t3}, 2, v{t3}
    v_xor_b32 v{t2}, v{t2}, v{t3}
    """)
    for k in range(4):
        a(f"v_xor_b32 v{t4}, {k}, v{t2}\nv_lshlrev_b32 v{r.XK+k}, 4, v{t4}")
    a(f"""
    s_lshl_b32 s{S_TMP}, s{S_V}, 11
    s_add_u32 s{S_TMP}, s{S_TMP}, {L_SIMG}
    v_bfe_u32 v{t2}, v{e_}, 1, 3
    v_lshlrev_b32 v{t2}, 3, v{t2}
    v_lshl_add_u32 v{t2}, v{e_}, 6, v{t2}
    v_add_u32 v{r.SB}, s{S_TMP}, v{t2}
    v_bfe_u32 v{t2}, v{r.lane}, 2, 2
    v_lshl_add_u32 v{t2}, v{hh_}, 2, v{t2}
    v_bfe_u32 v{t3}, v{r.lane}, 4, 1
    v_and_b32 v{t4}, 3, v{r.lane}
    v_lshl_or_b32 v{t3}, v{t3}, 2, v{t4}
    v_lshrrev_b32 v{t4}, 1, v{t2}
    v_xor_b32 v{t3}, v{t3}, v{t4}
    v_lshlrev_b32 v{t2}, 6, v{t2}
    v_add_u32 v{t2}, s{S_TMP}, v{t2}
    v_lshl_add_u32 v{r.TR0}, v{t3}, 3, v{t2}
    v_xor_b32 v{t3}, 4, v{t3}
    v_lshl_add_u32 v{r.TR1}, v{t3}, 3, v{t2}
    v_add_u32 v{r.TR1}, 512, v{r.TR1}
    v_lshlrev_b32 v{t2}, 4, v{r.lane}
    v_add_u32 v{r.AWl}, {L_AT}, v{t2}
    ; flush addresses
    v_lshrrev_b32 v{t2}, 2, v{e_}
    v_mul_u32_u24 v{t2}, {ACC_ROW}, v{t2}
    v_add_u32 v{t2}, {L_ACC}, v{t2}
    v_lshl_add_u32 v{r.FlM}, v{hh_}, 4, v{t2}
    v_and_b32 v{t3}, 3, v{e_}
    v_lshl_add_u32 v{r.FlP}, v{t3}, 2, v{t2}
    v_add_u32 v{r.FlP}, 256, v{r.FlP}
    v_lshlrev_b32 v{t2}, 7, v{hh_}
    v_add_u32 v{r.WXa}, {L_WX}, v{t2}
    """)
    a("s_waitcnt vmcnt(12)")
    stamp(a, r, 2)
    for rr in range(8):
        a(f"""
        v_lshrrev_b32 v{r.t2}, 16, v{TABV+rr}
        v_and_b32 v{TABV+rr}, 0xffff, v{TABV+rr}
        v_max_u32 v{MX}, v{MX}, v{r.t2}
        v_mad_u32_u24 v{TABV+rr}, v{TABV+rr}, 12, v{LB}
        v_cmp_lt_u32 {s(S_M+2*rr,2)}, v{JJ}, v{r.t2}
        v_cmp_lt_u32 {s(S_M+16+2*rr,2)}, v{J16}, v{r.t2}
        s_mov_b32 s{S_TMP}, {rr*32*REC_STRIDE}
        s_mov_b64 exec, {s(S_M+2*rr,2)}
        buffer_load_dwordx3 {v(REC(rr),3)}, v{TABV+rr}, {s(SR_REC,4)}, s{S_TMP} offen
        s_mov_b64 exec, {s(S_M+16+2*rr,2)}
        buffer_load_dwordx3 {v(REC(8+rr),3)}, v{TABV+rr}, {s(SR_REC,4)}, s{S_TMP} offen offset:192
        s_mov_b64 exec, -1
        """)
    a("s_waitcnt vmcnt(16) lgkmcnt(0)\ns_barrier")
    for base, dst in ((8192, 0), (12288, 8)):
        a(f"s_mov_b32 s{S_TMP2}, {base}")
        for k, off in enumerate((0, 1024, 2048, 3072)):
            a(f"buffer_load_dwordx4 {v(r.W2 + 16*(k&1) + dst + 4*(k>>1),4)}, v{FA}, {s(SR_FR,4)}, s{S_TMP2} offen offset:{off}")
    a(f"s_mov_b32 s{S_TMP2}, 32768")
    a(f"buffer_load_dwordx4 {v(r.W5,4)}, v{FA}, {s(SR_FR,4)}, s{S_TMP2} offen")
    a(f"buffer_load_dwordx4 {v(r.W5+4,4)}, v{FA}, {s(SR_FR,4)}, s{S_TMP2} offen offset:1024")
    stamp(a, r, 3)
    a(f"""
    v_cmp_lt_u32 vcc, 32, v{MX}
    s_and_saveexec_b64 {s(S_D,2)}, vcc
    v_mov_b32 v{t2}, {L_FLAG}
    v_mov_b32 v{t3}, 1
    ds_write_b32 v{t2}, v{t3}
    s_mov_b64 exec, -1
    """)
    a(f"""
    s_lshl_b32 s{S_TMP}, s{S_RT}, 12
    s_add_u32 s{S_TMP}, s{S_TMP}, {L_RING}
    v_lshlrev_b32 v{t2}, 7, v{e_}
    v_add_u32 v{t2}, s{S_TMP}, v{t2}
    v_bfe_u32 v{t3}, v{e_}, 1, 3
    v_xor_b32 v{r.t5}, v{t3}, v{hh_}
    """)
    for k in range(4):
        a(f"v_xor_b32 v{t4}, {2*k}, v{r.t5}\nv_lshl_add_u32 v{t4}, v{t4}, 4, v{t2}\nds_read_b128 {v(r.H+4*k,4)}, v{t4}")
    a(f"""
    s_lshl_b32 s{S_TMP}, s{S_T}, 2
    v_xor_b32 v{r.t5}, s{S_TMP}, v{t3}
    v_lshl_add_u32 v{t2}, v{hh_}, 3, v{t2}
    """)
    for g in range(4):
        a(f"v_xor_b32 v{t4}, {g}, v{r.t5}\nv_lshl_add_u32 v{t4}, v{t4}, 4, v{t2}\nds_read_b64 {v(r.HR+2*g,2)}, v{t4}")
    NTD = r.AW
    a(f"""
    v_cmp_gt_u32 vcc, 104, v0
    s_and_saveexec_b64 {s(S_D,2)}, vcc
    v_and_b32 v{t2}, 1, v0
    v_lshlrev_b32 v{t2}, 4, v{t2}
    v_mov_b32 v{t3}, 0x3f80
    v_lshlrev_b32 v{t2}, v{t2}, v{t3}
    v_bfe_u32 v{t3}, v0, 1, 2
    """)
    for d in range(4):
        a(f"v_cmp_eq_u32 vcc, {d}, v{t3}\ns_nop 1\nv_cndmask_b32 v{NTD+d}, 0, v{t2}, vcc")
    a(f"""
    v_lshlrev_b32 v{NTD+4}, 16, v{r.PS}
    v_and_b32 v{NTD+5}, 0xffff0000, v{r.PS}
    v_lshlrev_b32 v{NTD+6}, 16, v{r.PS+1}
    v_and_b32 v{t3}, 7, v0
    v_lshlrev_b32 v{NTD+7}, 3, v{t3}
    v_lshlrev_b32 v{t3}, 5, v0
    v_add_u32 v{t3}, {L_NT}, v{t3}
    ds_write_b128 v{t3}, {v(NTD,4)}
    ds_write_b128 v{t3}, {v(NTD+4,4)} offset:16
    v_cmp_gt_u32 vcc, 64, v0
    s_and_b64 exec, exec, vcc
    v_lshlrev_b32 v{r.Q}, 16, v{r.Q}
    """)
    if opt.sc1:
        a(f"v_mul_f32 v{r.Q}, 0x{f2u(-LN2):08x}, v{r.Q}")
    a(f"""
    v_lshlrev_b32 v{t3}, 2, v0
    v_add_u32 v{t3}, {L_WX}, v{t3}
    ds_write_b32 v{t3}, v{r.Q}
    s_mov_b64 exec, -1
    s_waitcnt lgkmcnt(0)
    """)
    for k in range(4):
        a(mfma(AD, r.H+4*k, W1F+4*k, AD if k else None))
    for k in range(4):
        a(mfma(r.U, WH1F+4*k, r.H+4*k, r.U if k else None))
    a(f"""
    s_lshl_b32 s{S_TMP}, s{S_RT}, 13
    s_lshl_b32 s{S_TMP2}, s{S_T}, 10
    s_add_u32 s{S_TMP}, s{S_TMP}, s{S_TMP2}
    s_add_u32 s{S_TMP}, s{S_TMP}, {L_AT}
    v_lshlrev_b32 v{t2}, 4, v{e_}
    v_lshl_add_u32 v{t2}, v{hh_}, 3, v{t2}
    v_add_u32 v{t2}, s{S_TMP}, v{t2}
    s_nop 7
    """)
    HI = r.T; UP = r.T + 4; LO = r.T + 8
    for g in range(4):
        x = AD + 4 * g
        if g == 1:
            a(f"s_cmp_eq_u32 s{S_RT}, 3\ns_cbranch_scc1 K2_at_done")
        if opt.sc1:
            a(f"v_pk_mul_f32 {v(x,2)}, {v(x,2)}, {s(S_C,2)}\nv_pk_mul_f32 {v(x+2,2)}, {v(x+2,2)}, {s(S_C,2)}")
        a(f"""
        v_cvt_pk_bf16_f32 v{HI}, v{x}, v{x+1}
        v_cvt_pk_bf16_f32 v{HI+1}, v{x+2}, v{x+3}
        v_lshlrev_b32 v{UP}, 16, v{HI}
        v_and_b32 v{UP+1}, 0xffff0000, v{HI}
        v_lshlrev_b32 v{UP+2}, 16, v{HI+1}
        v_and_b32 v{UP+3}, 0xffff0000, v{HI+1}
        v_sub_f32 v{UP}, v{x}, v{UP}
        v_sub_f32 v{UP+1}, v{x+1}, v{UP+1}
        v_sub_f32 v{UP+2}, v{x+2}, v{UP+2}
        v_sub_f32 v{UP+3}, v{x+3}, v{UP+3}
        v_cvt_pk_bf16_f32 v{LO}, v{UP}, v{UP+1}
        v_cvt_pk_bf16_f32 v{LO+1}, v{UP+2}, v{UP+3}
        ds_write_b64 v{t2}, {v(HI,2)} offset:{g*2048}
        ds_write_b64 v{t2}, {v(LO,2)} offset:{g*2048+512}
        """)
    a.label("K2_at_done")
    ONE = r.Q; ADR = r.T
    a(f"v_mov_b32 v{ONE}, 1\ns_waitcnt vmcnt(10)")
    stamp(a, r, 4)
    a.label("K2_rank")
    a(f"s_mov_b32 s{S_TMP}, {L_CNT}")
    for q in range(16):
        if q >= 8:
            a(f"s_cmp_eq_u64 {s(S_M+2*q,2)}, 0\ns_cbranch_scc1 K2_rk{q}")
        a(f"""
        s_mov_b64 exec, {s(S_M+2*q,2)}
        v_and_b32 v{ADR+q}, 0x7f, v{REC(q)+2}
        v_lshl_add_u32 v{ADR+q}, v{ADR+q}, 2, s{S_TMP}
        ds_add_rtn_u32 v{REC(q)+3}, v{ADR+q}, v{ONE}
        """)
        if q >= 8: a.label(f"K2_rk{q}")
    a(f"""
    s_mov_b64 exec, -1
    v_lshlrev_b32 v{t2}, 3, v{r.lane}
    v_add_u32 v{t2}, {L_CNT}, v{t2}
    v_mov_b32 v{t3}, {L_FLAG}
    s_waitcnt lgkmcnt(0)
    s_barrier
    """)
    stamp(a, r, 5)
    C0 = r.K4; C1 = r.K4 + 1; FL = r.K4 + 2; SS = r.K4 + 3; TT = r.PD; PADR = r.PD + 1; SP = r.PD + 2; INC = r.PD + 3
    a(f"""
    ds_read_b64 {v(C0,2)}, v{t2}
    ds_read_b32 v{FL}, v{t3}
    v_and_b32 v{t4}, 3, v{r.lane}
    v_cmp_eq_u32 vcc, 3, v{t4}
    s_waitcnt lgkmcnt(0)
    v_add_u32 v{SS}, v{C0}, v{C1}
    v_readfirstlane_b32 s{S_TMP2}, v{FL}
    s_nop 0
    v_add_u32_dpp v{TT}, v{SS}, v{SS} quad_perm:[1,0,3,2] row_mask:0xf bank_mask:0xf
    s_nop 1
    v_add_u32_dpp v{TT}, v{TT}, v{TT} quad_perm:[2,3,0,1] row_mask:0xf bank_mask:0xf
    v_sub_u32 v{PADR}, 0, v{TT}
    v_and_b32 v{PADR}, 31, v{PADR}
    v_cndmask_b32 v{PADR}, 0, v{PADR}, vcc
    v_add_u32 v{SP}, v{SS}, v{PADR}
    v_mov_b32 v{INC}, v{SP}
    """)
    wave_scan(a, INC)
    a(f"""
    s_nop 0
    v_readlane_b32 s{S_TMP}, v{INC}, 63
    v_sub_u32 v{SP}, v{INC}, v{SP}
    v_add_u32 v{INC}, v{SP}, v{C0}
    ds_write_b64 v{t2}, {v(SP,2)} offset:{L_OFF-L_CNT}
    v_mov_b32_dpp v{PADR}, v{SP} quad_perm:[0,0,0,0] row_mask:0xf bank_mask:0xf
    v_add_u32 v{PADR}, v{PADR}, v{TT}
    v_and_b32 v{t3}, 60, v{r.lane}
    v_add_u32 v{t3}, {L_WEND}, v{t3}
    ds_write_b32 v{t3}, v{PADR}
    s_lshr_b32 s{S_TMP}, s{S_TMP}, 5
    s_cmp_gt_u32 s{S_TMP}, {CAPT}
    s_cselect_b32 s{S_TMP2}, 1, s{S_TMP2}
    s_cmp_lg_u32 s{S_TMP2}, 0
    s_cbranch_scc1 K2_slow
    s_and_b32 s{S_T0}, s{S_V}, 3
    s_lshl_b32 s{S_T0}, s{S_T0}, 1
    s_lshr_b32 s{S_NTL}, s{S_V}, 2
    s_add_u32 s{S_T0}, s{S_T0}, s{S_NTL}
    s_mul_i32 s{S_T0}, s{S_TMP}, s{S_T0}
    s_add_u32 s{S_NTL}, s{S_T0}, s{S_TMP}
    s_lshr_b32 s{S_T0}, s{S_T0}, 3
    s_lshr_b32 s{S_NTL}, s{S_NTL}, 3
    s_sub_u32 s{S_NTL}, s{S_NTL}, s{S_T0}
    """)
    for q in range(16):
        if q >= 8:
            a(f"s_cmp_eq_u64 {s(S_M+2*q,2)}, 0\ns_cbranch_scc1 K2_pa{q}")
        a(f"s_mov_b64 exec, {s(S_M+2*q,2)}\nds_read_b32 v{ADR+q}, v{ADR+q} offset:{L_OFF-L_CNT}")
        if q >= 8: a.label(f"K2_pa{q}")
    a("s_waitcnt lgkmcnt(0)")
    for q in range(16):
        if q >= 8:
            a(f"s_cmp_eq_u64 {s(S_M+2*q,2)}, 0\ns_cbranch_scc1 K2_pb{q}")
        a(f"""
        s_mov_b64 exec, {s(S_M+2*q,2)}
        v_add_u32 v{ADR+q}, v{ADR+q}, v{REC(q)+3}
        v_mul_u32_u24 v{ADR+q}, 12, v{ADR+q}
        ds_write2_b32 v{ADR+q}, v{REC(q)}, v{REC(q)+1} offset0:0 offset1:1
        ds_write_b32 v{ADR+q}, v{REC(q)+2} offset:8
        """)
        if q >= 8: a.label(f"K2_pb{q}")
    a(f"""
    s_mov_b64 exec, -1
    s_mul_i32 s{S_TMP}, s{S_T0}, 384
    v_and_b32 v{t2}, 31, v{r.lane}
    v_mul_u32_u24 v{t2}, 12, v{t2}
    v_add_u32 v{r.A1a}, s{S_TMP}, v{t2}
    v_lshrrev_b32 v{t2}, 3, v{r.lane}
    v_mul_u32_u24 v{t2}, 48, v{t2}
    v_add_u32 v{r.A2a}, s{S_TMP}, v{t2}
    v_add_u32 v{t3}, s{S_T0}, v{r.lane}
    v_mul_u32_u24 v{t2}, 384, v{t3}
    s_lshl_b32 s{S_TMP}, s{S_V}, 12
    s_add_u32 m0, s{S_TMP}, {L_RING}
    s_waitcnt lgkmcnt(0)
    s_barrier
    """)
    stamp(a, r, 6)
    a(f"""
    s_cmp_eq_u32 s{S_NTL}, 0
    s_cbranch_scc1 K2_main_end
    ds_read_b32 v{t4}, v{t2} offset:8
    """)
    for x in k_reads(r, 0): a(x)
    for i in range(0, 32, 2): a(f"v_mov_b64 {v(r.A0+i,2)}, 0")
    for i in range(0, 8, 2): a(f"v_mov_b64 {v(r.M+8+i,2)}, 0\nv_mov_b64 {v(r.S+i,2)}, 0")
    a("s_waitcnt lgkmcnt(0)")
    for x in dma_addr(r) + dma_issue(r) + posg(r): a(x)
    a(f"""
    v_bfe_u32 v{t4}, v{t4}, 3, 4
    v_lshlrev_b32 v{t2}, 2, v{t4}
    v_add_u32 v{t2}, {L_WEND}, v{t2}
    ds_read_b32 v{t2}, v{t2}
    ds_read_b128 {v(r.PD,4)}, v{r.NA} offset:16
    v_lshlrev_b32 v{t3}, 5, v{t3}
    s_waitcnt lgkmcnt(1)
    v_sub_u32 v{t2}, v{t2}, v{t3}
    v_min_u32 v{t2}, 32, v{t2}
    v_lshl_or_b32 v{r.Desc}, v{t2}, 8, v{t4}
    s_nop 0
    v_readlane_b32 s{S_D}, v{r.Desc}, 0
    s_nop 1
    s_and_b32 s{S_W}, s{S_D}, 0xff
    s_mov_b32 s{S_WP}, s{S_W}
    s_lshr_b32 s{S_CNT}, s{S_D}, 8
    s_lshl_b32 s{S_TMP}, s{S_W}, 11
    v_add_u32 v{r.AWa}, s{S_TMP}, v{r.AWl}
    """)
    for x in x_reads(r, 0): a(x)
    for x in k_reads(r, 1): a(x)
    a("s_waitcnt vmcnt(1)")
    for x in h_reads(r): a(x)
    a("s_waitcnt lgkmcnt(0)")
    for x in dma_addr(r) + dma_issue(r): a(x)
    a("s_waitcnt vmcnt(4)")
    for x in diff_valu(r) + posg(r): a(x)
    a("s_nop 1")
    for k in range(4):
        a(mfma(r.D0, r.H+4*k, r.W2+4*k, r.D0 if k else None))
    a(mfma(r.D0, r.X5, r.W5, r.D0)); a(mfma(r.D0, r.X6, r.AW, r.D0))
    a(f"s_mov_b32 s{S_I}, 1\ns_mov_b32 s{S_NFL}, 0\ns_nop 7\ns_nop 3")
    if opt.prio:
        a(f"s_cmp_lt_u32 s{S_V}, 4\ns_cbranch_scc1 K2_np\ns_setprio 1\nK2_np:")
    stamp(a, r, 7)
    a(".p2align 6")
    a.label("K2_loop")
    pre = k_reads(r, 2) + [f"ds_read_b128 {v(r.PD,4)}, v{r.NA} offset:16",
                           f"v_readlane_b32 s{S_D}, v{r.Desc}, s{S_I}"] + s_set(r)
    mf_exp = [mfma(r.D1, r.H+4*k, r.W2+16+4*k, r.D1 if k else None) for k in range(4)]
    mf_rcp = [mfma(r.D1, r.X5, r.W5+4, r.D1), mfma(r.D1, r.X6, r.AW+4, r.D1),
              mfma(r.A1, r.M+8, r.S, r.A1), mfma(r.A1, r.M+12, r.S+4, r.A1)]
    ins_exp = {2: [f"s_and_b32 s{S_TMP2}, s{S_D}, 0xff", f"s_lshl_b32 s{S_TMP}, s{S_TMP2}, 11"],
               5: [f"v_add_u32 v{r.AWa}, s{S_TMP}, v{r.AWl}"],
               13: ["s_waitcnt vmcnt(1)"] + h_reads(r)}
    ins_rcp = {2: ["s_waitcnt lgkmcnt(4)"] + dma_addr(r),
               5: ["s_waitcnt lgkmcnt(0)"] + dma_issue(r),
               6: x_reads(r, 1),
               13: s_reads(r)}
    silu_stage(a, r, r.D0, r.M, mf_exp, mf_rcp, ins_exp, ins_rcp, pre)
    a(f"s_cmp_eq_u32 s{S_W}, s{S_WP}\ns_cbranch_scc1 K2_noflush")
    if "flush" in opt.abl: a("s_branch K2_noflush")
    a(f"s_cmp_lg_u32 s{S_MODE}, 0\ns_cbranch_scc1 K2_flush_slow")
    a(f"s_mov_b32 s{S_NFL}, 1")
    flush_plain(a, r)
    a.label("K2_noflush")
    pre = [f"s_mov_b32 s{S_WP}, s{S_W}", f"s_mov_b32 s{S_W}, s{S_TMP2}", f"s_lshr_b32 s{S_CNT}, s{S_D}, 8",
           "s_waitcnt vmcnt(4)"] + diff_valu(r) + posg(r) + \
          [f"v_add_u32 v{r.A1a}, 384, v{r.A1a}", f"v_add_u32 v{r.A2a}, 384, v{r.A2a}"]
    mf_exp = [mfma(r.D0, r.H+4*k, r.W2+4*k, r.D0 if k else None) for k in range(4)]
    mf_rcp = [mfma(r.D0, r.X5, r.W5, r.D0), mfma(r.D0, r.X6, r.AW, r.D0),
              mfma(r.A0, r.M, r.S, r.A0), mfma(r.A0, r.M+4, r.S+4, r.A0)]
    ins_exp = {15: ["s_waitcnt lgkmcnt(0)"]}
    silu_stage(a, r, r.D1, r.M+8, mf_exp, mf_rcp, ins_exp, {}, pre)
    a(f"""
    s_add_u32 s{S_I}, s{S_I}, 1
    s_cmp_le_u32 s{S_I}, s{S_NTL}
    s_cbranch_scc1 K2_loop
    s_nop 0
    """)
    stamp(a, r, 8)
    a(mfma(r.A1, r.M+8, r.S, r.A1)); a(mfma(r.A1, r.M+12, r.S+4, r.A1))
    a("s_nop 15\ns_waitcnt vmcnt(0)")
    flush_dot(a, r)
    a("s_waitcnt lgkmcnt(0)")
    flush_dot2(a, r)
    a(f"s_cmp_lg_u32 s{S_MODE}, 0\ns_cbranch_scc1 K2_final_slow")
    a(f"""
    s_cmp_lg_u32 s{S_NFL}, 0
    s_cbranch_scc1 K2_main_end
    v_mov_b32 v{r.K}, {L_FLAG+4}
    v_mov_b32 v{r.PI}, 1
    ds_write_b32 v{r.K}, v{r.PI}
    """)
    a.label("K2_main_end")
    a(f"s_cmp_lg_u32 s{S_MODE}, 0\ns_cbranch_scc1 K2_slow_next")
    stamp(a, r, 9)
    a(f"""
    v_mov_b32 v{r.K}, {L_FLAG+4}
    s_waitcnt lgkmcnt(0)
    s_barrier
    s_cmp_eq_u32 s{S_NTL}, 0
    s_cbranch_scc1 K2_epi
    """)
    flush_rmw_tail(a, r)
    a.label("K2_epi")
    if opt.stamp: a(f"v_writelane_b32 v{r.ST}, s{S_NTL}, 20")
    WH2 = r.W2; MR = r.D0
    a(f"v_lshlrev_b32 v{r.t5}, 4, v{r.lane}\ns_lshl_b32 s{S_TMP}, s{S_T}, 10")
    for sidx in range(4):
        a(f"s_add_u32 s{S_TMP2}, s{S_TMP}, {24*1024 + sidx*2048}")
        a(f"buffer_load_dwordx4 {v(WH2+4*sidx,4)}, v{r.t5}, {s(SR_FR,4)}, s{S_TMP2} offen")
    a(f"""
    s_mul_i32 s{S_TMP}, s{S_NODE0}, 6
    s_add_u32 s{S_TMP}, s{S_TMP}, {OUT_POS}
    s_mul_i32 s{S_TMP2}, s{S_NN}, 6
    """)
    srd_off(a, SR_X, S_OUT, S_OUT+1, f"s{S_TMP}", f"s{S_TMP2}")
    a(f"""
    v_and_b32 v{e_}, 31, v{r.lane}
    v_lshrrev_b32 v{hh_}, 5, v{r.lane}
    s_mul_i32 s{S_TMP}, s{S_RT}, {32*ACC_ROW}
    s_add_u32 s{S_TMP}, s{S_TMP}, {L_ACC}
    v_mul_u32_u24 v{t2}, {ACC_ROW}, v{e_}
    v_lshl_add_u32 v{t2}, v{hh_}, 5, v{t2}
    v_add_u32 v{t2}, s{S_TMP}, v{t2}
    ; pos output addresses: node=tid/3, c=tid%3
    v_min_u32 v{t3}, 311, v0
    v_mul_u32_u24 v{t4}, 171, v{t3}
    v_lshrrev_b32 v{t4}, 9, v{t4}
    v_mul_u32_u24 v{r.t5}, 3, v{t4}
    v_sub_u32 v{r.t5}, v{t3}, v{r.t5}
    v_lshlrev_b32 v{r.t5}, 2, v{r.t5}
    v_lshl_add_u32 v{r.K}, v{t4}, 5, v{r.t5}
    v_add_u32 v{r.K}, {L_NT+16}, v{r.K}
    v_mul_u32_u24 v{r.PI}, {ACC_ROW}, v{t4}
    v_add_u32 v{r.PI}, v{r.PI}, v{r.t5}
    v_add_u32 v{r.PI}, {L_ACC+256}, v{r.PI}
    s_waitcnt lgkmcnt(0)
    s_barrier
    """)
    stamp(a, r, 10)
    for k in range(4):
        a(f"ds_read_b128 {v(MR+8*k,4)}, v{t2} offset:{64*k}\nds_read_b128 {v(MR+8*k+4,4)}, v{t2} offset:{64*k+16}")
    a(f"ds_read_b32 v{r.K}, v{r.K}\nds_read_b32 v{r.PI}, v{r.PI}")
    if opt.sc1:
        a(f"s_mov_b32 s{S_D}, 0x{f2u(-LN2):08x}\ns_mov_b32 s{S_D+1}, 0x{f2u(-LN2):08x}")
    for k in range(4):
        a(f"s_waitcnt lgkmcnt({8-2*k})")
        if opt.sc1:
            for j in range(0, 8, 2):
                a(f"v_pk_mul_f32 {v(MR+8*k+j,2)}, {v(MR+8*k+j,2)}, {s(S_D,2)}")
        for j in range(4):
            a(f"v_cvt_pk_bf16_f32 v{r.H+4*k+j}, v{MR+8*k+2*j}, v{MR+8*k+2*j+1}")
    a("s_waitcnt vmcnt(0)")
    for k in range(4):
        a(mfma(r.U, WH2+4*k, r.H+4*k, r.U))
    a(f"""
    s_waitcnt lgkmcnt(0)
    v_add_f32 v{r.K}, v{r.K}, v{r.PI}
    v_cvt_pk_bf16_f32 v{r.K}, v{r.K}, v{r.K}
    v_lshlrev_b32 v{r.PI}, 1, v0
    buffer_store_short v{r.K}, v{r.PI}, {s(SR_X,4)}, 0 offen
    s_lshl_b32 s{S_TMP}, s{S_V}, 12
    s_add_u32 s{S_TMP}, s{S_TMP}, {L_RING}
    v_mul_u32_u24 v{t2}, 80, v{e_}
    v_lshl_add_u32 v{t2}, v{hh_}, 3, v{t2}
    v_add_u32 v{t2}, s{S_TMP}, v{t2}
    v_lshrrev_b32 v{t3}, 2, v{r.lane}
    v_and_b32 v{t4}, 3, v{r.lane}
    v_lshlrev_b32 v{t4}, 4, v{t4}
    v_lshl_add_u32 v{r.t5}, v{t3}, 7, v{t4}
    v_mul_u32_u24 v{t3}, 80, v{t3}
    v_add3_u32 v{t3}, v{t3}, v{t4}, s{S_TMP}
    s_lshl_b32 s{S_TMP}, s{S_RT}, 12
    s_lshl_b32 s{S_TMP2}, s{S_T}, 6
    s_add_u32 s{S_TMP}, s{S_TMP}, s{S_TMP2}
    s_nop 3
    """)
    T = r.T; U = r.U
    for i in range(0, 16, 2): a(f"v_pk_mul_f32 {v(T+i,2)}, {v(U+i,2)}, {s(S_C,2)}")
    for i in range(16): a(f"v_exp_f32 v{T+i}, v{T+i}")
    for i in range(0, 16, 2): a(f"v_pk_add_f32 {v(T+i,2)}, {v(T+i,2)}, {s(S_ONE,2)}")
    for i in range(16): a(f"v_rcp_f32 v{T+i}, v{T+i}")
    for j in range(8):
        a(f"v_lshlrev_b32 v{MR+2*j}, 16, v{r.HR+j}\nv_and_b32 v{MR+2*j+1}, 0xffff0000, v{r.HR+j}")
    for i in range(0, 16, 2):
        a(f"v_pk_fma_f32 {v(T+i,2)}, {v(T+i,2)}, {v(U+i,2)}, {v(MR+i,2)}")
    for i in range(0, 16, 2):
        a(f"v_cvt_pk_bf16_f32 v{r.M+i//2}, v{T+i}, v{T+i+1}")
    for g in range(4):
        a(f"ds_write_b64 v{t2}, {v(r.M+2*g,2)} offset:{16*g}")
    a(f"""
    s_waitcnt lgkmcnt(0)
    ds_read_b128 {v(r.H,4)}, v{t3}
    ds_read_b128 {v(r.H+4,4)}, v{t3} offset:1280
    s_waitcnt lgkmcnt(1)
    buffer_store_dwordx4 {v(r.H,4)}, v{r.t5}, {s(SR_OUT,4)}, s{S_TMP} offen
    s_waitcnt lgkmcnt(0)
    buffer_store_dwordx4 {v(r.H+4,4)}, v{r.t5}, {s(SR_OUT,4)}, s{S_TMP} offen offset:2048
    """)
    if opt.stamp: a("s_waitcnt vmcnt(0)")
    stamp(a, r, 11); stamp(a, r, 12, True)
    stamp_out(a, r, S_WS, r.t2, S_V, WS_STAMP)
    a(f"""
    K2_done:
    s_endpgm
    """)
    a.label("K2_final_atomic")
    flush_atomic_tail(a, r)
    a("s_branch K2_epi")
    a.label("K2_final_slow")
    flush_atomic_tail(a, r)
    a("s_branch K2_slow_next")
    a.label("K2_flush_slow")
    flush_dot(a, r)
    a("s_waitcnt lgkmcnt(0)")
    flush_dot2(a, r)
    flush_atomic_tail(a, r)
    acc_zero(a, r)
    a("s_branch K2_noflush")
    a(f"""
    K2_slow:
    s_mov_b32 s{S_MODE}, 1
    s_mov_b32 s{S_SEG}, 0
    K2_slow_round:
    s_waitcnt lgkmcnt(0)
    s_barrier
    v_cmp_gt_u32 vcc, 33, v0
    s_and_saveexec_b64 {s(S_D,2)}, vcc
    v_lshlrev_b32 v{t2}, 4, v0
    v_add_u32 v{t2}, {L_CNT}, v{t2}
    v_mov_b64 {v(r.K4,2)}, 0
    v_mov_b64 {v(r.K4+2,2)}, 0
    ds_write_b128 v{t2}, {v(r.K4,4)}
    s_mov_b64 exec, -1
    s_lshl_b32 s{S_TMP}, s{S_SEG}, 10
    s_lshl_b32 s{S_TMP2}, s2, 2
    s_add_u32 s{S_TMP}, s{S_TMP}, s{S_TMP2}
    buffer_load_dword v{t3}, v{r.Zero}, {s(SR_TAB,4)}, s{S_TMP} offen
    s_mul_i32 s{S_TMP}, s{S_SEG}, {REC_STRIDE}
    s_waitcnt vmcnt(0)
    v_lshrrev_b32 v{t4}, 16, v{t3}
    v_and_b32 v{t3}, 0xffff, v{t3}
    v_add_u32 v{t3}, v{t3}, v0
    v_mul_u32_u24 v{t3}, 12, v{t3}
    v_mov_b32 v{t2}, v0
    """)
    for q in range(7):
        a(f"""
        v_cmp_lt_u32 {s(S_M+2*q,2)}, v{t2}, v{t4}
        s_mov_b64 exec, {s(S_M+2*q,2)}
        buffer_load_dwordx3 {v(REC(q),3)}, v{t3}, {s(SR_REC,4)}, s{S_TMP} offen
        s_mov_b64 exec, -1
        v_add_u32 v{t2}, 512, v{t2}
        s_add_u32 s{S_TMP}, s{S_TMP}, {512*12}
        """)
    for q in range(7, 16):
        a(f"s_mov_b64 {s(S_M+2*q,2)}, 0")
    a(f"""
    v_mov_b32 v{ONE}, 1
    s_waitcnt vmcnt(0) lgkmcnt(0)
    s_barrier
    s_branch K2_rank
    K2_slow_next:
    s_add_u32 s{S_SEG}, s{S_SEG}, 1
    s_cmp_lt_u32 s{S_SEG}, {NB}
    s_cbranch_scc1 K2_slow_round
    s_branch K2_epi
    """)
    return a.text(), r.n

def build():
    k1, n1 = gen_k1(); k2, n2 = gen_k2()
    hdr = open("gather_scatter__cheap_equivariant_egnn__graph.s.ref").read().split("; Override")[0]
    out = hdr
    out += f"; @launch kernel=bin_kernel grid=({NB+1},1,1) block=({K1_THREADS},1,1) lds={K1_LDS}\n"
    out += f"; @launch kernel=edge_kernel grid=({NB},1,1) block=(512,1,1) lds={K2_LDS}\n"
    out += '.amdgcn_target "amdgcn-amd-amdhsa--gfx950"\n.text\n'
    for name, body, nv in (("bin_kernel", k1, n1), ("edge_kernel", k2, n2)):
        out += f".globl {name}\n.p2align 8\n.type {name},@function\n" + body + descriptor(name, nv)
    return out

if __name__ == "__main__":
    for arg in sys.argv[2:]:
        k, val = arg.split("=")
        cur = getattr(opt, k)
        setattr(opt, k, (val not in ("0", "False")) if isinstance(cur, bool) else type(cur)(val.replace("_", " ").replace("none", "")))
    open(sys.argv[1], "w").write(build())
    print("K1 lds", K1_LDS, "K2 lds", K2_LDS, "K2 vgprs", alloc_k2().n)
```

```python
import sys, struct

N = 25000; E = 800000; NB = 256; BN = 98; CH = 3136
REC_STRIDE = CH * 12
WS_TAB = NB * REC_STRIDE
WS_P4 = WS_TAB + NB * 1024
WS_STAMP = 64 << 20
OUT_POS = N * 128
KNAME = "gather_scatter__cheap_equivariant_egnn__graph_kernel"

def f2u(x): return struct.unpack("<I", struct.pack("<f", x))[0]
LOG2E = 1.4426950408889634
LN2 = 0.6931471805599453

class Opt:
    split = 42
    prio = 1
    ld = "nt"
    st = "sc1"
    hl = "sc1"
    ost = ""
    slide = True
    warm = 0
    abl = ""
    stamp = False
opt = Opt()

class Asm:
    def __init__(self): self.L = []
    def __call__(self, s):
        if isinstance(s, (list, tuple)):
            for x in s: self(x)
            return
        for x in s.strip("\n").split("\n"):
            x = x.strip()
            if not x: continue
            self.L.append(x if x.endswith(":") else "    " + x)
    def label(self, n): self.L.append(n + ":")
    def text(self): return "\n".join(self.L) + "\n"

def v(i, n=1): return f"v{i}" if n == 1 else f"v[{i}:{i+n-1}]"
def s(i, n=1): return f"s{i}" if n == 1 else f"s[{i}:{i+n-1}]"
def srd(d, p, size, off=None):
    if off is None: b = f"s_mov_b32 s{d}, s{p}\ns_mov_b32 s{d+1}, s{p+1}\n"
    else: b = f"s_add_u32 s{d}, s{p}, {off}\ns_addc_u32 s{d+1}, s{p+1}, 0\n"
    return b + f"s_mov_b32 s{d+2}, {size}\ns_mov_b32 s{d+3}, 0x00020000"
def wave_scan(r):
    o = []
    for sh in (1, 2, 4, 8):
        o.append(f"s_nop 1\nv_add_u32_dpp v{r}, v{r}, v{r} row_shr:{sh} row_mask:0xf bank_mask:0xf bound_ctrl:0")
    o.append(f"s_nop 1\nv_add_u32_dpp v{r}, v{r}, v{r} row_bcast:15 row_mask:0xa bank_mask:0xf")
    o.append(f"s_nop 1\nv_add_u32_dpp v{r}, v{r}, v{r} row_bcast:31 row_mask:0xc bank_mask:0xf")
    return o
def mfma(d, a_, b_, c=None):
    cc = "0" if c is None else v(c, 16)
    return f"v_mfma_f32_32x32x16_bf16 {v(d,16)}, {v(a_,4)}, {v(b_,4)}, {cc}"
SDWA = "dst_sel:DWORD dst_unused:UNUSED_PAD src0_sel:DWORD"

CAPT = 116
L_NT = 0
L_CNT = 8192
L_OFF = L_CNT + 1024
L_REC = L_OFF + 1024
L_RING = L_REC + CAPT * 384
L_SIMG = L_RING + 8 * 4096
L_AT = L_SIMG + 8 * 2048
L_ACC = L_AT + 14 * 1024
ACC_ROW = 272
L_WX = L_ACC + 112 * ACC_ROW
L_FLAG = L_WX + 256
L_WEND = L_FLAG + 16
L_HIST = L_WEND + 64 + 48
L_OFFA = L_HIST + 1024
L_WH2 = L_OFFA + 1024
LDS_BYTES = L_WH2 + 8192
L_STG = 0
L_HST = L_RING + 8192
L_W2S = L_RING + 24576
L_WH1 = L_ACC
L_WE = L_ACC + 8192
assert L_STG + CH * 16 <= L_HST and L_WE + 17408 <= L_WX and L_SIMG % 64 == 0 and LDS_BYTES <= 163840
assert L_HIST % 16 == 0 and L_ACC % 16 == 0

class R: pass
def alloc():
    r = R(); n = [1]
    def al(cnt, align=1):
        n[0] = (n[0] + align - 1) // align * align
        x = n[0]; n[0] += cnt; return x
    r.lane = al(1); r.t0 = al(1); r.t1 = al(1)
    r.D0 = al(16, 4); r.D1 = al(16); r.A0 = al(16); r.A1 = al(16)
    r.W2 = al(32); r.BW = al(8); r.H = al(16)
    r.XM = al(4); r.S = al(8); r.K4 = al(4)
    r.M = al(16); r.T = al(16); r.U = al(16); r.HR = al(8)
    r.PD = al(4); r.PS = al(2); r.PQ = al(2); r.HA = al(4); r.XK = al(4)
    for nm in "A1a A2a SB TR0 TR1 AWl Desc Zero FlM FlP WXa ML K PI NA SA t2 t3 t4 t5 ST".split():
        setattr(r, nm, al(1))
    r.n = n[0]
    return r

P_H, P_POS, P_EA, P_SRC, P_DST, P_WE, P_WX, P_WH, P_OUT, P_DBG, P_WS = range(4, 26, 2)
SR_HD = 28; SR_P4 = 32; SR_REC = 36; SR_TAB = 40; SR_OUT = 44; SR_OUTP = 48
S_V = 52; S_RT = 53; S_T = 54; S_B4 = 55; S_MODE = 56; S_SEG = 57
S_C = 58; S_ONE = 60; S_D = 62; S_TMP = 63; S_TMP2 = 64; S_T0 = 65; S_NTL = 66; S_I = 67; S_CNT = 68; S_TMP3 = 69
S_M = 70
S_NL = 4; S_NH = 5; S_MSK = 6; S_SO0 = 7; S_SO1 = 8; S_SO2 = 9
S_NB = 10; S_NBP = 11; S_NBN = 12; S_ZP = 13; S_RM = 14; S_PADM = 15; S_HI = 16
S_ST = 26
TS = [72 + 4 * k for k in range(7)] + [SR_OUTP]

def stamp(a, r, i, real=False):
    if not opt.stamp: return
    a(f"s_waitcnt lgkmcnt(0)\n{'s_memrealtime' if real else 's_memtime'} {s(S_ST,2)}\ns_waitcnt lgkmcnt(0)\nv_writelane_b32 v{r.ST}, s{S_ST}, {i}")

def silu_stage(a0, r, D, Mo, mf_exp, mf_rcp, ins_exp, ins_rcp, pre=()):
    T = r.T
    def a(x, core=False):
        for y in ([x] if isinstance(x, str) else x):
            for z in y.split("\n"):
                z = z.strip()
                if "vmem" in opt.abl and (z.startswith("buffer_") or "vmcnt" in z): continue
                if "lds" in opt.abl and (z.startswith("ds_") or "lgkmcnt" in z): continue
                if "misc" in opt.abl and z.startswith("v_") and not core and not z.startswith("v_readlane"): continue
                a0(z)
    a(pre)
    for i in range(16):
        if i in mf_exp: a(mf_exp[i], True)
        a(f"v_exp_f32 v{T+i}, v{D+i}", True)
        a(ins_exp.get(i, ()))
    for i in range(0, 16, 2):
        a(f"v_pk_add_f32 {v(T+i,2)}, {v(T+i,2)}, {s(S_ONE,2)}", True)
    for i in range(16):
        if i in mf_rcp: a(mf_rcp[i], True)
        a(f"v_rcp_f32 v{T+i}, v{T+i}", True)
        a(ins_rcp.get(i, ()))
    for i in range(0, 16, 2):
        a(f"v_pk_mul_f32 {v(T+i,2)}, {v(T+i,2)}, {v(D+i,2)}", True)
    for i in range(0, 16, 2):
        a(f"v_cvt_pk_bf16_f32 v{Mo+i//2}, v{T+i}, v{T+i+1}", True)

def geometry(r, advance):
    o = [
        f"v_dot2_f32_bf16 v{r.t2}, v{r.PS}, s{S_NL}, v{r.PD}",
        f"v_dot2_f32_bf16 v{r.t3}, v{r.PS}, s{S_NH}, v{r.PD+1}",
        f"v_dot2_f32_bf16 v{r.t4}, v{r.PS+1}, s{S_NL}, v{r.PD+2}",
        f"v_xor_b32 v{r.SA}, v{r.SB}, v{r.PD+3}",
        f"v_lshrrev_b32 v{r.PI}, 7, v{r.K}",
        f"buffer_load_dwordx2 {v(r.PS,2)}, v{r.PI}, {s(SR_P4,4)}, 0 idxen",
        f"v_cvt_pk_bf16_f32 v{r.PQ}, v{r.t2}, v{r.t3}",
        f"v_cvt_pk_bf16_f32 v{r.t5}, v{r.t4}, 0",
        f"v_cvt_pk_bf16_f32 v{r.PQ+1}, v{r.t4}, 1.0",
        f"v_dot2_f32_bf16 v{r.t2}, v{r.PQ}, v{r.PQ}, 0",
        f"v_dot2_f32_bf16 v{r.t2}, v{r.t5}, v{r.t5}, v{r.t2}",
    ]
    if advance:
        o += [f"v_add_u32 v{r.A1a}, 384, v{r.A1a}", f"v_add_u32 v{r.A2a}, 384, v{r.A2a}", "s_nop 0"]
    else:
        o += ["s_nop 2"]
    o += [
        f"v_cvt_pk_bf16_f32 v{r.XM+2}, v{r.t2}, v{r.t2}",
        f"s_mov_b64 exec, {s(S_HI,2)}",
        f"ds_read_b128 {v(r.XM,4)}, v{r.NA}",
        "s_mov_b64 exec, -1",
        f"v_lshlrev_b32_sdwa v{r.NA}, 5, v{r.K} {SDWA} src1_sel:BYTE_0",
    ]
    return o
def k_reads(r, tile_off):
    o = tile_off * 384 + 8
    return [f"ds_read_b32 v{r.K}, v{r.A1a} offset:{o}",
            f"ds_read2_b32 {v(r.K4,2)}, v{r.A2a} offset0:{o//4} offset1:{o//4+3}",
            f"ds_read2_b32 {v(r.K4+2,2)}, v{r.A2a} offset0:{o//4+6} offset1:{o//4+9}"]
def pd_read(r): return [f"ds_read_b128 {v(r.PD,4)}, v{r.NA} offset:16"]
def dma_addr(r): return [f"v_and_or_b32 v{r.K4+k}, v{r.K4+k}, s{S_MSK}, v{r.XK+k}" for k in range(4)]
def dma_issue(r):
    so = [f"s{S_SO0}", f"s{S_SO1}", f"s{S_SO2}", "0"]
    return [f"buffer_load_dwordx4 v{r.K4+k}, {s(SR_HD,4)}, {so[k]} offen offset:{1024*k} lds" for k in range(4)]
def h_reads(r): return [f"ds_read_b128 {v(r.H+4*k,4)}, v{r.HA+k}" for k in range(4)]
def ea_read(r, tile_off):
    o = tile_off * 96
    return [f"ds_read2_b32 {v(r.XM,2)}, v{r.A1a} offset0:{o} offset1:{o+1}"]
def aw_reads(r, nb):
    return [f"s_add_u32 s{S_TMP}, s{nb}, 4",
            f"s_lshr_b32 s{S_TMP}, s{S_TMP}, 3",
            f"s_lshl_b32 s{S_TMP}, s{S_TMP}, 10",
            f"s_lshr_b32 s{S_TMP2}, s{nb}, 3",
            f"s_lshl_b32 s{S_TMP2}, s{S_TMP2}, 10",
            f"v_add_u32 v{r.t2}, s{S_TMP}, v{r.AWl}",
            f"v_add_u32 v{r.t3}, s{S_TMP2}, v{r.AWl}",
            f"s_mov_b64 exec, {s(S_HI,2)}",
            f"ds_read_b64 {v(r.BW,2)}, v{r.t2}",
            f"ds_read_b64 {v(r.BW+2,2)}, v{r.t3} offset:8",
            f"ds_read_b64 {v(r.BW+4,2)}, v{r.t2} offset:512",
            f"ds_read_b64 {v(r.BW+6,2)}, v{r.t3} offset:520",
            "s_mov_b64 exec, -1"]
def s_set(r):
    return [f"s_bfm_b64 exec, s{S_CNT}, 0", f"ds_write_b64 v{r.SA}, {v(r.PQ,2)}", "s_mov_b64 exec, -1"]
def s_reads(r):
    return [f"ds_read_b64_tr_b16 {v(r.S,2)}, v{r.TR0}",
            f"ds_read_b64_tr_b16 {v(r.S+2,2)}, v{r.TR1}",
            f"ds_read_b64_tr_b16 {v(r.S+4,2)}, v{r.TR0} offset:1024",
            f"ds_read_b64_tr_b16 {v(r.S+6,2)}, v{r.TR1} offset:1024",
            f"ds_write2_b32 v{r.SA}, v{r.Zero}, v{r.Zero} offset0:0 offset1:1"]

def flush_addr(r):
    o = [f"ds_read_b128 {v(r.T+4*q,4)}, v{r.WXa} offset:{16*q}" for q in range(4)]
    o += [f"ds_read_b128 {v(r.D0+4*q,4)}, v{r.WXa} offset:{64+16*q}" for q in range(4)]
    o += [f"s_lshr_b32 s{S_TMP}, s{S_NBP}, 3",
          f"s_mul_i32 s{S_TMP}, s{S_TMP}, {8*ACC_ROW}",
          f"s_bitcmp1_b32 s{S_NBP}, 2",
          f"s_cselect_b32 s{S_TMP2}, {8*ACC_ROW}, 0",
          f"v_and_b32 v{r.t3}, s{S_TMP2}, v{r.ML}",
          f"v_add3_u32 v{r.t2}, v{r.FlM}, v{r.t3}, s{S_TMP}",
          f"v_add3_u32 v{r.t3}, v{r.FlP}, v{r.t3}, s{S_TMP}"]
    return o
def flush_dot(r):
    o = [f"v_pk_mul_f32 {v(r.T,2)}, {v(r.T,2)}, {v(r.A0,2)}", f"v_pk_mul_f32 {v(r.D0,2)}, {v(r.D0,2)}, {v(r.A1,2)}"]
    for i in range(2, 16, 2):
        o.append(f"v_pk_fma_f32 {v(r.T,2)}, {v(r.T+i,2)}, {v(r.A0+i,2)}, {v(r.T,2)}")
        o.append(f"v_pk_fma_f32 {v(r.D0,2)}, {v(r.D0+i,2)}, {v(r.A1+i,2)}, {v(r.D0,2)}")
    o += [f"v_pk_add_f32 {v(r.T,2)}, {v(r.T,2)}, {v(r.D0,2)}",
          f"v_add_f32 v{r.t4}, v{r.T}, v{r.T+1}", f"v_add_f32 v{r.t5}, v{r.T}, v{r.T+1}", "s_nop 1",
          f"v_permlane32_swap_b32 v{r.t4}, v{r.t5}", "s_nop 1", f"v_add_f32 v{r.t4}, v{r.t4}, v{r.t5}"]
    return o
EX3 = f"s_and_b32 exec_lo, s{S_RM}, 0x88888888\ns_mov_b32 exec_hi, exec_lo"
EXP = f"s_and_b32 exec_lo, s{S_RM}, 0x77777777\ns_mov_b32 exec_hi, 0"
def acc_zero(r, masked):
    o = [f"s_mov_b32 exec_lo, s{S_RM}\ns_mov_b32 exec_hi, s{S_RM}"] if masked else []
    o += [f"v_mov_b64 {v(r.A0+i,2)}, 0" for i in range(0, 32, 2)]
    if masked: o.append("s_mov_b64 exec, -1")
    return o
def flush_plain(r):
    o = flush_addr(r) + [EX3]
    o += [f"ds_write_b128 v{r.t2}, {v(r.A0+4*q,4)} offset:{32*q}" for q in range(8)]
    o += ["s_mov_b64 exec, -1", "s_waitcnt lgkmcnt(8)"] + flush_dot(r)
    o += [EXP, f"ds_write_b32 v{r.t3}, v{r.t4}"] + acc_zero(r, True)
    return o
def flush_atomic(r):
    o = [EX3]
    for t, A in ((0, r.A0), (1, r.A1)):
        for i in range(16):
            o.append(f"ds_add_f32 v{r.t2}, v{A+i} offset:{(32*t + 8*(i>>2) + (i&3))*4}")
    o += [EXP, f"ds_add_f32 v{r.t3}, v{r.t4}", "s_mov_b64 exec, -1"]
    return o
def rmw_reads(r):
    return [EX3] + [f"ds_read_b128 {v(r.D0+4*q,4)}, v{r.t2} offset:{32*q}" for q in range(8)] + \
           [EXP, f"ds_read_b32 v{r.t5}, v{r.t3}", "s_mov_b64 exec, -1"]
def rmw_writes(r):
    o = [EX3]
    for q in range(8):
        o += ["s_waitcnt lgkmcnt(8)",
              f"v_pk_add_f32 {v(r.D0+4*q,2)}, {v(r.D0+4*q,2)}, {v(r.A0+4*q,2)}",
              f"v_pk_add_f32 {v(r.D0+4*q+2,2)}, {v(r.D0+4*q+2,2)}, {v(r.A0+4*q+2,2)}",
              f"ds_write_b128 v{r.t2}, {v(r.D0+4*q,4)} offset:{32*q}"]
    o += [EXP, "s_waitcnt lgkmcnt(8)", f"v_add_f32 v{r.t4}, v{r.t4}, v{r.t5}", f"ds_write_b32 v{r.t3}, v{r.t4}", "s_mov_b64 exec, -1"]
    return o
def retire_mask(r):
    return [f"s_mov_b32 s{S_RM}, 0xffff",
            f"s_bitcmp1_b32 s{S_NBP}, 2",
            f"s_cselect_b32 s{S_RM}, 0xffff0000, s{S_RM}",
            f"s_add_u32 s{S_TMP}, s{S_NBP}, 4",
            f"s_cmp_eq_u32 s{S_TMP}, s{S_NB}",
            f"s_cselect_b32 s{S_RM}, s{S_RM}, -1"]

def gen():
    a = Asm(); r = alloc()
    t0, t1, t2, t3, t4, t5 = r.t0, r.t1, r.t2, r.t3, r.t4, r.t5
    T_DST, T_SRC, T_EA, T_POS, T_WE, T_WH, T_H, T_X = TS
    a.label(KNAME)
    DST = r.D0; SRC = r.D0 + 8; EA = r.D0 + 16; BINA = r.D0 + 32; KEY = r.D0 + 40; RNK = r.D0 + 48
    V16 = r.HA; V32 = r.HA + 1; POSR = r.PD
    S_NQ = S_T0; S_O4 = S_NTL; S_O4B = S_I; S_O8 = S_CNT; S_O8B = S_TMP3; S_N0 = S_SEG; S_NN = S_D
    MA0 = S_C; MA1 = S_ONE
    a(f"""
    s_cmp_ge_u32 s2, {NB}
    s_cbranch_scc1 L_done
    s_load_dwordx16 s[4:19], s[0:1], 0
    s_load_dwordx4 s[20:23], s[0:1], 64
    s_load_dwordx2 s[24:25], s[0:1], 80
    v_lshrrev_b32 v{t0}, 6, v0
    v_and_b32 v{r.lane}, 63, v0
    v_readfirstlane_b32 s{S_V}, v{t0}
    v_mov_b32 v{r.Zero}, 0
    v_and_b32 v{t2}, 255, v0
    v_lshlrev_b32 v{t2}, 2, v{t2}
    v_add_u32 v{t2}, {L_HIST}, v{t2}
    ds_write_b32 v{t2}, v{r.Zero}
    v_lshlrev_b32 v{V16}, 4, v0
    v_lshlrev_b32 v{V32}, 5, v0
    s_mul_i32 s{S_O4}, s2, {CH*4}
    s_add_u32 s{S_O4B}, s{S_O4}, 8192
    s_lshl_b32 s{S_O8}, s{S_O4}, 1
    s_add_u32 s{S_O8B}, s{S_O8}, 16384
    s_mov_b32 s{S_NQ}, {CH//4}
    s_cmp_eq_u32 s2, {NB-1}
    s_cselect_b32 s{S_NQ}, {(E-(NB-1)*CH)//4}, s{S_NQ}
    v_cmp_gt_u32 {s(MA0,2)}, s{S_NQ}, v0
    v_add_u32 v{t3}, 512, v0
    v_cmp_gt_u32 {s(MA1,2)}, s{S_NQ}, v{t3}
    s_and_b32 s3, s2, 7
    s_lshl_b32 s3, s3, 5
    s_lshr_b32 s{S_B4}, s2, 3
    s_or_b32 s{S_B4}, s{S_B4}, s3
    s_mul_i32 s{S_N0}, s{S_B4}, {BN}
    s_lshl_b32 s{S_B4}, s{S_B4}, 2
    s_lshr_b32 s{S_RT}, s{S_V}, 1
    s_and_b32 s{S_T}, s{S_V}, 1
    s_waitcnt lgkmcnt(0)
    """)
    a(srd(T_DST, P_DST, E * 4))
    a(f"""
    s_mov_b64 exec, {s(MA0,2)}
    buffer_load_dwordx4 {v(DST,4)}, v{V16}, {s(T_DST,4)}, s{S_O4} offen {opt.ld}
    s_mov_b64 exec, {s(MA1,2)}
    buffer_load_dwordx4 {v(DST+4,4)}, v{V16}, {s(T_DST,4)}, s{S_O4B} offen {opt.ld}
    s_mov_b64 exec, -1
    """)
    if opt.stamp: a(f"v_mov_b32 v{r.ST}, 0")
    stamp(a, r, 0, True); stamp(a, r, 1)
    a(srd(T_SRC, P_SRC, E * 4)); a(srd(T_EA, P_EA, E * 8))
    a(f"""
    s_mov_b64 exec, {s(MA0,2)}
    buffer_load_dwordx4 {v(SRC,4)}, v{V16}, {s(T_SRC,4)}, s{S_O4} offen {opt.ld}
    buffer_load_dwordx4 {v(EA,4)}, v{V32}, {s(T_EA,4)}, s{S_O8} offen {opt.ld}
    buffer_load_dwordx4 {v(EA+4,4)}, v{V32}, {s(T_EA,4)}, s{S_O8} offen offset:16 {opt.ld}
    s_mov_b64 exec, {s(MA1,2)}
    buffer_load_dwordx4 {v(SRC+4,4)}, v{V16}, {s(T_SRC,4)}, s{S_O4B} offen {opt.ld}
    buffer_load_dwordx4 {v(EA+8,4)}, v{V32}, {s(T_EA,4)}, s{S_O8B} offen {opt.ld}
    buffer_load_dwordx4 {v(EA+12,4)}, v{V32}, {s(T_EA,4)}, s{S_O8B} offen offset:16 {opt.ld}
    s_mov_b64 exec, -1
    """)
    a(srd(T_WE, P_WE, 133 * 128)); a(srd(T_WH, P_WH, 128 * 128)); a(srd(T_H, P_H, N * 128))
    a(srd(T_POS, P_POS, N * 6)); a(srd(T_X, P_WX, 128))
    L16 = r.HA + 2
    a(f"""
    v_lshlrev_b32 v{L16}, 4, v{r.lane}
    s_lshl_b32 s{S_TMP}, s{S_V}, 10
    s_add_u32 m0, s{S_TMP}, {L_WE}
    s_add_u32 s{S_TMP2}, s{S_TMP}, 8192
    buffer_load_dwordx4 v{L16}, {s(T_WE,4)}, s{S_TMP} offen lds
    s_add_u32 m0, s{S_TMP}, {L_WE+8192}
    s_nop 0
    buffer_load_dwordx4 v{L16}, {s(T_WE,4)}, s{S_TMP2} offen lds
    s_add_u32 m0, s{S_TMP}, {L_WH1}
    s_nop 0
    buffer_load_dwordx4 v{L16}, {s(T_WH,4)}, s{S_TMP} offen lds
    s_add_u32 m0, s{S_TMP}, {L_WH2}
    s_nop 0
    buffer_load_dwordx4 v{L16}, {s(T_WH,4)}, s{S_TMP2} offen lds
    s_cmp_lg_u32 s{S_V}, 0
    s_cbranch_scc1 L_nowe
    s_mov_b32 m0, {L_WE+16384}
    s_mov_b32 s3, 16384
    buffer_load_dwordx4 v{L16}, {s(T_WE,4)}, s3 offen lds
    L_nowe:
    v_lshrrev_b32 v{t2}, 3, v{r.lane}
    v_and_b32 v{t3}, 7, v{r.lane}
    v_lshrrev_b32 v{t4}, 4, v{r.lane}
    s_lshl_b32 s3, s{S_T}, 2
    v_or_b32 v{t4}, s3, v{t4}
    v_xor_b32 v{t3}, v{t3}, v{t4}
    v_lshlrev_b32 v{t3}, 4, v{t3}
    v_lshl_add_u32 v{t3}, v{t2}, 7, v{t3}
    s_lshl_b32 s3, s{S_N0}, 7
    s_add_u32 s3, s3, s{S_TMP}
    s_add_u32 m0, s{S_TMP}, {L_HST}
    s_add_u32 s{S_TMP2}, s3, 8192
    buffer_load_dwordx4 v{t3}, {s(T_H,4)}, s3 offen lds
    s_add_u32 m0, s{S_TMP}, {L_HST+8192}
    v_and_b32 v{t2}, 127, v0
    buffer_load_dwordx4 v{t3}, {s(T_H,4)}, s{S_TMP2} offen lds
    v_add_u32 v{t2}, s{S_N0}, v{t2}
    v_mul_u32_u24 v{t2}, 6, v{t2}
    buffer_load_ushort v{POSR}, v{t2}, {s(T_POS,4)}, 0 offen
    buffer_load_ushort v{POSR+1}, v{t2}, {s(T_POS,4)}, 0 offen offset:2
    buffer_load_ushort v{POSR+2}, v{t2}, {s(T_POS,4)}, 0 offen offset:4
    v_and_b32 v{t2}, 3, v{r.lane}
    v_bfe_u32 v{t3}, v{r.lane}, 2, 3
    v_lshl_or_b32 v{t2}, v{t3}, 3, v{t2}
    v_lshrrev_b32 v{t3}, 5, v{r.lane}
    v_lshl_or_b32 v{t2}, v{t3}, 2, v{t2}
    v_lshlrev_b32 v{t2}, 1, v{t2}
    buffer_load_ushort v{POSR+3}, v{t2}, {s(T_X,4)}, 0 offen
    """)
    NY = 10
    a(f"""
    s_sub_u32 s{SR_HD}, s{P_H}, 3072
    s_subb_u32 s{SR_HD+1}, s{P_H+1}, 0
    s_mov_b32 s{SR_HD+2}, {N*128+3072}
    s_mov_b32 s{SR_HD+3}, 0x00020000
    """)
    a(srd(SR_REC, P_WS, NB * REC_STRIDE)); a(srd(SR_TAB, P_WS, NB * 1024, WS_TAB)); a(srd(SR_P4, P_WS, N, WS_P4))
    a(f"""
    s_and_b32 s{SR_P4+1}, s{SR_P4+1}, 0xffff
    s_or_b32 s{SR_P4+1}, s{SR_P4+1}, 0x80000
    s_sub_u32 s{S_NN}, {N}, s{S_N0}
    s_min_u32 s{S_NN}, s{S_NN}, {BN}
    s_lshl_b32 s{S_TMP}, s{S_N0}, 7
    s_lshl_b32 s{S_TMP2}, s{S_NN}, 7
    """)
    a(srd(SR_OUT, P_OUT, f"s{S_TMP2}", f"s{S_TMP}"))
    a(f"s_mul_i32 s{S_TMP}, s{S_N0}, 6\ns_add_u32 s{S_TMP}, s{S_TMP}, {OUT_POS}\ns_mul_i32 s{S_TMP2}, s{S_NN}, 6")
    a(srd(SR_OUTP, P_OUT, f"s{S_TMP2}", f"s{S_TMP}"))
    T_RO = T_DST; T_DBG = T_SRC
    a(f"s_mul_i32 s{S_TMP}, s2, {REC_STRIDE}\ns_mul_i32 s{S_TMP2}, s{S_NQ}, 48")
    a(srd(T_RO, P_WS, f"s{S_TMP2}", f"s{S_TMP}")); a(srd(T_DBG, P_DBG, 256))
    ONE = r.PQ
    a(f"""
    s_mov_b32 s{S_TMP}, 5350
    s_mov_b32 s{S_TMP2}, {BN}
    s_mov_b32 s3, {L_HIST}
    v_mov_b32 v{ONE}, 1
    s_barrier
    """)
    for half, msk in ((0, MA0), (1, MA1)):
        a(f"s_waitcnt vmcnt({7 - half + NY})\ns_mov_b64 exec, {s(msk,2)}")
        if half == 0: stamp(a, r, 2)
        for k in range(4 * half, 4 * half + 4):
            a(f"""
            v_mul_u32_u24 v{BINA+k}, s{S_TMP}, v{DST+k}
            v_lshrrev_b32 v{BINA+k}, 19, v{BINA+k}
            v_mul_u32_u24 v{KEY+k}, s{S_TMP2}, v{BINA+k}
            v_lshl_add_u32 v{BINA+k}, v{BINA+k}, 2, s3
            ds_add_rtn_u32 v{RNK+k}, v{BINA+k}, v{ONE}
            v_sub_u32 v{KEY+k}, v{DST+k}, v{KEY+k}
            """)
    C = r.T
    a(f"""
    s_mov_b64 exec, -1
    v_add_u32 v{t2}, {L_HIST}, v{L16}
    s_waitcnt lgkmcnt(0)
    s_barrier
    """)
    stamp(a, r, 3)
    a(f"""
    ds_read_b128 {v(C,4)}, v{t2}
    s_waitcnt lgkmcnt(0)
    v_add_u32 v{C+5}, v{C}, v{C+1}
    v_add_u32 v{C+6}, v{C+5}, v{C+2}
    v_add_u32 v{C+7}, v{C+6}, v{C+3}
    v_mov_b32 v{C+4}, v{C+7}
    """)
    a(wave_scan(C + 4))
    a(f"""
    v_sub_u32 v{C+8}, v{C+4}, v{C+7}
    v_add_u32 v{C+9}, v{C+8}, v{C}
    v_add_u32 v{C+10}, v{C+8}, v{C+5}
    v_add_u32 v{C+11}, v{C+8}, v{C+6}
    ds_write_b128 v{t2}, {v(C+8,4)} offset:1024
    """)
    for half, msk in ((0, MA0), (1, MA1)):
        a(f"s_mov_b64 exec, {s(msk,2)}")
        for k in range(4 * half, 4 * half + 4):
            a(f"ds_read_b32 v{DST+k}, v{BINA+k} offset:1024")
    a(f"s_mov_b64 exec, -1\ns_cmp_lg_u32 s{S_V}, 0\ns_cbranch_scc1 L_notab")
    for k in range(4):
        a(f"v_mul_u32_u24 v{C+12+k}, 12, v{C+8+k}\nv_lshl_or_b32 v{C+12+k}, v{C+k}, 16, v{C+12+k}")
    a(f"""
    s_lshl_b32 s3, s2, 10
    buffer_store_dwordx4 {v(C+12,4)}, v{L16}, {s(SR_TAB,4)}, s3 offen {opt.st}
    L_notab:
    s_waitcnt vmcnt({NY}) lgkmcnt(0)
    """)
    for half, msk in ((0, MA0), (1, MA1)):
        a(f"s_mov_b64 exec, {s(msk,2)}")
        for k in range(4 * half, 4 * half + 4):
            a(f"""
            v_add_lshl_u32 v{DST+k}, v{DST+k}, v{RNK+k}, 4
            v_lshl_or_b32 v{KEY+k}, v{SRC+k}, 7, v{KEY+k}
            ds_write_b64 v{DST+k}, {v(EA+2*k,2)}
            ds_write_b32 v{DST+k}, v{KEY+k} offset:8
            """)
    a(f"""
    s_mov_b64 exec, -1
    v_mul_u32_u24 v{t2}, 12, v0
    s_waitcnt lgkmcnt(0)
    s_barrier
    """)
    stamp(a, r, 4)
    CO = r.D0
    for k in range(7):
        a(f"ds_read_b96 {v(CO+4*k,3)}, v{V16} offset:{k*8192}")
    for k in range(7):
        a(f"s_mov_b32 s3, {k*6144}\ns_waitcnt lgkmcnt({6-k})")
        a(f"buffer_store_dwordx3 {v(CO+4*k,3)}, v{t2}, {s(T_RO,4)}, s3 offen {opt.st}")
    a(f"""
    s_waitcnt vmcnt(7)
    v_lshl_or_b32 v{r.PS}, v{POSR+1}, 16, v{POSR}
    v_mov_b32 v{r.PS+1}, v{POSR+2}
    v_add_u32 v{t3}, s{S_N0}, v0
    v_cmp_gt_u32 vcc, {BN}, v0
    s_and_saveexec_b64 {s(MA0,2)}, vcc
    buffer_store_dwordx2 {v(r.PS,2)}, v{t3}, {s(SR_P4,4)}, 0 idxen {opt.st}
    s_mov_b64 exec, -1
    v_mov_b32 v{t3}, s2
    s_waitcnt vmcnt(0)
    s_barrier
    s_cmp_lg_u32 s{S_V}, 0
    s_cbranch_scc1 L_noflag
    s_mov_b64 exec, 1
    buffer_store_byte v{ONE}, v{t3}, {s(T_DBG,4)}, 0 offen sc1
    s_mov_b64 exec, -1
    L_noflag:
    """)
    stamp(a, r, 5)
    e_, hh_ = t0, t1
    W1F = r.T; WH1F = r.M; AD = r.XM; LP = r.K; LPT = r.PI
    a(f"""
    s_mov_b32 s{S_C}, 0x{f2u(-LOG2E):08x}
    s_mov_b32 s{S_C+1}, 0x{f2u(-LOG2E):08x}
    s_mov_b32 s{S_ONE}, 1.0
    s_mov_b32 s{S_ONE+1}, 1.0
    s_mov_b32 s{S_NL}, 0x0000bf80
    s_mov_b32 s{S_NH}, 0xbf800000
    s_mov_b32 s{S_MSK}, 0xffffff80
    s_mov_b32 s{S_SO0}, 3072
    s_mov_b32 s{S_SO1}, 2048
    s_mov_b32 s{S_SO2}, 1024
    s_mov_b32 s{S_HI}, 0
    s_mov_b32 s{S_HI+1}, -1
    s_mov_b32 s{S_MODE}, 0
    v_and_b32 v{e_}, 31, v{r.lane}
    v_lshrrev_b32 v{hh_}, 5, v{r.lane}
    v_bfe_u32 v{t2}, v{r.lane}, 2, 2
    v_lshlrev_b32 v{t2}, 7, v{t2}
    v_bfe_u32 v{t3}, v{r.lane}, 4, 1
    v_lshl_add_u32 v{t2}, v{t3}, 5, v{t2}
    v_and_b32 v{t3}, 3, v{r.lane}
    v_lshl_add_u32 v{t2}, v{t3}, 3, v{t2}
    v_add_u32 v{t5}, {L_WE + 128*128}, v{t2}
    v_lshl_add_u32 v{LP}, v{hh_}, 10, v{t2}
    s_lshl_b32 s{S_TMP}, s{S_T}, 6
    s_add_u32 s{S_TMP}, s{S_TMP}, {L_ACC}
    v_add_u32 v{LPT}, s{S_TMP}, v{LP}
    s_lshl_b32 s{S_TMP2}, s{S_RT}, 11
    v_add_u32 v{t4}, s{S_TMP2}, v{LPT}
    """)
    Q2 = r.D0
    a(f"ds_read_b64_tr_b16 {v(Q2,2)}, v{t4} offset:{8192+8192}\nds_read_b64_tr_b16 {v(Q2+2,2)}, v{t4} offset:{8192+8192+512}")
    Q5 = r.D0 + 16
    for t in range(2):
        a(f"ds_read_b64_tr_b16 {v(Q5+4*t,2)}, v{t5} offset:{128+64*t}\nds_read_b64_tr_b16 {v(Q5+4*t+2,2)}, v{t5} offset:{64*t}")
    for k in range(4):
        a(f"ds_read_b64_tr_b16 {v(W1F+4*k,2)}, v{LPT} offset:{8192+2048*k}\nds_read_b64_tr_b16 {v(W1F+4*k+2,2)}, v{LPT} offset:{8192+2048*k+512}")
    a(f"""
    s_lshl_b32 s{S_TMP}, s{S_RT}, 12
    s_add_u32 s{S_TMP}, s{S_TMP}, {L_HST}
    v_lshlrev_b32 v{t2}, 7, v{e_}
    v_add_u32 v{t2}, s{S_TMP}, v{t2}
    v_bfe_u32 v{t3}, v{e_}, 1, 3
    v_xor_b32 v{t5}, v{t3}, v{hh_}
    s_waitcnt lgkmcnt(8)
    """)
    for k in range(4):
        a(f"v_xor_b32 v{t4}, {2*k}, v{t5}\nv_lshl_add_u32 v{t4}, v{t4}, 4, v{t2}\nds_read_b128 {v(r.H+4*k,4)}, v{t4}")
    UP = r.D0 + 4
    for j in range(4):
        a(f"v_lshlrev_b32 v{UP+2*j}, 16, v{Q2+j}\nv_and_b32 v{UP+2*j+1}, 0xffff0000, v{Q2+j}")
    for j in range(4):
        a(f"v_pk_mul_f32 {v(UP+2*j,2)}, {v(UP+2*j,2)}, {s(S_C,2)}")
    for j in range(4):
        a(f"v_cvt_pk_bf16_f32 v{Q2+j}, v{UP+2*j}, v{UP+2*j+1}")
    a(f"""
    s_lshl_b32 s{S_TMP}, s{S_V}, 10
    s_add_u32 s{S_TMP}, s{S_TMP}, {L_W2S}
    v_add_u32 v{t4}, s{S_TMP}, v{L16}
    ds_write_b128 v{t4}, {v(Q2,4)}
    s_lshl_b32 s{S_TMP}, s{S_T}, 2
    v_xor_b32 v{t5}, s{S_TMP}, v{t3}
    v_lshl_add_u32 v{t2}, v{hh_}, 3, v{t2}
    """)
    for k in range(4):
        a(f"ds_read_b64_tr_b16 {v(WH1F+4*k,2)}, v{LPT} offset:{2048*k}\nds_read_b64_tr_b16 {v(WH1F+4*k+2,2)}, v{LPT} offset:{2048*k+512}")
    for g in range(4):
        a(f"v_xor_b32 v{t4}, {g}, v{t5}\nv_lshl_add_u32 v{t4}, v{t4}, 4, v{t2}\nds_read_b64 {v(r.HR+2*g,2)}, v{t4}")
    for t in range(2):
        x = Q5 + 4 * t; B = r.BW + 4 * t
        a(f"""
        v_lshlrev_b32 v{UP}, 16, v{x}
        v_and_b32 v{UP+1}, 0xffff0000, v{x}
        v_lshlrev_b32 v{UP+2}, 16, v{x+1}
        v_and_b32 v{UP+3}, 0xffff0000, v{x+1}
        v_lshlrev_b32 v{UP+4}, 16, v{x+2}
        v_pk_mul_f32 {v(UP,2)}, {v(UP,2)}, {s(S_C,2)}
        v_pk_mul_f32 {v(UP+2,2)}, {v(UP+2,2)}, {s(S_C,2)}
        v_mul_f32 v{UP+4}, s{S_C}, v{UP+4}
        v_cvt_pk_bf16_f32 v{B}, v{UP}, v{UP+1}
        v_cvt_pk_bf16_f32 v{B+1}, v{UP+2}, v{UP+3}
        v_cvt_pk_bf16_f32 v{UP+5}, v{UP+4}, v{UP+4}
        v_lshlrev_b32 v{UP+5}, 16, v{UP+5}
        v_sub_f32 v{UP+5}, v{UP+4}, v{UP+5}
        v_cvt_pk_bf16_f32 v{B+2}, v{UP+4}, v{UP+5}
        v_mov_b32 v{B+3}, 0
        """)
    a("s_waitcnt lgkmcnt(0)")
    for k in range(4): a(mfma(AD, r.H+4*k, W1F+4*k, AD if k else None))
    for k in range(4): a(mfma(r.U, WH1F+4*k, r.H+4*k, r.U if k else None))
    NTD = r.D0 + 24
    a(f"""
    v_and_b32 v{t2}, 1, v0
    v_lshlrev_b32 v{t2}, 4, v{t2}
    v_mov_b32 v{t3}, 0x3f80
    v_lshlrev_b32 v{t2}, v{t2}, v{t3}
    v_bfe_u32 v{t3}, v0, 1, 2
    """)
    for d in range(4):
        a(f"v_cmp_eq_u32 vcc, {d}, v{t3}\ns_nop 1\nv_cndmask_b32 v{NTD+d}, 0, v{t2}, vcc")
    a(f"""
    v_lshlrev_b32 v{NTD+4}, 16, v{POSR}
    v_lshlrev_b32 v{NTD+5}, 16, v{POSR+1}
    v_lshlrev_b32 v{NTD+6}, 16, v{POSR+2}
    v_and_b32 v{t3}, 7, v0
    v_lshlrev_b32 v{NTD+7}, 3, v{t3}
    v_lshlrev_b32 v{POSR+3}, 16, v{POSR+3}
    v_mul_f32 v{POSR+3}, 0x{f2u(-LN2):08x}, v{POSR+3}
    v_lshlrev_b32 v{t3}, 2, v{r.lane}
    v_add_u32 v{t3}, {L_WX}, v{t3}
    ds_write_b32 v{t3}, v{POSR+3}
    s_cmp_ge_u32 s{S_V}, 4
    s_cbranch_scc1 L_nont
    ds_write_b128 v{V32}, {v(NTD,4)}
    ds_write_b128 v{V32}, {v(NTD+4,4)} offset:16
    L_nont:
    s_lshl_b32 s{S_TMP}, s{S_RT}, 12
    s_lshl_b32 s{S_TMP2}, s{S_T}, 9
    s_add_u32 s{S_TMP}, s{S_TMP}, s{S_TMP2}
    s_add_u32 s{S_TMP}, s{S_TMP}, {L_AT}
    v_lshlrev_b32 v{t2}, 4, v{e_}
    v_lshl_add_u32 v{t2}, v{hh_}, 3, v{t2}
    v_add_u32 v{t2}, s{S_TMP}, v{t2}
    """)
    HI = r.D0 + 12
    for g in range(4):
        x = AD + 4 * g
        if g == 2: a(f"s_cmp_eq_u32 s{S_RT}, 3\ns_cbranch_scc1 L_at_done")
        a(f"""
        v_pk_mul_f32 {v(x,2)}, {v(x,2)}, {s(S_C,2)}
        v_pk_mul_f32 {v(x+2,2)}, {v(x+2,2)}, {s(S_C,2)}
        v_cvt_pk_bf16_f32 v{HI+2*(g&1)}, v{x}, v{x+1}
        v_cvt_pk_bf16_f32 v{HI+2*(g&1)+1}, v{x+2}, v{x+3}
        ds_write_b64 v{t2}, {v(HI+2*(g&1),2)} offset:{g*1024}
        """)
    a.label("L_at_done")
    a("s_waitcnt lgkmcnt(0)\ns_barrier")
    stamp(a, r, 6)
    a(f"v_add_u32 v{t4}, {L_W2S}, v{L16}")
    for sidx in range(4):
        for t in range(2):
            a(f"ds_read_b128 {v(r.W2+16*t+4*sidx,4)}, v{t4} offset:{(2*sidx+t)*1024}")
    Z4 = r.D0
    a(f"v_mov_b64 {v(Z4,2)}, 0\nv_mov_b64 {v(Z4+2,2)}, 0")
    def zero_region(base, size):
        assert base % 16 == 0 and size % 16 == 0
        full = size // 8192; rem = size % 8192
        a(f"v_add_u32 v{t3}, {base}, v{V16}")
        for k in range(full):
            a(f"ds_write_b128 v{t3}, {v(Z4,4)} offset:{k*8192}")
        if rem:
            a(f"v_cmp_gt_u32 vcc, {rem//16}, v0\ns_and_saveexec_b64 {s(S_D,2)}, vcc")
            a(f"ds_write_b128 v{t3}, {v(Z4,4)} offset:{full*8192}\ns_mov_b64 exec, -1")
    zero_region(L_CNT, L_RING - L_CNT)
    zero_region(L_SIMG, 8 * 2048)
    zero_region(L_ACC, 112 * ACC_ROW)
    a(f"v_mov_b32 v{t3}, {L_FLAG}\nds_write_b128 v{t3}, {v(Z4,4)}")
    JJ = r.SA; LB = r.K; J16 = r.PI; MX = r.NA; TA = r.Desc
    a(f"""
    v_lshrrev_b32 v{t5}, 4, v0
    v_lshlrev_b32 v{TA}, 10, v{t5}
    v_and_b32 v{JJ}, 15, v0
    v_add_u32 v{J16}, 16, v{JJ}
    s_mov_b32 s{S_TMP}, {REC_STRIDE}
    v_mul_lo_u32 v{LB}, v{t5}, s{S_TMP}
    v_mad_u32_u24 v{LB}, v{JJ}, 12, v{LB}
    v_mov_b32 v{MX}, 0
    s_lshl_b32 s{S_TMP}, s{S_V}, 12
    s_add_u32 s{S_TMP}, s{S_TMP}, {L_RING}
    s_mov_b32 m0, s{S_TMP}
    v_and_b32 v{t2}, 3, v{e_}
    v_lshlrev_b32 v{t3}, 10, v{t2}
    v_lshrrev_b32 v{t4}, 2, v{e_}
    v_lshl_add_u32 v{t3}, v{t4}, 7, v{t3}
    v_add_u32 v{t3}, s{S_TMP}, v{t3}
    v_bfe_u32 v{t4}, v{e_}, 3, 1
    v_lshl_or_b32 v{t2}, v{t4}, 2, v{t2}
    v_xor_b32 v{t2}, v{t2}, v{hh_}
    """)
    for k in range(4):
        a(f"v_xor_b32 v{t4}, {2*k}, v{t2}\nv_lshl_add_u32 v{r.HA+k}, v{t4}, 4, v{t3}")
    a(f"""
    v_and_b32 v{t2}, 7, v{r.lane}
    v_bfe_u32 v{t3}, v{r.lane}, 4, 1
    v_lshlrev_b32 v{t3}, 2, v{t3}
    v_xor_b32 v{t2}, v{t2}, v{t3}
    """)
    for k in range(4):
        a(f"v_xor_b32 v{t4}, {k}, v{t2}\nv_lshlrev_b32 v{r.XK+k}, 4, v{t4}")
    a(f"""
    s_lshl_b32 s{S_TMP}, s{S_V}, 11
    s_add_u32 s{S_TMP}, s{S_TMP}, {L_SIMG}
    v_bfe_u32 v{t2}, v{e_}, 1, 3
    v_lshlrev_b32 v{t2}, 3, v{t2}
    v_lshl_add_u32 v{t2}, v{e_}, 6, v{t2}
    v_add_u32 v{r.SB}, s{S_TMP}, v{t2}
    v_bfe_u32 v{t2}, v{r.lane}, 2, 2
    v_lshl_add_u32 v{t2}, v{hh_}, 2, v{t2}
    v_bfe_u32 v{t3}, v{r.lane}, 4, 1
    v_and_b32 v{t4}, 3, v{r.lane}
    v_lshl_or_b32 v{t3}, v{t3}, 2, v{t4}
    v_lshrrev_b32 v{t4}, 1, v{t2}
    v_xor_b32 v{t3}, v{t3}, v{t4}
    v_lshlrev_b32 v{t2}, 6, v{t2}
    v_add_u32 v{t2}, s{S_TMP}, v{t2}
    v_lshl_add_u32 v{r.TR0}, v{t3}, 3, v{t2}
    v_xor_b32 v{t3}, 4, v{t3}
    v_lshl_add_u32 v{r.TR1}, v{t3}, 3, v{t2}
    v_add_u32 v{r.TR1}, 512, v{r.TR1}
    v_lshlrev_b32 v{t2}, 4, v{e_}
    v_add_u32 v{r.AWl}, {L_AT}, v{t2}
    v_lshrrev_b32 v{t2}, 2, v{e_}
    v_mul_u32_u24 v{t2}, {ACC_ROW}, v{t2}
    v_add_u32 v{t2}, {L_ACC}, v{t2}
    v_lshl_add_u32 v{r.FlM}, v{hh_}, 4, v{t2}
    v_and_b32 v{t3}, 3, v{e_}
    v_lshl_add_u32 v{r.FlP}, v{t3}, 2, v{t2}
    v_add_u32 v{r.FlP}, 256, v{r.FlP}
    v_lshlrev_b32 v{t2}, 7, v{hh_}
    v_add_u32 v{r.WXa}, {L_WX}, v{t2}
    v_bfe_u32 v{t2}, v{e_}, 4, 1
    v_add_u32 v{r.ML}, -1, v{t2}
    v_mov_b32 v{r.XM+3}, 0
    """)
    stamp(a, r, 7)
    a(f"""
    s_cmp_lg_u32 s{S_V}, 0
    s_cbranch_scc1 L_polled
    v_lshlrev_b32 v{t2}, 2, v{r.lane}
    s_mov_b32 s{S_TMP}, 0x01010101
    s_mov_b32 s{S_TMP2}, 0x40000
    L_poll:
    buffer_load_dword v{t3}, v{t2}, {s(T_DBG,4)}, 0 offen sc1
    s_waitcnt vmcnt(0)
    v_cmp_ne_u32 vcc, s{S_TMP}, v{t3}
    s_cbranch_vccz L_polled
    s_sub_u32 s{S_TMP2}, s{S_TMP2}, 1
    s_cbranch_scc1 L_polled
    s_sleep 2
    s_branch L_poll
    L_polled:
    s_mov_b32 s{S_TMP}, s{S_B4}
    s_waitcnt lgkmcnt(0)
    s_barrier
    """)
    stamp(a, r, 8)
    def REC(q): return r.D0 + 4 * q
    TABV = r.T
    for rr in range(8):
        a(f"buffer_load_dword v{TABV+rr}, v{TA}, {s(SR_TAB,4)}, s{S_TMP} offen {opt.hl}")
        if rr < 7: a(f"s_add_u32 s{S_TMP}, s{S_TMP}, 32768")
    for rr in range(8):
        a(f"""
        s_waitcnt vmcnt({7 - rr + 2*rr})
        v_cmp_lt_u32_sdwa {s(S_M+2*rr,2)}, v{JJ}, v{TABV+rr} src0_sel:DWORD src1_sel:WORD_1
        v_cmp_lt_u32_sdwa {s(S_M+16+2*rr,2)}, v{J16}, v{TABV+rr} src0_sel:DWORD src1_sel:WORD_1
        v_max_u32 v{MX}, v{MX}, v{TABV+rr}
        v_add_u32_sdwa v{TABV+rr}, v{LB}, v{TABV+rr} {SDWA} src1_sel:WORD_0
        s_mov_b32 s{S_TMP}, {rr*32*REC_STRIDE}
        s_mov_b64 exec, {s(S_M+2*rr,2)}
        buffer_load_dwordx3 {v(REC(rr),3)}, v{TABV+rr}, {s(SR_REC,4)}, s{S_TMP} offen {opt.hl}
        s_mov_b64 exec, {s(S_M+16+2*rr,2)}
        buffer_load_dwordx3 {v(REC(8+rr),3)}, v{TABV+rr}, {s(SR_REC,4)}, s{S_TMP} offen offset:192 {opt.hl}
        s_mov_b64 exec, -1
        """)
    stamp(a, r, 9)
    if opt.warm:
        a(f"""
        s_lshr_b32 s{S_TMP}, s2, 3
        s_lshl_b32 s{S_TMP}, s{S_TMP}, 3
        s_add_u32 s{S_TMP}, s{S_TMP}, s{S_V}
        s_mul_i32 s{S_TMP}, s{S_TMP}, {opt.warm*1024}
        s_add_u32 s{S_TMP}, s{S_TMP}, 3072
        v_lshlrev_b32 v{t2}, 4, v{r.lane}
        """)
        for k in range(opt.warm):
            if k and k % 4 == 0: a(f"s_add_u32 s{S_TMP}, s{S_TMP}, 4096")
            a(f"buffer_load_dwordx4 {v(r.M,4)}, v{t2}, {s(SR_HD,4)}, s{S_TMP} offen offset:{(k%4)*1024}")
    a(f"""
    v_cmp_lt_u32 vcc, {(33<<16)-1}, v{MX}
    s_and_saveexec_b64 {s(S_D,2)}, vcc
    v_mov_b32 v{t2}, {L_FLAG}
    ds_write_b32 v{t2}, v{ONE}
    s_mov_b64 exec, -1
    """)
    ADR = r.T
    order = [x for rr in range(8) for x in (rr, 8 + rr)]
    a.label("L_rank")
    for n_, q in enumerate(order):
        if q < 8: a(f"s_waitcnt vmcnt({opt.warm + 14 - n_})")
        else: a(f"s_cmp_eq_u64 {s(S_M+2*q,2)}, 0\ns_cbranch_scc1 L_rk{q}")
        a(f"""
        s_mov_b64 exec, {s(S_M+2*q,2)}
        v_lshlrev_b32_sdwa v{ADR+q}, 2, v{REC(q)+2} {SDWA} src1_sel:BYTE_0
        ds_add_rtn_u32 v{REC(q)+3}, v{ADR+q}, v{ONE} offset:{L_CNT}
        """)
        if q >= 8: a.label(f"L_rk{q}")
    a(f"""
    s_mov_b64 exec, -1
    v_lshlrev_b32 v{t2}, 3, v{r.lane}
    v_mov_b32 v{t3}, {L_FLAG}
    s_mov_b32 s{S_PADM}, {0 if opt.slide else 31}
    s_cmp_lg_u32 s{S_MODE}, 0
    s_cselect_b32 s{S_PADM}, 31, s{S_PADM}
    s_waitcnt lgkmcnt(0)
    s_barrier
    """)
    stamp(a, r, 10)
    CA = r.M; CB = r.M + 2; FL = r.M + 4; SS = r.M + 5; TT = r.M + 6; PADR = r.M + 7; O = r.M + 8; INC = r.M + 12; SP = r.M + 13; N1 = r.M + 14
    a(f"""
    ds_read_b64 {v(CA,2)}, v{t2} offset:{L_CNT}
    ds_read_b64 {v(CB,2)}, v{t2} offset:{L_CNT+512}
    ds_read_b32 v{FL}, v{t3}
    v_and_b32 v{t4}, 3, v{r.lane}
    v_cmp_eq_u32 {s(S_NB,2)}, 3, v{t4}
    s_waitcnt lgkmcnt(0)
    v_add_u32 v{N1}, v{CA}, v{CB}
    v_add3_u32 v{SS}, v{N1}, v{CA+1}, v{CB+1}
    v_readfirstlane_b32 s{S_TMP3}, v{FL}
    s_nop 0
    v_add_u32_dpp v{TT}, v{SS}, v{SS} quad_perm:[1,0,3,2] row_mask:0xf bank_mask:0xf
    s_nop 1
    v_add_u32_dpp v{TT}, v{TT}, v{TT} quad_perm:[2,3,0,1] row_mask:0xf bank_mask:0xf
    L_scan:
    v_sub_u32 v{PADR}, 0, v{TT}
    v_and_b32 v{PADR}, s{S_PADM}, v{PADR}
    v_cndmask_b32 v{PADR}, 0, v{PADR}, {s(S_NB,2)}
    v_add_u32 v{SP}, v{SS}, v{PADR}
    v_mov_b32 v{INC}, v{SP}
    """)
    a(wave_scan(INC))
    a(f"""
    s_nop 0
    v_readlane_b32 s{S_TMP}, v{INC}, 63
    v_sub_u32 v{O}, v{INC}, v{SP}
    s_cmp_lg_u32 s{S_PADM}, 0
    s_cbranch_scc1 L_scan_pad
    v_mov_b32_dpp v{PADR}, v{INC} quad_perm:[1,1,3,3] row_mask:0xf bank_mask:0xf
    v_add_u32 v{t4}, -1, v{O}
    v_xor_b32 v{t4}, v{t4}, v{PADR}
    v_cmp_gt_u32 vcc, 32, v{t4}
    v_cmp_gt_u32 {s(S_NBN,2)}, s{S_TMP}, v{PADR}
    s_and_b64 vcc, vcc, {s(S_NBN,2)}
    s_and_b32 vcc_lo, vcc_lo, 0x55555555
    s_and_b32 vcc_hi, vcc_hi, 0x55555555
    v_mov_b32 v{PADR}, s{S_TMP}
    s_cmp_eq_u64 vcc, 0
    s_cbranch_scc1 L_scan_done
    s_mov_b32 s{S_PADM}, 31
    s_branch L_scan
    L_scan_pad:
    v_mov_b32_dpp v{PADR}, v{O} quad_perm:[0,0,0,0] row_mask:0xf bank_mask:0xf
    v_add_u32 v{PADR}, v{PADR}, v{TT}
    L_scan_done:
    v_add_u32 v{O+1}, v{O}, v{N1}
    v_add_u32 v{O+2}, v{O}, v{CA}
    v_add_u32 v{O+3}, v{O+1}, v{CA+1}
    ds_write_b64 v{t2}, {v(O,2)} offset:{L_OFF}
    ds_write_b64 v{t2}, {v(O+2,2)} offset:{L_OFF+512}
    v_and_b32 v{t3}, 60, v{r.lane}
    v_add_u32 v{t3}, {L_WEND}, v{t3}
    ds_write_b32 v{t3}, v{PADR}
    s_add_u32 s{S_TMP}, s{S_TMP}, 31
    s_lshr_b32 s{S_TMP}, s{S_TMP}, 5
    s_cmp_gt_u32 s{S_TMP}, {CAPT}
    s_cselect_b32 s{S_TMP3}, 1, s{S_TMP3}
    s_cmp_lg_u32 s{S_TMP3}, 0
    s_cbranch_scc1 L_slow
    """)
    for q in order:
        if q >= 8: a(f"s_cmp_eq_u64 {s(S_M+2*q,2)}, 0\ns_cbranch_scc1 L_pa{q}")
        a(f"s_mov_b64 exec, {s(S_M+2*q,2)}\nds_read_b32 v{ADR+q}, v{ADR+q} offset:{L_OFF}")
        if q >= 8: a.label(f"L_pa{q}")
    a(f"""
    s_and_b32 s{S_T0}, s{S_V}, 3
    s_mul_i32 s{S_T0}, s{S_T0}, s{S_TMP}
    s_add_u32 s{S_NTL}, s{S_T0}, s{S_TMP}
    s_lshr_b32 s{S_T0}, s{S_T0}, 2
    s_lshr_b32 s{S_NTL}, s{S_NTL}, 2
    s_sub_u32 s{S_TMP}, s{S_NTL}, s{S_T0}
    s_mul_i32 s{S_TMP}, s{S_TMP}, {opt.split}
    s_add_u32 s{S_TMP}, s{S_TMP}, 32
    s_lshr_b32 s{S_TMP}, s{S_TMP}, 6
    s_add_u32 s{S_TMP}, s{S_TMP}, s{S_T0}
    s_cmp_lt_u32 s{S_V}, 4
    s_cselect_b32 s{S_NTL}, s{S_TMP}, s{S_NTL}
    s_cselect_b32 s{S_T0}, s{S_T0}, s{S_TMP}
    s_sub_u32 s{S_NTL}, s{S_NTL}, s{S_T0}
    s_mov_b32 s{S_TMP2}, {L_REC}
    s_waitcnt lgkmcnt(0)
    """)
    for q in order:
        if q >= 8: a(f"s_cmp_eq_u64 {s(S_M+2*q,2)}, 0\ns_cbranch_scc1 L_pb{q}")
        a(f"""
        s_mov_b64 exec, {s(S_M+2*q,2)}
        v_add_u32 v{ADR+q}, v{ADR+q}, v{REC(q)+3}
        v_mad_u32_u24 v{ADR+q}, v{ADR+q}, 12, s{S_TMP2}
        ds_write_b32 v{ADR+q}, v{REC(q)+2} offset:8
        ds_write2_b32 v{ADR+q}, v{REC(q)}, v{REC(q)+1} offset0:0 offset1:1
        """)
        if q >= 8: a.label(f"L_pb{q}")
    a(f"""
    s_mov_b64 exec, -1
    s_mul_i32 s{S_TMP}, s{S_T0}, 384
    s_add_u32 s{S_TMP}, s{S_TMP}, {L_REC}
    v_and_b32 v{t2}, 31, v{r.lane}
    v_mul_u32_u24 v{t2}, 12, v{t2}
    v_add_u32 v{r.A1a}, s{S_TMP}, v{t2}
    v_lshrrev_b32 v{t2}, 3, v{r.lane}
    v_mul_u32_u24 v{t2}, 48, v{t2}
    v_add_u32 v{r.A2a}, s{S_TMP}, v{t2}
    s_sub_u32 s{S_TMP}, s{S_T0}, 1
    v_add_u32 v{t3}, s{S_TMP}, v{r.lane}
    v_mul_u32_u24 v{t2}, 384, v{t3}
    s_waitcnt lgkmcnt(0)
    s_barrier
    """)
    stamp(a, r, 11)
    a(f"s_cmp_eq_u32 s{S_NTL}, 0\ns_cbranch_scc1 L_main_end")
    a(k_reads(r, 0))
    a(f"ds_read_u8 v{t4}, v{t2} offset:{L_REC+8}")
    a(ea_read(r, 0))
    a(acc_zero(r, False))
    for i in range(0, 8, 2): a(f"v_mov_b64 {v(r.M+8+i,2)}, 0\nv_mov_b64 {v(r.S+i,2)}, 0")
    a("s_waitcnt lgkmcnt(2)")
    a(dma_addr(r) + dma_issue(r))
    a(f"""
    v_lshrrev_b32 v{r.PI}, 7, v{r.K}
    v_lshlrev_b32_sdwa v{r.NA}, 5, v{r.K} {SDWA} src1_sel:BYTE_0
    buffer_load_dwordx2 {v(r.PS,2)}, v{r.PI}, {s(SR_P4,4)}, 0 idxen
    """)
    a(pd_read(r) + k_reads(r, 1))
    a(f"""
    s_waitcnt lgkmcnt(5)
    v_and_b32 v{t4}, 0x7f, v{t4}
    v_lshrrev_b32 v{t5}, 3, v{t4}
    v_lshlrev_b32 v{t5}, 2, v{t5}
    v_add_u32 v{t5}, {L_WEND}, v{t5}
    ds_read_b32 v{t5}, v{t5}
    v_lshlrev_b32 v{t3}, 5, v{t3}
    s_waitcnt lgkmcnt(0)
    v_sub_u32 v{t5}, v{t5}, v{t3}
    v_min_u32 v{t5}, 32, v{t5}
    v_mad_u32_u24 v{t2}, v{t5}, 12, v{t2}
    ds_read_u8 v{t2}, v{t2} offset:{L_REC-4}
    v_lshl_or_b32 v{t4}, v{t5}, 16, v{t4}
    s_waitcnt lgkmcnt(0)
    v_and_b32 v{t2}, 0x7f, v{t2}
    v_lshl_or_b32 v{r.Desc}, v{t2}, 8, v{t4}
    s_nop 0
    v_readlane_b32 s{S_D}, v{r.Desc}, 1
    v_readlane_b32 s{S_ZP}, v{r.Desc}, 0
    s_nop 1
    s_and_b32 s{S_NB}, s{S_D}, 0x7c
    s_mov_b32 s{S_NBP}, s{S_NB}
    s_lshr_b32 s{S_CNT}, s{S_D}, 16
    s_bfe_u32 s{S_ZP}, s{S_ZP}, 0x80008
    s_cmp_eq_u32 s{S_T0}, 0
    s_cselect_b32 s{S_ZP}, -1, s{S_ZP}
    """)
    a(aw_reads(r, S_NB))
    a("s_waitcnt vmcnt(1)")
    a(h_reads(r))
    a("s_waitcnt lgkmcnt(0)")
    a(dma_addr(r) + dma_issue(r))
    a("s_waitcnt vmcnt(4)")
    a(geometry(r, False))
    for k in range(4): a(mfma(r.D0, r.H+4*k, r.W2+4*k, r.D0 if k else None))
    a("s_waitcnt lgkmcnt(0)")
    a(mfma(r.D0, r.XM, r.BW, r.D0))
    a(f"s_mov_b32 s{S_I}, 2\ns_add_u32 s{S_NTL}, s{S_NTL}, 1")
    if opt.prio: a(f"s_cmp_ge_u32 s{S_V}, 4\ns_cbranch_scc1 L_np\ns_setprio 1\nL_np:")
    a("s_nop 7\ns_nop 1")
    stamp(a, r, 12)
    a(".p2align 6")
    a.label("L_loop")
    pre = k_reads(r, 2) + pd_read(r) + [f"v_readlane_b32 s{S_D}, v{r.Desc}, s{S_I}"] + s_set(r)
    mf_exp = {4*k: mfma(r.D1, r.H+4*k, r.W2+16+4*k, r.D1 if k else None) for k in range(4)}
    mf_rcp = {0: mfma(r.D1, r.XM, r.BW+4, r.D1), 5: mfma(r.A1, r.M+8, r.S, r.A1), 10: mfma(r.A1, r.M+12, r.S+4, r.A1)}
    ins_exp = {2: [f"s_bfe_u32 s{S_TMP}, s{S_D}, 0x80008", f"s_add_u32 s{S_TMP2}, s{S_NB}, 8", f"s_and_b32 s{S_TMP3}, s{S_D}, 0x7c",
                   f"s_cmp_ge_u32 s{S_TMP}, s{S_TMP2}", f"s_cselect_b32 s{S_NBN}, s{S_TMP3}, s{S_NB}"],
               13: ["s_waitcnt vmcnt(1)"] + h_reads(r)}
    ins_rcp = {2: ["s_waitcnt lgkmcnt(4)"] + dma_addr(r),
               4: ["s_waitcnt lgkmcnt(0)"] + dma_issue(r),
               6: ea_read(r, 1) + [f"s_cmp_eq_u32 s{S_NBN}, s{S_NB}", "s_cbranch_scc1 L_noaw"] + aw_reads(r, S_NBN) + ["L_noaw:"],
               11: s_reads(r)}
    silu_stage(a, r, r.D0, r.M, mf_exp, mf_rcp, ins_exp, ins_rcp, pre)
    a(f"s_cmp_eq_u32 s{S_NB}, s{S_NBP}\ns_cbranch_scc1 L_noflush")
    if "flush" in opt.abl: a("s_branch L_noflush")
    a(retire_mask(r))
    a(f"s_cmp_lg_u32 s{S_MODE}, 0\ns_cbranch_scc1 L_flush_slow")
    a(flush_plain(r))
    a.label("L_noflush")
    pre = [f"s_mov_b32 s{S_NBP}, s{S_NB}", f"s_mov_b32 s{S_NB}, s{S_NBN}", f"s_lshr_b32 s{S_CNT}, s{S_D}, 16",
           "s_waitcnt vmcnt(4)"] + geometry(r, True)
    mf_exp = {4*k: mfma(r.D0, r.H+4*k, r.W2+4*k, r.D0 if k else None) for k in range(4)}
    mf_rcp = {0: mfma(r.D0, r.XM, r.BW, r.D0), 5: mfma(r.A0, r.M, r.S, r.A0), 10: mfma(r.A0, r.M+4, r.S+4, r.A0)}
    silu_stage(a, r, r.D1, r.M+8, mf_exp, mf_rcp, {15: ["s_waitcnt lgkmcnt(0)"]}, {}, pre)
    a(f"""
    s_sub_u32 s{S_TMP}, s{S_I}, 1
    s_add_u32 s{S_I}, s{S_I}, 1
    s_cmp_le_u32 s{S_I}, s{S_NTL}
    s_cbranch_scc1 L_loop
    v_readlane_b32 s{S_D}, v{r.Desc}, s{S_TMP}
    """)
    stamp(a, r, 13)
    a(mfma(r.A1, r.M+8, r.S, r.A1)); a(mfma(r.A1, r.M+12, r.S+4, r.A1))
    a(f"""
    s_mov_b32 s{S_RM}, 0xffff
    s_bitcmp1_b32 s{S_NBP}, 2
    s_cselect_b32 s{S_RM}, 0xffff0000, s{S_RM}
    s_bfe_u32 s{S_TMP}, s{S_D}, 0x80008
    s_add_u32 s{S_TMP2}, s{S_NBP}, 4
    s_cmp_ge_u32 s{S_TMP}, s{S_TMP2}
    s_cselect_b32 s{S_RM}, -1, s{S_RM}
    """)
    a(flush_addr(r))
    a("s_waitcnt vmcnt(0) lgkmcnt(0)\ns_nop 3")
    a(flush_dot(r))
    a(f"""
    s_cmp_lg_u32 s{S_MODE}, 0
    s_cbranch_scc1 L_final_slow
    s_cmp_lt_i32 s{S_ZP}, s{S_NBP}
    s_cbranch_scc1 L_main_end
    s_lshr_b32 s{S_TMP}, s{S_V}, 2
    s_lshl_b32 s{S_TMP}, s{S_TMP}, 2
    s_add_u32 s{S_TMP}, s{S_TMP}, {L_FLAG+8}
    v_mov_b32 v{r.K}, s{S_TMP}
    v_mov_b32 v{r.PI}, 1
    ds_write_b32 v{r.K}, v{r.PI}
    L_main_end:
    s_cmp_lg_u32 s{S_MODE}, 0
    s_cbranch_scc1 L_slow_next
    """)
    stamp(a, r, 14)
    a(f"v_mov_b32 v{r.K}, {L_FLAG+8}\ns_waitcnt lgkmcnt(0)\ns_barrier\nds_read_b64 {v(r.PS,2)}, v{r.K}")
    a(rmw_reads(r))
    a(f"""
    s_waitcnt lgkmcnt(9)
    v_readfirstlane_b32 s{S_TMP}, v{r.PS}
    v_readfirstlane_b32 s{S_TMP2}, v{r.PS+1}
    s_nop 3
    s_or_b32 s{S_D}, s{S_TMP}, s{S_TMP2}
    s_cbranch_scc1 L_merge_rare
    L_merge:
    s_cmp_eq_u32 s{S_NTL}, 0
    s_cbranch_scc1 L_epi
    """)
    a(rmw_writes(r))
    a.label("L_epi")
    if opt.stamp: a(f"s_sub_u32 s{S_ST}, s{S_NTL}, 1\ns_max_i32 s{S_ST}, s{S_ST}, 0\nv_writelane_b32 v{r.ST}, s{S_ST}, 30")
    WH2 = r.W2; MR = r.D0
    a(f"""
    v_and_b32 v{e_}, 31, v{r.lane}
    v_lshrrev_b32 v{hh_}, 5, v{r.lane}
    v_bfe_u32 v{t2}, v{r.lane}, 2, 2
    v_lshlrev_b32 v{t2}, 7, v{t2}
    v_bfe_u32 v{t3}, v{r.lane}, 4, 1
    v_lshl_add_u32 v{t2}, v{t3}, 5, v{t2}
    v_and_b32 v{t3}, 3, v{r.lane}
    v_lshl_add_u32 v{t2}, v{t3}, 3, v{t2}
    v_lshl_add_u32 v{t2}, v{hh_}, 10, v{t2}
    s_lshl_b32 s{S_TMP}, s{S_T}, 6
    s_add_u32 s{S_TMP}, s{S_TMP}, {L_WH2}
    v_add_u32 v{t2}, s{S_TMP}, v{t2}
    """)
    for k in range(4):
        a(f"ds_read_b64_tr_b16 {v(WH2+4*k,2)}, v{t2} offset:{2048*k}\nds_read_b64_tr_b16 {v(WH2+4*k+2,2)}, v{t2} offset:{2048*k+512}")
    a(f"""
    s_mul_i32 s{S_TMP}, s{S_RT}, {32*ACC_ROW}
    s_add_u32 s{S_TMP}, s{S_TMP}, {L_ACC}
    v_mul_u32_u24 v{t2}, {ACC_ROW}, v{e_}
    v_lshl_add_u32 v{t2}, v{hh_}, 5, v{t2}
    v_add_u32 v{t2}, s{S_TMP}, v{t2}
    v_min_u32 v{t3}, 311, v0
    v_mul_u32_u24 v{t4}, 171, v{t3}
    v_lshrrev_b32 v{t4}, 9, v{t4}
    v_mul_u32_u24 v{t5}, 3, v{t4}
    v_sub_u32 v{t5}, v{t3}, v{t5}
    v_lshlrev_b32 v{t5}, 2, v{t5}
    v_lshl_add_u32 v{r.K}, v{t4}, 5, v{t5}
    v_mul_u32_u24 v{r.PI}, {ACC_ROW}, v{t4}
    v_add_u32 v{r.PI}, v{r.PI}, v{t5}
    v_add_u32 v{r.PI}, {L_ACC+256}, v{r.PI}
    s_mov_b32 s{S_D}, 0x{f2u(-LN2):08x}
    s_mov_b32 s{S_D+1}, 0x{f2u(-LN2):08x}
    s_waitcnt lgkmcnt(0)
    s_barrier
    """)
    stamp(a, r, 15)
    for k in range(4):
        a(f"ds_read_b128 {v(MR+8*k,4)}, v{t2} offset:{64*k}\nds_read_b128 {v(MR+8*k+4,4)}, v{t2} offset:{64*k+16}")
    a(f"ds_read_b32 v{r.K}, v{r.K} offset:16\nds_read_b32 v{r.PI}, v{r.PI}")
    for k in range(4):
        a(f"s_waitcnt lgkmcnt({8-2*k})")
        for j in range(0, 8, 2):
            a(f"v_pk_mul_f32 {v(MR+8*k+j,2)}, {v(MR+8*k+j,2)}, {s(S_D,2)}")
        for j in range(4):
            a(f"v_cvt_pk_bf16_f32 v{r.H+4*k+j}, v{MR+8*k+2*j}, v{MR+8*k+2*j+1}")
        if k: a(mfma(r.U, WH2+4*(k-1), r.H+4*(k-1), r.U))
    a(f"""
    s_waitcnt lgkmcnt(0)
    v_add_f32 v{r.K}, v{r.K}, v{r.PI}
    {mfma(r.U, WH2+12, r.H+12, r.U)}
    v_cvt_pk_bf16_f32 v{r.K}, v{r.K}, v{r.K}
    v_lshlrev_b32 v{r.PI}, 1, v0
    buffer_store_short v{r.K}, v{r.PI}, {s(SR_OUTP,4)}, 0 offen {opt.ost}
    s_lshl_b32 s{S_TMP}, s{S_V}, 12
    s_add_u32 s{S_TMP}, s{S_TMP}, {L_RING}
    v_mul_u32_u24 v{t2}, 80, v{e_}
    v_lshl_add_u32 v{t2}, v{hh_}, 3, v{t2}
    v_add_u32 v{t2}, s{S_TMP}, v{t2}
    v_lshrrev_b32 v{t3}, 2, v{r.lane}
    v_and_b32 v{t4}, 3, v{r.lane}
    v_lshlrev_b32 v{t4}, 4, v{t4}
    v_lshl_add_u32 v{t5}, v{t3}, 7, v{t4}
    v_mul_u32_u24 v{t3}, 80, v{t3}
    v_add3_u32 v{t3}, v{t3}, v{t4}, s{S_TMP}
    s_lshl_b32 s{S_TMP}, s{S_RT}, 12
    s_lshl_b32 s{S_TMP2}, s{S_T}, 6
    s_add_u32 s{S_TMP}, s{S_TMP}, s{S_TMP2}
    """)
    T = r.T; U = r.U
    for j in range(8):
        a(f"v_lshlrev_b32 v{MR+2*j}, 16, v{r.HR+j}\nv_and_b32 v{MR+2*j+1}, 0xffff0000, v{r.HR+j}")
    for i in range(0, 16, 2): a(f"v_pk_mul_f32 {v(T+i,2)}, {v(U+i,2)}, {s(S_C,2)}")
    for i in range(16): a(f"v_exp_f32 v{T+i}, v{T+i}")
    for i in range(0, 16, 2): a(f"v_pk_add_f32 {v(T+i,2)}, {v(T+i,2)}, {s(S_ONE,2)}")
    for i in range(16): a(f"v_rcp_f32 v{T+i}, v{T+i}")
    for i in range(0, 16, 2): a(f"v_pk_fma_f32 {v(T+i,2)}, {v(T+i,2)}, {v(U+i,2)}, {v(MR+i,2)}")
    for i in range(0, 16, 2): a(f"v_cvt_pk_bf16_f32 v{r.M+i//2}, v{T+i}, v{T+i+1}")
    for g in range(4): a(f"ds_write_b64 v{t2}, {v(r.M+2*g,2)} offset:{16*g}")
    a(f"""
    s_waitcnt lgkmcnt(0)
    ds_read_b128 {v(r.H,4)}, v{t3}
    ds_read_b128 {v(r.H+4,4)}, v{t3} offset:1280
    s_waitcnt lgkmcnt(1)
    buffer_store_dwordx4 {v(r.H,4)}, v{t5}, {s(SR_OUT,4)}, s{S_TMP} offen {opt.ost}
    s_waitcnt lgkmcnt(0)
    buffer_store_dwordx4 {v(r.H+4,4)}, v{t5}, {s(SR_OUT,4)}, s{S_TMP} offen offset:2048 {opt.ost}
    """)
    if opt.stamp:
        stamp(a, r, 16); a("s_waitcnt vmcnt(0)"); stamp(a, r, 17); stamp(a, r, 31, True)
        a(f"""
        s_lshl_b32 s{S_ST}, s2, 4
        s_add_u32 s{S_ST}, s{S_ST}, s{S_V}
        s_lshl_b32 s{S_ST}, s{S_ST}, 8
        s_add_u32 s{S_ST}, s{S_ST}, {WS_STAMP}
        s_add_u32 s{S_ST}, s{P_WS}, s{S_ST}
        s_addc_u32 s{S_ST+1}, s{P_WS+1}, 0
        v_lshlrev_b32 v{t2}, 2, v{r.lane}
        global_store_dword v{t2}, v{r.ST}, {s(S_ST,2)}
        """)
    a("L_done:\ns_endpgm")
    a(f"""
    L_merge_rare:
    s_cmp_lg_u32 s{S_TMP}, 0
    s_cbranch_scc1 L_final_atomic
    s_cmp_ge_u32 s{S_V}, 4
    s_cbranch_scc1 L_merge_young
    s_cmp_eq_u32 s{S_NTL}, 0
    s_cbranch_scc1 L_merge_old_done
    """)
    a(rmw_writes(r))
    a("L_merge_old_done:\ns_waitcnt lgkmcnt(0)\ns_barrier\ns_branch L_epi\nL_merge_young:\ns_waitcnt lgkmcnt(0)\ns_barrier")
    a(rmw_reads(r))
    a(f"s_branch L_merge\nL_final_atomic:\ns_cmp_eq_u32 s{S_NTL}, 0\ns_cbranch_scc1 L_epi")
    a(flush_atomic(r)); a("s_branch L_epi")
    a.label("L_final_slow")
    a(flush_atomic(r)); a("s_branch L_slow_next")
    a.label("L_flush_slow")
    a(flush_addr(r)); a("s_waitcnt lgkmcnt(0)"); a(flush_dot(r)); a(flush_atomic(r)); a(acc_zero(r, True))
    a("s_branch L_noflush")
    a(f"""
    L_slow:
    s_mov_b32 s{S_MODE}, 1
    s_mov_b32 s{S_SEG}, 0
    L_slow_round:
    s_waitcnt lgkmcnt(0)
    s_barrier
    v_lshlrev_b32 v{t2}, 2, v0
    v_cmp_gt_u32 vcc, 256, v0
    s_and_saveexec_b64 {s(S_D,2)}, vcc
    ds_write_b32 v{t2}, v{r.Zero} offset:{L_CNT}
    s_mov_b64 exec, -1
    v_mov_b32 v{t2}, {L_FLAG}
    ds_write_b32 v{t2}, v{r.Zero}
    s_lshl_b32 s{S_TMP}, s{S_SEG}, 10
    s_add_u32 s{S_TMP}, s{S_TMP}, s{S_B4}
    buffer_load_dword v{t3}, v{r.Zero}, {s(SR_TAB,4)}, s{S_TMP} offen {opt.hl}
    s_mul_i32 s{S_TMP}, s{S_SEG}, {REC_STRIDE}
    v_mul_u32_u24 v{t5}, 12, v0
    s_waitcnt vmcnt(0)
    v_lshrrev_b32 v{t4}, 16, v{t3}
    v_and_b32 v{t3}, 0xffff, v{t3}
    v_add_u32 v{t3}, v{t3}, v{t5}
    v_mov_b32 v{t2}, v0
    """)
    for q in range(7):
        a(f"""
        v_cmp_lt_u32 {s(S_M+2*q,2)}, v{t2}, v{t4}
        s_mov_b64 exec, {s(S_M+2*q,2)}
        buffer_load_dwordx3 {v(REC(q),3)}, v{t3}, {s(SR_REC,4)}, s{S_TMP} offen {opt.hl}
        s_mov_b64 exec, -1
        v_add_u32 v{t2}, 512, v{t2}
        s_add_u32 s{S_TMP}, s{S_TMP}, {512*12}
        """)
    for q in range(7, 16): a(f"s_mov_b64 {s(S_M+2*q,2)}, 0")
    a(f"""
    v_mov_b32 v{ONE}, 1
    s_waitcnt vmcnt(0) lgkmcnt(0)
    s_barrier
    s_branch L_rank
    L_slow_next:
    s_add_u32 s{S_SEG}, s{S_SEG}, 1
    s_cmp_lt_u32 s{S_SEG}, {NB}
    s_cbranch_scc1 L_slow_round
    s_branch L_epi
    """)
    return a.text(), r.n

def build():
    body, nv = gen()
    hdr = open("gather_scatter__cheap_equivariant_egnn__graph.s.ref").read().split("; Override")[0]
    acc = (nv + 3) // 4 * 4
    return hdr + f"""; @launch grid=({NB},1,1) block=(512,1,1) lds={LDS_BYTES}
.amdgcn_target "amdgcn-amd-amdhsa--gfx950"
.text
.globl {KNAME}
.p2align 8
.type {KNAME},@function
""" + body + f""".section .rodata,"a"
.p2align 6
.amdhsa_kernel {KNAME}
  .amdhsa_next_free_vgpr {nv}
  .amdhsa_next_free_sgpr 102
  .amdhsa_accum_offset {acc}
  .amdhsa_group_segment_fixed_size 0
  .amdhsa_kernarg_size 88
  .amdhsa_user_sgpr_count 2
  .amdhsa_user_sgpr_kernarg_segment_ptr 1
  .amdhsa_system_sgpr_workgroup_id_x 1
  .amdhsa_float_denorm_mode_32 3
.end_amdhsa_kernel
"""

if __name__ == "__main__":
    for arg in sys.argv[2:]:
        k, val = arg.split("=")
        cur = getattr(opt, k)
        setattr(opt, k, (val not in ("0", "False")) if isinstance(cur, bool) else type(cur)(val.replace("_", " ").replace("none", "")))
    open(sys.argv[1], "w").write(build())
    print("lds", LDS_BYTES, "vgprs", alloc().n)
```

```python
import sys, struct

N = 25000; E = 800000; NB = 256; BN = 98; CH = 3136
REC_STRIDE = CH * 12
WS_REC = 0
WS_TAB = NB * REC_STRIDE
WS_P4 = WS_TAB + NB * 1024
WS_FRAG = WS_P4 + 200704
OUT_POS = N * 128

def f2u(x): return struct.unpack("<I", struct.pack("<f", x))[0]
LOG2E = 1.4426950408889634
LN2 = 0.6931471805599453

class Opt:
    sc1 = True
    warm = True
    k1_store = "sc1"
    k1_load = "nt"
    abl = ""
    prio = 1
    split = 43
    stamp = False
opt = Opt()

class Asm:
    def __init__(self): self.L = []
    def __call__(self, s):
        for x in s.strip("\n").split("\n"):
            self.L.append("    " + x.strip() if not x.strip().endswith(":") else x.strip())
    def label(self, n): self.L.append(n + ":")
    def text(self): return "\n".join(self.L) + "\n"

def v(i, n=1): return f"v{i}" if n == 1 else f"v[{i}:{i+n-1}]"
def s(i, n=1): return f"s{i}" if n == 1 else f"s[{i}:{i+n-1}]"

def srd(a, d, lo, hi, size):
    a(f"s_mov_b32 s{d}, {lo}\ns_mov_b32 s{d+1}, {hi}\ns_mov_b32 s{d+2}, {size}\ns_mov_b32 s{d+3}, 0x00020000")

def srd_off(a, d, blo, bhi, off, size):
    a(f"s_add_u32 s{d}, s{blo}, {off}\ns_addc_u32 s{d+1}, s{bhi}, 0\ns_mov_b32 s{d+2}, {size}\ns_mov_b32 s{d+3}, 0x00020000")

def wave_scan(a, r):
    for sh in (1, 2, 4, 8):
        a(f"s_nop 1\nv_add_u32_dpp v{r}, v{r}, v{r} row_shr:{sh} row_mask:0xf bank_mask:0xf bound_ctrl:0")
    a(f"s_nop 1\nv_add_u32_dpp v{r}, v{r}, v{r} row_bcast:15 row_mask:0xa bank_mask:0xf")
    a(f"s_nop 1\nv_add_u32_dpp v{r}, v{r}, v{r} row_bcast:31 row_mask:0xc bank_mask:0xf")

def descriptor(name, nvgpr, nsgpr=102):
    acc = (nvgpr + 3) // 4 * 4
    return f"""
.section .rodata,"a"
.p2align 6
.amdhsa_kernel {name}
  .amdhsa_next_free_vgpr {nvgpr}
  .amdhsa_next_free_sgpr {nsgpr}
  .amdhsa_accum_offset {acc}
  .amdhsa_group_segment_fixed_size 0
  .amdhsa_kernarg_size 88
  .amdhsa_user_sgpr_count 2
  .amdhsa_user_sgpr_kernarg_segment_ptr 1
  .amdhsa_system_sgpr_workgroup_id_x 1
  .amdhsa_float_denorm_mode_32 3
.end_amdhsa_kernel
.text
"""

K1_THREADS = 832
K1_HIST = 0; K1_OFF = 1024; K1_REC = 4096
K1_LDS = K1_REC + CH * 16

def k1stamp(a, i, real=False):
    if not opt.stamp: return
    a(f"s_waitcnt lgkmcnt(0)\n{'s_memrealtime' if real else 's_memtime'} s[64:65]\ns_waitcnt lgkmcnt(0)\nv_writelane_b32 v63, s64, {i}")

def gen_k1():
    a = Asm()
    a.label("bin_kernel")
    a(f"""
    s_cmp_gt_u32 s2, {NB}
    s_cbranch_scc1 K1_done
    s_load_dwordx8 s[8:15], s[0:1], 8
    s_load_dwordx2 s[16:17], s[0:1], 80
    s_load_dwordx2 s[4:5], s[0:1], 40
    s_load_dwordx2 s[6:7], s[0:1], 56
    v_lshlrev_b32 v1, 2, v0
    v_mov_b32 v2, 0
    ds_write_b32 v1, v2
    v_lshlrev_b32 v3, 4, v0
    v_lshlrev_b32 v4, 5, v0
    s_mul_i32 s18, s2, {CH*4}
    s_lshl_b32 s19, s18, 1
    s_mov_b32 s50, {CH//4}
    s_cmp_eq_u32 s2, {NB-1}
    s_cselect_b32 s50, {(E-(NB-1)*CH)//4}, s50
    s_mul_i32 s51, s50, 48
    s_mul_i32 s52, s2, {REC_STRIDE}
    s_mul_i32 s53, s2, {BN}
    v_add_u32 v5, s53, v0
    v_mul_u32_u24 v6, 6, v5
    v_lshlrev_b32 v7, 3, v5
    s_waitcnt lgkmcnt(0)
    s_cmp_eq_u32 s2, {NB}
    s_cbranch_scc1 K1_prep
    """)
    if opt.stamp: a("v_mov_b32 v63, 0")
    k1stamp(a, 0, True); k1stamp(a, 1)
    srd(a, 20, "s14", "s15", E * 4)
    srd(a, 24, "s12", "s13", E * 4)
    srd(a, 28, "s10", "s11", E * 8)
    srd(a, 32, "s8", "s9", N * 6)
    srd_off(a, 36, 16, 17, "s52", "s51")
    srd_off(a, 40, 16, 17, WS_TAB, NB * 1024)
    srd_off(a, 44, 16, 17, WS_P4, N * 8)
    a(f"""
    v_cmp_gt_u32 vcc, {BN}, v0
    s_and_saveexec_b64 s[58:59], vcc
    s_mov_b64 s[60:61], exec
    buffer_load_ushort v24, v6, s[32:35], 0 offen
    buffer_load_ushort v25, v6, s[32:35], 0 offen offset:2
    buffer_load_ushort v26, v6, s[32:35], 0 offen offset:4
    s_mov_b64 exec, -1
    v_cmp_gt_u32 vcc, s50, v0
    s_and_saveexec_b64 s[54:55], vcc
    s_mov_b64 s[56:57], exec
    buffer_load_dwordx4 v[8:11], v3, s[20:23], s18 offen {opt.k1_load}
    buffer_load_dwordx4 v[12:15], v3, s[24:27], s18 offen {opt.k1_load}
    buffer_load_dwordx4 v[16:19], v4, s[28:31], s19 offen {opt.k1_load}
    buffer_load_dwordx4 v[20:23], v4, s[28:31], s19 offen offset:16 {opt.k1_load}
    s_mov_b32 s62, 5350
    s_mov_b32 s63, {BN}
    v_mov_b32 v27, 1
    s_barrier
    s_waitcnt vmcnt(3)
    """)
    k1stamp(a, 2)
    for k in range(4):
        a(f"""
        v_mul_u32_u24 v{28+k}, s62, v{8+k}
        v_lshrrev_b32 v{28+k}, 19, v{28+k}
        v_mul_u32_u24 v{32+k}, s63, v{28+k}
        v_lshlrev_b32 v{28+k}, 2, v{28+k}
        ds_add_rtn_u32 v{36+k}, v{28+k}, v27
        v_sub_u32 v{32+k}, v{8+k}, v{32+k}
        """)
    a("s_waitcnt vmcnt(2)")
    for k in range(4):
        a(f"v_lshl_or_b32 v{32+k}, v{12+k}, 7, v{32+k}")
    a(f"""
    s_mov_b64 exec, -1
    v_and_b32 v40, 63, v0
    v_lshlrev_b32 v40, 4, v40
    s_waitcnt lgkmcnt(0)
    s_barrier
    """)
    k1stamp(a, 3)
    a(f"""
    ds_read_b128 v[44:47], v40
    s_waitcnt lgkmcnt(0)
    v_add_u32 v49, v44, v45
    v_add_u32 v50, v49, v46
    v_add_u32 v51, v50, v47
    v_mov_b32 v52, v51
    """)
    wave_scan(a, 52)
    a(f"""
    v_sub_u32 v56, v52, v51
    v_add_u32 v57, v56, v44
    v_add_u32 v58, v56, v49
    v_add_u32 v59, v56, v50
    ds_write_b128 v40, v[56:59] offset:{K1_OFF}
    s_mov_b64 exec, s[56:57]
    """)
    for k in range(4):
        a(f"ds_read_b32 v{8+k}, v{28+k} offset:{K1_OFF}")
    a(f"""
    s_mov_b64 exec, -1
    v_cmp_gt_u32 vcc, 64, v0
    s_and_saveexec_b64 s[58:59], vcc
    s_cbranch_execz K1_notab
    v_lshl_or_b32 v56, v44, 16, v56
    v_lshl_or_b32 v57, v45, 16, v57
    v_lshl_or_b32 v58, v46, 16, v58
    v_lshl_or_b32 v59, v47, 16, v59
    s_lshl_b32 s3, s2, 10
    buffer_store_dwordx4 v[56:59], v40, s[40:43], s3 offen {opt.k1_store}
    K1_notab:
    s_mov_b64 exec, s[56:57]
    s_waitcnt lgkmcnt(0)
    """)
    for k in range(4):
        a(f"v_add_lshl_u32 v{8+k}, v{8+k}, v{36+k}, 4")
        a(f"ds_write_b32 v{8+k}, v{32+k} offset:{K1_REC+8}")
    k1stamp(a, 4)
    a("s_waitcnt vmcnt(0)")
    k1stamp(a, 5)
    for k in range(4):
        a(f"ds_write_b64 v{8+k}, v[{16+2*k}:{17+2*k}] offset:{K1_REC}")
    a(f"""
    s_mov_b64 exec, s[60:61]
    v_lshl_or_b32 v24, v25, 16, v24
    v_mov_b32 v25, v26
    buffer_store_dwordx2 v[24:25], v7, s[44:47], 0 offen {opt.k1_store}
    s_mov_b64 exec, -1
    v_mul_u32_u24 v6, 12, v0
    s_waitcnt lgkmcnt(0)
    s_barrier
    """)
    k1stamp(a, 6)
    for k in range(4):
        a(f"ds_read_b96 v[{8+4*k}:{10+4*k}], v3 offset:{K1_REC + k*K1_THREADS*16}")
    for k in range(4):
        a(f"s_mov_b32 s3, {k*K1_THREADS*12}")
        a(f"s_waitcnt lgkmcnt({3-k})")
        a(f"buffer_store_dwordx3 v[{8+4*k}:{10+4*k}], v6, s[36:39], s3 offen {opt.k1_store}")
    if opt.stamp:
        k1stamp(a, 7); a("s_waitcnt vmcnt(0)"); k1stamp(a, 8); k1stamp(a, 12, True)
        a(f"""
        v_lshrrev_b32 v1, 6, v0
        s_nop 0
        v_readfirstlane_b32 s66, v1
        s_lshl_b32 s64, s2, 4
        s_add_u32 s64, s64, s66
        s_lshl_b32 s64, s64, 8
        s_add_u32 s64, s64, {(64<<20) + (2<<20)}
        s_add_u32 s64, s16, s64
        s_addc_u32 s65, s17, 0
        v_and_b32 v1, 63, v0
        v_lshlrev_b32 v1, 2, v1
        global_store_dword v1, v63, s[64:65]
        """)
    a("s_endpgm")
    a.label("K1_prep")
    srd(a, 20, "s4", "s5", 133 * 128)
    srd(a, 24, "s6", "s7", 128 * 128)
    srd_off(a, 28, 16, 17, WS_FRAG, 34 * 1024)
    a(f"""
    v_lshrrev_b32 v1, 6, v0
    s_nop 0
    v_readfirstlane_b32 s40, v1
    v_and_b32 v2, 63, v0
    v_and_b32 v3, 31, v0
    v_lshrrev_b32 v4, 5, v2
    v_lshlrev_b32 v5, 10, v4
    v_lshl_add_u32 v5, v3, 1, v5
    v_lshlrev_b32 v6, 4, v2
    s_mov_b32 s45, 0x{f2u(-LOG2E):08x}
    K1_qloop:
    s_cmp_ge_u32 s40, 32
    s_cbranch_scc1 K1_q5
    s_cmp_lt_u32 s40, 16
    s_cselect_b32 s32, s20, s24
    s_cselect_b32 s33, s21, s25
    s_cselect_b32 s34, s22, s26
    s_mov_b32 s35, 0x00020000
    s_and_b32 s41, s40, 15
    s_lshr_b32 s42, s41, 1
    s_lshl_b32 s42, s42, 11
    s_and_b32 s43, s40, 1
    s_lshl_b32 s43, s43, 6
    s_add_u32 s42, s42, s43
    """)
    for j in range(8):
        a(f"buffer_load_ushort v{8+j}, v5, s[32:35], s42 offen offset:{j*128}")
    a("s_waitcnt vmcnt(0)")
    if opt.sc1:
        a("""
        s_lshr_b32 s44, s40, 3
        s_cmp_eq_u32 s44, 1
        s_cbranch_scc0 K1_noscale
        """)
        for j in range(8):
            a(f"v_lshlrev_b32 v{8+j}, 16, v{8+j}\nv_mul_f32 v{8+j}, s45, v{8+j}")
        for j in range(4):
            a(f"v_cvt_pk_bf16_f32 v{16+j}, v{8+2*j}, v{9+2*j}")
        a("s_branch K1_qstore\nK1_noscale:")
    for j in range(4):
        a(f"v_lshl_or_b32 v{16+j}, v{9+2*j}, 16, v{8+2*j}")
    a(f"""
    K1_qstore:
    s_lshl_b32 s46, s40, 10
    buffer_store_dwordx4 v[16:19], v6, s[28:31], s46 offen
    s_add_u32 s40, s40, 13
    s_branch K1_qloop
    K1_q5:
    s_cmp_ge_u32 s40, 34
    s_cbranch_scc1 K1_done
    s_and_b32 s43, s40, 1
    s_lshl_b32 s43, s43, 6
    s_add_u32 s42, s43, {128*128}
    v_lshlrev_b32 v7, 1, v3
    """)
    for j in range(4):
        a(f"buffer_load_ushort v{8+j}, v7, s[20:23], s42 offen offset:{(1+j)*128}")
    a("buffer_load_ushort v12, v7, s[20:23], s42 offen")
    a("v_cmp_eq_u32 vcc, 0, v4\ns_waitcnt vmcnt(0)\ns_nop 0")
    if opt.sc1:
        for j in range(5):
            a(f"""
            v_lshlrev_b32 v{8+j}, 16, v{8+j}
            v_mul_f32 v{8+j}, s45, v{8+j}
            v_cvt_pk_bf16_f32 v20, v{8+j}, v{8+j}
            v_and_b32 v21, 0xffff0000, v20
            v_sub_f32 v21, v{8+j}, v21
            v_cvt_pk_bf16_f32 v21, v21, v21
            v_cndmask_b32 v20, v21, v20, vcc
            v_and_b32 v{8+j}, 0xffff, v20
            """)
    else:
        for j in range(5):
            a(f"v_cndmask_b32 v{8+j}, 0, v{8+j}, vcc")
    a(f"""
    v_lshl_or_b32 v16, v9, 16, v8
    v_lshl_or_b32 v17, v11, 16, v10
    v_mov_b32 v18, 0
    v_lshlrev_b32 v19, 16, v12
    s_lshl_b32 s46, s40, 10
    buffer_store_dwordx4 v[16:19], v6, s[28:31], s46 offen
    K1_done:
    s_endpgm
    """)
    return a.text(), 64

CAPT = 116
L_REC = 0
L_RING = 45056
L_SIMG = L_RING + 8 * 4096
L_AT = L_SIMG + 8 * 2048
L_ACC = L_AT + 13 * 2048
ACC_ROW = 272
L_NT = L_ACC + 104 * ACC_ROW
L_WX = L_NT + 104 * 32
L_CNT = L_WX + 256
L_FLAG = L_CNT + 512
L_OFF = L_FLAG + 16
L_WEND = L_OFF + 512
K2_LDS = L_WEND + 64

WS_STAMP = 64 << 20
def stamp(a, r, i, real=False):
    if not opt.stamp: return
    a(f"s_waitcnt lgkmcnt(0)\n{'s_memrealtime' if real else 's_memtime'} s[4:5]\ns_waitcnt lgkmcnt(0)\nv_writelane_b32 v{r.ST}, s4, {i}")
def stamp_out(a, r, wsp, tmp, wave_sgpr, base):
    if not opt.stamp: return
    a(f"""
    s_lshl_b32 s4, s2, 4
    s_add_u32 s4, s4, s{wave_sgpr}
    s_lshl_b32 s4, s4, 8
    s_add_u32 s4, s4, {base}
    s_add_u32 s4, s{wsp}, s4
    s_addc_u32 s5, s{wsp+1}, 0
    v_and_b32 v{tmp}, 63, v0
    v_lshlrev_b32 v{tmp}, 2, v{tmp}
    global_store_dword v{tmp}, v{r.ST}, s[4:5]
    """)

class R: pass
def alloc_k2():
    r = R(); n = [1]
    def al(cnt, align=1):
        n[0] = (n[0] + align - 1) // align * align
        x = n[0]; n[0] += cnt; return x
    r.lane = al(1); r.t0 = al(1); r.t1 = al(1)
    r.D0 = al(16, 4); r.D1 = al(16); r.A0 = al(16); r.A1 = al(16)
    r.W2 = al(32); r.W5 = al(8); r.AW = al(8); r.H = al(16)
    r.X5 = al(4); r.X6 = al(4); r.S = al(8)
    r.M = al(16); r.T = al(16); r.U = al(16); r.HR = al(8)
    r.K4 = al(4); r.PD = al(4); r.PS = al(2); r.HA = al(4); r.XK = al(4)
    for nm in "A1a A2a SB TR0 TR1 AWl AWa Desc Zero FlM FlP WXa K PI NA Q SA t2 t3 t4 t5 ST".split():
        setattr(r, nm, al(1))
    r.n = n[0]
    return r

def mfma(d, a_, b_, c=None):
    cc = "0" if c is None else v(c, 16)
    return f"v_mfma_f32_32x32x16_bf16 {v(d,16)}, {v(a_,4)}, {v(b_,4)}, {cc}"

S_B = 2
S_H = 4; S_WX = 6; S_OUT = 8; S_WS = 10
SR_HD = 12
SR_P4 = 16
SR_REC = 20; SR_TAB = 24; SR_FR = 28; SR_H = 32; SR_OUT = 36; SR_X = 40
S_V = 44; S_RT = 45; S_T = 46; S_NODE0 = 47; S_NN = 48
S_C = 50
S_ONE = 52
S_NL = 54; S_NH = 55
S_MSK = 56
S_SO0 = 57; S_SO1 = 58; S_SO2 = 59
S_NT = 60
S_I = 61; S_NTL = 62; S_CNT = 63; S_W = 64; S_WP = 65; S_D = 66; S_TMP = 67; S_TMP2 = 68; S_T0 = 69
S_MODE = 49; S_SEG = 3; S_NFL = 6
S_M = 70

def silu_stage(a, r, D, Mo, mf_exp, mf_rcp, ins_exp, ins_rcp, pre=(), post=()):
    T = r.T
    if opt.abl:
        a0 = a
        def flt(x):
            for y in x.split("\n"):
                y = y.strip()
                if "vmem" in opt.abl and (y.startswith("buffer_") or "vmcnt" in y): continue
                if "lds" in opt.abl and (y.startswith("ds_") or "lgkmcnt" in y): continue
                if "misc" in opt.abl and (y.startswith("v_") and not y.startswith("v_mfma") and not y.startswith("v_readlane") and "A1a" not in y and not insilu[0]): continue
                if "dot" in opt.abl and (y.startswith("v_dot2") or y.startswith("s_nop")): continue
                if "mfma" in opt.abl and y.startswith("v_mfma"): continue
                a0(y)
        insilu = [False]
        pre = list(pre); ins_exp = dict(ins_exp); ins_rcp = dict(ins_rcp)
        class W:
            def __call__(self, x):
                insilu[0] = any(x.startswith(p) for p in ("v_pk_mul", "v_pk_add", "v_exp", "v_rcp")) or (x.startswith("v_cvt_pk") and f"v{T}" <= x.split(",")[1].strip() <= f"v{T+15}")
                flt(x)
        a = W()
    for x in pre: a(x)
    if not opt.sc1:
        for i in range(0, 16, 2):
            a(f"v_pk_mul_f32 {v(T+i,2)}, {v(D+i,2)}, {s(S_C,2)}")
    for i in range(16):
        if i % 4 == 0: a(mf_exp[i // 4])
        a(f"v_exp_f32 v{T+i}, v{(D if opt.sc1 else T)+i}")
        for x in ins_exp.get(i, ()): a(x)
    for i in range(0, 16, 2):
        a(f"v_pk_add_f32 {v(T+i,2)}, {v(T+i,2)}, {s(S_ONE,2)}")
    for i in range(16):
        if i % 4 == 0: a(mf_rcp[i // 4])
        a(f"v_rcp_f32 v{T+i}, v{T+i}")
        for x in ins_rcp.get(i, ()): a(x)
    for i in range(0, 16, 2):
        a(f"v_pk_mul_f32 {v(T+i,2)}, {v(T+i,2)}, {v(D+i,2)}")
    for i in range(0, 16, 2):
        a(f"v_cvt_pk_bf16_f32 v{Mo+i//2}, v{T+i}, v{T+i+1}")
    for x in post: a(x)

def diff_valu(r):
    return [
        f"v_dot2_f32_bf16 v{r.t2}, v{r.PS}, s{S_NL}, v{r.PD}",
        f"v_dot2_f32_bf16 v{r.t3}, v{r.PS}, s{S_NH}, v{r.PD+1}",
        f"v_dot2_f32_bf16 v{r.t4}, v{r.PS+1}, s{S_NL}, v{r.PD+2}",
        f"v_xor_b32 v{r.SA}, v{r.SB}, v{r.PD+3}",
        "s_nop 1",
        f"v_cvt_pk_bf16_f32 v{r.X5+2}, v{r.t2}, v{r.t3}",
        f"v_cvt_pk_bf16_f32 v{r.t5}, v{r.t4}, 0",
        f"v_cvt_pk_bf16_f32 v{r.Q}, v{r.t4}, 1.0",
        f"v_dot2_f32_bf16 v{r.t2}, v{r.X5+2}, v{r.X5+2}, 0",
        f"v_dot2_f32_bf16 v{r.t2}, v{r.t5}, v{r.t5}, v{r.t2}",
        "s_nop 2",
        f"v_cvt_pk_bf16_f32 v{r.X5+3}, v{r.t4}, v{r.t2}",
    ]

def k_reads(r, tile_off):
    o = tile_off * 384 + 8
    return [f"ds_read_b32 v{r.K}, v{r.A1a} offset:{o}",
            f"ds_read2_b32 {v(r.K4,2)}, v{r.A2a} offset0:{o//4} offset1:{o//4+3}",
            f"ds_read2_b32 {v(r.K4+2,2)}, v{r.A2a} offset0:{o//4+6} offset1:{o//4+9}"]
def dma_addr(r):
    return [f"v_and_or_b32 v{r.K4+k}, v{r.K4+k}, s{S_MSK}, v{r.XK+k}" for k in range(4)]
def dma_issue(r):
    so = [f"s{S_SO0}", f"s{S_SO1}", f"s{S_SO2}", "0"]
    return [f"buffer_load_dwordx4 v{r.K4+k}, {s(SR_HD,4)}, {so[k]} offen offset:{1024*k} lds" for k in range(4)]
def h_reads(r):
    return [f"ds_read_b128 {v(r.H+4*k,4)}, v{r.HA+k}" for k in range(4)]
def posg(r):
    return [f"v_lshrrev_b32 v{r.PI}, 7, v{r.K}",
            f"v_and_b32 v{r.NA}, 0x7f, v{r.K}",
            f"buffer_load_dwordx2 {v(r.PS,2)}, v{r.PI}, {s(SR_P4,4)}, 0 idxen",
            f"v_lshl_add_u32 v{r.NA}, v{r.NA}, 5, s{S_NT}"]
def x_reads(r, tile_off):
    o = tile_off * 384
    return [f"ds_read_b128 {v(r.X6,4)}, v{r.NA}",
            f"ds_read2_b32 {v(r.X5,2)}, v{r.A1a} offset0:{o//4} offset1:{o//4+1}",
            f"ds_read_b128 {v(r.AW,4)}, v{r.AWa}",
            f"ds_read_b128 {v(r.AW+4,4)}, v{r.AWa} offset:1024"]
def s_set(r):
    return [f"s_bfm_b64 exec, s{S_CNT}, 0",
            f"ds_write2_b32 v{r.SA}, v{r.X5+2}, v{r.Q} offset0:0 offset1:1",
            "s_mov_b64 exec, -1"]
def s_reads(r):
    return [f"ds_read_b64_tr_b16 {v(r.S,2)}, v{r.TR0}",
            f"ds_read_b64_tr_b16 {v(r.S+2,2)}, v{r.TR1}",
            f"ds_read_b64_tr_b16 {v(r.S+4,2)}, v{r.TR0} offset:1024",
            f"ds_read_b64_tr_b16 {v(r.S+6,2)}, v{r.TR1} offset:1024",
            f"ds_write2_b32 v{r.SA}, v{r.Zero}, v{r.Zero} offset0:0 offset1:1"]

def flush_dot(a, r):
    a(f"s_mul_i32 s{S_TMP}, s{S_WP}, {8*ACC_ROW}")
    for q in range(4):
        a(f"ds_read_b128 {v(r.T+4*q,4)}, v{r.WXa} offset:{16*q}")
    for q in range(4):
        a(f"ds_read_b128 {v(r.D0+4*q,4)}, v{r.WXa} offset:{64+16*q}")
    a(f"""
    v_add_u32 v{r.t2}, s{S_TMP}, v{r.FlM}
    v_add_u32 v{r.t3}, s{S_TMP}, v{r.FlP}
    """)
def flush_dot2(a, r):
    a(f"v_pk_mul_f32 {v(r.T,2)}, {v(r.T,2)}, {v(r.A0,2)}")
    a(f"v_pk_mul_f32 {v(r.D0,2)}, {v(r.D0,2)}, {v(r.A1,2)}")
    for i in range(2, 16, 2):
        a(f"v_pk_fma_f32 {v(r.T,2)}, {v(r.T+i,2)}, {v(r.A0+i,2)}, {v(r.T,2)}")
        a(f"v_pk_fma_f32 {v(r.D0,2)}, {v(r.D0+i,2)}, {v(r.A1+i,2)}, {v(r.D0,2)}")
    a(f"""
    v_pk_add_f32 {v(r.T,2)}, {v(r.T,2)}, {v(r.D0,2)}
    v_add_f32 v{r.t4}, v{r.T}, v{r.T+1}
    v_add_f32 v{r.t5}, v{r.T}, v{r.T+1}
    s_nop 1
    v_permlane32_swap_b32 v{r.t4}, v{r.t5}
    s_nop 1
    v_add_f32 v{r.t4}, v{r.t4}, v{r.t5}
    """)
EX3 = "s_mov_b32 exec_lo, 0x88888888\ns_mov_b32 exec_hi, 0x88888888"
EXP = "s_mov_b32 exec_lo, 0x77777777\ns_mov_b32 exec_hi, 0"
def acc_zero(a, r):
    for i in range(0, 32, 2):
        a(f"v_mov_b64 {v(r.A0+i,2)}, 0")
def flush_plain(a, r):
    flush_dot(a, r)
    a(EX3)
    for q in range(8):
        a(f"ds_write_b128 v{r.t2}, {v(r.A0+4*q,4)} offset:{32*q}")
    a("s_mov_b64 exec, -1\ns_waitcnt lgkmcnt(8)")
    flush_dot2(a, r)
    a(EXP + f"\nds_write_b32 v{r.t3}, v{r.t4}\ns_mov_b64 exec, -1")
    acc_zero(a, r)
def flush_atomic_tail(a, r):
    a(EX3)
    for t, A in ((0, r.A0), (1, r.A1)):
        for i in range(16):
            a(f"ds_add_f32 v{r.t2}, v{A+i} offset:{(32*t + 8*(i>>2) + (i&3))*4}")
    a(EXP + f"\nds_add_f32 v{r.t3}, v{r.t4}\ns_mov_b64 exec, -1")
def rmw_reads(a, r):
    a(EX3)
    for q in range(8):
        a(f"ds_read_b128 {v(r.D0+4*q,4)}, v{r.t2} offset:{32*q}")
    a(EXP + f"\nds_read_b32 v{r.t5}, v{r.t3}\ns_mov_b64 exec, -1")
def rmw_writes(a, r):
    a(EX3)
    for q in range(8):
        a(f"s_waitcnt lgkmcnt(8)")
        a(f"v_pk_add_f32 {v(r.D0+4*q,2)}, {v(r.D0+4*q,2)}, {v(r.A0+4*q,2)}")
        a(f"v_pk_add_f32 {v(r.D0+4*q+2,2)}, {v(r.D0+4*q+2,2)}, {v(r.A0+4*q+2,2)}")
        a(f"ds_write_b128 v{r.t2}, {v(r.D0+4*q,4)} offset:{32*q}")
    a(EXP + f"""
    s_waitcnt lgkmcnt(8)
    v_add_f32 v{r.t4}, v{r.t4}, v{r.t5}
    ds_write_b32 v{r.t3}, v{r.t4}
    s_mov_b64 exec, -1
    """)

def gen_k2():
    a = Asm(); r = alloc_k2()
    def REC(q): return r.D0 + 4 * q
    TABV = r.K4
    W1F = r.T; WH1F = r.M; AD = r.X5
    a.label("edge_kernel")
    a(f"""
    s_cmp_ge_u32 s2, {NB}
    s_cbranch_scc1 K2_done
    s_and_b32 s3, s2, 7
    s_lshl_b32 s3, s3, 5
    s_lshr_b32 s2, s2, 3
    s_or_b32 s2, s2, s3
    s_load_dwordx2 {s(S_H,2)}, s[0:1], 0
    s_load_dwordx2 {s(S_WX,2)}, s[0:1], 48
    s_load_dwordx2 {s(S_OUT,2)}, s[0:1], 64
    s_load_dwordx2 {s(S_WS,2)}, s[0:1], 80
    v_lshrrev_b32 v{r.t0}, 6, v0
    v_and_b32 v{r.lane}, 63, v0
    v_readfirstlane_b32 s{S_V}, v{r.t0}
    v_mov_b32 v{r.Zero}, 0
    s_mul_i32 s{S_NODE0}, s2, {BN}
    s_sub_u32 s{S_NN}, {N}, s{S_NODE0}
    s_min_u32 s{S_NN}, s{S_NN}, {BN}
    s_lshr_b32 s{S_RT}, s{S_V}, 1
    s_and_b32 s{S_T}, s{S_V}, 1
    s_mov_b32 s{S_MODE}, 0
    v_lshrrev_b32 v{r.t1}, 4, v0
    v_lshlrev_b32 v{r.t2}, 10, v{r.t1}
    s_lshl_b32 s{S_TMP}, s2, 2
    s_waitcnt lgkmcnt(0)
    """)
    srd_off(a, SR_TAB, S_WS, S_WS+1, WS_TAB, NB * 1024)
    for rr in range(8):
        a(f"buffer_load_dword v{TABV+rr}, v{r.t2}, {s(SR_TAB,4)}, s{S_TMP} offen")
        if rr < 7: a(f"s_add_u32 s{S_TMP}, s{S_TMP}, 32768")
    srd(a, SR_H, f"s{S_H}", f"s{S_H+1}", N * 128)
    a(f"""
    s_sub_u32 s{SR_HD}, s{S_H}, 3072
    s_subb_u32 s{SR_HD+1}, s{S_H+1}, 0
    s_mov_b32 s{SR_HD+2}, {N*128+3072}
    s_mov_b32 s{SR_HD+3}, 0x00020000
    """)
    srd(a, SR_REC, f"s{S_WS}", f"s{S_WS+1}", NB * REC_STRIDE)
    srd_off(a, SR_FR, S_WS, S_WS+1, WS_FRAG, 34 * 1024)
    srd_off(a, SR_P4, S_WS, S_WS+1, WS_P4, N)
    a(f"s_and_b32 s{SR_P4+1}, s{SR_P4+1}, 0xffff\ns_or_b32 s{SR_P4+1}, s{SR_P4+1}, 0x80000")
    srd(a, SR_X, f"s{S_WX}", f"s{S_WX+1}", 128)
    if opt.stamp: a(f"v_mov_b32 v{r.ST}, 0")
    stamp(a, r, 0, True); stamp(a, r, 1)
    a(f"s_lshl_b32 s{S_TMP}, s{S_NODE0}, 7\ns_lshl_b32 s{S_TMP2}, s{S_NN}, 7")
    srd_off(a, SR_OUT, S_OUT, S_OUT+1, f"s{S_TMP}", f"s{S_TMP2}")
    a(f"""
    v_lshrrev_b32 v{r.t2}, 3, v{r.lane}
    v_and_b32 v{r.t3}, 7, v{r.lane}
    v_lshrrev_b32 v{r.t4}, 4, v{r.lane}
    s_lshl_b32 s{S_TMP}, s{S_T}, 2
    v_or_b32 v{r.t4}, s{S_TMP}, v{r.t4}
    v_xor_b32 v{r.t3}, v{r.t3}, v{r.t4}
    v_lshlrev_b32 v{r.t3}, 4, v{r.t3}
    v_lshl_add_u32 v{r.t3}, v{r.t2}, 7, v{r.t3}
    s_lshl_b32 s{S_TMP}, s{S_V}, 3
    s_add_u32 s{S_TMP}, s{S_TMP}, s{S_NODE0}
    s_lshl_b32 s{S_TMP}, s{S_TMP}, 7
    s_lshl_b32 s{S_TMP2}, s{S_V}, 10
    s_add_u32 m0, s{S_TMP2}, {L_RING}
    s_nop 0
    buffer_load_dwordx4 v{r.t3}, {s(SR_H,4)}, s{S_TMP} offen lds
    s_add_u32 m0, s{S_TMP2}, {L_RING + 8192}
    s_add_u32 s{S_TMP}, s{S_TMP}, 8192
    buffer_load_dwordx4 v{r.t3}, {s(SR_H,4)}, s{S_TMP} offen lds
    """)
    a(f"""
    v_add_u32 v{r.t2}, s{S_NODE0}, v0
    buffer_load_dwordx2 {v(r.PS,2)}, v{r.t2}, {s(SR_P4,4)}, 0 idxen
    v_and_b32 v{r.t2}, 3, v{r.lane}
    v_bfe_u32 v{r.t3}, v{r.lane}, 2, 3
    v_lshl_or_b32 v{r.t2}, v{r.t3}, 3, v{r.t2}
    v_lshrrev_b32 v{r.t3}, 5, v{r.lane}
    v_lshl_or_b32 v{r.t2}, v{r.t3}, 2, v{r.t2}
    v_lshlrev_b32 v{r.t2}, 1, v{r.t2}
    buffer_load_ushort v{r.Q}, v{r.t2}, {s(SR_X,4)}, 0 offen
    """)
    Z4 = r.U
    a(f"v_mov_b64 {v(Z4,2)}, 0\nv_mov_b64 {v(Z4+2,2)}, 0\nv_lshlrev_b32 v{r.t2}, 4, v0")
    def zero_region(base, size):
        assert base % 16 == 0 and size % 16 == 0
        full = size // 8192; rem = size % 8192
        a(f"v_add_u32 v{r.t3}, {base}, v{r.t2}")
        for k in range(full):
            a(f"ds_write_b128 v{r.t3}, {v(Z4,4)} offset:{k*8192}")
        if rem:
            a(f"v_cmp_gt_u32 vcc, {rem//16}, v0\ns_and_saveexec_b64 {s(S_M,2)}, vcc")
            a(f"ds_write_b128 v{r.t3}, {v(Z4,4)} offset:{full*8192}")
            a(f"s_mov_b64 exec, -1")
    zero_region(L_CNT, 512 + 16)
    zero_region(L_REC, L_RING)
    zero_region(L_SIMG, 8 * 2048)
    zero_region(L_ACC, 104 * ACC_ROW)
    FA = r.Desc
    a(f"v_lshlrev_b32 v{FA}, 4, v{r.lane}\ns_lshl_b32 s{S_TMP}, s{S_T}, 10")
    for base, dst in ((0, W1F), (4096, W1F + 8), (16384, WH1F), (20480, WH1F + 8)):
        a(f"s_add_u32 s{S_TMP2}, s{S_TMP}, {base}")
        a(f"buffer_load_dwordx4 {v(dst,4)}, v{FA}, {s(SR_FR,4)}, s{S_TMP2} offen")
        a(f"buffer_load_dwordx4 {v(dst+4,4)}, v{FA}, {s(SR_FR,4)}, s{S_TMP2} offen offset:2048")
    a(f"""
    s_mov_b32 s{S_C}, 0x{f2u(-LOG2E):08x}
    s_mov_b32 s{S_C+1}, 0x{f2u(-LOG2E):08x}
    s_mov_b32 s{S_ONE}, 1.0
    s_mov_b32 s{S_ONE+1}, 1.0
    s_mov_b32 s{S_NL}, 0x0000bf80
    s_mov_b32 s{S_NH}, 0xbf800000
    s_mov_b32 s{S_MSK}, 0xffffff80
    s_mov_b32 s{S_SO0}, 3072
    s_mov_b32 s{S_SO1}, 2048
    s_mov_b32 s{S_SO2}, 1024
    s_mov_b32 s{S_NT}, {L_NT}
    """)
    JJ = r.SA; LB = r.K; J16 = r.PI; MX = r.NA
    a(f"""
    v_and_b32 v{JJ}, 15, v0
    v_add_u32 v{J16}, 16, v{JJ}
    s_mov_b32 s{S_TMP}, {REC_STRIDE}
    v_mul_lo_u32 v{LB}, v{r.t1}, s{S_TMP}
    v_mad_u32_u24 v{LB}, v{JJ}, 12, v{LB}
    v_mov_b32 v{MX}, 0
    """)
    e_, hh_, t2, t3, t4 = r.t0, r.t1, r.t2, r.t3, r.t4
    a(f"""
    v_and_b32 v{e_}, 31, v{r.lane}
    v_lshrrev_b32 v{hh_}, 5, v{r.lane}
    s_lshl_b32 s{S_TMP}, s{S_V}, 12
    s_add_u32 s{S_TMP}, s{S_TMP}, {L_RING}
    v_and_b32 v{t2}, 3, v{e_}
    v_lshlrev_b32 v{t3}, 10, v{t2}
    v_lshrrev_b32 v{t4}, 2, v{e_}
    v_lshl_add_u32 v{t3}, v{t4}, 7, v{t3}
    v_add_u32 v{t3}, s{S_TMP}, v{t3}
    v_bfe_u32 v{t4}, v{e_}, 3, 1
    v_lshl_or_b32 v{t2}, v{t4}, 2, v{t2}
    v_xor_b32 v{t2}, v{t2}, v{hh_}
    """)
    for k in range(4):
        a(f"v_xor_b32 v{t4}, {2*k}, v{t2}\nv_lshl_add_u32 v{r.HA+k}, v{t4}, 4, v{t3}")
    a(f"""
    v_and_b32 v{t2}, 7, v{r.lane}
    v_bfe_u32 v{t3}, v{r.lane}, 4, 1
    v_lshlrev_b32 v{t3}, 2, v{t3}
    v_xor_b32 v{t2}, v{t2}, v{t3}
    """)
    for k in range(4):
        a(f"v_xor_b32 v{t4}, {k}, v{t2}\nv_lshlrev_b32 v{r.XK+k}, 4, v{t4}")
    a(f"""
    s_lshl_b32 s{S_TMP}, s{S_V}, 11
    s_add_u32 s{S_TMP}, s{S_TMP}, {L_SIMG}
    v_bfe_u32 v{t2}, v{e_}, 1, 3
    v_lshlrev_b32 v{t2}, 3, v{t2}
    v_lshl_add_u32 v{t2}, v{e_}, 6, v{t2}
    v_add_u32 v{r.SB}, s{S_TMP}, v{t2}
    v_bfe_u32 v{t2}, v{r.lane}, 2, 2
    v_lshl_add_u32 v{t2}, v{hh_}, 2, v{t2}
    v_bfe_u32 v{t3}, v{r.lane}, 4, 1
    v_and_b32 v{t4}, 3, v{r.lane}
    v_lshl_or_b32 v{t3}, v{t3}, 2, v{t4}
    v_lshrrev_b32 v{t4}, 1, v{t2}
    v_xor_b32 v{t3}, v{t3}, v{t4}
    v_lshlrev_b32 v{t2}, 6, v{t2}
    v_add_u32 v{t2}, s{S_TMP}, v{t2}
    v_lshl_add_u32 v{r.TR0}, v{t3}, 3, v{t2}
    v_xor_b32 v{t3}, 4, v{t3}
    v_lshl_add_u32 v{r.TR1}, v{t3}, 3, v{t2}
    v_add_u32 v{r.TR1}, 512, v{r.TR1}
    v_lshlrev_b32 v{t2}, 4, v{r.lane}
    v_add_u32 v{r.AWl}, {L_AT}, v{t2}
    ; flush addresses
    v_lshrrev_b32 v{t2}, 2, v{e_}
    v_mul_u32_u24 v{t2}, {ACC_ROW}, v{t2}
    v_add_u32 v{t2}, {L_ACC}, v{t2}
    v_lshl_add_u32 v{r.FlM}, v{hh_}, 4, v{t2}
    v_and_b32 v{t3}, 3, v{e_}
    v_lshl_add_u32 v{r.FlP}, v{t3}, 2, v{t2}
    v_add_u32 v{r.FlP}, 256, v{r.FlP}
    v_lshlrev_b32 v{t2}, 7, v{hh_}
    v_add_u32 v{r.WXa}, {L_WX}, v{t2}
    """)
    a("s_waitcnt vmcnt(12)")
    stamp(a, r, 2)
    for rr in range(8):
        a(f"""
        v_lshrrev_b32 v{r.t2}, 16, v{TABV+rr}
        v_and_b32 v{TABV+rr}, 0xffff, v{TABV+rr}
        v_max_u32 v{MX}, v{MX}, v{r.t2}
        v_mad_u32_u24 v{TABV+rr}, v{TABV+rr}, 12, v{LB}
        v_cmp_lt_u32 {s(S_M+2*rr,2)}, v{JJ}, v{r.t2}
        v_cmp_lt_u32 {s(S_M+16+2*rr,2)}, v{J16}, v{r.t2}
        s_mov_b32 s{S_TMP}, {rr*32*REC_STRIDE}
        s_mov_b64 exec, {s(S_M+2*rr,2)}
        buffer_load_dwordx3 {v(REC(rr),3)}, v{TABV+rr}, {s(SR_REC,4)}, s{S_TMP} offen
        s_mov_b64 exec, {s(S_M+16+2*rr,2)}
        buffer_load_dwordx3 {v(REC(8+rr),3)}, v{TABV+rr}, {s(SR_REC,4)}, s{S_TMP} offen offset:192
        s_mov_b64 exec, -1
        """)
    a("s_waitcnt vmcnt(16) lgkmcnt(0)\ns_barrier")
    for base, dst in ((8192, 0), (12288, 8)):
        a(f"s_mov_b32 s{S_TMP2}, {base}")
        for k, off in enumerate((0, 1024, 2048, 3072)):
            a(f"buffer_load_dwordx4 {v(r.W2 + 16*(k&1) + dst + 4*(k>>1),4)}, v{FA}, {s(SR_FR,4)}, s{S_TMP2} offen offset:{off}")
    a(f"s_mov_b32 s{S_TMP2}, 32768")
    a(f"buffer_load_dwordx4 {v(r.W5,4)}, v{FA}, {s(SR_FR,4)}, s{S_TMP2} offen")
    a(f"buffer_load_dwordx4 {v(r.W5+4,4)}, v{FA}, {s(SR_FR,4)}, s{S_TMP2} offen offset:1024")
    stamp(a, r, 3)
    a(f"""
    v_cmp_lt_u32 vcc, 32, v{MX}
    s_and_saveexec_b64 {s(S_D,2)}, vcc
    v_mov_b32 v{t2}, {L_FLAG}
    v_mov_b32 v{t3}, 1
    ds_write_b32 v{t2}, v{t3}
    s_mov_b64 exec, -1
    """)
    a(f"""
    s_lshl_b32 s{S_TMP}, s{S_RT}, 12
    s_add_u32 s{S_TMP}, s{S_TMP}, {L_RING}
    v_lshlrev_b32 v{t2}, 7, v{e_}
    v_add_u32 v{t2}, s{S_TMP}, v{t2}
    v_bfe_u32 v{t3}, v{e_}, 1, 3
    v_xor_b32 v{r.t5}, v{t3}, v{hh_}
    """)
    for k in range(4):
        a(f"v_xor_b32 v{t4}, {2*k}, v{r.t5}\nv_lshl_add_u32 v{t4}, v{t4}, 4, v{t2}\nds_read_b128 {v(r.H+4*k,4)}, v{t4}")
    a(f"""
    s_lshl_b32 s{S_TMP}, s{S_T}, 2
    v_xor_b32 v{r.t5}, s{S_TMP}, v{t3}
    v_lshl_add_u32 v{t2}, v{hh_}, 3, v{t2}
    """)
    for g in range(4):
        a(f"v_xor_b32 v{t4}, {g}, v{r.t5}\nv_lshl_add_u32 v{t4}, v{t4}, 4, v{t2}\nds_read_b64 {v(r.HR+2*g,2)}, v{t4}")
    NTD = r.AW
    a(f"""
    v_cmp_gt_u32 vcc, 104, v0
    s_and_saveexec_b64 {s(S_D,2)}, vcc
    v_and_b32 v{t2}, 1, v0
    v_lshlrev_b32 v{t2}, 4, v{t2}
    v_mov_b32 v{t3}, 0x3f80
    v_lshlrev_b32 v{t2}, v{t2}, v{t3}
    v_bfe_u32 v{t3}, v0, 1, 2
    """)
    for d in range(4):
        a(f"v_cmp_eq_u32 vcc, {d}, v{t3}\ns_nop 1\nv_cndmask_b32 v{NTD+d}, 0, v{t2}, vcc")
    a(f"""
    v_lshlrev_b32 v{NTD+4}, 16, v{r.PS}
    v_and_b32 v{NTD+5}, 0xffff0000, v{r.PS}
    v_lshlrev_b32 v{NTD+6}, 16, v{r.PS+1}
    v_and_b32 v{t3}, 7, v0
    v_lshlrev_b32 v{NTD+7}, 3, v{t3}
    v_lshlrev_b32 v{t3}, 5, v0
    v_add_u32 v{t3}, {L_NT}, v{t3}
    ds_write_b128 v{t3}, {v(NTD,4)}
    ds_write_b128 v{t3}, {v(NTD+4,4)} offset:16
    v_cmp_gt_u32 vcc, 64, v0
    s_and_b64 exec, exec, vcc
    v_lshlrev_b32 v{r.Q}, 16, v{r.Q}
    """)
    if opt.sc1:
        a(f"v_mul_f32 v{r.Q}, 0x{f2u(-LN2):08x}, v{r.Q}")
    a(f"""
    v_lshlrev_b32 v{t3}, 2, v0
    v_add_u32 v{t3}, {L_WX}, v{t3}
    ds_write_b32 v{t3}, v{r.Q}
    s_mov_b64 exec, -1
    s_waitcnt lgkmcnt(0)
    """)
    for k in range(4):
        a(mfma(AD, r.H+4*k, W1F+4*k, AD if k else None))
    for k in range(4):
        a(mfma(r.U, WH1F+4*k, r.H+4*k, r.U if k else None))
    a(f"""
    s_lshl_b32 s{S_TMP}, s{S_RT}, 13
    s_lshl_b32 s{S_TMP2}, s{S_T}, 10
    s_add_u32 s{S_TMP}, s{S_TMP}, s{S_TMP2}
    s_add_u32 s{S_TMP}, s{S_TMP}, {L_AT}
    v_lshlrev_b32 v{t2}, 4, v{e_}
    v_lshl_add_u32 v{t2}, v{hh_}, 3, v{t2}
    v_add_u32 v{t2}, s{S_TMP}, v{t2}
    s_nop 7
    """)
    HI = r.T; UP = r.T + 4; LO = r.T + 8
    for g in range(4):
        x = AD + 4 * g
        if g == 1:
            a(f"s_cmp_eq_u32 s{S_RT}, 3\ns_cbranch_scc1 K2_at_done")
        if opt.sc1:
            a(f"v_pk_mul_f32 {v(x,2)}, {v(x,2)}, {s(S_C,2)}\nv_pk_mul_f32 {v(x+2,2)}, {v(x+2,2)}, {s(S_C,2)}")
        a(f"""
        v_cvt_pk_bf16_f32 v{HI}, v{x}, v{x+1}
        v_cvt_pk_bf16_f32 v{HI+1}, v{x+2}, v{x+3}
        v_lshlrev_b32 v{UP}, 16, v{HI}
        v_and_b32 v{UP+1}, 0xffff0000, v{HI}
        v_lshlrev_b32 v{UP+2}, 16, v{HI+1}
        v_and_b32 v{UP+3}, 0xffff0000, v{HI+1}
        v_sub_f32 v{UP}, v{x}, v{UP}
        v_sub_f32 v{UP+1}, v{x+1}, v{UP+1}
        v_sub_f32 v{UP+2}, v{x+2}, v{UP+2}
        v_sub_f32 v{UP+3}, v{x+3}, v{UP+3}
        v_cvt_pk_bf16_f32 v{LO}, v{UP}, v{UP+1}
        v_cvt_pk_bf16_f32 v{LO+1}, v{UP+2}, v{UP+3}
        ds_write_b64 v{t2}, {v(HI,2)} offset:{g*2048}
        ds_write_b64 v{t2}, {v(LO,2)} offset:{g*2048+512}
        """)
    a.label("K2_at_done")
    ONE = r.Q; ADR = r.T
    a(f"v_mov_b32 v{ONE}, 1\ns_waitcnt vmcnt(10)")
    stamp(a, r, 4)
    a.label("K2_rank")
    a(f"s_mov_b32 s{S_TMP}, {L_CNT}")
    for q in range(16):
        if q >= 8:
            a(f"s_cmp_eq_u64 {s(S_M+2*q,2)}, 0\ns_cbranch_scc1 K2_rk{q}")
        a(f"""
        s_mov_b64 exec, {s(S_M+2*q,2)}
        v_and_b32 v{ADR+q}, 0x7f, v{REC(q)+2}
        v_lshl_add_u32 v{ADR+q}, v{ADR+q}, 2, s{S_TMP}
        ds_add_rtn_u32 v{REC(q)+3}, v{ADR+q}, v{ONE}
        """)
        if q >= 8: a.label(f"K2_rk{q}")
    a(f"""
    s_mov_b64 exec, -1
    v_lshlrev_b32 v{t2}, 3, v{r.lane}
    v_add_u32 v{t2}, {L_CNT}, v{t2}
    v_mov_b32 v{t3}, {L_FLAG}
    s_waitcnt lgkmcnt(0)
    s_barrier
    """)
    stamp(a, r, 5)
    C0 = r.K4; C1 = r.K4 + 1; FL = r.K4 + 2; SS = r.K4 + 3; TT = r.PD; PADR = r.PD + 1; SP = r.PD + 2; INC = r.PD + 3
    a(f"""
    ds_read_b64 {v(C0,2)}, v{t2}
    ds_read_b32 v{FL}, v{t3}
    v_and_b32 v{t4}, 3, v{r.lane}
    v_cmp_eq_u32 vcc, 3, v{t4}
    s_waitcnt lgkmcnt(0)
    v_add_u32 v{SS}, v{C0}, v{C1}
    v_readfirstlane_b32 s{S_TMP2}, v{FL}
    s_nop 0
    v_add_u32_dpp v{TT}, v{SS}, v{SS} quad_perm:[1,0,3,2] row_mask:0xf bank_mask:0xf
    s_nop 1
    v_add_u32_dpp v{TT}, v{TT}, v{TT} quad_perm:[2,3,0,1] row_mask:0xf bank_mask:0xf
    v_sub_u32 v{PADR}, 0, v{TT}
    v_and_b32 v{PADR}, 31, v{PADR}
    v_cndmask_b32 v{PADR}, 0, v{PADR}, vcc
    v_add_u32 v{SP}, v{SS}, v{PADR}
    v_mov_b32 v{INC}, v{SP}
    """)
    wave_scan(a, INC)
    a(f"""
    s_nop 0
    v_readlane_b32 s{S_TMP}, v{INC}, 63
    v_sub_u32 v{SP}, v{INC}, v{SP}
    v_add_u32 v{INC}, v{SP}, v{C0}
    ds_write_b64 v{t2}, {v(SP,2)} offset:{L_OFF-L_CNT}
    v_mov_b32_dpp v{PADR}, v{SP} quad_perm:[0,0,0,0] row_mask:0xf bank_mask:0xf
    v_add_u32 v{PADR}, v{PADR}, v{TT}
    v_and_b32 v{t3}, 60, v{r.lane}
    v_add_u32 v{t3}, {L_WEND}, v{t3}
    ds_write_b32 v{t3}, v{PADR}
    s_lshr_b32 s{S_TMP}, s{S_TMP}, 5
    s_cmp_gt_u32 s{S_TMP}, {CAPT}
    s_cselect_b32 s{S_TMP2}, 1, s{S_TMP2}
    s_cmp_lg_u32 s{S_TMP2}, 0
    s_cbranch_scc1 K2_slow
    s_and_b32 s{S_T0}, s{S_V}, 3
    s_mul_i32 s{S_T0}, s{S_T0}, s{S_TMP}
    s_add_u32 s{S_NTL}, s{S_T0}, s{S_TMP}
    s_lshr_b32 s{S_T0}, s{S_T0}, 2
    s_lshr_b32 s{S_NTL}, s{S_NTL}, 2
    s_sub_u32 s{S_TMP}, s{S_NTL}, s{S_T0}
    s_mul_i32 s{S_TMP}, s{S_TMP}, {opt.split}
    s_add_u32 s{S_TMP}, s{S_TMP}, 32
    s_lshr_b32 s{S_TMP}, s{S_TMP}, 6
    s_add_u32 s{S_TMP}, s{S_TMP}, s{S_T0}
    s_cmp_lt_u32 s{S_V}, 4
    s_cselect_b32 s{S_NTL}, s{S_TMP}, s{S_NTL}
    s_cselect_b32 s{S_T0}, s{S_T0}, s{S_TMP}
    s_sub_u32 s{S_NTL}, s{S_NTL}, s{S_T0}
    """)
    if "solo" in opt.abl:
        a(f"s_cmp_ge_u32 s{S_V}, 4\ns_cselect_b32 s{S_NTL}, 0, s{S_NTL}")
    for q in range(16):
        if q >= 8:
            a(f"s_cmp_eq_u64 {s(S_M+2*q,2)}, 0\ns_cbranch_scc1 K2_pa{q}")
        a(f"s_mov_b64 exec, {s(S_M+2*q,2)}\nds_read_b32 v{ADR+q}, v{ADR+q} offset:{L_OFF-L_CNT}")
        if q >= 8: a.label(f"K2_pa{q}")
    a("s_waitcnt lgkmcnt(0)")
    for q in range(16):
        if q >= 8:
            a(f"s_cmp_eq_u64 {s(S_M+2*q,2)}, 0\ns_cbranch_scc1 K2_pb{q}")
        a(f"""
        s_mov_b64 exec, {s(S_M+2*q,2)}
        v_add_u32 v{ADR+q}, v{ADR+q}, v{REC(q)+3}
        v_mul_u32_u24 v{ADR+q}, 12, v{ADR+q}
        ds_write2_b32 v{ADR+q}, v{REC(q)}, v{REC(q)+1} offset0:0 offset1:1
        ds_write_b32 v{ADR+q}, v{REC(q)+2} offset:8
        """)
        if q >= 8: a.label(f"K2_pb{q}")
    a(f"""
    s_mov_b64 exec, -1
    s_mul_i32 s{S_TMP}, s{S_T0}, 384
    v_and_b32 v{t2}, 31, v{r.lane}
    v_mul_u32_u24 v{t2}, 12, v{t2}
    v_add_u32 v{r.A1a}, s{S_TMP}, v{t2}
    v_lshrrev_b32 v{t2}, 3, v{r.lane}
    v_mul_u32_u24 v{t2}, 48, v{t2}
    v_add_u32 v{r.A2a}, s{S_TMP}, v{t2}
    s_sub_u32 s{S_TMP}, s{S_T0}, 1
    v_add_u32 v{t3}, s{S_TMP}, v{r.lane}
    v_mul_u32_u24 v{t2}, 384, v{t3}
    s_lshl_b32 s{S_TMP}, s{S_V}, 12
    s_add_u32 m0, s{S_TMP}, {L_RING}
    s_waitcnt lgkmcnt(0)
    s_barrier
    """)
    stamp(a, r, 6)
    a(f"""
    s_cmp_eq_u32 s{S_NTL}, 0
    s_cbranch_scc1 K2_main_end
    ds_read_b32 v{t4}, v{t2} offset:8
    """)
    for x in k_reads(r, 0): a(x)
    for i in range(0, 32, 2): a(f"v_mov_b64 {v(r.A0+i,2)}, 0")
    for i in range(0, 8, 2): a(f"v_mov_b64 {v(r.M+8+i,2)}, 0\nv_mov_b64 {v(r.S+i,2)}, 0")
    a("s_waitcnt lgkmcnt(0)")
    for x in dma_addr(r) + dma_issue(r) + posg(r): a(x)
    a(f"""
    v_bfe_u32 v{t4}, v{t4}, 3, 4
    v_lshlrev_b32 v{t2}, 2, v{t4}
    v_add_u32 v{t2}, {L_WEND}, v{t2}
    ds_read_b32 v{t2}, v{t2}
    ds_read_b128 {v(r.PD,4)}, v{r.NA} offset:16
    v_lshlrev_b32 v{t3}, 5, v{t3}
    s_waitcnt lgkmcnt(1)
    v_sub_u32 v{t2}, v{t2}, v{t3}
    v_min_u32 v{t2}, 32, v{t2}
    v_lshl_or_b32 v{r.Desc}, v{t2}, 8, v{t4}
    s_nop 0
    v_readlane_b32 s{S_D}, v{r.Desc}, 1
    v_readlane_b32 s{S_NFL}, v{r.Desc}, 0
    s_nop 1
    s_and_b32 s{S_W}, s{S_D}, 0xff
    s_and_b32 s{S_NFL}, s{S_NFL}, 0xff
    s_xor_b32 s{S_NFL}, s{S_NFL}, s{S_W}
    s_mov_b32 s{S_WP}, s{S_W}
    s_lshr_b32 s{S_CNT}, s{S_D}, 8
    s_lshl_b32 s{S_TMP}, s{S_W}, 11
    v_add_u32 v{r.AWa}, s{S_TMP}, v{r.AWl}
    """)
    for x in x_reads(r, 0): a(x)
    for x in k_reads(r, 1): a(x)
    a("s_waitcnt vmcnt(1)")
    for x in h_reads(r): a(x)
    a("s_waitcnt lgkmcnt(0)")
    for x in dma_addr(r) + dma_issue(r): a(x)
    a("s_waitcnt vmcnt(4)")
    for x in diff_valu(r) + posg(r): a(x)
    a("s_nop 1")
    for k in range(4):
        a(mfma(r.D0, r.H+4*k, r.W2+4*k, r.D0 if k else None))
    a(mfma(r.D0, r.X5, r.W5, r.D0)); a(mfma(r.D0, r.X6, r.AW, r.D0))
    a(f"s_mov_b32 s{S_I}, 2\ns_add_u32 s{S_NTL}, s{S_NTL}, 1\ns_nop 7\ns_nop 3")
    if opt.prio:
        a(f"s_cmp_ge_u32 s{S_V}, 4\ns_cbranch_scc1 K2_np\ns_setprio 1\nK2_np:")
    stamp(a, r, 7)
    a(".p2align 6")
    a.label("K2_loop")
    pre = k_reads(r, 2) + [f"ds_read_b128 {v(r.PD,4)}, v{r.NA} offset:16",
                           f"v_readlane_b32 s{S_D}, v{r.Desc}, s{S_I}"] + s_set(r)
    mf_exp = [mfma(r.D1, r.H+4*k, r.W2+16+4*k, r.D1 if k else None) for k in range(4)]
    mf_rcp = [mfma(r.D1, r.X5, r.W5+4, r.D1), mfma(r.D1, r.X6, r.AW+4, r.D1),
              mfma(r.A1, r.M+8, r.S, r.A1), mfma(r.A1, r.M+12, r.S+4, r.A1)]
    ins_exp = {2: [f"s_and_b32 s{S_TMP2}, s{S_D}, 0xff", f"s_lshl_b32 s{S_TMP}, s{S_TMP2}, 11"],
               5: [f"v_add_u32 v{r.AWa}, s{S_TMP}, v{r.AWl}"],
               13: ["s_waitcnt vmcnt(1)"] + h_reads(r)}
    ins_rcp = {2: ["s_waitcnt lgkmcnt(4)"] + dma_addr(r),
               5: ["s_waitcnt lgkmcnt(0)"] + dma_issue(r),
               6: x_reads(r, 1),
               13: s_reads(r)}
    silu_stage(a, r, r.D0, r.M, mf_exp, mf_rcp, ins_exp, ins_rcp, pre)
    a(f"s_cmp_eq_u32 s{S_W}, s{S_WP}\ns_cbranch_scc1 K2_noflush")
    if "flush" in opt.abl: a("s_branch K2_noflush")
    a(f"s_cmp_lg_u32 s{S_MODE}, 0\ns_cbranch_scc1 K2_flush_slow")
    a(f"s_mov_b32 s{S_NFL}, 1")
    flush_plain(a, r)
    a.label("K2_noflush")
    pre = [f"s_mov_b32 s{S_WP}, s{S_W}", f"s_mov_b32 s{S_W}, s{S_TMP2}", f"s_lshr_b32 s{S_CNT}, s{S_D}, 8",
           "s_waitcnt vmcnt(4)"] + diff_valu(r) + posg(r) + \
          [f"v_add_u32 v{r.A1a}, 384, v{r.A1a}", f"v_add_u32 v{r.A2a}, 384, v{r.A2a}"]
    mf_exp = [mfma(r.D0, r.H+4*k, r.W2+4*k, r.D0 if k else None) for k in range(4)]
    mf_rcp = [mfma(r.D0, r.X5, r.W5, r.D0), mfma(r.D0, r.X6, r.AW, r.D0),
              mfma(r.A0, r.M, r.S, r.A0), mfma(r.A0, r.M+4, r.S+4, r.A0)]
    ins_exp = {15: ["s_waitcnt lgkmcnt(0)"]}
    silu_stage(a, r, r.D1, r.M+8, mf_exp, mf_rcp, ins_exp, {}, pre)
    a(f"""
    s_add_u32 s{S_I}, s{S_I}, 1
    s_cmp_le_u32 s{S_I}, s{S_NTL}
    s_cbranch_scc1 K2_loop
    s_nop 0
    """)
    stamp(a, r, 8)
    a(mfma(r.A1, r.M+8, r.S, r.A1)); a(mfma(r.A1, r.M+12, r.S+4, r.A1))
    a("s_nop 15\ns_waitcnt vmcnt(0)")
    flush_dot(a, r)
    a("s_waitcnt lgkmcnt(0)")
    flush_dot2(a, r)
    a(f"s_cmp_lg_u32 s{S_MODE}, 0\ns_cbranch_scc1 K2_final_slow")
    a(f"""
    s_cmp_lg_u32 s{S_NFL}, 0
    s_cbranch_scc1 K2_main_end
    s_lshr_b32 s{S_TMP}, s{S_V}, 2
    s_lshl_b32 s{S_TMP}, s{S_TMP}, 2
    s_add_u32 s{S_TMP}, s{S_TMP}, {L_FLAG+8}
    v_mov_b32 v{r.K}, s{S_TMP}
    v_mov_b32 v{r.PI}, 1
    ds_write_b32 v{r.K}, v{r.PI}
    """)
    a.label("K2_main_end")
    a(f"s_cmp_lg_u32 s{S_MODE}, 0\ns_cbranch_scc1 K2_slow_next")
    stamp(a, r, 9)
    a(f"""
    v_mov_b32 v{r.K}, {L_FLAG+8}
    s_waitcnt lgkmcnt(0)
    s_barrier
    ds_read_b64 {v(r.PS,2)}, v{r.K}
    """)
    rmw_reads(a, r)
    a(f"""
    s_waitcnt lgkmcnt(9)
    v_readfirstlane_b32 s{S_TMP}, v{r.PS}
    v_readfirstlane_b32 s{S_TMP2}, v{r.PS+1}
    s_nop 3
    s_or_b32 s{S_D}, s{S_TMP}, s{S_TMP2}
    s_cbranch_scc1 K2_merge_rare
    K2_merge:
    s_cmp_eq_u32 s{S_NTL}, 0
    s_cbranch_scc1 K2_epi
    """)
    rmw_writes(a, r)
    a.label("K2_epi")
    if opt.stamp: a(f"s_sub_u32 s4, s{S_NTL}, 1\ns_max_i32 s4, s4, 0\nv_writelane_b32 v{r.ST}, s4, 20")
    WH2 = r.W2; MR = r.D0
    a(f"v_lshlrev_b32 v{r.t5}, 4, v{r.lane}\ns_lshl_b32 s{S_TMP}, s{S_T}, 10")
    for sidx in range(4):
        a(f"s_add_u32 s{S_TMP2}, s{S_TMP}, {24*1024 + sidx*2048}")
        a(f"buffer_load_dwordx4 {v(WH2+4*sidx,4)}, v{r.t5}, {s(SR_FR,4)}, s{S_TMP2} offen")
    a(f"""
    s_mul_i32 s{S_TMP}, s{S_NODE0}, 6
    s_add_u32 s{S_TMP}, s{S_TMP}, {OUT_POS}
    s_mul_i32 s{S_TMP2}, s{S_NN}, 6
    """)
    srd_off(a, SR_X, S_OUT, S_OUT+1, f"s{S_TMP}", f"s{S_TMP2}")
    a(f"""
    v_and_b32 v{e_}, 31, v{r.lane}
    v_lshrrev_b32 v{hh_}, 5, v{r.lane}
    s_mul_i32 s{S_TMP}, s{S_RT}, {32*ACC_ROW}
    s_add_u32 s{S_TMP}, s{S_TMP}, {L_ACC}
    v_mul_u32_u24 v{t2}, {ACC_ROW}, v{e_}
    v_lshl_add_u32 v{t2}, v{hh_}, 5, v{t2}
    v_add_u32 v{t2}, s{S_TMP}, v{t2}
    ; pos output addresses: node=tid/3, c=tid%3
    v_min_u32 v{t3}, 311, v0
    v_mul_u32_u24 v{t4}, 171, v{t3}
    v_lshrrev_b32 v{t4}, 9, v{t4}
    v_mul_u32_u24 v{r.t5}, 3, v{t4}
    v_sub_u32 v{r.t5}, v{t3}, v{r.t5}
    v_lshlrev_b32 v{r.t5}, 2, v{r.t5}
    v_lshl_add_u32 v{r.K}, v{t4}, 5, v{r.t5}
    v_add_u32 v{r.K}, {L_NT+16}, v{r.K}
    v_mul_u32_u24 v{r.PI}, {ACC_ROW}, v{t4}
    v_add_u32 v{r.PI}, v{r.PI}, v{r.t5}
    v_add_u32 v{r.PI}, {L_ACC+256}, v{r.PI}
    s_waitcnt lgkmcnt(0)
    s_barrier
    """)
    stamp(a, r, 10)
    for k in range(4):
        a(f"ds_read_b128 {v(MR+8*k,4)}, v{t2} offset:{64*k}\nds_read_b128 {v(MR+8*k+4,4)}, v{t2} offset:{64*k+16}")
    a(f"ds_read_b32 v{r.K}, v{r.K}\nds_read_b32 v{r.PI}, v{r.PI}")
    if opt.sc1:
        a(f"s_mov_b32 s{S_D}, 0x{f2u(-LN2):08x}\ns_mov_b32 s{S_D+1}, 0x{f2u(-LN2):08x}")
    for k in range(4):
        a(f"s_waitcnt lgkmcnt({8-2*k})")
        if opt.sc1:
            for j in range(0, 8, 2):
                a(f"v_pk_mul_f32 {v(MR+8*k+j,2)}, {v(MR+8*k+j,2)}, {s(S_D,2)}")
        for j in range(4):
            a(f"v_cvt_pk_bf16_f32 v{r.H+4*k+j}, v{MR+8*k+2*j}, v{MR+8*k+2*j+1}")
    a("s_waitcnt vmcnt(0)")
    for k in range(4):
        a(mfma(r.U, WH2+4*k, r.H+4*k, r.U))
    a(f"""
    s_waitcnt lgkmcnt(0)
    v_add_f32 v{r.K}, v{r.K}, v{r.PI}
    v_cvt_pk_bf16_f32 v{r.K}, v{r.K}, v{r.K}
    v_lshlrev_b32 v{r.PI}, 1, v0
    buffer_store_short v{r.K}, v{r.PI}, {s(SR_X,4)}, 0 offen
    s_lshl_b32 s{S_TMP}, s{S_V}, 12
    s_add_u32 s{S_TMP}, s{S_TMP}, {L_RING}
    v_mul_u32_u24 v{t2}, 80, v{e_}
    v_lshl_add_u32 v{t2}, v{hh_}, 3, v{t2}
    v_add_u32 v{t2}, s{S_TMP}, v{t2}
    v_lshrrev_b32 v{t3}, 2, v{r.lane}
    v_and_b32 v{t4}, 3, v{r.lane}
    v_lshlrev_b32 v{t4}, 4, v{t4}
    v_lshl_add_u32 v{r.t5}, v{t3}, 7, v{t4}
    v_mul_u32_u24 v{t3}, 80, v{t3}
    v_add3_u32 v{t3}, v{t3}, v{t4}, s{S_TMP}
    s_lshl_b32 s{S_TMP}, s{S_RT}, 12
    s_lshl_b32 s{S_TMP2}, s{S_T}, 6
    s_add_u32 s{S_TMP}, s{S_TMP}, s{S_TMP2}
    s_nop 3
    """)
    T = r.T; U = r.U
    for i in range(0, 16, 2): a(f"v_pk_mul_f32 {v(T+i,2)}, {v(U+i,2)}, {s(S_C,2)}")
    for i in range(16): a(f"v_exp_f32 v{T+i}, v{T+i}")
    for i in range(0, 16, 2): a(f"v_pk_add_f32 {v(T+i,2)}, {v(T+i,2)}, {s(S_ONE,2)}")
    for i in range(16): a(f"v_rcp_f32 v{T+i}, v{T+i}")
    for j in range(8):
        a(f"v_lshlrev_b32 v{MR+2*j}, 16, v{r.HR+j}\nv_and_b32 v{MR+2*j+1}, 0xffff0000, v{r.HR+j}")
    for i in range(0, 16, 2):
        a(f"v_pk_fma_f32 {v(T+i,2)}, {v(T+i,2)}, {v(U+i,2)}, {v(MR+i,2)}")
    for i in range(0, 16, 2):
        a(f"v_cvt_pk_bf16_f32 v{r.M+i//2}, v{T+i}, v{T+i+1}")
    for g in range(4):
        a(f"ds_write_b64 v{t2}, {v(r.M+2*g,2)} offset:{16*g}")
    a(f"""
    s_waitcnt lgkmcnt(0)
    ds_read_b128 {v(r.H,4)}, v{t3}
    ds_read_b128 {v(r.H+4,4)}, v{t3} offset:1280
    s_waitcnt lgkmcnt(1)
    buffer_store_dwordx4 {v(r.H,4)}, v{r.t5}, {s(SR_OUT,4)}, s{S_TMP} offen
    s_waitcnt lgkmcnt(0)
    buffer_store_dwordx4 {v(r.H+4,4)}, v{r.t5}, {s(SR_OUT,4)}, s{S_TMP} offen offset:2048
    """)
    if opt.stamp: a("s_waitcnt vmcnt(0)")
    stamp(a, r, 11); stamp(a, r, 12, True)
    stamp_out(a, r, S_WS, r.t2, S_V, WS_STAMP)
    a(f"""
    K2_done:
    s_endpgm
    """)
    a(f"""
    K2_merge_rare:
    s_cmp_lg_u32 s{S_TMP}, 0
    s_cbranch_scc1 K2_final_atomic
    s_cmp_ge_u32 s{S_V}, 4
    s_cbranch_scc1 K2_merge_young
    s_cmp_eq_u32 s{S_NTL}, 0
    s_cbranch_scc1 K2_merge_old_done
    """)
    rmw_writes(a, r)
    a(f"""
    K2_merge_old_done:
    s_waitcnt lgkmcnt(0)
    s_barrier
    s_branch K2_epi
    K2_merge_young:
    s_waitcnt lgkmcnt(0)
    s_barrier
    """)
    rmw_reads(a, r)
    a(f"""
    s_branch K2_merge
    K2_final_atomic:
    s_cmp_eq_u32 s{S_NTL}, 0
    s_cbranch_scc1 K2_epi
    """)
    flush_atomic_tail(a, r)
    a("s_branch K2_epi")
    a.label("K2_final_slow")
    flush_atomic_tail(a, r)
    a("s_branch K2_slow_next")
    a.label("K2_flush_slow")
    flush_dot(a, r)
    a("s_waitcnt lgkmcnt(0)")
    flush_dot2(a, r)
    flush_atomic_tail(a, r)
    acc_zero(a, r)
    a("s_branch K2_noflush")
    a(f"""
    K2_slow:
    s_mov_b32 s{S_MODE}, 1
    s_mov_b32 s{S_SEG}, 0
    K2_slow_round:
    s_waitcnt lgkmcnt(0)
    s_barrier
    v_cmp_gt_u32 vcc, 33, v0
    s_and_saveexec_b64 {s(S_D,2)}, vcc
    v_lshlrev_b32 v{t2}, 4, v0
    v_add_u32 v{t2}, {L_CNT}, v{t2}
    v_mov_b64 {v(r.K4,2)}, 0
    v_mov_b64 {v(r.K4+2,2)}, 0
    ds_write_b128 v{t2}, {v(r.K4,4)}
    s_mov_b64 exec, -1
    s_lshl_b32 s{S_TMP}, s{S_SEG}, 10
    s_lshl_b32 s{S_TMP2}, s2, 2
    s_add_u32 s{S_TMP}, s{S_TMP}, s{S_TMP2}
    buffer_load_dword v{t3}, v{r.Zero}, {s(SR_TAB,4)}, s{S_TMP} offen
    s_mul_i32 s{S_TMP}, s{S_SEG}, {REC_STRIDE}
    s_waitcnt vmcnt(0)
    v_lshrrev_b32 v{t4}, 16, v{t3}
    v_and_b32 v{t3}, 0xffff, v{t3}
    v_add_u32 v{t3}, v{t3}, v0
    v_mul_u32_u24 v{t3}, 12, v{t3}
    v_mov_b32 v{t2}, v0
    """)
    for q in range(7):
        a(f"""
        v_cmp_lt_u32 {s(S_M+2*q,2)}, v{t2}, v{t4}
        s_mov_b64 exec, {s(S_M+2*q,2)}
        buffer_load_dwordx3 {v(REC(q),3)}, v{t3}, {s(SR_REC,4)}, s{S_TMP} offen
        s_mov_b64 exec, -1
        v_add_u32 v{t2}, 512, v{t2}
        s_add_u32 s{S_TMP}, s{S_TMP}, {512*12}
        """)
    for q in range(7, 16):
        a(f"s_mov_b64 {s(S_M+2*q,2)}, 0")
    a(f"""
    v_mov_b32 v{ONE}, 1
    s_waitcnt vmcnt(0) lgkmcnt(0)
    s_barrier
    s_branch K2_rank
    K2_slow_next:
    s_add_u32 s{S_SEG}, s{S_SEG}, 1
    s_cmp_lt_u32 s{S_SEG}, {NB}
    s_cbranch_scc1 K2_slow_round
    s_branch K2_epi
    """)
    return a.text(), r.n

def build():
    k1, n1 = gen_k1(); k2, n2 = gen_k2()
    hdr = open("gather_scatter__cheap_equivariant_egnn__graph.s.ref").read().split("; Override")[0]
    out = hdr
    out += f"; @launch kernel=bin_kernel grid=({NB+1},1,1) block=({K1_THREADS},1,1) lds={K1_LDS}\n"
    out += f"; @launch kernel=edge_kernel grid=({NB},1,1) block=(512,1,1) lds={K2_LDS}\n"
    out += '.amdgcn_target "amdgcn-amd-amdhsa--gfx950"\n.text\n'
    for name, body, nv in (("bin_kernel", k1, n1), ("edge_kernel", k2, n2)):
        out += f".globl {name}\n.p2align 8\n.type {name},@function\n" + body + descriptor(name, nv)
    return out

if __name__ == "__main__":
    for arg in sys.argv[2:]:
        k, val = arg.split("=")
        cur = getattr(opt, k)
        setattr(opt, k, (val not in ("0", "False")) if isinstance(cur, bool) else type(cur)(val.replace("_", " ").replace("none", "")))
    open(sys.argv[1], "w").write(build())
    print("K1 lds", K1_LDS, "K2 lds", K2_LDS, "K2 vgprs", alloc_k2().n)
```

```python
import sys, struct

N = 25000; E = 800000; NB = 256; BN = 98; CH = 3136
REC_STRIDE = CH * 12
WS_TAB = NB * REC_STRIDE
WS_P4 = WS_TAB + NB * 1024
WS_STAMP = 64 << 20
OUT_POS = N * 128
KNAME = "gather_scatter__cheap_equivariant_egnn__graph_kernel"

def f2u(x): return struct.unpack("<I", struct.pack("<f", x))[0]
LOG2E = 1.4426950408889634
LN2 = 0.6931471805599453

class Opt:
    split = 42
    prio = 1
    ld = "nt"
    st = "sc1"
    hl = "sc1"
    ost = ""
    slide = True
    late = 1
    pf = 0
    warm = 0
    abl = ""
    stamp = False
opt = Opt()

class Asm:
    def __init__(self): self.L = []
    def __call__(self, s):
        if isinstance(s, (list, tuple)):
            for x in s: self(x)
            return
        for x in s.strip("\n").split("\n"):
            x = x.strip()
            if not x: continue
            self.L.append(x if x.endswith(":") else "    " + x)
    def label(self, n): self.L.append(n + ":")
    def text(self): return "\n".join(self.L) + "\n"

def v(i, n=1): return f"v{i}" if n == 1 else f"v[{i}:{i+n-1}]"
def s(i, n=1): return f"s{i}" if n == 1 else f"s[{i}:{i+n-1}]"
def srd(d, p, size, off=None):
    if off is None: b = f"s_mov_b32 s{d}, s{p}\ns_mov_b32 s{d+1}, s{p+1}\n"
    else: b = f"s_add_u32 s{d}, s{p}, {off}\ns_addc_u32 s{d+1}, s{p+1}, 0\n"
    return b + f"s_mov_b32 s{d+2}, {size}\ns_mov_b32 s{d+3}, 0x00020000"
def wave_scan(r):
    o = []
    for sh in (1, 2, 4, 8):
        o.append(f"s_nop 1\nv_add_u32_dpp v{r}, v{r}, v{r} row_shr:{sh} row_mask:0xf bank_mask:0xf bound_ctrl:0")
    o.append(f"s_nop 1\nv_add_u32_dpp v{r}, v{r}, v{r} row_bcast:15 row_mask:0xa bank_mask:0xf")
    o.append(f"s_nop 1\nv_add_u32_dpp v{r}, v{r}, v{r} row_bcast:31 row_mask:0xc bank_mask:0xf")
    return o
def mfma(d, a_, b_, c=None):
    cc = "0" if c is None else v(c, 16)
    return f"v_mfma_f32_32x32x16_bf16 {v(d,16)}, {v(a_,4)}, {v(b_,4)}, {cc}"
SDWA = "dst_sel:DWORD dst_unused:UNUSED_PAD src0_sel:DWORD"

CAPT = 116
L_NT = 0
L_CNT = 8192
L_OFF = L_CNT + 1024
L_REC = L_OFF + 1024
L_RING = L_REC + CAPT * 384
L_SIMG = L_RING + 8 * 4096
L_AT = L_SIMG + 8 * 2048
L_ACC = L_AT + 14 * 1024
ACC_ROW = 272
L_WX = L_ACC + 112 * ACC_ROW
L_FLAG = L_WX + 256
L_WEND = L_FLAG + 16
L_HIST = L_WEND + 64 + 48
L_OFFA = L_HIST + 1024
L_WH2 = L_OFFA + 1024
LDS_BYTES = L_WH2 + 8192
L_STG = L_REC
L_HST = L_RING + 8192
L_W2S = L_RING + 24576
L_WH1 = L_ACC
L_WE = L_ACC + 8192
assert L_STG + CH * 16 <= L_HST and L_WE + 17408 <= L_WX and L_SIMG % 64 == 0 and LDS_BYTES <= 163840
assert L_HIST % 16 == 0 and L_ACC % 16 == 0

class R: pass
def alloc():
    r = R(); n = [1]
    def al(cnt, align=1):
        n[0] = (n[0] + align - 1) // align * align
        x = n[0]; n[0] += cnt; return x
    r.lane = al(1); r.t0 = al(1); r.t1 = al(1)
    r.D0 = al(16, 4); r.D1 = al(16); r.A0 = al(16); r.A1 = al(16)
    r.W2 = al(32); r.BW = al(8); r.H = al(16)
    r.XM = al(4); r.S = al(8); r.K4 = al(4)
    r.M = al(16); r.T = al(16); r.U = al(16); r.HR = al(8)
    r.PD = al(4); r.PS = al(2); r.PQ = al(2); r.HA = al(4); r.XK = al(4)
    for nm in "A1a A2a SB TR0 TR1 AWl Desc Zero FlM FlP WXa ML K PI NA SA t2 t3 t4 t5 ST V4 V8 V16 L16 TE".split():
        setattr(r, nm, al(1))
    r.n = n[0]
    return r

P_H, P_POS, P_EA, P_SRC, P_DST, P_WE, P_WX, P_WH, P_OUT, P_DBG, P_WS = range(4, 26, 2)
SR_HD = 28; SR_P4 = 32; SR_REC = 36; SR_TAB = 40; SR_OUT = 44; SR_OUTP = 48
S_V = 52; S_RT = 53; S_T = 54; S_B4 = 55; S_MODE = 56; S_SEG = 57
S_C = 58; S_ONE = 60; S_D = 62; S_TMP = 63; S_TMP2 = 64; S_T0 = 65; S_NTL = 66; S_I = 67; S_CNT = 68; S_TMP3 = 69
S_M = 70
S_NL = 4; S_NH = 5; S_MSK = 6; S_SO0 = 7; S_SO1 = 8; S_SO2 = 9
S_NB = 10; S_NBP = 11; S_NBN = 12; S_ZP = 13; S_RM = 14; S_PADM = 15; S_HI = 16
S_ST = 26
TS = [72 + 4 * k for k in range(7)] + [SR_OUTP]

def stamp(a, r, i, real=False):
    if not opt.stamp: return
    a(f"s_waitcnt lgkmcnt(0)\n{'s_memrealtime' if real else 's_memtime'} {s(S_ST,2)}\ns_waitcnt lgkmcnt(0)\nv_writelane_b32 v{r.ST}, s{S_ST}, {i}")

def silu_stage(a0, r, D, Mo, mf_exp, mf_rcp, ins_exp, ins_rcp, pre=()):
    T = r.T
    def a(x, core=False):
        for y in ([x] if isinstance(x, str) else x):
            for z in y.split("\n"):
                z = z.strip()
                if "vmem" in opt.abl and (z.startswith("buffer_") or "vmcnt" in z): continue
                if "lds" in opt.abl and (z.startswith("ds_") or "lgkmcnt" in z): continue
                if "misc" in opt.abl and z.startswith("v_") and not core and not z.startswith("v_readlane"): continue
                a0(z)
    a(pre)
    for i in range(16):
        if i in mf_exp: a(mf_exp[i], True)
        a(f"v_exp_f32 v{T+i}, v{D+i}", True)
        a(ins_exp.get(i, ()))
    for i in range(0, 16, 2):
        a(f"v_pk_add_f32 {v(T+i,2)}, {v(T+i,2)}, {s(S_ONE,2)}", True)
    for i in range(16):
        if i in mf_rcp: a(mf_rcp[i], True)
        a(f"v_rcp_f32 v{T+i}, v{T+i}", True)
        a(ins_rcp.get(i, ()))
    for i in range(0, 16, 2):
        a(f"v_pk_mul_f32 {v(T+i,2)}, {v(T+i,2)}, {v(D+i,2)}", True)
    for i in range(0, 16, 2):
        a(f"v_cvt_pk_bf16_f32 v{Mo+i//2}, v{T+i}, v{T+i+1}", True)

def geometry(r, advance):
    o = [
        f"v_dot2_f32_bf16 v{r.t2}, v{r.PS}, s{S_NL}, v{r.PD}",
        f"v_dot2_f32_bf16 v{r.t3}, v{r.PS}, s{S_NH}, v{r.PD+1}",
        f"v_dot2_f32_bf16 v{r.t4}, v{r.PS+1}, s{S_NL}, v{r.PD+2}",
        f"v_xor_b32 v{r.SA}, v{r.SB}, v{r.PD+3}",
        f"v_lshrrev_b32 v{r.PI}, 7, v{r.K}",
        f"buffer_load_dwordx2 {v(r.PS,2)}, v{r.PI}, {s(SR_P4,4)}, 0 idxen",
        f"v_cvt_pk_bf16_f32 v{r.PQ}, v{r.t2}, v{r.t3}",
        f"v_cvt_pk_bf16_f32 v{r.t5}, v{r.t4}, 0",
        f"v_cvt_pk_bf16_f32 v{r.PQ+1}, v{r.t4}, 1.0",
        f"v_dot2_f32_bf16 v{r.t2}, v{r.PQ}, v{r.PQ}, 0",
        f"v_dot2_f32_bf16 v{r.t2}, v{r.t5}, v{r.t5}, v{r.t2}",
    ]
    if advance:
        o += [f"v_add_u32 v{r.A1a}, 384, v{r.A1a}", f"v_add_u32 v{r.A2a}, 384, v{r.A2a}", "s_nop 0"]
    else:
        o += ["s_nop 2"]
    o += [
        f"v_cvt_pk_bf16_f32 v{r.XM+2}, v{r.t2}, v{r.t2}",
        f"s_mov_b64 exec, {s(S_HI,2)}",
        f"ds_read_b128 {v(r.XM,4)}, v{r.NA}",
        "s_mov_b64 exec, -1",
        f"v_lshlrev_b32_sdwa v{r.NA}, 5, v{r.K} {SDWA} src1_sel:BYTE_0",
    ]
    return o
def k_reads(r, tile_off):
    o = tile_off * 384 + 8
    return [f"ds_read_b32 v{r.K}, v{r.A1a} offset:{o}",
            f"ds_read2_b32 {v(r.K4,2)}, v{r.A2a} offset0:{o//4} offset1:{o//4+3}",
            f"ds_read2_b32 {v(r.K4+2,2)}, v{r.A2a} offset0:{o//4+6} offset1:{o//4+9}"]
def pd_read(r): return [f"ds_read_b128 {v(r.PD,4)}, v{r.NA} offset:16"]
def dma_addr(r): return [f"v_and_or_b32 v{r.K4+k}, v{r.K4+k}, s{S_MSK}, v{r.XK+k}" for k in range(4)]
def dma_issue(r):
    so = [f"s{S_SO0}", f"s{S_SO1}", f"s{S_SO2}", "0"]
    return [f"buffer_load_dwordx4 v{r.K4+k}, {s(SR_HD,4)}, {so[k]} offen offset:{1024*k} lds" for k in range(4)]
def h_reads(r): return [f"ds_read_b128 {v(r.H+4*k,4)}, v{r.HA+k}" for k in range(4)]
def ea_read(r, tile_off):
    o = tile_off * 96
    return [f"ds_read2_b32 {v(r.XM,2)}, v{r.A1a} offset0:{o} offset1:{o+1}"]
def aw_reads(r, nb):
    return [f"s_add_u32 s{S_TMP}, s{nb}, 4",
            f"s_lshr_b32 s{S_TMP}, s{S_TMP}, 3",
            f"s_lshl_b32 s{S_TMP}, s{S_TMP}, 10",
            f"s_lshr_b32 s{S_TMP2}, s{nb}, 3",
            f"s_lshl_b32 s{S_TMP2}, s{S_TMP2}, 10",
            f"v_add_u32 v{r.t2}, s{S_TMP}, v{r.AWl}",
            f"v_add_u32 v{r.t3}, s{S_TMP2}, v{r.AWl}",
            f"s_mov_b64 exec, {s(S_HI,2)}",
            f"ds_read_b64 {v(r.BW,2)}, v{r.t2}",
            f"ds_read_b64 {v(r.BW+2,2)}, v{r.t3} offset:8",
            f"ds_read_b64 {v(r.BW+4,2)}, v{r.t2} offset:512",
            f"ds_read_b64 {v(r.BW+6,2)}, v{r.t3} offset:520",
            "s_mov_b64 exec, -1"]
def s_set(r):
    return [f"s_bfm_b64 exec, s{S_CNT}, 0", f"ds_write_b64 v{r.SA}, {v(r.PQ,2)}", "s_mov_b64 exec, -1"]
def s_reads(r):
    return [f"ds_read_b64_tr_b16 {v(r.S,2)}, v{r.TR0}",
            f"ds_read_b64_tr_b16 {v(r.S+2,2)}, v{r.TR1}",
            f"ds_read_b64_tr_b16 {v(r.S+4,2)}, v{r.TR0} offset:1024",
            f"ds_read_b64_tr_b16 {v(r.S+6,2)}, v{r.TR1} offset:1024",
            f"ds_write2_b32 v{r.SA}, v{r.Zero}, v{r.Zero} offset0:0 offset1:1"]

def flush_addr(r):
    o = [f"ds_read_b128 {v(r.T+4*q,4)}, v{r.WXa} offset:{16*q}" for q in range(4)]
    o += [f"ds_read_b128 {v(r.D0+4*q,4)}, v{r.WXa} offset:{64+16*q}" for q in range(4)]
    o += [f"s_lshr_b32 s{S_TMP}, s{S_NBP}, 3",
          f"s_mul_i32 s{S_TMP}, s{S_TMP}, {8*ACC_ROW}",
          f"s_bitcmp1_b32 s{S_NBP}, 2",
          f"s_cselect_b32 s{S_TMP2}, {8*ACC_ROW}, 0",
          f"v_and_b32 v{r.t3}, s{S_TMP2}, v{r.ML}",
          f"v_add3_u32 v{r.t2}, v{r.FlM}, v{r.t3}, s{S_TMP}",
          f"v_add3_u32 v{r.t3}, v{r.FlP}, v{r.t3}, s{S_TMP}"]
    return o
def flush_dot(r):
    o = [f"v_pk_mul_f32 {v(r.T,2)}, {v(r.T,2)}, {v(r.A0,2)}", f"v_pk_mul_f32 {v(r.D0,2)}, {v(r.D0,2)}, {v(r.A1,2)}"]
    for i in range(2, 16, 2):
        o.append(f"v_pk_fma_f32 {v(r.T,2)}, {v(r.T+i,2)}, {v(r.A0+i,2)}, {v(r.T,2)}")
        o.append(f"v_pk_fma_f32 {v(r.D0,2)}, {v(r.D0+i,2)}, {v(r.A1+i,2)}, {v(r.D0,2)}")
    o += [f"v_pk_add_f32 {v(r.T,2)}, {v(r.T,2)}, {v(r.D0,2)}",
          f"v_add_f32 v{r.t4}, v{r.T}, v{r.T+1}", f"v_add_f32 v{r.t5}, v{r.T}, v{r.T+1}", "s_nop 1",
          f"v_permlane32_swap_b32 v{r.t4}, v{r.t5}", "s_nop 1", f"v_add_f32 v{r.t4}, v{r.t4}, v{r.t5}"]
    return o
EX3 = f"s_and_b32 exec_lo, s{S_RM}, 0x88888888\ns_mov_b32 exec_hi, exec_lo"
EXP = f"s_and_b32 exec_lo, s{S_RM}, 0x77777777\ns_mov_b32 exec_hi, 0"
def acc_zero(r, masked):
    o = [f"s_mov_b32 exec_lo, s{S_RM}\ns_mov_b32 exec_hi, s{S_RM}"] if masked else []
    o += [f"v_mov_b64 {v(r.A0+i,2)}, 0" for i in range(0, 32, 2)]
    if masked: o.append("s_mov_b64 exec, -1")
    return o
def flush_plain(r):
    o = flush_addr(r) + [EX3]
    o += [f"ds_write_b128 v{r.t2}, {v(r.A0+4*q,4)} offset:{32*q}" for q in range(8)]
    o += ["s_mov_b64 exec, -1", "s_waitcnt lgkmcnt(8)"] + flush_dot(r)
    o += [EXP, f"ds_write_b32 v{r.t3}, v{r.t4}"] + acc_zero(r, True)
    return o
def flush_atomic(r):
    o = [EX3]
    for t, A in ((0, r.A0), (1, r.A1)):
        for i in range(16):
            o.append(f"ds_add_f32 v{r.t2}, v{A+i} offset:{(32*t + 8*(i>>2) + (i&3))*4}")
    o += [EXP, f"ds_add_f32 v{r.t3}, v{r.t4}", "s_mov_b64 exec, -1"]
    return o
def rmw_reads(r):
    return [EX3] + [f"ds_read_b128 {v(r.D0+4*q,4)}, v{r.t2} offset:{32*q}" for q in range(8)] + \
           [EXP, f"ds_read_b32 v{r.t5}, v{r.t3}", "s_mov_b64 exec, -1"]
def rmw_writes(r):
    o = [EX3]
    for q in range(8):
        o += ["s_waitcnt lgkmcnt(8)",
              f"v_pk_add_f32 {v(r.D0+4*q,2)}, {v(r.D0+4*q,2)}, {v(r.A0+4*q,2)}",
              f"v_pk_add_f32 {v(r.D0+4*q+2,2)}, {v(r.D0+4*q+2,2)}, {v(r.A0+4*q+2,2)}",
              f"ds_write_b128 v{r.t2}, {v(r.D0+4*q,4)} offset:{32*q}"]
    o += [EXP, "s_waitcnt lgkmcnt(8)", f"v_add_f32 v{r.t4}, v{r.t4}, v{r.t5}", f"ds_write_b32 v{r.t3}, v{r.t4}", "s_mov_b64 exec, -1"]
    return o
def retire_mask(r):
    return [f"s_mov_b32 s{S_RM}, 0xffff",
            f"s_bitcmp1_b32 s{S_NBP}, 2",
            f"s_cselect_b32 s{S_RM}, 0xffff0000, s{S_RM}",
            f"s_add_u32 s{S_TMP}, s{S_NBP}, 4",
            f"s_cmp_eq_u32 s{S_TMP}, s{S_NB}",
            f"s_cselect_b32 s{S_RM}, s{S_RM}, -1"]

def gen():
    a = Asm(); r = alloc()
    t0, t1, t2, t3, t4, t5 = r.t0, r.t1, r.t2, r.t3, r.t4, r.t5
    T_DST, T_SRC, T_EA, T_POS, T_WE, T_WH, T_H, T_X = TS
    a.label(KNAME)
    DST = r.D0; SRC = r.D0 + 8; EA = r.D0 + 16; BINA = r.D0 + 32; RNK = r.D0 + 40
    V16, V32, L16 = r.V16, r.V8, r.L16
    POSR = r.PD
    S_CN = S_T0; S_O4 = S_NTL; S_O8 = S_CNT; S_N0 = S_SEG; S_NN = S_D; S_BUD = S_I
    MA = [80, 82]
    e_, hh_ = t0, t1
    a(f"""
    s_cmp_ge_u32 s2, {NB}
    s_cbranch_scc1 L_done
    s_load_dwordx16 s[4:19], s[0:1], 0
    s_and_b32 s3, s2, 7
    s_lshl_b32 s3, s3, 5
    s_lshr_b32 s2, s2, 3
    s_or_b32 s2, s2, s3
    s_load_dwordx4 s[20:23], s[0:1], 64
    s_load_dwordx2 s[24:25], s[0:1], 80
    v_lshrrev_b32 v{t0}, 6, v0
    v_and_b32 v{r.lane}, 63, v0
    v_readfirstlane_b32 s{S_V}, v{t0}
    v_mov_b32 v{r.Zero}, 0
    v_lshlrev_b32 v{V16}, 4, v0
    v_lshlrev_b32 v{V32}, 5, v0
    v_lshlrev_b32 v{L16}, 4, v{r.lane}
    v_mov_b64 {v(r.T,2)}, 0
    v_mov_b64 {v(r.T+2,2)}, 0
    s_mul_i32 s{S_O4}, s2, {CH*4}
    s_lshl_b32 s{S_O8}, s{S_O4}, 1
    s_mov_b32 s{S_CN}, {CH}
    s_cmp_eq_u32 s2, {NB-1}
    s_cselect_b32 s{S_CN}, {E-(NB-1)*CH}, s{S_CN}
    s_lshl_b32 s3, s{S_CN}, 2
    s_add_u32 s3, s3, s{S_O4}
    s_lshl_b32 s{S_TMP3}, s3, 1
    s_add_u32 s{S_TMP}, s{S_O4}, 8192
    s_add_u32 s{S_TMP2}, s{S_O8}, 16384
    s_lshl_b32 s{S_MODE}, s2, 10
    s_waitcnt lgkmcnt(0)
    """)
    a(srd(SR_TAB, P_WS, NB * 1024, WS_TAB))
    a(f"s_cmp_lg_u32 s{S_V}, 0\ns_cbranch_scc1 L_noclr\nbuffer_store_dwordx4 {v(r.T,4)}, v{L16}, {s(SR_TAB,4)}, s{S_MODE} offen {opt.st}\nL_noclr:")
    a(srd(T_DST, P_DST, "s3"))
    a(f"""
    buffer_load_dwordx4 {v(DST,4)}, v{V16}, {s(T_DST,4)}, s{S_O4} offen {opt.ld}
    buffer_load_dwordx4 {v(DST+4,4)}, v{V16}, {s(T_DST,4)}, s{S_TMP} offen {opt.ld}
    """)
    a(srd(T_SRC, P_SRC, "s3")); a(srd(T_EA, P_EA, f"s{S_TMP3}"))
    if not opt.late:
        a(f"""
        buffer_load_dwordx4 {v(SRC,4)}, v{V16}, {s(T_SRC,4)}, s{S_O4} offen {opt.ld}
        buffer_load_dwordx4 {v(EA,4)}, v{V32}, {s(T_EA,4)}, s{S_O8} offen {opt.ld}
        buffer_load_dwordx4 {v(EA+4,4)}, v{V32}, {s(T_EA,4)}, s{S_O8} offen offset:16 {opt.ld}
        s_add_u32 s{S_O4}, s{S_O4}, 8192
        s_add_u32 s{S_O8}, s{S_O8}, 16384
        buffer_load_dwordx4 {v(SRC+4,4)}, v{V16}, {s(T_SRC,4)}, s{S_O4} offen {opt.ld}
        buffer_load_dwordx4 {v(EA+8,4)}, v{V32}, {s(T_EA,4)}, s{S_O8} offen {opt.ld}
        buffer_load_dwordx4 {v(EA+12,4)}, v{V32}, {s(T_EA,4)}, s{S_O8} offen offset:16 {opt.ld}
        """)
    if opt.stamp: a(f"v_mov_b32 v{r.ST}, 0")
    stamp(a, r, 0, True); stamp(a, r, 1)
    a(f"""
    v_add_u32 v{t3}, {L_HIST}, v{L16}
    ds_write_b128 v{t3}, {v(r.T,4)}
    s_mul_i32 s{S_N0}, s2, {BN}
    s_lshl_b32 s{S_B4}, s2, 2
    s_lshr_b32 s{S_RT}, s{S_V}, 1
    s_and_b32 s{S_T}, s{S_V}, 1
    """)
    NY = 10
    a(f"""
    s_sub_u32 s{SR_HD}, s{P_H}, 3072
    s_subb_u32 s{SR_HD+1}, s{P_H+1}, 0
    s_mov_b32 s{SR_HD+2}, {N*128+3072}
    s_mov_b32 s{SR_HD+3}, 0x00020000
    """)
    a(srd(SR_REC, P_WS, NB * REC_STRIDE)); a(srd(SR_P4, P_WS, N, WS_P4))
    a(f"""
    s_and_b32 s{SR_P4+1}, s{SR_P4+1}, 0xffff
    s_or_b32 s{SR_P4+1}, s{SR_P4+1}, 0x80000
    s_sub_u32 s{S_NN}, {N}, s{S_N0}
    s_min_u32 s{S_NN}, s{S_NN}, {BN}
    s_lshl_b32 s{S_TMP}, s{S_N0}, 7
    s_lshl_b32 s{S_TMP2}, s{S_NN}, 7
    """)
    a(srd(SR_OUT, P_OUT, f"s{S_TMP2}", f"s{S_TMP}"))
    a(f"s_mul_i32 s{S_TMP}, s{S_N0}, 6\ns_add_u32 s{S_TMP}, s{S_TMP}, {OUT_POS}\ns_mul_i32 s{S_TMP2}, s{S_NN}, 6")
    a(srd(SR_OUTP, P_OUT, f"s{S_TMP2}", f"s{S_TMP}"))
    T_RO = T_DST; T_DBG = T_SRC
    if opt.late:
        a(f"""
        buffer_load_dwordx4 {v(SRC,4)}, v{V16}, {s(T_SRC,4)}, s{S_O4} offen {opt.ld}
        buffer_load_dwordx4 {v(EA,4)}, v{V32}, {s(T_EA,4)}, s{S_O8} offen {opt.ld}
        buffer_load_dwordx4 {v(EA+4,4)}, v{V32}, {s(T_EA,4)}, s{S_O8} offen offset:16 {opt.ld}
        s_add_u32 s{S_O4}, s{S_O4}, 8192
        s_add_u32 s{S_O8}, s{S_O8}, 16384
        buffer_load_dwordx4 {v(SRC+4,4)}, v{V16}, {s(T_SRC,4)}, s{S_O4} offen {opt.ld}
        buffer_load_dwordx4 {v(EA+8,4)}, v{V32}, {s(T_EA,4)}, s{S_O8} offen {opt.ld}
        buffer_load_dwordx4 {v(EA+12,4)}, v{V32}, {s(T_EA,4)}, s{S_O8} offen offset:16 {opt.ld}
        """)
    a(f"s_mul_i32 s{S_TMP}, s2, {REC_STRIDE}\ns_mul_i32 s{S_TMP2}, s{S_CN}, 12")
    a(srd(T_RO, P_WS, f"s{S_TMP2}", f"s{S_TMP}")); a(srd(T_DBG, P_DBG, 256))
    ONE = r.PQ
    a(f"""
    v_mov_b32 v{ONE}, 1
    s_lshr_b32 s3, s{S_CN}, 2
    v_cmp_gt_u32 {s(MA[0],2)}, s3, v0
    v_add_u32 v{t2}, 512, v0
    v_cmp_gt_u32 {s(MA[1],2)}, s3, v{t2}
    """)
    a(f"""
    s_mov_b32 s{S_C}, 0x{f2u(-LOG2E):08x}
    s_mov_b32 s{S_C+1}, 0x{f2u(-LOG2E):08x}
    s_mov_b32 s{S_ONE}, 1.0
    s_mov_b32 s{S_ONE+1}, 1.0
    s_mov_b32 s{S_MODE}, 0
    s_mov_b32 s{S_BUD}, 0x40000
    """)
    nonlocal_z = [r.T]
    def zero_region(base, size):
        assert base % 16 == 0 and size % 16 == 0
        full = size // 8192; rem = size % 8192
        a(f"v_add_u32 v{t3}, {base}, v{V16}")
        for k in range(full):
            a(f"ds_write_b128 v{t3}, {v(nonlocal_z[0],4)} offset:{k*8192}")
        if rem:
            a(f"v_cmp_gt_u32 vcc, {rem//16}, v0\ns_and_saveexec_b64 {s(S_D,2)}, vcc")
            a(f"ds_write_b128 v{t3}, {v(nonlocal_z[0],4)} offset:{full*8192}\ns_mov_b64 exec, -1")
    a(f"""
    ds_write_b128 v{L16}, {v(nonlocal_z[0],4)} offset:{L_CNT}
    v_mov_b32 v{t3}, {L_FLAG}
    ds_write_b128 v{t3}, {v(nonlocal_z[0],4)}
    """)
    zero_region(L_SIMG, 8 * 2048)
    JJ = r.SA; LB = r.HA + 0; J16 = r.HA + 1
    a(f"""
    v_and_b32 v{e_}, 31, v{r.lane}
    v_lshrrev_b32 v{hh_}, 5, v{r.lane}
    s_lshl_b32 s{S_TMP}, s{S_V}, 12
    s_add_u32 s{S_TMP}, s{S_TMP}, {L_RING}
    s_mov_b32 m0, s{S_TMP}
    v_and_b32 v{t2}, 3, v{e_}
    v_lshlrev_b32 v{t3}, 10, v{t2}
    v_lshrrev_b32 v{t4}, 2, v{e_}
    v_lshl_add_u32 v{t3}, v{t4}, 7, v{t3}
    v_add_u32 v{t3}, s{S_TMP}, v{t3}
    v_bfe_u32 v{t4}, v{e_}, 3, 1
    v_lshl_or_b32 v{t2}, v{t4}, 2, v{t2}
    v_xor_b32 v{t2}, v{t2}, v{hh_}
    """)
    for k in range(4):
        a(f"v_xor_b32 v{t4}, {2*k}, v{t2}\nv_lshl_add_u32 v{r.HA+k}, v{t4}, 4, v{t3}")
    a(f"""
    v_and_b32 v{t2}, 7, v{r.lane}
    v_bfe_u32 v{t3}, v{r.lane}, 4, 1
    v_lshlrev_b32 v{t3}, 2, v{t3}
    v_xor_b32 v{t2}, v{t2}, v{t3}
    """)
    for k in range(4):
        a(f"v_xor_b32 v{t4}, {k}, v{t2}\nv_lshlrev_b32 v{r.XK+k}, 4, v{t4}")
    JJ = r.SA; LB = r.A1a; J16 = r.A2a; MX = r.NA; TA = r.Desc
    LP = r.K; LPT = r.PI
    a(f"""
    s_lshl_b32 s{S_TMP}, s{S_V}, 11
    s_add_u32 s{S_TMP}, s{S_TMP}, {L_SIMG}
    v_bfe_u32 v{t2}, v{e_}, 1, 3
    v_lshlrev_b32 v{t2}, 3, v{t2}
    v_lshl_add_u32 v{t2}, v{e_}, 6, v{t2}
    v_add_u32 v{r.SB}, s{S_TMP}, v{t2}
    v_bfe_u32 v{t2}, v{r.lane}, 2, 2
    v_lshl_add_u32 v{t2}, v{hh_}, 2, v{t2}
    v_bfe_u32 v{t3}, v{r.lane}, 4, 1
    v_and_b32 v{t4}, 3, v{r.lane}
    v_lshl_or_b32 v{t3}, v{t3}, 2, v{t4}
    v_lshlrev_b32 v{LP}, 3, v{t3}
    v_bfe_u32 v{t4}, v{r.lane}, 2, 2
    v_lshl_add_u32 v{LP}, v{t4}, 7, v{LP}
    v_lshrrev_b32 v{t4}, 1, v{t2}
    v_xor_b32 v{t3}, v{t3}, v{t4}
    v_lshlrev_b32 v{t2}, 6, v{t2}
    v_add_u32 v{t2}, s{S_TMP}, v{t2}
    v_lshl_add_u32 v{r.TR0}, v{t3}, 3, v{t2}
    v_xor_b32 v{t3}, 4, v{t3}
    v_lshl_add_u32 v{r.TR1}, v{t3}, 3, v{t2}
    v_add_u32 v{r.TR1}, 512, v{r.TR1}
    v_lshlrev_b32 v{t2}, 4, v{e_}
    v_add_u32 v{r.AWl}, {L_AT}, v{t2}
    v_lshrrev_b32 v{t2}, 2, v{e_}
    v_mul_u32_u24 v{t2}, {ACC_ROW}, v{t2}
    v_add_u32 v{t2}, {L_ACC}, v{t2}
    v_lshl_add_u32 v{r.FlM}, v{hh_}, 4, v{t2}
    v_and_b32 v{t3}, 3, v{e_}
    v_lshl_add_u32 v{r.FlP}, v{t3}, 2, v{t2}
    v_add_u32 v{r.FlP}, 256, v{r.FlP}
    v_lshlrev_b32 v{t2}, 7, v{hh_}
    v_add_u32 v{r.WXa}, {L_WX}, v{t2}
    v_bfe_u32 v{t2}, v{e_}, 4, 1
    v_add_u32 v{r.ML}, -1, v{t2}
    v_lshrrev_b32 v{t5}, 4, v0
    v_lshlrev_b32 v{TA}, 10, v{t5}
    v_and_b32 v{t2}, 15, v0
    v_add_u32 v{JJ}, 0x8000, v{t2}
    v_add_u32 v{J16}, 0x8010, v{t2}
    s_mov_b32 s{S_TMP}, {REC_STRIDE}
    v_mul_lo_u32 v{LB}, v{t5}, s{S_TMP}
    v_mad_u32_u24 v{LB}, v{t2}, 12, v{LB}
    v_mov_b32 v{MX}, 0
    s_mov_b32 s{S_TMP}, 5350
    s_mov_b32 s{S_TMP2}, {BN}
    s_mov_b32 s3, {L_HIST}
    s_waitcnt lgkmcnt(0)
    s_barrier
    s_cmp_lg_u32 s{S_V}, 0
    s_cbranch_scc1 L_noflag
    v_mov_b32 v{t3}, s2
    s_waitcnt vmcnt(8)
    s_mov_b64 exec, 1
    buffer_store_byte v{ONE}, v{t3}, {s(T_DBG,4)}, 0 offen sc1
    s_mov_b64 exec, -1
    L_noflag:
    """)
    stamp(a, r, 2)
    for half in range(2):
        a(f"s_waitcnt vmcnt({7 - half})\ns_mov_b64 exec, {s(MA[half],2)}")
        for k in range(4 * half, 4 * half + 4):
            a(f"""
            v_mul_u32_u24 v{BINA+k}, s{S_TMP}, v{DST+k}
            v_lshrrev_b32 v{BINA+k}, 19, v{BINA+k}
            v_mul_u32_u24 v{t2}, s{S_TMP2}, v{BINA+k}
            v_lshl_add_u32 v{BINA+k}, v{BINA+k}, 2, s3
            ds_add_rtn_u32 v{RNK+k}, v{BINA+k}, v{ONE}
            v_sub_u32 v{DST+k}, v{DST+k}, v{t2}
            """)
    C = r.T; TE = r.M
    a(f"""
    s_mov_b64 exec, -1
    v_add_u32 v{t2}, {L_HIST}, v{L16}
    s_waitcnt lgkmcnt(0)
    s_barrier
    """)
    stamp(a, r, 3)
    a(f"""
    ds_read_b128 {v(C,4)}, v{t2}
    s_waitcnt lgkmcnt(0)
    v_add_u32 v{C+5}, v{C}, v{C+1}
    v_add_u32 v{C+6}, v{C+5}, v{C+2}
    v_add_u32 v{C+7}, v{C+6}, v{C+3}
    v_mov_b32 v{C+4}, v{C+7}
    """)
    a(wave_scan(C + 4))
    a(f"""
    v_sub_u32 v{C+8}, v{C+4}, v{C+7}
    v_add_u32 v{C+9}, v{C+8}, v{C}
    v_add_u32 v{C+10}, v{C+8}, v{C+5}
    v_add_u32 v{C+11}, v{C+8}, v{C+6}
    ds_write_b128 v{t2}, {v(C+8,4)} offset:1024
    """)
    for half in range(2):
        a(f"s_mov_b64 exec, {s(MA[half],2)}")
        for k in range(4 * half, 4 * half + 4):
            a(f"ds_read_b32 v{BINA+k}, v{BINA+k} offset:1024")
    TEV = r.A1 + 12
    a("s_mov_b64 exec, -1")
    for k in range(4):
        a(f"v_mul_u32_u24 v{TEV+k}, 12, v{C+8+k}\nv_lshl_or_b32 v{TEV+k}, v{C+k}, 16, v{TEV+k}\nv_or_b32 v{TEV+k}, 0x80000000, v{TEV+k}")
    for half in range(2):
        a(f"s_waitcnt vmcnt({3 - 3*half}) lgkmcnt({4 if half == 0 else 8})\ns_mov_b64 exec, {s(MA[half],2)}")
        for k in range(4 * half, 4 * half + 4):
            a(f"""
            v_add_lshl_u32 v{BINA+k}, v{BINA+k}, v{RNK+k}, 4
            v_lshl_or_b32 v{SRC+k}, v{SRC+k}, 7, v{DST+k}
            ds_write_b64 v{BINA+k}, {v(EA+2*k,2)} offset:{L_STG}
            ds_write_b32 v{BINA+k}, v{SRC+k} offset:{L_STG+8}
            """)
    T_X2 = T_WE
    a(f"""
    s_mov_b64 exec, -1
    v_lshrrev_b32 v{t2}, 3, v{r.lane}
    v_and_b32 v{t3}, 7, v{r.lane}
    v_lshrrev_b32 v{t4}, 4, v{r.lane}
    s_lshl_b32 s3, s{S_T}, 2
    v_or_b32 v{t4}, s3, v{t4}
    v_xor_b32 v{t3}, v{t3}, v{t4}
    v_lshlrev_b32 v{t3}, 4, v{t3}
    v_lshl_add_u32 v{t3}, v{t2}, 7, v{t3}
    v_and_b32 v{t2}, 127, v0
    v_add_u32 v{t2}, s{S_N0}, v{t2}
    v_mul_u32_u24 v{t2}, 6, v{t2}
    v_and_b32 v{t4}, 3, v{r.lane}
    v_bfe_u32 v{t5}, v{r.lane}, 2, 3
    v_lshl_or_b32 v{t4}, v{t5}, 3, v{t4}
    v_lshrrev_b32 v{t5}, 5, v{r.lane}
    v_lshl_or_b32 v{t4}, v{t5}, 2, v{t4}
    v_lshlrev_b32 v{t4}, 1, v{t4}
    s_lshl_b32 s{S_TMP}, s{S_V}, 10
    s_add_u32 s{S_TMP2}, s{S_TMP}, 8192
    """)
    a(srd(T_WE, P_WE, 133 * 128))
    a(f"""
    s_cmp_lg_u32 s{S_V}, 1
    s_cbranch_scc1 L_nowe
    s_mov_b32 m0, {L_WE+16384}
    s_mov_b32 s3, 16384
    buffer_load_dwordx4 v{L16}, {s(T_WE,4)}, s3 offen lds
    L_nowe:
    s_add_u32 m0, s{S_TMP}, {L_WE}
    s_nop 0
    buffer_load_dwordx4 v{L16}, {s(T_WE,4)}, s{S_TMP} offen lds
    s_add_u32 m0, s{S_TMP}, {L_WE+8192}
    """)
    a(srd(T_WH, P_WH, 128 * 128))
    a(f"buffer_load_dwordx4 v{L16}, {s(T_WE,4)}, s{S_TMP2} offen lds\ns_add_u32 m0, s{S_TMP}, {L_WH1}")
    a(srd(T_H, P_H, N * 128))
    a(f"""
    buffer_load_dwordx4 v{L16}, {s(T_WH,4)}, s{S_TMP} offen lds
    s_add_u32 m0, s{S_TMP}, {L_WH2}
    s_lshl_b32 s3, s{S_N0}, 7
    buffer_load_dwordx4 v{L16}, {s(T_WH,4)}, s{S_TMP2} offen lds
    s_add_u32 s3, s3, s{S_TMP}
    s_add_u32 m0, s{S_TMP}, {L_HST}
    s_add_u32 s{S_TMP2}, s3, 8192
    buffer_load_dwordx4 v{t3}, {s(T_H,4)}, s3 offen lds
    s_add_u32 m0, s{S_TMP}, {L_HST+8192}
    """)
    a(srd(T_POS, P_POS, N * 6))
    a(f"buffer_load_dwordx4 v{t3}, {s(T_H,4)}, s{S_TMP2} offen lds")
    a(srd(T_X2, P_WX, 128))
    a(f"""
    buffer_load_ushort v{POSR}, v{t2}, {s(T_POS,4)}, 0 offen
    buffer_load_ushort v{POSR+1}, v{t2}, {s(T_POS,4)}, 0 offen offset:2
    buffer_load_ushort v{POSR+2}, v{t2}, {s(T_POS,4)}, 0 offen offset:4
    buffer_load_ushort v{POSR+3}, v{t4}, {s(T_X2,4)}, 0 offen
    """)
    a(f"s_lshl_b32 s{S_TMP}, s{S_V}, 12\ns_add_u32 m0, s{S_TMP}, {L_RING}")
    a(f"""
    s_mov_b32 s{S_NL}, 0x0000bf80
    s_mov_b32 s{S_NH}, 0xbf800000
    s_mov_b32 s{S_MSK}, 0xffffff80
    s_mov_b32 s{S_SO0}, 3072
    s_mov_b32 s{S_SO1}, 2048
    s_mov_b32 s{S_SO2}, 1024
    s_mov_b32 s{S_HI}, 0
    s_mov_b32 s{S_HI+1}, -1
    v_mul_u32_u24 v{t2}, 12, v0
    v_add_u32 v{t5}, {L_WE + 128*128}, v{LP}
    v_lshl_add_u32 v{LP}, v{hh_}, 10, v{LP}
    s_lshl_b32 s{S_TMP}, s{S_T}, 6
    s_add_u32 s{S_TMP}, s{S_TMP}, {L_ACC}
    v_add_u32 v{LPT}, s{S_TMP}, v{LP}
    s_lshl_b32 s{S_TMP2}, s{S_RT}, 11
    v_add_u32 v{t4}, s{S_TMP2}, v{LPT}
    s_waitcnt lgkmcnt(0)
    s_barrier
    """)
    stamp(a, r, 4)
    CO = r.D0; DBGV = r.A1 + 8
    for k in range(7):
        a(f"ds_read_b96 {v(CO+4*k,3)}, v{V16} offset:{L_STG + k*8192}")
    for k in range(7):
        a(f"s_mov_b32 s3, {k*6144}\ns_waitcnt lgkmcnt({6-k})")
        a(f"buffer_store_dwordx3 {v(CO+4*k,3)}, v{t2}, {s(T_RO,4)}, s3 offen {opt.st}")
    a(f"v_lshlrev_b32 v{DBGV+1}, 2, v{r.lane}\ns_cmp_lg_u32 s{S_V}, 0\ns_cbranch_scc1 L_nodbg\nbuffer_load_dword v{DBGV}, v{DBGV+1}, {s(T_DBG,4)}, 0 offen sc1\nL_nodbg:")
    stamp(a, r, 5)
    Q2 = r.W2; UP = r.W2 + 4; Q5 = r.W2 + 16; NTD = r.W2 + 24
    a("s_waitcnt vmcnt(7)\ns_barrier")
    a(f"ds_read_b64_tr_b16 {v(Q2,2)}, v{t4} offset:{8192+8192}\nds_read_b64_tr_b16 {v(Q2+2,2)}, v{t4} offset:{8192+8192+512}")
    for t in range(2):
        a(f"ds_read_b64_tr_b16 {v(Q5+4*t,2)}, v{t5} offset:{128+64*t}\nds_read_b64_tr_b16 {v(Q5+4*t+2,2)}, v{t5} offset:{64*t}")
    a(f"""
    v_lshl_or_b32 v{r.PS}, v{POSR+1}, 16, v{POSR}
    v_mov_b32 v{r.PS+1}, v{POSR+2}
    v_add_u32 v{t3}, s{S_N0}, v0
    v_cmp_gt_u32 vcc, {BN}, v0
    s_and_saveexec_b64 {s(S_D,2)}, vcc
    buffer_store_dwordx2 {v(r.PS,2)}, v{t3}, {s(SR_P4,4)}, 0 idxen {opt.st}
    s_mov_b64 exec, -1
    v_and_b32 v{t2}, 1, v0
    v_lshlrev_b32 v{t2}, 4, v{t2}
    v_mov_b32 v{t3}, 0x3f80
    v_lshlrev_b32 v{t2}, v{t2}, v{t3}
    v_bfe_u32 v{t3}, v0, 1, 2
    """)
    for d in range(4):
        a(f"v_cmp_eq_u32 vcc, {d}, v{t3}\ns_nop 1\nv_cndmask_b32 v{NTD+d}, 0, v{t2}, vcc")
    a(f"""
    v_lshlrev_b32 v{NTD+4}, 16, v{POSR}
    v_lshlrev_b32 v{NTD+5}, 16, v{POSR+1}
    v_lshlrev_b32 v{NTD+6}, 16, v{POSR+2}
    v_and_b32 v{t3}, 7, v0
    v_lshlrev_b32 v{NTD+7}, 3, v{t3}
    v_lshlrev_b32 v{POSR+3}, 16, v{POSR+3}
    v_mul_f32 v{POSR+3}, 0x{f2u(-LN2):08x}, v{POSR+3}
    v_lshlrev_b32 v{t3}, 2, v{r.lane}
    v_add_u32 v{t3}, {L_WX}, v{t3}
    s_waitcnt lgkmcnt(0)
    ds_write_b32 v{t3}, v{POSR+3}
    s_cmp_ge_u32 s{S_V}, 4
    s_cbranch_scc1 L_nont
    ds_write_b128 v{V32}, {v(NTD,4)}
    ds_write_b128 v{V32}, {v(NTD+4,4)} offset:16
    L_nont:
    """)
    for j in range(4):
        a(f"v_lshlrev_b32 v{UP+2*j}, 16, v{Q2+j}\nv_and_b32 v{UP+2*j+1}, 0xffff0000, v{Q2+j}")
    for j in range(4):
        a(f"v_pk_mul_f32 {v(UP+2*j,2)}, {v(UP+2*j,2)}, {s(S_C,2)}")
    for j in range(4):
        a(f"v_cvt_pk_bf16_f32 v{Q2+j}, v{UP+2*j}, v{UP+2*j+1}")
    a(f"""
    s_lshl_b32 s{S_TMP}, s{S_V}, 10
    s_add_u32 s{S_TMP}, s{S_TMP}, {L_W2S}
    v_add_u32 v{t4}, s{S_TMP}, v{L16}
    ds_write_b128 v{t4}, {v(Q2,4)}
    """)
    for t in range(2):
        x = Q5 + 4 * t; B = r.BW + 4 * t
        a(f"""
        v_lshlrev_b32 v{UP}, 16, v{x}
        v_and_b32 v{UP+1}, 0xffff0000, v{x}
        v_lshlrev_b32 v{UP+2}, 16, v{x+1}
        v_and_b32 v{UP+3}, 0xffff0000, v{x+1}
        v_lshlrev_b32 v{UP+4}, 16, v{x+2}
        v_pk_mul_f32 {v(UP,2)}, {v(UP,2)}, {s(S_C,2)}
        v_pk_mul_f32 {v(UP+2,2)}, {v(UP+2,2)}, {s(S_C,2)}
        v_mul_f32 v{UP+4}, s{S_C}, v{UP+4}
        v_cvt_pk_bf16_f32 v{B}, v{UP}, v{UP+1}
        v_cvt_pk_bf16_f32 v{B+1}, v{UP+2}, v{UP+3}
        v_cvt_pk_bf16_f32 v{UP+5}, v{UP+4}, v{UP+4}
        v_lshlrev_b32 v{UP+5}, 16, v{UP+5}
        v_sub_f32 v{UP+5}, v{UP+4}, v{UP+5}
        v_cvt_pk_bf16_f32 v{B+2}, v{UP+4}, v{UP+5}
        v_mov_b32 v{B+3}, 0
        """)
    W1F = r.T; WH1F = r.W2; AD = r.XM; HI = r.W2 + 16
    a(f"""
    s_lshl_b32 s{S_TMP}, s{S_RT}, 12
    s_add_u32 s{S_TMP}, s{S_TMP}, {L_HST}
    v_lshlrev_b32 v{t2}, 7, v{e_}
    v_add_u32 v{t2}, s{S_TMP}, v{t2}
    v_bfe_u32 v{t3}, v{e_}, 1, 3
    v_xor_b32 v{t5}, v{t3}, v{hh_}
    """)
    for k in range(4):
        a(f"v_xor_b32 v{t4}, {2*k}, v{t5}\nv_lshl_add_u32 v{t4}, v{t4}, 4, v{t2}\nds_read_b128 {v(r.H+4*k,4)}, v{t4}")
    for k in range(4):
        a(f"ds_read_b64_tr_b16 {v(W1F+4*k,2)}, v{LPT} offset:{8192+2048*k}\nds_read_b64_tr_b16 {v(W1F+4*k+2,2)}, v{LPT} offset:{8192+2048*k+512}")
    a(f"s_lshl_b32 s{S_TMP}, s{S_T}, 2\nv_xor_b32 v{t5}, s{S_TMP}, v{t3}\nv_lshl_add_u32 v{t2}, v{hh_}, 3, v{t2}")
    for k in range(4):
        a(f"ds_read_b64_tr_b16 {v(WH1F+4*k,2)}, v{LPT} offset:{2048*k}\nds_read_b64_tr_b16 {v(WH1F+4*k+2,2)}, v{LPT} offset:{2048*k+512}")
    for g in range(4):
        a(f"v_xor_b32 v{t4}, {g}, v{t5}\nv_lshl_add_u32 v{t4}, v{t4}, 4, v{t2}\nds_read_b64 {v(r.HR+2*g,2)}, v{t4}")
    stamp(a, r, 6)
    a(f"""
    s_lshl_b32 s3, s2, 10
    s_mov_b32 s{S_TMP}, 0x01010101
    s_waitcnt vmcnt(0) lgkmcnt(0)
    s_cmp_lg_u32 s{S_V}, 0
    s_cbranch_scc1 L_chkd
    L_chk:
    v_cmp_ne_u32 vcc, s{S_TMP}, v{DBGV}
    s_cbranch_vccz L_chkd
    s_sub_u32 s{S_BUD}, s{S_BUD}, 1
    s_cbranch_scc1 L_chkd
    s_sleep 8
    buffer_load_dword v{DBGV}, v{DBGV+1}, {s(T_DBG,4)}, 0 offen sc1
    s_waitcnt vmcnt(0)
    s_branch L_chk
    L_chkd:
    s_barrier
    s_cmp_lg_u32 s{S_V}, 0
    s_cbranch_scc1 L_nopub
    buffer_store_dwordx4 {v(TEV,4)}, v{L16}, {s(SR_TAB,4)}, s3 offen {opt.st}
    L_nopub:
    s_mov_b32 s{S_TMP}, s{S_B4}
    """)
    stamp(a, r, 7)
    def REC(q): return r.D0 + 4 * q
    TABV = r.M; ADR = r.T
    for rr in range(8):
        a(f"buffer_load_dword v{TABV+rr}, v{TA}, {s(SR_TAB,4)}, s{S_TMP} offen {opt.hl}")
        if rr < 7: a(f"s_add_u32 s{S_TMP}, s{S_TMP}, 32768")
    for k in range(4): a(mfma(AD, r.H+4*k, W1F+4*k, AD if k else None))
    for k in range(4): a(mfma(r.U, WH1F+4*k, r.H+4*k, r.U if k else None))
    a(f"""
    s_lshl_b32 s{S_TMP}, s{S_RT}, 12
    s_lshl_b32 s{S_TMP2}, s{S_T}, 9
    s_add_u32 s{S_TMP}, s{S_TMP}, s{S_TMP2}
    s_add_u32 s{S_TMP}, s{S_TMP}, {L_AT}
    v_lshlrev_b32 v{t2}, 4, v{e_}
    v_lshl_add_u32 v{t2}, v{hh_}, 3, v{t2}
    v_add_u32 v{t2}, s{S_TMP}, v{t2}
    v_add_u32 v{t4}, {L_W2S}, v{L16}
    """)
    for g in range(4):
        x = AD + 4 * g
        if g == 2: a(f"s_cmp_eq_u32 s{S_RT}, 3\ns_cbranch_scc1 L_at_done")
        a(f"""
        v_pk_mul_f32 {v(x,2)}, {v(x,2)}, {s(S_C,2)}
        v_pk_mul_f32 {v(x+2,2)}, {v(x+2,2)}, {s(S_C,2)}
        v_cvt_pk_bf16_f32 v{x}, v{x}, v{x+1}
        v_cvt_pk_bf16_f32 v{x+1}, v{x+2}, v{x+3}
        ds_write_b64 v{t2}, {v(x,2)} offset:{g*1024}
        """)
    a.label("L_at_done")
    for sidx in range(4):
        for t in range(2):
            a(f"ds_read_b128 {v(r.W2+16*t+4*sidx,4)}, v{t4} offset:{(2*sidx+t)*1024}")
    a(f"v_mov_b32 v{r.XM+3}, 0")
    for i in range(2, 8, 2): a(f"v_mov_b64 {v(r.S+i,2)}, 0")
    for rr in range(8):
        a(f"""
        s_waitcnt vmcnt({7 + rr})
        L_w{rr}:
        v_cmp_le_i32 vcc, 0, v{TABV+rr}
        s_cbranch_vccz L_g{rr}
        s_sub_u32 s{S_BUD}, s{S_BUD}, 1
        s_cbranch_scc1 L_g{rr}
        s_sleep 2
        """)
        for r2 in range(rr, 8):
            a(f"s_add_u32 s{S_TMP}, s{S_B4}, {r2*32768}\nbuffer_load_dword v{TABV+r2}, v{TA}, {s(SR_TAB,4)}, s{S_TMP} offen {opt.hl}")
        a(f"""
        s_waitcnt vmcnt(0)
        s_branch L_w{rr}
        L_g{rr}:
        v_cmp_lt_u32_sdwa {s(S_M+2*rr,2)}, v{JJ}, v{TABV+rr} src0_sel:DWORD src1_sel:WORD_1
        v_cmp_lt_u32_sdwa {s(S_M+16+2*rr,2)}, v{J16}, v{TABV+rr} src0_sel:DWORD src1_sel:WORD_1
        v_max_u32 v{MX}, v{MX}, v{TABV+rr}
        v_add_u32_sdwa v{ADR+rr}, v{LB}, v{TABV+rr} {SDWA} src1_sel:WORD_0
        s_mov_b32 s{S_TMP}, {rr*32*REC_STRIDE}
        s_mov_b64 exec, {s(S_M+2*rr,2)}
        buffer_load_dwordx3 {v(REC(rr),3)}, v{ADR+rr}, {s(SR_REC,4)}, s{S_TMP} offen {opt.hl}
        s_mov_b64 exec, {s(S_M+16+2*rr,2)}
        buffer_load_dwordx3 {v(REC(8+rr),3)}, v{ADR+rr}, {s(SR_REC,4)}, s{S_TMP} offen offset:192 {opt.hl}
        s_mov_b64 exec, -1
        """)
    stamp(a, r, 8)
    stamp(a, r, 9)
    if opt.warm:
        a(f"""
        s_lshr_b32 s{S_TMP}, s2, 3
        s_lshl_b32 s{S_TMP}, s{S_TMP}, 3
        s_add_u32 s{S_TMP}, s{S_TMP}, s{S_V}
        s_mul_i32 s{S_TMP}, s{S_TMP}, {opt.warm*1024}
        s_add_u32 s{S_TMP}, s{S_TMP}, 3072
        v_lshlrev_b32 v{t2}, 4, v{r.lane}
        """)
        for k in range(opt.warm):
            if k and k % 4 == 0: a(f"s_add_u32 s{S_TMP}, s{S_TMP}, 4096")
            a(f"buffer_load_dwordx4 {v(r.H+12,4)}, v{t2}, {s(SR_HD,4)}, s{S_TMP} offen offset:{(k%4)*1024}")
    a(f"""
    v_cmp_lt_u32 vcc, 0x{((0x8000+33)<<16)-1:08x}, v{MX}
    s_and_saveexec_b64 {s(S_D,2)}, vcc
    v_mov_b32 v{t2}, {L_FLAG}
    ds_write_b32 v{t2}, v{ONE}
    s_mov_b64 exec, -1
    """)
    order = [x for rr in range(8) for x in (rr, 8 + rr)]
    a.label("L_rank")
    for n_, q in enumerate(order):
        if q < 8: a(f"s_waitcnt vmcnt({opt.warm + 14 - n_ + (q if opt.pf else 0)})")
        else: a(f"s_cmp_eq_u64 {s(S_M+2*q,2)}, 0\ns_cbranch_scc1 L_rk{q}")
        a(f"""
        s_mov_b64 exec, {s(S_M+2*q,2)}
        v_lshlrev_b32_sdwa v{ADR+q}, 2, v{REC(q)+2} {SDWA} src1_sel:BYTE_0
        ds_add_rtn_u32 v{REC(q)+3}, v{ADR+q}, v{ONE} offset:{L_CNT}
        """)
        if q < 8 and opt.pf: a(f"buffer_load_ubyte v{r.V4}, v{REC(q)+2}, {s(SR_HD,4)}, s{S_SO0} offen")
        if q >= 8: a.label(f"L_rk{q}")
    a(f"""
    s_mov_b64 exec, -1
    v_lshlrev_b32 v{t2}, 3, v{r.lane}
    v_mov_b32 v{t3}, {L_FLAG}
    s_mov_b32 s{S_PADM}, {0 if opt.slide else 31}
    s_cmp_lg_u32 s{S_MODE}, 0
    s_cselect_b32 s{S_PADM}, 31, s{S_PADM}
    s_waitcnt lgkmcnt(0)
    s_barrier
    """)
    stamp(a, r, 10)
    a(f"s_cmp_lg_u32 s{S_MODE}, 0\ns_cbranch_scc1 L_noaz")
    nonlocal_z[0] = r.S + 4
    zero_region(L_ACC, 112 * ACC_ROW)
    a(f"v_mov_b32 v{t3}, {L_FLAG}\nL_noaz:")
    CA = r.M; CB = r.M + 2; FL = r.M + 4; SS = r.M + 5; TT = r.M + 6; PADR = r.M + 7; O = r.M + 8; INC = r.M + 12; SP = r.M + 13; N1 = r.M + 14
    a(f"""
    ds_read_b64 {v(CA,2)}, v{t2} offset:{L_CNT}
    ds_read_b64 {v(CB,2)}, v{t2} offset:{L_CNT+512}
    ds_read_b32 v{FL}, v{t3}
    v_and_b32 v{t4}, 3, v{r.lane}
    v_cmp_eq_u32 {s(S_NB,2)}, 3, v{t4}
    s_waitcnt lgkmcnt(0)
    v_add_u32 v{N1}, v{CA}, v{CB}
    v_add3_u32 v{SS}, v{N1}, v{CA+1}, v{CB+1}
    v_readfirstlane_b32 s{S_TMP3}, v{FL}
    s_nop 0
    v_add_u32_dpp v{TT}, v{SS}, v{SS} quad_perm:[1,0,3,2] row_mask:0xf bank_mask:0xf
    s_nop 1
    v_add_u32_dpp v{TT}, v{TT}, v{TT} quad_perm:[2,3,0,1] row_mask:0xf bank_mask:0xf
    L_scan:
    v_sub_u32 v{PADR}, 0, v{TT}
    v_and_b32 v{PADR}, s{S_PADM}, v{PADR}
    v_cndmask_b32 v{PADR}, 0, v{PADR}, {s(S_NB,2)}
    v_add_u32 v{SP}, v{SS}, v{PADR}
    v_mov_b32 v{INC}, v{SP}
    """)
    a(wave_scan(INC))
    a(f"""
    s_nop 0
    v_readlane_b32 s{S_TMP}, v{INC}, 63
    v_sub_u32 v{O}, v{INC}, v{SP}
    s_cmp_lg_u32 s{S_PADM}, 0
    s_cbranch_scc1 L_scan_pad
    v_mov_b32_dpp v{PADR}, v{INC} quad_perm:[1,1,3,3] row_mask:0xf bank_mask:0xf
    v_add_u32 v{t4}, -1, v{O}
    v_xor_b32 v{t4}, v{t4}, v{PADR}
    v_cmp_gt_u32 vcc, 32, v{t4}
    v_cmp_gt_u32 {s(S_NBN,2)}, s{S_TMP}, v{PADR}
    s_and_b64 vcc, vcc, {s(S_NBN,2)}
    s_and_b32 vcc_lo, vcc_lo, 0x55555555
    s_and_b32 vcc_hi, vcc_hi, 0x55555555
    v_mov_b32 v{PADR}, s{S_TMP}
    s_cmp_eq_u64 vcc, 0
    s_cbranch_scc1 L_scan_done
    s_mov_b32 s{S_PADM}, 31
    s_branch L_scan
    L_scan_pad:
    v_mov_b32_dpp v{PADR}, v{O} quad_perm:[0,0,0,0] row_mask:0xf bank_mask:0xf
    v_add_u32 v{PADR}, v{PADR}, v{TT}
    v_mov_b64 {v(r.H,2)}, 0
    v_mov_b64 {v(r.H+2,2)}, 0
    ds_write_b128 v{V16}, {v(r.H,4)} offset:{L_REC}
    ds_write_b128 v{V16}, {v(r.H,4)} offset:{L_REC+8192}
    ds_write_b128 v{V16}, {v(r.H,4)} offset:{L_REC+16384}
    ds_write_b128 v{V16}, {v(r.H,4)} offset:{L_REC+24576}
    ds_write_b128 v{V16}, {v(r.H,4)} offset:{L_REC+32768}
    ds_write_b128 v{V16}, {v(r.H,4)} offset:{L_REC+40960}
    s_waitcnt lgkmcnt(0)
    s_barrier
    L_scan_done:
    v_lshrrev_b32 v{t3}, 1, v{r.lane}
    v_add_u32 v{t4}, s{S_TMP}, v{t3}
    v_mul_u32_u24 v{t4}, 12, v{t4}
    v_add_u32 v{t4}, {L_REC}, v{t4}
    ds_write2_b32 v{t4}, v{r.Zero}, v{r.Zero} offset0:0 offset1:1
    ds_write_b32 v{t4}, v{r.Zero} offset:8
    v_add_u32 v{O+1}, v{O}, v{N1}
    v_add_u32 v{O+2}, v{O}, v{CA}
    v_add_u32 v{O+3}, v{O+1}, v{CA+1}
    ds_write_b64 v{t2}, {v(O,2)} offset:{L_OFF}
    ds_write_b64 v{t2}, {v(O+2,2)} offset:{L_OFF+512}
    v_and_b32 v{t3}, 60, v{r.lane}
    v_add_u32 v{t3}, {L_WEND}, v{t3}
    ds_write_b32 v{t3}, v{PADR}
    s_add_u32 s{S_TMP}, s{S_TMP}, 31
    s_lshr_b32 s{S_TMP}, s{S_TMP}, 5
    s_cmp_gt_u32 s{S_TMP}, {CAPT}
    s_cselect_b32 s{S_TMP3}, 1, s{S_TMP3}
    s_cmp_lg_u32 s{S_TMP3}, 0
    s_cbranch_scc1 L_slow
    """)
    for q in order:
        if q >= 8: a(f"s_cmp_eq_u64 {s(S_M+2*q,2)}, 0\ns_cbranch_scc1 L_pa{q}")
        a(f"s_mov_b64 exec, {s(S_M+2*q,2)}\nds_read_b32 v{ADR+q}, v{ADR+q} offset:{L_OFF}")
        if q >= 8: a.label(f"L_pa{q}")
    a(f"""
    s_and_b32 s{S_T0}, s{S_V}, 3
    s_mul_i32 s{S_T0}, s{S_T0}, s{S_TMP}
    s_add_u32 s{S_NTL}, s{S_T0}, s{S_TMP}
    s_lshr_b32 s{S_T0}, s{S_T0}, 2
    s_lshr_b32 s{S_NTL}, s{S_NTL}, 2
    s_sub_u32 s{S_TMP}, s{S_NTL}, s{S_T0}
    s_mul_i32 s{S_TMP}, s{S_TMP}, {opt.split}
    s_add_u32 s{S_TMP}, s{S_TMP}, 32
    s_lshr_b32 s{S_TMP}, s{S_TMP}, 6
    s_add_u32 s{S_TMP}, s{S_TMP}, s{S_T0}
    s_cmp_lt_u32 s{S_V}, 4
    s_cselect_b32 s{S_NTL}, s{S_TMP}, s{S_NTL}
    s_cselect_b32 s{S_T0}, s{S_T0}, s{S_TMP}
    s_sub_u32 s{S_NTL}, s{S_NTL}, s{S_T0}
    s_mov_b32 s{S_TMP2}, {L_REC}
    s_waitcnt lgkmcnt(0)
    """)
    for q in order:
        if q >= 8: a(f"s_cmp_eq_u64 {s(S_M+2*q,2)}, 0\ns_cbranch_scc1 L_pb{q}")
        a(f"""
        s_mov_b64 exec, {s(S_M+2*q,2)}
        v_add_u32 v{ADR+q}, v{ADR+q}, v{REC(q)+3}
        v_mad_u32_u24 v{ADR+q}, v{ADR+q}, 12, s{S_TMP2}
        ds_write_b32 v{ADR+q}, v{REC(q)+2} offset:8
        ds_write2_b32 v{ADR+q}, v{REC(q)}, v{REC(q)+1} offset0:0 offset1:1
        """)
        if q >= 8: a.label(f"L_pb{q}")
    a(f"""
    s_mov_b64 exec, -1
    s_mul_i32 s{S_TMP}, s{S_T0}, 384
    s_add_u32 s{S_TMP}, s{S_TMP}, {L_REC}
    v_and_b32 v{t2}, 31, v{r.lane}
    v_mul_u32_u24 v{t2}, 12, v{t2}
    v_add_u32 v{r.A1a}, s{S_TMP}, v{t2}
    v_lshrrev_b32 v{t2}, 3, v{r.lane}
    v_mul_u32_u24 v{t2}, 48, v{t2}
    v_add_u32 v{r.A2a}, s{S_TMP}, v{t2}
    s_sub_u32 s{S_TMP}, s{S_T0}, 1
    v_add_u32 v{t3}, s{S_TMP}, v{r.lane}
    v_mul_u32_u24 v{t2}, 384, v{t3}
    s_waitcnt lgkmcnt(0)
    s_barrier
    """)
    stamp(a, r, 11)
    a(f"s_cmp_eq_u32 s{S_NTL}, 0\ns_cbranch_scc1 L_main_end")
    a(k_reads(r, 0))
    a(f"ds_read_u8 v{t4}, v{t2} offset:{L_REC+8}")
    a(ea_read(r, 0))
    a(acc_zero(r, False))
    for i in range(0, 8, 2): a(f"v_mov_b64 {v(r.M+8+i,2)}, 0\nv_mov_b64 {v(r.S+i,2)}, 0")
    a("s_waitcnt lgkmcnt(2)")
    a(dma_addr(r) + dma_issue(r))
    a(f"""
    v_lshrrev_b32 v{r.PI}, 7, v{r.K}
    v_lshlrev_b32_sdwa v{r.NA}, 5, v{r.K} {SDWA} src1_sel:BYTE_0
    buffer_load_dwordx2 {v(r.PS,2)}, v{r.PI}, {s(SR_P4,4)}, 0 idxen
    """)
    a(pd_read(r) + k_reads(r, 1))
    a(f"""
    s_waitcnt lgkmcnt(5)
    v_and_b32 v{t4}, 0x7f, v{t4}
    v_lshrrev_b32 v{t5}, 3, v{t4}
    v_lshlrev_b32 v{t5}, 2, v{t5}
    v_add_u32 v{t5}, {L_WEND}, v{t5}
    ds_read_b32 v{t5}, v{t5}
    v_lshlrev_b32 v{t3}, 5, v{t3}
    s_waitcnt lgkmcnt(0)
    v_sub_u32 v{t5}, v{t5}, v{t3}
    v_min_u32 v{t5}, 32, v{t5}
    v_mad_u32_u24 v{t2}, v{t5}, 12, v{t2}
    ds_read_u8 v{t2}, v{t2} offset:{L_REC-4}
    v_lshl_or_b32 v{t4}, v{t5}, 16, v{t4}
    s_waitcnt lgkmcnt(0)
    v_and_b32 v{t2}, 0x7f, v{t2}
    v_lshl_or_b32 v{r.Desc}, v{t2}, 8, v{t4}
    s_nop 0
    v_readlane_b32 s{S_D}, v{r.Desc}, 1
    v_readlane_b32 s{S_ZP}, v{r.Desc}, 0
    s_nop 1
    s_and_b32 s{S_NB}, s{S_D}, 0x7c
    s_mov_b32 s{S_NBP}, s{S_NB}
    s_lshr_b32 s{S_CNT}, s{S_D}, 16
    s_bfe_u32 s{S_ZP}, s{S_ZP}, 0x80008
    s_cmp_eq_u32 s{S_T0}, 0
    s_cselect_b32 s{S_ZP}, -1, s{S_ZP}
    """)
    a(aw_reads(r, S_NB))
    a("s_waitcnt vmcnt(1)")
    a(h_reads(r))
    a("s_waitcnt lgkmcnt(0)")
    a(dma_addr(r) + dma_issue(r))
    a("s_waitcnt vmcnt(4)")
    a(geometry(r, False))
    for k in range(4): a(mfma(r.D0, r.H+4*k, r.W2+4*k, r.D0 if k else None))
    a("s_waitcnt lgkmcnt(0)")
    a(mfma(r.D0, r.XM, r.BW, r.D0))
    a(f"s_mov_b32 s{S_I}, 2\ns_add_u32 s{S_NTL}, s{S_NTL}, 1")
    if opt.prio: a(f"s_cmp_ge_u32 s{S_V}, 4\ns_cbranch_scc1 L_np\ns_setprio 1\nL_np:")
    a("s_nop 7\ns_nop 1")
    stamp(a, r, 12)
    a(".p2align 6")
    a.label("L_loop")
    pre = k_reads(r, 2) + pd_read(r) + [f"v_readlane_b32 s{S_D}, v{r.Desc}, s{S_I}"] + s_set(r)
    mf_exp = {4*k: mfma(r.D1, r.H+4*k, r.W2+16+4*k, r.D1 if k else None) for k in range(4)}
    mf_rcp = {0: mfma(r.D1, r.XM, r.BW+4, r.D1), 5: mfma(r.A1, r.M+8, r.S, r.A1), 10: mfma(r.A1, r.M+12, r.S+4, r.A1)}
    ins_exp = {2: [f"s_bfe_u32 s{S_TMP}, s{S_D}, 0x80008", f"s_add_u32 s{S_TMP2}, s{S_NB}, 8", f"s_and_b32 s{S_TMP3}, s{S_D}, 0x7c",
                   f"s_cmp_ge_u32 s{S_TMP}, s{S_TMP2}", f"s_cselect_b32 s{S_NBN}, s{S_TMP3}, s{S_NB}"],
               13: ["s_waitcnt vmcnt(1)"] + h_reads(r)}
    ins_rcp = {2: ["s_waitcnt lgkmcnt(4)"] + dma_addr(r),
               4: ["s_waitcnt lgkmcnt(0)"] + dma_issue(r),
               6: ea_read(r, 1) + [f"s_cmp_eq_u32 s{S_NBN}, s{S_NB}", "s_cbranch_scc1 L_noaw"] + aw_reads(r, S_NBN) + ["L_noaw:"],
               11: s_reads(r)}
    silu_stage(a, r, r.D0, r.M, mf_exp, mf_rcp, ins_exp, ins_rcp, pre)
    a(f"s_cmp_eq_u32 s{S_NB}, s{S_NBP}\ns_cbranch_scc1 L_noflush")
    if "flush" in opt.abl: a("s_branch L_noflush")
    a(retire_mask(r))
    a(f"s_cmp_lg_u32 s{S_MODE}, 0\ns_cbranch_scc1 L_flush_slow")
    a(flush_plain(r))
    a.label("L_noflush")
    pre = [f"s_mov_b32 s{S_NBP}, s{S_NB}", f"s_mov_b32 s{S_NB}, s{S_NBN}", f"s_lshr_b32 s{S_CNT}, s{S_D}, 16",
           "s_waitcnt vmcnt(4)"] + geometry(r, True)
    mf_exp = {4*k: mfma(r.D0, r.H+4*k, r.W2+4*k, r.D0 if k else None) for k in range(4)}
    mf_rcp = {0: mfma(r.D0, r.XM, r.BW, r.D0), 5: mfma(r.A0, r.M, r.S, r.A0), 10: mfma(r.A0, r.M+4, r.S+4, r.A0)}
    silu_stage(a, r, r.D1, r.M+8, mf_exp, mf_rcp, {15: ["s_waitcnt lgkmcnt(0)"]}, {}, pre)
    a(f"""
    s_sub_u32 s{S_TMP}, s{S_I}, 1
    s_add_u32 s{S_I}, s{S_I}, 1
    s_cmp_le_u32 s{S_I}, s{S_NTL}
    s_cbranch_scc1 L_loop
    v_readlane_b32 s{S_D}, v{r.Desc}, s{S_TMP}
    """)
    stamp(a, r, 13)
    a(mfma(r.A1, r.M+8, r.S, r.A1)); a(mfma(r.A1, r.M+12, r.S+4, r.A1))
    a(f"""
    s_mov_b32 s{S_RM}, 0xffff
    s_bitcmp1_b32 s{S_NBP}, 2
    s_cselect_b32 s{S_RM}, 0xffff0000, s{S_RM}
    s_bfe_u32 s{S_TMP}, s{S_D}, 0x80008
    s_add_u32 s{S_TMP2}, s{S_NBP}, 4
    s_cmp_ge_u32 s{S_TMP}, s{S_TMP2}
    s_cselect_b32 s{S_RM}, -1, s{S_RM}
    """)
    a(flush_addr(r))
    a("s_waitcnt vmcnt(0) lgkmcnt(0)\ns_nop 3")
    a(flush_dot(r))
    a(f"""
    s_cmp_lg_u32 s{S_MODE}, 0
    s_cbranch_scc1 L_final_slow
    s_cmp_lt_i32 s{S_ZP}, s{S_NBP}
    s_cbranch_scc1 L_main_end
    s_lshr_b32 s{S_TMP}, s{S_V}, 2
    s_lshl_b32 s{S_TMP}, s{S_TMP}, 2
    s_add_u32 s{S_TMP}, s{S_TMP}, {L_FLAG+8}
    v_mov_b32 v{r.K}, s{S_TMP}
    v_mov_b32 v{r.PI}, 1
    ds_write_b32 v{r.K}, v{r.PI}
    L_main_end:
    s_cmp_lg_u32 s{S_MODE}, 0
    s_cbranch_scc1 L_slow_next
    """)
    stamp(a, r, 14)
    a(f"v_mov_b32 v{r.K}, {L_FLAG+8}\ns_waitcnt lgkmcnt(0)\ns_barrier\nds_read_b64 {v(r.PS,2)}, v{r.K}")
    a(rmw_reads(r))
    a(f"""
    s_waitcnt lgkmcnt(9)
    v_readfirstlane_b32 s{S_TMP}, v{r.PS}
    v_readfirstlane_b32 s{S_TMP2}, v{r.PS+1}
    s_nop 3
    s_or_b32 s{S_D}, s{S_TMP}, s{S_TMP2}
    s_cbranch_scc1 L_merge_rare
    L_merge:
    s_cmp_eq_u32 s{S_NTL}, 0
    s_cbranch_scc1 L_epi
    """)
    a(rmw_writes(r))
    a.label("L_epi")
    if opt.stamp: a(f"s_sub_u32 s{S_ST}, s{S_NTL}, 1\ns_max_i32 s{S_ST}, s{S_ST}, 0\nv_writelane_b32 v{r.ST}, s{S_ST}, 30")
    WH2 = r.W2; MR = r.D0
    a(f"""
    v_and_b32 v{e_}, 31, v{r.lane}
    v_lshrrev_b32 v{hh_}, 5, v{r.lane}
    v_bfe_u32 v{t2}, v{r.lane}, 2, 2
    v_lshlrev_b32 v{t2}, 7, v{t2}
    v_bfe_u32 v{t3}, v{r.lane}, 4, 1
    v_lshl_add_u32 v{t2}, v{t3}, 5, v{t2}
    v_and_b32 v{t3}, 3, v{r.lane}
    v_lshl_add_u32 v{t2}, v{t3}, 3, v{t2}
    v_lshl_add_u32 v{t2}, v{hh_}, 10, v{t2}
    s_lshl_b32 s{S_TMP}, s{S_T}, 6
    s_add_u32 s{S_TMP}, s{S_TMP}, {L_WH2}
    v_add_u32 v{t2}, s{S_TMP}, v{t2}
    """)
    for k in range(4):
        a(f"ds_read_b64_tr_b16 {v(WH2+4*k,2)}, v{t2} offset:{2048*k}\nds_read_b64_tr_b16 {v(WH2+4*k+2,2)}, v{t2} offset:{2048*k+512}")
    a(f"""
    s_mul_i32 s{S_TMP}, s{S_RT}, {32*ACC_ROW}
    s_add_u32 s{S_TMP}, s{S_TMP}, {L_ACC}
    v_mul_u32_u24 v{t2}, {ACC_ROW}, v{e_}
    v_lshl_add_u32 v{t2}, v{hh_}, 5, v{t2}
    v_add_u32 v{t2}, s{S_TMP}, v{t2}
    v_min_u32 v{t3}, 311, v0
    v_mul_u32_u24 v{t4}, 171, v{t3}
    v_lshrrev_b32 v{t4}, 9, v{t4}
    v_mul_u32_u24 v{t5}, 3, v{t4}
    v_sub_u32 v{t5}, v{t3}, v{t5}
    v_lshlrev_b32 v{t5}, 2, v{t5}
    v_lshl_add_u32 v{r.K}, v{t4}, 5, v{t5}
    v_mul_u32_u24 v{r.PI}, {ACC_ROW}, v{t4}
    v_add_u32 v{r.PI}, v{r.PI}, v{t5}
    v_add_u32 v{r.PI}, {L_ACC+256}, v{r.PI}
    s_mov_b32 s{S_D}, 0x{f2u(-LN2):08x}
    s_mov_b32 s{S_D+1}, 0x{f2u(-LN2):08x}
    s_waitcnt lgkmcnt(0)
    s_barrier
    """)
    stamp(a, r, 15)
    for k in range(4):
        a(f"ds_read_b128 {v(MR+8*k,4)}, v{t2} offset:{64*k}\nds_read_b128 {v(MR+8*k+4,4)}, v{t2} offset:{64*k+16}")
    a(f"ds_read_b32 v{r.K}, v{r.K} offset:16\nds_read_b32 v{r.PI}, v{r.PI}")
    for k in range(4):
        a(f"s_waitcnt lgkmcnt({8-2*k})")
        for j in range(0, 8, 2):
            a(f"v_pk_mul_f32 {v(MR+8*k+j,2)}, {v(MR+8*k+j,2)}, {s(S_D,2)}")
        for j in range(4):
            a(f"v_cvt_pk_bf16_f32 v{r.H+4*k+j}, v{MR+8*k+2*j}, v{MR+8*k+2*j+1}")
        if k: a(mfma(r.U, WH2+4*(k-1), r.H+4*(k-1), r.U))
    a(f"""
    s_waitcnt lgkmcnt(0)
    v_add_f32 v{r.K}, v{r.K}, v{r.PI}
    {mfma(r.U, WH2+12, r.H+12, r.U)}
    v_cvt_pk_bf16_f32 v{r.K}, v{r.K}, v{r.K}
    v_lshlrev_b32 v{r.PI}, 1, v0
    buffer_store_short v{r.K}, v{r.PI}, {s(SR_OUTP,4)}, 0 offen {opt.ost}
    s_lshl_b32 s{S_TMP}, s{S_V}, 12
    s_add_u32 s{S_TMP}, s{S_TMP}, {L_RING}
    v_mul_u32_u24 v{t2}, 80, v{e_}
    v_lshl_add_u32 v{t2}, v{hh_}, 3, v{t2}
    v_add_u32 v{t2}, s{S_TMP}, v{t2}
    v_lshrrev_b32 v{t3}, 2, v{r.lane}
    v_and_b32 v{t4}, 3, v{r.lane}
    v_lshlrev_b32 v{t4}, 4, v{t4}
    v_lshl_add_u32 v{t5}, v{t3}, 7, v{t4}
    v_mul_u32_u24 v{t3}, 80, v{t3}
    v_add3_u32 v{t3}, v{t3}, v{t4}, s{S_TMP}
    s_lshl_b32 s{S_TMP}, s{S_RT}, 12
    s_lshl_b32 s{S_TMP2}, s{S_T}, 6
    s_add_u32 s{S_TMP}, s{S_TMP}, s{S_TMP2}
    """)
    T = r.T; U = r.U
    for j in range(8):
        a(f"v_lshlrev_b32 v{MR+2*j}, 16, v{r.HR+j}\nv_and_b32 v{MR+2*j+1}, 0xffff0000, v{r.HR+j}")
    for i in range(0, 16, 2): a(f"v_pk_mul_f32 {v(T+i,2)}, {v(U+i,2)}, {s(S_C,2)}")
    for i in range(16): a(f"v_exp_f32 v{T+i}, v{T+i}")
    for i in range(0, 16, 2): a(f"v_pk_add_f32 {v(T+i,2)}, {v(T+i,2)}, {s(S_ONE,2)}")
    for i in range(16): a(f"v_rcp_f32 v{T+i}, v{T+i}")
    for i in range(0, 16, 2): a(f"v_pk_fma_f32 {v(T+i,2)}, {v(T+i,2)}, {v(U+i,2)}, {v(MR+i,2)}")
    for i in range(0, 16, 2): a(f"v_cvt_pk_bf16_f32 v{r.M+i//2}, v{T+i}, v{T+i+1}")
    for g in range(4): a(f"ds_write_b64 v{t2}, {v(r.M+2*g,2)} offset:{16*g}")
    a(f"""
    s_waitcnt lgkmcnt(0)
    ds_read_b128 {v(r.H,4)}, v{t3}
    ds_read_b128 {v(r.H+4,4)}, v{t3} offset:1280
    s_waitcnt lgkmcnt(1)
    buffer_store_dwordx4 {v(r.H,4)}, v{t5}, {s(SR_OUT,4)}, s{S_TMP} offen {opt.ost}
    s_waitcnt lgkmcnt(0)
    buffer_store_dwordx4 {v(r.H+4,4)}, v{t5}, {s(SR_OUT,4)}, s{S_TMP} offen offset:2048 {opt.ost}
    """)
    if opt.stamp:
        stamp(a, r, 16); a("s_waitcnt vmcnt(0)"); stamp(a, r, 17); stamp(a, r, 31, True)
        a(f"""
        s_lshl_b32 s{S_ST}, s2, 4
        s_add_u32 s{S_ST}, s{S_ST}, s{S_V}
        s_lshl_b32 s{S_ST}, s{S_ST}, 8
        s_add_u32 s{S_ST}, s{S_ST}, {WS_STAMP}
        s_add_u32 s{S_ST}, s{P_WS}, s{S_ST}
        s_addc_u32 s{S_ST+1}, s{P_WS+1}, 0
        v_lshlrev_b32 v{t2}, 2, v{r.lane}
        global_store_dword v{t2}, v{r.ST}, {s(S_ST,2)}
        """)
    a("L_done:\ns_endpgm")
    a(f"""
    L_merge_rare:
    s_cmp_lg_u32 s{S_TMP}, 0
    s_cbranch_scc1 L_final_atomic
    s_cmp_ge_u32 s{S_V}, 4
    s_cbranch_scc1 L_merge_young
    s_cmp_eq_u32 s{S_NTL}, 0
    s_cbranch_scc1 L_merge_old_done
    """)
    a(rmw_writes(r))
    a("L_merge_old_done:\ns_waitcnt lgkmcnt(0)\ns_barrier\ns_branch L_epi\nL_merge_young:\ns_waitcnt lgkmcnt(0)\ns_barrier")
    a(rmw_reads(r))
    a(f"s_branch L_merge\nL_final_atomic:\ns_cmp_eq_u32 s{S_NTL}, 0\ns_cbranch_scc1 L_epi")
    a(flush_atomic(r)); a("s_branch L_epi")
    a.label("L_final_slow")
    a(flush_atomic(r)); a("s_branch L_slow_next")
    a.label("L_flush_slow")
    a(flush_addr(r)); a("s_waitcnt lgkmcnt(0)"); a(flush_dot(r)); a(flush_atomic(r)); a(acc_zero(r, True))
    a("s_branch L_noflush")
    a(f"""
    L_slow:
    s_mov_b32 s{S_MODE}, 1
    s_mov_b32 s{S_SEG}, 0
    L_slow_round:
    s_waitcnt lgkmcnt(0)
    s_barrier
    v_lshlrev_b32 v{t2}, 2, v0
    v_cmp_gt_u32 vcc, 256, v0
    s_and_saveexec_b64 {s(S_D,2)}, vcc
    ds_write_b32 v{t2}, v{r.Zero} offset:{L_CNT}
    s_mov_b64 exec, -1
    v_mov_b32 v{t2}, {L_FLAG}
    ds_write_b32 v{t2}, v{r.Zero}
    s_lshl_b32 s{S_TMP}, s{S_SEG}, 10
    s_add_u32 s{S_TMP}, s{S_TMP}, s{S_B4}
    buffer_load_dword v{t3}, v{r.Zero}, {s(SR_TAB,4)}, s{S_TMP} offen {opt.hl}
    s_mul_i32 s{S_TMP}, s{S_SEG}, {REC_STRIDE}
    v_mul_u32_u24 v{t5}, 12, v0
    s_waitcnt vmcnt(0)
    v_bfe_u32 v{t4}, v{t3}, 16, 15
    v_and_b32 v{t3}, 0xffff, v{t3}
    v_add_u32 v{t3}, v{t3}, v{t5}
    v_mov_b32 v{t2}, v0
    """)
    for q in range(7):
        a(f"""
        v_cmp_lt_u32 {s(S_M+2*q,2)}, v{t2}, v{t4}
        s_mov_b64 exec, {s(S_M+2*q,2)}
        buffer_load_dwordx3 {v(REC(q),3)}, v{t3}, {s(SR_REC,4)}, s{S_TMP} offen {opt.hl}
        s_mov_b64 exec, -1
        v_add_u32 v{t2}, 512, v{t2}
        s_add_u32 s{S_TMP}, s{S_TMP}, {512*12}
        """)
    for q in range(7, 16): a(f"s_mov_b64 {s(S_M+2*q,2)}, 0")
    a(f"""
    v_mov_b32 v{ONE}, 1
    s_waitcnt vmcnt(0) lgkmcnt(0)
    s_barrier
    s_branch L_rank
    L_slow_next:
    s_add_u32 s{S_SEG}, s{S_SEG}, 1
    s_cmp_lt_u32 s{S_SEG}, {NB}
    s_cbranch_scc1 L_slow_round
    s_branch L_epi
    """)
    return a.text(), r.n

def build():
    body, nv = gen()
    hdr = open("gather_scatter__cheap_equivariant_egnn__graph.s.ref").read().split("; Override")[0]
    acc = (nv + 3) // 4 * 4
    return hdr + f"""; @launch grid=({NB},1,1) block=(512,1,1) lds={LDS_BYTES}
.amdgcn_target "amdgcn-amd-amdhsa--gfx950"
.text
.globl {KNAME}
.p2align 8
.type {KNAME},@function
""" + body + f""".section .rodata,"a"
.p2align 6
.amdhsa_kernel {KNAME}
  .amdhsa_next_free_vgpr {nv}
  .amdhsa_next_free_sgpr 102
  .amdhsa_accum_offset {acc}
  .amdhsa_group_segment_fixed_size 0
  .amdhsa_kernarg_size 88
  .amdhsa_user_sgpr_count 2
  .amdhsa_user_sgpr_kernarg_segment_ptr 1
  .amdhsa_system_sgpr_workgroup_id_x 1
  .amdhsa_float_denorm_mode_32 3
.end_amdhsa_kernel
"""

if __name__ == "__main__":
    for arg in sys.argv[2:]:
        k, val = arg.split("=")
        cur = getattr(opt, k)
        setattr(opt, k, (val not in ("0", "False")) if isinstance(cur, bool) else type(cur)(val.replace("_", " ").replace("none", "")))
    open(sys.argv[1], "w").write(build())
    print("lds", LDS_BYTES, "vgprs", alloc().n)
```

```python
import sys, struct

N = 25000; E = 800000; NB = 256; BN = 98; CH = 3136
REC_STRIDE = CH * 12
WS_TAB = NB * REC_STRIDE
WS_P4 = WS_TAB + NB * 1024
WS_STAMP = 64 << 20
OUT_POS = N * 128
KNAME = "gather_scatter__cheap_equivariant_egnn__graph_kernel"

def f2u(x): return struct.unpack("<I", struct.pack("<f", x))[0]
LOG2E = 1.4426950408889634
LN2 = 0.6931471805599453

class Opt:
    split = 42
    prio = 1
    ld = "nt"
    st = "sc1"
    hl = "sc1"
    ost = ""
    slide = True
    late = 1
    pf = 0
    warm = 0
    abl = ""
    stamp = False
    diag = False
opt = Opt()

class Asm:
    def __init__(self): self.L = []
    def __call__(self, s):
        if isinstance(s, (list, tuple)):
            for x in s: self(x)
            return
        for x in s.strip("\n").split("\n"):
            x = x.strip()
            if not x: continue
            self.L.append(x if x.endswith(":") else "    " + x)
    def label(self, n): self.L.append(n + ":")
    def text(self): return "\n".join(self.L) + "\n"

def v(i, n=1): return f"v{i}" if n == 1 else f"v[{i}:{i+n-1}]"
def s(i, n=1): return f"s{i}" if n == 1 else f"s[{i}:{i+n-1}]"
def srd(d, p, size, off=None):
    if off is None: b = f"s_mov_b32 s{d}, s{p}\ns_mov_b32 s{d+1}, s{p+1}\n"
    else: b = f"s_add_u32 s{d}, s{p}, {off}\ns_addc_u32 s{d+1}, s{p+1}, 0\n"
    return b + f"s_mov_b32 s{d+2}, {size}\ns_mov_b32 s{d+3}, 0x00020000"
def wave_scan(r):
    o = []
    for sh in (1, 2, 4, 8):
        o.append(f"s_nop 1\nv_add_u32_dpp v{r}, v{r}, v{r} row_shr:{sh} row_mask:0xf bank_mask:0xf bound_ctrl:0")
    o.append(f"s_nop 1\nv_add_u32_dpp v{r}, v{r}, v{r} row_bcast:15 row_mask:0xa bank_mask:0xf")
    o.append(f"s_nop 1\nv_add_u32_dpp v{r}, v{r}, v{r} row_bcast:31 row_mask:0xc bank_mask:0xf")
    return o
def mfma(d, a_, b_, c=None):
    cc = "0" if c is None else v(c, 16)
    return f"v_mfma_f32_32x32x16_bf16 {v(d,16)}, {v(a_,4)}, {v(b_,4)}, {cc}"
SDWA = "dst_sel:DWORD dst_unused:UNUSED_PAD src0_sel:DWORD"

CAPT = 116
L_NT = 0
L_CNT = 8192
L_OFF = L_CNT + 1024
L_REC = L_OFF + 1024
L_RING = L_REC + CAPT * 384
L_SIMG = L_RING + 8 * 4096
L_AT = L_SIMG + 8 * 2048
L_ACC = L_AT + 14 * 1024
ACC_ROW = 272
L_WX = L_ACC + 112 * ACC_ROW
L_FLAG = L_WX + 256
L_WEND = L_FLAG + 16
L_HIST = L_WEND + 64 + 48
L_OFFA = L_HIST + 1024
L_WH2 = L_OFFA + 1024
LDS_BYTES = L_WH2 + 8192
L_STG = L_REC
L_HST = L_RING + 8192
L_W2S = L_RING + 24576
L_WH1 = L_ACC
L_WE = L_ACC + 8192
assert L_STG + CH * 16 <= L_HST and L_WE + 17408 <= L_WX and L_SIMG % 64 == 0 and LDS_BYTES <= 163840
assert L_HIST % 16 == 0 and L_ACC % 16 == 0

class R: pass
def alloc():
    r = R(); n = [1]
    def al(cnt, align=1):
        n[0] = (n[0] + align - 1) // align * align
        x = n[0]; n[0] += cnt; return x
    r.lane = al(1); r.t0 = al(1); r.t1 = al(1)
    r.D0 = al(16, 4); r.D1 = al(16); r.A0 = al(16); r.A1 = al(16)
    r.W2 = al(32); r.BW = al(8); r.H = al(16)
    r.XM = al(4); r.S = al(8); r.K4 = al(4)
    r.M = al(16); r.T = al(16); r.U = al(16); r.HR = al(8)
    r.PD = al(4); r.PS = al(2); r.PQ = al(2); r.HA = al(4); r.XK = al(4)
    for nm in "A1a A2a SB TR0 TR1 AWl Desc Zero FlM FlP WXa ML K PI NA SA t2 t3 t4 t5 ST V4 V8 V16 L16 TE".split():
        setattr(r, nm, al(1))
    r.n = n[0]
    return r

P_H, P_POS, P_EA, P_SRC, P_DST, P_WE, P_WX, P_WH, P_OUT, P_DBG, P_WS = range(4, 26, 2)
SR_HD = 28; SR_P4 = 32; SR_REC = 36; SR_TAB = 40; SR_OUT = 44; SR_OUTP = 48
S_V = 52; S_RT = 53; S_T = 54; S_B4 = 55; S_MODE = 56; S_SEG = 57
S_C = 58; S_ONE = 60; S_D = 62; S_TMP = 63; S_TMP2 = 64; S_T0 = 65; S_NTL = 66; S_I = 67; S_CNT = 68; S_TMP3 = 69
S_M = 70
S_NL = 4; S_NH = 5; S_MSK = 6; S_SO0 = 7; S_SO1 = 8; S_SO2 = 9
S_NB = 10; S_NBP = 11; S_NBN = 12; S_ZP = 13; S_RM = 14; S_PADM = 15; S_HI = 16
S_ST = 26
TS = [72 + 4 * k for k in range(7)] + [SR_OUTP]

DIAG = {0: 0, 3: 1, 4: 2, 7: 3, 10: 4, 12: 5, 13: 6, 31: 7}
def stamp(a, r, i, real=False):
    if opt.diag:
        if i in DIAG: a(f"s_waitcnt lgkmcnt(0)\ns_memrealtime {s(S_ST,2)}\ns_waitcnt lgkmcnt(0)\nv_writelane_b32 v{r.ST}, s{S_ST}, {DIAG[i]}\ns_not_b32 s{S_ST}, s{S_ST}\nv_writelane_b32 v{r.ST}, s{S_ST}, {DIAG[i]+8}")
        return
    if not opt.stamp: return
    a(f"s_waitcnt lgkmcnt(0)\n{'s_memrealtime' if real else 's_memtime'} {s(S_ST,2)}\ns_waitcnt lgkmcnt(0)\nv_writelane_b32 v{r.ST}, s{S_ST}, {i}")

def silu_stage(a0, r, D, Mo, mf_exp, mf_rcp, ins_exp, ins_rcp, pre=()):
    T = r.T
    def a(x, core=False):
        for y in ([x] if isinstance(x, str) else x):
            for z in y.split("\n"):
                z = z.strip()
                if "vmem" in opt.abl and (z.startswith("buffer_") or "vmcnt" in z): continue
                if "lds" in opt.abl and (z.startswith("ds_") or "lgkmcnt" in z): continue
                if "misc" in opt.abl and z.startswith("v_") and not core and not z.startswith("v_readlane"): continue
                a0(z)
    a(pre)
    for i in range(16):
        if i in mf_exp: a(mf_exp[i], True)
        a(f"v_exp_f32 v{T+i}, v{D+i}", True)
        a(ins_exp.get(i, ()))
    for i in range(0, 16, 2):
        a(f"v_pk_add_f32 {v(T+i,2)}, {v(T+i,2)}, {s(S_ONE,2)}", True)
    for i in range(16):
        if i in mf_rcp: a(mf_rcp[i], True)
        a(f"v_rcp_f32 v{T+i}, v{T+i}", True)
        a(ins_rcp.get(i, ()))
    for i in range(0, 16, 2):
        a(f"v_pk_mul_f32 {v(T+i,2)}, {v(T+i,2)}, {v(D+i,2)}", True)
    for i in range(0, 16, 2):
        a(f"v_cvt_pk_bf16_f32 v{Mo+i//2}, v{T+i}, v{T+i+1}", True)

def geometry(r, advance):
    o = [
        f"v_dot2_f32_bf16 v{r.t2}, v{r.PS}, s{S_NL}, v{r.PD}",
        f"v_dot2_f32_bf16 v{r.t3}, v{r.PS}, s{S_NH}, v{r.PD+1}",
        f"v_dot2_f32_bf16 v{r.t4}, v{r.PS+1}, s{S_NL}, v{r.PD+2}",
        f"v_xor_b32 v{r.SA}, v{r.SB}, v{r.PD+3}",
        f"v_lshrrev_b32 v{r.PI}, 7, v{r.K}",
        f"buffer_load_dwordx2 {v(r.PS,2)}, v{r.PI}, {s(SR_P4,4)}, 0 idxen",
        f"v_cvt_pk_bf16_f32 v{r.PQ}, v{r.t2}, v{r.t3}",
        f"v_cvt_pk_bf16_f32 v{r.t5}, v{r.t4}, 0",
        f"v_cvt_pk_bf16_f32 v{r.PQ+1}, v{r.t4}, 1.0",
        f"v_dot2_f32_bf16 v{r.t2}, v{r.PQ}, v{r.PQ}, 0",
        f"v_dot2_f32_bf16 v{r.t2}, v{r.t5}, v{r.t5}, v{r.t2}",
    ]
    if advance:
        o += [f"v_add_u32 v{r.A1a}, 384, v{r.A1a}", f"v_add_u32 v{r.A2a}, 384, v{r.A2a}", "s_nop 0"]
    else:
        o += ["s_nop 2"]
    o += [
        f"v_cvt_pk_bf16_f32 v{r.XM+2}, v{r.t2}, v{r.t2}",
        f"s_mov_b64 exec, {s(S_HI,2)}",
        f"ds_read_b128 {v(r.XM,4)}, v{r.NA}",
        "s_mov_b64 exec, -1",
        f"v_lshlrev_b32_sdwa v{r.NA}, 5, v{r.K} {SDWA} src1_sel:BYTE_0",
    ]
    return o
def k_reads(r, tile_off):
    o = tile_off * 384 + 8
    return [f"ds_read_b32 v{r.K}, v{r.A1a} offset:{o}",
            f"ds_read2_b32 {v(r.K4,2)}, v{r.A2a} offset0:{o//4} offset1:{o//4+3}",
            f"ds_read2_b32 {v(r.K4+2,2)}, v{r.A2a} offset0:{o//4+6} offset1:{o//4+9}"]
def pd_read(r): return [f"ds_read_b128 {v(r.PD,4)}, v{r.NA} offset:16"]
def dma_addr(r): return [f"v_and_or_b32 v{r.K4+k}, v{r.K4+k}, s{S_MSK}, v{r.XK+k}" for k in range(4)]
def dma_issue(r):
    so = [f"s{S_SO0}", f"s{S_SO1}", f"s{S_SO2}", "0"]
    return [f"buffer_load_dwordx4 v{r.K4+k}, {s(SR_HD,4)}, {so[k]} offen offset:{1024*k} lds" for k in range(4)]
def h_reads(r): return [f"ds_read_b128 {v(r.H+4*k,4)}, v{r.HA+k}" for k in range(4)]
def ea_read(r, tile_off):
    o = tile_off * 96
    return [f"ds_read2_b32 {v(r.XM,2)}, v{r.A1a} offset0:{o} offset1:{o+1}"]
def aw_reads(r, nb):
    return [f"s_add_u32 s{S_TMP}, s{nb}, 4",
            f"s_lshr_b32 s{S_TMP}, s{S_TMP}, 3",
            f"s_lshl_b32 s{S_TMP}, s{S_TMP}, 10",
            f"s_lshr_b32 s{S_TMP2}, s{nb}, 3",
            f"s_lshl_b32 s{S_TMP2}, s{S_TMP2}, 10",
            f"v_add_u32 v{r.t2}, s{S_TMP}, v{r.AWl}",
            f"v_add_u32 v{r.t3}, s{S_TMP2}, v{r.AWl}",
            f"s_mov_b64 exec, {s(S_HI,2)}",
            f"ds_read_b64 {v(r.BW,2)}, v{r.t2}",
            f"ds_read_b64 {v(r.BW+2,2)}, v{r.t3} offset:8",
            f"ds_read_b64 {v(r.BW+4,2)}, v{r.t2} offset:512",
            f"ds_read_b64 {v(r.BW+6,2)}, v{r.t3} offset:520",
            "s_mov_b64 exec, -1"]
def s_set(r):
    return [f"s_bfm_b64 exec, s{S_CNT}, 0", f"ds_write_b64 v{r.SA}, {v(r.PQ,2)}", "s_mov_b64 exec, -1"]
def s_reads(r):
    return [f"ds_read_b64_tr_b16 {v(r.S,2)}, v{r.TR0}",
            f"ds_read_b64_tr_b16 {v(r.S+2,2)}, v{r.TR1}",
            f"ds_read_b64_tr_b16 {v(r.S+4,2)}, v{r.TR0} offset:1024",
            f"ds_read_b64_tr_b16 {v(r.S+6,2)}, v{r.TR1} offset:1024",
            f"ds_write2_b32 v{r.SA}, v{r.Zero}, v{r.Zero} offset0:0 offset1:1"]

def flush_addr(r):
    o = [f"ds_read_b128 {v(r.T+4*q,4)}, v{r.WXa} offset:{16*q}" for q in range(4)]
    o += [f"ds_read_b128 {v(r.D0+4*q,4)}, v{r.WXa} offset:{64+16*q}" for q in range(4)]
    o += [f"s_lshr_b32 s{S_TMP}, s{S_NBP}, 3",
          f"s_mul_i32 s{S_TMP}, s{S_TMP}, {8*ACC_ROW}",
          f"s_bitcmp1_b32 s{S_NBP}, 2",
          f"s_cselect_b32 s{S_TMP2}, {8*ACC_ROW}, 0",
          f"v_and_b32 v{r.t3}, s{S_TMP2}, v{r.ML}",
          f"v_add3_u32 v{r.t2}, v{r.FlM}, v{r.t3}, s{S_TMP}",
          f"v_add3_u32 v{r.t3}, v{r.FlP}, v{r.t3}, s{S_TMP}"]
    return o
def flush_dot(r):
    o = [f"v_pk_mul_f32 {v(r.T,2)}, {v(r.T,2)}, {v(r.A0,2)}", f"v_pk_mul_f32 {v(r.D0,2)}, {v(r.D0,2)}, {v(r.A1,2)}"]
    for i in range(2, 16, 2):
        o.append(f"v_pk_fma_f32 {v(r.T,2)}, {v(r.T+i,2)}, {v(r.A0+i,2)}, {v(r.T,2)}")
        o.append(f"v_pk_fma_f32 {v(r.D0,2)}, {v(r.D0+i,2)}, {v(r.A1+i,2)}, {v(r.D0,2)}")
    o += [f"v_pk_add_f32 {v(r.T,2)}, {v(r.T,2)}, {v(r.D0,2)}",
          f"v_add_f32 v{r.t4}, v{r.T}, v{r.T+1}", f"v_add_f32 v{r.t5}, v{r.T}, v{r.T+1}", "s_nop 1",
          f"v_permlane32_swap_b32 v{r.t4}, v{r.t5}", "s_nop 1", f"v_add_f32 v{r.t4}, v{r.t4}, v{r.t5}"]
    return o
EX3 = f"s_and_b32 exec_lo, s{S_RM}, 0x88888888\ns_mov_b32 exec_hi, exec_lo"
EXP = f"s_and_b32 exec_lo, s{S_RM}, 0x77777777\ns_mov_b32 exec_hi, 0"
def acc_zero(r, masked):
    o = [f"s_mov_b32 exec_lo, s{S_RM}\ns_mov_b32 exec_hi, s{S_RM}"] if masked else []
    o += [f"v_mov_b64 {v(r.A0+i,2)}, 0" for i in range(0, 32, 2)]
    if masked: o.append("s_mov_b64 exec, -1")
    return o
def flush_plain(r):
    o = flush_addr(r) + [EX3]
    o += [f"ds_write_b128 v{r.t2}, {v(r.A0+4*q,4)} offset:{32*q}" for q in range(8)]
    o += ["s_mov_b64 exec, -1", "s_waitcnt lgkmcnt(8)"] + flush_dot(r)
    o += [EXP, f"ds_write_b32 v{r.t3}, v{r.t4}"] + acc_zero(r, True)
    return o
def flush_atomic(r):
    o = [EX3]
    for t, A in ((0, r.A0), (1, r.A1)):
        for i in range(16):
            o.append(f"ds_add_f32 v{r.t2}, v{A+i} offset:{(32*t + 8*(i>>2) + (i&3))*4}")
    o += [EXP, f"ds_add_f32 v{r.t3}, v{r.t4}", "s_mov_b64 exec, -1"]
    return o
def rmw_reads(r):
    return [EX3] + [f"ds_read_b128 {v(r.D0+4*q,4)}, v{r.t2} offset:{32*q}" for q in range(8)] + \
           [EXP, f"ds_read_b32 v{r.t5}, v{r.t3}", "s_mov_b64 exec, -1"]
def rmw_writes(r):
    o = [EX3]
    for q in range(8):
        o += ["s_waitcnt lgkmcnt(8)",
              f"v_pk_add_f32 {v(r.D0+4*q,2)}, {v(r.D0+4*q,2)}, {v(r.A0+4*q,2)}",
              f"v_pk_add_f32 {v(r.D0+4*q+2,2)}, {v(r.D0+4*q+2,2)}, {v(r.A0+4*q+2,2)}",
              f"ds_write_b128 v{r.t2}, {v(r.D0+4*q,4)} offset:{32*q}"]
    o += [EXP, "s_waitcnt lgkmcnt(8)", f"v_add_f32 v{r.t4}, v{r.t4}, v{r.t5}", f"ds_write_b32 v{r.t3}, v{r.t4}", "s_mov_b64 exec, -1"]
    return o
def retire_mask(r):
    return [f"s_mov_b32 s{S_RM}, 0xffff",
            f"s_bitcmp1_b32 s{S_NBP}, 2",
            f"s_cselect_b32 s{S_RM}, 0xffff0000, s{S_RM}",
            f"s_add_u32 s{S_TMP}, s{S_NBP}, 4",
            f"s_cmp_eq_u32 s{S_TMP}, s{S_NB}",
            f"s_cselect_b32 s{S_RM}, s{S_RM}, -1"]

def gen():
    a = Asm(); r = alloc()
    t0, t1, t2, t3, t4, t5 = r.t0, r.t1, r.t2, r.t3, r.t4, r.t5
    T_DST, T_SRC, T_EA, T_POS, T_WE, T_WH, T_H, T_X = TS
    a.label(KNAME)
    DST = r.D0; SRC = r.D0 + 8; EA = r.D0 + 16; BINA = r.D0 + 32; RNK = r.D0 + 40
    V16, V32, L16 = r.V16, r.V8, r.L16
    POSR = r.PD
    S_CN = S_T0; S_O4 = S_NTL; S_O8 = S_CNT; S_N0 = S_SEG; S_NN = S_D; S_BUD = S_I
    MA = [80, 82]
    e_, hh_ = t0, t1
    a(f"""
    s_cmp_ge_u32 s2, {NB}
    s_cbranch_scc1 L_done
    s_load_dwordx16 s[4:19], s[0:1], 0
    s_and_b32 s3, s2, 7
    s_lshl_b32 s3, s3, 5
    s_lshr_b32 s2, s2, 3
    s_or_b32 s2, s2, s3
    s_load_dwordx4 s[20:23], s[0:1], 64
    s_load_dwordx2 s[24:25], s[0:1], 80
    v_lshrrev_b32 v{t0}, 6, v0
    v_and_b32 v{r.lane}, 63, v0
    v_readfirstlane_b32 s{S_V}, v{t0}
    v_mov_b32 v{r.Zero}, 0
    v_lshlrev_b32 v{V16}, 4, v0
    v_lshlrev_b32 v{V32}, 5, v0
    v_lshlrev_b32 v{L16}, 4, v{r.lane}
    v_mov_b64 {v(r.T,2)}, 0
    v_mov_b64 {v(r.T+2,2)}, 0
    s_mul_i32 s{S_O4}, s2, {CH*4}
    s_lshl_b32 s{S_O8}, s{S_O4}, 1
    s_mov_b32 s{S_CN}, {CH}
    s_cmp_eq_u32 s2, {NB-1}
    s_cselect_b32 s{S_CN}, {E-(NB-1)*CH}, s{S_CN}
    s_lshl_b32 s3, s{S_CN}, 2
    s_add_u32 s3, s3, s{S_O4}
    s_lshl_b32 s{S_TMP3}, s3, 1
    s_add_u32 s{S_TMP}, s{S_O4}, 8192
    s_add_u32 s{S_TMP2}, s{S_O8}, 16384
    s_lshl_b32 s{S_MODE}, s2, 10
    s_waitcnt lgkmcnt(0)
    """)
    a(srd(SR_TAB, P_WS, NB * 1024, WS_TAB))
    a(f"s_cmp_lg_u32 s{S_V}, 0\ns_cbranch_scc1 L_noclr\nbuffer_store_dwordx4 {v(r.T,4)}, v{L16}, {s(SR_TAB,4)}, s{S_MODE} offen {opt.st}\nL_noclr:")
    a(srd(T_DST, P_DST, "s3"))
    a(f"""
    buffer_load_dwordx4 {v(DST,4)}, v{V16}, {s(T_DST,4)}, s{S_O4} offen {opt.ld}
    buffer_load_dwordx4 {v(DST+4,4)}, v{V16}, {s(T_DST,4)}, s{S_TMP} offen {opt.ld}
    """)
    a(srd(T_SRC, P_SRC, "s3")); a(srd(T_EA, P_EA, f"s{S_TMP3}"))
    if not opt.late:
        a(f"""
        buffer_load_dwordx4 {v(SRC,4)}, v{V16}, {s(T_SRC,4)}, s{S_O4} offen {opt.ld}
        buffer_load_dwordx4 {v(EA,4)}, v{V32}, {s(T_EA,4)}, s{S_O8} offen {opt.ld}
        buffer_load_dwordx4 {v(EA+4,4)}, v{V32}, {s(T_EA,4)}, s{S_O8} offen offset:16 {opt.ld}
        s_add_u32 s{S_O4}, s{S_O4}, 8192
        s_add_u32 s{S_O8}, s{S_O8}, 16384
        buffer_load_dwordx4 {v(SRC+4,4)}, v{V16}, {s(T_SRC,4)}, s{S_O4} offen {opt.ld}
        buffer_load_dwordx4 {v(EA+8,4)}, v{V32}, {s(T_EA,4)}, s{S_O8} offen {opt.ld}
        buffer_load_dwordx4 {v(EA+12,4)}, v{V32}, {s(T_EA,4)}, s{S_O8} offen offset:16 {opt.ld}
        """)
    if opt.stamp or opt.diag: a(f"v_mov_b32 v{r.ST}, 0")
    stamp(a, r, 0, True); stamp(a, r, 1)
    a(f"""
    v_add_u32 v{t3}, {L_HIST}, v{L16}
    ds_write_b128 v{t3}, {v(r.T,4)}
    s_mul_i32 s{S_N0}, s2, {BN}
    s_lshl_b32 s{S_B4}, s2, 2
    s_lshr_b32 s{S_RT}, s{S_V}, 1
    s_and_b32 s{S_T}, s{S_V}, 1
    """)
    NY = 10
    a(f"""
    s_sub_u32 s{SR_HD}, s{P_H}, 3072
    s_subb_u32 s{SR_HD+1}, s{P_H+1}, 0
    s_mov_b32 s{SR_HD+2}, {N*128+3072}
    s_mov_b32 s{SR_HD+3}, 0x00020000
    """)
    a(srd(SR_REC, P_WS, NB * REC_STRIDE)); a(srd(SR_P4, P_WS, N, WS_P4))
    a(f"""
    s_and_b32 s{SR_P4+1}, s{SR_P4+1}, 0xffff
    s_or_b32 s{SR_P4+1}, s{SR_P4+1}, 0x80000
    s_sub_u32 s{S_NN}, {N}, s{S_N0}
    s_min_u32 s{S_NN}, s{S_NN}, {BN}
    s_lshl_b32 s{S_TMP}, s{S_N0}, 7
    s_lshl_b32 s{S_TMP2}, s{S_NN}, 7
    """)
    a(srd(SR_OUT, P_OUT, f"s{S_TMP2}", f"s{S_TMP}"))
    a(f"s_mul_i32 s{S_TMP}, s{S_N0}, 6\ns_add_u32 s{S_TMP}, s{S_TMP}, {OUT_POS}\ns_mul_i32 s{S_TMP2}, s{S_NN}, 6")
    a(srd(SR_OUTP, P_OUT, f"s{S_TMP2}", f"s{S_TMP}"))
    T_RO = T_DST; T_DBG = T_SRC
    if opt.late:
        a(f"""
        buffer_load_dwordx4 {v(SRC,4)}, v{V16}, {s(T_SRC,4)}, s{S_O4} offen {opt.ld}
        buffer_load_dwordx4 {v(EA,4)}, v{V32}, {s(T_EA,4)}, s{S_O8} offen {opt.ld}
        buffer_load_dwordx4 {v(EA+4,4)}, v{V32}, {s(T_EA,4)}, s{S_O8} offen offset:16 {opt.ld}
        s_add_u32 s{S_O4}, s{S_O4}, 8192
        s_add_u32 s{S_O8}, s{S_O8}, 16384
        buffer_load_dwordx4 {v(SRC+4,4)}, v{V16}, {s(T_SRC,4)}, s{S_O4} offen {opt.ld}
        buffer_load_dwordx4 {v(EA+8,4)}, v{V32}, {s(T_EA,4)}, s{S_O8} offen {opt.ld}
        buffer_load_dwordx4 {v(EA+12,4)}, v{V32}, {s(T_EA,4)}, s{S_O8} offen offset:16 {opt.ld}
        """)
    a(f"s_mul_i32 s{S_TMP}, s2, {REC_STRIDE}\ns_mul_i32 s{S_TMP2}, s{S_CN}, 12")
    a(srd(T_RO, P_WS, f"s{S_TMP2}", f"s{S_TMP}")); a(srd(T_DBG, P_DBG, 256))
    ONE = r.PQ
    a(f"""
    v_mov_b32 v{ONE}, 1
    s_lshr_b32 s3, s{S_CN}, 2
    v_cmp_gt_u32 {s(MA[0],2)}, s3, v0
    v_add_u32 v{t2}, 512, v0
    v_cmp_gt_u32 {s(MA[1],2)}, s3, v{t2}
    """)
    a(f"""
    s_mov_b32 s{S_C}, 0x{f2u(-LOG2E):08x}
    s_mov_b32 s{S_C+1}, 0x{f2u(-LOG2E):08x}
    s_mov_b32 s{S_ONE}, 1.0
    s_mov_b32 s{S_ONE+1}, 1.0
    s_mov_b32 s{S_MODE}, 0
    s_mov_b32 s{S_BUD}, 0x40000
    """)
    nonlocal_z = [r.T]
    def zero_region(base, size):
        assert base % 16 == 0 and size % 16 == 0
        full = size // 8192; rem = size % 8192
        a(f"v_add_u32 v{t3}, {base}, v{V16}")
        for k in range(full):
            a(f"ds_write_b128 v{t3}, {v(nonlocal_z[0],4)} offset:{k*8192}")
        if rem:
            a(f"v_cmp_gt_u32 vcc, {rem//16}, v0\ns_and_saveexec_b64 {s(S_D,2)}, vcc")
            a(f"ds_write_b128 v{t3}, {v(nonlocal_z[0],4)} offset:{full*8192}\ns_mov_b64 exec, -1")
    a(f"""
    ds_write_b128 v{L16}, {v(nonlocal_z[0],4)} offset:{L_CNT}
    v_mov_b32 v{t3}, {L_FLAG}
    ds_write_b128 v{t3}, {v(nonlocal_z[0],4)}
    """)
    zero_region(L_SIMG, 8 * 2048)
    JJ = r.SA; LB = r.HA + 0; J16 = r.HA + 1
    a(f"""
    v_and_b32 v{e_}, 31, v{r.lane}
    v_lshrrev_b32 v{hh_}, 5, v{r.lane}
    s_lshl_b32 s{S_TMP}, s{S_V}, 12
    s_add_u32 s{S_TMP}, s{S_TMP}, {L_RING}
    s_mov_b32 m0, s{S_TMP}
    v_and_b32 v{t2}, 3, v{e_}
    v_lshlrev_b32 v{t3}, 10, v{t2}
    v_lshrrev_b32 v{t4}, 2, v{e_}
    v_lshl_add_u32 v{t3}, v{t4}, 7, v{t3}
    v_add_u32 v{t3}, s{S_TMP}, v{t3}
    v_bfe_u32 v{t4}, v{e_}, 3, 1
    v_lshl_or_b32 v{t2}, v{t4}, 2, v{t2}
    v_xor_b32 v{t2}, v{t2}, v{hh_}
    """)
    for k in range(4):
        a(f"v_xor_b32 v{t4}, {2*k}, v{t2}\nv_lshl_add_u32 v{r.HA+k}, v{t4}, 4, v{t3}")
    a(f"""
    v_and_b32 v{t2}, 7, v{r.lane}
    v_bfe_u32 v{t3}, v{r.lane}, 4, 1
    v_lshlrev_b32 v{t3}, 2, v{t3}
    v_xor_b32 v{t2}, v{t2}, v{t3}
    """)
    for k in range(4):
        a(f"v_xor_b32 v{t4}, {k}, v{t2}\nv_lshlrev_b32 v{r.XK+k}, 4, v{t4}")
    JJ = r.SA; LB = r.A1a; J16 = r.A2a; MX = r.NA; TA = r.Desc
    LP = r.K; LPT = r.PI
    a(f"""
    s_lshl_b32 s{S_TMP}, s{S_V}, 11
    s_add_u32 s{S_TMP}, s{S_TMP}, {L_SIMG}
    v_bfe_u32 v{t2}, v{e_}, 1, 3
    v_lshlrev_b32 v{t2}, 3, v{t2}
    v_lshl_add_u32 v{t2}, v{e_}, 6, v{t2}
    v_add_u32 v{r.SB}, s{S_TMP}, v{t2}
    v_bfe_u32 v{t2}, v{r.lane}, 2, 2
    v_lshl_add_u32 v{t2}, v{hh_}, 2, v{t2}
    v_bfe_u32 v{t3}, v{r.lane}, 4, 1
    v_and_b32 v{t4}, 3, v{r.lane}
    v_lshl_or_b32 v{t3}, v{t3}, 2, v{t4}
    v_lshlrev_b32 v{LP}, 3, v{t3}
    v_bfe_u32 v{t4}, v{r.lane}, 2, 2
    v_lshl_add_u32 v{LP}, v{t4}, 7, v{LP}
    v_lshrrev_b32 v{t4}, 1, v{t2}
    v_xor_b32 v{t3}, v{t3}, v{t4}
    v_lshlrev_b32 v{t2}, 6, v{t2}
    v_add_u32 v{t2}, s{S_TMP}, v{t2}
    v_lshl_add_u32 v{r.TR0}, v{t3}, 3, v{t2}
    v_xor_b32 v{t3}, 4, v{t3}
    v_lshl_add_u32 v{r.TR1}, v{t3}, 3, v{t2}
    v_add_u32 v{r.TR1}, 512, v{r.TR1}
    v_lshlrev_b32 v{t2}, 4, v{e_}
    v_add_u32 v{r.AWl}, {L_AT}, v{t2}
    v_lshrrev_b32 v{t2}, 2, v{e_}
    v_mul_u32_u24 v{t2}, {ACC_ROW}, v{t2}
    v_add_u32 v{t2}, {L_ACC}, v{t2}
    v_lshl_add_u32 v{r.FlM}, v{hh_}, 4, v{t2}
    v_and_b32 v{t3}, 3, v{e_}
    v_lshl_add_u32 v{r.FlP}, v{t3}, 2, v{t2}
    v_add_u32 v{r.FlP}, 256, v{r.FlP}
    v_lshlrev_b32 v{t2}, 7, v{hh_}
    v_add_u32 v{r.WXa}, {L_WX}, v{t2}
    v_bfe_u32 v{t2}, v{e_}, 4, 1
    v_add_u32 v{r.ML}, -1, v{t2}
    v_lshrrev_b32 v{t5}, 4, v0
    v_lshlrev_b32 v{TA}, 10, v{t5}
    v_and_b32 v{t2}, 15, v0
    v_add_u32 v{JJ}, 0x8000, v{t2}
    v_add_u32 v{J16}, 0x8010, v{t2}
    s_mov_b32 s{S_TMP}, {REC_STRIDE}
    v_mul_lo_u32 v{LB}, v{t5}, s{S_TMP}
    v_mad_u32_u24 v{LB}, v{t2}, 12, v{LB}
    v_mov_b32 v{MX}, 0
    s_mov_b32 s{S_TMP}, 5350
    s_mov_b32 s{S_TMP2}, {BN}
    s_mov_b32 s3, {L_HIST}
    s_waitcnt lgkmcnt(0)
    s_barrier
    s_cmp_lg_u32 s{S_V}, 0
    s_cbranch_scc1 L_noflag
    v_mov_b32 v{t3}, s2
    s_waitcnt vmcnt(8)
    s_mov_b64 exec, 1
    buffer_store_byte v{ONE}, v{t3}, {s(T_DBG,4)}, 0 offen sc1
    s_mov_b64 exec, -1
    L_noflag:
    """)
    stamp(a, r, 2)
    for half in range(2):
        a(f"s_waitcnt vmcnt({7 - half})\ns_mov_b64 exec, {s(MA[half],2)}")
        for k in range(4 * half, 4 * half + 4):
            a(f"""
            v_mul_u32_u24 v{BINA+k}, s{S_TMP}, v{DST+k}
            v_lshrrev_b32 v{BINA+k}, 19, v{BINA+k}
            v_mul_u32_u24 v{t2}, s{S_TMP2}, v{BINA+k}
            v_lshl_add_u32 v{BINA+k}, v{BINA+k}, 2, s3
            ds_add_rtn_u32 v{RNK+k}, v{BINA+k}, v{ONE}
            v_sub_u32 v{DST+k}, v{DST+k}, v{t2}
            """)
    C = r.T; TE = r.M
    a(f"""
    s_mov_b64 exec, -1
    v_add_u32 v{t2}, {L_HIST}, v{L16}
    s_waitcnt lgkmcnt(0)
    s_barrier
    """)
    stamp(a, r, 3)
    a(f"""
    ds_read_b128 {v(C,4)}, v{t2}
    s_waitcnt lgkmcnt(0)
    v_add_u32 v{C+5}, v{C}, v{C+1}
    v_add_u32 v{C+6}, v{C+5}, v{C+2}
    v_add_u32 v{C+7}, v{C+6}, v{C+3}
    v_mov_b32 v{C+4}, v{C+7}
    """)
    a(wave_scan(C + 4))
    a(f"""
    v_sub_u32 v{C+8}, v{C+4}, v{C+7}
    v_add_u32 v{C+9}, v{C+8}, v{C}
    v_add_u32 v{C+10}, v{C+8}, v{C+5}
    v_add_u32 v{C+11}, v{C+8}, v{C+6}
    ds_write_b128 v{t2}, {v(C+8,4)} offset:1024
    """)
    for half in range(2):
        a(f"s_mov_b64 exec, {s(MA[half],2)}")
        for k in range(4 * half, 4 * half + 4):
            a(f"ds_read_b32 v{BINA+k}, v{BINA+k} offset:1024")
    TEV = r.A1 + 12
    a("s_mov_b64 exec, -1")
    for k in range(4):
        a(f"v_mul_u32_u24 v{TEV+k}, 12, v{C+8+k}\nv_lshl_or_b32 v{TEV+k}, v{C+k}, 16, v{TEV+k}\nv_or_b32 v{TEV+k}, 0x80000000, v{TEV+k}")
    for half in range(2):
        a(f"s_waitcnt vmcnt({3 - 3*half}) lgkmcnt({4 if half == 0 else 8})\ns_mov_b64 exec, {s(MA[half],2)}")
        for k in range(4 * half, 4 * half + 4):
            a(f"""
            v_add_lshl_u32 v{BINA+k}, v{BINA+k}, v{RNK+k}, 4
            v_lshl_or_b32 v{SRC+k}, v{SRC+k}, 7, v{DST+k}
            ds_write_b64 v{BINA+k}, {v(EA+2*k,2)} offset:{L_STG}
            ds_write_b32 v{BINA+k}, v{SRC+k} offset:{L_STG+8}
            """)
    T_X2 = T_WE
    a(f"""
    s_mov_b64 exec, -1
    v_lshrrev_b32 v{t2}, 3, v{r.lane}
    v_and_b32 v{t3}, 7, v{r.lane}
    v_lshrrev_b32 v{t4}, 4, v{r.lane}
    s_lshl_b32 s3, s{S_T}, 2
    v_or_b32 v{t4}, s3, v{t4}
    v_xor_b32 v{t3}, v{t3}, v{t4}
    v_lshlrev_b32 v{t3}, 4, v{t3}
    v_lshl_add_u32 v{t3}, v{t2}, 7, v{t3}
    v_and_b32 v{t2}, 127, v0
    v_add_u32 v{t2}, s{S_N0}, v{t2}
    v_mul_u32_u24 v{t2}, 6, v{t2}
    v_and_b32 v{t4}, 3, v{r.lane}
    v_bfe_u32 v{t5}, v{r.lane}, 2, 3
    v_lshl_or_b32 v{t4}, v{t5}, 3, v{t4}
    v_lshrrev_b32 v{t5}, 5, v{r.lane}
    v_lshl_or_b32 v{t4}, v{t5}, 2, v{t4}
    v_lshlrev_b32 v{t4}, 1, v{t4}
    s_lshl_b32 s{S_TMP}, s{S_V}, 10
    s_add_u32 s{S_TMP2}, s{S_TMP}, 8192
    """)
    a(srd(T_WE, P_WE, 133 * 128))
    a(f"""
    s_cmp_lg_u32 s{S_V}, 1
    s_cbranch_scc1 L_nowe
    s_mov_b32 m0, {L_WE+16384}
    s_mov_b32 s3, 16384
    buffer_load_dwordx4 v{L16}, {s(T_WE,4)}, s3 offen lds
    L_nowe:
    s_add_u32 m0, s{S_TMP}, {L_WE}
    s_nop 0
    buffer_load_dwordx4 v{L16}, {s(T_WE,4)}, s{S_TMP} offen lds
    s_add_u32 m0, s{S_TMP}, {L_WE+8192}
    """)
    a(srd(T_WH, P_WH, 128 * 128))
    a(f"buffer_load_dwordx4 v{L16}, {s(T_WE,4)}, s{S_TMP2} offen lds\ns_add_u32 m0, s{S_TMP}, {L_WH1}")
    a(srd(T_H, P_H, N * 128))
    a(f"""
    buffer_load_dwordx4 v{L16}, {s(T_WH,4)}, s{S_TMP} offen lds
    s_add_u32 m0, s{S_TMP}, {L_WH2}
    s_lshl_b32 s3, s{S_N0}, 7
    buffer_load_dwordx4 v{L16}, {s(T_WH,4)}, s{S_TMP2} offen lds
    s_add_u32 s3, s3, s{S_TMP}
    s_add_u32 m0, s{S_TMP}, {L_HST}
    s_add_u32 s{S_TMP2}, s3, 8192
    buffer_load_dwordx4 v{t3}, {s(T_H,4)}, s3 offen lds
    s_add_u32 m0, s{S_TMP}, {L_HST+8192}
    """)
    a(srd(T_POS, P_POS, N * 6))
    a(f"buffer_load_dwordx4 v{t3}, {s(T_H,4)}, s{S_TMP2} offen lds")
    a(srd(T_X2, P_WX, 128))
    a(f"""
    buffer_load_ushort v{POSR}, v{t2}, {s(T_POS,4)}, 0 offen
    buffer_load_ushort v{POSR+1}, v{t2}, {s(T_POS,4)}, 0 offen offset:2
    buffer_load_ushort v{POSR+2}, v{t2}, {s(T_POS,4)}, 0 offen offset:4
    buffer_load_ushort v{POSR+3}, v{t4}, {s(T_X2,4)}, 0 offen
    """)
    a(f"s_lshl_b32 s{S_TMP}, s{S_V}, 12\ns_add_u32 m0, s{S_TMP}, {L_RING}")
    a(f"""
    s_mov_b32 s{S_NL}, 0x0000bf80
    s_mov_b32 s{S_NH}, 0xbf800000
    s_mov_b32 s{S_MSK}, 0xffffff80
    s_mov_b32 s{S_SO0}, 3072
    s_mov_b32 s{S_SO1}, 2048
    s_mov_b32 s{S_SO2}, 1024
    s_mov_b32 s{S_HI}, 0
    s_mov_b32 s{S_HI+1}, -1
    v_mul_u32_u24 v{t2}, 12, v0
    v_add_u32 v{t5}, {L_WE + 128*128}, v{LP}
    v_lshl_add_u32 v{LP}, v{hh_}, 10, v{LP}
    s_lshl_b32 s{S_TMP}, s{S_T}, 6
    s_add_u32 s{S_TMP}, s{S_TMP}, {L_ACC}
    v_add_u32 v{LPT}, s{S_TMP}, v{LP}
    s_lshl_b32 s{S_TMP2}, s{S_RT}, 11
    v_add_u32 v{t4}, s{S_TMP2}, v{LPT}
    s_waitcnt lgkmcnt(0)
    s_barrier
    """)
    stamp(a, r, 4)
    CO = r.D0; DBGV = r.A1 + 8
    for k in range(7):
        a(f"ds_read_b96 {v(CO+4*k,3)}, v{V16} offset:{L_STG + k*8192}")
    for k in range(7):
        a(f"s_mov_b32 s3, {k*6144}\ns_waitcnt lgkmcnt({6-k})")
        a(f"buffer_store_dwordx3 {v(CO+4*k,3)}, v{t2}, {s(T_RO,4)}, s3 offen {opt.st}")
    a(f"v_lshlrev_b32 v{DBGV+1}, 2, v{r.lane}\ns_cmp_lg_u32 s{S_V}, 0\ns_cbranch_scc1 L_nodbg\nbuffer_load_dword v{DBGV}, v{DBGV+1}, {s(T_DBG,4)}, 0 offen sc1\nL_nodbg:")
    stamp(a, r, 5)
    Q2 = r.W2; UP = r.W2 + 4; Q5 = r.W2 + 16; NTD = r.W2 + 24
    a("s_waitcnt vmcnt(7)\ns_barrier")
    a(f"ds_read_b64_tr_b16 {v(Q2,2)}, v{t4} offset:{8192+8192}\nds_read_b64_tr_b16 {v(Q2+2,2)}, v{t4} offset:{8192+8192+512}")
    for t in range(2):
        a(f"ds_read_b64_tr_b16 {v(Q5+4*t,2)}, v{t5} offset:{128+64*t}\nds_read_b64_tr_b16 {v(Q5+4*t+2,2)}, v{t5} offset:{64*t}")
    a(f"""
    v_lshl_or_b32 v{r.PS}, v{POSR+1}, 16, v{POSR}
    v_mov_b32 v{r.PS+1}, v{POSR+2}
    v_add_u32 v{t3}, s{S_N0}, v0
    v_cmp_gt_u32 vcc, {BN}, v0
    s_and_saveexec_b64 {s(S_D,2)}, vcc
    buffer_store_dwordx2 {v(r.PS,2)}, v{t3}, {s(SR_P4,4)}, 0 idxen {opt.st}
    s_mov_b64 exec, -1
    v_and_b32 v{t2}, 1, v0
    v_lshlrev_b32 v{t2}, 4, v{t2}
    v_mov_b32 v{t3}, 0x3f80
    v_lshlrev_b32 v{t2}, v{t2}, v{t3}
    v_bfe_u32 v{t3}, v0, 1, 2
    """)
    for d in range(4):
        a(f"v_cmp_eq_u32 vcc, {d}, v{t3}\ns_nop 1\nv_cndmask_b32 v{NTD+d}, 0, v{t2}, vcc")
    a(f"""
    v_lshlrev_b32 v{NTD+4}, 16, v{POSR}
    v_lshlrev_b32 v{NTD+5}, 16, v{POSR+1}
    v_lshlrev_b32 v{NTD+6}, 16, v{POSR+2}
    v_and_b32 v{t3}, 7, v0
    v_lshlrev_b32 v{NTD+7}, 3, v{t3}
    v_lshlrev_b32 v{POSR+3}, 16, v{POSR+3}
    v_mul_f32 v{POSR+3}, 0x{f2u(-LN2):08x}, v{POSR+3}
    v_lshlrev_b32 v{t3}, 2, v{r.lane}
    v_add_u32 v{t3}, {L_WX}, v{t3}
    s_waitcnt lgkmcnt(0)
    ds_write_b32 v{t3}, v{POSR+3}
    s_cmp_ge_u32 s{S_V}, 4
    s_cbranch_scc1 L_nont
    ds_write_b128 v{V32}, {v(NTD,4)}
    ds_write_b128 v{V32}, {v(NTD+4,4)} offset:16
    L_nont:
    """)
    for j in range(4):
        a(f"v_lshlrev_b32 v{UP+2*j}, 16, v{Q2+j}\nv_and_b32 v{UP+2*j+1}, 0xffff0000, v{Q2+j}")
    for j in range(4):
        a(f"v_pk_mul_f32 {v(UP+2*j,2)}, {v(UP+2*j,2)}, {s(S_C,2)}")
    for j in range(4):
        a(f"v_cvt_pk_bf16_f32 v{Q2+j}, v{UP+2*j}, v{UP+2*j+1}")
    a(f"""
    s_lshl_b32 s{S_TMP}, s{S_V}, 10
    s_add_u32 s{S_TMP}, s{S_TMP}, {L_W2S}
    v_add_u32 v{t4}, s{S_TMP}, v{L16}
    ds_write_b128 v{t4}, {v(Q2,4)}
    """)
    for t in range(2):
        x = Q5 + 4 * t; B = r.BW + 4 * t
        a(f"""
        v_lshlrev_b32 v{UP}, 16, v{x}
        v_and_b32 v{UP+1}, 0xffff0000, v{x}
        v_lshlrev_b32 v{UP+2}, 16, v{x+1}
        v_and_b32 v{UP+3}, 0xffff0000, v{x+1}
        v_lshlrev_b32 v{UP+4}, 16, v{x+2}
        v_pk_mul_f32 {v(UP,2)}, {v(UP,2)}, {s(S_C,2)}
        v_pk_mul_f32 {v(UP+2,2)}, {v(UP+2,2)}, {s(S_C,2)}
        v_mul_f32 v{UP+4}, s{S_C}, v{UP+4}
        v_cvt_pk_bf16_f32 v{B}, v{UP}, v{UP+1}
        v_cvt_pk_bf16_f32 v{B+1}, v{UP+2}, v{UP+3}
        v_cvt_pk_bf16_f32 v{UP+5}, v{UP+4}, v{UP+4}
        v_lshlrev_b32 v{UP+5}, 16, v{UP+5}
        v_sub_f32 v{UP+5}, v{UP+4}, v{UP+5}
        v_cvt_pk_bf16_f32 v{B+2}, v{UP+4}, v{UP+5}
        v_mov_b32 v{B+3}, 0
        """)
    W1F = r.T; WH1F = r.W2; AD = r.XM; HI = r.W2 + 16
    a(f"""
    s_lshl_b32 s{S_TMP}, s{S_RT}, 12
    s_add_u32 s{S_TMP}, s{S_TMP}, {L_HST}
    v_lshlrev_b32 v{t2}, 7, v{e_}
    v_add_u32 v{t2}, s{S_TMP}, v{t2}
    v_bfe_u32 v{t3}, v{e_}, 1, 3
    v_xor_b32 v{t5}, v{t3}, v{hh_}
    """)
    for k in range(4):
        a(f"v_xor_b32 v{t4}, {2*k}, v{t5}\nv_lshl_add_u32 v{t4}, v{t4}, 4, v{t2}\nds_read_b128 {v(r.H+4*k,4)}, v{t4}")
    for k in range(4):
        a(f"ds_read_b64_tr_b16 {v(W1F+4*k,2)}, v{LPT} offset:{8192+2048*k}\nds_read_b64_tr_b16 {v(W1F+4*k+2,2)}, v{LPT} offset:{8192+2048*k+512}")
    a(f"s_lshl_b32 s{S_TMP}, s{S_T}, 2\nv_xor_b32 v{t5}, s{S_TMP}, v{t3}\nv_lshl_add_u32 v{t2}, v{hh_}, 3, v{t2}")
    for k in range(4):
        a(f"ds_read_b64_tr_b16 {v(WH1F+4*k,2)}, v{LPT} offset:{2048*k}\nds_read_b64_tr_b16 {v(WH1F+4*k+2,2)}, v{LPT} offset:{2048*k+512}")
    for g in range(4):
        a(f"v_xor_b32 v{t4}, {g}, v{t5}\nv_lshl_add_u32 v{t4}, v{t4}, 4, v{t2}\nds_read_b64 {v(r.HR+2*g,2)}, v{t4}")
    stamp(a, r, 6)
    a(f"""
    s_lshl_b32 s3, s2, 10
    s_mov_b32 s{S_TMP}, 0x01010101
    s_waitcnt vmcnt(0) lgkmcnt(0)
    s_cmp_lg_u32 s{S_V}, 0
    s_cbranch_scc1 L_chkd
    L_chk:
    v_cmp_ne_u32 vcc, s{S_TMP}, v{DBGV}
    s_cbranch_vccz L_chkd
    s_sub_u32 s{S_BUD}, s{S_BUD}, 1
    s_cbranch_scc1 L_chkd
    s_sleep 8
    buffer_load_dword v{DBGV}, v{DBGV+1}, {s(T_DBG,4)}, 0 offen sc1
    s_waitcnt vmcnt(0)
    s_branch L_chk
    L_chkd:
    s_barrier
    s_cmp_lg_u32 s{S_V}, 0
    s_cbranch_scc1 L_nopub
    buffer_store_dwordx4 {v(TEV,4)}, v{L16}, {s(SR_TAB,4)}, s3 offen {opt.st}
    L_nopub:
    s_mov_b32 s{S_TMP}, s{S_B4}
    """)
    stamp(a, r, 7)
    def REC(q): return r.D0 + 4 * q
    TABV = r.M; ADR = r.T
    for rr in range(8):
        a(f"buffer_load_dword v{TABV+rr}, v{TA}, {s(SR_TAB,4)}, s{S_TMP} offen {opt.hl}")
        if rr < 7: a(f"s_add_u32 s{S_TMP}, s{S_TMP}, 32768")
    for k in range(4): a(mfma(AD, r.H+4*k, W1F+4*k, AD if k else None))
    for k in range(4): a(mfma(r.U, WH1F+4*k, r.H+4*k, r.U if k else None))
    a(f"""
    s_lshl_b32 s{S_TMP}, s{S_RT}, 12
    s_lshl_b32 s{S_TMP2}, s{S_T}, 9
    s_add_u32 s{S_TMP}, s{S_TMP}, s{S_TMP2}
    s_add_u32 s{S_TMP}, s{S_TMP}, {L_AT}
    v_lshlrev_b32 v{t2}, 4, v{e_}
    v_lshl_add_u32 v{t2}, v{hh_}, 3, v{t2}
    v_add_u32 v{t2}, s{S_TMP}, v{t2}
    v_add_u32 v{t4}, {L_W2S}, v{L16}
    """)
    for g in range(4):
        x = AD + 4 * g
        if g == 2: a(f"s_cmp_eq_u32 s{S_RT}, 3\ns_cbranch_scc1 L_at_done")
        a(f"""
        v_pk_mul_f32 {v(x,2)}, {v(x,2)}, {s(S_C,2)}
        v_pk_mul_f32 {v(x+2,2)}, {v(x+2,2)}, {s(S_C,2)}
        v_cvt_pk_bf16_f32 v{x}, v{x}, v{x+1}
        v_cvt_pk_bf16_f32 v{x+1}, v{x+2}, v{x+3}
        ds_write_b64 v{t2}, {v(x,2)} offset:{g*1024}
        """)
    a.label("L_at_done")
    for sidx in range(4):
        for t in range(2):
            a(f"ds_read_b128 {v(r.W2+16*t+4*sidx,4)}, v{t4} offset:{(2*sidx+t)*1024}")
    a(f"v_mov_b32 v{r.XM+3}, 0")
    for i in range(2, 8, 2): a(f"v_mov_b64 {v(r.S+i,2)}, 0")
    for rr in range(8):
        a(f"""
        s_waitcnt vmcnt({7 + rr})
        L_w{rr}:
        v_cmp_le_i32 vcc, 0, v{TABV+rr}
        s_cbranch_vccz L_g{rr}
        s_sub_u32 s{S_BUD}, s{S_BUD}, 1
        s_cbranch_scc1 L_g{rr}
        s_sleep 2
        """)
        for r2 in range(rr, 8):
            a(f"s_add_u32 s{S_TMP}, s{S_B4}, {r2*32768}\nbuffer_load_dword v{TABV+r2}, v{TA}, {s(SR_TAB,4)}, s{S_TMP} offen {opt.hl}")
        a(f"""
        s_waitcnt vmcnt(0)
        s_branch L_w{rr}
        L_g{rr}:
        v_cmp_lt_u32_sdwa {s(S_M+2*rr,2)}, v{JJ}, v{TABV+rr} src0_sel:DWORD src1_sel:WORD_1
        v_cmp_lt_u32_sdwa {s(S_M+16+2*rr,2)}, v{J16}, v{TABV+rr} src0_sel:DWORD src1_sel:WORD_1
        v_max_u32 v{MX}, v{MX}, v{TABV+rr}
        v_add_u32_sdwa v{ADR+rr}, v{LB}, v{TABV+rr} {SDWA} src1_sel:WORD_0
        s_mov_b32 s{S_TMP}, {rr*32*REC_STRIDE}
        s_mov_b64 exec, {s(S_M+2*rr,2)}
        buffer_load_dwordx3 {v(REC(rr),3)}, v{ADR+rr}, {s(SR_REC,4)}, s{S_TMP} offen {opt.hl}
        s_mov_b64 exec, {s(S_M+16+2*rr,2)}
        buffer_load_dwordx3 {v(REC(8+rr),3)}, v{ADR+rr}, {s(SR_REC,4)}, s{S_TMP} offen offset:192 {opt.hl}
        s_mov_b64 exec, -1
        """)
    stamp(a, r, 8)
    stamp(a, r, 9)
    if opt.warm:
        a(f"""
        s_lshr_b32 s{S_TMP}, s2, 3
        s_lshl_b32 s{S_TMP}, s{S_TMP}, 3
        s_add_u32 s{S_TMP}, s{S_TMP}, s{S_V}
        s_mul_i32 s{S_TMP}, s{S_TMP}, {opt.warm*1024}
        s_add_u32 s{S_TMP}, s{S_TMP}, 3072
        v_lshlrev_b32 v{t2}, 4, v{r.lane}
        """)
        for k in range(opt.warm):
            if k and k % 4 == 0: a(f"s_add_u32 s{S_TMP}, s{S_TMP}, 4096")
            a(f"buffer_load_dwordx4 {v(r.H+12,4)}, v{t2}, {s(SR_HD,4)}, s{S_TMP} offen offset:{(k%4)*1024}")
    a(f"""
    v_cmp_lt_u32 vcc, 0x{((0x8000+33)<<16)-1:08x}, v{MX}
    s_and_saveexec_b64 {s(S_D,2)}, vcc
    v_mov_b32 v{t2}, {L_FLAG}
    ds_write_b32 v{t2}, v{ONE}
    s_mov_b64 exec, -1
    """)
    order = [x for rr in range(8) for x in (rr, 8 + rr)]
    a.label("L_rank")
    for n_, q in enumerate(order):
        if q < 8: a(f"s_waitcnt vmcnt({opt.warm + 14 - n_ + (q if opt.pf else 0)})")
        else: a(f"s_cmp_eq_u64 {s(S_M+2*q,2)}, 0\ns_cbranch_scc1 L_rk{q}")
        a(f"""
        s_mov_b64 exec, {s(S_M+2*q,2)}
        v_lshlrev_b32_sdwa v{ADR+q}, 2, v{REC(q)+2} {SDWA} src1_sel:BYTE_0
        ds_add_rtn_u32 v{REC(q)+3}, v{ADR+q}, v{ONE} offset:{L_CNT}
        """)
        if q < 8 and opt.pf: a(f"buffer_load_ubyte v{r.V4}, v{REC(q)+2}, {s(SR_HD,4)}, s{S_SO0} offen")
        if q >= 8: a.label(f"L_rk{q}")
    a(f"""
    s_mov_b64 exec, -1
    v_lshlrev_b32 v{t2}, 3, v{r.lane}
    v_mov_b32 v{t3}, {L_FLAG}
    s_mov_b32 s{S_PADM}, {0 if opt.slide else 31}
    s_cmp_lg_u32 s{S_MODE}, 0
    s_cselect_b32 s{S_PADM}, 31, s{S_PADM}
    s_waitcnt lgkmcnt(0)
    s_barrier
    """)
    stamp(a, r, 10)
    a(f"s_cmp_lg_u32 s{S_MODE}, 0\ns_cbranch_scc1 L_noaz")
    nonlocal_z[0] = r.S + 4
    zero_region(L_ACC, 112 * ACC_ROW)
    a(f"v_mov_b32 v{t3}, {L_FLAG}\nL_noaz:")
    CA = r.M; CB = r.M + 2; FL = r.M + 4; SS = r.M + 5; TT = r.M + 6; PADR = r.M + 7; O = r.M + 8; INC = r.M + 12; SP = r.M + 13; N1 = r.M + 14
    a(f"""
    ds_read_b64 {v(CA,2)}, v{t2} offset:{L_CNT}
    ds_read_b64 {v(CB,2)}, v{t2} offset:{L_CNT+512}
    ds_read_b32 v{FL}, v{t3}
    v_and_b32 v{t4}, 3, v{r.lane}
    v_cmp_eq_u32 {s(S_NB,2)}, 3, v{t4}
    s_waitcnt lgkmcnt(0)
    v_add_u32 v{N1}, v{CA}, v{CB}
    v_add3_u32 v{SS}, v{N1}, v{CA+1}, v{CB+1}
    v_readfirstlane_b32 s{S_TMP3}, v{FL}
    s_nop 0
    v_add_u32_dpp v{TT}, v{SS}, v{SS} quad_perm:[1,0,3,2] row_mask:0xf bank_mask:0xf
    s_nop 1
    v_add_u32_dpp v{TT}, v{TT}, v{TT} quad_perm:[2,3,0,1] row_mask:0xf bank_mask:0xf
    L_scan:
    v_sub_u32 v{PADR}, 0, v{TT}
    v_and_b32 v{PADR}, s{S_PADM}, v{PADR}
    v_cndmask_b32 v{PADR}, 0, v{PADR}, {s(S_NB,2)}
    v_add_u32 v{SP}, v{SS}, v{PADR}
    v_mov_b32 v{INC}, v{SP}
    """)
    a(wave_scan(INC))
    a(f"""
    s_nop 0
    v_readlane_b32 s{S_TMP}, v{INC}, 63
    v_sub_u32 v{O}, v{INC}, v{SP}
    s_cmp_lg_u32 s{S_PADM}, 0
    s_cbranch_scc1 L_scan_pad
    v_mov_b32_dpp v{PADR}, v{INC} quad_perm:[1,1,3,3] row_mask:0xf bank_mask:0xf
    v_add_u32 v{t4}, -1, v{O}
    v_xor_b32 v{t4}, v{t4}, v{PADR}
    v_cmp_gt_u32 vcc, 32, v{t4}
    v_cmp_gt_u32 {s(S_NBN,2)}, s{S_TMP}, v{PADR}
    s_and_b64 vcc, vcc, {s(S_NBN,2)}
    s_and_b32 vcc_lo, vcc_lo, 0x55555555
    s_and_b32 vcc_hi, vcc_hi, 0x55555555
    v_mov_b32 v{PADR}, s{S_TMP}
    s_cmp_eq_u64 vcc, 0
    s_cbranch_scc1 L_scan_done
    s_mov_b32 s{S_PADM}, 31
    s_branch L_scan
    L_scan_pad:
    v_mov_b32_dpp v{PADR}, v{O} quad_perm:[0,0,0,0] row_mask:0xf bank_mask:0xf
    v_add_u32 v{PADR}, v{PADR}, v{TT}
    v_mov_b64 {v(r.H,2)}, 0
    v_mov_b64 {v(r.H+2,2)}, 0
    ds_write_b128 v{V16}, {v(r.H,4)} offset:{L_REC}
    ds_write_b128 v{V16}, {v(r.H,4)} offset:{L_REC+8192}
    ds_write_b128 v{V16}, {v(r.H,4)} offset:{L_REC+16384}
    ds_write_b128 v{V16}, {v(r.H,4)} offset:{L_REC+24576}
    ds_write_b128 v{V16}, {v(r.H,4)} offset:{L_REC+32768}
    ds_write_b128 v{V16}, {v(r.H,4)} offset:{L_REC+40960}
    s_waitcnt lgkmcnt(0)
    s_barrier
    L_scan_done:
    v_lshrrev_b32 v{t3}, 1, v{r.lane}
    v_add_u32 v{t4}, s{S_TMP}, v{t3}
    v_mul_u32_u24 v{t4}, 12, v{t4}
    v_add_u32 v{t4}, {L_REC}, v{t4}
    ds_write2_b32 v{t4}, v{r.Zero}, v{r.Zero} offset0:0 offset1:1
    ds_write_b32 v{t4}, v{r.Zero} offset:8
    v_add_u32 v{O+1}, v{O}, v{N1}
    v_add_u32 v{O+2}, v{O}, v{CA}
    v_add_u32 v{O+3}, v{O+1}, v{CA+1}
    ds_write_b64 v{t2}, {v(O,2)} offset:{L_OFF}
    ds_write_b64 v{t2}, {v(O+2,2)} offset:{L_OFF+512}
    v_and_b32 v{t3}, 60, v{r.lane}
    v_add_u32 v{t3}, {L_WEND}, v{t3}
    ds_write_b32 v{t3}, v{PADR}
    s_add_u32 s{S_TMP}, s{S_TMP}, 31
    s_lshr_b32 s{S_TMP}, s{S_TMP}, 5
    s_cmp_gt_u32 s{S_TMP}, {CAPT}
    s_cselect_b32 s{S_TMP3}, 1, s{S_TMP3}
    s_cmp_lg_u32 s{S_TMP3}, 0
    s_cbranch_scc1 L_slow
    """)
    for q in order:
        if q >= 8: a(f"s_cmp_eq_u64 {s(S_M+2*q,2)}, 0\ns_cbranch_scc1 L_pa{q}")
        a(f"s_mov_b64 exec, {s(S_M+2*q,2)}\nds_read_b32 v{ADR+q}, v{ADR+q} offset:{L_OFF}")
        if q >= 8: a.label(f"L_pa{q}")
    a(f"""
    s_and_b32 s{S_T0}, s{S_V}, 3
    s_mul_i32 s{S_T0}, s{S_T0}, s{S_TMP}
    s_add_u32 s{S_NTL}, s{S_T0}, s{S_TMP}
    s_lshr_b32 s{S_T0}, s{S_T0}, 2
    s_lshr_b32 s{S_NTL}, s{S_NTL}, 2
    s_sub_u32 s{S_TMP}, s{S_NTL}, s{S_T0}
    s_mul_i32 s{S_TMP}, s{S_TMP}, {opt.split}
    s_add_u32 s{S_TMP}, s{S_TMP}, 32
    s_lshr_b32 s{S_TMP}, s{S_TMP}, 6
    s_add_u32 s{S_TMP}, s{S_TMP}, s{S_T0}
    s_cmp_lt_u32 s{S_V}, 4
    s_cselect_b32 s{S_NTL}, s{S_TMP}, s{S_NTL}
    s_cselect_b32 s{S_T0}, s{S_T0}, s{S_TMP}
    s_sub_u32 s{S_NTL}, s{S_NTL}, s{S_T0}
    s_mov_b32 s{S_TMP2}, {L_REC}
    s_waitcnt lgkmcnt(0)
    """)
    for q in order:
        if q >= 8: a(f"s_cmp_eq_u64 {s(S_M+2*q,2)}, 0\ns_cbranch_scc1 L_pb{q}")
        a(f"""
        s_mov_b64 exec, {s(S_M+2*q,2)}
        v_add_u32 v{ADR+q}, v{ADR+q}, v{REC(q)+3}
        v_mad_u32_u24 v{ADR+q}, v{ADR+q}, 12, s{S_TMP2}
        ds_write_b32 v{ADR+q}, v{REC(q)+2} offset:8
        ds_write2_b32 v{ADR+q}, v{REC(q)}, v{REC(q)+1} offset0:0 offset1:1
        """)
        if q >= 8: a.label(f"L_pb{q}")
    a(f"""
    s_mov_b64 exec, -1
    s_mul_i32 s{S_TMP}, s{S_T0}, 384
    s_add_u32 s{S_TMP}, s{S_TMP}, {L_REC}
    v_and_b32 v{t2}, 31, v{r.lane}
    v_mul_u32_u24 v{t2}, 12, v{t2}
    v_add_u32 v{r.A1a}, s{S_TMP}, v{t2}
    v_lshrrev_b32 v{t2}, 3, v{r.lane}
    v_mul_u32_u24 v{t2}, 48, v{t2}
    v_add_u32 v{r.A2a}, s{S_TMP}, v{t2}
    s_sub_u32 s{S_TMP}, s{S_T0}, 1
    v_add_u32 v{t3}, s{S_TMP}, v{r.lane}
    v_mul_u32_u24 v{t2}, 384, v{t3}
    s_waitcnt lgkmcnt(0)
    s_barrier
    """)
    stamp(a, r, 11)
    a(f"s_cmp_eq_u32 s{S_NTL}, 0\ns_cbranch_scc1 L_main_end")
    a(k_reads(r, 0))
    a(f"ds_read_u8 v{t4}, v{t2} offset:{L_REC+8}")
    a(ea_read(r, 0))
    a(acc_zero(r, False))
    for i in range(0, 8, 2): a(f"v_mov_b64 {v(r.M+8+i,2)}, 0\nv_mov_b64 {v(r.S+i,2)}, 0")
    a("s_waitcnt lgkmcnt(2)")
    a(dma_addr(r) + dma_issue(r))
    a(f"""
    v_lshrrev_b32 v{r.PI}, 7, v{r.K}
    v_lshlrev_b32_sdwa v{r.NA}, 5, v{r.K} {SDWA} src1_sel:BYTE_0
    buffer_load_dwordx2 {v(r.PS,2)}, v{r.PI}, {s(SR_P4,4)}, 0 idxen
    """)
    a(pd_read(r) + k_reads(r, 1))
    a(f"""
    s_waitcnt lgkmcnt(5)
    v_and_b32 v{t4}, 0x7f, v{t4}
    v_lshrrev_b32 v{t5}, 3, v{t4}
    v_lshlrev_b32 v{t5}, 2, v{t5}
    v_add_u32 v{t5}, {L_WEND}, v{t5}
    ds_read_b32 v{t5}, v{t5}
    v_lshlrev_b32 v{t3}, 5, v{t3}
    s_waitcnt lgkmcnt(0)
    v_sub_u32 v{t5}, v{t5}, v{t3}
    v_min_u32 v{t5}, 32, v{t5}
    v_mad_u32_u24 v{t2}, v{t5}, 12, v{t2}
    ds_read_u8 v{t2}, v{t2} offset:{L_REC-4}
    v_lshl_or_b32 v{t4}, v{t5}, 16, v{t4}
    s_waitcnt lgkmcnt(0)
    v_and_b32 v{t2}, 0x7f, v{t2}
    v_lshl_or_b32 v{r.Desc}, v{t2}, 8, v{t4}
    s_nop 0
    v_readlane_b32 s{S_D}, v{r.Desc}, 1
    v_readlane_b32 s{S_ZP}, v{r.Desc}, 0
    s_nop 1
    s_and_b32 s{S_NB}, s{S_D}, 0x7c
    s_mov_b32 s{S_NBP}, s{S_NB}
    s_lshr_b32 s{S_CNT}, s{S_D}, 16
    s_bfe_u32 s{S_ZP}, s{S_ZP}, 0x80008
    s_cmp_eq_u32 s{S_T0}, 0
    s_cselect_b32 s{S_ZP}, -1, s{S_ZP}
    """)
    a(aw_reads(r, S_NB))
    a("s_waitcnt vmcnt(1)")
    a(h_reads(r))
    a("s_waitcnt lgkmcnt(0)")
    a(dma_addr(r) + dma_issue(r))
    a("s_waitcnt vmcnt(4)")
    a(geometry(r, False))
    for k in range(4): a(mfma(r.D0, r.H+4*k, r.W2+4*k, r.D0 if k else None))
    a("s_waitcnt lgkmcnt(0)")
    a(mfma(r.D0, r.XM, r.BW, r.D0))
    a(f"s_mov_b32 s{S_I}, 2\ns_add_u32 s{S_NTL}, s{S_NTL}, 1")
    if opt.prio: a(f"s_cmp_ge_u32 s{S_V}, 4\ns_cbranch_scc1 L_np\ns_setprio 1\nL_np:")
    a("s_nop 7\ns_nop 1")
    stamp(a, r, 12)
    a(".p2align 6")
    a.label("L_loop")
    pre = k_reads(r, 2) + pd_read(r) + [f"v_readlane_b32 s{S_D}, v{r.Desc}, s{S_I}"] + s_set(r)
    mf_exp = {4*k: mfma(r.D1, r.H+4*k, r.W2+16+4*k, r.D1 if k else None) for k in range(4)}
    mf_rcp = {0: mfma(r.D1, r.XM, r.BW+4, r.D1), 5: mfma(r.A1, r.M+8, r.S, r.A1), 10: mfma(r.A1, r.M+12, r.S+4, r.A1)}
    ins_exp = {2: [f"s_bfe_u32 s{S_TMP}, s{S_D}, 0x80008", f"s_add_u32 s{S_TMP2}, s{S_NB}, 8", f"s_and_b32 s{S_TMP3}, s{S_D}, 0x7c",
                   f"s_cmp_ge_u32 s{S_TMP}, s{S_TMP2}", f"s_cselect_b32 s{S_NBN}, s{S_TMP3}, s{S_NB}"],
               13: ["s_waitcnt vmcnt(1)"] + h_reads(r)}
    ins_rcp = {2: ["s_waitcnt lgkmcnt(4)"] + dma_addr(r),
               4: ["s_waitcnt lgkmcnt(0)"] + dma_issue(r),
               6: ea_read(r, 1) + [f"s_cmp_eq_u32 s{S_NBN}, s{S_NB}", "s_cbranch_scc1 L_noaw"] + aw_reads(r, S_NBN) + ["L_noaw:"],
               11: s_reads(r)}
    silu_stage(a, r, r.D0, r.M, mf_exp, mf_rcp, ins_exp, ins_rcp, pre)
    a(f"s_cmp_eq_u32 s{S_NB}, s{S_NBP}\ns_cbranch_scc1 L_noflush")
    if "flush" in opt.abl: a("s_branch L_noflush")
    a(retire_mask(r))
    a(f"s_cmp_lg_u32 s{S_MODE}, 0\ns_cbranch_scc1 L_flush_slow")
    a(flush_plain(r))
    a.label("L_noflush")
    pre = [f"s_mov_b32 s{S_NBP}, s{S_NB}", f"s_mov_b32 s{S_NB}, s{S_NBN}", f"s_lshr_b32 s{S_CNT}, s{S_D}, 16",
           "s_waitcnt vmcnt(4)"] + geometry(r, True)
    mf_exp = {4*k: mfma(r.D0, r.H+4*k, r.W2+4*k, r.D0 if k else None) for k in range(4)}
    mf_rcp = {0: mfma(r.D0, r.XM, r.BW, r.D0), 5: mfma(r.A0, r.M, r.S, r.A0), 10: mfma(r.A0, r.M+4, r.S+4, r.A0)}
    silu_stage(a, r, r.D1, r.M+8, mf_exp, mf_rcp, {15: ["s_waitcnt lgkmcnt(0)"]}, {}, pre)
    a(f"""
    s_sub_u32 s{S_TMP}, s{S_I}, 1
    s_add_u32 s{S_I}, s{S_I}, 1
    s_cmp_le_u32 s{S_I}, s{S_NTL}
    s_cbranch_scc1 L_loop
    v_readlane_b32 s{S_D}, v{r.Desc}, s{S_TMP}
    """)
    stamp(a, r, 13)
    a(mfma(r.A1, r.M+8, r.S, r.A1)); a(mfma(r.A1, r.M+12, r.S+4, r.A1))
    a(f"""
    s_mov_b32 s{S_RM}, 0xffff
    s_bitcmp1_b32 s{S_NBP}, 2
    s_cselect_b32 s{S_RM}, 0xffff0000, s{S_RM}
    s_bfe_u32 s{S_TMP}, s{S_D}, 0x80008
    s_add_u32 s{S_TMP2}, s{S_NBP}, 4
    s_cmp_ge_u32 s{S_TMP}, s{S_TMP2}
    s_cselect_b32 s{S_RM}, -1, s{S_RM}
    """)
    a(flush_addr(r))
    a("s_waitcnt vmcnt(0) lgkmcnt(0)\ns_nop 3")
    a(flush_dot(r))
    a(f"""
    s_cmp_lg_u32 s{S_MODE}, 0
    s_cbranch_scc1 L_final_slow
    s_cmp_lt_i32 s{S_ZP}, s{S_NBP}
    s_cbranch_scc1 L_main_end
    s_lshr_b32 s{S_TMP}, s{S_V}, 2
    s_lshl_b32 s{S_TMP}, s{S_TMP}, 2
    s_add_u32 s{S_TMP}, s{S_TMP}, {L_FLAG+8}
    v_mov_b32 v{r.K}, s{S_TMP}
    v_mov_b32 v{r.PI}, 1
    ds_write_b32 v{r.K}, v{r.PI}
    L_main_end:
    s_cmp_lg_u32 s{S_MODE}, 0
    s_cbranch_scc1 L_slow_next
    """)
    stamp(a, r, 14)
    a(f"v_mov_b32 v{r.K}, {L_FLAG+8}\ns_waitcnt lgkmcnt(0)\ns_barrier\nds_read_b64 {v(r.PS,2)}, v{r.K}")
    a(rmw_reads(r))
    a(f"""
    s_waitcnt lgkmcnt(9)
    v_readfirstlane_b32 s{S_TMP}, v{r.PS}
    v_readfirstlane_b32 s{S_TMP2}, v{r.PS+1}
    s_nop 3
    s_or_b32 s{S_D}, s{S_TMP}, s{S_TMP2}
    s_cbranch_scc1 L_merge_rare
    L_merge:
    s_cmp_eq_u32 s{S_NTL}, 0
    s_cbranch_scc1 L_epi
    """)
    a(rmw_writes(r))
    a.label("L_epi")
    if opt.stamp: a(f"s_sub_u32 s{S_ST}, s{S_NTL}, 1\ns_max_i32 s{S_ST}, s{S_ST}, 0\nv_writelane_b32 v{r.ST}, s{S_ST}, 30")
    WH2 = r.W2; MR = r.D0
    a(f"""
    v_and_b32 v{e_}, 31, v{r.lane}
    v_lshrrev_b32 v{hh_}, 5, v{r.lane}
    v_bfe_u32 v{t2}, v{r.lane}, 2, 2
    v_lshlrev_b32 v{t2}, 7, v{t2}
    v_bfe_u32 v{t3}, v{r.lane}, 4, 1
    v_lshl_add_u32 v{t2}, v{t3}, 5, v{t2}
    v_and_b32 v{t3}, 3, v{r.lane}
    v_lshl_add_u32 v{t2}, v{t3}, 3, v{t2}
    v_lshl_add_u32 v{t2}, v{hh_}, 10, v{t2}
    s_lshl_b32 s{S_TMP}, s{S_T}, 6
    s_add_u32 s{S_TMP}, s{S_TMP}, {L_WH2}
    v_add_u32 v{t2}, s{S_TMP}, v{t2}
    """)
    for k in range(4):
        a(f"ds_read_b64_tr_b16 {v(WH2+4*k,2)}, v{t2} offset:{2048*k}\nds_read_b64_tr_b16 {v(WH2+4*k+2,2)}, v{t2} offset:{2048*k+512}")
    a(f"""
    s_mul_i32 s{S_TMP}, s{S_RT}, {32*ACC_ROW}
    s_add_u32 s{S_TMP}, s{S_TMP}, {L_ACC}
    v_mul_u32_u24 v{t2}, {ACC_ROW}, v{e_}
    v_lshl_add_u32 v{t2}, v{hh_}, 5, v{t2}
    v_add_u32 v{t2}, s{S_TMP}, v{t2}
    v_min_u32 v{t3}, 311, v0
    v_mul_u32_u24 v{t4}, 171, v{t3}
    v_lshrrev_b32 v{t4}, 9, v{t4}
    v_mul_u32_u24 v{t5}, 3, v{t4}
    v_sub_u32 v{t5}, v{t3}, v{t5}
    v_lshlrev_b32 v{t5}, 2, v{t5}
    v_lshl_add_u32 v{r.K}, v{t4}, 5, v{t5}
    v_mul_u32_u24 v{r.PI}, {ACC_ROW}, v{t4}
    v_add_u32 v{r.PI}, v{r.PI}, v{t5}
    v_add_u32 v{r.PI}, {L_ACC+256}, v{r.PI}
    s_mov_b32 s{S_D}, 0x{f2u(-LN2):08x}
    s_mov_b32 s{S_D+1}, 0x{f2u(-LN2):08x}
    s_waitcnt lgkmcnt(0)
    s_barrier
    """)
    stamp(a, r, 15)
    for k in range(4):
        a(f"ds_read_b128 {v(MR+8*k,4)}, v{t2} offset:{64*k}\nds_read_b128 {v(MR+8*k+4,4)}, v{t2} offset:{64*k+16}")
    a(f"ds_read_b32 v{r.K}, v{r.K} offset:16\nds_read_b32 v{r.PI}, v{r.PI}")
    for k in range(4):
        a(f"s_waitcnt lgkmcnt({8-2*k})")
        for j in range(0, 8, 2):
            a(f"v_pk_mul_f32 {v(MR+8*k+j,2)}, {v(MR+8*k+j,2)}, {s(S_D,2)}")
        for j in range(4):
            a(f"v_cvt_pk_bf16_f32 v{r.H+4*k+j}, v{MR+8*k+2*j}, v{MR+8*k+2*j+1}")
        if k: a(mfma(r.U, WH2+4*(k-1), r.H+4*(k-1), r.U))
    a(f"""
    s_waitcnt lgkmcnt(0)
    v_add_f32 v{r.K}, v{r.K}, v{r.PI}
    {mfma(r.U, WH2+12, r.H+12, r.U)}
    v_cvt_pk_bf16_f32 v{r.K}, v{r.K}, v{r.K}
    v_lshlrev_b32 v{r.PI}, 1, v0
    buffer_store_short v{r.K}, v{r.PI}, {s(SR_OUTP,4)}, 0 offen {opt.ost}
    s_lshl_b32 s{S_TMP}, s{S_V}, 12
    s_add_u32 s{S_TMP}, s{S_TMP}, {L_RING}
    v_mul_u32_u24 v{t2}, 80, v{e_}
    v_lshl_add_u32 v{t2}, v{hh_}, 3, v{t2}
    v_add_u32 v{t2}, s{S_TMP}, v{t2}
    v_lshrrev_b32 v{t3}, 2, v{r.lane}
    v_and_b32 v{t4}, 3, v{r.lane}
    v_lshlrev_b32 v{t4}, 4, v{t4}
    v_lshl_add_u32 v{t5}, v{t3}, 7, v{t4}
    v_mul_u32_u24 v{t3}, 80, v{t3}
    v_add3_u32 v{t3}, v{t3}, v{t4}, s{S_TMP}
    s_lshl_b32 s{S_TMP}, s{S_RT}, 12
    s_lshl_b32 s{S_TMP2}, s{S_T}, 6
    s_add_u32 s{S_TMP}, s{S_TMP}, s{S_TMP2}
    """)
    T = r.T; U = r.U
    for j in range(8):
        a(f"v_lshlrev_b32 v{MR+2*j}, 16, v{r.HR+j}\nv_and_b32 v{MR+2*j+1}, 0xffff0000, v{r.HR+j}")
    for i in range(0, 16, 2): a(f"v_pk_mul_f32 {v(T+i,2)}, {v(U+i,2)}, {s(S_C,2)}")
    for i in range(16): a(f"v_exp_f32 v{T+i}, v{T+i}")
    for i in range(0, 16, 2): a(f"v_pk_add_f32 {v(T+i,2)}, {v(T+i,2)}, {s(S_ONE,2)}")
    for i in range(16): a(f"v_rcp_f32 v{T+i}, v{T+i}")
    for i in range(0, 16, 2): a(f"v_pk_fma_f32 {v(T+i,2)}, {v(T+i,2)}, {v(U+i,2)}, {v(MR+i,2)}")
    for i in range(0, 16, 2): a(f"v_cvt_pk_bf16_f32 v{r.M+i//2}, v{T+i}, v{T+i+1}")
    for g in range(4): a(f"ds_write_b64 v{t2}, {v(r.M+2*g,2)} offset:{16*g}")
    a(f"""
    s_waitcnt lgkmcnt(0)
    ds_read_b128 {v(r.H,4)}, v{t3}
    ds_read_b128 {v(r.H+4,4)}, v{t3} offset:1280
    s_waitcnt lgkmcnt(1)
    buffer_store_dwordx4 {v(r.H,4)}, v{t5}, {s(SR_OUT,4)}, s{S_TMP} offen {opt.ost}
    s_waitcnt lgkmcnt(0)
    buffer_store_dwordx4 {v(r.H+4,4)}, v{t5}, {s(SR_OUT,4)}, s{S_TMP} offen offset:2048 {opt.ost}
    """)
    if opt.stamp:
        stamp(a, r, 16); a("s_waitcnt vmcnt(0)"); stamp(a, r, 17); stamp(a, r, 31, True)
        a(f"""
        s_lshl_b32 s{S_ST}, s2, 4
        s_add_u32 s{S_ST}, s{S_ST}, s{S_V}
        s_lshl_b32 s{S_ST}, s{S_ST}, 8
        s_add_u32 s{S_ST}, s{S_ST}, {WS_STAMP}
        s_add_u32 s{S_ST}, s{P_WS}, s{S_ST}
        s_addc_u32 s{S_ST+1}, s{P_WS+1}, 0
        v_lshlrev_b32 v{t2}, 2, v{r.lane}
        global_store_dword v{t2}, v{r.ST}, {s(S_ST,2)}
        """)
    if opt.diag:
        a("s_waitcnt vmcnt(0)"); stamp(a, r, 31)
        a(f"""
        v_lshlrev_b32 v{t2}, 2, v{r.lane}
        s_mov_b64 exec, 0xffff
        global_atomic_umax v{t2}, v{r.ST}, {s(P_DBG,2)}
        """)
    a("L_done:\ns_endpgm")
    a(f"""
    L_merge_rare:
    s_cmp_lg_u32 s{S_TMP}, 0
    s_cbranch_scc1 L_final_atomic
    s_cmp_ge_u32 s{S_V}, 4
    s_cbranch_scc1 L_merge_young
    s_cmp_eq_u32 s{S_NTL}, 0
    s_cbranch_scc1 L_merge_old_done
    """)
    a(rmw_writes(r))
    a("L_merge_old_done:\ns_waitcnt lgkmcnt(0)\ns_barrier\ns_branch L_epi\nL_merge_young:\ns_waitcnt lgkmcnt(0)\ns_barrier")
    a(rmw_reads(r))
    a(f"s_branch L_merge\nL_final_atomic:\ns_cmp_eq_u32 s{S_NTL}, 0\ns_cbranch_scc1 L_epi")
    a(flush_atomic(r)); a("s_branch L_epi")
    a.label("L_final_slow")
    a(flush_atomic(r)); a("s_branch L_slow_next")
    a.label("L_flush_slow")
    a(flush_addr(r)); a("s_waitcnt lgkmcnt(0)"); a(flush_dot(r)); a(flush_atomic(r)); a(acc_zero(r, True))
    a("s_branch L_noflush")
    a(f"""
    L_slow:
    s_mov_b32 s{S_MODE}, 1
    s_mov_b32 s{S_SEG}, 0
    L_slow_round:
    s_waitcnt lgkmcnt(0)
    s_barrier
    v_lshlrev_b32 v{t2}, 2, v0
    v_cmp_gt_u32 vcc, 256, v0
    s_and_saveexec_b64 {s(S_D,2)}, vcc
    ds_write_b32 v{t2}, v{r.Zero} offset:{L_CNT}
    s_mov_b64 exec, -1
    v_mov_b32 v{t2}, {L_FLAG}
    ds_write_b32 v{t2}, v{r.Zero}
    s_lshl_b32 s{S_TMP}, s{S_SEG}, 10
    s_add_u32 s{S_TMP}, s{S_TMP}, s{S_B4}
    buffer_load_dword v{t3}, v{r.Zero}, {s(SR_TAB,4)}, s{S_TMP} offen {opt.hl}
    s_mul_i32 s{S_TMP}, s{S_SEG}, {REC_STRIDE}
    v_mul_u32_u24 v{t5}, 12, v0
    s_waitcnt vmcnt(0)
    v_bfe_u32 v{t4}, v{t3}, 16, 15
    v_and_b32 v{t3}, 0xffff, v{t3}
    v_add_u32 v{t3}, v{t3}, v{t5}
    v_mov_b32 v{t2}, v0
    """)
    for q in range(7):
        a(f"""
        v_cmp_lt_u32 {s(S_M+2*q,2)}, v{t2}, v{t4}
        s_mov_b64 exec, {s(S_M+2*q,2)}
        buffer_load_dwordx3 {v(REC(q),3)}, v{t3}, {s(SR_REC,4)}, s{S_TMP} offen {opt.hl}
        s_mov_b64 exec, -1
        v_add_u32 v{t2}, 512, v{t2}
        s_add_u32 s{S_TMP}, s{S_TMP}, {512*12}
        """)
    for q in range(7, 16): a(f"s_mov_b64 {s(S_M+2*q,2)}, 0")
    a(f"""
    v_mov_b32 v{ONE}, 1
    s_waitcnt vmcnt(0) lgkmcnt(0)
    s_barrier
    s_branch L_rank
    L_slow_next:
    s_add_u32 s{S_SEG}, s{S_SEG}, 1
    s_cmp_lt_u32 s{S_SEG}, {NB}
    s_cbranch_scc1 L_slow_round
    s_branch L_epi
    """)
    return a.text(), r.n

def build():
    body, nv = gen()
    hdr = open("gather_scatter__cheap_equivariant_egnn__graph.s.ref").read().split("; Override")[0]
    acc = (nv + 3) // 4 * 4
    return hdr + f"""; @launch grid=({NB},1,1) block=(512,1,1) lds={LDS_BYTES}
.amdgcn_target "amdgcn-amd-amdhsa--gfx950"
.text
.globl {KNAME}
.p2align 8
.type {KNAME},@function
""" + body + f""".section .rodata,"a"
.p2align 6
.amdhsa_kernel {KNAME}
  .amdhsa_next_free_vgpr {nv}
  .amdhsa_next_free_sgpr 102
  .amdhsa_accum_offset {acc}
  .amdhsa_group_segment_fixed_size 0
  .amdhsa_kernarg_size 88
  .amdhsa_user_sgpr_count 2
  .amdhsa_user_sgpr_kernarg_segment_ptr 1
  .amdhsa_system_sgpr_workgroup_id_x 1
  .amdhsa_float_denorm_mode_32 3
.end_amdhsa_kernel
"""

if __name__ == "__main__":
    for arg in sys.argv[2:]:
        k, val = arg.split("=")
        cur = getattr(opt, k)
        setattr(opt, k, (val not in ("0", "False")) if isinstance(cur, bool) else type(cur)(val.replace("_", " ").replace("none", "")))
    open(sys.argv[1], "w").write(build())
    print("lds", LDS_BYTES, "vgprs", alloc().n)
```

```python
import sys, struct

N = 25000; E = 800000; NB = 256; BN = 98; CH = 3136
REC_STRIDE = CH * 12
WS_TAB = NB * REC_STRIDE
WS_P4 = WS_TAB + NB * 1024
WS_STAMP = 64 << 20
OUT_POS = N * 128
KNAME = "gather_scatter__cheap_equivariant_egnn__graph_kernel"

def f2u(x): return struct.unpack("<I", struct.pack("<f", x))[0]
LOG2E = 1.4426950408889634
LN2 = 0.6931471805599453

class Opt:
    split = 42
    prio = 1
    ld = "nt"
    st = "sc1"
    hl = "sc1"
    ost = ""
    slide = True
    late = 1
    pf = 0
    warm = 0
    abl = ""
    stamp = False
    mfe = "0,4,8,12"
    mfr = "0,4,8"
    padd = 1
    pmul = 1
    ilv = 0
    spread = 0
    tprio = 0
    diag = False
opt = Opt()

class Asm:
    def __init__(self): self.L = []
    def __call__(self, s):
        if isinstance(s, (list, tuple)):
            for x in s: self(x)
            return
        for x in s.strip("\n").split("\n"):
            x = x.strip()
            if not x: continue
            self.L.append(x if x.endswith(":") else "    " + x)
    def label(self, n): self.L.append(n + ":")
    def text(self): return "\n".join(self.L) + "\n"

def v(i, n=1): return f"v{i}" if n == 1 else f"v[{i}:{i+n-1}]"
def s(i, n=1): return f"s{i}" if n == 1 else f"s[{i}:{i+n-1}]"
def srd(d, p, size, off=None):
    if off is None: b = f"s_mov_b32 s{d}, s{p}\ns_mov_b32 s{d+1}, s{p+1}\n"
    else: b = f"s_add_u32 s{d}, s{p}, {off}\ns_addc_u32 s{d+1}, s{p+1}, 0\n"
    return b + f"s_mov_b32 s{d+2}, {size}\ns_mov_b32 s{d+3}, 0x00020000"
def wave_scan(r):
    o = []
    for sh in (1, 2, 4, 8):
        o.append(f"s_nop 1\nv_add_u32_dpp v{r}, v{r}, v{r} row_shr:{sh} row_mask:0xf bank_mask:0xf bound_ctrl:0")
    o.append(f"s_nop 1\nv_add_u32_dpp v{r}, v{r}, v{r} row_bcast:15 row_mask:0xa bank_mask:0xf")
    o.append(f"s_nop 1\nv_add_u32_dpp v{r}, v{r}, v{r} row_bcast:31 row_mask:0xc bank_mask:0xf")
    return o
def mfma(d, a_, b_, c=None):
    cc = "0" if c is None else v(c, 16)
    return f"v_mfma_f32_32x32x16_bf16 {v(d,16)}, {v(a_,4)}, {v(b_,4)}, {cc}"
SDWA = "dst_sel:DWORD dst_unused:UNUSED_PAD src0_sel:DWORD"

CAPT = 116
L_NT = 0
L_CNT = 8192
L_OFF = L_CNT + 1024
L_REC = L_OFF + 1024
L_RING = L_REC + CAPT * 384
L_SIMG = L_RING + 8 * 4096
L_AT = L_SIMG + 8 * 2048
L_ACC = L_AT + 14 * 1024
ACC_ROW = 272
L_WX = L_ACC + 112 * ACC_ROW
L_FLAG = L_WX + 256
L_WEND = L_FLAG + 16
L_HIST = L_WEND + 64 + 48
L_OFFA = L_HIST + 1024
L_WH2 = L_OFFA + 1024
LDS_BYTES = L_WH2 + 8192
L_STG = L_REC
L_HST = L_RING + 8192
L_W2S = L_RING + 24576
L_WH1 = L_ACC
L_WE = L_ACC + 8192
assert L_STG + CH * 16 <= L_HST and L_WE + 17408 <= L_WX and L_SIMG % 64 == 0 and LDS_BYTES <= 163840
assert L_HIST % 16 == 0 and L_ACC % 16 == 0

class R: pass
def alloc():
    r = R(); n = [1]
    def al(cnt, align=1):
        n[0] = (n[0] + align - 1) // align * align
        x = n[0]; n[0] += cnt; return x
    r.lane = al(1); r.t0 = al(1); r.t1 = al(1)
    r.D0 = al(16, 4); r.D1 = al(16); r.A0 = al(16); r.A1 = al(16)
    r.W2 = al(32); r.BW = al(8); r.H = al(16)
    r.XM = al(4); r.S = al(8); r.K4 = al(4)
    r.M = al(16); r.T = al(16); r.U = al(16); r.HR = al(8)
    r.PD = al(4); r.PS = al(2); r.PQ = al(2); r.HA = al(4); r.XK = al(4)
    for nm in "A1a A2a SB TR0 TR1 AWl Desc Zero FlM FlP WXa ML K PI NA SA t2 t3 t4 t5 ST V4 V8 V16 L16 TE EM EK EP EW ER EG EH EX".split():
        setattr(r, nm, al(1))
    r.n = n[0]
    return r

P_H, P_POS, P_EA, P_SRC, P_DST, P_WE, P_WX, P_WH, P_OUT, P_DBG, P_WS = range(4, 26, 2)
SR_HD = 28; SR_P4 = 32; SR_REC = 36; SR_TAB = 40; SR_OUT = 44; SR_OUTP = 48
S_V = 52; S_RT = 53; S_T = 54; S_B4 = 55; S_MODE = 56; S_SEG = 57
S_C = 58; S_ONE = 60; S_D = 62; S_TMP = 63; S_TMP2 = 64; S_T0 = 65; S_NTL = 66; S_I = 67; S_CNT = 68; S_TMP3 = 69
S_M = 70
S_NL = 4; S_NH = 5; S_MSK = 6; S_SO0 = 7; S_SO1 = 8; S_SO2 = 9
S_NB = 10; S_NBP = 11; S_NBN = 12; S_ZP = 13; S_RM = 14; S_PADM = 15; S_HI = 16
S_FI = 18; S_ST = 26
TS = [72 + 4 * k for k in range(7)] + [SR_OUTP]

DIAG = {0: 0, 3: 1, 4: 2, 7: 3, 10: 4, 12: 5, 13: 6, 31: 7}
def stamp(a, r, i, real=False):
    if opt.diag:
        if i in DIAG: a(f"s_waitcnt lgkmcnt(0)\ns_memrealtime {s(S_ST,2)}\ns_waitcnt lgkmcnt(0)\nv_writelane_b32 v{r.ST}, s{S_ST}, {DIAG[i]}\ns_not_b32 s{S_ST}, s{S_ST}\nv_writelane_b32 v{r.ST}, s{S_ST}, {DIAG[i]+8}")
        return
    if not opt.stamp: return
    a(f"s_waitcnt lgkmcnt(0)\n{'s_memrealtime' if real else 's_memtime'} {s(S_ST,2)}\ns_waitcnt lgkmcnt(0)\nv_writelane_b32 v{r.ST}, s{S_ST}, {i}")

def silu_stage(a0, r, D, Mo, mf_exp, mf_rcp, ins_exp, ins_rcp, pre=()):
    T = r.T
    def a(x, core=False):
        for y in ([x] if isinstance(x, str) else x):
            for z in y.split("\n"):
                z = z.strip()
                if "vmem" in opt.abl and (z.startswith("buffer_") or "vmcnt" in z): continue
                if "lds" in opt.abl and (z.startswith("ds_") or "lgkmcnt" in z): continue
                if "misc" in opt.abl and z.startswith("v_") and not core and not z.startswith("v_readlane"): continue
                a0(z)
    pre = list(pre)
    if opt.spread:
        keep = []; grp = None
        for x in pre:
            if grp is not None:
                grp.append(x)
                if x == "s_mov_b64 exec, -1": keep.append("\n".join(grp)); grp = None
            elif " exec," in x: grp = [x]
            elif x.startswith("s_nop"): continue
            else: keep.append(x)
        pre_map = {}
        per = opt.spread
        for j, x in enumerate(keep): pre_map.setdefault(j // per, []).append(x)
    else:
        a(pre); pre_map = {}
    for i in range(16):
        if i in mf_exp: a(mf_exp[i], True)
        a(f"v_exp_f32 v{T+i}, v{D+i}", True)
        a(pre_map.get(i, ()))
        a(ins_exp.get(i, ()))
    if opt.tprio: a(f"s_setprio {opt.tprio}")
    for i in range(0, 16, 2):
        if opt.padd: a(f"v_pk_add_f32 {v(T+i,2)}, {v(T+i,2)}, {s(S_ONE,2)}", True)
        else: a(f"v_add_f32 v{T+i}, 1.0, v{T+i}\nv_add_f32 v{T+i+1}, 1.0, v{T+i+1}", True)
    if opt.tprio: a(f"s_setprio 0")
    for i in range(16):
        if i in mf_rcp: a(mf_rcp[i], True)
        a(f"v_rcp_f32 v{T+i}, v{T+i}", True)
        a(ins_rcp.get(i, ()))
    def mul(i):
        if opt.pmul: a(f"v_pk_mul_f32 {v(T+i,2)}, {v(T+i,2)}, {v(D+i,2)}", True)
        else: a(f"v_mul_f32 v{T+i}, v{T+i}, v{D+i}\nv_mul_f32 v{T+i+1}, v{T+i+1}, v{D+i+1}", True)
    def cvt(i): a(f"v_cvt_pk_bf16_f32 v{Mo+i//2}, v{T+i}, v{T+i+1}", True)
    if opt.tprio: a(f"s_setprio {opt.tprio}")
    if opt.ilv:
        for i in range(0, 16, 2):
            mul(i)
            if i: cvt(i - 2)
        cvt(14)
    else:
        for i in range(0, 16, 2): mul(i)
        if opt.tprio: a(f"s_setprio 0")
        for i in range(0, 16, 2): cvt(i)

def geometry(r, advance):
    o = [
        f"v_dot2_f32_bf16 v{r.t2}, v{r.PS}, s{S_NL}, v{r.PD}",
        f"v_dot2_f32_bf16 v{r.t3}, v{r.PS}, s{S_NH}, v{r.PD+1}",
        f"v_dot2_f32_bf16 v{r.t4}, v{r.PS+1}, s{S_NL}, v{r.PD+2}",
        f"v_xor_b32 v{r.SA}, v{r.SB}, v{r.PD+3}",
        f"v_lshrrev_b32 v{r.PI}, 7, v{r.K}",
        f"buffer_load_dwordx2 {v(r.PS,2)}, v{r.PI}, {s(SR_P4,4)}, 0 idxen",
        f"v_cvt_pk_bf16_f32 v{r.PQ}, v{r.t2}, v{r.t3}",
        f"v_cvt_pk_bf16_f32 v{r.t5}, v{r.t4}, 0",
        f"v_cvt_pk_bf16_f32 v{r.PQ+1}, v{r.t4}, 1.0",
        f"v_dot2_f32_bf16 v{r.t2}, v{r.PQ}, v{r.PQ}, 0",
        f"v_dot2_f32_bf16 v{r.t2}, v{r.t5}, v{r.t5}, v{r.t2}",
    ]
    if advance:
        o += [f"v_add_u32 v{r.A1a}, 384, v{r.A1a}", f"v_add_u32 v{r.A2a}, 384, v{r.A2a}", "s_nop 0"]
    else:
        o += ["s_nop 2"]
    o += [
        f"v_cvt_pk_bf16_f32 v{r.XM+2}, v{r.t2}, v{r.t2}",
        f"s_mov_b64 exec, {s(S_HI,2)}",
        f"ds_read_b128 {v(r.XM,4)}, v{r.NA}",
        "s_mov_b64 exec, -1",
        f"v_lshlrev_b32_sdwa v{r.NA}, 5, v{r.K} {SDWA} src1_sel:BYTE_0",
    ]
    return o
def k_reads(r, tile_off):
    o = tile_off * 384 + 8
    return [f"ds_read_b32 v{r.K}, v{r.A1a} offset:{o}",
            f"ds_read2_b32 {v(r.K4,2)}, v{r.A2a} offset0:{o//4} offset1:{o//4+3}",
            f"ds_read2_b32 {v(r.K4+2,2)}, v{r.A2a} offset0:{o//4+6} offset1:{o//4+9}"]
def pd_read(r): return [f"ds_read_b128 {v(r.PD,4)}, v{r.NA} offset:16"]
def dma_addr(r): return [f"v_and_or_b32 v{r.K4+k}, v{r.K4+k}, s{S_MSK}, v{r.XK+k}" for k in range(4)]
def dma_issue(r):
    so = [f"s{S_SO0}", f"s{S_SO1}", f"s{S_SO2}", "0"]
    return [f"buffer_load_dwordx4 v{r.K4+k}, {s(SR_HD,4)}, {so[k]} offen offset:{1024*k} lds" for k in range(4)]
def h_reads(r): return [f"ds_read_b128 {v(r.H+4*k,4)}, v{r.HA+k}" for k in range(4)]
def ea_read(r, tile_off):
    o = tile_off * 96
    return [f"ds_read2_b32 {v(r.XM,2)}, v{r.A1a} offset0:{o} offset1:{o+1}"]
def aw_reads(r, nb):
    return [f"s_add_u32 s{S_TMP}, s{nb}, 4",
            f"s_lshr_b32 s{S_TMP}, s{S_TMP}, 3",
            f"s_lshl_b32 s{S_TMP}, s{S_TMP}, 10",
            f"s_lshr_b32 s{S_TMP2}, s{nb}, 3",
            f"s_lshl_b32 s{S_TMP2}, s{S_TMP2}, 10",
            f"v_add_u32 v{r.t2}, s{S_TMP}, v{r.AWl}",
            f"v_add_u32 v{r.t3}, s{S_TMP2}, v{r.AWl}",
            f"s_mov_b64 exec, {s(S_HI,2)}",
            f"ds_read_b64 {v(r.BW,2)}, v{r.t2}",
            f"ds_read_b64 {v(r.BW+2,2)}, v{r.t3} offset:8",
            f"ds_read_b64 {v(r.BW+4,2)}, v{r.t2} offset:512",
            f"ds_read_b64 {v(r.BW+6,2)}, v{r.t3} offset:520",
            "s_mov_b64 exec, -1"]
def s_set(r):
    return [f"s_bfm_b64 exec, s{S_CNT}, 0", f"ds_write_b64 v{r.SA}, {v(r.PQ,2)}", "s_mov_b64 exec, -1"]
def s_reads(r):
    return [f"ds_read_b64_tr_b16 {v(r.S,2)}, v{r.TR0}",
            f"ds_read_b64_tr_b16 {v(r.S+2,2)}, v{r.TR1}",
            f"ds_read_b64_tr_b16 {v(r.S+4,2)}, v{r.TR0} offset:1024",
            f"ds_read_b64_tr_b16 {v(r.S+6,2)}, v{r.TR1} offset:1024",
            f"ds_write2_b32 v{r.SA}, v{r.Zero}, v{r.Zero} offset0:0 offset1:1"]

def flush_addr(r):
    o = [f"ds_read_b128 {v(r.T+4*q,4)}, v{r.WXa} offset:{16*q}" for q in range(4)]
    o += [f"ds_read_b128 {v(r.D0+4*q,4)}, v{r.WXa} offset:{64+16*q}" for q in range(4)]
    o += [f"s_lshr_b32 s{S_TMP}, s{S_NBP}, 3",
          f"s_mul_i32 s{S_TMP}, s{S_TMP}, {8*ACC_ROW}",
          f"s_bitcmp1_b32 s{S_NBP}, 2",
          f"s_cselect_b32 s{S_TMP2}, {8*ACC_ROW}, 0",
          f"v_and_b32 v{r.t3}, s{S_TMP2}, v{r.ML}",
          f"v_add3_u32 v{r.t2}, v{r.FlM}, v{r.t3}, s{S_TMP}",
          f"v_add3_u32 v{r.t3}, v{r.FlP}, v{r.t3}, s{S_TMP}"]
    return o
def flush_dot(r):
    o = [f"v_pk_mul_f32 {v(r.T,2)}, {v(r.T,2)}, {v(r.A0,2)}", f"v_pk_mul_f32 {v(r.D0,2)}, {v(r.D0,2)}, {v(r.A1,2)}"]
    for i in range(2, 16, 2):
        o.append(f"v_pk_fma_f32 {v(r.T,2)}, {v(r.T+i,2)}, {v(r.A0+i,2)}, {v(r.T,2)}")
        o.append(f"v_pk_fma_f32 {v(r.D0,2)}, {v(r.D0+i,2)}, {v(r.A1+i,2)}, {v(r.D0,2)}")
    o += [f"v_pk_add_f32 {v(r.T,2)}, {v(r.T,2)}, {v(r.D0,2)}",
          f"v_add_f32 v{r.t4}, v{r.T}, v{r.T+1}", f"v_add_f32 v{r.t5}, v{r.T}, v{r.T+1}", "s_nop 1",
          f"v_permlane32_swap_b32 v{r.t4}, v{r.t5}", "s_nop 1", f"v_add_f32 v{r.t4}, v{r.t4}, v{r.t5}"]
    return o
EX3 = f"s_and_b32 exec_lo, s{S_RM}, 0x88888888\ns_mov_b32 exec_hi, exec_lo"
EXP = f"s_and_b32 exec_lo, s{S_RM}, 0x77777777\ns_mov_b32 exec_hi, 0"
def acc_zero(r, masked):
    o = [f"s_mov_b32 exec_lo, s{S_RM}\ns_mov_b32 exec_hi, s{S_RM}"] if masked else []
    o += [f"v_mov_b64 {v(r.A0+i,2)}, 0" for i in range(0, 32, 2)]
    if masked: o.append("s_mov_b64 exec, -1")
    return o
def flush_plain(r):
    o = flush_addr(r) + [EX3]
    o += [f"ds_write_b128 v{r.t2}, {v(r.A0+4*q,4)} offset:{32*q}" for q in range(8)]
    o += ["s_mov_b64 exec, -1", "s_waitcnt lgkmcnt(8)"] + flush_dot(r)
    o += [EXP, f"ds_write_b32 v{r.t3}, v{r.t4}"] + acc_zero(r, True)
    return o
def flush_atomic(r):
    o = [EX3]
    for t, A in ((0, r.A0), (1, r.A1)):
        for i in range(16):
            o.append(f"ds_add_f32 v{r.t2}, v{A+i} offset:{(32*t + 8*(i>>2) + (i&3))*4}")
    o += [EXP, f"ds_add_f32 v{r.t3}, v{r.t4}", "s_mov_b64 exec, -1"]
    return o
def rmw_reads(r):
    return [EX3] + [f"ds_read_b128 {v(r.D0+4*q,4)}, v{r.t2} offset:{32*q}" for q in range(8)] + \
           [EXP, f"ds_read_b32 v{r.t5}, v{r.t3}", "s_mov_b64 exec, -1"]
def rmw_writes(r):
    o = [EX3]
    for q in range(8):
        o += ["s_waitcnt lgkmcnt(8)",
              f"v_pk_add_f32 {v(r.D0+4*q,2)}, {v(r.D0+4*q,2)}, {v(r.A0+4*q,2)}",
              f"v_pk_add_f32 {v(r.D0+4*q+2,2)}, {v(r.D0+4*q+2,2)}, {v(r.A0+4*q+2,2)}",
              f"ds_write_b128 v{r.t2}, {v(r.D0+4*q,4)} offset:{32*q}"]
    o += [EXP, "s_waitcnt lgkmcnt(8)", f"v_add_f32 v{r.t4}, v{r.t4}, v{r.t5}", f"ds_write_b32 v{r.t3}, v{r.t4}", "s_mov_b64 exec, -1"]
    return o
def retire_mask(r):
    return [f"s_mov_b32 s{S_RM}, 0xffff",
            f"s_bitcmp1_b32 s{S_NBP}, 2",
            f"s_cselect_b32 s{S_RM}, 0xffff0000, s{S_RM}",
            f"s_add_u32 s{S_TMP}, s{S_NBP}, 4",
            f"s_cmp_eq_u32 s{S_TMP}, s{S_NB}",
            f"s_cselect_b32 s{S_RM}, s{S_RM}, -1"]

def gen():
    a = Asm(); r = alloc()
    t0, t1, t2, t3, t4, t5 = r.t0, r.t1, r.t2, r.t3, r.t4, r.t5
    T_DST, T_SRC, T_EA, T_POS, T_WE, T_WH, T_H, T_X = TS
    a.label(KNAME)
    DST = r.D0; SRC = r.D0 + 8; EA = r.D0 + 16; BINA = r.D0 + 32; RNK = r.D0 + 40
    V16, V32, L16 = r.V16, r.V8, r.L16
    POSR = r.PD
    S_CN = S_T0; S_O4 = S_NTL; S_O8 = S_CNT; S_N0 = S_SEG; S_NN = S_D; S_BUD = S_I
    MA = [80, 82]
    e_, hh_ = t0, t1
    a(f"""
    s_cmp_ge_u32 s2, {NB}
    s_cbranch_scc1 L_done
    s_load_dwordx16 s[4:19], s[0:1], 0
    s_and_b32 s3, s2, 7
    s_lshl_b32 s3, s3, 5
    s_lshr_b32 s2, s2, 3
    s_or_b32 s2, s2, s3
    s_load_dwordx4 s[20:23], s[0:1], 64
    s_load_dwordx2 s[24:25], s[0:1], 80
    v_lshrrev_b32 v{t0}, 6, v0
    v_and_b32 v{r.lane}, 63, v0
    v_readfirstlane_b32 s{S_V}, v{t0}
    v_mov_b32 v{r.Zero}, 0
    v_lshlrev_b32 v{V16}, 4, v0
    v_lshlrev_b32 v{V32}, 5, v0
    v_lshlrev_b32 v{L16}, 4, v{r.lane}
    v_mov_b64 {v(r.T,2)}, 0
    v_mov_b64 {v(r.T+2,2)}, 0
    s_mul_i32 s{S_O4}, s2, {CH*4}
    s_lshl_b32 s{S_O8}, s{S_O4}, 1
    s_mov_b32 s{S_CN}, {CH}
    s_cmp_eq_u32 s2, {NB-1}
    s_cselect_b32 s{S_CN}, {E-(NB-1)*CH}, s{S_CN}
    s_lshl_b32 s3, s{S_CN}, 2
    s_add_u32 s3, s3, s{S_O4}
    s_lshl_b32 s{S_TMP3}, s3, 1
    s_add_u32 s{S_TMP}, s{S_O4}, 8192
    s_add_u32 s{S_TMP2}, s{S_O8}, 16384
    s_lshl_b32 s{S_MODE}, s2, 10
    s_waitcnt lgkmcnt(0)
    """)
    a(srd(SR_TAB, P_WS, NB * 1024, WS_TAB))
    a(f"s_cmp_lg_u32 s{S_V}, 0\ns_cbranch_scc1 L_noclr\nbuffer_store_dwordx4 {v(r.T,4)}, v{L16}, {s(SR_TAB,4)}, s{S_MODE} offen {opt.st}\nL_noclr:")
    a(srd(T_DST, P_DST, "s3"))
    a(f"""
    buffer_load_dwordx4 {v(DST,4)}, v{V16}, {s(T_DST,4)}, s{S_O4} offen {opt.ld}
    buffer_load_dwordx4 {v(DST+4,4)}, v{V16}, {s(T_DST,4)}, s{S_TMP} offen {opt.ld}
    """)
    a(srd(T_SRC, P_SRC, "s3")); a(srd(T_EA, P_EA, f"s{S_TMP3}"))
    if not opt.late:
        a(f"""
        buffer_load_dwordx4 {v(SRC,4)}, v{V16}, {s(T_SRC,4)}, s{S_O4} offen {opt.ld}
        buffer_load_dwordx4 {v(EA,4)}, v{V32}, {s(T_EA,4)}, s{S_O8} offen {opt.ld}
        buffer_load_dwordx4 {v(EA+4,4)}, v{V32}, {s(T_EA,4)}, s{S_O8} offen offset:16 {opt.ld}
        s_add_u32 s{S_O4}, s{S_O4}, 8192
        s_add_u32 s{S_O8}, s{S_O8}, 16384
        buffer_load_dwordx4 {v(SRC+4,4)}, v{V16}, {s(T_SRC,4)}, s{S_O4} offen {opt.ld}
        buffer_load_dwordx4 {v(EA+8,4)}, v{V32}, {s(T_EA,4)}, s{S_O8} offen {opt.ld}
        buffer_load_dwordx4 {v(EA+12,4)}, v{V32}, {s(T_EA,4)}, s{S_O8} offen offset:16 {opt.ld}
        """)
    if opt.stamp or opt.diag: a(f"v_mov_b32 v{r.ST}, 0")
    stamp(a, r, 0, True); stamp(a, r, 1)
    a(f"""
    v_add_u32 v{t3}, {L_HIST}, v{L16}
    ds_write_b128 v{t3}, {v(r.T,4)}
    s_mul_i32 s{S_N0}, s2, {BN}
    s_lshl_b32 s{S_B4}, s2, 2
    s_lshr_b32 s{S_RT}, s{S_V}, 1
    s_and_b32 s{S_T}, s{S_V}, 1
    """)
    NY = 10
    a(f"""
    s_sub_u32 s{SR_HD}, s{P_H}, 3072
    s_subb_u32 s{SR_HD+1}, s{P_H+1}, 0
    s_mov_b32 s{SR_HD+2}, {N*128+3072}
    s_mov_b32 s{SR_HD+3}, 0x00020000
    """)
    a(srd(SR_REC, P_WS, NB * REC_STRIDE)); a(srd(SR_P4, P_WS, N, WS_P4))
    a(f"""
    s_and_b32 s{SR_P4+1}, s{SR_P4+1}, 0xffff
    s_or_b32 s{SR_P4+1}, s{SR_P4+1}, 0x80000
    s_sub_u32 s{S_NN}, {N}, s{S_N0}
    s_min_u32 s{S_NN}, s{S_NN}, {BN}
    s_lshl_b32 s{S_TMP}, s{S_N0}, 7
    s_lshl_b32 s{S_TMP2}, s{S_NN}, 7
    """)
    a(srd(SR_OUT, P_OUT, f"s{S_TMP2}", f"s{S_TMP}"))
    a(f"s_mul_i32 s{S_TMP}, s{S_N0}, 6\ns_add_u32 s{S_TMP}, s{S_TMP}, {OUT_POS}\ns_mul_i32 s{S_TMP2}, s{S_NN}, 6")
    a(srd(SR_OUTP, P_OUT, f"s{S_TMP2}", f"s{S_TMP}"))
    T_RO = T_DST; T_DBG = T_SRC
    if opt.late:
        a(f"""
        buffer_load_dwordx4 {v(SRC,4)}, v{V16}, {s(T_SRC,4)}, s{S_O4} offen {opt.ld}
        buffer_load_dwordx4 {v(EA,4)}, v{V32}, {s(T_EA,4)}, s{S_O8} offen {opt.ld}
        buffer_load_dwordx4 {v(EA+4,4)}, v{V32}, {s(T_EA,4)}, s{S_O8} offen offset:16 {opt.ld}
        s_add_u32 s{S_O4}, s{S_O4}, 8192
        s_add_u32 s{S_O8}, s{S_O8}, 16384
        buffer_load_dwordx4 {v(SRC+4,4)}, v{V16}, {s(T_SRC,4)}, s{S_O4} offen {opt.ld}
        buffer_load_dwordx4 {v(EA+8,4)}, v{V32}, {s(T_EA,4)}, s{S_O8} offen {opt.ld}
        buffer_load_dwordx4 {v(EA+12,4)}, v{V32}, {s(T_EA,4)}, s{S_O8} offen offset:16 {opt.ld}
        """)
    a(f"s_mul_i32 s{S_TMP}, s2, {REC_STRIDE}\ns_mul_i32 s{S_TMP2}, s{S_CN}, 12")
    a(srd(T_RO, P_WS, f"s{S_TMP2}", f"s{S_TMP}")); a(srd(T_DBG, P_DBG, 256))
    ONE = r.PQ
    a(f"""
    v_mov_b32 v{ONE}, 1
    s_lshr_b32 s3, s{S_CN}, 2
    v_cmp_gt_u32 {s(MA[0],2)}, s3, v0
    v_add_u32 v{t2}, 512, v0
    v_cmp_gt_u32 {s(MA[1],2)}, s3, v{t2}
    """)
    a(f"""
    s_mov_b32 s{S_C}, 0x{f2u(-LOG2E):08x}
    s_mov_b32 s{S_C+1}, 0x{f2u(-LOG2E):08x}
    s_mov_b32 s{S_ONE}, 1.0
    s_mov_b32 s{S_ONE+1}, 1.0
    s_mov_b32 s{S_MODE}, 0
    s_mov_b32 s{S_BUD}, 0x40000
    """)
    nonlocal_z = [r.T]
    def zero_region(base, size):
        assert base % 16 == 0 and size % 16 == 0
        full = size // 8192; rem = size % 8192
        a(f"v_add_u32 v{t3}, {base}, v{V16}")
        for k in range(full):
            a(f"ds_write_b128 v{t3}, {v(nonlocal_z[0],4)} offset:{k*8192}")
        if rem:
            a(f"v_cmp_gt_u32 vcc, {rem//16}, v0\ns_and_saveexec_b64 {s(S_D,2)}, vcc")
            a(f"ds_write_b128 v{t3}, {v(nonlocal_z[0],4)} offset:{full*8192}\ns_mov_b64 exec, -1")
    a(f"""
    ds_write_b128 v{L16}, {v(nonlocal_z[0],4)} offset:{L_CNT}
    v_mov_b32 v{t3}, {L_FLAG}
    ds_write_b128 v{t3}, {v(nonlocal_z[0],4)}
    """)
    zero_region(L_SIMG, 8 * 2048)
    JJ = r.SA; LB = r.HA + 0; J16 = r.HA + 1
    a(f"""
    v_and_b32 v{e_}, 31, v{r.lane}
    v_lshrrev_b32 v{hh_}, 5, v{r.lane}
    s_lshl_b32 s{S_TMP}, s{S_V}, 12
    s_add_u32 s{S_TMP}, s{S_TMP}, {L_RING}
    s_mov_b32 m0, s{S_TMP}
    v_and_b32 v{t2}, 3, v{e_}
    v_lshlrev_b32 v{t3}, 10, v{t2}
    v_lshrrev_b32 v{t4}, 2, v{e_}
    v_lshl_add_u32 v{t3}, v{t4}, 7, v{t3}
    v_add_u32 v{t3}, s{S_TMP}, v{t3}
    v_bfe_u32 v{t4}, v{e_}, 3, 1
    v_lshl_or_b32 v{t2}, v{t4}, 2, v{t2}
    v_xor_b32 v{t2}, v{t2}, v{hh_}
    """)
    for k in range(4):
        a(f"v_xor_b32 v{t4}, {2*k}, v{t2}\nv_lshl_add_u32 v{r.HA+k}, v{t4}, 4, v{t3}")
    a(f"""
    v_and_b32 v{t2}, 7, v{r.lane}
    v_bfe_u32 v{t3}, v{r.lane}, 4, 1
    v_lshlrev_b32 v{t3}, 2, v{t3}
    v_xor_b32 v{t2}, v{t2}, v{t3}
    """)
    for k in range(4):
        a(f"v_xor_b32 v{t4}, {k}, v{t2}\nv_lshlrev_b32 v{r.XK+k}, 4, v{t4}")
    JJ = r.SA; LB = r.A1a; J16 = r.A2a; MX = r.NA; TA = r.Desc
    LP = r.K; LPT = r.PI
    a(f"""
    s_lshl_b32 s{S_TMP}, s{S_V}, 11
    s_add_u32 s{S_TMP}, s{S_TMP}, {L_SIMG}
    v_bfe_u32 v{t2}, v{e_}, 1, 3
    v_lshlrev_b32 v{t2}, 3, v{t2}
    v_lshl_add_u32 v{t2}, v{e_}, 6, v{t2}
    v_add_u32 v{r.SB}, s{S_TMP}, v{t2}
    v_bfe_u32 v{t2}, v{r.lane}, 2, 2
    v_lshl_add_u32 v{t2}, v{hh_}, 2, v{t2}
    v_bfe_u32 v{t3}, v{r.lane}, 4, 1
    v_and_b32 v{t4}, 3, v{r.lane}
    v_lshl_or_b32 v{t3}, v{t3}, 2, v{t4}
    v_lshlrev_b32 v{LP}, 3, v{t3}
    v_bfe_u32 v{t4}, v{r.lane}, 2, 2
    v_lshl_add_u32 v{LP}, v{t4}, 7, v{LP}
    v_lshrrev_b32 v{t4}, 1, v{t2}
    v_xor_b32 v{t3}, v{t3}, v{t4}
    v_lshlrev_b32 v{t2}, 6, v{t2}
    v_add_u32 v{t2}, s{S_TMP}, v{t2}
    v_lshl_add_u32 v{r.TR0}, v{t3}, 3, v{t2}
    v_xor_b32 v{t3}, 4, v{t3}
    v_lshl_add_u32 v{r.TR1}, v{t3}, 3, v{t2}
    v_add_u32 v{r.TR1}, 512, v{r.TR1}
    v_lshlrev_b32 v{t2}, 4, v{e_}
    v_add_u32 v{r.AWl}, {L_AT}, v{t2}
    v_lshrrev_b32 v{t2}, 2, v{e_}
    v_mul_u32_u24 v{t2}, {ACC_ROW}, v{t2}
    v_add_u32 v{t2}, {L_ACC}, v{t2}
    v_lshl_add_u32 v{r.FlM}, v{hh_}, 4, v{t2}
    v_and_b32 v{t3}, 3, v{e_}
    v_lshl_add_u32 v{r.FlP}, v{t3}, 2, v{t2}
    v_add_u32 v{r.FlP}, 256, v{r.FlP}
    v_lshlrev_b32 v{t2}, 7, v{hh_}
    v_add_u32 v{r.WXa}, {L_WX}, v{t2}
    v_bfe_u32 v{t2}, v{e_}, 4, 1
    v_add_u32 v{r.ML}, -1, v{t2}
    v_lshrrev_b32 v{t5}, 4, v0
    v_lshlrev_b32 v{TA}, 10, v{t5}
    v_and_b32 v{t2}, 15, v0
    v_add_u32 v{JJ}, 0x8000, v{t2}
    v_add_u32 v{J16}, 0x8010, v{t2}
    s_mov_b32 s{S_TMP}, {REC_STRIDE}
    v_mul_lo_u32 v{LB}, v{t5}, s{S_TMP}
    v_mad_u32_u24 v{LB}, v{t2}, 12, v{LB}
    v_mov_b32 v{MX}, 0
    s_mov_b32 s{S_TMP}, 5350
    s_mov_b32 s{S_TMP2}, {BN}
    s_mov_b32 s3, {L_HIST}
    s_waitcnt lgkmcnt(0)
    s_barrier
    s_cmp_lg_u32 s{S_V}, 0
    s_cbranch_scc1 L_noflag
    v_mov_b32 v{t3}, s2
    s_waitcnt vmcnt(8)
    s_mov_b64 exec, 1
    buffer_store_byte v{ONE}, v{t3}, {s(T_DBG,4)}, 0 offen sc1
    s_mov_b64 exec, -1
    L_noflag:
    """)
    stamp(a, r, 2)
    for half in range(2):
        a(f"s_waitcnt vmcnt({7 - half})\ns_mov_b64 exec, {s(MA[half],2)}")
        for k in range(4 * half, 4 * half + 4):
            a(f"""
            v_mul_u32_u24 v{BINA+k}, s{S_TMP}, v{DST+k}
            v_lshrrev_b32 v{BINA+k}, 19, v{BINA+k}
            v_mul_u32_u24 v{t2}, s{S_TMP2}, v{BINA+k}
            v_lshl_add_u32 v{BINA+k}, v{BINA+k}, 2, s3
            ds_add_rtn_u32 v{RNK+k}, v{BINA+k}, v{ONE}
            v_sub_u32 v{DST+k}, v{DST+k}, v{t2}
            """)
    C = r.T; TE = r.M
    a(f"""
    s_mov_b64 exec, -1
    v_add_u32 v{t2}, {L_HIST}, v{L16}
    s_waitcnt lgkmcnt(0)
    s_barrier
    """)
    stamp(a, r, 3)
    a(f"""
    ds_read_b128 {v(C,4)}, v{t2}
    s_waitcnt lgkmcnt(0)
    v_add_u32 v{C+5}, v{C}, v{C+1}
    v_add_u32 v{C+6}, v{C+5}, v{C+2}
    v_add_u32 v{C+7}, v{C+6}, v{C+3}
    v_mov_b32 v{C+4}, v{C+7}
    """)
    a(wave_scan(C + 4))
    a(f"""
    v_sub_u32 v{C+8}, v{C+4}, v{C+7}
    v_add_u32 v{C+9}, v{C+8}, v{C}
    v_add_u32 v{C+10}, v{C+8}, v{C+5}
    v_add_u32 v{C+11}, v{C+8}, v{C+6}
    ds_write_b128 v{t2}, {v(C+8,4)} offset:1024
    """)
    for half in range(2):
        a(f"s_mov_b64 exec, {s(MA[half],2)}")
        for k in range(4 * half, 4 * half + 4):
            a(f"ds_read_b32 v{BINA+k}, v{BINA+k} offset:1024")
    TEV = r.A1 + 12
    a("s_mov_b64 exec, -1")
    for k in range(4):
        a(f"v_mul_u32_u24 v{TEV+k}, 12, v{C+8+k}\nv_lshl_or_b32 v{TEV+k}, v{C+k}, 16, v{TEV+k}\nv_or_b32 v{TEV+k}, 0x80000000, v{TEV+k}")
    for half in range(2):
        a(f"s_waitcnt vmcnt({3 - 3*half}) lgkmcnt({4 if half == 0 else 8})\ns_mov_b64 exec, {s(MA[half],2)}")
        for k in range(4 * half, 4 * half + 4):
            a(f"""
            v_add_lshl_u32 v{BINA+k}, v{BINA+k}, v{RNK+k}, 4
            v_lshl_or_b32 v{SRC+k}, v{SRC+k}, 7, v{DST+k}
            ds_write_b64 v{BINA+k}, {v(EA+2*k,2)} offset:{L_STG}
            ds_write_b32 v{BINA+k}, v{SRC+k} offset:{L_STG+8}
            """)
    T_X2 = T_WE
    a(f"""
    s_mov_b64 exec, -1
    v_lshrrev_b32 v{t2}, 3, v{r.lane}
    v_and_b32 v{t3}, 7, v{r.lane}
    v_lshrrev_b32 v{t4}, 4, v{r.lane}
    s_lshl_b32 s3, s{S_T}, 2
    v_or_b32 v{t4}, s3, v{t4}
    v_xor_b32 v{t3}, v{t3}, v{t4}
    v_lshlrev_b32 v{t3}, 4, v{t3}
    v_lshl_add_u32 v{t3}, v{t2}, 7, v{t3}
    v_and_b32 v{t2}, 127, v0
    v_add_u32 v{t2}, s{S_N0}, v{t2}
    v_mul_u32_u24 v{t2}, 6, v{t2}
    v_and_b32 v{t4}, 3, v{r.lane}
    v_bfe_u32 v{t5}, v{r.lane}, 2, 3
    v_lshl_or_b32 v{t4}, v{t5}, 3, v{t4}
    v_lshrrev_b32 v{t5}, 5, v{r.lane}
    v_lshl_or_b32 v{t4}, v{t5}, 2, v{t4}
    v_lshlrev_b32 v{t4}, 1, v{t4}
    s_lshl_b32 s{S_TMP}, s{S_V}, 10
    s_add_u32 s{S_TMP2}, s{S_TMP}, 8192
    """)
    a(srd(T_WE, P_WE, 133 * 128))
    a(f"""
    s_cmp_lg_u32 s{S_V}, 1
    s_cbranch_scc1 L_nowe
    s_mov_b32 m0, {L_WE+16384}
    s_mov_b32 s3, 16384
    buffer_load_dwordx4 v{L16}, {s(T_WE,4)}, s3 offen lds
    L_nowe:
    s_add_u32 m0, s{S_TMP}, {L_WE}
    s_nop 0
    buffer_load_dwordx4 v{L16}, {s(T_WE,4)}, s{S_TMP} offen lds
    s_add_u32 m0, s{S_TMP}, {L_WE+8192}
    """)
    a(srd(T_WH, P_WH, 128 * 128))
    a(f"buffer_load_dwordx4 v{L16}, {s(T_WE,4)}, s{S_TMP2} offen lds\ns_add_u32 m0, s{S_TMP}, {L_WH1}")
    a(srd(T_H, P_H, N * 128))
    a(f"""
    buffer_load_dwordx4 v{L16}, {s(T_WH,4)}, s{S_TMP} offen lds
    s_add_u32 m0, s{S_TMP}, {L_WH2}
    s_lshl_b32 s3, s{S_N0}, 7
    buffer_load_dwordx4 v{L16}, {s(T_WH,4)}, s{S_TMP2} offen lds
    s_add_u32 s3, s3, s{S_TMP}
    s_add_u32 m0, s{S_TMP}, {L_HST}
    s_add_u32 s{S_TMP2}, s3, 8192
    buffer_load_dwordx4 v{t3}, {s(T_H,4)}, s3 offen lds
    s_add_u32 m0, s{S_TMP}, {L_HST+8192}
    """)
    a(srd(T_POS, P_POS, N * 6))
    a(f"buffer_load_dwordx4 v{t3}, {s(T_H,4)}, s{S_TMP2} offen lds")
    a(srd(T_X2, P_WX, 128))
    a(f"""
    buffer_load_ushort v{POSR}, v{t2}, {s(T_POS,4)}, 0 offen
    buffer_load_ushort v{POSR+1}, v{t2}, {s(T_POS,4)}, 0 offen offset:2
    buffer_load_ushort v{POSR+2}, v{t2}, {s(T_POS,4)}, 0 offen offset:4
    buffer_load_ushort v{POSR+3}, v{t4}, {s(T_X2,4)}, 0 offen
    """)
    a(f"s_lshl_b32 s{S_TMP}, s{S_V}, 12\ns_add_u32 m0, s{S_TMP}, {L_RING}")
    a(f"""
    s_mov_b32 s{S_NL}, 0x0000bf80
    s_mov_b32 s{S_NH}, 0xbf800000
    s_mov_b32 s{S_MSK}, 0xffffff80
    s_mov_b32 s{S_SO0}, 3072
    s_mov_b32 s{S_SO1}, 2048
    s_mov_b32 s{S_SO2}, 1024
    s_mov_b32 s{S_HI}, 0
    s_mov_b32 s{S_HI+1}, -1
    v_mul_u32_u24 v{t2}, 12, v0
    v_add_u32 v{t5}, {L_WE + 128*128}, v{LP}
    v_lshl_add_u32 v{LP}, v{hh_}, 10, v{LP}
    s_lshl_b32 s{S_TMP}, s{S_T}, 6
    s_add_u32 s{S_TMP}, s{S_TMP}, {L_ACC}
    v_add_u32 v{LPT}, s{S_TMP}, v{LP}
    s_lshl_b32 s{S_TMP2}, s{S_RT}, 11
    v_add_u32 v{t4}, s{S_TMP2}, v{LPT}
    s_waitcnt lgkmcnt(0)
    s_barrier
    """)
    stamp(a, r, 4)
    CO = r.D0; DBGV = r.A1 + 8
    for k in range(7):
        a(f"ds_read_b96 {v(CO+4*k,3)}, v{V16} offset:{L_STG + k*8192}")
    for k in range(7):
        a(f"s_mov_b32 s3, {k*6144}\ns_waitcnt lgkmcnt({6-k})")
        a(f"buffer_store_dwordx3 {v(CO+4*k,3)}, v{t2}, {s(T_RO,4)}, s3 offen {opt.st}")
    a(f"v_lshlrev_b32 v{DBGV+1}, 2, v{r.lane}\ns_cmp_lg_u32 s{S_V}, 0\ns_cbranch_scc1 L_nodbg\nbuffer_load_dword v{DBGV}, v{DBGV+1}, {s(T_DBG,4)}, 0 offen sc1\nL_nodbg:")
    stamp(a, r, 5)
    Q2 = r.W2; UP = r.W2 + 4; Q5 = r.W2 + 16; NTD = r.W2 + 24
    a("s_waitcnt vmcnt(7)\ns_barrier")
    a(f"ds_read_b64_tr_b16 {v(Q2,2)}, v{t4} offset:{8192+8192}\nds_read_b64_tr_b16 {v(Q2+2,2)}, v{t4} offset:{8192+8192+512}")
    for t in range(2):
        a(f"ds_read_b64_tr_b16 {v(Q5+4*t,2)}, v{t5} offset:{128+64*t}\nds_read_b64_tr_b16 {v(Q5+4*t+2,2)}, v{t5} offset:{64*t}")
    a(f"""
    v_lshl_or_b32 v{r.PS}, v{POSR+1}, 16, v{POSR}
    v_mov_b32 v{r.PS+1}, v{POSR+2}
    v_add_u32 v{t3}, s{S_N0}, v0
    v_cmp_gt_u32 vcc, {BN}, v0
    s_and_saveexec_b64 {s(S_D,2)}, vcc
    buffer_store_dwordx2 {v(r.PS,2)}, v{t3}, {s(SR_P4,4)}, 0 idxen {opt.st}
    s_mov_b64 exec, -1
    v_and_b32 v{t2}, 1, v0
    v_lshlrev_b32 v{t2}, 4, v{t2}
    v_mov_b32 v{t3}, 0x3f80
    v_lshlrev_b32 v{t2}, v{t2}, v{t3}
    v_bfe_u32 v{t3}, v0, 1, 2
    """)
    for d in range(4):
        a(f"v_cmp_eq_u32 vcc, {d}, v{t3}\ns_nop 1\nv_cndmask_b32 v{NTD+d}, 0, v{t2}, vcc")
    a(f"""
    v_lshlrev_b32 v{NTD+4}, 16, v{POSR}
    v_lshlrev_b32 v{NTD+5}, 16, v{POSR+1}
    v_lshlrev_b32 v{NTD+6}, 16, v{POSR+2}
    v_and_b32 v{t3}, 7, v0
    v_lshlrev_b32 v{NTD+7}, 3, v{t3}
    v_lshlrev_b32 v{POSR+3}, 16, v{POSR+3}
    v_mul_f32 v{POSR+3}, 0x{f2u(-LN2):08x}, v{POSR+3}
    v_lshlrev_b32 v{t3}, 2, v{r.lane}
    v_add_u32 v{t3}, {L_WX}, v{t3}
    s_waitcnt lgkmcnt(0)
    ds_write_b32 v{t3}, v{POSR+3}
    s_cmp_ge_u32 s{S_V}, 4
    s_cbranch_scc1 L_nont
    ds_write_b128 v{V32}, {v(NTD,4)}
    ds_write_b128 v{V32}, {v(NTD+4,4)} offset:16
    L_nont:
    """)
    for j in range(4):
        a(f"v_lshlrev_b32 v{UP+2*j}, 16, v{Q2+j}\nv_and_b32 v{UP+2*j+1}, 0xffff0000, v{Q2+j}")
    for j in range(4):
        a(f"v_pk_mul_f32 {v(UP+2*j,2)}, {v(UP+2*j,2)}, {s(S_C,2)}")
    for j in range(4):
        a(f"v_cvt_pk_bf16_f32 v{Q2+j}, v{UP+2*j}, v{UP+2*j+1}")
    a(f"""
    s_lshl_b32 s{S_TMP}, s{S_V}, 10
    s_add_u32 s{S_TMP}, s{S_TMP}, {L_W2S}
    v_add_u32 v{t4}, s{S_TMP}, v{L16}
    ds_write_b128 v{t4}, {v(Q2,4)}
    """)
    for t in range(2):
        x = Q5 + 4 * t; B = r.BW + 4 * t
        a(f"""
        v_lshlrev_b32 v{UP}, 16, v{x}
        v_and_b32 v{UP+1}, 0xffff0000, v{x}
        v_lshlrev_b32 v{UP+2}, 16, v{x+1}
        v_and_b32 v{UP+3}, 0xffff0000, v{x+1}
        v_lshlrev_b32 v{UP+4}, 16, v{x+2}
        v_pk_mul_f32 {v(UP,2)}, {v(UP,2)}, {s(S_C,2)}
        v_pk_mul_f32 {v(UP+2,2)}, {v(UP+2,2)}, {s(S_C,2)}
        v_mul_f32 v{UP+4}, s{S_C}, v{UP+4}
        v_cvt_pk_bf16_f32 v{B}, v{UP}, v{UP+1}
        v_cvt_pk_bf16_f32 v{B+1}, v{UP+2}, v{UP+3}
        v_cvt_pk_bf16_f32 v{UP+5}, v{UP+4}, v{UP+4}
        v_lshlrev_b32 v{UP+5}, 16, v{UP+5}
        v_sub_f32 v{UP+5}, v{UP+4}, v{UP+5}
        v_cvt_pk_bf16_f32 v{B+2}, v{UP+4}, v{UP+5}
        v_mov_b32 v{B+3}, 0
        """)
    W1F = r.T; WH1F = r.W2; AD = r.XM; HI = r.W2 + 16
    a(f"""
    s_lshl_b32 s{S_TMP}, s{S_RT}, 12
    s_add_u32 s{S_TMP}, s{S_TMP}, {L_HST}
    v_lshlrev_b32 v{t2}, 7, v{e_}
    v_add_u32 v{t2}, s{S_TMP}, v{t2}
    v_bfe_u32 v{t3}, v{e_}, 1, 3
    v_xor_b32 v{t5}, v{t3}, v{hh_}
    """)
    for k in range(4):
        a(f"v_xor_b32 v{t4}, {2*k}, v{t5}\nv_lshl_add_u32 v{t4}, v{t4}, 4, v{t2}\nds_read_b128 {v(r.H+4*k,4)}, v{t4}")
    for k in range(4):
        a(f"ds_read_b64_tr_b16 {v(W1F+4*k,2)}, v{LPT} offset:{8192+2048*k}\nds_read_b64_tr_b16 {v(W1F+4*k+2,2)}, v{LPT} offset:{8192+2048*k+512}")
    a(f"s_lshl_b32 s{S_TMP}, s{S_T}, 2\nv_xor_b32 v{t5}, s{S_TMP}, v{t3}\nv_lshl_add_u32 v{t2}, v{hh_}, 3, v{t2}")
    for k in range(4):
        a(f"ds_read_b64_tr_b16 {v(WH1F+4*k,2)}, v{LPT} offset:{2048*k}\nds_read_b64_tr_b16 {v(WH1F+4*k+2,2)}, v{LPT} offset:{2048*k+512}")
    for g in range(4):
        a(f"v_xor_b32 v{t4}, {g}, v{t5}\nv_lshl_add_u32 v{t4}, v{t4}, 4, v{t2}\nds_read_b64 {v(r.HR+2*g,2)}, v{t4}")
    stamp(a, r, 6)
    a(f"""
    s_lshl_b32 s3, s2, 10
    s_mov_b32 s{S_TMP}, 0x01010101
    s_waitcnt vmcnt(0) lgkmcnt(0)
    s_cmp_lg_u32 s{S_V}, 0
    s_cbranch_scc1 L_chkd
    L_chk:
    v_cmp_ne_u32 vcc, s{S_TMP}, v{DBGV}
    s_cbranch_vccz L_chkd
    s_sub_u32 s{S_BUD}, s{S_BUD}, 1
    s_cbranch_scc1 L_chkd
    s_sleep 8
    buffer_load_dword v{DBGV}, v{DBGV+1}, {s(T_DBG,4)}, 0 offen sc1
    s_waitcnt vmcnt(0)
    s_branch L_chk
    L_chkd:
    s_barrier
    s_cmp_lg_u32 s{S_V}, 0
    s_cbranch_scc1 L_nopub
    buffer_store_dwordx4 {v(TEV,4)}, v{L16}, {s(SR_TAB,4)}, s3 offen {opt.st}
    L_nopub:
    s_mov_b32 s{S_TMP}, s{S_B4}
    """)
    stamp(a, r, 7)
    def REC(q): return r.D0 + 4 * q
    TABV = r.M; ADR = r.T
    for rr in range(8):
        a(f"buffer_load_dword v{TABV+rr}, v{TA}, {s(SR_TAB,4)}, s{S_TMP} offen {opt.hl}")
        if rr < 7: a(f"s_add_u32 s{S_TMP}, s{S_TMP}, 32768")
    for k in range(4): a(mfma(AD, r.H+4*k, W1F+4*k, AD if k else None))
    for k in range(4): a(mfma(r.U, WH1F+4*k, r.H+4*k, r.U if k else None))
    a(f"""
    s_lshl_b32 s{S_TMP}, s{S_RT}, 12
    s_lshl_b32 s{S_TMP2}, s{S_T}, 9
    s_add_u32 s{S_TMP}, s{S_TMP}, s{S_TMP2}
    s_add_u32 s{S_TMP}, s{S_TMP}, {L_AT}
    v_lshlrev_b32 v{t2}, 4, v{e_}
    v_lshl_add_u32 v{t2}, v{hh_}, 3, v{t2}
    v_add_u32 v{t2}, s{S_TMP}, v{t2}
    v_add_u32 v{t4}, {L_W2S}, v{L16}
    """)
    for g in range(4):
        x = AD + 4 * g
        if g == 2: a(f"s_cmp_eq_u32 s{S_RT}, 3\ns_cbranch_scc1 L_at_done")
        a(f"""
        v_pk_mul_f32 {v(x,2)}, {v(x,2)}, {s(S_C,2)}
        v_pk_mul_f32 {v(x+2,2)}, {v(x+2,2)}, {s(S_C,2)}
        v_cvt_pk_bf16_f32 v{x}, v{x}, v{x+1}
        v_cvt_pk_bf16_f32 v{x+1}, v{x+2}, v{x+3}
        ds_write_b64 v{t2}, {v(x,2)} offset:{g*1024}
        """)
    a.label("L_at_done")
    for sidx in range(4):
        for t in range(2):
            a(f"ds_read_b128 {v(r.W2+16*t+4*sidx,4)}, v{t4} offset:{(2*sidx+t)*1024}")
    a(f"v_mov_b32 v{r.XM+3}, 0")
    for i in range(2, 8, 2): a(f"v_mov_b64 {v(r.S+i,2)}, 0")
    for i in range(0, 16, 2): a(f"v_pk_mul_f32 {v(r.U+i,2)}, {v(r.U+i,2)}, {s(S_C,2)}")
    a(f"""
    v_add_u32 v{r.EH}, {L_WH2 - L_ACC}, v{LPT}
    s_mul_i32 s{S_TMP}, s{S_RT}, {32*ACC_ROW}
    s_add_u32 s{S_TMP}, s{S_TMP}, {L_ACC}
    v_mul_u32_u24 v{t2}, {ACC_ROW}, v{e_}
    v_lshl_add_u32 v{t2}, v{hh_}, 5, v{t2}
    v_add_u32 v{r.EM}, s{S_TMP}, v{t2}
    v_min_u32 v{t3}, 311, v0
    v_mul_u32_u24 v{t4}, 171, v{t3}
    v_lshrrev_b32 v{t4}, 9, v{t4}
    v_mul_u32_u24 v{t5}, 3, v{t4}
    v_sub_u32 v{t5}, v{t3}, v{t5}
    v_lshlrev_b32 v{t5}, 2, v{t5}
    v_lshl_add_u32 v{r.EK}, v{t4}, 5, v{t5}
    v_mul_u32_u24 v{r.EP}, {ACC_ROW}, v{t4}
    v_add_u32 v{r.EP}, v{r.EP}, v{t5}
    v_add_u32 v{r.EP}, {L_ACC+256}, v{r.EP}
    s_lshl_b32 s{S_TMP}, s{S_V}, 12
    s_add_u32 s{S_TMP}, s{S_TMP}, {L_RING}
    v_mul_u32_u24 v{t2}, 80, v{e_}
    v_lshl_add_u32 v{t2}, v{hh_}, 3, v{t2}
    v_add_u32 v{r.EW}, s{S_TMP}, v{t2}
    v_lshrrev_b32 v{t3}, 2, v{r.lane}
    v_and_b32 v{t4}, 3, v{r.lane}
    v_lshlrev_b32 v{t4}, 4, v{t4}
    v_lshl_add_u32 v{t5}, v{t3}, 7, v{t4}
    v_mul_u32_u24 v{t3}, 80, v{t3}
    v_add3_u32 v{r.ER}, v{t3}, v{t4}, s{S_TMP}
    s_lshl_b32 s{S_TMP}, s{S_RT}, 12
    s_lshl_b32 s{S_TMP2}, s{S_T}, 6
    s_add_u32 s{S_TMP}, s{S_TMP}, s{S_TMP2}
    v_add_u32 v{r.EG}, s{S_TMP}, v{t5}
    v_lshlrev_b32 v{r.TE}, 1, v0
    v_lshrrev_b32 v{t3}, 4, v{r.lane}
    v_mul_u32_u24 v{t3}, {ACC_ROW}, v{t3}
    v_and_b32 v{t4}, 15, v{r.lane}
    v_lshl_add_u32 v{r.EX}, v{t4}, 4, v{t3}
    """)
    for rr in range(8):
        a(f"""
        s_waitcnt vmcnt({7 + rr})
        L_w{rr}:
        v_cmp_le_i32 vcc, 0, v{TABV+rr}
        s_cbranch_vccz L_g{rr}
        s_sub_u32 s{S_BUD}, s{S_BUD}, 1
        s_cbranch_scc1 L_g{rr}
        s_sleep 2
        """)
        for r2 in range(rr, 8):
            a(f"s_add_u32 s{S_TMP}, s{S_B4}, {r2*32768}\nbuffer_load_dword v{TABV+r2}, v{TA}, {s(SR_TAB,4)}, s{S_TMP} offen {opt.hl}")
        a(f"""
        s_waitcnt vmcnt(0)
        s_branch L_w{rr}
        L_g{rr}:
        v_cmp_lt_u32_sdwa {s(S_M+2*rr,2)}, v{JJ}, v{TABV+rr} src0_sel:DWORD src1_sel:WORD_1
        v_cmp_lt_u32_sdwa {s(S_M+16+2*rr,2)}, v{J16}, v{TABV+rr} src0_sel:DWORD src1_sel:WORD_1
        v_max_u32 v{MX}, v{MX}, v{TABV+rr}
        v_add_u32_sdwa v{ADR+rr}, v{LB}, v{TABV+rr} {SDWA} src1_sel:WORD_0
        s_mov_b32 s{S_TMP}, {rr*32*REC_STRIDE}
        s_mov_b64 exec, {s(S_M+2*rr,2)}
        buffer_load_dwordx3 {v(REC(rr),3)}, v{ADR+rr}, {s(SR_REC,4)}, s{S_TMP} offen {opt.hl}
        s_mov_b64 exec, {s(S_M+16+2*rr,2)}
        buffer_load_dwordx3 {v(REC(8+rr),3)}, v{ADR+rr}, {s(SR_REC,4)}, s{S_TMP} offen offset:192 {opt.hl}
        s_mov_b64 exec, -1
        """)
    stamp(a, r, 8)
    stamp(a, r, 9)
    if opt.warm:
        a(f"""
        s_lshr_b32 s{S_TMP}, s2, 3
        s_lshl_b32 s{S_TMP}, s{S_TMP}, 3
        s_add_u32 s{S_TMP}, s{S_TMP}, s{S_V}
        s_mul_i32 s{S_TMP}, s{S_TMP}, {opt.warm*1024}
        s_add_u32 s{S_TMP}, s{S_TMP}, 3072
        v_lshlrev_b32 v{t2}, 4, v{r.lane}
        """)
        for k in range(opt.warm):
            if k and k % 4 == 0: a(f"s_add_u32 s{S_TMP}, s{S_TMP}, 4096")
            a(f"buffer_load_dwordx4 {v(r.H+12,4)}, v{t2}, {s(SR_HD,4)}, s{S_TMP} offen offset:{(k%4)*1024}")
    a(f"""
    v_cmp_lt_u32 vcc, 0x{((0x8000+33)<<16)-1:08x}, v{MX}
    s_and_saveexec_b64 {s(S_D,2)}, vcc
    v_mov_b32 v{t2}, {L_FLAG}
    ds_write_b32 v{t2}, v{ONE}
    s_mov_b64 exec, -1
    """)
    order = [x for rr in range(8) for x in (rr, 8 + rr)]
    a.label("L_rank")
    for n_, q in enumerate(order):
        if q < 8: a(f"s_waitcnt vmcnt({opt.warm + 14 - n_ + (q if opt.pf else 0)})")
        else: a(f"s_cmp_eq_u64 {s(S_M+2*q,2)}, 0\ns_cbranch_scc1 L_rk{q}")
        a(f"""
        s_mov_b64 exec, {s(S_M+2*q,2)}
        v_lshlrev_b32_sdwa v{ADR+q}, 2, v{REC(q)+2} {SDWA} src1_sel:BYTE_0
        ds_add_rtn_u32 v{REC(q)+3}, v{ADR+q}, v{ONE} offset:{L_CNT}
        """)
        if q < 8 and opt.pf: a(f"buffer_load_ubyte v{r.V4}, v{REC(q)+2}, {s(SR_HD,4)}, s{S_SO0} offen")
        if q >= 8: a.label(f"L_rk{q}")
    a(f"""
    s_mov_b64 exec, -1
    v_lshlrev_b32 v{t2}, 3, v{r.lane}
    v_mov_b32 v{t3}, {L_FLAG}
    s_mov_b32 s{S_PADM}, {0 if opt.slide else 31}
    s_cmp_lg_u32 s{S_MODE}, 0
    s_cselect_b32 s{S_PADM}, 31, s{S_PADM}
    s_waitcnt lgkmcnt(0)
    s_barrier
    """)
    stamp(a, r, 10)
    a(f"s_cmp_lg_u32 s{S_MODE}, 0\ns_cbranch_scc1 L_noaz")
    nonlocal_z[0] = r.S + 4
    zero_region(L_ACC, 112 * ACC_ROW)
    a(f"v_mov_b32 v{t3}, {L_FLAG}\nL_noaz:")
    CA = r.M; CB = r.M + 2; FL = r.M + 4; SS = r.M + 5; TT = r.M + 6; PADR = r.M + 7; O = r.M + 8; INC = r.M + 12; SP = r.M + 13; N1 = r.M + 14
    a(f"""
    ds_read_b64 {v(CA,2)}, v{t2} offset:{L_CNT}
    ds_read_b64 {v(CB,2)}, v{t2} offset:{L_CNT+512}
    ds_read_b32 v{FL}, v{t3}
    v_and_b32 v{t4}, 3, v{r.lane}
    v_cmp_eq_u32 {s(S_NB,2)}, 3, v{t4}
    s_waitcnt lgkmcnt(0)
    v_add_u32 v{N1}, v{CA}, v{CB}
    v_add3_u32 v{SS}, v{N1}, v{CA+1}, v{CB+1}
    v_readfirstlane_b32 s{S_TMP3}, v{FL}
    s_nop 0
    v_add_u32_dpp v{TT}, v{SS}, v{SS} quad_perm:[1,0,3,2] row_mask:0xf bank_mask:0xf
    s_nop 1
    v_add_u32_dpp v{TT}, v{TT}, v{TT} quad_perm:[2,3,0,1] row_mask:0xf bank_mask:0xf
    L_scan:
    v_sub_u32 v{PADR}, 0, v{TT}
    v_and_b32 v{PADR}, s{S_PADM}, v{PADR}
    v_cndmask_b32 v{PADR}, 0, v{PADR}, {s(S_NB,2)}
    v_add_u32 v{SP}, v{SS}, v{PADR}
    v_mov_b32 v{INC}, v{SP}
    """)
    a(wave_scan(INC))
    a(f"""
    s_nop 0
    v_readlane_b32 s{S_TMP}, v{INC}, 63
    v_sub_u32 v{O}, v{INC}, v{SP}
    s_cmp_lg_u32 s{S_PADM}, 0
    s_cbranch_scc1 L_scan_pad
    v_mov_b32_dpp v{PADR}, v{INC} quad_perm:[1,1,3,3] row_mask:0xf bank_mask:0xf
    v_add_u32 v{t4}, -1, v{O}
    v_xor_b32 v{t4}, v{t4}, v{PADR}
    v_cmp_gt_u32 vcc, 32, v{t4}
    v_cmp_gt_u32 {s(S_NBN,2)}, s{S_TMP}, v{PADR}
    s_and_b64 vcc, vcc, {s(S_NBN,2)}
    s_and_b32 vcc_lo, vcc_lo, 0x55555555
    s_and_b32 vcc_hi, vcc_hi, 0x55555555
    v_mov_b32 v{PADR}, s{S_TMP}
    s_cmp_eq_u64 vcc, 0
    s_cbranch_scc1 L_scan_done
    s_mov_b32 s{S_PADM}, 31
    s_branch L_scan
    L_scan_pad:
    v_mov_b32_dpp v{PADR}, v{O} quad_perm:[0,0,0,0] row_mask:0xf bank_mask:0xf
    v_add_u32 v{PADR}, v{PADR}, v{TT}
    v_mov_b64 {v(r.H,2)}, 0
    v_mov_b64 {v(r.H+2,2)}, 0
    ds_write_b128 v{V16}, {v(r.H,4)} offset:{L_REC}
    ds_write_b128 v{V16}, {v(r.H,4)} offset:{L_REC+8192}
    ds_write_b128 v{V16}, {v(r.H,4)} offset:{L_REC+16384}
    ds_write_b128 v{V16}, {v(r.H,4)} offset:{L_REC+24576}
    ds_write_b128 v{V16}, {v(r.H,4)} offset:{L_REC+32768}
    ds_write_b128 v{V16}, {v(r.H,4)} offset:{L_REC+40960}
    s_waitcnt lgkmcnt(0)
    s_barrier
    L_scan_done:
    v_lshrrev_b32 v{t3}, 1, v{r.lane}
    v_add_u32 v{t4}, s{S_TMP}, v{t3}
    v_mul_u32_u24 v{t4}, 12, v{t4}
    v_add_u32 v{t4}, {L_REC}, v{t4}
    ds_write2_b32 v{t4}, v{r.Zero}, v{r.Zero} offset0:0 offset1:1
    ds_write_b32 v{t4}, v{r.Zero} offset:8
    v_add_u32 v{O+1}, v{O}, v{N1}
    v_add_u32 v{O+2}, v{O}, v{CA}
    v_add_u32 v{O+3}, v{O+1}, v{CA+1}
    ds_write_b64 v{t2}, {v(O,2)} offset:{L_OFF}
    ds_write_b64 v{t2}, {v(O+2,2)} offset:{L_OFF+512}
    v_and_b32 v{t3}, 60, v{r.lane}
    v_add_u32 v{t3}, {L_WEND}, v{t3}
    ds_write_b32 v{t3}, v{PADR}
    s_add_u32 s{S_TMP}, s{S_TMP}, 31
    s_lshr_b32 s{S_TMP}, s{S_TMP}, 5
    s_cmp_gt_u32 s{S_TMP}, {CAPT}
    s_cselect_b32 s{S_TMP3}, 1, s{S_TMP3}
    s_cmp_lg_u32 s{S_TMP3}, 0
    s_cbranch_scc1 L_slow
    """)
    for q in order:
        if q >= 8: a(f"s_cmp_eq_u64 {s(S_M+2*q,2)}, 0\ns_cbranch_scc1 L_pa{q}")
        a(f"s_mov_b64 exec, {s(S_M+2*q,2)}\nds_read_b32 v{ADR+q}, v{ADR+q} offset:{L_OFF}")
        if q >= 8: a.label(f"L_pa{q}")
    a(f"""
    s_and_b32 s{S_T0}, s{S_V}, 3
    s_mul_i32 s{S_T0}, s{S_T0}, s{S_TMP}
    s_add_u32 s{S_NTL}, s{S_T0}, s{S_TMP}
    s_lshr_b32 s{S_T0}, s{S_T0}, 2
    s_lshr_b32 s{S_NTL}, s{S_NTL}, 2
    s_sub_u32 s{S_TMP}, s{S_NTL}, s{S_T0}
    s_mul_i32 s{S_TMP}, s{S_TMP}, {opt.split}
    s_add_u32 s{S_TMP}, s{S_TMP}, 32
    s_lshr_b32 s{S_TMP}, s{S_TMP}, 6
    s_add_u32 s{S_TMP}, s{S_TMP}, s{S_T0}
    s_and_b32 s{S_FI}, s{S_V}, 4
    s_cmp_eq_u32 s{S_TMP}, s{S_T0}
    s_cselect_b32 s{S_FI}, 0, s{S_FI}
    s_cmp_lt_u32 s{S_V}, 4
    s_cselect_b32 s{S_NTL}, s{S_TMP}, s{S_NTL}
    s_cselect_b32 s{S_T0}, s{S_T0}, s{S_TMP}
    s_sub_u32 s{S_NTL}, s{S_NTL}, s{S_T0}
    s_mov_b32 s{S_TMP2}, {L_REC}
    s_waitcnt lgkmcnt(0)
    """)
    for q in order:
        if q >= 8: a(f"s_cmp_eq_u64 {s(S_M+2*q,2)}, 0\ns_cbranch_scc1 L_pb{q}")
        a(f"""
        s_mov_b64 exec, {s(S_M+2*q,2)}
        v_add_u32 v{ADR+q}, v{ADR+q}, v{REC(q)+3}
        v_mad_u32_u24 v{ADR+q}, v{ADR+q}, 12, s{S_TMP2}
        ds_write_b32 v{ADR+q}, v{REC(q)+2} offset:8
        ds_write2_b32 v{ADR+q}, v{REC(q)}, v{REC(q)+1} offset0:0 offset1:1
        """)
        if q >= 8: a.label(f"L_pb{q}")
    a(f"""
    s_mov_b64 exec, -1
    s_mul_i32 s{S_TMP}, s{S_T0}, 384
    s_add_u32 s{S_TMP}, s{S_TMP}, {L_REC}
    v_and_b32 v{t2}, 31, v{r.lane}
    v_mul_u32_u24 v{t2}, 12, v{t2}
    v_add_u32 v{r.A1a}, s{S_TMP}, v{t2}
    v_lshrrev_b32 v{t2}, 3, v{r.lane}
    v_mul_u32_u24 v{t2}, 48, v{t2}
    v_add_u32 v{r.A2a}, s{S_TMP}, v{t2}
    s_sub_u32 s{S_TMP}, s{S_T0}, 1
    v_add_u32 v{t3}, s{S_TMP}, v{r.lane}
    v_mul_u32_u24 v{t2}, 384, v{t3}
    s_waitcnt lgkmcnt(0)
    s_barrier
    """)
    stamp(a, r, 11)
    a(f"s_cmp_eq_u32 s{S_NTL}, 0\ns_cbranch_scc1 L_idle")
    a(k_reads(r, 0))
    a(f"ds_read_u8 v{t4}, v{t2} offset:{L_REC+8}")
    a(ea_read(r, 0))
    a(acc_zero(r, False))
    for i in range(0, 8, 2): a(f"v_mov_b64 {v(r.M+8+i,2)}, 0\nv_mov_b64 {v(r.S+i,2)}, 0")
    a("s_waitcnt lgkmcnt(2)")
    a(dma_addr(r) + dma_issue(r))
    a(f"""
    v_lshrrev_b32 v{r.PI}, 7, v{r.K}
    v_lshlrev_b32_sdwa v{r.NA}, 5, v{r.K} {SDWA} src1_sel:BYTE_0
    buffer_load_dwordx2 {v(r.PS,2)}, v{r.PI}, {s(SR_P4,4)}, 0 idxen
    """)
    a(pd_read(r) + k_reads(r, 1))
    a(f"""
    s_waitcnt lgkmcnt(5)
    v_and_b32 v{t4}, 0x7f, v{t4}
    v_lshrrev_b32 v{t5}, 3, v{t4}
    v_lshlrev_b32 v{t5}, 2, v{t5}
    v_add_u32 v{t5}, {L_WEND}, v{t5}
    ds_read_b32 v{t5}, v{t5}
    v_lshlrev_b32 v{t3}, 5, v{t3}
    s_waitcnt lgkmcnt(0)
    v_sub_u32 v{t5}, v{t5}, v{t3}
    v_min_u32 v{t5}, 32, v{t5}
    v_mad_u32_u24 v{t2}, v{t5}, 12, v{t2}
    ds_read_u8 v{t2}, v{t2} offset:{L_REC-4}
    v_lshl_or_b32 v{t4}, v{t5}, 16, v{t4}
    s_waitcnt lgkmcnt(0)
    v_and_b32 v{t2}, 0x7f, v{t2}
    v_lshl_or_b32 v{r.Desc}, v{t2}, 8, v{t4}
    s_nop 0
    v_readlane_b32 s{S_D}, v{r.Desc}, 1
    v_readlane_b32 s{S_ZP}, v{r.Desc}, 0
    s_nop 1
    s_and_b32 s{S_NB}, s{S_D}, 0x7c
    s_mov_b32 s{S_NBP}, s{S_NB}
    s_lshr_b32 s{S_CNT}, s{S_D}, 16
    s_bfe_u32 s{S_ZP}, s{S_ZP}, 0x80008
    s_cmp_eq_u32 s{S_T0}, 0
    s_cselect_b32 s{S_ZP}, -1, s{S_ZP}
    """)
    a(aw_reads(r, S_NB))
    a("s_waitcnt vmcnt(1)")
    a(h_reads(r))
    a("s_waitcnt lgkmcnt(0)")
    a(dma_addr(r) + dma_issue(r))
    a("s_waitcnt vmcnt(4)")
    a(geometry(r, False))
    for k in range(4): a(mfma(r.D0, r.H+4*k, r.W2+4*k, r.D0 if k else None))
    a("s_waitcnt lgkmcnt(0)")
    a(mfma(r.D0, r.XM, r.BW, r.D0))
    a(f"s_mov_b32 s{S_I}, 2\ns_add_u32 s{S_NTL}, s{S_NTL}, 1")
    if opt.prio: a(f"s_cmp_ge_u32 s{S_V}, 4\ns_cbranch_scc1 L_np\ns_setprio 1\nL_np:")
    a("s_nop 7\ns_nop 1")
    stamp(a, r, 12)
    a(".p2align 6")
    a.label("L_loop")
    pre = k_reads(r, 2) + pd_read(r) + [f"v_readlane_b32 s{S_D}, v{r.Desc}, s{S_I}"] + s_set(r)
    PE = [int(x) for x in opt.mfe.split(",")]; PR = [int(x) for x in opt.mfr.split(",")]
    mf_exp = {PE[k]: mfma(r.D1, r.H+4*k, r.W2+16+4*k, r.D1 if k else None) for k in range(4)}
    mf_rcp = {PR[0]: mfma(r.D1, r.XM, r.BW+4, r.D1), PR[1]: mfma(r.A1, r.M+8, r.S, r.A1), PR[2]: mfma(r.A1, r.M+12, r.S+4, r.A1)}
    ins_exp = {7: [f"s_bfe_u32 s{S_TMP}, s{S_D}, 0x80008", f"s_add_u32 s{S_TMP2}, s{S_NB}, 8", f"s_and_b32 s{S_TMP3}, s{S_D}, 0x7c",
                   f"s_cmp_ge_u32 s{S_TMP}, s{S_TMP2}", f"s_cselect_b32 s{S_NBN}, s{S_TMP3}, s{S_NB}"],
               PE[3]+1: ["s_waitcnt vmcnt(1)"] + h_reads(r)}
    ins_rcp = {2: ["s_waitcnt lgkmcnt(4)"] + dma_addr(r),
               4: ["s_waitcnt lgkmcnt(0)"] + dma_issue(r),
               6: ea_read(r, 1) + [f"s_cmp_eq_u32 s{S_NBN}, s{S_NB}", "s_cbranch_scc1 L_noaw"] + aw_reads(r, S_NBN) + ["L_noaw:"],
               PR[2]+1: s_reads(r)}
    silu_stage(a, r, r.D0, r.M, mf_exp, mf_rcp, ins_exp, ins_rcp, pre)
    a(f"s_cmp_eq_u32 s{S_NB}, s{S_NBP}\ns_cbranch_scc1 L_noflush")
    if "flush" in opt.abl: a("s_branch L_noflush")
    a(retire_mask(r))
    a(f"s_cmp_lg_u32 s{S_MODE}, 0\ns_cbranch_scc1 L_flush_slow")
    a(flush_plain(r))
    a.label("L_noflush")
    pre = [f"s_mov_b32 s{S_NBP}, s{S_NB}", f"s_mov_b32 s{S_NB}, s{S_NBN}", f"s_lshr_b32 s{S_CNT}, s{S_D}, 16",
           "s_waitcnt vmcnt(4)"] + geometry(r, True)
    mf_exp = {PE[k]: mfma(r.D0, r.H+4*k, r.W2+4*k, r.D0 if k else None) for k in range(4)}
    mf_rcp = {PR[0]: mfma(r.D0, r.XM, r.BW, r.D0), PR[1]: mfma(r.A0, r.M, r.S, r.A0), PR[2]: mfma(r.A0, r.M+4, r.S+4, r.A0)}
    silu_stage(a, r, r.D1, r.M+8, mf_exp, mf_rcp, {15: ["s_waitcnt lgkmcnt(0)"]}, {}, pre)
    a(f"""
    s_sub_u32 s{S_TMP}, s{S_I}, 1
    s_add_u32 s{S_I}, s{S_I}, 1
    s_cmp_le_u32 s{S_I}, s{S_NTL}
    s_cbranch_scc1 L_loop
    v_readlane_b32 s{S_D}, v{r.Desc}, s{S_TMP}
    """)
    stamp(a, r, 13)
    a(mfma(r.A1, r.M+8, r.S, r.A1)); a(mfma(r.A1, r.M+12, r.S+4, r.A1))
    if opt.prio: a("s_setprio 0")
    S_RML = S_TMP3; S_GL = S_NBN
    a(f"""
    s_mov_b32 s{S_RM}, 0xffff
    s_bitcmp1_b32 s{S_NBP}, 2
    s_cselect_b32 s{S_RM}, 0xffff0000, s{S_RM}
    s_bfe_u32 s{S_GL}, s{S_D}, 0x6000a
    s_lshr_b32 s{S_TMP2}, s{S_NBP}, 2
    s_cmp_lg_u32 s{S_GL}, s{S_TMP2}
    s_cselect_b32 s{S_RM}, -1, s{S_RM}
    s_mov_b32 s{S_RML}, 0xffff
    s_bitcmp1_b32 s{S_GL}, 0
    s_cselect_b32 s{S_RML}, 0xffff0000, s{S_RML}
    s_cselect_b32 s{S_CNT}, {4*ACC_ROW}, 0
    """)
    a(flush_addr(r))
    WH2 = r.W2; HU = r.W2 + 16
    def epi_prep_a():
        for j in range(8):
            a(f"v_lshlrev_b32 v{HU+2*j}, 16, v{r.HR+j}\nv_and_b32 v{HU+2*j+1}, 0xffff0000, v{r.HR+j}")
    def epi_prep_b():
        for k in range(4):
            a(f"ds_read_b64_tr_b16 {v(WH2+4*k,2)}, v{r.EH} offset:{2048*k}\nds_read_b64_tr_b16 {v(WH2+4*k+2,2)}, v{r.EH} offset:{2048*k+512}")
    def epi_prep(): epi_prep_a(); epi_prep_b()
    a(f"""
    s_cmp_lg_u32 s{S_MODE}, 0
    s_cbranch_scc1 L_final_slow
    s_lshl_b32 s{S_TMP}, s{S_V}, 11
    s_add_u32 s{S_TMP}, s{S_TMP}, {L_SIMG}
    v_add_u32 v{r.K}, s{S_TMP}, v{r.EX}
    s_sub_u32 s{S_TMP}, s{S_TMP}, {L_ACC}
    s_sub_u32 s{S_TMP}, s{S_TMP}, s{S_CNT}
    s_mov_b32 exec_lo, s{S_RML}
    s_mov_b32 exec_hi, s{S_RML}
    v_add_u32 v{t2}, s{S_TMP}, v{r.FlM}
    """)
    a(EX3)
    a([f"ds_write_b128 v{t2}, {v(r.A0+4*q,4)} offset:{32*q}" for q in range(8)])
    a(f"s_mov_b64 exec, -1\nds_read_b128 {v(r.PD,4)}, v{r.K}")
    epi_prep_a()
    a("s_waitcnt lgkmcnt(9)")
    a(flush_dot(r))
    epi_prep_b()
    a(f"""
    s_andn2_b32 s{S_TMP}, s{S_RM}, s{S_RML}
    s_and_b32 exec_lo, s{S_TMP}, 0x77777777
    s_mov_b32 exec_hi, 0
    ds_write_b32 v{t3}, v{t4}
    s_mov_b64 exec, -1
    s_mov_b32 s{S_RM}, s{S_RML}
    s_mul_i32 s{S_TMP}, s{S_GL}, {4*ACC_ROW}
    s_add_u32 s{S_TMP}, s{S_TMP}, {L_ACC}
    v_add_u32 v{t2}, s{S_TMP}, v{r.EX}
    s_ashr_i32 s{S_ZP}, s{S_ZP}, 2
    s_cmp_lg_u32 s{S_ZP}, s{S_GL}
    s_cbranch_scc1 L_main_end
    s_add_u32 s{S_TMP}, s{S_FI}, {L_FLAG+8}
    v_mov_b32 v{r.K}, s{S_TMP}
    v_mov_b32 v{r.PI}, 1
    ds_write_b32 v{r.K}, v{r.PI}
    L_main_end:
    """)
    stamp(a, r, 14)
    rmw_rd = [f"ds_read_b128 {v(r.D0,4)}, v{t2}", EXP, f"ds_read_b32 v{t5}, v{t3}", "s_mov_b64 exec, -1"]
    rmw_wr = ["s_waitcnt lgkmcnt(1)",
              f"v_pk_add_f32 {v(r.D0,2)}, {v(r.D0,2)}, {v(r.PD,2)}", f"v_pk_add_f32 {v(r.D0+2,2)}, {v(r.D0+2,2)}, {v(r.PD+2,2)}",
              f"ds_write_b128 v{t2}, {v(r.D0,4)}", EXP, "s_waitcnt lgkmcnt(1)", f"v_add_f32 v{t4}, v{t4}, v{t5}",
              f"ds_write_b32 v{t3}, v{t4}", "s_mov_b64 exec, -1"]
    a(f"v_mov_b32 v{r.K}, {L_FLAG+8}\ns_waitcnt vmcnt(0) lgkmcnt(0)\ns_barrier\nds_read_b64 {v(r.PS,2)}, v{r.K}")
    a(rmw_rd)
    a(f"""
    s_waitcnt lgkmcnt(2)
    v_readfirstlane_b32 s{S_TMP}, v{r.PS}
    v_readfirstlane_b32 s{S_TMP2}, v{r.PS+1}
    s_nop 3
    s_or_b32 s{S_D}, s{S_TMP}, s{S_TMP2}
    s_cbranch_scc1 L_merge_rare
    L_merge:
    s_cmp_eq_u32 s{S_NTL}, 0
    s_cbranch_scc1 L_epi
    """)
    a(rmw_wr)
    a.label("L_epi")
    if opt.stamp: a(f"s_sub_u32 s{S_ST}, s{S_NTL}, 1\ns_max_i32 s{S_ST}, s{S_ST}, 0\nv_writelane_b32 v{r.ST}, s{S_ST}, 30")
    MR = r.D0
    a(f"""
    s_mov_b32 s{S_D}, 0x{f2u(-LN2):08x}
    s_mov_b32 s{S_D+1}, 0x{f2u(-LN2):08x}
    ds_read_b32 v{r.K}, v{r.EK} offset:16
    s_waitcnt lgkmcnt(0)
    s_barrier
    """)
    stamp(a, r, 15)
    for k in range(4):
        a(f"ds_read_b128 {v(MR+8*k,4)}, v{r.EM} offset:{64*k}\nds_read_b128 {v(MR+8*k+4,4)}, v{r.EM} offset:{64*k+16}")
    a(f"ds_read_b32 v{r.PI}, v{r.EP}")
    for k in range(4):
        a(f"s_waitcnt lgkmcnt({7-2*k})")
        for j in range(4):
            a(f"v_cvt_pk_bf16_f32 v{r.H+4*k+j}, v{MR+8*k+2*j}, v{MR+8*k+2*j+1}")
        if k: a(mfma(r.U, WH2+4*(k-1), r.H+4*(k-1), r.U))
    a(f"""
    s_waitcnt lgkmcnt(0)
    v_add_f32 v{r.K}, v{r.K}, v{r.PI}
    {mfma(r.U, WH2+12, r.H+12, r.U)}
    v_cvt_pk_bf16_f32 v{r.K}, v{r.K}, v{r.K}
    buffer_store_short v{r.K}, v{r.TE}, {s(SR_OUTP,4)}, 0 offen {opt.ost}
    s_nop 9
    """)
    T = r.T; U = r.U
    for i in range(16): a(f"v_exp_f32 v{T+i}, v{U+i}")
    for i in range(0, 16, 2): a(f"v_pk_add_f32 {v(T+i,2)}, {v(T+i,2)}, {s(S_ONE,2)}")
    for i in range(0, 16, 2): a(f"v_pk_mul_f32 {v(U+i,2)}, {v(U+i,2)}, {s(S_D,2)}")
    for i in range(16): a(f"v_rcp_f32 v{T+i}, v{T+i}")
    for g in range(4):
        for i in (4*g, 4*g+2): a(f"v_pk_fma_f32 {v(T+i,2)}, {v(T+i,2)}, {v(U+i,2)}, {v(HU+i,2)}")
        for i in (4*g, 4*g+2): a(f"v_cvt_pk_bf16_f32 v{r.M+i//2}, v{T+i}, v{T+i+1}")
        a(f"ds_write_b64 v{r.EW}, {v(r.M+2*g,2)} offset:{16*g}")
    a(f"""
    ds_read_b128 {v(r.H,4)}, v{r.ER}
    ds_read_b128 {v(r.H+4,4)}, v{r.ER} offset:1280
    s_waitcnt lgkmcnt(1)
    buffer_store_dwordx4 {v(r.H,4)}, v{r.EG}, {s(SR_OUT,4)}, 0 offen {opt.ost}
    s_waitcnt lgkmcnt(0)
    buffer_store_dwordx4 {v(r.H+4,4)}, v{r.EG}, {s(SR_OUT,4)}, 0 offen offset:2048 {opt.ost}
    """)
    if opt.stamp:
        stamp(a, r, 16); a("s_waitcnt vmcnt(0)"); stamp(a, r, 17); stamp(a, r, 31, True)
        a(f"""
        s_lshl_b32 s{S_ST}, s2, 4
        s_add_u32 s{S_ST}, s{S_ST}, s{S_V}
        s_lshl_b32 s{S_ST}, s{S_ST}, 8
        s_add_u32 s{S_ST}, s{S_ST}, {WS_STAMP}
        s_add_u32 s{S_ST}, s{P_WS}, s{S_ST}
        s_addc_u32 s{S_ST+1}, s{P_WS+1}, 0
        v_lshlrev_b32 v{t2}, 2, v{r.lane}
        global_store_dword v{t2}, v{r.ST}, {s(S_ST,2)}
        """)
    if opt.diag:
        a("s_waitcnt vmcnt(0)"); stamp(a, r, 31)
        a(f"""
        v_lshlrev_b32 v{t2}, 2, v{r.lane}
        s_mov_b64 exec, 0xffff
        global_atomic_umax v{t2}, v{r.ST}, {s(P_DBG,2)}
        """)
    a("L_done:\ns_endpgm")
    a(f"L_idle:\ns_cmp_lg_u32 s{S_MODE}, 0\ns_cbranch_scc1 L_slow_next")
    epi_prep()
    a("s_branch L_main_end")
    a(f"""
    L_merge_rare:
    s_cmp_lg_u32 s{S_TMP}, 0
    s_cbranch_scc1 L_final_atomic
    s_cmp_ge_u32 s{S_V}, 4
    s_cbranch_scc1 L_merge_young
    s_cmp_eq_u32 s{S_NTL}, 0
    s_cbranch_scc1 L_merge_old_done
    """)
    a(rmw_wr)
    a("L_merge_old_done:\ns_waitcnt lgkmcnt(0)\ns_barrier\ns_branch L_epi\nL_merge_young:\ns_waitcnt lgkmcnt(0)\ns_barrier")
    a(rmw_rd)
    a(f"s_branch L_merge\nL_final_atomic:\ns_cmp_eq_u32 s{S_NTL}, 0\ns_cbranch_scc1 L_epi")
    a([f"ds_add_f32 v{t2}, v{r.PD+i} offset:{4*i}" for i in range(4)])
    a([EXP, f"ds_add_f32 v{t3}, v{t4}", "s_mov_b64 exec, -1", "s_branch L_epi"])
    a.label("L_final_slow")
    a("s_waitcnt vmcnt(0) lgkmcnt(0)"); a(flush_dot(r))
    a(flush_atomic(r)); a("s_branch L_slow_next")
    a.label("L_flush_slow")
    a(flush_addr(r)); a("s_waitcnt lgkmcnt(0)"); a(flush_dot(r)); a(flush_atomic(r)); a(acc_zero(r, True))
    a("s_branch L_noflush")
    a(f"""
    L_slow:
    s_mov_b32 s{S_MODE}, 1
    s_mov_b32 s{S_SEG}, 0
    L_slow_round:
    s_waitcnt lgkmcnt(0)
    s_barrier
    v_lshlrev_b32 v{t2}, 2, v0
    v_cmp_gt_u32 vcc, 256, v0
    s_and_saveexec_b64 {s(S_D,2)}, vcc
    ds_write_b32 v{t2}, v{r.Zero} offset:{L_CNT}
    s_mov_b64 exec, -1
    v_mov_b32 v{t2}, {L_FLAG}
    ds_write_b32 v{t2}, v{r.Zero}
    s_lshl_b32 s{S_TMP}, s{S_SEG}, 10
    s_add_u32 s{S_TMP}, s{S_TMP}, s{S_B4}
    buffer_load_dword v{t3}, v{r.Zero}, {s(SR_TAB,4)}, s{S_TMP} offen {opt.hl}
    s_mul_i32 s{S_TMP}, s{S_SEG}, {REC_STRIDE}
    v_mul_u32_u24 v{t5}, 12, v0
    s_waitcnt vmcnt(0)
    v_bfe_u32 v{t4}, v{t3}, 16, 15
    v_and_b32 v{t3}, 0xffff, v{t3}
    v_add_u32 v{t3}, v{t3}, v{t5}
    v_mov_b32 v{t2}, v0
    """)
    for q in range(7):
        a(f"""
        v_cmp_lt_u32 {s(S_M+2*q,2)}, v{t2}, v{t4}
        s_mov_b64 exec, {s(S_M+2*q,2)}
        buffer_load_dwordx3 {v(REC(q),3)}, v{t3}, {s(SR_REC,4)}, s{S_TMP} offen {opt.hl}
        s_mov_b64 exec, -1
        v_add_u32 v{t2}, 512, v{t2}
        s_add_u32 s{S_TMP}, s{S_TMP}, {512*12}
        """)
    for q in range(7, 16): a(f"s_mov_b64 {s(S_M+2*q,2)}, 0")
    a(f"""
    v_mov_b32 v{ONE}, 1
    s_waitcnt vmcnt(0) lgkmcnt(0)
    s_barrier
    s_branch L_rank
    L_slow_next:
    s_add_u32 s{S_SEG}, s{S_SEG}, 1
    s_cmp_lt_u32 s{S_SEG}, {NB}
    s_cbranch_scc1 L_slow_round
    """)
    epi_prep()
    a("s_branch L_epi")
    return a.text(), r.n

def build():
    body, nv = gen()
    hdr = open("gather_scatter__cheap_equivariant_egnn__graph.s.ref").read().split("; Override")[0]
    acc = (nv + 3) // 4 * 4
    return hdr + f"""; @launch grid=({NB},1,1) block=(512,1,1) lds={LDS_BYTES}
.amdgcn_target "amdgcn-amd-amdhsa--gfx950"
.text
.globl {KNAME}
.p2align 8
.type {KNAME},@function
""" + body + f""".section .rodata,"a"
.p2align 6
.amdhsa_kernel {KNAME}
  .amdhsa_next_free_vgpr {nv}
  .amdhsa_next_free_sgpr 102
  .amdhsa_accum_offset {acc}
  .amdhsa_group_segment_fixed_size 0
  .amdhsa_kernarg_size 88
  .amdhsa_user_sgpr_count 2
  .amdhsa_user_sgpr_kernarg_segment_ptr 1
  .amdhsa_system_sgpr_workgroup_id_x 1
  .amdhsa_float_denorm_mode_32 3
.end_amdhsa_kernel
"""

if __name__ == "__main__":
    for arg in sys.argv[2:]:
        k, val = arg.split("=")
        cur = getattr(opt, k)
        setattr(opt, k, (val not in ("0", "False")) if isinstance(cur, bool) else type(cur)(val.replace("_", " ").replace("none", "")))
    open(sys.argv[1], "w").write(build())
    print("lds", LDS_BYTES, "vgprs", alloc().n)
```

```python
import sys, struct

N = 25000; E = 800000; NB = 256; BN = 98; CH = 3136
REC_STRIDE = CH * 12
WS_TAB = NB * REC_STRIDE
WS_P4 = WS_TAB + NB * 1024
WS_STAMP = 64 << 20
OUT_POS = N * 128
KNAME = "gather_scatter__cheap_equivariant_egnn__graph_kernel"

def f2u(x): return struct.unpack("<I", struct.pack("<f", x))[0]
LOG2E = 1.4426950408889634
LN2 = 0.6931471805599453

class Opt:
    split = 42
    prio = 1
    ld = "nt"
    st = "sc1"
    hl = "sc1"
    ost = ""
    slide = True
    late = 1
    pf = 0
    warm = 0
    abl = ""
    stamp = False
    tw = 0
    mfe = "0,4,8,12"
    mfr = "0,4,8"
    padd = 1
    pmul = 1
    ilv = 0
    spread = 0
    tprio = 0
    diag = False
opt = Opt()

class Asm:
    def __init__(self): self.L = []
    def __call__(self, s):
        if isinstance(s, (list, tuple)):
            for x in s: self(x)
            return
        for x in s.strip("\n").split("\n"):
            x = x.strip()
            if not x: continue
            self.L.append(x if x.endswith(":") else "    " + x)
    def label(self, n): self.L.append(n + ":")
    def text(self): return "\n".join(self.L) + "\n"

def v(i, n=1): return f"v{i}" if n == 1 else f"v[{i}:{i+n-1}]"
def s(i, n=1): return f"s{i}" if n == 1 else f"s[{i}:{i+n-1}]"
def srd(d, p, size, off=None):
    if off is None: b = f"s_mov_b32 s{d}, s{p}\ns_mov_b32 s{d+1}, s{p+1}\n"
    else: b = f"s_add_u32 s{d}, s{p}, {off}\ns_addc_u32 s{d+1}, s{p+1}, 0\n"
    return b + f"s_mov_b32 s{d+2}, {size}\ns_mov_b32 s{d+3}, 0x00020000"
def wave_scan(r):
    o = []
    for sh in (1, 2, 4, 8):
        o.append(f"s_nop 1\nv_add_u32_dpp v{r}, v{r}, v{r} row_shr:{sh} row_mask:0xf bank_mask:0xf bound_ctrl:0")
    o.append(f"s_nop 1\nv_add_u32_dpp v{r}, v{r}, v{r} row_bcast:15 row_mask:0xa bank_mask:0xf")
    o.append(f"s_nop 1\nv_add_u32_dpp v{r}, v{r}, v{r} row_bcast:31 row_mask:0xc bank_mask:0xf")
    return o
def mfma(d, a_, b_, c=None):
    cc = "0" if c is None else v(c, 16)
    return f"v_mfma_f32_32x32x16_bf16 {v(d,16)}, {v(a_,4)}, {v(b_,4)}, {cc}"
SDWA = "dst_sel:DWORD dst_unused:UNUSED_PAD src0_sel:DWORD"

CAPT = 116
L_NT = 0
L_CNT = 8192
L_OFF = L_CNT + 1024
L_REC = L_OFF + 1024
L_RING = L_REC + CAPT * 384
L_SIMG = L_RING + 8 * 4096
L_AT = L_SIMG + 8 * 2048
L_ACC = L_AT + 14 * 1024
ACC_ROW = 272
L_WX = L_ACC + 112 * ACC_ROW
L_FLAG = L_WX + 256
L_WEND = L_FLAG + 16
L_HIST = L_WEND + 64 + 48
L_OFFA = L_HIST + 1024
L_WH2 = L_OFFA + 1024
LDS_BYTES = L_WH2 + 8192
L_STG = L_REC
L_HST = L_RING + 8192
L_W2S = L_RING + 24576
L_WH1 = L_ACC
L_WE = L_ACC + 8192
assert L_STG + CH * 16 <= L_HST and L_WE + 17408 <= L_WX and L_SIMG % 64 == 0 and LDS_BYTES <= 163840
assert L_HIST % 16 == 0 and L_ACC % 16 == 0

class R: pass
def alloc():
    r = R(); n = [1]
    def al(cnt, align=1):
        n[0] = (n[0] + align - 1) // align * align
        x = n[0]; n[0] += cnt; return x
    r.lane = al(1); r.t0 = al(1); r.t1 = al(1)
    r.D0 = al(16, 4); r.D1 = al(16); r.A0 = al(16); r.A1 = al(16)
    r.W2 = al(32); r.BW = al(8); r.H = al(16)
    r.XM = al(4); r.S = al(8); r.K4 = al(4)
    r.M = al(16); r.T = al(16); r.U = al(16); r.HR = al(8)
    r.PD = al(4); r.PS = al(2); r.PQ = al(2); r.HA = al(4); r.XK = al(4)
    for nm in "A1a A2a SB TR0 TR1 AWl Desc Zero FlM FlP WXa ML K PI NA SA t2 t3 t4 t5 ST V4 V8 V16 L16 TE EM EK EP EW ER EG EH EX DM".split():
        setattr(r, nm, al(1))
    r.n = n[0]
    return r

P_H, P_POS, P_EA, P_SRC, P_DST, P_WE, P_WX, P_WH, P_OUT, P_DBG, P_WS = range(4, 26, 2)
SR_HD = 28; SR_P4 = 32; SR_REC = 36; SR_TAB = 40; SR_OUT = 44; SR_OUTP = 48
S_V = 52; S_RT = 53; S_T = 54; S_B4 = 55; S_MODE = 56; S_SEG = 57
S_C = 58; S_ONE = 60; S_D = 62; S_TMP = 63; S_TMP2 = 64; S_T0 = 65; S_NTL = 66; S_I = 67; S_CNT = 68; S_TMP3 = 69
S_M = 70
S_NL = 4; S_NH = 5; S_MSK = 6; S_SO0 = 7; S_SO1 = 8; S_SO2 = 9
S_NB = 10; S_NBP = 11; S_NBN = 12; S_ZP = 13; S_RM = 14; S_PADM = 15; S_HI = 16
S_FI = 18; S_ST = 26
TS = [72 + 4 * k for k in range(7)] + [SR_OUTP]

DIAG = {0: 0, 3: 1, 4: 2, 7: 3, 10: 4, 12: 5, 13: 6, 31: 7}
def stamp(a, r, i, real=False):
    if opt.diag:
        if i in DIAG: a(f"s_waitcnt lgkmcnt(0)\ns_memrealtime {s(S_ST,2)}\ns_waitcnt lgkmcnt(0)\nv_writelane_b32 v{r.ST}, s{S_ST}, {DIAG[i]}\ns_not_b32 s{S_ST}, s{S_ST}\nv_writelane_b32 v{r.ST}, s{S_ST}, {DIAG[i]+8}")
        return
    if not opt.stamp: return
    a(f"s_waitcnt lgkmcnt(0)\n{'s_memrealtime' if real else 's_memtime'} {s(S_ST,2)}\ns_waitcnt lgkmcnt(0)\nv_writelane_b32 v{r.ST}, s{S_ST}, {i}")

def silu_stage(a0, r, D, Mo, mf_exp, mf_rcp, ins_exp, ins_rcp, pre=()):
    T = r.T
    def a(x, core=False):
        for y in ([x] if isinstance(x, str) else x):
            for z in y.split("\n"):
                z = z.strip()
                if "vmem" in opt.abl and (z.startswith("buffer_") or "vmcnt" in z): continue
                if "lds" in opt.abl and (z.startswith("ds_") or "lgkmcnt" in z): continue
                if "mfma" in opt.abl and z.startswith("v_mfma"): continue
                if "g2" in opt.abl and z.startswith("v_mfma") and (f"v[{r.A0}:" in z or f"v[{r.A1}:" in z): continue
                if "hm" in opt.abl and z.startswith("v_mfma") and any(f", v[{r.H+4*k}:" in z for k in (1, 2, 3)): continue
                if "trans" in opt.abl and (z.startswith("v_exp") or z.startswith("v_rcp")): z = z.replace("v_exp_f32", "v_mov_b32").replace("v_rcp_f32", "v_mov_b32"); a0(z)
                if "misc" in opt.abl and z.startswith("v_") and not core and not z.startswith("v_readlane"): continue
                a0(z)
    pre = list(pre)
    if opt.spread:
        keep = []; grp = None
        for x in pre:
            if grp is not None:
                grp.append(x)
                if x == "s_mov_b64 exec, -1": keep.append("\n".join(grp)); grp = None
            elif " exec," in x: grp = [x]
            elif x.startswith("s_nop"): continue
            else: keep.append(x)
        pre_map = {}
        per = opt.spread
        for j, x in enumerate(keep): pre_map.setdefault(j // per, []).append(x)
    else:
        a(pre); pre_map = {}
    for i in range(16):
        if i in mf_exp: a(mf_exp[i], True)
        a(f"v_exp_f32 v{T+i}, v{D+i}", True)
        a(pre_map.get(i, ()))
        a(ins_exp.get(i, ()))
    if opt.tprio: a(f"s_setprio {opt.tprio}")
    for i in range(0, 16, 2):
        if opt.padd: a(f"v_pk_add_f32 {v(T+i,2)}, {v(T+i,2)}, {s(S_ONE,2)}", True)
        else: a(f"v_add_f32 v{T+i}, 1.0, v{T+i}\nv_add_f32 v{T+i+1}, 1.0, v{T+i+1}", True)
    if opt.tprio: a(f"s_setprio 0")
    for i in range(16):
        if i in mf_rcp: a(mf_rcp[i], True)
        a(f"v_rcp_f32 v{T+i}, v{T+i}", True)
        a(ins_rcp.get(i, ()))
    def mul(i):
        if opt.pmul: a(f"v_pk_mul_f32 {v(T+i,2)}, {v(T+i,2)}, {v(D+i,2)}", True)
        else: a(f"v_mul_f32 v{T+i}, v{T+i}, v{D+i}\nv_mul_f32 v{T+i+1}, v{T+i+1}, v{D+i+1}", True)
    def cvt(i): a(f"v_cvt_pk_bf16_f32 v{Mo+i//2}, v{T+i}, v{T+i+1}", True)
    if opt.tprio: a(f"s_setprio {opt.tprio}")
    if opt.ilv:
        for i in range(0, 16, 2):
            mul(i)
            if i: cvt(i - 2)
        cvt(14)
    else:
        for i in range(0, 16, 2): mul(i)
        if opt.tprio: a(f"s_setprio 0")
        for i in range(0, 16, 2): cvt(i)

def geometry(r, advance):
    o = [
        f"v_dot2_f32_bf16 v{r.t2}, v{r.PS}, s{S_NL}, v{r.PD}",
        f"v_dot2_f32_bf16 v{r.t3}, v{r.PS}, s{S_NH}, v{r.PD+1}",
        f"v_dot2_f32_bf16 v{r.t4}, v{r.PS+1}, s{S_NL}, v{r.PD+2}",
        f"v_xor_b32 v{r.SA}, v{r.SB}, v{r.PD+3}",
        f"v_lshrrev_b32 v{r.PI}, 7, v{r.K}",
        f"buffer_load_dwordx2 {v(r.PS,2)}, v{r.PI}, {s(SR_P4,4)}, 0 idxen",
        f"v_cvt_pk_bf16_f32 v{r.PQ}, v{r.t2}, v{r.t3}",
        f"v_cvt_pk_bf16_f32 v{r.t5}, v{r.t4}, 0",
        f"v_cvt_pk_bf16_f32 v{r.PQ+1}, v{r.t4}, 1.0",
        f"v_dot2_f32_bf16 v{r.t2}, v{r.PQ}, v{r.PQ}, 0",
        f"v_dot2_f32_bf16 v{r.t2}, v{r.t5}, v{r.t5}, v{r.t2}",
    ]
    if advance:
        o += [f"v_add_u32 v{r.A1a}, 384, v{r.A1a}", f"v_add_u32 v{r.A2a}, 384, v{r.A2a}", "s_nop 0"]
    else:
        o += ["s_nop 2"]
    o += [
        f"v_cvt_pk_bf16_f32 v{r.XM+2}, v{r.t2}, v{r.t2}",
        f"s_mov_b64 exec, {s(S_HI,2)}",
        f"ds_read_b128 {v(r.XM,4)}, v{r.NA}",
        "s_mov_b64 exec, -1",
        f"v_lshlrev_b32_sdwa v{r.NA}, 5, v{r.K} {SDWA} src1_sel:BYTE_0",
    ]
    return o
def k_reads(r, tile_off):
    o = tile_off * 384 + 8
    return [f"ds_read_b32 v{r.K}, v{r.A1a} offset:{o}",
            f"ds_read2_b32 {v(r.K4,2)}, v{r.A2a} offset0:{o//4} offset1:{o//4+3}",
            f"ds_read2_b32 {v(r.K4+2,2)}, v{r.A2a} offset0:{o//4+6} offset1:{o//4+9}"]
def pd_read(r): return [f"ds_read_b128 {v(r.PD,4)}, v{r.NA} offset:16"]
def dma_addr(r): return [f"v_and_or_b32 v{r.K4+k}, v{r.K4+k}, s{S_MSK}, v{r.XK+k}" for k in range(4)]
def dma_issue(r):
    so = [f"s{S_SO0}", f"s{S_SO1}", f"s{S_SO2}", "0"]
    return [f"buffer_load_dwordx4 v{r.K4+k}, {s(SR_HD,4)}, {so[k]} offen offset:{1024*k} lds" for k in range(4)]
def h_reads(r): return [f"ds_read_b128 {v(r.H+4*k,4)}, v{r.HA+k}" for k in range(4)]
def ea_read(r, tile_off):
    o = tile_off * 96
    return [f"ds_read2_b32 {v(r.XM,2)}, v{r.A1a} offset0:{o} offset1:{o+1}"]
def aw_reads(r, nb):
    return [f"s_add_u32 s{S_TMP}, s{nb}, 4",
            f"s_lshr_b32 s{S_TMP}, s{S_TMP}, 3",
            f"s_lshl_b32 s{S_TMP}, s{S_TMP}, 10",
            f"s_lshr_b32 s{S_TMP2}, s{nb}, 3",
            f"s_lshl_b32 s{S_TMP2}, s{S_TMP2}, 10",
            f"v_add_u32 v{r.t2}, s{S_TMP}, v{r.AWl}",
            f"v_add_u32 v{r.t3}, s{S_TMP2}, v{r.AWl}",
            f"s_mov_b64 exec, {s(S_HI,2)}",
            f"ds_read_b64 {v(r.BW,2)}, v{r.t2}",
            f"ds_read_b64 {v(r.BW+2,2)}, v{r.t3} offset:8",
            f"ds_read_b64 {v(r.BW+4,2)}, v{r.t2} offset:512",
            f"ds_read_b64 {v(r.BW+6,2)}, v{r.t3} offset:520",
            "s_mov_b64 exec, -1"]
def s_set(r):
    return [f"s_bfm_b64 exec, s{S_CNT}, 0", f"ds_write_b64 v{r.SA}, {v(r.PQ,2)}", "s_mov_b64 exec, -1"]
def s_reads(r):
    return [f"ds_read_b64_tr_b16 {v(r.S,2)}, v{r.TR0}",
            f"ds_read_b64_tr_b16 {v(r.S+2,2)}, v{r.TR1}",
            f"ds_read_b64_tr_b16 {v(r.S+4,2)}, v{r.TR0} offset:1024",
            f"ds_read_b64_tr_b16 {v(r.S+6,2)}, v{r.TR1} offset:1024",
            f"ds_write2_b32 v{r.SA}, v{r.Zero}, v{r.Zero} offset0:0 offset1:1"]

def flush_addr(r):
    o = [f"ds_read_b128 {v(r.T+4*q,4)}, v{r.WXa} offset:{16*q}" for q in range(4)]
    o += [f"ds_read_b128 {v(r.D0+4*q,4)}, v{r.WXa} offset:{64+16*q}" for q in range(4)]
    o += [f"s_lshr_b32 s{S_TMP}, s{S_NBP}, 3",
          f"s_mul_i32 s{S_TMP}, s{S_TMP}, {8*ACC_ROW}",
          f"s_bitcmp1_b32 s{S_NBP}, 2",
          f"s_cselect_b32 s{S_TMP2}, {8*ACC_ROW}, 0",
          f"v_and_b32 v{r.t3}, s{S_TMP2}, v{r.ML}",
          f"v_add3_u32 v{r.t2}, v{r.FlM}, v{r.t3}, s{S_TMP}",
          f"v_add3_u32 v{r.t3}, v{r.FlP}, v{r.t3}, s{S_TMP}"]
    return o
def flush_dot(r):
    o = [f"v_pk_mul_f32 {v(r.T,2)}, {v(r.T,2)}, {v(r.A0,2)}", f"v_pk_mul_f32 {v(r.D0,2)}, {v(r.D0,2)}, {v(r.A1,2)}"]
    for i in range(2, 16, 2):
        o.append(f"v_pk_fma_f32 {v(r.T,2)}, {v(r.T+i,2)}, {v(r.A0+i,2)}, {v(r.T,2)}")
        o.append(f"v_pk_fma_f32 {v(r.D0,2)}, {v(r.D0+i,2)}, {v(r.A1+i,2)}, {v(r.D0,2)}")
    o += [f"v_pk_add_f32 {v(r.T,2)}, {v(r.T,2)}, {v(r.D0,2)}",
          f"v_add_f32 v{r.t4}, v{r.T}, v{r.T+1}", f"v_add_f32 v{r.t5}, v{r.T}, v{r.T+1}", "s_nop 1",
          f"v_permlane32_swap_b32 v{r.t4}, v{r.t5}", "s_nop 1", f"v_add_f32 v{r.t4}, v{r.t4}, v{r.t5}"]
    return o
EX3 = f"s_and_b32 exec_lo, s{S_RM}, 0x88888888\ns_mov_b32 exec_hi, exec_lo"
EXP = f"s_and_b32 exec_lo, s{S_RM}, 0x77777777\ns_mov_b32 exec_hi, 0"
def acc_zero(r, masked):
    o = [f"s_mov_b32 exec_lo, s{S_RM}\ns_mov_b32 exec_hi, s{S_RM}"] if masked else []
    o += [f"v_mov_b64 {v(r.A0+i,2)}, 0" for i in range(0, 32, 2)]
    if masked: o.append("s_mov_b64 exec, -1")
    return o
def flush_plain(r):
    o = flush_addr(r) + [EX3]
    o += [f"ds_write_b128 v{r.t2}, {v(r.A0+4*q,4)} offset:{32*q}" for q in range(8)]
    o += ["s_mov_b64 exec, -1", "s_waitcnt lgkmcnt(8)"] + flush_dot(r)
    o += [EXP, f"ds_write_b32 v{r.t3}, v{r.t4}"] + acc_zero(r, True)
    return o
def flush_atomic(r):
    o = [EX3]
    for t, A in ((0, r.A0), (1, r.A1)):
        for i in range(16):
            o.append(f"ds_add_f32 v{r.t2}, v{A+i} offset:{(32*t + 8*(i>>2) + (i&3))*4}")
    o += [EXP, f"ds_add_f32 v{r.t3}, v{r.t4}", "s_mov_b64 exec, -1"]
    return o
def rmw_reads(r):
    return [EX3] + [f"ds_read_b128 {v(r.D0+4*q,4)}, v{r.t2} offset:{32*q}" for q in range(8)] + \
           [EXP, f"ds_read_b32 v{r.t5}, v{r.t3}", "s_mov_b64 exec, -1"]
def rmw_writes(r):
    o = [EX3]
    for q in range(8):
        o += ["s_waitcnt lgkmcnt(8)",
              f"v_pk_add_f32 {v(r.D0+4*q,2)}, {v(r.D0+4*q,2)}, {v(r.A0+4*q,2)}",
              f"v_pk_add_f32 {v(r.D0+4*q+2,2)}, {v(r.D0+4*q+2,2)}, {v(r.A0+4*q+2,2)}",
              f"ds_write_b128 v{r.t2}, {v(r.D0+4*q,4)} offset:{32*q}"]
    o += [EXP, "s_waitcnt lgkmcnt(8)", f"v_add_f32 v{r.t4}, v{r.t4}, v{r.t5}", f"ds_write_b32 v{r.t3}, v{r.t4}", "s_mov_b64 exec, -1"]
    return o
def retire_mask(r):
    return [f"s_mov_b32 s{S_RM}, 0xffff",
            f"s_bitcmp1_b32 s{S_NBP}, 2",
            f"s_cselect_b32 s{S_RM}, 0xffff0000, s{S_RM}",
            f"s_add_u32 s{S_TMP}, s{S_NBP}, 4",
            f"s_cmp_eq_u32 s{S_TMP}, s{S_NB}",
            f"s_cselect_b32 s{S_RM}, s{S_RM}, -1"]

def gen():
    a = Asm(); r = alloc()
    t0, t1, t2, t3, t4, t5 = r.t0, r.t1, r.t2, r.t3, r.t4, r.t5
    T_DST, T_SRC, T_EA, T_POS, T_WE, T_WH, T_H, T_X = TS
    a.label(KNAME)
    DST = r.D0; SRC = r.D0 + 8; EA = r.D0 + 16; BINA = r.D0 + 32; RNK = r.D0 + 40
    V16, V32, L16 = r.V16, r.V8, r.L16
    POSR = r.PD
    S_CN = S_T0; S_O4 = S_NTL; S_O8 = S_CNT; S_N0 = S_SEG; S_NN = S_D; S_BUD = S_I
    MA = [80, 82]
    e_, hh_ = t0, t1
    a(f"""
    s_cmp_ge_u32 s2, {NB}
    s_cbranch_scc1 L_done
    s_load_dwordx16 s[4:19], s[0:1], 0
    s_and_b32 s3, s2, 7
    s_lshl_b32 s3, s3, 5
    s_lshr_b32 s2, s2, 3
    s_or_b32 s2, s2, s3
    s_load_dwordx4 s[20:23], s[0:1], 64
    s_load_dwordx2 s[24:25], s[0:1], 80
    v_lshrrev_b32 v{t0}, 6, v0
    v_and_b32 v{r.lane}, 63, v0
    v_readfirstlane_b32 s{S_V}, v{t0}
    v_mov_b32 v{r.Zero}, 0
    v_lshlrev_b32 v{V16}, 4, v0
    v_lshlrev_b32 v{V32}, 5, v0
    v_lshlrev_b32 v{L16}, 4, v{r.lane}
    v_mov_b64 {v(r.T,2)}, 0
    v_mov_b64 {v(r.T+2,2)}, 0
    s_mul_i32 s{S_O4}, s2, {CH*4}
    s_lshl_b32 s{S_O8}, s{S_O4}, 1
    s_mov_b32 s{S_CN}, {CH}
    s_cmp_eq_u32 s2, {NB-1}
    s_cselect_b32 s{S_CN}, {E-(NB-1)*CH}, s{S_CN}
    s_lshl_b32 s3, s{S_CN}, 2
    s_add_u32 s3, s3, s{S_O4}
    s_lshl_b32 s{S_TMP3}, s3, 1
    s_add_u32 s{S_TMP}, s{S_O4}, 8192
    s_add_u32 s{S_TMP2}, s{S_O8}, 16384
    s_lshl_b32 s{S_MODE}, s2, 10
    s_waitcnt lgkmcnt(0)
    """)
    if opt.tw:
        a(f"""
        s_cmp_lg_u32 s{S_V}, 7
        s_cbranch_scc1 L_notw
        v_min_u32 v{t2}, 6, v{r.lane}
        v_lshlrev_b32 v{t2}, 21, v{t2}
        v_mov_b32 v{t4}, {10300000 & ~127}
        v_cmp_eq_u32 vcc, 5, v{r.lane}
        s_mul_i32 s{S_D}, s2, {BN*128}
        s_nop 0
        v_cndmask_b32 v{t2}, v{t2}, v{t4}, vcc
        v_mov_b32 v{t4}, {14500000 & ~127}
        v_cmp_le_u32 vcc, 6, v{r.lane}
        v_and_b32 v{t5}, 1, v{r.lane}
        s_nop 0
        v_cndmask_b32 v{t2}, v{t2}, v{t4}, vcc
        global_load_dword v{r.DM}, v{t2}, {s(P_WS,2)} sc1
        v_mul_u32_u24 v{t2}, 3199872, v{t5}
        global_load_dword v{r.DM}, v{t2}, {s(P_H,2)}
        v_mov_b32 v{t4}, s{S_D}
        v_cmp_eq_u32 vcc, 0, v{t5}
        v_mov_b32 v{t2}, 3349888
        s_nop 0
        v_cndmask_b32 v{t2}, v{t2}, v{t4}, vcc
        global_load_dword v{r.DM}, v{t2}, {s(P_OUT,2)} sc1
        L_notw:
        """)
    a(srd(SR_TAB, P_WS, NB * 1024, WS_TAB))
    a(f"s_cmp_lg_u32 s{S_V}, 0\ns_cbranch_scc1 L_noclr\nbuffer_store_dwordx4 {v(r.T,4)}, v{L16}, {s(SR_TAB,4)}, s{S_MODE} offen {opt.st}\nL_noclr:")
    a(srd(T_DST, P_DST, "s3"))
    a(f"""
    buffer_load_dwordx4 {v(DST,4)}, v{V16}, {s(T_DST,4)}, s{S_O4} offen {opt.ld}
    buffer_load_dwordx4 {v(DST+4,4)}, v{V16}, {s(T_DST,4)}, s{S_TMP} offen {opt.ld}
    """)
    a(srd(T_SRC, P_SRC, "s3")); a(srd(T_EA, P_EA, f"s{S_TMP3}"))
    if not opt.late:
        a(f"""
        buffer_load_dwordx4 {v(SRC,4)}, v{V16}, {s(T_SRC,4)}, s{S_O4} offen {opt.ld}
        buffer_load_dwordx4 {v(EA,4)}, v{V32}, {s(T_EA,4)}, s{S_O8} offen {opt.ld}
        buffer_load_dwordx4 {v(EA+4,4)}, v{V32}, {s(T_EA,4)}, s{S_O8} offen offset:16 {opt.ld}
        s_add_u32 s{S_O4}, s{S_O4}, 8192
        s_add_u32 s{S_O8}, s{S_O8}, 16384
        buffer_load_dwordx4 {v(SRC+4,4)}, v{V16}, {s(T_SRC,4)}, s{S_O4} offen {opt.ld}
        buffer_load_dwordx4 {v(EA+8,4)}, v{V32}, {s(T_EA,4)}, s{S_O8} offen {opt.ld}
        buffer_load_dwordx4 {v(EA+12,4)}, v{V32}, {s(T_EA,4)}, s{S_O8} offen offset:16 {opt.ld}
        """)
    if opt.stamp or opt.diag: a(f"v_mov_b32 v{r.ST}, 0")
    stamp(a, r, 0, True); stamp(a, r, 1)
    a(f"""
    v_add_u32 v{t3}, {L_HIST}, v{L16}
    ds_write_b128 v{t3}, {v(r.T,4)}
    s_mul_i32 s{S_N0}, s2, {BN}
    s_lshl_b32 s{S_B4}, s2, 2
    s_lshr_b32 s{S_RT}, s{S_V}, 1
    s_and_b32 s{S_T}, s{S_V}, 1
    """)
    NY = 10
    a(f"""
    s_sub_u32 s{SR_HD}, s{P_H}, 3072
    s_subb_u32 s{SR_HD+1}, s{P_H+1}, 0
    s_mov_b32 s{SR_HD+2}, {N*128+3072}
    s_mov_b32 s{SR_HD+3}, 0x00020000
    """)
    a(srd(SR_REC, P_WS, NB * REC_STRIDE)); a(srd(SR_P4, P_WS, N, WS_P4))
    a(f"""
    s_and_b32 s{SR_P4+1}, s{SR_P4+1}, 0xffff
    s_or_b32 s{SR_P4+1}, s{SR_P4+1}, 0x80000
    s_sub_u32 s{S_NN}, {N}, s{S_N0}
    s_min_u32 s{S_NN}, s{S_NN}, {BN}
    s_lshl_b32 s{S_TMP}, s{S_N0}, 7
    s_lshl_b32 s{S_TMP2}, s{S_NN}, 7
    """)
    a(srd(SR_OUT, P_OUT, f"s{S_TMP2}", f"s{S_TMP}"))
    a(f"s_mul_i32 s{S_TMP}, s{S_N0}, 6\ns_add_u32 s{S_TMP}, s{S_TMP}, {OUT_POS}\ns_mul_i32 s{S_TMP2}, s{S_NN}, 6")
    a(srd(SR_OUTP, P_OUT, f"s{S_TMP2}", f"s{S_TMP}"))
    T_RO = T_DST; T_DBG = T_SRC
    if opt.late:
        a(f"""
        buffer_load_dwordx4 {v(SRC,4)}, v{V16}, {s(T_SRC,4)}, s{S_O4} offen {opt.ld}
        buffer_load_dwordx4 {v(EA,4)}, v{V32}, {s(T_EA,4)}, s{S_O8} offen {opt.ld}
        buffer_load_dwordx4 {v(EA+4,4)}, v{V32}, {s(T_EA,4)}, s{S_O8} offen offset:16 {opt.ld}
        s_add_u32 s{S_O4}, s{S_O4}, 8192
        s_add_u32 s{S_O8}, s{S_O8}, 16384
        buffer_load_dwordx4 {v(SRC+4,4)}, v{V16}, {s(T_SRC,4)}, s{S_O4} offen {opt.ld}
        buffer_load_dwordx4 {v(EA+8,4)}, v{V32}, {s(T_EA,4)}, s{S_O8} offen {opt.ld}
        buffer_load_dwordx4 {v(EA+12,4)}, v{V32}, {s(T_EA,4)}, s{S_O8} offen offset:16 {opt.ld}
        """)
    a(f"s_mul_i32 s{S_TMP}, s2, {REC_STRIDE}\ns_mul_i32 s{S_TMP2}, s{S_CN}, 12")
    a(srd(T_RO, P_WS, f"s{S_TMP2}", f"s{S_TMP}")); a(srd(T_DBG, P_DBG, 256))
    ONE = r.PQ
    a(f"""
    v_mov_b32 v{ONE}, 1
    s_lshr_b32 s3, s{S_CN}, 2
    v_cmp_gt_u32 {s(MA[0],2)}, s3, v0
    v_add_u32 v{t2}, 512, v0
    v_cmp_gt_u32 {s(MA[1],2)}, s3, v{t2}
    """)
    a(f"""
    s_mov_b32 s{S_C}, 0x{f2u(-LOG2E):08x}
    s_mov_b32 s{S_C+1}, 0x{f2u(-LOG2E):08x}
    s_mov_b32 s{S_ONE}, 1.0
    s_mov_b32 s{S_ONE+1}, 1.0
    s_mov_b32 s{S_MODE}, 0
    s_mov_b32 s{S_BUD}, 0x40000
    """)
    nonlocal_z = [r.T]
    def zero_region(base, size):
        assert base % 16 == 0 and size % 16 == 0
        full = size // 8192; rem = size % 8192
        a(f"v_add_u32 v{t3}, {base}, v{V16}")
        for k in range(full):
            a(f"ds_write_b128 v{t3}, {v(nonlocal_z[0],4)} offset:{k*8192}")
        if rem:
            a(f"v_cmp_gt_u32 vcc, {rem//16}, v0\ns_and_saveexec_b64 {s(S_D,2)}, vcc")
            a(f"ds_write_b128 v{t3}, {v(nonlocal_z[0],4)} offset:{full*8192}\ns_mov_b64 exec, -1")
    a(f"""
    ds_write_b128 v{L16}, {v(nonlocal_z[0],4)} offset:{L_CNT}
    v_mov_b32 v{t3}, {L_FLAG}
    ds_write_b128 v{t3}, {v(nonlocal_z[0],4)}
    """)
    zero_region(L_SIMG, 8 * 2048)
    JJ = r.SA; LB = r.HA + 0; J16 = r.HA + 1
    a(f"""
    v_and_b32 v{e_}, 31, v{r.lane}
    v_lshrrev_b32 v{hh_}, 5, v{r.lane}
    s_lshl_b32 s{S_TMP}, s{S_V}, 12
    s_add_u32 s{S_TMP}, s{S_TMP}, {L_RING}
    s_mov_b32 m0, s{S_TMP}
    v_and_b32 v{t2}, 3, v{e_}
    v_lshlrev_b32 v{t3}, 10, v{t2}
    v_lshrrev_b32 v{t4}, 2, v{e_}
    v_lshl_add_u32 v{t3}, v{t4}, 7, v{t3}
    v_add_u32 v{t3}, s{S_TMP}, v{t3}
    v_bfe_u32 v{t4}, v{e_}, 3, 1
    v_lshl_or_b32 v{t2}, v{t4}, 2, v{t2}
    v_xor_b32 v{t2}, v{t2}, v{hh_}
    """)
    for k in range(4):
        a(f"v_xor_b32 v{t4}, {2*k}, v{t2}\nv_lshl_add_u32 v{r.HA+k}, v{t4}, 4, v{t3}")
    a(f"""
    v_and_b32 v{t2}, 7, v{r.lane}
    v_bfe_u32 v{t3}, v{r.lane}, 4, 1
    v_lshlrev_b32 v{t3}, 2, v{t3}
    v_xor_b32 v{t2}, v{t2}, v{t3}
    """)
    for k in range(4):
        a(f"v_xor_b32 v{t4}, {k}, v{t2}\nv_lshlrev_b32 v{r.XK+k}, 4, v{t4}")
    JJ = r.SA; LB = r.A1a; J16 = r.A2a; MX = r.NA; TA = r.Desc
    LP = r.K; LPT = r.PI
    a(f"""
    s_lshl_b32 s{S_TMP}, s{S_V}, 11
    s_add_u32 s{S_TMP}, s{S_TMP}, {L_SIMG}
    v_bfe_u32 v{t2}, v{e_}, 1, 3
    v_lshlrev_b32 v{t2}, 3, v{t2}
    v_lshl_add_u32 v{t2}, v{e_}, 6, v{t2}
    v_add_u32 v{r.SB}, s{S_TMP}, v{t2}
    v_bfe_u32 v{t2}, v{r.lane}, 2, 2
    v_lshl_add_u32 v{t2}, v{hh_}, 2, v{t2}
    v_bfe_u32 v{t3}, v{r.lane}, 4, 1
    v_and_b32 v{t4}, 3, v{r.lane}
    v_lshl_or_b32 v{t3}, v{t3}, 2, v{t4}
    v_lshlrev_b32 v{LP}, 3, v{t3}
    v_bfe_u32 v{t4}, v{r.lane}, 2, 2
    v_lshl_add_u32 v{LP}, v{t4}, 7, v{LP}
    v_lshrrev_b32 v{t4}, 1, v{t2}
    v_xor_b32 v{t3}, v{t3}, v{t4}
    v_lshlrev_b32 v{t2}, 6, v{t2}
    v_add_u32 v{t2}, s{S_TMP}, v{t2}
    v_lshl_add_u32 v{r.TR0}, v{t3}, 3, v{t2}
    v_xor_b32 v{t3}, 4, v{t3}
    v_lshl_add_u32 v{r.TR1}, v{t3}, 3, v{t2}
    v_add_u32 v{r.TR1}, 512, v{r.TR1}
    v_lshlrev_b32 v{t2}, 4, v{e_}
    v_add_u32 v{r.AWl}, {L_AT}, v{t2}
    v_lshrrev_b32 v{t2}, 2, v{e_}
    v_mul_u32_u24 v{t2}, {ACC_ROW}, v{t2}
    v_add_u32 v{t2}, {L_ACC}, v{t2}
    v_lshl_add_u32 v{r.FlM}, v{hh_}, 4, v{t2}
    v_and_b32 v{t3}, 3, v{e_}
    v_lshl_add_u32 v{r.FlP}, v{t3}, 2, v{t2}
    v_add_u32 v{r.FlP}, 256, v{r.FlP}
    v_lshlrev_b32 v{t2}, 7, v{hh_}
    v_add_u32 v{r.WXa}, {L_WX}, v{t2}
    v_bfe_u32 v{t2}, v{e_}, 4, 1
    v_add_u32 v{r.ML}, -1, v{t2}
    v_lshrrev_b32 v{t5}, 4, v0
    v_lshlrev_b32 v{TA}, 10, v{t5}
    v_and_b32 v{t2}, 15, v0
    v_add_u32 v{JJ}, 0x8000, v{t2}
    v_add_u32 v{J16}, 0x8010, v{t2}
    s_mov_b32 s{S_TMP}, {REC_STRIDE}
    v_mul_lo_u32 v{LB}, v{t5}, s{S_TMP}
    v_mad_u32_u24 v{LB}, v{t2}, 12, v{LB}
    v_mov_b32 v{MX}, 0
    s_mov_b32 s{S_TMP}, 5350
    s_mov_b32 s{S_TMP2}, {BN}
    s_mov_b32 s3, {L_HIST}
    s_waitcnt lgkmcnt(0)
    s_barrier
    s_cmp_lg_u32 s{S_V}, 0
    s_cbranch_scc1 L_noflag
    v_mov_b32 v{t3}, s2
    s_waitcnt vmcnt(8)
    s_mov_b64 exec, 1
    buffer_store_byte v{ONE}, v{t3}, {s(T_DBG,4)}, 0 offen sc1
    s_mov_b64 exec, -1
    L_noflag:
    """)
    stamp(a, r, 2)
    for half in range(2):
        a(f"s_waitcnt vmcnt({7 - half})\ns_mov_b64 exec, {s(MA[half],2)}")
        for k in range(4 * half, 4 * half + 4):
            a(f"""
            v_mul_u32_u24 v{BINA+k}, s{S_TMP}, v{DST+k}
            v_lshrrev_b32 v{BINA+k}, 19, v{BINA+k}
            v_mul_u32_u24 v{t2}, s{S_TMP2}, v{BINA+k}
            v_lshl_add_u32 v{BINA+k}, v{BINA+k}, 2, s3
            ds_add_rtn_u32 v{RNK+k}, v{BINA+k}, v{ONE}
            v_sub_u32 v{DST+k}, v{DST+k}, v{t2}
            """)
    C = r.T; TE = r.M
    a(f"""
    s_mov_b64 exec, -1
    v_add_u32 v{t2}, {L_HIST}, v{L16}
    s_waitcnt lgkmcnt(0)
    s_barrier
    """)
    stamp(a, r, 3)
    a(f"""
    ds_read_b128 {v(C,4)}, v{t2}
    s_waitcnt lgkmcnt(0)
    v_add_u32 v{C+5}, v{C}, v{C+1}
    v_add_u32 v{C+6}, v{C+5}, v{C+2}
    v_add_u32 v{C+7}, v{C+6}, v{C+3}
    v_mov_b32 v{C+4}, v{C+7}
    """)
    a(wave_scan(C + 4))
    a(f"""
    v_sub_u32 v{C+8}, v{C+4}, v{C+7}
    v_add_u32 v{C+9}, v{C+8}, v{C}
    v_add_u32 v{C+10}, v{C+8}, v{C+5}
    v_add_u32 v{C+11}, v{C+8}, v{C+6}
    ds_write_b128 v{t2}, {v(C+8,4)} offset:1024
    """)
    for half in range(2):
        a(f"s_mov_b64 exec, {s(MA[half],2)}")
        for k in range(4 * half, 4 * half + 4):
            a(f"ds_read_b32 v{BINA+k}, v{BINA+k} offset:1024")
    TEV = r.A1 + 12
    a("s_mov_b64 exec, -1")
    for k in range(4):
        a(f"v_mul_u32_u24 v{TEV+k}, 12, v{C+8+k}\nv_lshl_or_b32 v{TEV+k}, v{C+k}, 16, v{TEV+k}\nv_or_b32 v{TEV+k}, 0x80000000, v{TEV+k}")
    for half in range(2):
        a(f"s_waitcnt vmcnt({3 - 3*half}) lgkmcnt({4 if half == 0 else 8})\ns_mov_b64 exec, {s(MA[half],2)}")
        for k in range(4 * half, 4 * half + 4):
            a(f"""
            v_add_lshl_u32 v{BINA+k}, v{BINA+k}, v{RNK+k}, 4
            v_lshl_or_b32 v{SRC+k}, v{SRC+k}, 7, v{DST+k}
            ds_write_b64 v{BINA+k}, {v(EA+2*k,2)} offset:{L_STG}
            ds_write_b32 v{BINA+k}, v{SRC+k} offset:{L_STG+8}
            """)
    T_X2 = T_WE
    a(f"""
    s_mov_b64 exec, -1
    v_lshrrev_b32 v{t2}, 3, v{r.lane}
    v_and_b32 v{t3}, 7, v{r.lane}
    v_lshrrev_b32 v{t4}, 4, v{r.lane}
    s_lshl_b32 s3, s{S_T}, 2
    v_or_b32 v{t4}, s3, v{t4}
    v_xor_b32 v{t3}, v{t3}, v{t4}
    v_lshlrev_b32 v{t3}, 4, v{t3}
    v_lshl_add_u32 v{t3}, v{t2}, 7, v{t3}
    v_and_b32 v{t2}, 127, v0
    v_add_u32 v{t2}, s{S_N0}, v{t2}
    v_mul_u32_u24 v{t2}, 6, v{t2}
    v_and_b32 v{t4}, 3, v{r.lane}
    v_bfe_u32 v{t5}, v{r.lane}, 2, 3
    v_lshl_or_b32 v{t4}, v{t5}, 3, v{t4}
    v_lshrrev_b32 v{t5}, 5, v{r.lane}
    v_lshl_or_b32 v{t4}, v{t5}, 2, v{t4}
    v_lshlrev_b32 v{t4}, 1, v{t4}
    s_lshl_b32 s{S_TMP}, s{S_V}, 10
    s_add_u32 s{S_TMP2}, s{S_TMP}, 8192
    """)
    a(srd(T_WE, P_WE, 133 * 128))
    a(f"""
    s_cmp_lg_u32 s{S_V}, 1
    s_cbranch_scc1 L_nowe
    s_mov_b32 m0, {L_WE+16384}
    s_mov_b32 s3, 16384
    buffer_load_dwordx4 v{L16}, {s(T_WE,4)}, s3 offen lds
    L_nowe:
    s_add_u32 m0, s{S_TMP}, {L_WE}
    s_nop 0
    buffer_load_dwordx4 v{L16}, {s(T_WE,4)}, s{S_TMP} offen lds
    s_add_u32 m0, s{S_TMP}, {L_WE+8192}
    """)
    a(srd(T_WH, P_WH, 128 * 128))
    a(f"buffer_load_dwordx4 v{L16}, {s(T_WE,4)}, s{S_TMP2} offen lds\ns_add_u32 m0, s{S_TMP}, {L_WH1}")
    a(srd(T_H, P_H, N * 128))
    a(f"""
    buffer_load_dwordx4 v{L16}, {s(T_WH,4)}, s{S_TMP} offen lds
    s_add_u32 m0, s{S_TMP}, {L_WH2}
    s_lshl_b32 s3, s{S_N0}, 7
    buffer_load_dwordx4 v{L16}, {s(T_WH,4)}, s{S_TMP2} offen lds
    s_add_u32 s3, s3, s{S_TMP}
    s_add_u32 m0, s{S_TMP}, {L_HST}
    s_add_u32 s{S_TMP2}, s3, 8192
    buffer_load_dwordx4 v{t3}, {s(T_H,4)}, s3 offen lds
    s_add_u32 m0, s{S_TMP}, {L_HST+8192}
    """)
    a(srd(T_POS, P_POS, N * 6))
    a(f"buffer_load_dwordx4 v{t3}, {s(T_H,4)}, s{S_TMP2} offen lds")
    a(srd(T_X2, P_WX, 128))
    a(f"""
    buffer_load_ushort v{POSR}, v{t2}, {s(T_POS,4)}, 0 offen
    buffer_load_ushort v{POSR+1}, v{t2}, {s(T_POS,4)}, 0 offen offset:2
    buffer_load_ushort v{POSR+2}, v{t2}, {s(T_POS,4)}, 0 offen offset:4
    buffer_load_ushort v{POSR+3}, v{t4}, {s(T_X2,4)}, 0 offen
    """)
    a(f"s_lshl_b32 s{S_TMP}, s{S_V}, 12\ns_add_u32 m0, s{S_TMP}, {L_RING}")
    a(f"""
    s_mov_b32 s{S_NL}, 0x0000bf80
    s_mov_b32 s{S_NH}, 0xbf800000
    s_mov_b32 s{S_MSK}, 0xffffff80
    s_mov_b32 s{S_SO0}, 3072
    s_mov_b32 s{S_SO1}, 2048
    s_mov_b32 s{S_SO2}, 1024
    s_mov_b32 s{S_HI}, 0
    s_mov_b32 s{S_HI+1}, -1
    v_mul_u32_u24 v{t2}, 12, v0
    v_add_u32 v{t5}, {L_WE + 128*128}, v{LP}
    v_lshl_add_u32 v{LP}, v{hh_}, 10, v{LP}
    s_lshl_b32 s{S_TMP}, s{S_T}, 6
    s_add_u32 s{S_TMP}, s{S_TMP}, {L_ACC}
    v_add_u32 v{LPT}, s{S_TMP}, v{LP}
    s_lshl_b32 s{S_TMP2}, s{S_RT}, 11
    v_add_u32 v{t4}, s{S_TMP2}, v{LPT}
    s_waitcnt lgkmcnt(0)
    s_barrier
    """)
    stamp(a, r, 4)
    CO = r.D0; DBGV = r.A1 + 8
    for k in range(7):
        a(f"ds_read_b96 {v(CO+4*k,3)}, v{V16} offset:{L_STG + k*8192}")
    for k in range(7):
        a(f"s_mov_b32 s3, {k*6144}\ns_waitcnt lgkmcnt({6-k})")
        a(f"buffer_store_dwordx3 {v(CO+4*k,3)}, v{t2}, {s(T_RO,4)}, s3 offen {opt.st}")
    a(f"v_lshlrev_b32 v{DBGV+1}, 2, v{r.lane}\ns_cmp_lg_u32 s{S_V}, 0\ns_cbranch_scc1 L_nodbg\nbuffer_load_dword v{DBGV}, v{DBGV+1}, {s(T_DBG,4)}, 0 offen sc1\nL_nodbg:")
    stamp(a, r, 5)
    Q2 = r.W2; UP = r.W2 + 4; Q5 = r.W2 + 16; NTD = r.W2 + 24
    a("s_waitcnt vmcnt(7)\ns_barrier")
    a(f"ds_read_b64_tr_b16 {v(Q2,2)}, v{t4} offset:{8192+8192}\nds_read_b64_tr_b16 {v(Q2+2,2)}, v{t4} offset:{8192+8192+512}")
    for t in range(2):
        a(f"ds_read_b64_tr_b16 {v(Q5+4*t,2)}, v{t5} offset:{128+64*t}\nds_read_b64_tr_b16 {v(Q5+4*t+2,2)}, v{t5} offset:{64*t}")
    a(f"""
    v_lshl_or_b32 v{r.PS}, v{POSR+1}, 16, v{POSR}
    v_mov_b32 v{r.PS+1}, v{POSR+2}
    v_add_u32 v{t3}, s{S_N0}, v0
    v_cmp_gt_u32 vcc, {BN}, v0
    s_and_saveexec_b64 {s(S_D,2)}, vcc
    buffer_store_dwordx2 {v(r.PS,2)}, v{t3}, {s(SR_P4,4)}, 0 idxen {opt.st}
    s_mov_b64 exec, -1
    v_and_b32 v{t2}, 1, v0
    v_lshlrev_b32 v{t2}, 4, v{t2}
    v_mov_b32 v{t3}, 0x3f80
    v_lshlrev_b32 v{t2}, v{t2}, v{t3}
    v_bfe_u32 v{t3}, v0, 1, 2
    """)
    for d in range(4):
        a(f"v_cmp_eq_u32 vcc, {d}, v{t3}\ns_nop 1\nv_cndmask_b32 v{NTD+d}, 0, v{t2}, vcc")
    a(f"""
    v_lshlrev_b32 v{NTD+4}, 16, v{POSR}
    v_lshlrev_b32 v{NTD+5}, 16, v{POSR+1}
    v_lshlrev_b32 v{NTD+6}, 16, v{POSR+2}
    v_and_b32 v{t3}, 7, v0
    v_lshlrev_b32 v{NTD+7}, 3, v{t3}
    v_lshlrev_b32 v{POSR+3}, 16, v{POSR+3}
    v_mul_f32 v{POSR+3}, 0x{f2u(-LN2):08x}, v{POSR+3}
    v_lshlrev_b32 v{t3}, 2, v{r.lane}
    v_add_u32 v{t3}, {L_WX}, v{t3}
    s_waitcnt lgkmcnt(0)
    ds_write_b32 v{t3}, v{POSR+3}
    s_cmp_ge_u32 s{S_V}, 4
    s_cbranch_scc1 L_nont
    ds_write_b128 v{V32}, {v(NTD,4)}
    ds_write_b128 v{V32}, {v(NTD+4,4)} offset:16
    L_nont:
    """)
    for j in range(4):
        a(f"v_lshlrev_b32 v{UP+2*j}, 16, v{Q2+j}\nv_and_b32 v{UP+2*j+1}, 0xffff0000, v{Q2+j}")
    for j in range(4):
        a(f"v_pk_mul_f32 {v(UP+2*j,2)}, {v(UP+2*j,2)}, {s(S_C,2)}")
    for j in range(4):
        a(f"v_cvt_pk_bf16_f32 v{Q2+j}, v{UP+2*j}, v{UP+2*j+1}")
    a(f"""
    s_lshl_b32 s{S_TMP}, s{S_V}, 10
    s_add_u32 s{S_TMP}, s{S_TMP}, {L_W2S}
    v_add_u32 v{t4}, s{S_TMP}, v{L16}
    ds_write_b128 v{t4}, {v(Q2,4)}
    """)
    for t in range(2):
        x = Q5 + 4 * t; B = r.BW + 4 * t
        a(f"""
        v_lshlrev_b32 v{UP}, 16, v{x}
        v_and_b32 v{UP+1}, 0xffff0000, v{x}
        v_lshlrev_b32 v{UP+2}, 16, v{x+1}
        v_and_b32 v{UP+3}, 0xffff0000, v{x+1}
        v_lshlrev_b32 v{UP+4}, 16, v{x+2}
        v_pk_mul_f32 {v(UP,2)}, {v(UP,2)}, {s(S_C,2)}
        v_pk_mul_f32 {v(UP+2,2)}, {v(UP+2,2)}, {s(S_C,2)}
        v_mul_f32 v{UP+4}, s{S_C}, v{UP+4}
        v_cvt_pk_bf16_f32 v{B}, v{UP}, v{UP+1}
        v_cvt_pk_bf16_f32 v{B+1}, v{UP+2}, v{UP+3}
        v_cvt_pk_bf16_f32 v{UP+5}, v{UP+4}, v{UP+4}
        v_lshlrev_b32 v{UP+5}, 16, v{UP+5}
        v_sub_f32 v{UP+5}, v{UP+4}, v{UP+5}
        v_cvt_pk_bf16_f32 v{B+2}, v{UP+4}, v{UP+5}
        v_mov_b32 v{B+3}, 0
        """)
    W1F = r.T; WH1F = r.W2; AD = r.XM; HI = r.W2 + 16
    a(f"""
    s_lshl_b32 s{S_TMP}, s{S_RT}, 12
    s_add_u32 s{S_TMP}, s{S_TMP}, {L_HST}
    v_lshlrev_b32 v{t2}, 7, v{e_}
    v_add_u32 v{t2}, s{S_TMP}, v{t2}
    v_bfe_u32 v{t3}, v{e_}, 1, 3
    v_xor_b32 v{t5}, v{t3}, v{hh_}
    """)
    for k in range(4):
        a(f"v_xor_b32 v{t4}, {2*k}, v{t5}\nv_lshl_add_u32 v{t4}, v{t4}, 4, v{t2}\nds_read_b128 {v(r.H+4*k,4)}, v{t4}")
    for k in range(4):
        a(f"ds_read_b64_tr_b16 {v(W1F+4*k,2)}, v{LPT} offset:{8192+2048*k}\nds_read_b64_tr_b16 {v(W1F+4*k+2,2)}, v{LPT} offset:{8192+2048*k+512}")
    a(f"s_lshl_b32 s{S_TMP}, s{S_T}, 2\nv_xor_b32 v{t5}, s{S_TMP}, v{t3}\nv_lshl_add_u32 v{t2}, v{hh_}, 3, v{t2}")
    for k in range(4):
        a(f"ds_read_b64_tr_b16 {v(WH1F+4*k,2)}, v{LPT} offset:{2048*k}\nds_read_b64_tr_b16 {v(WH1F+4*k+2,2)}, v{LPT} offset:{2048*k+512}")
    for g in range(4):
        a(f"v_xor_b32 v{t4}, {g}, v{t5}\nv_lshl_add_u32 v{t4}, v{t4}, 4, v{t2}\nds_read_b64 {v(r.HR+2*g,2)}, v{t4}")
    stamp(a, r, 6)
    a(f"""
    s_lshl_b32 s3, s2, 10
    s_mov_b32 s{S_TMP}, 0x01010101
    s_waitcnt vmcnt(0) lgkmcnt(0)
    s_cmp_lg_u32 s{S_V}, 0
    s_cbranch_scc1 L_chkd
    L_chk:
    v_cmp_ne_u32 vcc, s{S_TMP}, v{DBGV}
    s_cbranch_vccz L_chkd
    s_sub_u32 s{S_BUD}, s{S_BUD}, 1
    s_cbranch_scc1 L_chkd
    s_sleep 8
    buffer_load_dword v{DBGV}, v{DBGV+1}, {s(T_DBG,4)}, 0 offen sc1
    s_waitcnt vmcnt(0)
    s_branch L_chk
    L_chkd:
    s_barrier
    s_cmp_lg_u32 s{S_V}, 0
    s_cbranch_scc1 L_nopub
    buffer_store_dwordx4 {v(TEV,4)}, v{L16}, {s(SR_TAB,4)}, s3 offen {opt.st}
    L_nopub:
    s_mov_b32 s{S_TMP}, s{S_B4}
    """)
    stamp(a, r, 7)
    def REC(q): return r.D0 + 4 * q
    TABV = r.M; ADR = r.T
    for rr in range(8):
        a(f"buffer_load_dword v{TABV+rr}, v{TA}, {s(SR_TAB,4)}, s{S_TMP} offen {opt.hl}")
        if rr < 7: a(f"s_add_u32 s{S_TMP}, s{S_TMP}, 32768")
    for k in range(4): a(mfma(AD, r.H+4*k, W1F+4*k, AD if k else None))
    for k in range(4): a(mfma(r.U, WH1F+4*k, r.H+4*k, r.U if k else None))
    a(f"""
    s_lshl_b32 s{S_TMP}, s{S_RT}, 12
    s_lshl_b32 s{S_TMP2}, s{S_T}, 9
    s_add_u32 s{S_TMP}, s{S_TMP}, s{S_TMP2}
    s_add_u32 s{S_TMP}, s{S_TMP}, {L_AT}
    v_lshlrev_b32 v{t2}, 4, v{e_}
    v_lshl_add_u32 v{t2}, v{hh_}, 3, v{t2}
    v_add_u32 v{t2}, s{S_TMP}, v{t2}
    v_add_u32 v{t4}, {L_W2S}, v{L16}
    """)
    for g in range(4):
        x = AD + 4 * g
        if g == 2: a(f"s_cmp_eq_u32 s{S_RT}, 3\ns_cbranch_scc1 L_at_done")
        a(f"""
        v_pk_mul_f32 {v(x,2)}, {v(x,2)}, {s(S_C,2)}
        v_pk_mul_f32 {v(x+2,2)}, {v(x+2,2)}, {s(S_C,2)}
        v_cvt_pk_bf16_f32 v{x}, v{x}, v{x+1}
        v_cvt_pk_bf16_f32 v{x+1}, v{x+2}, v{x+3}
        ds_write_b64 v{t2}, {v(x,2)} offset:{g*1024}
        """)
    a.label("L_at_done")
    for sidx in range(4):
        for t in range(2):
            a(f"ds_read_b128 {v(r.W2+16*t+4*sidx,4)}, v{t4} offset:{(2*sidx+t)*1024}")
    a(f"v_mov_b32 v{r.XM+3}, 0")
    for i in range(2, 8, 2): a(f"v_mov_b64 {v(r.S+i,2)}, 0")
    for i in range(0, 16, 2): a(f"v_pk_mul_f32 {v(r.U+i,2)}, {v(r.U+i,2)}, {s(S_C,2)}")
    a(f"""
    v_add_u32 v{r.EH}, {L_WH2 - L_ACC}, v{LPT}
    s_mul_i32 s{S_TMP}, s{S_RT}, {32*ACC_ROW}
    s_add_u32 s{S_TMP}, s{S_TMP}, {L_ACC}
    v_mul_u32_u24 v{t2}, {ACC_ROW}, v{e_}
    v_lshl_add_u32 v{t2}, v{hh_}, 5, v{t2}
    v_add_u32 v{r.EM}, s{S_TMP}, v{t2}
    v_min_u32 v{t3}, 311, v0
    v_mul_u32_u24 v{t4}, 171, v{t3}
    v_lshrrev_b32 v{t4}, 9, v{t4}
    v_mul_u32_u24 v{t5}, 3, v{t4}
    v_sub_u32 v{t5}, v{t3}, v{t5}
    v_lshlrev_b32 v{t5}, 2, v{t5}
    v_lshl_add_u32 v{r.EK}, v{t4}, 5, v{t5}
    v_mul_u32_u24 v{r.EP}, {ACC_ROW}, v{t4}
    v_add_u32 v{r.EP}, v{r.EP}, v{t5}
    v_add_u32 v{r.EP}, {L_ACC+256}, v{r.EP}
    s_lshl_b32 s{S_TMP}, s{S_V}, 12
    s_add_u32 s{S_TMP}, s{S_TMP}, {L_RING}
    v_mul_u32_u24 v{t2}, 80, v{e_}
    v_lshl_add_u32 v{t2}, v{hh_}, 3, v{t2}
    v_add_u32 v{r.EW}, s{S_TMP}, v{t2}
    v_lshrrev_b32 v{t3}, 2, v{r.lane}
    v_and_b32 v{t4}, 3, v{r.lane}
    v_lshlrev_b32 v{t4}, 4, v{t4}
    v_lshl_add_u32 v{t5}, v{t3}, 7, v{t4}
    v_mul_u32_u24 v{t3}, 80, v{t3}
    v_add3_u32 v{r.ER}, v{t3}, v{t4}, s{S_TMP}
    s_lshl_b32 s{S_TMP}, s{S_RT}, 12
    s_lshl_b32 s{S_TMP2}, s{S_T}, 6
    s_add_u32 s{S_TMP}, s{S_TMP}, s{S_TMP2}
    v_add_u32 v{r.EG}, s{S_TMP}, v{t5}
    v_lshlrev_b32 v{r.TE}, 1, v0
    v_lshrrev_b32 v{t3}, 4, v{r.lane}
    v_mul_u32_u24 v{t3}, {ACC_ROW}, v{t3}
    v_and_b32 v{t4}, 15, v{r.lane}
    v_lshl_add_u32 v{r.EX}, v{t4}, 4, v{t3}
    """)
    for rr in range(8):
        a(f"""
        s_waitcnt vmcnt({7 + rr})
        L_w{rr}:
        v_cmp_le_i32 vcc, 0, v{TABV+rr}
        s_cbranch_vccz L_g{rr}
        s_sub_u32 s{S_BUD}, s{S_BUD}, 1
        s_cbranch_scc1 L_g{rr}
        s_sleep 2
        """)
        for r2 in range(rr, 8):
            a(f"s_add_u32 s{S_TMP}, s{S_B4}, {r2*32768}\nbuffer_load_dword v{TABV+r2}, v{TA}, {s(SR_TAB,4)}, s{S_TMP} offen {opt.hl}")
        a(f"""
        s_waitcnt vmcnt(0)
        s_branch L_w{rr}
        L_g{rr}:
        v_cmp_lt_u32_sdwa {s(S_M+2*rr,2)}, v{JJ}, v{TABV+rr} src0_sel:DWORD src1_sel:WORD_1
        v_cmp_lt_u32_sdwa {s(S_M+16+2*rr,2)}, v{J16}, v{TABV+rr} src0_sel:DWORD src1_sel:WORD_1
        v_max_u32 v{MX}, v{MX}, v{TABV+rr}
        v_add_u32_sdwa v{ADR+rr}, v{LB}, v{TABV+rr} {SDWA} src1_sel:WORD_0
        s_mov_b32 s{S_TMP}, {rr*32*REC_STRIDE}
        s_mov_b64 exec, {s(S_M+2*rr,2)}
        buffer_load_dwordx3 {v(REC(rr),3)}, v{ADR+rr}, {s(SR_REC,4)}, s{S_TMP} offen {opt.hl}
        s_mov_b64 exec, {s(S_M+16+2*rr,2)}
        buffer_load_dwordx3 {v(REC(8+rr),3)}, v{ADR+rr}, {s(SR_REC,4)}, s{S_TMP} offen offset:192 {opt.hl}
        s_mov_b64 exec, -1
        """)
    stamp(a, r, 8)
    stamp(a, r, 9)
    if opt.warm:
        a(f"""
        s_lshr_b32 s{S_TMP}, s2, 3
        s_lshl_b32 s{S_TMP}, s{S_TMP}, 3
        s_add_u32 s{S_TMP}, s{S_TMP}, s{S_V}
        s_mul_i32 s{S_TMP}, s{S_TMP}, {opt.warm*1024}
        s_add_u32 s{S_TMP}, s{S_TMP}, 3072
        v_lshlrev_b32 v{t2}, 4, v{r.lane}
        """)
        for k in range(opt.warm):
            if k and k % 4 == 0: a(f"s_add_u32 s{S_TMP}, s{S_TMP}, 4096")
            a(f"buffer_load_dwordx4 {v(r.H+12,4)}, v{t2}, {s(SR_HD,4)}, s{S_TMP} offen offset:{(k%4)*1024}")
    a(f"""
    v_cmp_lt_u32 vcc, 0x{((0x8000+33)<<16)-1:08x}, v{MX}
    s_and_saveexec_b64 {s(S_D,2)}, vcc
    v_mov_b32 v{t2}, {L_FLAG}
    ds_write_b32 v{t2}, v{ONE}
    s_mov_b64 exec, -1
    """)
    order = [x for rr in range(8) for x in (rr, 8 + rr)]
    a.label("L_rank")
    for n_, q in enumerate(order):
        if q < 8: a(f"s_waitcnt vmcnt({opt.warm + 14 - n_ + (q if opt.pf else 0)})")
        else: a(f"s_cmp_eq_u64 {s(S_M+2*q,2)}, 0\ns_cbranch_scc1 L_rk{q}")
        a(f"""
        s_mov_b64 exec, {s(S_M+2*q,2)}
        v_lshlrev_b32_sdwa v{ADR+q}, 2, v{REC(q)+2} {SDWA} src1_sel:BYTE_0
        ds_add_rtn_u32 v{REC(q)+3}, v{ADR+q}, v{ONE} offset:{L_CNT}
        """)
        if q < 8 and opt.pf: a(f"buffer_load_ubyte v{r.V4}, v{REC(q)+2}, {s(SR_HD,4)}, s{S_SO0} offen")
        if q >= 8: a.label(f"L_rk{q}")
    a(f"""
    s_mov_b64 exec, -1
    v_lshlrev_b32 v{t2}, 3, v{r.lane}
    v_mov_b32 v{t3}, {L_FLAG}
    s_mov_b32 s{S_PADM}, {0 if opt.slide else 31}
    s_cmp_lg_u32 s{S_MODE}, 0
    s_cselect_b32 s{S_PADM}, 31, s{S_PADM}
    s_waitcnt lgkmcnt(0)
    s_barrier
    """)
    stamp(a, r, 10)
    a(f"s_cmp_lg_u32 s{S_MODE}, 0\ns_cbranch_scc1 L_noaz")
    nonlocal_z[0] = r.S + 4
    zero_region(L_ACC, 112 * ACC_ROW)
    a(f"v_mov_b32 v{t3}, {L_FLAG}\nL_noaz:")
    CA = r.M; CB = r.M + 2; FL = r.M + 4; SS = r.M + 5; TT = r.M + 6; PADR = r.M + 7; O = r.M + 8; INC = r.M + 12; SP = r.M + 13; N1 = r.M + 14
    a(f"""
    ds_read_b64 {v(CA,2)}, v{t2} offset:{L_CNT}
    ds_read_b64 {v(CB,2)}, v{t2} offset:{L_CNT+512}
    ds_read_b32 v{FL}, v{t3}
    v_and_b32 v{t4}, 3, v{r.lane}
    v_cmp_eq_u32 {s(S_NB,2)}, 3, v{t4}
    s_waitcnt lgkmcnt(0)
    v_add_u32 v{N1}, v{CA}, v{CB}
    v_add3_u32 v{SS}, v{N1}, v{CA+1}, v{CB+1}
    v_readfirstlane_b32 s{S_TMP3}, v{FL}
    s_nop 0
    v_add_u32_dpp v{TT}, v{SS}, v{SS} quad_perm:[1,0,3,2] row_mask:0xf bank_mask:0xf
    s_nop 1
    v_add_u32_dpp v{TT}, v{TT}, v{TT} quad_perm:[2,3,0,1] row_mask:0xf bank_mask:0xf
    L_scan:
    v_sub_u32 v{PADR}, 0, v{TT}
    v_and_b32 v{PADR}, s{S_PADM}, v{PADR}
    v_cndmask_b32 v{PADR}, 0, v{PADR}, {s(S_NB,2)}
    v_add_u32 v{SP}, v{SS}, v{PADR}
    v_mov_b32 v{INC}, v{SP}
    """)
    a(wave_scan(INC))
    a(f"""
    s_nop 0
    v_readlane_b32 s{S_TMP}, v{INC}, 63
    v_sub_u32 v{O}, v{INC}, v{SP}
    s_cmp_lg_u32 s{S_PADM}, 0
    s_cbranch_scc1 L_scan_pad
    v_mov_b32_dpp v{PADR}, v{INC} quad_perm:[1,1,3,3] row_mask:0xf bank_mask:0xf
    v_add_u32 v{t4}, -1, v{O}
    v_xor_b32 v{t4}, v{t4}, v{PADR}
    v_cmp_gt_u32 vcc, 32, v{t4}
    v_cmp_gt_u32 {s(S_NBN,2)}, s{S_TMP}, v{PADR}
    s_and_b64 vcc, vcc, {s(S_NBN,2)}
    s_and_b32 vcc_lo, vcc_lo, 0x55555555
    s_and_b32 vcc_hi, vcc_hi, 0x55555555
    v_mov_b32 v{PADR}, s{S_TMP}
    s_cmp_eq_u64 vcc, 0
    s_cbranch_scc1 L_scan_done
    s_mov_b32 s{S_PADM}, 31
    s_branch L_scan
    L_scan_pad:
    v_mov_b32_dpp v{PADR}, v{O} quad_perm:[0,0,0,0] row_mask:0xf bank_mask:0xf
    v_add_u32 v{PADR}, v{PADR}, v{TT}
    v_mov_b64 {v(r.H,2)}, 0
    v_mov_b64 {v(r.H+2,2)}, 0
    ds_write_b128 v{V16}, {v(r.H,4)} offset:{L_REC}
    ds_write_b128 v{V16}, {v(r.H,4)} offset:{L_REC+8192}
    ds_write_b128 v{V16}, {v(r.H,4)} offset:{L_REC+16384}
    ds_write_b128 v{V16}, {v(r.H,4)} offset:{L_REC+24576}
    ds_write_b128 v{V16}, {v(r.H,4)} offset:{L_REC+32768}
    ds_write_b128 v{V16}, {v(r.H,4)} offset:{L_REC+40960}
    s_waitcnt lgkmcnt(0)
    s_barrier
    L_scan_done:
    v_lshrrev_b32 v{t3}, 1, v{r.lane}
    v_add_u32 v{t4}, s{S_TMP}, v{t3}
    v_mul_u32_u24 v{t4}, 12, v{t4}
    v_add_u32 v{t4}, {L_REC}, v{t4}
    ds_write2_b32 v{t4}, v{r.Zero}, v{r.Zero} offset0:0 offset1:1
    ds_write_b32 v{t4}, v{r.Zero} offset:8
    v_add_u32 v{O+1}, v{O}, v{N1}
    v_add_u32 v{O+2}, v{O}, v{CA}
    v_add_u32 v{O+3}, v{O+1}, v{CA+1}
    ds_write_b64 v{t2}, {v(O,2)} offset:{L_OFF}
    ds_write_b64 v{t2}, {v(O+2,2)} offset:{L_OFF+512}
    v_and_b32 v{t3}, 60, v{r.lane}
    v_add_u32 v{t3}, {L_WEND}, v{t3}
    ds_write_b32 v{t3}, v{PADR}
    s_add_u32 s{S_TMP}, s{S_TMP}, 31
    s_lshr_b32 s{S_TMP}, s{S_TMP}, 5
    s_cmp_gt_u32 s{S_TMP}, {CAPT}
    s_cselect_b32 s{S_TMP3}, 1, s{S_TMP3}
    s_cmp_lg_u32 s{S_TMP3}, 0
    s_cbranch_scc1 L_slow
    """)
    for q in order:
        if q >= 8: a(f"s_cmp_eq_u64 {s(S_M+2*q,2)}, 0\ns_cbranch_scc1 L_pa{q}")
        a(f"s_mov_b64 exec, {s(S_M+2*q,2)}\nds_read_b32 v{ADR+q}, v{ADR+q} offset:{L_OFF}")
        if q >= 8: a.label(f"L_pa{q}")
    a(f"""
    s_and_b32 s{S_T0}, s{S_V}, 3
    s_mul_i32 s{S_T0}, s{S_T0}, s{S_TMP}
    s_add_u32 s{S_NTL}, s{S_T0}, s{S_TMP}
    s_lshr_b32 s{S_T0}, s{S_T0}, 2
    s_lshr_b32 s{S_NTL}, s{S_NTL}, 2
    s_sub_u32 s{S_TMP}, s{S_NTL}, s{S_T0}
    s_mul_i32 s{S_TMP}, s{S_TMP}, {opt.split}
    s_add_u32 s{S_TMP}, s{S_TMP}, 32
    s_lshr_b32 s{S_TMP}, s{S_TMP}, 6
    s_add_u32 s{S_TMP}, s{S_TMP}, s{S_T0}
    s_and_b32 s{S_FI}, s{S_V}, 4
    s_cmp_eq_u32 s{S_TMP}, s{S_T0}
    s_cselect_b32 s{S_FI}, 0, s{S_FI}
    s_cmp_lt_u32 s{S_V}, 4
    s_cselect_b32 s{S_NTL}, s{S_TMP}, s{S_NTL}
    s_cselect_b32 s{S_T0}, s{S_T0}, s{S_TMP}
    s_sub_u32 s{S_NTL}, s{S_NTL}, s{S_T0}
    s_mov_b32 s{S_TMP2}, {L_REC}
    s_waitcnt lgkmcnt(0)
    """)
    for q in order:
        if q >= 8: a(f"s_cmp_eq_u64 {s(S_M+2*q,2)}, 0\ns_cbranch_scc1 L_pb{q}")
        a(f"""
        s_mov_b64 exec, {s(S_M+2*q,2)}
        v_add_u32 v{ADR+q}, v{ADR+q}, v{REC(q)+3}
        v_mad_u32_u24 v{ADR+q}, v{ADR+q}, 12, s{S_TMP2}
        ds_write_b32 v{ADR+q}, v{REC(q)+2} offset:8
        ds_write2_b32 v{ADR+q}, v{REC(q)}, v{REC(q)+1} offset0:0 offset1:1
        """)
        if q >= 8: a.label(f"L_pb{q}")
    a(f"""
    s_mov_b64 exec, -1
    s_mul_i32 s{S_TMP}, s{S_T0}, 384
    s_add_u32 s{S_TMP}, s{S_TMP}, {L_REC}
    v_and_b32 v{t2}, 31, v{r.lane}
    v_mul_u32_u24 v{t2}, 12, v{t2}
    v_add_u32 v{r.A1a}, s{S_TMP}, v{t2}
    v_lshrrev_b32 v{t2}, 3, v{r.lane}
    v_mul_u32_u24 v{t2}, 48, v{t2}
    v_add_u32 v{r.A2a}, s{S_TMP}, v{t2}
    s_sub_u32 s{S_TMP}, s{S_T0}, 1
    v_add_u32 v{t3}, s{S_TMP}, v{r.lane}
    v_mul_u32_u24 v{t2}, 384, v{t3}
    s_waitcnt lgkmcnt(0)
    s_barrier
    """)
    stamp(a, r, 11)
    a(f"s_cmp_eq_u32 s{S_NTL}, 0\ns_cbranch_scc1 L_idle")
    a(k_reads(r, 0))
    a(f"ds_read_u8 v{t4}, v{t2} offset:{L_REC+8}")
    a(ea_read(r, 0))
    a(acc_zero(r, False))
    for i in range(0, 8, 2): a(f"v_mov_b64 {v(r.M+8+i,2)}, 0\nv_mov_b64 {v(r.S+i,2)}, 0")
    a("s_waitcnt lgkmcnt(2)")
    a(dma_addr(r) + dma_issue(r))
    a(f"""
    v_lshrrev_b32 v{r.PI}, 7, v{r.K}
    v_lshlrev_b32_sdwa v{r.NA}, 5, v{r.K} {SDWA} src1_sel:BYTE_0
    buffer_load_dwordx2 {v(r.PS,2)}, v{r.PI}, {s(SR_P4,4)}, 0 idxen
    """)
    a(pd_read(r) + k_reads(r, 1))
    a(f"""
    s_waitcnt lgkmcnt(5)
    v_and_b32 v{t4}, 0x7f, v{t4}
    v_lshrrev_b32 v{t5}, 3, v{t4}
    v_lshlrev_b32 v{t5}, 2, v{t5}
    v_add_u32 v{t5}, {L_WEND}, v{t5}
    ds_read_b32 v{t5}, v{t5}
    v_lshlrev_b32 v{t3}, 5, v{t3}
    s_waitcnt lgkmcnt(0)
    v_sub_u32 v{t5}, v{t5}, v{t3}
    v_min_u32 v{t5}, 32, v{t5}
    v_mad_u32_u24 v{t2}, v{t5}, 12, v{t2}
    ds_read_u8 v{t2}, v{t2} offset:{L_REC-4}
    v_lshl_or_b32 v{t4}, v{t5}, 16, v{t4}
    s_waitcnt lgkmcnt(0)
    v_and_b32 v{t2}, 0x7f, v{t2}
    v_lshl_or_b32 v{r.Desc}, v{t2}, 8, v{t4}
    s_nop 0
    v_readlane_b32 s{S_D}, v{r.Desc}, 1
    v_readlane_b32 s{S_ZP}, v{r.Desc}, 0
    s_nop 1
    s_and_b32 s{S_NB}, s{S_D}, 0x7c
    s_mov_b32 s{S_NBP}, s{S_NB}
    s_lshr_b32 s{S_CNT}, s{S_D}, 16
    s_bfe_u32 s{S_ZP}, s{S_ZP}, 0x80008
    s_cmp_eq_u32 s{S_T0}, 0
    s_cselect_b32 s{S_ZP}, -1, s{S_ZP}
    """)
    a(aw_reads(r, S_NB))
    a("s_waitcnt vmcnt(1)")
    a(h_reads(r))
    a("s_waitcnt lgkmcnt(0)")
    a(dma_addr(r) + dma_issue(r))
    a("s_waitcnt vmcnt(4)")
    a(geometry(r, False))
    for k in range(4): a(mfma(r.D0, r.H+4*k, r.W2+4*k, r.D0 if k else None))
    a("s_waitcnt lgkmcnt(0)")
    a(mfma(r.D0, r.XM, r.BW, r.D0))
    a(f"s_mov_b32 s{S_I}, 2\ns_add_u32 s{S_NTL}, s{S_NTL}, 1")
    if opt.prio: a(f"s_cmp_ge_u32 s{S_V}, 4\ns_cbranch_scc1 L_np\ns_setprio 1\nL_np:")
    a("s_nop 7\ns_nop 1")
    stamp(a, r, 12); stamp(a, r, 28, True)
    a(".p2align 6")
    a.label("L_loop")
    pre = k_reads(r, 2) + pd_read(r) + [f"v_readlane_b32 s{S_D}, v{r.Desc}, s{S_I}"] + s_set(r)
    PE = [int(x) for x in opt.mfe.split(",")]; PR = [int(x) for x in opt.mfr.split(",")]
    mf_exp = {PE[k]: mfma(r.D1, r.H+4*k, r.W2+16+4*k, r.D1 if k else None) for k in range(4)}
    mf_rcp = {PR[0]: mfma(r.D1, r.XM, r.BW+4, r.D1), PR[1]: mfma(r.A1, r.M+8, r.S, r.A1), PR[2]: mfma(r.A1, r.M+12, r.S+4, r.A1)}
    ins_exp = {7: [f"s_bfe_u32 s{S_TMP}, s{S_D}, 0x80008", f"s_add_u32 s{S_TMP2}, s{S_NB}, 8", f"s_and_b32 s{S_TMP3}, s{S_D}, 0x7c",
                   f"s_cmp_ge_u32 s{S_TMP}, s{S_TMP2}", f"s_cselect_b32 s{S_NBN}, s{S_TMP3}, s{S_NB}"],
               PE[3]+1: ["s_waitcnt vmcnt(1)"] + h_reads(r)}
    ins_rcp = {2: ["s_waitcnt lgkmcnt(4)"] + dma_addr(r),
               4: ["s_waitcnt lgkmcnt(0)"] + dma_issue(r),
               6: ea_read(r, 1) + [f"s_cmp_eq_u32 s{S_NBN}, s{S_NB}", "s_cbranch_scc1 L_noaw"] + aw_reads(r, S_NBN) + ["L_noaw:"],
               PR[2]+1: s_reads(r)}
    silu_stage(a, r, r.D0, r.M, mf_exp, mf_rcp, ins_exp, ins_rcp, pre)
    a(f"s_cmp_eq_u32 s{S_NB}, s{S_NBP}\ns_cbranch_scc1 L_noflush")
    if "flush" in opt.abl: a("s_branch L_noflush")
    a(retire_mask(r))
    a(f"s_cmp_lg_u32 s{S_MODE}, 0\ns_cbranch_scc1 L_flush_slow")
    a(flush_plain(r))
    a.label("L_noflush")
    pre = [f"s_mov_b32 s{S_NBP}, s{S_NB}", f"s_mov_b32 s{S_NB}, s{S_NBN}", f"s_lshr_b32 s{S_CNT}, s{S_D}, 16",
           "s_waitcnt vmcnt(4)"] + geometry(r, True)
    mf_exp = {PE[k]: mfma(r.D0, r.H+4*k, r.W2+4*k, r.D0 if k else None) for k in range(4)}
    mf_rcp = {PR[0]: mfma(r.D0, r.XM, r.BW, r.D0), PR[1]: mfma(r.A0, r.M, r.S, r.A0), PR[2]: mfma(r.A0, r.M+4, r.S+4, r.A0)}
    silu_stage(a, r, r.D1, r.M+8, mf_exp, mf_rcp, {15: ["s_waitcnt lgkmcnt(0)"]}, {}, pre)
    a(f"""
    s_sub_u32 s{S_TMP}, s{S_I}, 1
    s_add_u32 s{S_I}, s{S_I}, 1
    s_cmp_le_u32 s{S_I}, s{S_NTL}
    s_cbranch_scc1 L_loop
    v_readlane_b32 s{S_D}, v{r.Desc}, s{S_TMP}
    """)
    stamp(a, r, 13); stamp(a, r, 29, True)
    a(mfma(r.A1, r.M+8, r.S, r.A1)); a(mfma(r.A1, r.M+12, r.S+4, r.A1))
    if opt.prio: a("s_setprio 0")
    S_RML = S_TMP3; S_GL = S_NBN
    a(f"""
    s_mov_b32 s{S_RM}, 0xffff
    s_bitcmp1_b32 s{S_NBP}, 2
    s_cselect_b32 s{S_RM}, 0xffff0000, s{S_RM}
    s_bfe_u32 s{S_GL}, s{S_D}, 0x6000a
    s_lshr_b32 s{S_TMP2}, s{S_NBP}, 2
    s_cmp_lg_u32 s{S_GL}, s{S_TMP2}
    s_cselect_b32 s{S_RM}, -1, s{S_RM}
    s_mov_b32 s{S_RML}, 0xffff
    s_bitcmp1_b32 s{S_GL}, 0
    s_cselect_b32 s{S_RML}, 0xffff0000, s{S_RML}
    s_cselect_b32 s{S_CNT}, {4*ACC_ROW}, 0
    """)
    a(flush_addr(r))
    WH2 = r.W2; HU = r.W2 + 16
    def epi_prep_a():
        for j in range(8):
            a(f"v_lshlrev_b32 v{HU+2*j}, 16, v{r.HR+j}\nv_and_b32 v{HU+2*j+1}, 0xffff0000, v{r.HR+j}")
    def epi_prep_b():
        for k in range(4):
            a(f"ds_read_b64_tr_b16 {v(WH2+4*k,2)}, v{r.EH} offset:{2048*k}\nds_read_b64_tr_b16 {v(WH2+4*k+2,2)}, v{r.EH} offset:{2048*k+512}")
    def epi_prep(): epi_prep_a(); epi_prep_b()
    a(f"""
    s_cmp_lg_u32 s{S_MODE}, 0
    s_cbranch_scc1 L_final_slow
    s_lshl_b32 s{S_TMP}, s{S_V}, 11
    s_add_u32 s{S_TMP}, s{S_TMP}, {L_SIMG}
    v_add_u32 v{r.K}, s{S_TMP}, v{r.EX}
    s_sub_u32 s{S_TMP}, s{S_TMP}, {L_ACC}
    s_sub_u32 s{S_TMP}, s{S_TMP}, s{S_CNT}
    s_mov_b32 exec_lo, s{S_RML}
    s_mov_b32 exec_hi, s{S_RML}
    v_add_u32 v{t2}, s{S_TMP}, v{r.FlM}
    """)
    a(EX3)
    a([f"ds_write_b128 v{t2}, {v(r.A0+4*q,4)} offset:{32*q}" for q in range(8)])
    a(f"s_mov_b64 exec, -1\nds_read_b128 {v(r.PD,4)}, v{r.K}")
    epi_prep_a()
    a("s_waitcnt lgkmcnt(9)")
    a(flush_dot(r))
    epi_prep_b()
    a(f"""
    s_andn2_b32 s{S_TMP}, s{S_RM}, s{S_RML}
    s_and_b32 exec_lo, s{S_TMP}, 0x77777777
    s_mov_b32 exec_hi, 0
    ds_write_b32 v{t3}, v{t4}
    s_mov_b64 exec, -1
    s_mov_b32 s{S_RM}, s{S_RML}
    s_mul_i32 s{S_TMP}, s{S_GL}, {4*ACC_ROW}
    s_add_u32 s{S_TMP}, s{S_TMP}, {L_ACC}
    v_add_u32 v{t2}, s{S_TMP}, v{r.EX}
    s_ashr_i32 s{S_ZP}, s{S_ZP}, 2
    s_cmp_lg_u32 s{S_ZP}, s{S_GL}
    s_cbranch_scc1 L_main_end
    s_add_u32 s{S_TMP}, s{S_FI}, {L_FLAG+8}
    v_mov_b32 v{r.K}, s{S_TMP}
    v_mov_b32 v{r.PI}, 1
    ds_write_b32 v{r.K}, v{r.PI}
    L_main_end:
    """)
    stamp(a, r, 14)
    rmw_rd = [f"ds_read_b128 {v(r.D0,4)}, v{t2}", EXP, f"ds_read_b32 v{t5}, v{t3}", "s_mov_b64 exec, -1"]
    rmw_wr = ["s_waitcnt lgkmcnt(1)",
              f"v_pk_add_f32 {v(r.D0,2)}, {v(r.D0,2)}, {v(r.PD,2)}", f"v_pk_add_f32 {v(r.D0+2,2)}, {v(r.D0+2,2)}, {v(r.PD+2,2)}",
              f"ds_write_b128 v{t2}, {v(r.D0,4)}", EXP, "s_waitcnt lgkmcnt(1)", f"v_add_f32 v{t4}, v{t4}, v{t5}",
              f"ds_write_b32 v{t3}, v{t4}", "s_mov_b64 exec, -1"]
    a(f"v_mov_b32 v{r.K}, {L_FLAG+8}\ns_waitcnt vmcnt(0) lgkmcnt(0)\ns_barrier\nds_read_b64 {v(r.PS,2)}, v{r.K}")
    a(rmw_rd)
    a(f"""
    s_waitcnt lgkmcnt(2)
    v_readfirstlane_b32 s{S_TMP}, v{r.PS}
    v_readfirstlane_b32 s{S_TMP2}, v{r.PS+1}
    s_nop 3
    s_or_b32 s{S_D}, s{S_TMP}, s{S_TMP2}
    s_cbranch_scc1 L_merge_rare
    L_merge:
    s_cmp_eq_u32 s{S_NTL}, 0
    s_cbranch_scc1 L_epi
    """)
    a(rmw_wr)
    a.label("L_epi")
    if opt.stamp: a(f"s_sub_u32 s{S_ST}, s{S_NTL}, 1\ns_max_i32 s{S_ST}, s{S_ST}, 0\nv_writelane_b32 v{r.ST}, s{S_ST}, 30")
    MR = r.D0
    a(f"""
    s_mov_b32 s{S_D}, 0x{f2u(-LN2):08x}
    s_mov_b32 s{S_D+1}, 0x{f2u(-LN2):08x}
    ds_read_b32 v{r.K}, v{r.EK} offset:16
    s_waitcnt lgkmcnt(0)
    s_barrier
    """)
    stamp(a, r, 15)
    for k in range(4):
        a(f"ds_read_b128 {v(MR+8*k,4)}, v{r.EM} offset:{64*k}\nds_read_b128 {v(MR+8*k+4,4)}, v{r.EM} offset:{64*k+16}")
    a(f"ds_read_b32 v{r.PI}, v{r.EP}")
    for k in range(4):
        a(f"s_waitcnt lgkmcnt({7-2*k})")
        for j in range(4):
            a(f"v_cvt_pk_bf16_f32 v{r.H+4*k+j}, v{MR+8*k+2*j}, v{MR+8*k+2*j+1}")
        if k: a(mfma(r.U, WH2+4*(k-1), r.H+4*(k-1), r.U))
    a(f"""
    s_waitcnt lgkmcnt(0)
    v_add_f32 v{r.K}, v{r.K}, v{r.PI}
    {mfma(r.U, WH2+12, r.H+12, r.U)}
    v_cvt_pk_bf16_f32 v{r.K}, v{r.K}, v{r.K}
    buffer_store_short v{r.K}, v{r.TE}, {s(SR_OUTP,4)}, 0 offen {opt.ost}
    s_nop 9
    """)
    T = r.T; U = r.U
    for i in range(16): a(f"v_exp_f32 v{T+i}, v{U+i}")
    for i in range(0, 16, 2): a(f"v_pk_add_f32 {v(T+i,2)}, {v(T+i,2)}, {s(S_ONE,2)}")
    for i in range(0, 16, 2): a(f"v_pk_mul_f32 {v(U+i,2)}, {v(U+i,2)}, {s(S_D,2)}")
    for i in range(16): a(f"v_rcp_f32 v{T+i}, v{T+i}")
    for g in range(4):
        for i in (4*g, 4*g+2): a(f"v_pk_fma_f32 {v(T+i,2)}, {v(T+i,2)}, {v(U+i,2)}, {v(HU+i,2)}")
        for i in (4*g, 4*g+2): a(f"v_cvt_pk_bf16_f32 v{r.M+i//2}, v{T+i}, v{T+i+1}")
        a(f"ds_write_b64 v{r.EW}, {v(r.M+2*g,2)} offset:{16*g}")
    a(f"""
    ds_read_b128 {v(r.H,4)}, v{r.ER}
    ds_read_b128 {v(r.H+4,4)}, v{r.ER} offset:1280
    s_waitcnt lgkmcnt(1)
    buffer_store_dwordx4 {v(r.H,4)}, v{r.EG}, {s(SR_OUT,4)}, 0 offen {opt.ost}
    s_waitcnt lgkmcnt(0)
    buffer_store_dwordx4 {v(r.H+4,4)}, v{r.EG}, {s(SR_OUT,4)}, 0 offen offset:2048 {opt.ost}
    """)
    if opt.stamp:
        stamp(a, r, 16); a("s_waitcnt vmcnt(0)"); stamp(a, r, 17); stamp(a, r, 31, True)
        a(f"""
        s_lshl_b32 s{S_ST}, s2, 4
        s_add_u32 s{S_ST}, s{S_ST}, s{S_V}
        s_lshl_b32 s{S_ST}, s{S_ST}, 8
        s_add_u32 s{S_ST}, s{S_ST}, {WS_STAMP}
        s_add_u32 s{S_ST}, s{P_WS}, s{S_ST}
        s_addc_u32 s{S_ST+1}, s{P_WS+1}, 0
        v_lshlrev_b32 v{t2}, 2, v{r.lane}
        global_store_dword v{t2}, v{r.ST}, {s(S_ST,2)}
        """)
    if opt.diag:
        a("s_waitcnt vmcnt(0)"); stamp(a, r, 31)
        a(f"""
        v_lshlrev_b32 v{t2}, 2, v{r.lane}
        s_mov_b64 exec, 0xffff
        global_atomic_umax v{t2}, v{r.ST}, {s(P_DBG,2)}
        """)
    a("L_done:\ns_endpgm")
    a(f"L_idle:\ns_cmp_lg_u32 s{S_MODE}, 0\ns_cbranch_scc1 L_slow_next")
    epi_prep()
    a("s_branch L_main_end")
    a(f"""
    L_merge_rare:
    s_cmp_lg_u32 s{S_TMP}, 0
    s_cbranch_scc1 L_final_atomic
    s_cmp_ge_u32 s{S_V}, 4
    s_cbranch_scc1 L_merge_young
    s_cmp_eq_u32 s{S_NTL}, 0
    s_cbranch_scc1 L_merge_old_done
    """)
    a(rmw_wr)
    a("L_merge_old_done:\ns_waitcnt lgkmcnt(0)\ns_barrier\ns_branch L_epi\nL_merge_young:\ns_waitcnt lgkmcnt(0)\ns_barrier")
    a(rmw_rd)
    a(f"s_branch L_merge\nL_final_atomic:\ns_cmp_eq_u32 s{S_NTL}, 0\ns_cbranch_scc1 L_epi")
    a([f"ds_add_f32 v{t2}, v{r.PD+i} offset:{4*i}" for i in range(4)])
    a([EXP, f"ds_add_f32 v{t3}, v{t4}", "s_mov_b64 exec, -1", "s_branch L_epi"])
    a.label("L_final_slow")
    a("s_waitcnt vmcnt(0) lgkmcnt(0)"); a(flush_dot(r))
    a(flush_atomic(r)); a("s_branch L_slow_next")
    a.label("L_flush_slow")
    a(flush_addr(r)); a("s_waitcnt lgkmcnt(0)"); a(flush_dot(r)); a(flush_atomic(r)); a(acc_zero(r, True))
    a("s_branch L_noflush")
    a(f"""
    L_slow:
    s_mov_b32 s{S_MODE}, 1
    s_mov_b32 s{S_SEG}, 0
    L_slow_round:
    s_waitcnt lgkmcnt(0)
    s_barrier
    v_lshlrev_b32 v{t2}, 2, v0
    v_cmp_gt_u32 vcc, 256, v0
    s_and_saveexec_b64 {s(S_D,2)}, vcc
    ds_write_b32 v{t2}, v{r.Zero} offset:{L_CNT}
    s_mov_b64 exec, -1
    v_mov_b32 v{t2}, {L_FLAG}
    ds_write_b32 v{t2}, v{r.Zero}
    s_lshl_b32 s{S_TMP}, s{S_SEG}, 10
    s_add_u32 s{S_TMP}, s{S_TMP}, s{S_B4}
    buffer_load_dword v{t3}, v{r.Zero}, {s(SR_TAB,4)}, s{S_TMP} offen {opt.hl}
    s_mul_i32 s{S_TMP}, s{S_SEG}, {REC_STRIDE}
    v_mul_u32_u24 v{t5}, 12, v0
    s_waitcnt vmcnt(0)
    v_bfe_u32 v{t4}, v{t3}, 16, 15
    v_and_b32 v{t3}, 0xffff, v{t3}
    v_add_u32 v{t3}, v{t3}, v{t5}
    v_mov_b32 v{t2}, v0
    """)
    for q in range(7):
        a(f"""
        v_cmp_lt_u32 {s(S_M+2*q,2)}, v{t2}, v{t4}
        s_mov_b64 exec, {s(S_M+2*q,2)}
        buffer_load_dwordx3 {v(REC(q),3)}, v{t3}, {s(SR_REC,4)}, s{S_TMP} offen {opt.hl}
        s_mov_b64 exec, -1
        v_add_u32 v{t2}, 512, v{t2}
        s_add_u32 s{S_TMP}, s{S_TMP}, {512*12}
        """)
    for q in range(7, 16): a(f"s_mov_b64 {s(S_M+2*q,2)}, 0")
    a(f"""
    v_mov_b32 v{ONE}, 1
    s_waitcnt vmcnt(0) lgkmcnt(0)
    s_barrier
    s_branch L_rank
    L_slow_next:
    s_add_u32 s{S_SEG}, s{S_SEG}, 1
    s_cmp_lt_u32 s{S_SEG}, {NB}
    s_cbranch_scc1 L_slow_round
    """)
    epi_prep()
    a("s_branch L_epi")
    return a.text(), r.n

def build():
    body, nv = gen()
    hdr = open("gather_scatter__cheap_equivariant_egnn__graph.s.ref").read().split("; Override")[0]
    acc = (nv + 3) // 4 * 4
    return hdr + f"""; @launch grid=({NB},1,1) block=(512,1,1) lds={LDS_BYTES}
.amdgcn_target "amdgcn-amd-amdhsa--gfx950"
.text
.globl {KNAME}
.p2align 8
.type {KNAME},@function
""" + body + f""".section .rodata,"a"
.p2align 6
.amdhsa_kernel {KNAME}
  .amdhsa_next_free_vgpr {nv}
  .amdhsa_next_free_sgpr 102
  .amdhsa_accum_offset {acc}
  .amdhsa_group_segment_fixed_size 0
  .amdhsa_kernarg_size 88
  .amdhsa_user_sgpr_count 2
  .amdhsa_user_sgpr_kernarg_segment_ptr 1
  .amdhsa_system_sgpr_workgroup_id_x 1
  .amdhsa_float_denorm_mode_32 3
.end_amdhsa_kernel
"""

if __name__ == "__main__":
    for arg in sys.argv[2:]:
        k, val = arg.split("=")
        cur = getattr(opt, k)
        setattr(opt, k, (val not in ("0", "False")) if isinstance(cur, bool) else type(cur)(val.replace("_", " ").replace("none", "")))
    open(sys.argv[1], "w").write(build())
    print("lds", LDS_BYTES, "vgprs", alloc().n)
```

```python
import sys, struct

N = 25000; E = 800000; NB = 256; BN = 98; CH = 3136
REC_STRIDE = CH * 12
WS_TAB = NB * REC_STRIDE
WS_P4 = WS_TAB + NB * 1024
WS_STAMP = 64 << 20
OUT_POS = N * 128
KNAME = "gather_scatter__cheap_equivariant_egnn__graph_kernel"

def f2u(x): return struct.unpack("<I", struct.pack("<f", x))[0]
LOG2E = 1.4426950408889634
LN2 = 0.6931471805599453

class Opt:
    split = 42
    prio = 1
    ld = "nt"
    st = "sc1"
    hl = "sc1"
    ost = ""
    slide = True
    late = 1
    pf = 0
    warm = 0
    abl = ""
    stamp = False
    thr = 0
    tw = 0
    mfe = "0,4,8,12"
    mfr = "0,4,8"
    padd = 1
    pmul = 1
    ilv = 0
    spread = 0
    tprio = 0
    diag = False
opt = Opt()

class Asm:
    def __init__(self): self.L = []
    def __call__(self, s):
        if isinstance(s, (list, tuple)):
            for x in s: self(x)
            return
        for x in s.strip("\n").split("\n"):
            x = x.strip()
            if not x: continue
            self.L.append(x if x.endswith(":") else "    " + x)
    def label(self, n): self.L.append(n + ":")
    def text(self): return "\n".join(self.L) + "\n"

def v(i, n=1): return f"v{i}" if n == 1 else f"v[{i}:{i+n-1}]"
def s(i, n=1): return f"s{i}" if n == 1 else f"s[{i}:{i+n-1}]"
def srd(d, p, size, off=None):
    if off is None: b = f"s_mov_b32 s{d}, s{p}\ns_mov_b32 s{d+1}, s{p+1}\n"
    else: b = f"s_add_u32 s{d}, s{p}, {off}\ns_addc_u32 s{d+1}, s{p+1}, 0\n"
    return b + f"s_mov_b32 s{d+2}, {size}\ns_mov_b32 s{d+3}, 0x00020000"
def wave_scan(r):
    o = []
    for sh in (1, 2, 4, 8):
        o.append(f"s_nop 1\nv_add_u32_dpp v{r}, v{r}, v{r} row_shr:{sh} row_mask:0xf bank_mask:0xf bound_ctrl:0")
    o.append(f"s_nop 1\nv_add_u32_dpp v{r}, v{r}, v{r} row_bcast:15 row_mask:0xa bank_mask:0xf")
    o.append(f"s_nop 1\nv_add_u32_dpp v{r}, v{r}, v{r} row_bcast:31 row_mask:0xc bank_mask:0xf")
    return o
def mfma(d, a_, b_, c=None):
    cc = "0" if c is None else v(c, 16)
    return f"v_mfma_f32_32x32x16_bf16 {v(d,16)}, {v(a_,4)}, {v(b_,4)}, {cc}"
SDWA = "dst_sel:DWORD dst_unused:UNUSED_PAD src0_sel:DWORD"

CAPT = 116
L_NT = 0
L_CNT = 8192
L_OFF = L_CNT + 1024
L_REC = L_OFF + 1024
L_RING = L_REC + CAPT * 384
L_SIMG = L_RING + 8 * 4096
L_AT = L_SIMG + 8 * 2048
L_ACC = L_AT + 14 * 1024
ACC_ROW = 272
L_WX = L_ACC + 112 * ACC_ROW
L_FLAG = L_WX + 256
L_WEND = L_FLAG + 16
L_HIST = L_WEND + 64 + 48
L_OFFA = L_HIST + 1024
L_WH2 = L_OFFA + 1024
LDS_BYTES = L_WH2 + 8192
L_STG = L_REC
L_HST = L_RING + 8192
L_W2S = L_RING + 24576
L_WH1 = L_ACC
L_WE = L_ACC + 8192
assert L_STG + CH * 16 <= L_HST and L_WE + 17408 <= L_WX and L_SIMG % 64 == 0 and LDS_BYTES <= 163840
assert L_HIST % 16 == 0 and L_ACC % 16 == 0

class R: pass
def alloc():
    r = R(); n = [1]
    def al(cnt, align=1):
        n[0] = (n[0] + align - 1) // align * align
        x = n[0]; n[0] += cnt; return x
    r.lane = al(1); r.t0 = al(1); r.t1 = al(1)
    r.D0 = al(16, 4); r.D1 = al(16); r.A0 = al(16); r.A1 = al(16)
    r.W2 = al(32); r.BW = al(8); r.H = al(16)
    r.XM = al(4); r.S = al(8); r.K4 = al(4)
    r.M = al(16); r.T = al(16); r.U = al(16); r.HR = al(8)
    r.PD = al(4); r.PS = al(2); r.PQ = al(2); r.HA = al(4); r.XK = al(4)
    for nm in "A1a A2a SB TR0 TR1 AWl Desc Zero FlM FlP WXa ML K PI NA SA t2 t3 t4 t5 ST V4 V8 V16 L16 TE EM EK EP EW ER EG EH EX DM".split():
        setattr(r, nm, al(1))
    r.n = n[0]
    return r

P_H, P_POS, P_EA, P_SRC, P_DST, P_WE, P_WX, P_WH, P_OUT, P_DBG, P_WS = range(4, 26, 2)
SR_HD = 28; SR_P4 = 32; SR_REC = 36; SR_TAB = 40; SR_OUT = 44; SR_OUTP = 48
S_V = 52; S_RT = 53; S_T = 54; S_B4 = 55; S_MODE = 56; S_SEG = 57
S_C = 58; S_ONE = 60; S_D = 62; S_TMP = 63; S_TMP2 = 64; S_T0 = 65; S_NTL = 66; S_I = 67; S_CNT = 68; S_TMP3 = 69
S_M = 70
S_NL = 4; S_NH = 5; S_MSK = 6; S_SO0 = 7; S_SO1 = 8; S_SO2 = 9
S_NB = 10; S_NBP = 11; S_NBN = 12; S_ZP = 13; S_RM = 14; S_PADM = 15; S_HI = 16
S_FI = 18; S_ST = 26
TS = [72 + 4 * k for k in range(7)] + [SR_OUTP]

DIAG = {0: 0, 3: 1, 4: 2, 7: 3, 10: 4, 12: 5, 13: 6, 31: 7}
def stamp(a, r, i, real=False):
    if opt.diag:
        if i in DIAG: a(f"s_waitcnt lgkmcnt(0)\ns_memrealtime {s(S_ST,2)}\ns_waitcnt lgkmcnt(0)\nv_writelane_b32 v{r.ST}, s{S_ST}, {DIAG[i]}\ns_not_b32 s{S_ST}, s{S_ST}\nv_writelane_b32 v{r.ST}, s{S_ST}, {DIAG[i]+8}")
        return
    if not opt.stamp: return
    a(f"s_waitcnt lgkmcnt(0)\n{'s_memrealtime' if real else 's_memtime'} {s(S_ST,2)}\ns_waitcnt lgkmcnt(0)\nv_writelane_b32 v{r.ST}, s{S_ST}, {i}")

def silu_stage(a0, r, D, Mo, mf_exp, mf_rcp, ins_exp, ins_rcp, pre=()):
    T = r.T
    def a(x, core=False):
        for y in ([x] if isinstance(x, str) else x):
            for z in y.split("\n"):
                z = z.strip()
                if "vmem" in opt.abl and (z.startswith("buffer_") or "vmcnt" in z): continue
                if "lds" in opt.abl and (z.startswith("ds_") or "lgkmcnt" in z): continue
                if "mfma" in opt.abl and z.startswith("v_mfma"): continue
                if "g2" in opt.abl and z.startswith("v_mfma") and (f"v[{r.A0}:" in z or f"v[{r.A1}:" in z): continue
                if "hm" in opt.abl and z.startswith("v_mfma") and any(f", v[{r.H+4*k}:" in z for k in (1, 2, 3)): continue
                if "trans" in opt.abl and (z.startswith("v_exp") or z.startswith("v_rcp")): z = z.replace("v_exp_f32", "v_mov_b32").replace("v_rcp_f32", "v_mov_b32"); a0(z)
                if "misc" in opt.abl and z.startswith("v_") and not core and not z.startswith("v_readlane"): continue
                a0(z)
    pre = list(pre)
    if opt.spread:
        keep = []; grp = None
        for x in pre:
            if grp is not None:
                grp.append(x)
                if x == "s_mov_b64 exec, -1": keep.append("\n".join(grp)); grp = None
            elif " exec," in x: grp = [x]
            elif x.startswith("s_nop"): continue
            else: keep.append(x)
        pre_map = {}
        per = opt.spread
        for j, x in enumerate(keep): pre_map.setdefault(j // per, []).append(x)
    else:
        a(pre); pre_map = {}
    for i in range(16):
        if i in mf_exp: a(mf_exp[i], True)
        a(f"v_exp_f32 v{T+i}, v{D+i}", True)
        a(pre_map.get(i, ()))
        a(ins_exp.get(i, ()))
    if opt.tprio: a(f"s_setprio {opt.tprio}")
    for i in range(0, 16, 2):
        if opt.padd: a(f"v_pk_add_f32 {v(T+i,2)}, {v(T+i,2)}, {s(S_ONE,2)}", True)
        else: a(f"v_add_f32 v{T+i}, 1.0, v{T+i}\nv_add_f32 v{T+i+1}, 1.0, v{T+i+1}", True)
    if opt.tprio: a(f"s_setprio 0")
    for i in range(16):
        if i in mf_rcp: a(mf_rcp[i], True)
        a(f"v_rcp_f32 v{T+i}, v{T+i}", True)
        a(ins_rcp.get(i, ()))
    def mul(i):
        if opt.pmul: a(f"v_pk_mul_f32 {v(T+i,2)}, {v(T+i,2)}, {v(D+i,2)}", True)
        else: a(f"v_mul_f32 v{T+i}, v{T+i}, v{D+i}\nv_mul_f32 v{T+i+1}, v{T+i+1}, v{D+i+1}", True)
    def cvt(i): a(f"v_cvt_pk_bf16_f32 v{Mo+i//2}, v{T+i}, v{T+i+1}", True)
    if opt.tprio: a(f"s_setprio {opt.tprio}")
    if opt.ilv:
        for i in range(0, 16, 2):
            mul(i)
            if i: cvt(i - 2)
        cvt(14)
    else:
        for i in range(0, 16, 2): mul(i)
        if opt.tprio: a(f"s_setprio 0")
        for i in range(0, 16, 2): cvt(i)

def geometry(r, advance):
    o = [
        f"v_dot2_f32_bf16 v{r.t2}, v{r.PS}, s{S_NL}, v{r.PD}",
        f"v_dot2_f32_bf16 v{r.t3}, v{r.PS}, s{S_NH}, v{r.PD+1}",
        f"v_dot2_f32_bf16 v{r.t4}, v{r.PS+1}, s{S_NL}, v{r.PD+2}",
        f"v_xor_b32 v{r.SA}, v{r.SB}, v{r.PD+3}",
        f"v_lshrrev_b32 v{r.PI}, 7, v{r.K}",
        f"buffer_load_dwordx2 {v(r.PS,2)}, v{r.PI}, {s(SR_P4,4)}, 0 idxen",
        f"v_cvt_pk_bf16_f32 v{r.PQ}, v{r.t2}, v{r.t3}",
        f"v_cvt_pk_bf16_f32 v{r.t5}, v{r.t4}, 0",
        f"v_cvt_pk_bf16_f32 v{r.PQ+1}, v{r.t4}, 1.0",
        f"v_dot2_f32_bf16 v{r.t2}, v{r.PQ}, v{r.PQ}, 0",
        f"v_dot2_f32_bf16 v{r.t2}, v{r.t5}, v{r.t5}, v{r.t2}",
    ]
    if advance:
        o += [f"v_add_u32 v{r.A1a}, 384, v{r.A1a}", f"v_add_u32 v{r.A2a}, 384, v{r.A2a}", "s_nop 0"]
    else:
        o += ["s_nop 2"]
    o += [
        f"v_cvt_pk_bf16_f32 v{r.XM+2}, v{r.t2}, v{r.t2}",
        f"s_mov_b64 exec, {s(S_HI,2)}",
        f"ds_read_b128 {v(r.XM,4)}, v{r.NA}",
        "s_mov_b64 exec, -1",
        f"v_lshlrev_b32_sdwa v{r.NA}, 5, v{r.K} {SDWA} src1_sel:BYTE_0",
    ]
    return o
def k_reads(r, tile_off):
    o = tile_off * 384 + 8
    return [f"ds_read_b32 v{r.K}, v{r.A1a} offset:{o}",
            f"ds_read2_b32 {v(r.K4,2)}, v{r.A2a} offset0:{o//4} offset1:{o//4+3}",
            f"ds_read2_b32 {v(r.K4+2,2)}, v{r.A2a} offset0:{o//4+6} offset1:{o//4+9}"]
def pd_read(r): return [f"ds_read_b128 {v(r.PD,4)}, v{r.NA} offset:16"]
def dma_addr(r): return [f"v_and_or_b32 v{r.K4+k}, v{r.K4+k}, s{S_MSK}, v{r.XK+k}" for k in range(4)]
def dma_issue(r):
    so = [f"s{S_SO0}", f"s{S_SO1}", f"s{S_SO2}", "0"]
    return [f"buffer_load_dwordx4 v{r.K4+k}, {s(SR_HD,4)}, {so[k]} offen offset:{1024*k} lds" for k in range(4)]
def h_reads(r): return [f"ds_read_b128 {v(r.H+4*k,4)}, v{r.HA+k}" for k in range(4)]
def ea_read(r, tile_off):
    o = tile_off * 96
    return [f"ds_read2_b32 {v(r.XM,2)}, v{r.A1a} offset0:{o} offset1:{o+1}"]
def aw_reads(r, nb):
    return [f"s_add_u32 s{S_TMP}, s{nb}, 4",
            f"s_lshr_b32 s{S_TMP}, s{S_TMP}, 3",
            f"s_lshl_b32 s{S_TMP}, s{S_TMP}, 10",
            f"s_lshr_b32 s{S_TMP2}, s{nb}, 3",
            f"s_lshl_b32 s{S_TMP2}, s{S_TMP2}, 10",
            f"v_add_u32 v{r.t2}, s{S_TMP}, v{r.AWl}",
            f"v_add_u32 v{r.t3}, s{S_TMP2}, v{r.AWl}",
            f"s_mov_b64 exec, {s(S_HI,2)}",
            f"ds_read_b64 {v(r.BW,2)}, v{r.t2}",
            f"ds_read_b64 {v(r.BW+2,2)}, v{r.t3} offset:8",
            f"ds_read_b64 {v(r.BW+4,2)}, v{r.t2} offset:512",
            f"ds_read_b64 {v(r.BW+6,2)}, v{r.t3} offset:520",
            "s_mov_b64 exec, -1"]
def s_set(r):
    return [f"s_bfm_b64 exec, s{S_CNT}, 0", f"ds_write_b64 v{r.SA}, {v(r.PQ,2)}", "s_mov_b64 exec, -1"]
def s_reads(r):
    return [f"ds_read_b64_tr_b16 {v(r.S,2)}, v{r.TR0}",
            f"ds_read_b64_tr_b16 {v(r.S+2,2)}, v{r.TR1}",
            f"ds_read_b64_tr_b16 {v(r.S+4,2)}, v{r.TR0} offset:1024",
            f"ds_read_b64_tr_b16 {v(r.S+6,2)}, v{r.TR1} offset:1024",
            f"ds_write2_b32 v{r.SA}, v{r.Zero}, v{r.Zero} offset0:0 offset1:1"]

def flush_addr(r):
    o = [f"ds_read_b128 {v(r.T+4*q,4)}, v{r.WXa} offset:{16*q}" for q in range(4)]
    o += [f"ds_read_b128 {v(r.D0+4*q,4)}, v{r.WXa} offset:{64+16*q}" for q in range(4)]
    o += [f"s_lshr_b32 s{S_TMP}, s{S_NBP}, 3",
          f"s_mul_i32 s{S_TMP}, s{S_TMP}, {8*ACC_ROW}",
          f"s_bitcmp1_b32 s{S_NBP}, 2",
          f"s_cselect_b32 s{S_TMP2}, {8*ACC_ROW}, 0",
          f"v_and_b32 v{r.t3}, s{S_TMP2}, v{r.ML}",
          f"v_add3_u32 v{r.t2}, v{r.FlM}, v{r.t3}, s{S_TMP}",
          f"v_add3_u32 v{r.t3}, v{r.FlP}, v{r.t3}, s{S_TMP}"]
    return o
def flush_dot(r):
    o = [f"v_pk_mul_f32 {v(r.T,2)}, {v(r.T,2)}, {v(r.A0,2)}", f"v_pk_mul_f32 {v(r.D0,2)}, {v(r.D0,2)}, {v(r.A1,2)}"]
    for i in range(2, 16, 2):
        o.append(f"v_pk_fma_f32 {v(r.T,2)}, {v(r.T+i,2)}, {v(r.A0+i,2)}, {v(r.T,2)}")
        o.append(f"v_pk_fma_f32 {v(r.D0,2)}, {v(r.D0+i,2)}, {v(r.A1+i,2)}, {v(r.D0,2)}")
    o += [f"v_pk_add_f32 {v(r.T,2)}, {v(r.T,2)}, {v(r.D0,2)}",
          f"v_add_f32 v{r.t4}, v{r.T}, v{r.T+1}", f"v_add_f32 v{r.t5}, v{r.T}, v{r.T+1}", "s_nop 1",
          f"v_permlane32_swap_b32 v{r.t4}, v{r.t5}", "s_nop 1", f"v_add_f32 v{r.t4}, v{r.t4}, v{r.t5}"]
    return o
EX3 = f"s_and_b32 exec_lo, s{S_RM}, 0x88888888\ns_mov_b32 exec_hi, exec_lo"
EXP = f"s_and_b32 exec_lo, s{S_RM}, 0x77777777\ns_mov_b32 exec_hi, 0"
def acc_zero(r, masked):
    o = [f"s_mov_b32 exec_lo, s{S_RM}\ns_mov_b32 exec_hi, s{S_RM}"] if masked else []
    o += [f"v_mov_b64 {v(r.A0+i,2)}, 0" for i in range(0, 32, 2)]
    if masked: o.append("s_mov_b64 exec, -1")
    return o
def flush_plain(r):
    o = flush_addr(r) + [EX3]
    o += [f"ds_write_b128 v{r.t2}, {v(r.A0+4*q,4)} offset:{32*q}" for q in range(8)]
    o += ["s_mov_b64 exec, -1", "s_waitcnt lgkmcnt(8)"] + flush_dot(r)
    o += [EXP, f"ds_write_b32 v{r.t3}, v{r.t4}"] + acc_zero(r, True)
    return o
def flush_atomic(r):
    o = [EX3]
    for t, A in ((0, r.A0), (1, r.A1)):
        for i in range(16):
            o.append(f"ds_add_f32 v{r.t2}, v{A+i} offset:{(32*t + 8*(i>>2) + (i&3))*4}")
    o += [EXP, f"ds_add_f32 v{r.t3}, v{r.t4}", "s_mov_b64 exec, -1"]
    return o
def rmw_reads(r):
    return [EX3] + [f"ds_read_b128 {v(r.D0+4*q,4)}, v{r.t2} offset:{32*q}" for q in range(8)] + \
           [EXP, f"ds_read_b32 v{r.t5}, v{r.t3}", "s_mov_b64 exec, -1"]
def rmw_writes(r):
    o = [EX3]
    for q in range(8):
        o += ["s_waitcnt lgkmcnt(8)",
              f"v_pk_add_f32 {v(r.D0+4*q,2)}, {v(r.D0+4*q,2)}, {v(r.A0+4*q,2)}",
              f"v_pk_add_f32 {v(r.D0+4*q+2,2)}, {v(r.D0+4*q+2,2)}, {v(r.A0+4*q+2,2)}",
              f"ds_write_b128 v{r.t2}, {v(r.D0+4*q,4)} offset:{32*q}"]
    o += [EXP, "s_waitcnt lgkmcnt(8)", f"v_add_f32 v{r.t4}, v{r.t4}, v{r.t5}", f"ds_write_b32 v{r.t3}, v{r.t4}", "s_mov_b64 exec, -1"]
    return o
def retire_mask(r):
    return [f"s_mov_b32 s{S_RM}, 0xffff",
            f"s_bitcmp1_b32 s{S_NBP}, 2",
            f"s_cselect_b32 s{S_RM}, 0xffff0000, s{S_RM}",
            f"s_add_u32 s{S_TMP}, s{S_NBP}, 4",
            f"s_cmp_eq_u32 s{S_TMP}, s{S_NB}",
            f"s_cselect_b32 s{S_RM}, s{S_RM}, -1"]

def gen():
    a = Asm(); r = alloc()
    t0, t1, t2, t3, t4, t5 = r.t0, r.t1, r.t2, r.t3, r.t4, r.t5
    T_DST, T_SRC, T_EA, T_POS, T_WE, T_WH, T_H, T_X = TS
    a.label(KNAME)
    DST = r.D0; SRC = r.D0 + 8; EA = r.D0 + 16; BINA = r.D0 + 32; RNK = r.D0 + 40
    V16, V32, L16 = r.V16, r.V8, r.L16
    POSR = r.PD
    S_CN = S_T0; S_O4 = S_NTL; S_O8 = S_CNT; S_N0 = S_SEG; S_NN = S_D; S_BUD = S_I
    MA = [80, 82]
    e_, hh_ = t0, t1
    a(f"""
    s_cmp_ge_u32 s2, {NB}
    s_cbranch_scc1 L_done
    """)
    if opt.thr: a(f"s_memrealtime {s(S_ST,2)}")
    a(f"""
    s_load_dwordx16 s[4:19], s[0:1], 0
    s_and_b32 s3, s2, 7
    s_lshl_b32 s3, s3, 5
    s_lshr_b32 s2, s2, 3
    s_or_b32 s2, s2, s3
    s_load_dwordx4 s[20:23], s[0:1], 64
    s_load_dwordx2 s[24:25], s[0:1], 80
    v_lshrrev_b32 v{t0}, 6, v0
    v_and_b32 v{r.lane}, 63, v0
    v_readfirstlane_b32 s{S_V}, v{t0}
    v_mov_b32 v{r.Zero}, 0
    v_lshlrev_b32 v{V16}, 4, v0
    v_lshlrev_b32 v{V32}, 5, v0
    v_lshlrev_b32 v{L16}, 4, v{r.lane}
    v_mov_b64 {v(r.T,2)}, 0
    v_mov_b64 {v(r.T+2,2)}, 0
    s_mul_i32 s{S_O4}, s2, {CH*4}
    s_lshl_b32 s{S_O8}, s{S_O4}, 1
    s_mov_b32 s{S_CN}, {CH}
    s_cmp_eq_u32 s2, {NB-1}
    s_cselect_b32 s{S_CN}, {E-(NB-1)*CH}, s{S_CN}
    s_lshl_b32 s3, s{S_CN}, 2
    s_add_u32 s3, s3, s{S_O4}
    s_lshl_b32 s{S_TMP3}, s3, 1
    s_add_u32 s{S_TMP}, s{S_O4}, 8192
    s_add_u32 s{S_TMP2}, s{S_O8}, 16384
    s_lshl_b32 s{S_MODE}, s2, 10
    s_waitcnt lgkmcnt(0)
    """)
    if opt.tw:
        a(f"""
        s_cmp_lg_u32 s{S_V}, 7
        s_cbranch_scc1 L_notw
        v_min_u32 v{t2}, 6, v{r.lane}
        v_lshlrev_b32 v{t2}, 21, v{t2}
        v_mov_b32 v{t4}, {10300000 & ~127}
        v_cmp_eq_u32 vcc, 5, v{r.lane}
        s_mul_i32 s{S_D}, s2, {BN*128}
        s_nop 0
        v_cndmask_b32 v{t2}, v{t2}, v{t4}, vcc
        v_mov_b32 v{t4}, {14500000 & ~127}
        v_cmp_le_u32 vcc, 6, v{r.lane}
        v_and_b32 v{t5}, 1, v{r.lane}
        s_nop 0
        v_cndmask_b32 v{t2}, v{t2}, v{t4}, vcc
        global_load_dword v{r.DM}, v{t2}, {s(P_WS,2)} sc1
        v_mul_u32_u24 v{t2}, 3199872, v{t5}
        global_load_dword v{r.DM}, v{t2}, {s(P_H,2)}
        v_mov_b32 v{t4}, s{S_D}
        v_cmp_eq_u32 vcc, 0, v{t5}
        v_mov_b32 v{t2}, 3349888
        s_nop 0
        v_cndmask_b32 v{t2}, v{t2}, v{t4}, vcc
        global_load_dword v{r.DM}, v{t2}, {s(P_OUT,2)} sc1
        L_notw:
        """)
    a(srd(SR_TAB, P_WS, NB * 1024, WS_TAB))
    a(f"s_cmp_lg_u32 s{S_V}, 0\ns_cbranch_scc1 L_noclr\nbuffer_store_dwordx4 {v(r.T,4)}, v{L16}, {s(SR_TAB,4)}, s{S_MODE} offen {opt.st}\nL_noclr:")
    a(srd(T_DST, P_DST, "s3"))
    a(f"""
    buffer_load_dwordx4 {v(DST,4)}, v{V16}, {s(T_DST,4)}, s{S_O4} offen {opt.ld}
    buffer_load_dwordx4 {v(DST+4,4)}, v{V16}, {s(T_DST,4)}, s{S_TMP} offen {opt.ld}
    """)
    a(srd(T_SRC, P_SRC, "s3")); a(srd(T_EA, P_EA, f"s{S_TMP3}"))
    if not opt.late:
        a(f"""
        buffer_load_dwordx4 {v(SRC,4)}, v{V16}, {s(T_SRC,4)}, s{S_O4} offen {opt.ld}
        buffer_load_dwordx4 {v(EA,4)}, v{V32}, {s(T_EA,4)}, s{S_O8} offen {opt.ld}
        buffer_load_dwordx4 {v(EA+4,4)}, v{V32}, {s(T_EA,4)}, s{S_O8} offen offset:16 {opt.ld}
        s_add_u32 s{S_O4}, s{S_O4}, 8192
        s_add_u32 s{S_O8}, s{S_O8}, 16384
        buffer_load_dwordx4 {v(SRC+4,4)}, v{V16}, {s(T_SRC,4)}, s{S_O4} offen {opt.ld}
        buffer_load_dwordx4 {v(EA+8,4)}, v{V32}, {s(T_EA,4)}, s{S_O8} offen {opt.ld}
        buffer_load_dwordx4 {v(EA+12,4)}, v{V32}, {s(T_EA,4)}, s{S_O8} offen offset:16 {opt.ld}
        """)
    if opt.stamp or opt.diag: a(f"v_mov_b32 v{r.ST}, 0")
    stamp(a, r, 0, True); stamp(a, r, 1)
    a(f"""
    v_add_u32 v{t3}, {L_HIST}, v{L16}
    ds_write_b128 v{t3}, {v(r.T,4)}
    s_mul_i32 s{S_N0}, s2, {BN}
    s_lshl_b32 s{S_B4}, s2, 2
    s_lshr_b32 s{S_RT}, s{S_V}, 1
    s_and_b32 s{S_T}, s{S_V}, 1
    """)
    NY = 10
    a(f"""
    s_sub_u32 s{SR_HD}, s{P_H}, 3072
    s_subb_u32 s{SR_HD+1}, s{P_H+1}, 0
    s_mov_b32 s{SR_HD+2}, {N*128+3072}
    s_mov_b32 s{SR_HD+3}, 0x00020000
    """)
    a(srd(SR_REC, P_WS, NB * REC_STRIDE)); a(srd(SR_P4, P_WS, N, WS_P4))
    a(f"""
    s_and_b32 s{SR_P4+1}, s{SR_P4+1}, 0xffff
    s_or_b32 s{SR_P4+1}, s{SR_P4+1}, 0x80000
    s_sub_u32 s{S_NN}, {N}, s{S_N0}
    s_min_u32 s{S_NN}, s{S_NN}, {BN}
    s_lshl_b32 s{S_TMP}, s{S_N0}, 7
    s_lshl_b32 s{S_TMP2}, s{S_NN}, 7
    """)
    a(srd(SR_OUT, P_OUT, f"s{S_TMP2}", f"s{S_TMP}"))
    a(f"s_mul_i32 s{S_TMP}, s{S_N0}, 6\ns_add_u32 s{S_TMP}, s{S_TMP}, {OUT_POS}\ns_mul_i32 s{S_TMP2}, s{S_NN}, 6")
    a(srd(SR_OUTP, P_OUT, f"s{S_TMP2}", f"s{S_TMP}"))
    T_RO = T_DST; T_DBG = T_SRC
    if opt.late:
        a(f"""
        buffer_load_dwordx4 {v(SRC,4)}, v{V16}, {s(T_SRC,4)}, s{S_O4} offen {opt.ld}
        buffer_load_dwordx4 {v(EA,4)}, v{V32}, {s(T_EA,4)}, s{S_O8} offen {opt.ld}
        buffer_load_dwordx4 {v(EA+4,4)}, v{V32}, {s(T_EA,4)}, s{S_O8} offen offset:16 {opt.ld}
        s_add_u32 s{S_O4}, s{S_O4}, 8192
        s_add_u32 s{S_O8}, s{S_O8}, 16384
        buffer_load_dwordx4 {v(SRC+4,4)}, v{V16}, {s(T_SRC,4)}, s{S_O4} offen {opt.ld}
        buffer_load_dwordx4 {v(EA+8,4)}, v{V32}, {s(T_EA,4)}, s{S_O8} offen {opt.ld}
        buffer_load_dwordx4 {v(EA+12,4)}, v{V32}, {s(T_EA,4)}, s{S_O8} offen offset:16 {opt.ld}
        """)
    a(f"s_mul_i32 s{S_TMP}, s2, {REC_STRIDE}\ns_mul_i32 s{S_TMP2}, s{S_CN}, 12")
    a(srd(T_RO, P_WS, f"s{S_TMP2}", f"s{S_TMP}")); a(srd(T_DBG, P_DBG, 256))
    ONE = r.PQ
    a(f"""
    v_mov_b32 v{ONE}, 1
    s_lshr_b32 s3, s{S_CN}, 2
    v_cmp_gt_u32 {s(MA[0],2)}, s3, v0
    v_add_u32 v{t2}, 512, v0
    v_cmp_gt_u32 {s(MA[1],2)}, s3, v{t2}
    """)
    a(f"""
    s_mov_b32 s{S_C}, 0x{f2u(-LOG2E):08x}
    s_mov_b32 s{S_C+1}, 0x{f2u(-LOG2E):08x}
    s_mov_b32 s{S_ONE}, 1.0
    s_mov_b32 s{S_ONE+1}, 1.0
    s_mov_b32 s{S_MODE}, 0
    s_mov_b32 s{S_BUD}, 0x40000
    """)
    nonlocal_z = [r.T]
    def zero_region(base, size):
        assert base % 16 == 0 and size % 16 == 0
        full = size // 8192; rem = size % 8192
        a(f"v_add_u32 v{t3}, {base}, v{V16}")
        for k in range(full):
            a(f"ds_write_b128 v{t3}, {v(nonlocal_z[0],4)} offset:{k*8192}")
        if rem:
            a(f"v_cmp_gt_u32 vcc, {rem//16}, v0\ns_and_saveexec_b64 {s(S_D,2)}, vcc")
            a(f"ds_write_b128 v{t3}, {v(nonlocal_z[0],4)} offset:{full*8192}\ns_mov_b64 exec, -1")
    a(f"""
    ds_write_b128 v{L16}, {v(nonlocal_z[0],4)} offset:{L_CNT}
    v_mov_b32 v{t3}, {L_FLAG}
    ds_write_b128 v{t3}, {v(nonlocal_z[0],4)}
    """)
    zero_region(L_SIMG, 8 * 2048)
    JJ = r.SA; LB = r.HA + 0; J16 = r.HA + 1
    a(f"""
    v_and_b32 v{e_}, 31, v{r.lane}
    v_lshrrev_b32 v{hh_}, 5, v{r.lane}
    s_lshl_b32 s{S_TMP}, s{S_V}, 12
    s_add_u32 s{S_TMP}, s{S_TMP}, {L_RING}
    s_mov_b32 m0, s{S_TMP}
    v_and_b32 v{t2}, 3, v{e_}
    v_lshlrev_b32 v{t3}, 10, v{t2}
    v_lshrrev_b32 v{t4}, 2, v{e_}
    v_lshl_add_u32 v{t3}, v{t4}, 7, v{t3}
    v_add_u32 v{t3}, s{S_TMP}, v{t3}
    v_bfe_u32 v{t4}, v{e_}, 3, 1
    v_lshl_or_b32 v{t2}, v{t4}, 2, v{t2}
    v_xor_b32 v{t2}, v{t2}, v{hh_}
    """)
    for k in range(4):
        a(f"v_xor_b32 v{t4}, {2*k}, v{t2}\nv_lshl_add_u32 v{r.HA+k}, v{t4}, 4, v{t3}")
    a(f"""
    v_and_b32 v{t2}, 7, v{r.lane}
    v_bfe_u32 v{t3}, v{r.lane}, 4, 1
    v_lshlrev_b32 v{t3}, 2, v{t3}
    v_xor_b32 v{t2}, v{t2}, v{t3}
    """)
    for k in range(4):
        a(f"v_xor_b32 v{t4}, {k}, v{t2}\nv_lshlrev_b32 v{r.XK+k}, 4, v{t4}")
    JJ = r.SA; LB = r.A1a; J16 = r.A2a; MX = r.NA; TA = r.Desc
    LP = r.K; LPT = r.PI
    a(f"""
    s_lshl_b32 s{S_TMP}, s{S_V}, 11
    s_add_u32 s{S_TMP}, s{S_TMP}, {L_SIMG}
    v_bfe_u32 v{t2}, v{e_}, 1, 3
    v_lshlrev_b32 v{t2}, 3, v{t2}
    v_lshl_add_u32 v{t2}, v{e_}, 6, v{t2}
    v_add_u32 v{r.SB}, s{S_TMP}, v{t2}
    v_bfe_u32 v{t2}, v{r.lane}, 2, 2
    v_lshl_add_u32 v{t2}, v{hh_}, 2, v{t2}
    v_bfe_u32 v{t3}, v{r.lane}, 4, 1
    v_and_b32 v{t4}, 3, v{r.lane}
    v_lshl_or_b32 v{t3}, v{t3}, 2, v{t4}
    v_lshlrev_b32 v{LP}, 3, v{t3}
    v_bfe_u32 v{t4}, v{r.lane}, 2, 2
    v_lshl_add_u32 v{LP}, v{t4}, 7, v{LP}
    v_lshrrev_b32 v{t4}, 1, v{t2}
    v_xor_b32 v{t3}, v{t3}, v{t4}
    v_lshlrev_b32 v{t2}, 6, v{t2}
    v_add_u32 v{t2}, s{S_TMP}, v{t2}
    v_lshl_add_u32 v{r.TR0}, v{t3}, 3, v{t2}
    v_xor_b32 v{t3}, 4, v{t3}
    v_lshl_add_u32 v{r.TR1}, v{t3}, 3, v{t2}
    v_add_u32 v{r.TR1}, 512, v{r.TR1}
    v_lshlrev_b32 v{t2}, 4, v{e_}
    v_add_u32 v{r.AWl}, {L_AT}, v{t2}
    v_lshrrev_b32 v{t2}, 2, v{e_}
    v_mul_u32_u24 v{t2}, {ACC_ROW}, v{t2}
    v_add_u32 v{t2}, {L_ACC}, v{t2}
    v_lshl_add_u32 v{r.FlM}, v{hh_}, 4, v{t2}
    v_and_b32 v{t3}, 3, v{e_}
    v_lshl_add_u32 v{r.FlP}, v{t3}, 2, v{t2}
    v_add_u32 v{r.FlP}, 256, v{r.FlP}
    v_lshlrev_b32 v{t2}, 7, v{hh_}
    v_add_u32 v{r.WXa}, {L_WX}, v{t2}
    v_bfe_u32 v{t2}, v{e_}, 4, 1
    v_add_u32 v{r.ML}, -1, v{t2}
    v_lshrrev_b32 v{t5}, 4, v0
    v_lshlrev_b32 v{TA}, 10, v{t5}
    v_and_b32 v{t2}, 15, v0
    v_add_u32 v{JJ}, 0x8000, v{t2}
    v_add_u32 v{J16}, 0x8010, v{t2}
    s_mov_b32 s{S_TMP}, {REC_STRIDE}
    v_mul_lo_u32 v{LB}, v{t5}, s{S_TMP}
    v_mad_u32_u24 v{LB}, v{t2}, 12, v{LB}
    v_mov_b32 v{MX}, 0
    s_mov_b32 s{S_TMP}, 5350
    s_mov_b32 s{S_TMP2}, {BN}
    s_mov_b32 s3, {L_HIST}
    s_waitcnt lgkmcnt(0)
    s_barrier
    s_cmp_lg_u32 s{S_V}, 0
    s_cbranch_scc1 L_noflag
    v_mov_b32 v{t3}, s2
    s_waitcnt vmcnt(8)
    s_mov_b64 exec, 1
    buffer_store_byte v{ONE}, v{t3}, {s(T_DBG,4)}, 0 offen sc1
    s_mov_b64 exec, -1
    L_noflag:
    """)
    stamp(a, r, 2)
    for half in range(2):
        a(f"s_waitcnt vmcnt({7 - half})\ns_mov_b64 exec, {s(MA[half],2)}")
        for k in range(4 * half, 4 * half + 4):
            a(f"""
            v_mul_u32_u24 v{BINA+k}, s{S_TMP}, v{DST+k}
            v_lshrrev_b32 v{BINA+k}, 19, v{BINA+k}
            v_mul_u32_u24 v{t2}, s{S_TMP2}, v{BINA+k}
            v_lshl_add_u32 v{BINA+k}, v{BINA+k}, 2, s3
            ds_add_rtn_u32 v{RNK+k}, v{BINA+k}, v{ONE}
            v_sub_u32 v{DST+k}, v{DST+k}, v{t2}
            """)
    C = r.T; TE = r.M
    a(f"""
    s_mov_b64 exec, -1
    v_add_u32 v{t2}, {L_HIST}, v{L16}
    s_waitcnt lgkmcnt(0)
    s_barrier
    """)
    stamp(a, r, 3)
    a(f"""
    ds_read_b128 {v(C,4)}, v{t2}
    s_waitcnt lgkmcnt(0)
    v_add_u32 v{C+5}, v{C}, v{C+1}
    v_add_u32 v{C+6}, v{C+5}, v{C+2}
    v_add_u32 v{C+7}, v{C+6}, v{C+3}
    v_mov_b32 v{C+4}, v{C+7}
    """)
    a(wave_scan(C + 4))
    a(f"""
    v_sub_u32 v{C+8}, v{C+4}, v{C+7}
    v_add_u32 v{C+9}, v{C+8}, v{C}
    v_add_u32 v{C+10}, v{C+8}, v{C+5}
    v_add_u32 v{C+11}, v{C+8}, v{C+6}
    ds_write_b128 v{t2}, {v(C+8,4)} offset:1024
    """)
    for half in range(2):
        a(f"s_mov_b64 exec, {s(MA[half],2)}")
        for k in range(4 * half, 4 * half + 4):
            a(f"ds_read_b32 v{BINA+k}, v{BINA+k} offset:1024")
    TEV = r.A1 + 12
    a("s_mov_b64 exec, -1")
    for k in range(4):
        a(f"v_mul_u32_u24 v{TEV+k}, 12, v{C+8+k}\nv_lshl_or_b32 v{TEV+k}, v{C+k}, 16, v{TEV+k}\nv_or_b32 v{TEV+k}, 0x80000000, v{TEV+k}")
    for half in range(2):
        a(f"s_waitcnt vmcnt({3 - 3*half}) lgkmcnt({4 if half == 0 else 8})\ns_mov_b64 exec, {s(MA[half],2)}")
        for k in range(4 * half, 4 * half + 4):
            a(f"""
            v_add_lshl_u32 v{BINA+k}, v{BINA+k}, v{RNK+k}, 4
            v_lshl_or_b32 v{SRC+k}, v{SRC+k}, 7, v{DST+k}
            ds_write_b64 v{BINA+k}, {v(EA+2*k,2)} offset:{L_STG}
            ds_write_b32 v{BINA+k}, v{SRC+k} offset:{L_STG+8}
            """)
    T_X2 = T_WE
    a(f"""
    s_mov_b64 exec, -1
    v_lshrrev_b32 v{t2}, 3, v{r.lane}
    v_and_b32 v{t3}, 7, v{r.lane}
    v_lshrrev_b32 v{t4}, 4, v{r.lane}
    s_lshl_b32 s3, s{S_T}, 2
    v_or_b32 v{t4}, s3, v{t4}
    v_xor_b32 v{t3}, v{t3}, v{t4}
    v_lshlrev_b32 v{t3}, 4, v{t3}
    v_lshl_add_u32 v{t3}, v{t2}, 7, v{t3}
    v_and_b32 v{t2}, 127, v0
    v_add_u32 v{t2}, s{S_N0}, v{t2}
    v_mul_u32_u24 v{t2}, 6, v{t2}
    v_and_b32 v{t4}, 3, v{r.lane}
    v_bfe_u32 v{t5}, v{r.lane}, 2, 3
    v_lshl_or_b32 v{t4}, v{t5}, 3, v{t4}
    v_lshrrev_b32 v{t5}, 5, v{r.lane}
    v_lshl_or_b32 v{t4}, v{t5}, 2, v{t4}
    v_lshlrev_b32 v{t4}, 1, v{t4}
    s_lshl_b32 s{S_TMP}, s{S_V}, 10
    s_add_u32 s{S_TMP2}, s{S_TMP}, 8192
    """)
    a(srd(T_WE, P_WE, 133 * 128))
    a(f"""
    s_cmp_lg_u32 s{S_V}, 1
    s_cbranch_scc1 L_nowe
    s_mov_b32 m0, {L_WE+16384}
    s_mov_b32 s3, 16384
    buffer_load_dwordx4 v{L16}, {s(T_WE,4)}, s3 offen lds
    L_nowe:
    s_add_u32 m0, s{S_TMP}, {L_WE}
    s_nop 0
    buffer_load_dwordx4 v{L16}, {s(T_WE,4)}, s{S_TMP} offen lds
    s_add_u32 m0, s{S_TMP}, {L_WE+8192}
    """)
    a(srd(T_WH, P_WH, 128 * 128))
    a(f"buffer_load_dwordx4 v{L16}, {s(T_WE,4)}, s{S_TMP2} offen lds\ns_add_u32 m0, s{S_TMP}, {L_WH1}")
    a(srd(T_H, P_H, N * 128))
    a(f"""
    buffer_load_dwordx4 v{L16}, {s(T_WH,4)}, s{S_TMP} offen lds
    s_add_u32 m0, s{S_TMP}, {L_WH2}
    s_lshl_b32 s3, s{S_N0}, 7
    buffer_load_dwordx4 v{L16}, {s(T_WH,4)}, s{S_TMP2} offen lds
    s_add_u32 s3, s3, s{S_TMP}
    s_add_u32 m0, s{S_TMP}, {L_HST}
    s_add_u32 s{S_TMP2}, s3, 8192
    buffer_load_dwordx4 v{t3}, {s(T_H,4)}, s3 offen lds
    s_add_u32 m0, s{S_TMP}, {L_HST+8192}
    """)
    a(srd(T_POS, P_POS, N * 6))
    a(f"buffer_load_dwordx4 v{t3}, {s(T_H,4)}, s{S_TMP2} offen lds")
    a(srd(T_X2, P_WX, 128))
    a(f"""
    buffer_load_ushort v{POSR}, v{t2}, {s(T_POS,4)}, 0 offen
    buffer_load_ushort v{POSR+1}, v{t2}, {s(T_POS,4)}, 0 offen offset:2
    buffer_load_ushort v{POSR+2}, v{t2}, {s(T_POS,4)}, 0 offen offset:4
    buffer_load_ushort v{POSR+3}, v{t4}, {s(T_X2,4)}, 0 offen
    """)
    a(f"s_lshl_b32 s{S_TMP}, s{S_V}, 12\ns_add_u32 m0, s{S_TMP}, {L_RING}")
    a(f"""
    s_mov_b32 s{S_NL}, 0x0000bf80
    s_mov_b32 s{S_NH}, 0xbf800000
    s_mov_b32 s{S_MSK}, 0xffffff80
    s_mov_b32 s{S_SO0}, 3072
    s_mov_b32 s{S_SO1}, 2048
    s_mov_b32 s{S_SO2}, 1024
    s_mov_b32 s{S_HI}, 0
    s_mov_b32 s{S_HI+1}, -1
    v_mul_u32_u24 v{t2}, 12, v0
    v_add_u32 v{t5}, {L_WE + 128*128}, v{LP}
    v_lshl_add_u32 v{LP}, v{hh_}, 10, v{LP}
    s_lshl_b32 s{S_TMP}, s{S_T}, 6
    s_add_u32 s{S_TMP}, s{S_TMP}, {L_ACC}
    v_add_u32 v{LPT}, s{S_TMP}, v{LP}
    s_lshl_b32 s{S_TMP2}, s{S_RT}, 11
    v_add_u32 v{t4}, s{S_TMP2}, v{LPT}
    s_waitcnt lgkmcnt(0)
    s_barrier
    """)
    stamp(a, r, 4)
    CO = r.D0; DBGV = r.A1 + 8
    for k in range(7):
        a(f"ds_read_b96 {v(CO+4*k,3)}, v{V16} offset:{L_STG + k*8192}")
    for k in range(7):
        a(f"s_mov_b32 s3, {k*6144}\ns_waitcnt lgkmcnt({6-k})")
        a(f"buffer_store_dwordx3 {v(CO+4*k,3)}, v{t2}, {s(T_RO,4)}, s3 offen {opt.st}")
    a(f"v_lshlrev_b32 v{DBGV+1}, 2, v{r.lane}\ns_cmp_lg_u32 s{S_V}, 0\ns_cbranch_scc1 L_nodbg\nbuffer_load_dword v{DBGV}, v{DBGV+1}, {s(T_DBG,4)}, 0 offen sc1\nL_nodbg:")
    stamp(a, r, 5)
    Q2 = r.W2; UP = r.W2 + 4; Q5 = r.W2 + 16; NTD = r.W2 + 24
    a("s_waitcnt vmcnt(7)\ns_barrier")
    a(f"ds_read_b64_tr_b16 {v(Q2,2)}, v{t4} offset:{8192+8192}\nds_read_b64_tr_b16 {v(Q2+2,2)}, v{t4} offset:{8192+8192+512}")
    for t in range(2):
        a(f"ds_read_b64_tr_b16 {v(Q5+4*t,2)}, v{t5} offset:{128+64*t}\nds_read_b64_tr_b16 {v(Q5+4*t+2,2)}, v{t5} offset:{64*t}")
    a(f"""
    v_lshl_or_b32 v{r.PS}, v{POSR+1}, 16, v{POSR}
    v_mov_b32 v{r.PS+1}, v{POSR+2}
    v_add_u32 v{t3}, s{S_N0}, v0
    v_cmp_gt_u32 vcc, {BN}, v0
    s_and_saveexec_b64 {s(S_D,2)}, vcc
    buffer_store_dwordx2 {v(r.PS,2)}, v{t3}, {s(SR_P4,4)}, 0 idxen {opt.st}
    s_mov_b64 exec, -1
    v_and_b32 v{t2}, 1, v0
    v_lshlrev_b32 v{t2}, 4, v{t2}
    v_mov_b32 v{t3}, 0x3f80
    v_lshlrev_b32 v{t2}, v{t2}, v{t3}
    v_bfe_u32 v{t3}, v0, 1, 2
    """)
    for d in range(4):
        a(f"v_cmp_eq_u32 vcc, {d}, v{t3}\ns_nop 1\nv_cndmask_b32 v{NTD+d}, 0, v{t2}, vcc")
    a(f"""
    v_lshlrev_b32 v{NTD+4}, 16, v{POSR}
    v_lshlrev_b32 v{NTD+5}, 16, v{POSR+1}
    v_lshlrev_b32 v{NTD+6}, 16, v{POSR+2}
    v_and_b32 v{t3}, 7, v0
    v_lshlrev_b32 v{NTD+7}, 3, v{t3}
    v_lshlrev_b32 v{POSR+3}, 16, v{POSR+3}
    v_mul_f32 v{POSR+3}, 0x{f2u(-LN2):08x}, v{POSR+3}
    v_lshlrev_b32 v{t3}, 2, v{r.lane}
    v_add_u32 v{t3}, {L_WX}, v{t3}
    s_waitcnt lgkmcnt(0)
    ds_write_b32 v{t3}, v{POSR+3}
    s_cmp_ge_u32 s{S_V}, 4
    s_cbranch_scc1 L_nont
    ds_write_b128 v{V32}, {v(NTD,4)}
    ds_write_b128 v{V32}, {v(NTD+4,4)} offset:16
    L_nont:
    """)
    for j in range(4):
        a(f"v_lshlrev_b32 v{UP+2*j}, 16, v{Q2+j}\nv_and_b32 v{UP+2*j+1}, 0xffff0000, v{Q2+j}")
    for j in range(4):
        a(f"v_pk_mul_f32 {v(UP+2*j,2)}, {v(UP+2*j,2)}, {s(S_C,2)}")
    for j in range(4):
        a(f"v_cvt_pk_bf16_f32 v{Q2+j}, v{UP+2*j}, v{UP+2*j+1}")
    a(f"""
    s_lshl_b32 s{S_TMP}, s{S_V}, 10
    s_add_u32 s{S_TMP}, s{S_TMP}, {L_W2S}
    v_add_u32 v{t4}, s{S_TMP}, v{L16}
    ds_write_b128 v{t4}, {v(Q2,4)}
    """)
    for t in range(2):
        x = Q5 + 4 * t; B = r.BW + 4 * t
        a(f"""
        v_lshlrev_b32 v{UP}, 16, v{x}
        v_and_b32 v{UP+1}, 0xffff0000, v{x}
        v_lshlrev_b32 v{UP+2}, 16, v{x+1}
        v_and_b32 v{UP+3}, 0xffff0000, v{x+1}
        v_lshlrev_b32 v{UP+4}, 16, v{x+2}
        v_pk_mul_f32 {v(UP,2)}, {v(UP,2)}, {s(S_C,2)}
        v_pk_mul_f32 {v(UP+2,2)}, {v(UP+2,2)}, {s(S_C,2)}
        v_mul_f32 v{UP+4}, s{S_C}, v{UP+4}
        v_cvt_pk_bf16_f32 v{B}, v{UP}, v{UP+1}
        v_cvt_pk_bf16_f32 v{B+1}, v{UP+2}, v{UP+3}
        v_cvt_pk_bf16_f32 v{UP+5}, v{UP+4}, v{UP+4}
        v_lshlrev_b32 v{UP+5}, 16, v{UP+5}
        v_sub_f32 v{UP+5}, v{UP+4}, v{UP+5}
        v_cvt_pk_bf16_f32 v{B+2}, v{UP+4}, v{UP+5}
        v_mov_b32 v{B+3}, 0
        """)
    W1F = r.T; WH1F = r.W2; AD = r.XM; HI = r.W2 + 16
    a(f"""
    s_lshl_b32 s{S_TMP}, s{S_RT}, 12
    s_add_u32 s{S_TMP}, s{S_TMP}, {L_HST}
    v_lshlrev_b32 v{t2}, 7, v{e_}
    v_add_u32 v{t2}, s{S_TMP}, v{t2}
    v_bfe_u32 v{t3}, v{e_}, 1, 3
    v_xor_b32 v{t5}, v{t3}, v{hh_}
    """)
    for k in range(4):
        a(f"v_xor_b32 v{t4}, {2*k}, v{t5}\nv_lshl_add_u32 v{t4}, v{t4}, 4, v{t2}\nds_read_b128 {v(r.H+4*k,4)}, v{t4}")
    for k in range(4):
        a(f"ds_read_b64_tr_b16 {v(W1F+4*k,2)}, v{LPT} offset:{8192+2048*k}\nds_read_b64_tr_b16 {v(W1F+4*k+2,2)}, v{LPT} offset:{8192+2048*k+512}")
    a(f"s_lshl_b32 s{S_TMP}, s{S_T}, 2\nv_xor_b32 v{t5}, s{S_TMP}, v{t3}\nv_lshl_add_u32 v{t2}, v{hh_}, 3, v{t2}")
    for k in range(4):
        a(f"ds_read_b64_tr_b16 {v(WH1F+4*k,2)}, v{LPT} offset:{2048*k}\nds_read_b64_tr_b16 {v(WH1F+4*k+2,2)}, v{LPT} offset:{2048*k+512}")
    for g in range(4):
        a(f"v_xor_b32 v{t4}, {g}, v{t5}\nv_lshl_add_u32 v{t4}, v{t4}, 4, v{t2}\nds_read_b64 {v(r.HR+2*g,2)}, v{t4}")
    stamp(a, r, 6)
    a(f"""
    s_lshl_b32 s3, s2, 10
    s_mov_b32 s{S_TMP}, 0x01010101
    s_waitcnt vmcnt(0) lgkmcnt(0)
    s_cmp_lg_u32 s{S_V}, 0
    s_cbranch_scc1 L_chkd
    L_chk:
    v_cmp_ne_u32 vcc, s{S_TMP}, v{DBGV}
    s_cbranch_vccz L_chkd
    s_sub_u32 s{S_BUD}, s{S_BUD}, 1
    s_cbranch_scc1 L_chkd
    s_sleep 8
    buffer_load_dword v{DBGV}, v{DBGV+1}, {s(T_DBG,4)}, 0 offen sc1
    s_waitcnt vmcnt(0)
    s_branch L_chk
    L_chkd:
    s_barrier
    s_cmp_lg_u32 s{S_V}, 0
    s_cbranch_scc1 L_nopub
    buffer_store_dwordx4 {v(TEV,4)}, v{L16}, {s(SR_TAB,4)}, s3 offen {opt.st}
    L_nopub:
    s_mov_b32 s{S_TMP}, s{S_B4}
    """)
    stamp(a, r, 7)
    def REC(q): return r.D0 + 4 * q
    TABV = r.M; ADR = r.T
    for rr in range(8):
        a(f"buffer_load_dword v{TABV+rr}, v{TA}, {s(SR_TAB,4)}, s{S_TMP} offen {opt.hl}")
        if rr < 7: a(f"s_add_u32 s{S_TMP}, s{S_TMP}, 32768")
    for k in range(4): a(mfma(AD, r.H+4*k, W1F+4*k, AD if k else None))
    for k in range(4): a(mfma(r.U, WH1F+4*k, r.H+4*k, r.U if k else None))
    a(f"""
    s_lshl_b32 s{S_TMP}, s{S_RT}, 12
    s_lshl_b32 s{S_TMP2}, s{S_T}, 9
    s_add_u32 s{S_TMP}, s{S_TMP}, s{S_TMP2}
    s_add_u32 s{S_TMP}, s{S_TMP}, {L_AT}
    v_lshlrev_b32 v{t2}, 4, v{e_}
    v_lshl_add_u32 v{t2}, v{hh_}, 3, v{t2}
    v_add_u32 v{t2}, s{S_TMP}, v{t2}
    v_add_u32 v{t4}, {L_W2S}, v{L16}
    """)
    for g in range(4):
        x = AD + 4 * g
        if g == 2: a(f"s_cmp_eq_u32 s{S_RT}, 3\ns_cbranch_scc1 L_at_done")
        a(f"""
        v_pk_mul_f32 {v(x,2)}, {v(x,2)}, {s(S_C,2)}
        v_pk_mul_f32 {v(x+2,2)}, {v(x+2,2)}, {s(S_C,2)}
        v_cvt_pk_bf16_f32 v{x}, v{x}, v{x+1}
        v_cvt_pk_bf16_f32 v{x+1}, v{x+2}, v{x+3}
        ds_write_b64 v{t2}, {v(x,2)} offset:{g*1024}
        """)
    a.label("L_at_done")
    for sidx in range(4):
        for t in range(2):
            a(f"ds_read_b128 {v(r.W2+16*t+4*sidx,4)}, v{t4} offset:{(2*sidx+t)*1024}")
    a(f"v_mov_b32 v{r.XM+3}, 0")
    for i in range(2, 8, 2): a(f"v_mov_b64 {v(r.S+i,2)}, 0")
    for i in range(0, 16, 2): a(f"v_pk_mul_f32 {v(r.U+i,2)}, {v(r.U+i,2)}, {s(S_C,2)}")
    a(f"""
    v_add_u32 v{r.EH}, {L_WH2 - L_ACC}, v{LPT}
    s_mul_i32 s{S_TMP}, s{S_RT}, {32*ACC_ROW}
    s_add_u32 s{S_TMP}, s{S_TMP}, {L_ACC}
    v_mul_u32_u24 v{t2}, {ACC_ROW}, v{e_}
    v_lshl_add_u32 v{t2}, v{hh_}, 5, v{t2}
    v_add_u32 v{r.EM}, s{S_TMP}, v{t2}
    v_min_u32 v{t3}, 311, v0
    v_mul_u32_u24 v{t4}, 171, v{t3}
    v_lshrrev_b32 v{t4}, 9, v{t4}
    v_mul_u32_u24 v{t5}, 3, v{t4}
    v_sub_u32 v{t5}, v{t3}, v{t5}
    v_lshlrev_b32 v{t5}, 2, v{t5}
    v_lshl_add_u32 v{r.EK}, v{t4}, 5, v{t5}
    v_mul_u32_u24 v{r.EP}, {ACC_ROW}, v{t4}
    v_add_u32 v{r.EP}, v{r.EP}, v{t5}
    v_add_u32 v{r.EP}, {L_ACC+256}, v{r.EP}
    s_lshl_b32 s{S_TMP}, s{S_V}, 12
    s_add_u32 s{S_TMP}, s{S_TMP}, {L_RING}
    v_mul_u32_u24 v{t2}, 80, v{e_}
    v_lshl_add_u32 v{t2}, v{hh_}, 3, v{t2}
    v_add_u32 v{r.EW}, s{S_TMP}, v{t2}
    v_lshrrev_b32 v{t3}, 2, v{r.lane}
    v_and_b32 v{t4}, 3, v{r.lane}
    v_lshlrev_b32 v{t4}, 4, v{t4}
    v_lshl_add_u32 v{t5}, v{t3}, 7, v{t4}
    v_mul_u32_u24 v{t3}, 80, v{t3}
    v_add3_u32 v{r.ER}, v{t3}, v{t4}, s{S_TMP}
    s_lshl_b32 s{S_TMP}, s{S_RT}, 12
    s_lshl_b32 s{S_TMP2}, s{S_T}, 6
    s_add_u32 s{S_TMP}, s{S_TMP}, s{S_TMP2}
    v_add_u32 v{r.EG}, s{S_TMP}, v{t5}
    v_lshlrev_b32 v{r.TE}, 1, v0
    v_lshrrev_b32 v{t3}, 4, v{r.lane}
    v_mul_u32_u24 v{t3}, {ACC_ROW}, v{t3}
    v_and_b32 v{t4}, 15, v{r.lane}
    v_lshl_add_u32 v{r.EX}, v{t4}, 4, v{t3}
    """)
    for rr in range(8):
        a(f"""
        s_waitcnt vmcnt({7 + rr})
        L_w{rr}:
        v_cmp_le_i32 vcc, 0, v{TABV+rr}
        s_cbranch_vccz L_g{rr}
        s_sub_u32 s{S_BUD}, s{S_BUD}, 1
        s_cbranch_scc1 L_g{rr}
        s_sleep 2
        """)
        for r2 in range(rr, 8):
            a(f"s_add_u32 s{S_TMP}, s{S_B4}, {r2*32768}\nbuffer_load_dword v{TABV+r2}, v{TA}, {s(SR_TAB,4)}, s{S_TMP} offen {opt.hl}")
        a(f"""
        s_waitcnt vmcnt(0)
        s_branch L_w{rr}
        L_g{rr}:
        v_cmp_lt_u32_sdwa {s(S_M+2*rr,2)}, v{JJ}, v{TABV+rr} src0_sel:DWORD src1_sel:WORD_1
        v_cmp_lt_u32_sdwa {s(S_M+16+2*rr,2)}, v{J16}, v{TABV+rr} src0_sel:DWORD src1_sel:WORD_1
        v_max_u32 v{MX}, v{MX}, v{TABV+rr}
        v_add_u32_sdwa v{ADR+rr}, v{LB}, v{TABV+rr} {SDWA} src1_sel:WORD_0
        s_mov_b32 s{S_TMP}, {rr*32*REC_STRIDE}
        s_mov_b64 exec, {s(S_M+2*rr,2)}
        buffer_load_dwordx3 {v(REC(rr),3)}, v{ADR+rr}, {s(SR_REC,4)}, s{S_TMP} offen {opt.hl}
        s_mov_b64 exec, {s(S_M+16+2*rr,2)}
        buffer_load_dwordx3 {v(REC(8+rr),3)}, v{ADR+rr}, {s(SR_REC,4)}, s{S_TMP} offen offset:192 {opt.hl}
        s_mov_b64 exec, -1
        """)
    stamp(a, r, 8)
    stamp(a, r, 9)
    if opt.warm:
        a(f"""
        s_lshr_b32 s{S_TMP}, s2, 3
        s_lshl_b32 s{S_TMP}, s{S_TMP}, 3
        s_add_u32 s{S_TMP}, s{S_TMP}, s{S_V}
        s_mul_i32 s{S_TMP}, s{S_TMP}, {opt.warm*1024}
        s_add_u32 s{S_TMP}, s{S_TMP}, 3072
        v_lshlrev_b32 v{t2}, 4, v{r.lane}
        """)
        for k in range(opt.warm):
            if k and k % 4 == 0: a(f"s_add_u32 s{S_TMP}, s{S_TMP}, 4096")
            a(f"buffer_load_dwordx4 {v(r.H+12,4)}, v{t2}, {s(SR_HD,4)}, s{S_TMP} offen offset:{(k%4)*1024}")
    a(f"""
    v_cmp_lt_u32 vcc, 0x{((0x8000+33)<<16)-1:08x}, v{MX}
    s_and_saveexec_b64 {s(S_D,2)}, vcc
    v_mov_b32 v{t2}, {L_FLAG}
    ds_write_b32 v{t2}, v{ONE}
    s_mov_b64 exec, -1
    """)
    order = [x for rr in range(8) for x in (rr, 8 + rr)]
    a.label("L_rank")
    for n_, q in enumerate(order):
        if q < 8: a(f"s_waitcnt vmcnt({opt.warm + 14 - n_ + (q if opt.pf else 0)})")
        else: a(f"s_cmp_eq_u64 {s(S_M+2*q,2)}, 0\ns_cbranch_scc1 L_rk{q}")
        a(f"""
        s_mov_b64 exec, {s(S_M+2*q,2)}
        v_lshlrev_b32_sdwa v{ADR+q}, 2, v{REC(q)+2} {SDWA} src1_sel:BYTE_0
        ds_add_rtn_u32 v{REC(q)+3}, v{ADR+q}, v{ONE} offset:{L_CNT}
        """)
        if q < 8 and opt.pf: a(f"buffer_load_ubyte v{r.V4}, v{REC(q)+2}, {s(SR_HD,4)}, s{S_SO0} offen")
        if q >= 8: a.label(f"L_rk{q}")
    a(f"""
    s_mov_b64 exec, -1
    v_lshlrev_b32 v{t2}, 3, v{r.lane}
    v_mov_b32 v{t3}, {L_FLAG}
    s_mov_b32 s{S_PADM}, {0 if opt.slide else 31}
    s_cmp_lg_u32 s{S_MODE}, 0
    s_cselect_b32 s{S_PADM}, 31, s{S_PADM}
    s_waitcnt lgkmcnt(0)
    s_barrier
    """)
    stamp(a, r, 10)
    a(f"s_cmp_lg_u32 s{S_MODE}, 0\ns_cbranch_scc1 L_noaz")
    nonlocal_z[0] = r.S + 4
    zero_region(L_ACC, 112 * ACC_ROW)
    a(f"v_mov_b32 v{t3}, {L_FLAG}\nL_noaz:")
    CA = r.M; CB = r.M + 2; FL = r.M + 4; SS = r.M + 5; TT = r.M + 6; PADR = r.M + 7; O = r.M + 8; INC = r.M + 12; SP = r.M + 13; N1 = r.M + 14
    a(f"""
    ds_read_b64 {v(CA,2)}, v{t2} offset:{L_CNT}
    ds_read_b64 {v(CB,2)}, v{t2} offset:{L_CNT+512}
    ds_read_b32 v{FL}, v{t3}
    v_and_b32 v{t4}, 3, v{r.lane}
    v_cmp_eq_u32 {s(S_NB,2)}, 3, v{t4}
    s_waitcnt lgkmcnt(0)
    v_add_u32 v{N1}, v{CA}, v{CB}
    v_add3_u32 v{SS}, v{N1}, v{CA+1}, v{CB+1}
    v_readfirstlane_b32 s{S_TMP3}, v{FL}
    s_nop 0
    v_add_u32_dpp v{TT}, v{SS}, v{SS} quad_perm:[1,0,3,2] row_mask:0xf bank_mask:0xf
    s_nop 1
    v_add_u32_dpp v{TT}, v{TT}, v{TT} quad_perm:[2,3,0,1] row_mask:0xf bank_mask:0xf
    L_scan:
    v_sub_u32 v{PADR}, 0, v{TT}
    v_and_b32 v{PADR}, s{S_PADM}, v{PADR}
    v_cndmask_b32 v{PADR}, 0, v{PADR}, {s(S_NB,2)}
    v_add_u32 v{SP}, v{SS}, v{PADR}
    v_mov_b32 v{INC}, v{SP}
    """)
    a(wave_scan(INC))
    a(f"""
    s_nop 0
    v_readlane_b32 s{S_TMP}, v{INC}, 63
    v_sub_u32 v{O}, v{INC}, v{SP}
    s_cmp_lg_u32 s{S_PADM}, 0
    s_cbranch_scc1 L_scan_pad
    v_mov_b32_dpp v{PADR}, v{INC} quad_perm:[1,1,3,3] row_mask:0xf bank_mask:0xf
    v_add_u32 v{t4}, -1, v{O}
    v_xor_b32 v{t4}, v{t4}, v{PADR}
    v_cmp_gt_u32 vcc, 32, v{t4}
    v_cmp_gt_u32 {s(S_NBN,2)}, s{S_TMP}, v{PADR}
    s_and_b64 vcc, vcc, {s(S_NBN,2)}
    s_and_b32 vcc_lo, vcc_lo, 0x55555555
    s_and_b32 vcc_hi, vcc_hi, 0x55555555
    v_mov_b32 v{PADR}, s{S_TMP}
    s_cmp_eq_u64 vcc, 0
    s_cbranch_scc1 L_scan_done
    s_mov_b32 s{S_PADM}, 31
    s_branch L_scan
    L_scan_pad:
    v_mov_b32_dpp v{PADR}, v{O} quad_perm:[0,0,0,0] row_mask:0xf bank_mask:0xf
    v_add_u32 v{PADR}, v{PADR}, v{TT}
    v_mov_b64 {v(r.H,2)}, 0
    v_mov_b64 {v(r.H+2,2)}, 0
    ds_write_b128 v{V16}, {v(r.H,4)} offset:{L_REC}
    ds_write_b128 v{V16}, {v(r.H,4)} offset:{L_REC+8192}
    ds_write_b128 v{V16}, {v(r.H,4)} offset:{L_REC+16384}
    ds_write_b128 v{V16}, {v(r.H,4)} offset:{L_REC+24576}
    ds_write_b128 v{V16}, {v(r.H,4)} offset:{L_REC+32768}
    ds_write_b128 v{V16}, {v(r.H,4)} offset:{L_REC+40960}
    s_waitcnt lgkmcnt(0)
    s_barrier
    L_scan_done:
    v_lshrrev_b32 v{t3}, 1, v{r.lane}
    v_add_u32 v{t4}, s{S_TMP}, v{t3}
    v_mul_u32_u24 v{t4}, 12, v{t4}
    v_add_u32 v{t4}, {L_REC}, v{t4}
    ds_write2_b32 v{t4}, v{r.Zero}, v{r.Zero} offset0:0 offset1:1
    ds_write_b32 v{t4}, v{r.Zero} offset:8
    v_add_u32 v{O+1}, v{O}, v{N1}
    v_add_u32 v{O+2}, v{O}, v{CA}
    v_add_u32 v{O+3}, v{O+1}, v{CA+1}
    ds_write_b64 v{t2}, {v(O,2)} offset:{L_OFF}
    ds_write_b64 v{t2}, {v(O+2,2)} offset:{L_OFF+512}
    v_and_b32 v{t3}, 60, v{r.lane}
    v_add_u32 v{t3}, {L_WEND}, v{t3}
    ds_write_b32 v{t3}, v{PADR}
    s_add_u32 s{S_TMP}, s{S_TMP}, 31
    s_lshr_b32 s{S_TMP}, s{S_TMP}, 5
    s_cmp_gt_u32 s{S_TMP}, {CAPT}
    s_cselect_b32 s{S_TMP3}, 1, s{S_TMP3}
    s_cmp_lg_u32 s{S_TMP3}, 0
    s_cbranch_scc1 L_slow
    """)
    for q in order:
        if q >= 8: a(f"s_cmp_eq_u64 {s(S_M+2*q,2)}, 0\ns_cbranch_scc1 L_pa{q}")
        a(f"s_mov_b64 exec, {s(S_M+2*q,2)}\nds_read_b32 v{ADR+q}, v{ADR+q} offset:{L_OFF}")
        if q >= 8: a.label(f"L_pa{q}")
    a(f"""
    s_and_b32 s{S_T0}, s{S_V}, 3
    s_mul_i32 s{S_T0}, s{S_T0}, s{S_TMP}
    s_add_u32 s{S_NTL}, s{S_T0}, s{S_TMP}
    s_lshr_b32 s{S_T0}, s{S_T0}, 2
    s_lshr_b32 s{S_NTL}, s{S_NTL}, 2
    s_sub_u32 s{S_TMP}, s{S_NTL}, s{S_T0}
    s_mul_i32 s{S_TMP}, s{S_TMP}, {opt.split}
    s_add_u32 s{S_TMP}, s{S_TMP}, 32
    s_lshr_b32 s{S_TMP}, s{S_TMP}, 6
    s_add_u32 s{S_TMP}, s{S_TMP}, s{S_T0}
    s_and_b32 s{S_FI}, s{S_V}, 4
    s_cmp_eq_u32 s{S_TMP}, s{S_T0}
    s_cselect_b32 s{S_FI}, 0, s{S_FI}
    s_cmp_lt_u32 s{S_V}, 4
    s_cselect_b32 s{S_NTL}, s{S_TMP}, s{S_NTL}
    s_cselect_b32 s{S_T0}, s{S_T0}, s{S_TMP}
    s_sub_u32 s{S_NTL}, s{S_NTL}, s{S_T0}
    s_mov_b32 s{S_TMP2}, {L_REC}
    s_waitcnt lgkmcnt(0)
    """)
    for q in order:
        if q >= 8: a(f"s_cmp_eq_u64 {s(S_M+2*q,2)}, 0\ns_cbranch_scc1 L_pb{q}")
        a(f"""
        s_mov_b64 exec, {s(S_M+2*q,2)}
        v_add_u32 v{ADR+q}, v{ADR+q}, v{REC(q)+3}
        v_mad_u32_u24 v{ADR+q}, v{ADR+q}, 12, s{S_TMP2}
        ds_write_b32 v{ADR+q}, v{REC(q)+2} offset:8
        ds_write2_b32 v{ADR+q}, v{REC(q)}, v{REC(q)+1} offset0:0 offset1:1
        """)
        if q >= 8: a.label(f"L_pb{q}")
    a(f"""
    s_mov_b64 exec, -1
    s_mul_i32 s{S_TMP}, s{S_T0}, 384
    s_add_u32 s{S_TMP}, s{S_TMP}, {L_REC}
    v_and_b32 v{t2}, 31, v{r.lane}
    v_mul_u32_u24 v{t2}, 12, v{t2}
    v_add_u32 v{r.A1a}, s{S_TMP}, v{t2}
    v_lshrrev_b32 v{t2}, 3, v{r.lane}
    v_mul_u32_u24 v{t2}, 48, v{t2}
    v_add_u32 v{r.A2a}, s{S_TMP}, v{t2}
    s_sub_u32 s{S_TMP}, s{S_T0}, 1
    v_add_u32 v{t3}, s{S_TMP}, v{r.lane}
    v_mul_u32_u24 v{t2}, 384, v{t3}
    s_waitcnt lgkmcnt(0)
    s_barrier
    """)
    stamp(a, r, 11)
    a(f"s_cmp_eq_u32 s{S_NTL}, 0\ns_cbranch_scc1 L_idle")
    a(k_reads(r, 0))
    a(f"ds_read_u8 v{t4}, v{t2} offset:{L_REC+8}")
    a(ea_read(r, 0))
    a(acc_zero(r, False))
    for i in range(0, 8, 2): a(f"v_mov_b64 {v(r.M+8+i,2)}, 0\nv_mov_b64 {v(r.S+i,2)}, 0")
    a("s_waitcnt lgkmcnt(2)")
    a(dma_addr(r) + dma_issue(r))
    a(f"""
    v_lshrrev_b32 v{r.PI}, 7, v{r.K}
    v_lshlrev_b32_sdwa v{r.NA}, 5, v{r.K} {SDWA} src1_sel:BYTE_0
    buffer_load_dwordx2 {v(r.PS,2)}, v{r.PI}, {s(SR_P4,4)}, 0 idxen
    """)
    a(pd_read(r) + k_reads(r, 1))
    a(f"""
    s_waitcnt lgkmcnt(5)
    v_and_b32 v{t4}, 0x7f, v{t4}
    v_lshrrev_b32 v{t5}, 3, v{t4}
    v_lshlrev_b32 v{t5}, 2, v{t5}
    v_add_u32 v{t5}, {L_WEND}, v{t5}
    ds_read_b32 v{t5}, v{t5}
    v_lshlrev_b32 v{t3}, 5, v{t3}
    s_waitcnt lgkmcnt(0)
    v_sub_u32 v{t5}, v{t5}, v{t3}
    v_min_u32 v{t5}, 32, v{t5}
    v_mad_u32_u24 v{t2}, v{t5}, 12, v{t2}
    ds_read_u8 v{t2}, v{t2} offset:{L_REC-4}
    v_lshl_or_b32 v{t4}, v{t5}, 16, v{t4}
    s_waitcnt lgkmcnt(0)
    v_and_b32 v{t2}, 0x7f, v{t2}
    v_lshl_or_b32 v{r.Desc}, v{t2}, 8, v{t4}
    s_nop 0
    v_readlane_b32 s{S_D}, v{r.Desc}, 1
    v_readlane_b32 s{S_ZP}, v{r.Desc}, 0
    s_nop 1
    s_and_b32 s{S_NB}, s{S_D}, 0x7c
    s_mov_b32 s{S_NBP}, s{S_NB}
    s_lshr_b32 s{S_CNT}, s{S_D}, 16
    s_bfe_u32 s{S_ZP}, s{S_ZP}, 0x80008
    s_cmp_eq_u32 s{S_T0}, 0
    s_cselect_b32 s{S_ZP}, -1, s{S_ZP}
    """)
    a(aw_reads(r, S_NB))
    a("s_waitcnt vmcnt(1)")
    a(h_reads(r))
    a("s_waitcnt lgkmcnt(0)")
    a(dma_addr(r) + dma_issue(r))
    a("s_waitcnt vmcnt(4)")
    a(geometry(r, False))
    for k in range(4): a(mfma(r.D0, r.H+4*k, r.W2+4*k, r.D0 if k else None))
    a("s_waitcnt lgkmcnt(0)")
    a(mfma(r.D0, r.XM, r.BW, r.D0))
    a(f"s_mov_b32 s{S_I}, 2\ns_add_u32 s{S_NTL}, s{S_NTL}, 1")
    if opt.prio: a(f"s_cmp_ge_u32 s{S_V}, 4\ns_cbranch_scc1 L_np\ns_setprio 1\nL_np:")
    a("s_nop 7\ns_nop 1")
    stamp(a, r, 12); stamp(a, r, 28, True)
    a(".p2align 6")
    a.label("L_loop")
    pre = k_reads(r, 2) + pd_read(r) + [f"v_readlane_b32 s{S_D}, v{r.Desc}, s{S_I}"] + s_set(r)
    PE = [int(x) for x in opt.mfe.split(",")]; PR = [int(x) for x in opt.mfr.split(",")]
    mf_exp = {PE[k]: mfma(r.D1, r.H+4*k, r.W2+16+4*k, r.D1 if k else None) for k in range(4)}
    mf_rcp = {PR[0]: mfma(r.D1, r.XM, r.BW+4, r.D1), PR[1]: mfma(r.A1, r.M+8, r.S, r.A1), PR[2]: mfma(r.A1, r.M+12, r.S+4, r.A1)}
    ins_exp = {7: [f"s_bfe_u32 s{S_TMP}, s{S_D}, 0x80008", f"s_add_u32 s{S_TMP2}, s{S_NB}, 8", f"s_and_b32 s{S_TMP3}, s{S_D}, 0x7c",
                   f"s_cmp_ge_u32 s{S_TMP}, s{S_TMP2}", f"s_cselect_b32 s{S_NBN}, s{S_TMP3}, s{S_NB}"],
               PE[3]+1: ["s_waitcnt vmcnt(1)"] + h_reads(r)}
    ins_rcp = {2: ["s_waitcnt lgkmcnt(4)"] + dma_addr(r),
               4: ["s_waitcnt lgkmcnt(0)"] + dma_issue(r),
               6: ea_read(r, 1) + [f"s_cmp_eq_u32 s{S_NBN}, s{S_NB}", "s_cbranch_scc1 L_noaw"] + aw_reads(r, S_NBN) + ["L_noaw:"],
               PR[2]+1: s_reads(r)}
    silu_stage(a, r, r.D0, r.M, mf_exp, mf_rcp, ins_exp, ins_rcp, pre)
    a(f"s_cmp_eq_u32 s{S_NB}, s{S_NBP}\ns_cbranch_scc1 L_noflush")
    if "flush" in opt.abl: a("s_branch L_noflush")
    a(retire_mask(r))
    a(f"s_cmp_lg_u32 s{S_MODE}, 0\ns_cbranch_scc1 L_flush_slow")
    a(flush_plain(r))
    a.label("L_noflush")
    pre = [f"s_mov_b32 s{S_NBP}, s{S_NB}", f"s_mov_b32 s{S_NB}, s{S_NBN}", f"s_lshr_b32 s{S_CNT}, s{S_D}, 16",
           "s_waitcnt vmcnt(4)"] + geometry(r, True)
    mf_exp = {PE[k]: mfma(r.D0, r.H+4*k, r.W2+4*k, r.D0 if k else None) for k in range(4)}
    mf_rcp = {PR[0]: mfma(r.D0, r.XM, r.BW, r.D0), PR[1]: mfma(r.A0, r.M, r.S, r.A0), PR[2]: mfma(r.A0, r.M+4, r.S+4, r.A0)}
    silu_stage(a, r, r.D1, r.M+8, mf_exp, mf_rcp, {15: ["s_waitcnt lgkmcnt(0)"]}, {}, pre)
    a(f"""
    s_sub_u32 s{S_TMP}, s{S_I}, 1
    s_add_u32 s{S_I}, s{S_I}, 1
    s_cmp_le_u32 s{S_I}, s{S_NTL}
    s_cbranch_scc1 L_loop
    v_readlane_b32 s{S_D}, v{r.Desc}, s{S_TMP}
    """)
    stamp(a, r, 13); stamp(a, r, 29, True)
    a(mfma(r.A1, r.M+8, r.S, r.A1)); a(mfma(r.A1, r.M+12, r.S+4, r.A1))
    if opt.prio: a("s_setprio 0")
    S_RML = S_TMP3; S_GL = S_NBN
    a(f"""
    s_mov_b32 s{S_RM}, 0xffff
    s_bitcmp1_b32 s{S_NBP}, 2
    s_cselect_b32 s{S_RM}, 0xffff0000, s{S_RM}
    s_bfe_u32 s{S_GL}, s{S_D}, 0x6000a
    s_lshr_b32 s{S_TMP2}, s{S_NBP}, 2
    s_cmp_lg_u32 s{S_GL}, s{S_TMP2}
    s_cselect_b32 s{S_RM}, -1, s{S_RM}
    s_mov_b32 s{S_RML}, 0xffff
    s_bitcmp1_b32 s{S_GL}, 0
    s_cselect_b32 s{S_RML}, 0xffff0000, s{S_RML}
    s_cselect_b32 s{S_CNT}, {4*ACC_ROW}, 0
    """)
    a(flush_addr(r))
    WH2 = r.W2; HU = r.W2 + 16
    def epi_prep_a():
        for j in range(8):
            a(f"v_lshlrev_b32 v{HU+2*j}, 16, v{r.HR+j}\nv_and_b32 v{HU+2*j+1}, 0xffff0000, v{r.HR+j}")
    def epi_prep_b():
        for k in range(4):
            a(f"ds_read_b64_tr_b16 {v(WH2+4*k,2)}, v{r.EH} offset:{2048*k}\nds_read_b64_tr_b16 {v(WH2+4*k+2,2)}, v{r.EH} offset:{2048*k+512}")
    def epi_prep(): epi_prep_a(); epi_prep_b()
    a(f"""
    s_cmp_lg_u32 s{S_MODE}, 0
    s_cbranch_scc1 L_final_slow
    s_lshl_b32 s{S_TMP}, s{S_V}, 11
    s_add_u32 s{S_TMP}, s{S_TMP}, {L_SIMG}
    v_add_u32 v{r.K}, s{S_TMP}, v{r.EX}
    s_sub_u32 s{S_TMP}, s{S_TMP}, {L_ACC}
    s_sub_u32 s{S_TMP}, s{S_TMP}, s{S_CNT}
    s_mov_b32 exec_lo, s{S_RML}
    s_mov_b32 exec_hi, s{S_RML}
    v_add_u32 v{t2}, s{S_TMP}, v{r.FlM}
    """)
    a(EX3)
    a([f"ds_write_b128 v{t2}, {v(r.A0+4*q,4)} offset:{32*q}" for q in range(8)])
    a(f"s_mov_b64 exec, -1\nds_read_b128 {v(r.PD,4)}, v{r.K}")
    epi_prep_a()
    a("s_waitcnt lgkmcnt(9)")
    a(flush_dot(r))
    epi_prep_b()
    a(f"""
    s_andn2_b32 s{S_TMP}, s{S_RM}, s{S_RML}
    s_and_b32 exec_lo, s{S_TMP}, 0x77777777
    s_mov_b32 exec_hi, 0
    ds_write_b32 v{t3}, v{t4}
    s_mov_b64 exec, -1
    s_mov_b32 s{S_RM}, s{S_RML}
    s_mul_i32 s{S_TMP}, s{S_GL}, {4*ACC_ROW}
    s_add_u32 s{S_TMP}, s{S_TMP}, {L_ACC}
    v_add_u32 v{t2}, s{S_TMP}, v{r.EX}
    s_ashr_i32 s{S_ZP}, s{S_ZP}, 2
    s_cmp_lg_u32 s{S_ZP}, s{S_GL}
    s_cbranch_scc1 L_main_end
    s_add_u32 s{S_TMP}, s{S_FI}, {L_FLAG+8}
    v_mov_b32 v{r.K}, s{S_TMP}
    v_mov_b32 v{r.PI}, 1
    ds_write_b32 v{r.K}, v{r.PI}
    L_main_end:
    """)
    stamp(a, r, 14)
    rmw_rd = [f"ds_read_b128 {v(r.D0,4)}, v{t2}", EXP, f"ds_read_b32 v{t5}, v{t3}", "s_mov_b64 exec, -1"]
    rmw_wr = ["s_waitcnt lgkmcnt(1)",
              f"v_pk_add_f32 {v(r.D0,2)}, {v(r.D0,2)}, {v(r.PD,2)}", f"v_pk_add_f32 {v(r.D0+2,2)}, {v(r.D0+2,2)}, {v(r.PD+2,2)}",
              f"ds_write_b128 v{t2}, {v(r.D0,4)}", EXP, "s_waitcnt lgkmcnt(1)", f"v_add_f32 v{t4}, v{t4}, v{t5}",
              f"ds_write_b32 v{t3}, v{t4}", "s_mov_b64 exec, -1"]
    a(f"v_mov_b32 v{r.K}, {L_FLAG+8}\ns_waitcnt vmcnt(0) lgkmcnt(0)\ns_barrier\nds_read_b64 {v(r.PS,2)}, v{r.K}")
    a(rmw_rd)
    a(f"""
    s_waitcnt lgkmcnt(2)
    v_readfirstlane_b32 s{S_TMP}, v{r.PS}
    v_readfirstlane_b32 s{S_TMP2}, v{r.PS+1}
    s_nop 3
    s_or_b32 s{S_D}, s{S_TMP}, s{S_TMP2}
    s_cbranch_scc1 L_merge_rare
    L_merge:
    s_cmp_eq_u32 s{S_NTL}, 0
    s_cbranch_scc1 L_epi
    """)
    a(rmw_wr)
    a.label("L_epi")
    if opt.stamp: a(f"s_sub_u32 s{S_ST}, s{S_NTL}, 1\ns_max_i32 s{S_ST}, s{S_ST}, 0\nv_writelane_b32 v{r.ST}, s{S_ST}, 30")
    MR = r.D0
    a(f"""
    s_mov_b32 s{S_D}, 0x{f2u(-LN2):08x}
    s_mov_b32 s{S_D+1}, 0x{f2u(-LN2):08x}
    ds_read_b32 v{r.K}, v{r.EK} offset:16
    s_waitcnt lgkmcnt(0)
    s_barrier
    """)
    stamp(a, r, 15)
    for k in range(4):
        a(f"ds_read_b128 {v(MR+8*k,4)}, v{r.EM} offset:{64*k}\nds_read_b128 {v(MR+8*k+4,4)}, v{r.EM} offset:{64*k+16}")
    a(f"ds_read_b32 v{r.PI}, v{r.EP}")
    for k in range(4):
        a(f"s_waitcnt lgkmcnt({7-2*k})")
        for j in range(4):
            a(f"v_cvt_pk_bf16_f32 v{r.H+4*k+j}, v{MR+8*k+2*j}, v{MR+8*k+2*j+1}")
        if k: a(mfma(r.U, WH2+4*(k-1), r.H+4*(k-1), r.U))
    a(f"""
    s_waitcnt lgkmcnt(0)
    v_add_f32 v{r.K}, v{r.K}, v{r.PI}
    {mfma(r.U, WH2+12, r.H+12, r.U)}
    v_cvt_pk_bf16_f32 v{r.K}, v{r.K}, v{r.K}
    buffer_store_short v{r.K}, v{r.TE}, {s(SR_OUTP,4)}, 0 offen {opt.ost}
    s_nop 9
    """)
    T = r.T; U = r.U
    for i in range(16): a(f"v_exp_f32 v{T+i}, v{U+i}")
    for i in range(0, 16, 2): a(f"v_pk_add_f32 {v(T+i,2)}, {v(T+i,2)}, {s(S_ONE,2)}")
    for i in range(0, 16, 2): a(f"v_pk_mul_f32 {v(U+i,2)}, {v(U+i,2)}, {s(S_D,2)}")
    for i in range(16): a(f"v_rcp_f32 v{T+i}, v{T+i}")
    for g in range(4):
        for i in (4*g, 4*g+2): a(f"v_pk_fma_f32 {v(T+i,2)}, {v(T+i,2)}, {v(U+i,2)}, {v(HU+i,2)}")
        for i in (4*g, 4*g+2): a(f"v_cvt_pk_bf16_f32 v{r.M+i//2}, v{T+i}, v{T+i+1}")
        a(f"ds_write_b64 v{r.EW}, {v(r.M+2*g,2)} offset:{16*g}")
    a(f"""
    """)
    if opt.thr:
        a(f"""
        s_memrealtime s[4:5]
        s_waitcnt lgkmcnt(0)
        s_sub_u32 s4, s4, s{S_ST}
        s_cmp_gt_u32 s4, {opt.thr}
        s_cselect_b32 s4, 0x10000, 0
        v_add_u32 v{r.EG}, s4, v{r.EG}
        """)
    a(f"""
    ds_read_b128 {v(r.H,4)}, v{r.ER}
    ds_read_b128 {v(r.H+4,4)}, v{r.ER} offset:1280
    s_waitcnt lgkmcnt(1)
    buffer_store_dwordx4 {v(r.H,4)}, v{r.EG}, {s(SR_OUT,4)}, 0 offen {opt.ost}
    s_waitcnt lgkmcnt(0)
    buffer_store_dwordx4 {v(r.H+4,4)}, v{r.EG}, {s(SR_OUT,4)}, 0 offen offset:2048 {opt.ost}
    """)
    if opt.stamp:
        stamp(a, r, 16); a("s_waitcnt vmcnt(0)"); stamp(a, r, 17); stamp(a, r, 31, True)
        a(f"""
        s_lshl_b32 s{S_ST}, s2, 4
        s_add_u32 s{S_ST}, s{S_ST}, s{S_V}
        s_lshl_b32 s{S_ST}, s{S_ST}, 8
        s_add_u32 s{S_ST}, s{S_ST}, {WS_STAMP}
        s_add_u32 s{S_ST}, s{P_WS}, s{S_ST}
        s_addc_u32 s{S_ST+1}, s{P_WS+1}, 0
        v_lshlrev_b32 v{t2}, 2, v{r.lane}
        global_store_dword v{t2}, v{r.ST}, {s(S_ST,2)}
        """)
    if opt.diag:
        a("s_waitcnt vmcnt(0)"); stamp(a, r, 31)
        a(f"""
        v_lshlrev_b32 v{t2}, 2, v{r.lane}
        s_mov_b64 exec, 0xffff
        global_atomic_umax v{t2}, v{r.ST}, {s(P_DBG,2)}
        """)
    a("L_done:\ns_endpgm")
    a(f"L_idle:\ns_cmp_lg_u32 s{S_MODE}, 0\ns_cbranch_scc1 L_slow_next")
    epi_prep()
    a("s_branch L_main_end")
    a(f"""
    L_merge_rare:
    s_cmp_lg_u32 s{S_TMP}, 0
    s_cbranch_scc1 L_final_atomic
    s_cmp_ge_u32 s{S_V}, 4
    s_cbranch_scc1 L_merge_young
    s_cmp_eq_u32 s{S_NTL}, 0
    s_cbranch_scc1 L_merge_old_done
    """)
    a(rmw_wr)
    a("L_merge_old_done:\ns_waitcnt lgkmcnt(0)\ns_barrier\ns_branch L_epi\nL_merge_young:\ns_waitcnt lgkmcnt(0)\ns_barrier")
    a(rmw_rd)
    a(f"s_branch L_merge\nL_final_atomic:\ns_cmp_eq_u32 s{S_NTL}, 0\ns_cbranch_scc1 L_epi")
    a([f"ds_add_f32 v{t2}, v{r.PD+i} offset:{4*i}" for i in range(4)])
    a([EXP, f"ds_add_f32 v{t3}, v{t4}", "s_mov_b64 exec, -1", "s_branch L_epi"])
    a.label("L_final_slow")
    a("s_waitcnt vmcnt(0) lgkmcnt(0)"); a(flush_dot(r))
    a(flush_atomic(r)); a("s_branch L_slow_next")
    a.label("L_flush_slow")
    a(flush_addr(r)); a("s_waitcnt lgkmcnt(0)"); a(flush_dot(r)); a(flush_atomic(r)); a(acc_zero(r, True))
    a("s_branch L_noflush")
    a(f"""
    L_slow:
    s_mov_b32 s{S_MODE}, 1
    s_mov_b32 s{S_SEG}, 0
    L_slow_round:
    s_waitcnt lgkmcnt(0)
    s_barrier
    v_lshlrev_b32 v{t2}, 2, v0
    v_cmp_gt_u32 vcc, 256, v0
    s_and_saveexec_b64 {s(S_D,2)}, vcc
    ds_write_b32 v{t2}, v{r.Zero} offset:{L_CNT}
    s_mov_b64 exec, -1
    v_mov_b32 v{t2}, {L_FLAG}
    ds_write_b32 v{t2}, v{r.Zero}
    s_lshl_b32 s{S_TMP}, s{S_SEG}, 10
    s_add_u32 s{S_TMP}, s{S_TMP}, s{S_B4}
    buffer_load_dword v{t3}, v{r.Zero}, {s(SR_TAB,4)}, s{S_TMP} offen {opt.hl}
    s_mul_i32 s{S_TMP}, s{S_SEG}, {REC_STRIDE}
    v_mul_u32_u24 v{t5}, 12, v0
    s_waitcnt vmcnt(0)
    v_bfe_u32 v{t4}, v{t3}, 16, 15
    v_and_b32 v{t3}, 0xffff, v{t3}
    v_add_u32 v{t3}, v{t3}, v{t5}
    v_mov_b32 v{t2}, v0
    """)
    for q in range(7):
        a(f"""
        v_cmp_lt_u32 {s(S_M+2*q,2)}, v{t2}, v{t4}
        s_mov_b64 exec, {s(S_M+2*q,2)}
        buffer_load_dwordx3 {v(REC(q),3)}, v{t3}, {s(SR_REC,4)}, s{S_TMP} offen {opt.hl}
        s_mov_b64 exec, -1
        v_add_u32 v{t2}, 512, v{t2}
        s_add_u32 s{S_TMP}, s{S_TMP}, {512*12}
        """)
    for q in range(7, 16): a(f"s_mov_b64 {s(S_M+2*q,2)}, 0")
    a(f"""
    v_mov_b32 v{ONE}, 1
    s_waitcnt vmcnt(0) lgkmcnt(0)
    s_barrier
    s_branch L_rank
    L_slow_next:
    s_add_u32 s{S_SEG}, s{S_SEG}, 1
    s_cmp_lt_u32 s{S_SEG}, {NB}
    s_cbranch_scc1 L_slow_round
    """)
    epi_prep()
    a("s_branch L_epi")
    return a.text(), r.n

def build():
    body, nv = gen()
    hdr = open("gather_scatter__cheap_equivariant_egnn__graph.s.ref").read().split("; Override")[0]
    acc = (nv + 3) // 4 * 4
    return hdr + f"""; @launch grid=({NB},1,1) block=(512,1,1) lds={LDS_BYTES}
.amdgcn_target "amdgcn-amd-amdhsa--gfx950"
.text
.globl {KNAME}
.p2align 8
.type {KNAME},@function
""" + body + f""".section .rodata,"a"
.p2align 6
.amdhsa_kernel {KNAME}
  .amdhsa_next_free_vgpr {nv}
  .amdhsa_next_free_sgpr 102
  .amdhsa_accum_offset {acc}
  .amdhsa_group_segment_fixed_size 0
  .amdhsa_kernarg_size 88
  .amdhsa_user_sgpr_count 2
  .amdhsa_user_sgpr_kernarg_segment_ptr 1
  .amdhsa_system_sgpr_workgroup_id_x 1
  .amdhsa_float_denorm_mode_32 3
.end_amdhsa_kernel
"""

if __name__ == "__main__":
    for arg in sys.argv[2:]:
        k, val = arg.split("=")
        cur = getattr(opt, k)
        setattr(opt, k, (val not in ("0", "False")) if isinstance(cur, bool) else type(cur)(val.replace("_", " ").replace("none", "")))
    open(sys.argv[1], "w").write(build())
    print("lds", LDS_BYTES, "vgprs", alloc().n)
```

```python
import sys, struct

N = 25000; E = 800000; NB = 256; BN = 98; CH = 3136
REC_STRIDE = CH * 12
WS_TAB = NB * REC_STRIDE
WS_P4 = WS_TAB + NB * 1024
WS_STAMP = 64 << 20
OUT_POS = N * 128
KNAME = "gather_scatter__cheap_equivariant_egnn__graph_kernel"

def f2u(x): return struct.unpack("<I", struct.pack("<f", x))[0]
LOG2E = 1.4426950408889634
LN2 = 0.6931471805599453

class Opt:
    split = 42
    prio = 1
    ld = "nt"
    st = "sc1"
    hl = "sc1"
    ost = ""
    slide = True
    late = 1
    pf = 0
    warm = 0
    abl = ""
    stamp = False
    fine = False
    thr = 0
    tw = 0
    mfe = "0,4,8,12"
    mfr = "0,4,8"
    padd = 1
    pmul = 1
    ilv = 0
    spread = 0
    tprio = 0
    diag = False
opt = Opt()

class Asm:
    def __init__(self): self.L = []
    def __call__(self, s):
        if isinstance(s, (list, tuple)):
            for x in s: self(x)
            return
        for x in s.strip("\n").split("\n"):
            x = x.strip()
            if not x: continue
            self.L.append(x if x.endswith(":") else "    " + x)
    def label(self, n): self.L.append(n + ":")
    def text(self): return "\n".join(self.L) + "\n"

def v(i, n=1): return f"v{i}" if n == 1 else f"v[{i}:{i+n-1}]"
def s(i, n=1): return f"s{i}" if n == 1 else f"s[{i}:{i+n-1}]"
def srd(d, p, size, off=None):
    if off is None: b = f"s_mov_b32 s{d}, s{p}\ns_mov_b32 s{d+1}, s{p+1}\n"
    else: b = f"s_add_u32 s{d}, s{p}, {off}\ns_addc_u32 s{d+1}, s{p+1}, 0\n"
    return b + f"s_mov_b32 s{d+2}, {size}\ns_mov_b32 s{d+3}, 0x00020000"
def wave_scan(r):
    o = []
    for sh in (1, 2, 4, 8):
        o.append(f"s_nop 1\nv_add_u32_dpp v{r}, v{r}, v{r} row_shr:{sh} row_mask:0xf bank_mask:0xf bound_ctrl:0")
    o.append(f"s_nop 1\nv_add_u32_dpp v{r}, v{r}, v{r} row_bcast:15 row_mask:0xa bank_mask:0xf")
    o.append(f"s_nop 1\nv_add_u32_dpp v{r}, v{r}, v{r} row_bcast:31 row_mask:0xc bank_mask:0xf")
    return o
def mfma(d, a_, b_, c=None):
    cc = "0" if c is None else v(c, 16)
    return f"v_mfma_f32_32x32x16_bf16 {v(d,16)}, {v(a_,4)}, {v(b_,4)}, {cc}"
SDWA = "dst_sel:DWORD dst_unused:UNUSED_PAD src0_sel:DWORD"

CAPT = 112
L_NT = 0
L_CNT = 8192
L_OFF = L_CNT + 1024
L_REC = L_OFF + 1024
L_RING = L_REC + CAPT * 384
L_SIMG = L_RING + 8 * 4096
L_AT = L_SIMG + 8 * 2048
L_ACC = L_AT + 13 * 1024
ACC_ROW = 272
L_WX = L_ACC + 112 * ACC_ROW
L_FLAG = L_WX + 256
L_WEND = L_FLAG + 16
L_WH1 = L_WEND + 64 + 48
L_WH2 = L_WH1 + 8192
L_HIST = L_WH1
L_OFFA = L_HIST + 1024
LDS_BYTES = L_WH2 + 8192
L_STG = L_REC
L_HST = L_RING + 8192
L_W2S = L_RING + 24576
L_WE = L_ACC + 8192
assert L_STG + CH * 16 <= L_HST and L_WE + 17408 <= L_WX and L_SIMG % 64 == 0 and LDS_BYTES <= 163840
assert L_HIST % 16 == 0 and L_ACC % 16 == 0

class R: pass
def alloc():
    r = R(); n = [1]
    def al(cnt, align=1):
        n[0] = (n[0] + align - 1) // align * align
        x = n[0]; n[0] += cnt; return x
    r.lane = al(1); r.t0 = al(1); r.t1 = al(1)
    r.D0 = al(16, 4); r.D1 = al(16); r.A0 = al(16); r.A1 = al(16)
    r.W2 = al(32); r.BW = al(8); r.H = al(16)
    r.XM = al(4); r.S = al(8); r.K4 = al(4)
    r.M = al(16); r.T = al(16); r.U = al(16); r.HR = al(8)
    r.PD = al(4); r.PS = al(2); r.PQ = al(2); r.HA = al(4); r.XK = al(4)
    for nm in "A1a A2a SB TR0 TR1 AWl Desc Zero FlM FlP WXa ML K PI NA SA t2 t3 t4 t5 ST V4 V8 V16 L16 TE EM EK EP EW ER EG EH EX DM".split():
        setattr(r, nm, al(1))
    r.n = n[0]
    return r

P_H, P_POS, P_EA, P_SRC, P_DST, P_WE, P_WX, P_WH, P_OUT, P_DBG, P_WS = range(4, 26, 2)
SR_HD = 28; SR_P4 = 32; SR_REC = 36; SR_TAB = 40; SR_OUT = 44; SR_OUTP = 48
S_V = 52; S_RT = 53; S_T = 54; S_B4 = 55; S_MODE = 56; S_SEG = 57
S_C = 58; S_ONE = 60; S_D = 62; S_TMP = 63; S_TMP2 = 64; S_T0 = 65; S_NTL = 66; S_I = 67; S_CNT = 68; S_TMP3 = 69
S_M = 70
S_NL = 4; S_NH = 5; S_MSK = 6; S_SO0 = 7; S_SO1 = 8; S_SO2 = 9
S_NB = 10; S_NBP = 11; S_NBN = 12; S_ZP = 13; S_RM = 14; S_PADM = 15; S_HI = 16
S_FI = 18; SR_WH = 20; S_ST = 26
TS = [72 + 4 * k for k in range(7)] + [SR_OUTP]

DIAG = {0: 0, 3: 1, 4: 2, 7: 3, 10: 4, 12: 5, 13: 6, 31: 7}
def stamp(a, r, i, real=False):
    if opt.diag:
        if i in DIAG: a(f"s_waitcnt lgkmcnt(0)\ns_memrealtime {s(S_ST,2)}\ns_waitcnt lgkmcnt(0)\nv_writelane_b32 v{r.ST}, s{S_ST}, {DIAG[i]}\ns_not_b32 s{S_ST}, s{S_ST}\nv_writelane_b32 v{r.ST}, s{S_ST}, {DIAG[i]+8}")
        return
    if not opt.stamp: return
    a(f"s_waitcnt lgkmcnt(0)\n{'s_memrealtime' if real else 's_memtime'} {s(S_ST,2)}\ns_waitcnt lgkmcnt(0)\nv_writelane_b32 v{r.ST}, s{S_ST}, {i}")

def silu_stage(a0, r, D, Mo, mf_exp, mf_rcp, ins_exp, ins_rcp, pre=()):
    T = r.T
    def a(x, core=False):
        for y in ([x] if isinstance(x, str) else x):
            for z in y.split("\n"):
                z = z.strip()
                if "vmem" in opt.abl and (z.startswith("buffer_") or "vmcnt" in z): continue
                if "lds" in opt.abl and (z.startswith("ds_") or "lgkmcnt" in z): continue
                if "mfma" in opt.abl and z.startswith("v_mfma"): continue
                if "g2" in opt.abl and z.startswith("v_mfma") and (f"v[{r.A0}:" in z or f"v[{r.A1}:" in z): continue
                if "hm" in opt.abl and z.startswith("v_mfma") and any(f", v[{r.H+4*k}:" in z for k in (1, 2, 3)): continue
                if "trans" in opt.abl and (z.startswith("v_exp") or z.startswith("v_rcp")): z = z.replace("v_exp_f32", "v_mov_b32").replace("v_rcp_f32", "v_mov_b32"); a0(z)
                if "misc" in opt.abl and z.startswith("v_") and not core and not z.startswith("v_readlane"): continue
                a0(z)
    pre = list(pre)
    if opt.spread:
        keep = []; grp = None
        for x in pre:
            if grp is not None:
                grp.append(x)
                if x == "s_mov_b64 exec, -1": keep.append("\n".join(grp)); grp = None
            elif " exec," in x: grp = [x]
            elif x.startswith("s_nop"): continue
            else: keep.append(x)
        pre_map = {}
        per = opt.spread
        for j, x in enumerate(keep): pre_map.setdefault(j // per, []).append(x)
    else:
        a(pre); pre_map = {}
    for i in range(16):
        if i in mf_exp: a(mf_exp[i], True)
        a(f"v_exp_f32 v{T+i}, v{D+i}", True)
        a(pre_map.get(i, ()))
        a(ins_exp.get(i, ()))
    if opt.tprio: a(f"s_setprio {opt.tprio}")
    for i in range(0, 16, 2):
        if opt.padd: a(f"v_pk_add_f32 {v(T+i,2)}, {v(T+i,2)}, {s(S_ONE,2)}", True)
        else: a(f"v_add_f32 v{T+i}, 1.0, v{T+i}\nv_add_f32 v{T+i+1}, 1.0, v{T+i+1}", True)
    if opt.tprio: a(f"s_setprio 0")
    for i in range(16):
        if i in mf_rcp: a(mf_rcp[i], True)
        a(f"v_rcp_f32 v{T+i}, v{T+i}", True)
        a(ins_rcp.get(i, ()))
    def mul(i):
        if opt.pmul: a(f"v_pk_mul_f32 {v(T+i,2)}, {v(T+i,2)}, {v(D+i,2)}", True)
        else: a(f"v_mul_f32 v{T+i}, v{T+i}, v{D+i}\nv_mul_f32 v{T+i+1}, v{T+i+1}, v{D+i+1}", True)
    def cvt(i): a(f"v_cvt_pk_bf16_f32 v{Mo+i//2}, v{T+i}, v{T+i+1}", True)
    if opt.tprio: a(f"s_setprio {opt.tprio}")
    if opt.ilv:
        for i in range(0, 16, 2):
            mul(i)
            if i: cvt(i - 2)
        cvt(14)
    else:
        for i in range(0, 16, 2): mul(i)
        if opt.tprio: a(f"s_setprio 0")
        for i in range(0, 16, 2): cvt(i)

def geometry(r, advance):
    o = [
        f"v_dot2_f32_bf16 v{r.t2}, v{r.PS}, s{S_NL}, v{r.PD}",
        f"v_dot2_f32_bf16 v{r.t3}, v{r.PS}, s{S_NH}, v{r.PD+1}",
        f"v_dot2_f32_bf16 v{r.t4}, v{r.PS+1}, s{S_NL}, v{r.PD+2}",
        f"v_xor_b32 v{r.SA}, v{r.SB}, v{r.PD+3}",
        f"v_lshrrev_b32 v{r.PI}, 7, v{r.K}",
        f"buffer_load_dwordx2 {v(r.PS,2)}, v{r.PI}, {s(SR_P4,4)}, 0 idxen",
        f"v_cvt_pk_bf16_f32 v{r.PQ}, v{r.t2}, v{r.t3}",
        f"v_cvt_pk_bf16_f32 v{r.t5}, v{r.t4}, 0",
        f"v_cvt_pk_bf16_f32 v{r.PQ+1}, v{r.t4}, 1.0",
        f"v_dot2_f32_bf16 v{r.t2}, v{r.PQ}, v{r.PQ}, 0",
        f"v_dot2_f32_bf16 v{r.t2}, v{r.t5}, v{r.t5}, v{r.t2}",
    ]
    if advance:
        o += [f"v_add_u32 v{r.A1a}, 384, v{r.A1a}", f"v_add_u32 v{r.A2a}, 384, v{r.A2a}", "s_nop 0"]
    else:
        o += ["s_nop 2"]
    o += [
        f"v_cvt_pk_bf16_f32 v{r.XM+2}, v{r.t2}, v{r.t2}",
        f"s_mov_b64 exec, {s(S_HI,2)}",
        f"ds_read_b128 {v(r.XM,4)}, v{r.NA}",
        "s_mov_b64 exec, -1",
        f"v_lshlrev_b32_sdwa v{r.NA}, 5, v{r.K} {SDWA} src1_sel:BYTE_0",
    ]
    return o
def k_reads(r, tile_off):
    o = tile_off * 384 + 8
    return [f"ds_read_b32 v{r.K}, v{r.A1a} offset:{o}",
            f"ds_read2_b32 {v(r.K4,2)}, v{r.A2a} offset0:{o//4} offset1:{o//4+3}",
            f"ds_read2_b32 {v(r.K4+2,2)}, v{r.A2a} offset0:{o//4+6} offset1:{o//4+9}"]
def pd_read(r): return [f"ds_read_b128 {v(r.PD,4)}, v{r.NA} offset:16"]
def dma_addr(r): return [f"v_and_or_b32 v{r.K4+k}, v{r.K4+k}, s{S_MSK}, v{r.XK+k}" for k in range(4)]
def dma_issue(r):
    so = [f"s{S_SO0}", f"s{S_SO1}", f"s{S_SO2}", "0"]
    return [f"buffer_load_dwordx4 v{r.K4+k}, {s(SR_HD,4)}, {so[k]} offen offset:{1024*k} lds" for k in range(4)]
def h_reads(r): return [f"ds_read_b128 {v(r.H+4*k,4)}, v{r.HA+k}" for k in range(4)]
def ea_read(r, tile_off):
    o = tile_off * 96
    return [f"ds_read2_b32 {v(r.XM,2)}, v{r.A1a} offset0:{o} offset1:{o+1}"]
def aw_reads(r, nb):
    return [f"s_add_u32 s{S_TMP}, s{nb}, 4",
            f"s_lshr_b32 s{S_TMP}, s{S_TMP}, 3",
            f"s_lshl_b32 s{S_TMP}, s{S_TMP}, 10",
            f"s_lshr_b32 s{S_TMP2}, s{nb}, 3",
            f"s_lshl_b32 s{S_TMP2}, s{S_TMP2}, 10",
            f"v_add_u32 v{r.t2}, s{S_TMP}, v{r.AWl}",
            f"v_add_u32 v{r.t3}, s{S_TMP2}, v{r.AWl}",
            f"s_mov_b64 exec, {s(S_HI,2)}",
            f"ds_read_b64 {v(r.BW,2)}, v{r.t2}",
            f"ds_read_b64 {v(r.BW+2,2)}, v{r.t3} offset:8",
            f"ds_read_b64 {v(r.BW+4,2)}, v{r.t2} offset:512",
            f"ds_read_b64 {v(r.BW+6,2)}, v{r.t3} offset:520",
            "s_mov_b64 exec, -1"]
def s_set(r):
    return [f"s_bfm_b64 exec, s{S_CNT}, 0", f"ds_write_b64 v{r.SA}, {v(r.PQ,2)}", "s_mov_b64 exec, -1"]
def s_reads(r):
    return [f"ds_read_b64_tr_b16 {v(r.S,2)}, v{r.TR0}",
            f"ds_read_b64_tr_b16 {v(r.S+2,2)}, v{r.TR1}",
            f"ds_read_b64_tr_b16 {v(r.S+4,2)}, v{r.TR0} offset:1024",
            f"ds_read_b64_tr_b16 {v(r.S+6,2)}, v{r.TR1} offset:1024",
            f"ds_write2_b32 v{r.SA}, v{r.Zero}, v{r.Zero} offset0:0 offset1:1"]

def flush_addr(r):
    o = [f"ds_read_b128 {v(r.T+4*q,4)}, v{r.WXa} offset:{16*q}" for q in range(4)]
    o += [f"ds_read_b128 {v(r.D0+4*q,4)}, v{r.WXa} offset:{64+16*q}" for q in range(4)]
    o += [f"s_lshr_b32 s{S_TMP}, s{S_NBP}, 3",
          f"s_mul_i32 s{S_TMP}, s{S_TMP}, {8*ACC_ROW}",
          f"s_bitcmp1_b32 s{S_NBP}, 2",
          f"s_cselect_b32 s{S_TMP2}, {8*ACC_ROW}, 0",
          f"v_and_b32 v{r.t3}, s{S_TMP2}, v{r.ML}",
          f"v_add3_u32 v{r.t2}, v{r.FlM}, v{r.t3}, s{S_TMP}",
          f"v_add3_u32 v{r.t3}, v{r.FlP}, v{r.t3}, s{S_TMP}"]
    return o
def flush_dot(r):
    o = [f"v_pk_mul_f32 {v(r.T,2)}, {v(r.T,2)}, {v(r.A0,2)}", f"v_pk_mul_f32 {v(r.D0,2)}, {v(r.D0,2)}, {v(r.A1,2)}"]
    for i in range(2, 16, 2):
        o.append(f"v_pk_fma_f32 {v(r.T,2)}, {v(r.T+i,2)}, {v(r.A0+i,2)}, {v(r.T,2)}")
        o.append(f"v_pk_fma_f32 {v(r.D0,2)}, {v(r.D0+i,2)}, {v(r.A1+i,2)}, {v(r.D0,2)}")
    o += [f"v_pk_add_f32 {v(r.T,2)}, {v(r.T,2)}, {v(r.D0,2)}",
          f"v_add_f32 v{r.t4}, v{r.T}, v{r.T+1}", f"v_add_f32 v{r.t5}, v{r.T}, v{r.T+1}", "s_nop 1",
          f"v_permlane32_swap_b32 v{r.t4}, v{r.t5}", "s_nop 1", f"v_add_f32 v{r.t4}, v{r.t4}, v{r.t5}"]
    return o
EX3 = f"s_and_b32 exec_lo, s{S_RM}, 0x88888888\ns_mov_b32 exec_hi, exec_lo"
EXP = f"s_and_b32 exec_lo, s{S_RM}, 0x77777777\ns_mov_b32 exec_hi, 0"
def acc_zero(r, masked):
    o = [f"s_mov_b32 exec_lo, s{S_RM}\ns_mov_b32 exec_hi, s{S_RM}"] if masked else []
    o += [f"v_mov_b64 {v(r.A0+i,2)}, 0" for i in range(0, 32, 2)]
    if masked: o.append("s_mov_b64 exec, -1")
    return o
def flush_plain(r):
    o = flush_addr(r) + [EX3]
    o += [f"ds_write_b128 v{r.t2}, {v(r.A0+4*q,4)} offset:{32*q}" for q in range(8)]
    o += ["s_mov_b64 exec, -1", "s_waitcnt lgkmcnt(8)"] + flush_dot(r)
    o += [EXP, f"ds_write_b32 v{r.t3}, v{r.t4}"] + acc_zero(r, True)
    return o
def flush_atomic(r):
    o = [EX3]
    for t, A in ((0, r.A0), (1, r.A1)):
        for i in range(16):
            o.append(f"ds_add_f32 v{r.t2}, v{A+i} offset:{(32*t + 8*(i>>2) + (i&3))*4}")
    o += [EXP, f"ds_add_f32 v{r.t3}, v{r.t4}", "s_mov_b64 exec, -1"]
    return o
def rmw_reads(r):
    return [EX3] + [f"ds_read_b128 {v(r.D0+4*q,4)}, v{r.t2} offset:{32*q}" for q in range(8)] + \
           [EXP, f"ds_read_b32 v{r.t5}, v{r.t3}", "s_mov_b64 exec, -1"]
def rmw_writes(r):
    o = [EX3]
    for q in range(8):
        o += ["s_waitcnt lgkmcnt(8)",
              f"v_pk_add_f32 {v(r.D0+4*q,2)}, {v(r.D0+4*q,2)}, {v(r.A0+4*q,2)}",
              f"v_pk_add_f32 {v(r.D0+4*q+2,2)}, {v(r.D0+4*q+2,2)}, {v(r.A0+4*q+2,2)}",
              f"ds_write_b128 v{r.t2}, {v(r.D0+4*q,4)} offset:{32*q}"]
    o += [EXP, "s_waitcnt lgkmcnt(8)", f"v_add_f32 v{r.t4}, v{r.t4}, v{r.t5}", f"ds_write_b32 v{r.t3}, v{r.t4}", "s_mov_b64 exec, -1"]
    return o
def retire_mask(r):
    return [f"s_mov_b32 s{S_RM}, 0xffff",
            f"s_bitcmp1_b32 s{S_NBP}, 2",
            f"s_cselect_b32 s{S_RM}, 0xffff0000, s{S_RM}",
            f"s_add_u32 s{S_TMP}, s{S_NBP}, 4",
            f"s_cmp_eq_u32 s{S_TMP}, s{S_NB}",
            f"s_cselect_b32 s{S_RM}, s{S_RM}, -1"]

def gen():
    a = Asm(); r = alloc()
    t0, t1, t2, t3, t4, t5 = r.t0, r.t1, r.t2, r.t3, r.t4, r.t5
    T_DST, T_SRC, T_EA, T_POS, T_WE, T_WH, T_H, T_X = TS
    a.label(KNAME)
    DST = r.D0; SRC = r.D0 + 8; EA = r.D0 + 16; BINA = r.D0 + 32; RNK = r.D0 + 40
    V16, V32, L16 = r.V16, r.V8, r.L16
    POSR = r.PD
    S_CN = S_T0; S_O4 = S_NTL; S_O8 = S_CNT; S_N0 = S_SEG; S_NN = S_D; S_BUD = S_I
    MA = [80, 82, 84, 86]
    e_, hh_ = t0, t1
    a(f"""
    s_cmp_ge_u32 s2, {NB}
    s_cbranch_scc1 L_done
    """)
    if opt.thr: a(f"s_memrealtime {s(S_ST,2)}")
    a(f"""
    s_load_dwordx16 s[4:19], s[0:1], 0
    s_and_b32 s3, s2, 7
    s_lshl_b32 s3, s3, 5
    s_lshr_b32 s2, s2, 3
    s_or_b32 s2, s2, s3
    s_load_dwordx4 s[20:23], s[0:1], 64
    s_load_dwordx2 s[24:25], s[0:1], 80
    v_lshrrev_b32 v{t0}, 6, v0
    v_and_b32 v{r.lane}, 63, v0
    v_readfirstlane_b32 s{S_V}, v{t0}
    v_mov_b32 v{r.Zero}, 0
    v_lshlrev_b32 v{V16}, 4, v0
    v_lshlrev_b32 v{V32}, 5, v0
    v_lshlrev_b32 v{L16}, 4, v{r.lane}
    v_mov_b64 {v(r.T,2)}, 0
    v_mov_b64 {v(r.T+2,2)}, 0
    s_mul_i32 s{S_O4}, s2, {CH*4}
    s_lshl_b32 s{S_O8}, s{S_O4}, 1
    s_mov_b32 s{S_CN}, {CH}
    s_cmp_eq_u32 s2, {NB-1}
    s_cselect_b32 s{S_CN}, {E-(NB-1)*CH}, s{S_CN}
    s_lshl_b32 s3, s{S_CN}, 2
    s_add_u32 s3, s3, s{S_O4}
    s_lshl_b32 s{S_TMP3}, s3, 1
    s_add_u32 s{S_TMP}, s{S_O4}, 8192
    s_add_u32 s{S_TMP2}, s{S_O8}, 16384
    s_lshl_b32 s{S_MODE}, s2, 10
    s_mul_i32 s{S_N0}, s2, {BN}
    v_and_b32 v{t2}, 127, v0
    v_add_u32 v{t2}, s{S_N0}, v{t2}
    v_mul_u32_u24 v{t2}, 6, v{t2}
    v_and_b32 v{POSR+2}, 2, v{t2}
    v_lshlrev_b32 v{POSR+2}, 3, v{POSR+2}
    v_and_b32 v{t2}, -4, v{t2}
    v_and_b32 v{t4}, 3, v{r.lane}
    v_bfe_u32 v{t5}, v{r.lane}, 2, 3
    v_lshl_or_b32 v{t4}, v{t5}, 3, v{t4}
    v_lshrrev_b32 v{t5}, 5, v{r.lane}
    v_lshl_or_b32 v{t4}, v{t5}, 2, v{t4}
    v_lshlrev_b32 v{t4}, 1, v{t4}
    s_waitcnt lgkmcnt(0)
    """)
    if opt.tw:
        a(f"""
        s_cmp_lg_u32 s{S_V}, 7
        s_cbranch_scc1 L_notw
        v_min_u32 v{t2}, 6, v{r.lane}
        v_lshlrev_b32 v{t2}, 21, v{t2}
        v_mov_b32 v{t4}, {10300000 & ~127}
        v_cmp_eq_u32 vcc, 5, v{r.lane}
        s_mul_i32 s{S_D}, s2, {BN*128}
        s_nop 0
        v_cndmask_b32 v{t2}, v{t2}, v{t4}, vcc
        v_mov_b32 v{t4}, {14500000 & ~127}
        v_cmp_le_u32 vcc, 6, v{r.lane}
        v_and_b32 v{t5}, 1, v{r.lane}
        s_nop 0
        v_cndmask_b32 v{t2}, v{t2}, v{t4}, vcc
        global_load_dword v{r.DM}, v{t2}, {s(P_WS,2)} sc1
        v_mul_u32_u24 v{t2}, 3199872, v{t5}
        global_load_dword v{r.DM}, v{t2}, {s(P_H,2)}
        v_mov_b32 v{t4}, s{S_D}
        v_cmp_eq_u32 vcc, 0, v{t5}
        v_mov_b32 v{t2}, 3349888
        s_nop 0
        v_cndmask_b32 v{t2}, v{t2}, v{t4}, vcc
        global_load_dword v{r.DM}, v{t2}, {s(P_OUT,2)} sc1
        L_notw:
        """)
    a(srd(SR_TAB, P_WS, NB * 1024, WS_TAB))
    a(f"s_cmp_lg_u32 s{S_V}, 0\ns_cbranch_scc1 L_noclr\nbuffer_store_dwordx4 {v(r.T,4)}, v{L16}, {s(SR_TAB,4)}, s{S_MODE} offen {opt.st}\nL_noclr:")
    a(srd(T_POS, P_POS, N * 6)); a(srd(T_X, P_WX, 128))
    a(f"""
    s_cmp_gt_u32 s{S_V}, 4
    s_cbranch_scc1 L_nopos
    s_cmp_eq_u32 s{S_V}, 4
    s_cbranch_scc1 L_wx
    buffer_load_dwordx2 {v(POSR,2)}, v{t2}, {s(T_POS,4)}, 0 offen
    s_branch L_nopos
    L_wx:
    buffer_load_ushort v{POSR+3}, v{t4}, {s(T_X,4)}, 0 offen
    L_nopos:
    """)
    a(srd(T_DST, P_DST, "s3"))
    a(f"""
    v_lshlrev_b32 v{r.V4}, 3, v0
    s_add_u32 s{S_TMP2}, s{S_O4}, 4096
    buffer_load_dwordx2 {v(DST,2)}, v{r.V4}, {s(T_DST,4)}, s{S_O4} offen {opt.ld}
    buffer_load_dwordx2 {v(DST+2,2)}, v{r.V4}, {s(T_DST,4)}, s{S_TMP2} offen {opt.ld}
    s_add_u32 s{S_TMP2}, s{S_TMP}, 4096
    buffer_load_dwordx2 {v(DST+4,2)}, v{r.V4}, {s(T_DST,4)}, s{S_TMP} offen {opt.ld}
    buffer_load_dwordx2 {v(DST+6,2)}, v{r.V4}, {s(T_DST,4)}, s{S_TMP2} offen {opt.ld}
    """)
    a(srd(T_SRC, P_SRC, "s3")); a(srd(T_EA, P_EA, f"s{S_TMP3}"))
    if not opt.late:
        a(f"""
        buffer_load_dwordx2 {v(SRC+0,2)}, v{r.V4}, {s(T_SRC,4)}, s{S_O4} offen {opt.ld}
        buffer_load_dwordx4 {v(EA+0,4)}, v{V16}, {s(T_EA,4)}, s{S_O8} offen {opt.ld}
        s_add_u32 s{S_O4}, s{S_O4}, 4096
        s_add_u32 s{S_O8}, s{S_O8}, 8192
        buffer_load_dwordx2 {v(SRC+2,2)}, v{r.V4}, {s(T_SRC,4)}, s{S_O4} offen {opt.ld}
        buffer_load_dwordx4 {v(EA+4,4)}, v{V16}, {s(T_EA,4)}, s{S_O8} offen {opt.ld}
        s_add_u32 s{S_O4}, s{S_O4}, 4096
        s_add_u32 s{S_O8}, s{S_O8}, 8192
        buffer_load_dwordx2 {v(SRC+4,2)}, v{r.V4}, {s(T_SRC,4)}, s{S_O4} offen {opt.ld}
        buffer_load_dwordx4 {v(EA+8,4)}, v{V16}, {s(T_EA,4)}, s{S_O8} offen {opt.ld}
        s_add_u32 s{S_O4}, s{S_O4}, 4096
        s_add_u32 s{S_O8}, s{S_O8}, 8192
        buffer_load_dwordx2 {v(SRC+6,2)}, v{r.V4}, {s(T_SRC,4)}, s{S_O4} offen {opt.ld}
        buffer_load_dwordx4 {v(EA+12,4)}, v{V16}, {s(T_EA,4)}, s{S_O8} offen {opt.ld}
        """)
    if opt.stamp or opt.diag: a(f"v_mov_b32 v{r.ST}, 0")
    stamp(a, r, 0, True); stamp(a, r, 1)
    a(f"""
    v_add_u32 v{t3}, {L_HIST}, v{L16}
    ds_write_b128 v{t3}, {v(r.T,4)}
    s_lshl_b32 s{S_B4}, s2, 2
    s_lshr_b32 s{S_RT}, s{S_V}, 1
    s_and_b32 s{S_T}, s{S_V}, 1
    """)
    NY = 10
    a(f"""
    s_sub_u32 s{SR_HD}, s{P_H}, 3072
    s_subb_u32 s{SR_HD+1}, s{P_H+1}, 0
    s_mov_b32 s{SR_HD+2}, {N*128+3072}
    s_mov_b32 s{SR_HD+3}, 0x00020000
    """)
    a(srd(SR_REC, P_WS, NB * REC_STRIDE)); a(srd(SR_P4, P_WS, N, WS_P4))
    a(f"""
    s_and_b32 s{SR_P4+1}, s{SR_P4+1}, 0xffff
    s_or_b32 s{SR_P4+1}, s{SR_P4+1}, 0x80000
    s_sub_u32 s{S_NN}, {N}, s{S_N0}
    s_min_u32 s{S_NN}, s{S_NN}, {BN}
    s_lshl_b32 s{S_TMP}, s{S_N0}, 7
    s_lshl_b32 s{S_TMP2}, s{S_NN}, 7
    """)
    a(srd(SR_OUT, P_OUT, f"s{S_TMP2}", f"s{S_TMP}"))
    a(f"s_mul_i32 s{S_TMP}, s{S_N0}, 6\ns_add_u32 s{S_TMP}, s{S_TMP}, {OUT_POS}\ns_mul_i32 s{S_TMP2}, s{S_NN}, 6")
    a(srd(SR_OUTP, P_OUT, f"s{S_TMP2}", f"s{S_TMP}"))
    T_RO = T_DST; T_DBG = T_SRC
    if opt.late:
        a(f"""
        buffer_load_dwordx2 {v(SRC+0,2)}, v{r.V4}, {s(T_SRC,4)}, s{S_O4} offen {opt.ld}
        buffer_load_dwordx4 {v(EA+0,4)}, v{V16}, {s(T_EA,4)}, s{S_O8} offen {opt.ld}
        s_add_u32 s{S_O4}, s{S_O4}, 4096
        s_add_u32 s{S_O8}, s{S_O8}, 8192
        buffer_load_dwordx2 {v(SRC+2,2)}, v{r.V4}, {s(T_SRC,4)}, s{S_O4} offen {opt.ld}
        buffer_load_dwordx4 {v(EA+4,4)}, v{V16}, {s(T_EA,4)}, s{S_O8} offen {opt.ld}
        s_add_u32 s{S_O4}, s{S_O4}, 4096
        s_add_u32 s{S_O8}, s{S_O8}, 8192
        buffer_load_dwordx2 {v(SRC+4,2)}, v{r.V4}, {s(T_SRC,4)}, s{S_O4} offen {opt.ld}
        buffer_load_dwordx4 {v(EA+8,4)}, v{V16}, {s(T_EA,4)}, s{S_O8} offen {opt.ld}
        s_add_u32 s{S_O4}, s{S_O4}, 4096
        s_add_u32 s{S_O8}, s{S_O8}, 8192
        buffer_load_dwordx2 {v(SRC+6,2)}, v{r.V4}, {s(T_SRC,4)}, s{S_O4} offen {opt.ld}
        buffer_load_dwordx4 {v(EA+12,4)}, v{V16}, {s(T_EA,4)}, s{S_O8} offen {opt.ld}
        """)
    a(f"s_mul_i32 s{S_TMP}, s2, {REC_STRIDE}\ns_mul_i32 s{S_TMP2}, s{S_CN}, 12")
    a(srd(T_RO, P_WS, f"s{S_TMP2}", f"s{S_TMP}")); a(srd(T_DBG, P_DBG, 256))
    ONE = r.PQ
    a(f"""
    v_mov_b32 v{ONE}, 1
    s_lshr_b32 s3, s{S_CN}, 1
    v_cmp_gt_u32 {s(MA[0],2)}, s3, v0
    v_add_u32 v{t2}, 512, v0
    v_cmp_gt_u32 {s(MA[1],2)}, s3, v{t2}
    v_add_u32 v{t2}, 1024, v0
    v_cmp_gt_u32 {s(MA[2],2)}, s3, v{t2}
    v_add_u32 v{t2}, 1536, v0
    v_cmp_gt_u32 {s(MA[3],2)}, s3, v{t2}
    """)
    a(f"""
    s_mov_b32 s{S_C}, 0x{f2u(-LOG2E):08x}
    s_mov_b32 s{S_C+1}, 0x{f2u(-LOG2E):08x}
    s_mov_b32 s{S_ONE}, 1.0
    s_mov_b32 s{S_ONE+1}, 1.0
    s_mov_b32 s{S_MODE}, 0
    s_mov_b32 s{S_BUD}, 0x40000
    """)
    nonlocal_z = [r.T]
    def zero_region(base, size):
        assert base % 16 == 0 and size % 16 == 0
        full = size // 8192; rem = size % 8192
        a(f"v_add_u32 v{t3}, {base}, v{V16}")
        for k in range(full):
            a(f"ds_write_b128 v{t3}, {v(nonlocal_z[0],4)} offset:{k*8192}")
        if rem:
            a(f"v_cmp_gt_u32 vcc, {rem//16}, v0\ns_and_saveexec_b64 {s(S_D,2)}, vcc")
            a(f"ds_write_b128 v{t3}, {v(nonlocal_z[0],4)} offset:{full*8192}\ns_mov_b64 exec, -1")
    a(f"""
    ds_write_b128 v{L16}, {v(nonlocal_z[0],4)} offset:{L_CNT}
    v_mov_b32 v{t3}, {L_FLAG}
    ds_write_b128 v{t3}, {v(nonlocal_z[0],4)}
    """)
    zero_region(L_SIMG, 8 * 2048)
    JJ = r.SA; LB = r.HA + 0; J16 = r.HA + 1
    a(f"""
    v_and_b32 v{e_}, 31, v{r.lane}
    v_lshrrev_b32 v{hh_}, 5, v{r.lane}
    s_lshl_b32 s{S_TMP}, s{S_V}, 12
    s_add_u32 s{S_TMP}, s{S_TMP}, {L_RING}
    s_mov_b32 m0, s{S_TMP}
    v_and_b32 v{t2}, 3, v{e_}
    v_lshlrev_b32 v{t3}, 10, v{t2}
    v_lshrrev_b32 v{t4}, 2, v{e_}
    v_lshl_add_u32 v{t3}, v{t4}, 7, v{t3}
    v_add_u32 v{t3}, s{S_TMP}, v{t3}
    v_bfe_u32 v{t4}, v{e_}, 3, 1
    v_lshl_or_b32 v{t2}, v{t4}, 2, v{t2}
    v_xor_b32 v{t2}, v{t2}, v{hh_}
    """)
    for k in range(4):
        a(f"v_xor_b32 v{t4}, {2*k}, v{t2}\nv_lshl_add_u32 v{r.HA+k}, v{t4}, 4, v{t3}")
    a(f"""
    v_and_b32 v{t2}, 7, v{r.lane}
    v_bfe_u32 v{t3}, v{r.lane}, 4, 1
    v_lshlrev_b32 v{t3}, 2, v{t3}
    v_xor_b32 v{t2}, v{t2}, v{t3}
    """)
    for k in range(4):
        a(f"v_xor_b32 v{t4}, {k}, v{t2}\nv_lshlrev_b32 v{r.XK+k}, 4, v{t4}")
    JJ = r.SA; LB = r.A1a; J16 = r.A2a; MX = r.NA; TA = r.Desc
    LP = r.K; LPT = r.PI
    a(f"""
    s_lshl_b32 s{S_TMP}, s{S_V}, 11
    s_add_u32 s{S_TMP}, s{S_TMP}, {L_SIMG}
    v_bfe_u32 v{t2}, v{e_}, 1, 3
    v_lshlrev_b32 v{t2}, 3, v{t2}
    v_lshl_add_u32 v{t2}, v{e_}, 6, v{t2}
    v_add_u32 v{r.SB}, s{S_TMP}, v{t2}
    v_bfe_u32 v{t2}, v{r.lane}, 2, 2
    v_lshl_add_u32 v{t2}, v{hh_}, 2, v{t2}
    v_bfe_u32 v{t3}, v{r.lane}, 4, 1
    v_and_b32 v{t4}, 3, v{r.lane}
    v_lshl_or_b32 v{t3}, v{t3}, 2, v{t4}
    v_lshlrev_b32 v{LP}, 3, v{t3}
    v_bfe_u32 v{t4}, v{r.lane}, 2, 2
    v_lshl_add_u32 v{LP}, v{t4}, 7, v{LP}
    v_lshrrev_b32 v{t4}, 1, v{t2}
    v_xor_b32 v{t3}, v{t3}, v{t4}
    v_lshlrev_b32 v{t2}, 6, v{t2}
    v_add_u32 v{t2}, s{S_TMP}, v{t2}
    v_lshl_add_u32 v{r.TR0}, v{t3}, 3, v{t2}
    v_xor_b32 v{t3}, 4, v{t3}
    v_lshl_add_u32 v{r.TR1}, v{t3}, 3, v{t2}
    v_add_u32 v{r.TR1}, 512, v{r.TR1}
    v_lshlrev_b32 v{t2}, 4, v{e_}
    v_add_u32 v{r.AWl}, {L_AT}, v{t2}
    v_lshrrev_b32 v{t2}, 2, v{e_}
    v_mul_u32_u24 v{t2}, {ACC_ROW}, v{t2}
    v_add_u32 v{t2}, {L_ACC}, v{t2}
    v_lshl_add_u32 v{r.FlM}, v{hh_}, 4, v{t2}
    v_and_b32 v{t3}, 3, v{e_}
    v_lshl_add_u32 v{r.FlP}, v{t3}, 2, v{t2}
    v_add_u32 v{r.FlP}, 256, v{r.FlP}
    v_lshlrev_b32 v{t2}, 7, v{hh_}
    v_add_u32 v{r.WXa}, {L_WX}, v{t2}
    v_bfe_u32 v{t2}, v{e_}, 4, 1
    v_add_u32 v{r.ML}, -1, v{t2}
    v_lshrrev_b32 v{t5}, 4, v0
    v_lshlrev_b32 v{TA}, 10, v{t5}
    v_and_b32 v{t2}, 15, v0
    v_add_u32 v{JJ}, 0x8000, v{t2}
    v_add_u32 v{J16}, 0x8010, v{t2}
    s_mov_b32 s{S_TMP}, {REC_STRIDE}
    v_mul_lo_u32 v{LB}, v{t5}, s{S_TMP}
    v_mad_u32_u24 v{LB}, v{t2}, 12, v{LB}
    v_mov_b32 v{MX}, 0
    v_lshrrev_b32 v{t2}, 3, v{r.lane}
    v_and_b32 v{t3}, 7, v{r.lane}
    v_lshrrev_b32 v{t4}, 4, v{r.lane}
    s_lshl_b32 s3, s{S_T}, 2
    v_or_b32 v{t4}, s3, v{t4}
    v_xor_b32 v{t3}, v{t3}, v{t4}
    v_lshlrev_b32 v{t3}, 4, v{t3}
    v_lshl_add_u32 v{r.HR}, v{t2}, 7, v{t3}
    """)
    a(f"s_add_u32 s3, s{S_N0}, 104\ns_min_u32 s3, s3, {N}\ns_lshl_b32 s3, s3, 7")
    a(srd(T_WE, P_WE, 133 * 128)); a(srd(SR_WH, P_WH, 128 * 128)); a(srd(T_H, P_H, "s3"))
    a(f"""
    s_mov_b32 s{S_TMP}, 5350
    s_mov_b32 s{S_TMP2}, {BN}
    s_mov_b32 s3, {L_HIST}
    s_waitcnt lgkmcnt(0)
    s_barrier
    s_cmp_lg_u32 s{S_V}, 0
    s_cbranch_scc1 L_noflag
    v_mov_b32 v{t3}, s2
    s_waitcnt vmcnt(13)
    s_mov_b64 exec, 1
    buffer_store_byte v{ONE}, v{t3}, {s(T_DBG,4)}, 0 offen sc1
    s_mov_b64 exec, -1
    L_noflag:
    """)
    stamp(a, r, 2)
    for half in range(4):
        a(f"s_waitcnt vmcnt({11 - half})\ns_mov_b64 exec, {s(MA[half],2)}")
        for k in range(2 * half, 2 * half + 2):
            a(f"""
            v_mul_u32_u24 v{BINA+k}, s{S_TMP}, v{DST+k}
            v_lshrrev_b32 v{BINA+k}, 19, v{BINA+k}
            v_mul_u32_u24 v{t2}, s{S_TMP2}, v{BINA+k}
            v_lshl_add_u32 v{BINA+k}, v{BINA+k}, 2, s3
            ds_add_rtn_u32 v{RNK+k}, v{BINA+k}, v{ONE}
            v_sub_u32 v{DST+k}, v{DST+k}, v{t2}
            """)
    C = r.T; TE = r.M
    a(f"""
    s_mov_b64 exec, -1
    v_add_u32 v{t2}, {L_HIST}, v{L16}
    s_waitcnt lgkmcnt(0)
    s_barrier
    """)
    stamp(a, r, 3)
    a(f"""
    ds_read_b128 {v(C,4)}, v{t2}
    s_lshl_b32 s{S_TMP}, s{S_V}, 10
    s_add_u32 s{S_TMP2}, s{S_TMP}, 8192
    s_cmp_lg_u32 s{S_V}, 1
    s_cbranch_scc1 L_nowe
    s_mov_b32 m0, {L_WE+16384}
    s_mov_b32 s3, 16384
    buffer_load_dwordx4 v{L16}, {s(T_WE,4)}, s3 offen lds
    L_nowe:
    s_add_u32 m0, s{S_TMP}, {L_WE}
    s_lshl_b32 s3, s{S_N0}, 7
    buffer_load_dwordx4 v{L16}, {s(T_WE,4)}, s{S_TMP} offen lds
    s_add_u32 m0, s{S_TMP}, {L_WE+8192}
    s_add_u32 s3, s3, s{S_TMP}
    buffer_load_dwordx4 v{L16}, {s(T_WE,4)}, s{S_TMP2} offen lds
    s_add_u32 m0, s{S_TMP}, {L_HST}
    s_add_u32 s{S_TMP3}, s3, 8192
    buffer_load_dwordx4 v{r.HR}, {s(T_H,4)}, s3 offen lds
    s_add_u32 m0, s{S_TMP}, {L_HST+8192}
    s_lshl_b32 s{S_TMP}, s{S_V}, 12
    buffer_load_dwordx4 v{r.HR}, {s(T_H,4)}, s{S_TMP3} offen lds
    s_add_u32 m0, s{S_TMP}, {L_RING}
    s_waitcnt lgkmcnt(0)
    v_add_u32 v{C+5}, v{C}, v{C+1}
    v_add_u32 v{C+6}, v{C+5}, v{C+2}
    v_add_u32 v{C+7}, v{C+6}, v{C+3}
    v_mov_b32 v{C+4}, v{C+7}
    """)
    a(wave_scan(C + 4))
    a(f"""
    v_sub_u32 v{C+8}, v{C+4}, v{C+7}
    v_add_u32 v{C+9}, v{C+8}, v{C}
    v_add_u32 v{C+10}, v{C+8}, v{C+5}
    v_add_u32 v{C+11}, v{C+8}, v{C+6}
    ds_write_b128 v{t2}, {v(C+8,4)} offset:1024
    """)
    for half in range(4):
        a(f"s_mov_b64 exec, {s(MA[half],2)}")
        for k in range(2 * half, 2 * half + 2):
            a(f"ds_read_b32 v{BINA+k}, v{BINA+k} offset:1024")
    TEV = r.A1 + 12
    a("s_mov_b64 exec, -1")
    for k in range(4):
        a(f"v_mul_u32_u24 v{TEV+k}, 12, v{C+8+k}\nv_lshl_or_b32 v{TEV+k}, v{C+k}, 16, v{TEV+k}\nv_or_b32 v{TEV+k}, 0x80000000, v{TEV+k}")
    if opt.fine: stamp(a, r, 18); stamp(a, r, 19)
    for half in range(4):
        a(f"s_waitcnt vmcnt({10 - 2*half}) lgkmcnt({6 + 2*half})\ns_mov_b64 exec, {s(MA[half],2)}")
        for k in range(2 * half, 2 * half + 2):
            a(f"""
            v_add_lshl_u32 v{BINA+k}, v{BINA+k}, v{RNK+k}, 4
            v_lshl_or_b32 v{SRC+k}, v{SRC+k}, 7, v{DST+k}
            ds_write_b64 v{BINA+k}, {v(EA+2*k,2)} offset:{L_STG}
            ds_write_b32 v{BINA+k}, v{SRC+k} offset:{L_STG+8}
            """)
    if opt.fine: stamp(a, r, 20)
    a("s_mov_b64 exec, -1")
    a(f"""
    s_mov_b32 s{S_NL}, 0x0000bf80
    s_mov_b32 s{S_NH}, 0xbf800000
    s_mov_b32 s{S_MSK}, 0xffffff80
    s_mov_b32 s{S_SO0}, 3072
    s_mov_b32 s{S_SO1}, 2048
    s_mov_b32 s{S_SO2}, 1024
    s_mov_b32 s{S_HI}, 0
    s_mov_b32 s{S_HI+1}, -1
    v_mul_u32_u24 v{t2}, 12, v0
    v_add_u32 v{t5}, {L_WE + 128*128}, v{LP}
    v_lshl_add_u32 v{LP}, v{hh_}, 10, v{LP}
    s_lshl_b32 s{S_TMP}, s{S_T}, 6
    s_add_u32 s{S_TMP}, s{S_TMP}, {L_ACC}
    v_add_u32 v{LPT}, s{S_TMP}, v{LP}
    s_lshl_b32 s{S_TMP2}, s{S_RT}, 11
    v_add_u32 v{t4}, s{S_TMP2}, v{LPT}
    """)
    if opt.fine: stamp(a, r, 21)
    a("s_waitcnt lgkmcnt(0)\ns_barrier")
    stamp(a, r, 4)
    CO = r.D0; DBGV = r.A1 + 8
    for k in range(7):
        a(f"ds_read_b96 {v(CO+4*k,3)}, v{V16} offset:{L_STG + k*8192}")
    for k in range(7):
        a(f"s_mov_b32 s3, {k*6144}\ns_waitcnt lgkmcnt({6-k})")
        a(f"buffer_store_dwordx3 {v(CO+4*k,3)}, v{t2}, {s(T_RO,4)}, s3 offen {opt.st}")
    a(f"v_lshlrev_b32 v{DBGV+1}, 2, v{r.lane}\ns_cmp_lg_u32 s{S_V}, 0\ns_cbranch_scc1 L_nodbg\nbuffer_load_dword v{DBGV}, v{DBGV+1}, {s(T_DBG,4)}, 0 offen sc1\nL_nodbg:")
    stamp(a, r, 5)
    Q2 = r.W2; UP = r.W2 + 4; Q5 = r.W2 + 16; NTD = r.W2 + 24
    a("s_waitcnt vmcnt(7)\ns_barrier")
    a(f"ds_read_b64_tr_b16 {v(Q2,2)}, v{t4} offset:{8192+8192}\nds_read_b64_tr_b16 {v(Q2+2,2)}, v{t4} offset:{8192+8192+512}")
    for t in range(2):
        a(f"ds_read_b64_tr_b16 {v(Q5+4*t,2)}, v{t5} offset:{128+64*t}\nds_read_b64_tr_b16 {v(Q5+4*t+2,2)}, v{t5} offset:{64*t}")
    a(f"""
    v_alignbit_b32 v{r.PS}, v{POSR+1}, v{POSR}, v{POSR+2}
    v_lshrrev_b32 v{r.PS+1}, v{POSR+2}, v{POSR+1}
    v_and_b32 v{r.PS+1}, 0xffff, v{r.PS+1}
    v_add_u32 v{t3}, s{S_N0}, v0
    v_cmp_gt_u32 vcc, {BN}, v0
    s_and_saveexec_b64 {s(S_D,2)}, vcc
    buffer_store_dwordx2 {v(r.PS,2)}, v{t3}, {s(SR_P4,4)}, 0 idxen {opt.st}
    s_mov_b64 exec, -1
    v_and_b32 v{t2}, 1, v0
    v_lshlrev_b32 v{t2}, 4, v{t2}
    v_mov_b32 v{t3}, 0x3f80
    v_lshlrev_b32 v{t2}, v{t2}, v{t3}
    v_bfe_u32 v{t3}, v0, 1, 2
    """)
    for d in range(4):
        a(f"v_cmp_eq_u32 vcc, {d}, v{t3}\ns_nop 1\nv_cndmask_b32 v{NTD+d}, 0, v{t2}, vcc")
    a(f"""
    v_lshlrev_b32 v{NTD+4}, 16, v{r.PS}
    v_and_b32 v{NTD+5}, 0xffff0000, v{r.PS}
    v_lshlrev_b32 v{NTD+6}, 16, v{r.PS+1}
    v_and_b32 v{t3}, 7, v0
    v_lshlrev_b32 v{NTD+7}, 3, v{t3}
    v_lshlrev_b32 v{POSR+3}, 16, v{POSR+3}
    v_mul_f32 v{POSR+3}, 0x{f2u(-LN2):08x}, v{POSR+3}
    v_lshlrev_b32 v{t3}, 2, v{r.lane}
    v_add_u32 v{t3}, {L_WX}, v{t3}
    s_waitcnt lgkmcnt(0)
    s_cmp_lg_u32 s{S_V}, 4
    s_cbranch_scc1 L_nowx
    ds_write_b32 v{t3}, v{POSR+3}
    L_nowx:
    s_cmp_ge_u32 s{S_V}, 4
    s_cbranch_scc1 L_nont
    ds_write_b128 v{V32}, {v(NTD,4)}
    ds_write_b128 v{V32}, {v(NTD+4,4)} offset:16
    L_nont:
    """)
    for j in range(4):
        a(f"v_lshlrev_b32 v{UP+2*j}, 16, v{Q2+j}\nv_and_b32 v{UP+2*j+1}, 0xffff0000, v{Q2+j}")
    for j in range(4):
        a(f"v_pk_mul_f32 {v(UP+2*j,2)}, {v(UP+2*j,2)}, {s(S_C,2)}")
    for j in range(4):
        a(f"v_cvt_pk_bf16_f32 v{Q2+j}, v{UP+2*j}, v{UP+2*j+1}")
    a(f"""
    s_lshl_b32 s{S_TMP}, s{S_V}, 10
    s_add_u32 s{S_TMP}, s{S_TMP}, {L_W2S}
    v_add_u32 v{t4}, s{S_TMP}, v{L16}
    ds_write_b128 v{t4}, {v(Q2,4)}
    """)
    for t in range(2):
        x = Q5 + 4 * t; B = r.BW + 4 * t
        a(f"""
        v_lshlrev_b32 v{UP}, 16, v{x}
        v_and_b32 v{UP+1}, 0xffff0000, v{x}
        v_lshlrev_b32 v{UP+2}, 16, v{x+1}
        v_and_b32 v{UP+3}, 0xffff0000, v{x+1}
        v_lshlrev_b32 v{UP+4}, 16, v{x+2}
        v_pk_mul_f32 {v(UP,2)}, {v(UP,2)}, {s(S_C,2)}
        v_pk_mul_f32 {v(UP+2,2)}, {v(UP+2,2)}, {s(S_C,2)}
        v_mul_f32 v{UP+4}, s{S_C}, v{UP+4}
        v_cvt_pk_bf16_f32 v{B}, v{UP}, v{UP+1}
        v_cvt_pk_bf16_f32 v{B+1}, v{UP+2}, v{UP+3}
        v_cvt_pk_bf16_f32 v{UP+5}, v{UP+4}, v{UP+4}
        v_lshlrev_b32 v{UP+5}, 16, v{UP+5}
        v_sub_f32 v{UP+5}, v{UP+4}, v{UP+5}
        v_cvt_pk_bf16_f32 v{B+2}, v{UP+4}, v{UP+5}
        v_mov_b32 v{B+3}, 0
        """)
    W1F = r.T; WH1F = r.W2; AD = r.XM; HI = r.W2 + 16
    a(f"""
    s_lshl_b32 s{S_TMP}, s{S_RT}, 12
    s_add_u32 s{S_TMP}, s{S_TMP}, {L_HST}
    v_lshlrev_b32 v{t2}, 7, v{e_}
    v_add_u32 v{t2}, s{S_TMP}, v{t2}
    v_bfe_u32 v{t3}, v{e_}, 1, 3
    v_xor_b32 v{t5}, v{t3}, v{hh_}
    """)
    for k in range(4):
        a(f"v_xor_b32 v{t4}, {2*k}, v{t5}\nv_lshl_add_u32 v{t4}, v{t4}, 4, v{t2}\nds_read_b128 {v(r.H+4*k,4)}, v{t4}")
    for k in range(4):
        a(f"ds_read_b64_tr_b16 {v(W1F+4*k,2)}, v{LPT} offset:{8192+2048*k}\nds_read_b64_tr_b16 {v(W1F+4*k+2,2)}, v{LPT} offset:{8192+2048*k+512}")
    a(f"s_lshl_b32 s{S_TMP}, s{S_T}, 2\nv_xor_b32 v{t5}, s{S_TMP}, v{t3}\nv_lshl_add_u32 v{t2}, v{hh_}, 3, v{t2}")
    for g in range(4):
        a(f"v_xor_b32 v{t4}, {g}, v{t5}\nv_lshl_add_u32 v{t4}, v{t4}, 4, v{t2}\nds_read_b64 {v(r.HR+2*g,2)}, v{t4}")
    stamp(a, r, 6)
    a(f"""
    s_lshl_b32 s3, s2, 10
    s_mov_b32 s{S_TMP}, 0x01010101
    s_waitcnt vmcnt(0) lgkmcnt(0)
    s_cmp_lg_u32 s{S_V}, 0
    s_cbranch_scc1 L_chkd
    L_chk:
    v_cmp_ne_u32 vcc, s{S_TMP}, v{DBGV}
    s_cbranch_vccz L_chkd
    s_sub_u32 s{S_BUD}, s{S_BUD}, 1
    s_cbranch_scc1 L_chkd
    s_sleep 8
    buffer_load_dword v{DBGV}, v{DBGV+1}, {s(T_DBG,4)}, 0 offen sc1
    s_waitcnt vmcnt(0)
    s_branch L_chk
    L_chkd:
    s_barrier
    s_cmp_lg_u32 s{S_V}, 0
    s_cbranch_scc1 L_nopub
    buffer_store_dwordx4 {v(TEV,4)}, v{L16}, {s(SR_TAB,4)}, s3 offen {opt.st}
    L_nopub:
    s_mov_b32 s{S_TMP}, s{S_B4}
    """)
    stamp(a, r, 7)
    def REC(q): return r.D0 + 4 * q
    TABV = r.M; ADR = r.T
    for rr in range(8):
        a(f"buffer_load_dword v{TABV+rr}, v{TA}, {s(SR_TAB,4)}, s{S_TMP} offen {opt.hl}")
        if rr < 7: a(f"s_add_u32 s{S_TMP}, s{S_TMP}, 32768")
    for k in range(4): a(mfma(AD, r.H+4*k, W1F+4*k, AD if k else None))
    a("s_nop 3")
    a(f"""
    s_lshl_b32 s{S_TMP}, s{S_RT}, 12
    s_lshl_b32 s{S_TMP2}, s{S_T}, 9
    s_add_u32 s{S_TMP}, s{S_TMP}, s{S_TMP2}
    s_add_u32 s{S_TMP}, s{S_TMP}, {L_AT}
    v_lshlrev_b32 v{t2}, 4, v{e_}
    v_lshl_add_u32 v{t2}, v{hh_}, 3, v{t2}
    v_add_u32 v{t2}, s{S_TMP}, v{t2}
    v_add_u32 v{t4}, {L_W2S}, v{L16}
    """)
    for g in range(4):
        x = AD + 4 * g
        if g == 1: a(f"s_cmp_eq_u32 s{S_RT}, 3\ns_cbranch_scc1 L_at_done")
        a(f"""
        v_pk_mul_f32 {v(x,2)}, {v(x,2)}, {s(S_C,2)}
        v_pk_mul_f32 {v(x+2,2)}, {v(x+2,2)}, {s(S_C,2)}
        v_cvt_pk_bf16_f32 v{x}, v{x}, v{x+1}
        v_cvt_pk_bf16_f32 v{x+1}, v{x+2}, v{x+3}
        ds_write_b64 v{t2}, {v(x,2)} offset:{g*1024}
        """)
    a.label("L_at_done")
    for sidx in range(4):
        for t in range(2):
            a(f"ds_read_b128 {v(r.W2+16*t+4*sidx,4)}, v{t4} offset:{(2*sidx+t)*1024}")
    a(f"v_mov_b32 v{r.XM+3}, 0")
    for i in range(2, 8, 2): a(f"v_mov_b64 {v(r.S+i,2)}, 0")
    a(f"""
    v_add_u32 v{r.EH}, {L_WH1 - L_ACC}, v{LPT}
    s_mul_i32 s{S_TMP}, s{S_RT}, {32*ACC_ROW}
    s_add_u32 s{S_TMP}, s{S_TMP}, {L_ACC}
    v_mul_u32_u24 v{t2}, {ACC_ROW}, v{e_}
    v_lshl_add_u32 v{t2}, v{hh_}, 5, v{t2}
    v_add_u32 v{r.EM}, s{S_TMP}, v{t2}
    v_min_u32 v{t3}, 311, v0
    v_mul_u32_u24 v{t4}, 171, v{t3}
    v_lshrrev_b32 v{t4}, 9, v{t4}
    v_mul_u32_u24 v{t5}, 3, v{t4}
    v_sub_u32 v{t5}, v{t3}, v{t5}
    v_lshlrev_b32 v{t5}, 2, v{t5}
    v_lshl_add_u32 v{r.EK}, v{t4}, 5, v{t5}
    v_mul_u32_u24 v{r.EP}, {ACC_ROW}, v{t4}
    v_add_u32 v{r.EP}, v{r.EP}, v{t5}
    v_add_u32 v{r.EP}, {L_ACC+256}, v{r.EP}
    s_lshl_b32 s{S_TMP}, s{S_V}, 12
    s_add_u32 s{S_TMP}, s{S_TMP}, {L_RING}
    v_mul_u32_u24 v{t2}, 80, v{e_}
    v_lshl_add_u32 v{t2}, v{hh_}, 3, v{t2}
    v_add_u32 v{r.EW}, s{S_TMP}, v{t2}
    v_lshrrev_b32 v{t3}, 2, v{r.lane}
    v_and_b32 v{t4}, 3, v{r.lane}
    v_lshlrev_b32 v{t4}, 4, v{t4}
    v_lshl_add_u32 v{t5}, v{t3}, 7, v{t4}
    v_mul_u32_u24 v{t3}, 80, v{t3}
    v_add3_u32 v{r.ER}, v{t3}, v{t4}, s{S_TMP}
    s_lshl_b32 s{S_TMP}, s{S_RT}, 12
    s_lshl_b32 s{S_TMP2}, s{S_T}, 6
    s_add_u32 s{S_TMP}, s{S_TMP}, s{S_TMP2}
    v_add_u32 v{r.EG}, s{S_TMP}, v{t5}
    v_lshlrev_b32 v{r.TE}, 1, v0
    v_lshrrev_b32 v{t3}, 4, v{r.lane}
    v_mul_u32_u24 v{t3}, {ACC_ROW}, v{t3}
    v_and_b32 v{t4}, 15, v{r.lane}
    v_lshl_add_u32 v{r.EX}, v{t4}, 4, v{t3}
    """)
    for rr in range(8):
        a(f"""
        s_waitcnt vmcnt({7 + rr})
        L_w{rr}:
        v_cmp_le_i32 vcc, 0, v{TABV+rr}
        s_cbranch_vccz L_g{rr}
        s_sub_u32 s{S_BUD}, s{S_BUD}, 1
        s_cbranch_scc1 L_g{rr}
        s_sleep 2
        """)
        for r2 in range(rr, 8):
            a(f"s_add_u32 s{S_TMP}, s{S_B4}, {r2*32768}\nbuffer_load_dword v{TABV+r2}, v{TA}, {s(SR_TAB,4)}, s{S_TMP} offen {opt.hl}")
        a(f"""
        s_waitcnt vmcnt(0)
        s_branch L_w{rr}
        L_g{rr}:
        v_cmp_lt_u32_sdwa {s(S_M+2*rr,2)}, v{JJ}, v{TABV+rr} src0_sel:DWORD src1_sel:WORD_1
        v_cmp_lt_u32_sdwa {s(S_M+16+2*rr,2)}, v{J16}, v{TABV+rr} src0_sel:DWORD src1_sel:WORD_1
        v_max_u32 v{MX}, v{MX}, v{TABV+rr}
        v_add_u32_sdwa v{ADR+rr}, v{LB}, v{TABV+rr} {SDWA} src1_sel:WORD_0
        s_mov_b32 s{S_TMP}, {rr*32*REC_STRIDE}
        s_mov_b64 exec, {s(S_M+2*rr,2)}
        buffer_load_dwordx3 {v(REC(rr),3)}, v{ADR+rr}, {s(SR_REC,4)}, s{S_TMP} offen {opt.hl}
        s_mov_b64 exec, {s(S_M+16+2*rr,2)}
        buffer_load_dwordx3 {v(REC(8+rr),3)}, v{ADR+rr}, {s(SR_REC,4)}, s{S_TMP} offen offset:192 {opt.hl}
        s_mov_b64 exec, -1
        """)
    stamp(a, r, 8)
    def u_reads():
        for k in range(4):
            a(f"ds_read_b64_tr_b16 {v(r.T+4*k,2)}, v{r.EH} offset:{2048*k}\nds_read_b64_tr_b16 {v(r.T+4*k+2,2)}, v{r.EH} offset:{2048*k+512}")
    def u_gemm():
        for k in range(4): a(mfma(r.U, r.T+4*k, r.H+4*k, r.U if k else None))
    def u_scale():
        for i in range(0, 16, 2): a(f"v_pk_mul_f32 {v(r.U+i,2)}, {v(r.U+i,2)}, {s(S_C,2)}")
    def u_all():
        u_reads(); a("s_waitcnt lgkmcnt(0)"); u_gemm(); a("s_nop 7\ns_nop 3"); u_scale()
    stamp(a, r, 9)
    if opt.warm:
        a(f"""
        s_lshr_b32 s{S_TMP}, s2, 3
        s_lshl_b32 s{S_TMP}, s{S_TMP}, 3
        s_add_u32 s{S_TMP}, s{S_TMP}, s{S_V}
        s_mul_i32 s{S_TMP}, s{S_TMP}, {opt.warm*1024}
        s_add_u32 s{S_TMP}, s{S_TMP}, 3072
        v_lshlrev_b32 v{t2}, 4, v{r.lane}
        """)
        for k in range(opt.warm):
            if k and k % 4 == 0: a(f"s_add_u32 s{S_TMP}, s{S_TMP}, 4096")
            a(f"buffer_load_dwordx4 {v(r.H+12,4)}, v{t2}, {s(SR_HD,4)}, s{S_TMP} offen offset:{(k%4)*1024}")
    a(f"""
    v_cmp_lt_u32 vcc, 0x{((0x8000+33)<<16)-1:08x}, v{MX}
    s_and_saveexec_b64 {s(S_D,2)}, vcc
    v_mov_b32 v{t2}, {L_FLAG}
    ds_write_b32 v{t2}, v{ONE}
    s_mov_b64 exec, -1
    """)
    order = [x for rr in range(8) for x in (rr, 8 + rr)]
    a.label("L_rank")
    for n_, q in enumerate(order):
        if q < 8: a(f"s_waitcnt vmcnt({14 - n_})")
        else: a(f"s_cmp_eq_u64 {s(S_M+2*q,2)}, 0\ns_cbranch_scc1 L_rk{q}")
        a(f"""
        s_mov_b64 exec, {s(S_M+2*q,2)}
        v_lshlrev_b32_sdwa v{ADR+q}, 2, v{REC(q)+2} {SDWA} src1_sel:BYTE_0
        ds_add_rtn_u32 v{REC(q)+3}, v{ADR+q}, v{ONE} offset:{L_CNT}
        """)
        if q < 8 and opt.pf: a(f"buffer_load_ubyte v{r.V4}, v{REC(q)+2}, {s(SR_HD,4)}, s{S_SO0} offen")
        if q >= 8: a.label(f"L_rk{q}")
    a(f"""
    s_mov_b64 exec, -1
    v_lshlrev_b32 v{t2}, 3, v{r.lane}
    v_mov_b32 v{t3}, {L_FLAG}
    s_mov_b32 s{S_PADM}, {0 if opt.slide else 31}
    s_cmp_lg_u32 s{S_MODE}, 0
    s_cselect_b32 s{S_PADM}, 31, s{S_PADM}
    s_waitcnt lgkmcnt(0)
    s_barrier
    """)
    stamp(a, r, 10)
    CA = r.M; CB = r.M + 2; FL = r.M + 4; SS = r.M + 5; TT = r.M + 6; PADR = r.M + 7; O = r.M + 8; INC = r.M + 12; SP = r.M + 13; N1 = r.M + 14
    a(f"""
    ds_read_b64 {v(CA,2)}, v{t2} offset:{L_CNT}
    ds_read_b64 {v(CB,2)}, v{t2} offset:{L_CNT+512}
    ds_read_b32 v{FL}, v{t3}
    v_and_b32 v{t4}, 3, v{r.lane}
    v_cmp_eq_u32 {s(S_NB,2)}, 3, v{t4}
    """)
    a(f"s_cmp_lg_u32 s{S_MODE}, 0\ns_cbranch_scc1 L_noaz")
    a(f"""
    s_lshl_b32 s{S_TMP}, s{S_V}, 10
    s_add_u32 s{S_TMP2}, s{S_TMP}, 8192
    s_add_u32 m0, s{S_TMP}, {L_WH1}
    s_lshl_b32 s{S_TMP3}, s{S_V}, 12
    buffer_load_dwordx4 v{L16}, {s(SR_WH,4)}, s{S_TMP} offen lds
    s_add_u32 m0, s{S_TMP}, {L_WH2}
    s_nop 0
    buffer_load_dwordx4 v{L16}, {s(SR_WH,4)}, s{S_TMP2} offen lds
    s_add_u32 m0, s{S_TMP3}, {L_RING}
    """)
    nonlocal_z[0] = r.S + 4
    zero_region(L_ACC, 112 * ACC_ROW)
    a("s_waitcnt lgkmcnt(4)\nL_azd:")
    a(f"""
    v_add_u32 v{N1}, v{CA}, v{CB}
    v_add3_u32 v{SS}, v{N1}, v{CA+1}, v{CB+1}
    v_readfirstlane_b32 s{S_TMP3}, v{FL}
    s_nop 0
    v_add_u32_dpp v{TT}, v{SS}, v{SS} quad_perm:[1,0,3,2] row_mask:0xf bank_mask:0xf
    s_nop 1
    v_add_u32_dpp v{TT}, v{TT}, v{TT} quad_perm:[2,3,0,1] row_mask:0xf bank_mask:0xf
    L_scan:
    v_sub_u32 v{PADR}, 0, v{TT}
    v_and_b32 v{PADR}, s{S_PADM}, v{PADR}
    v_cndmask_b32 v{PADR}, 0, v{PADR}, {s(S_NB,2)}
    v_add_u32 v{SP}, v{SS}, v{PADR}
    v_mov_b32 v{INC}, v{SP}
    """)
    a(wave_scan(INC))
    a(f"""
    s_nop 0
    v_readlane_b32 s{S_TMP}, v{INC}, 63
    v_sub_u32 v{O}, v{INC}, v{SP}
    s_cmp_lg_u32 s{S_PADM}, 0
    s_cbranch_scc1 L_scan_pad
    v_mov_b32_dpp v{PADR}, v{INC} quad_perm:[1,1,3,3] row_mask:0xf bank_mask:0xf
    v_add_u32 v{t4}, -1, v{O}
    v_xor_b32 v{t4}, v{t4}, v{PADR}
    v_cmp_gt_u32 vcc, 32, v{t4}
    v_cmp_gt_u32 {s(S_NBN,2)}, s{S_TMP}, v{PADR}
    s_and_b64 vcc, vcc, {s(S_NBN,2)}
    s_and_b32 vcc_lo, vcc_lo, 0x55555555
    s_and_b32 vcc_hi, vcc_hi, 0x55555555
    v_mov_b32 v{PADR}, s{S_TMP}
    s_cmp_eq_u64 vcc, 0
    s_cbranch_scc1 L_scan_done
    s_mov_b32 s{S_PADM}, 31
    s_branch L_scan
    L_scan_pad:
    v_mov_b32_dpp v{PADR}, v{O} quad_perm:[0,0,0,0] row_mask:0xf bank_mask:0xf
    v_add_u32 v{PADR}, v{PADR}, v{TT}
    v_mov_b64 {v(r.K4,2)}, 0
    v_mov_b64 {v(r.K4+2,2)}, 0
    ds_write_b128 v{V16}, {v(r.K4,4)} offset:{L_REC}
    ds_write_b128 v{V16}, {v(r.K4,4)} offset:{L_REC+8192}
    ds_write_b128 v{V16}, {v(r.K4,4)} offset:{L_REC+16384}
    ds_write_b128 v{V16}, {v(r.K4,4)} offset:{L_REC+24576}
    ds_write_b128 v{V16}, {v(r.K4,4)} offset:{L_REC+32768}
    ds_write_b128 v{V16}, {v(r.K4,4)} offset:{L_REC+40960}
    s_waitcnt lgkmcnt(0)
    s_barrier
    L_scan_done:
    v_lshrrev_b32 v{t3}, 1, v{r.lane}
    v_add_u32 v{t4}, s{S_TMP}, v{t3}
    v_mul_u32_u24 v{t4}, 12, v{t4}
    v_add_u32 v{t4}, {L_REC}, v{t4}
    ds_write2_b32 v{t4}, v{r.Zero}, v{r.Zero} offset0:0 offset1:1
    ds_write_b32 v{t4}, v{r.Zero} offset:8
    v_add_u32 v{O+1}, v{O}, v{N1}
    v_add_u32 v{O+2}, v{O}, v{CA}
    v_add_u32 v{O+3}, v{O+1}, v{CA+1}
    ds_write_b64 v{t2}, {v(O,2)} offset:{L_OFF}
    ds_write_b64 v{t2}, {v(O+2,2)} offset:{L_OFF+512}
    v_and_b32 v{t3}, 60, v{r.lane}
    v_add_u32 v{t3}, {L_WEND}, v{t3}
    ds_write_b32 v{t3}, v{PADR}
    s_add_u32 s{S_TMP}, s{S_TMP}, 31
    s_lshr_b32 s{S_TMP}, s{S_TMP}, 5
    s_cmp_gt_u32 s{S_TMP}, {CAPT}
    s_cselect_b32 s{S_TMP3}, 1, s{S_TMP3}
    s_cmp_lg_u32 s{S_TMP3}, 0
    s_cbranch_scc1 L_slow
    """)
    if opt.fine: stamp(a, r, 22)
    for q in order:
        if q >= 8: a(f"s_cmp_eq_u64 {s(S_M+2*q,2)}, 0\ns_cbranch_scc1 L_pa{q}")
        a(f"s_mov_b64 exec, {s(S_M+2*q,2)}\nds_read_b32 v{ADR+q}, v{ADR+q} offset:{L_OFF}")
        if q >= 8: a.label(f"L_pa{q}")
    a(f"""
    s_and_b32 s{S_T0}, s{S_V}, 3
    s_mul_i32 s{S_T0}, s{S_T0}, s{S_TMP}
    s_add_u32 s{S_NTL}, s{S_T0}, s{S_TMP}
    s_lshr_b32 s{S_T0}, s{S_T0}, 2
    s_lshr_b32 s{S_NTL}, s{S_NTL}, 2
    s_sub_u32 s{S_TMP}, s{S_NTL}, s{S_T0}
    s_mul_i32 s{S_TMP}, s{S_TMP}, {opt.split}
    s_add_u32 s{S_TMP}, s{S_TMP}, 32
    s_lshr_b32 s{S_TMP}, s{S_TMP}, 6
    s_add_u32 s{S_TMP}, s{S_TMP}, s{S_T0}
    s_and_b32 s{S_FI}, s{S_V}, 4
    s_cmp_eq_u32 s{S_TMP}, s{S_T0}
    s_cselect_b32 s{S_FI}, 0, s{S_FI}
    s_cmp_lt_u32 s{S_V}, 4
    s_cselect_b32 s{S_NTL}, s{S_TMP}, s{S_NTL}
    s_cselect_b32 s{S_T0}, s{S_T0}, s{S_TMP}
    s_sub_u32 s{S_NTL}, s{S_NTL}, s{S_T0}
    s_mov_b32 s{S_TMP2}, {L_REC}
    s_waitcnt lgkmcnt(0)
    """)
    if opt.fine: stamp(a, r, 23)
    for q in order:
        if q >= 8: a(f"s_cmp_eq_u64 {s(S_M+2*q,2)}, 0\ns_cbranch_scc1 L_pb{q}")
        a(f"""
        s_mov_b64 exec, {s(S_M+2*q,2)}
        v_add_u32 v{ADR+q}, v{ADR+q}, v{REC(q)+3}
        v_mad_u32_u24 v{ADR+q}, v{ADR+q}, 12, s{S_TMP2}
        ds_write_b32 v{ADR+q}, v{REC(q)+2} offset:8
        ds_write2_b32 v{ADR+q}, v{REC(q)}, v{REC(q)+1} offset0:0 offset1:1
        """)
        if q >= 8: a.label(f"L_pb{q}")
    a(f"""
    s_mov_b64 exec, -1
    """)
    if opt.fine: stamp(a, r, 24)
    a(f"""
    s_mul_i32 s{S_TMP}, s{S_T0}, 384
    s_add_u32 s{S_TMP}, s{S_TMP}, {L_REC}
    v_and_b32 v{t2}, 31, v{r.lane}
    v_mul_u32_u24 v{t2}, 12, v{t2}
    v_add_u32 v{r.A1a}, s{S_TMP}, v{t2}
    v_lshrrev_b32 v{t2}, 3, v{r.lane}
    v_mul_u32_u24 v{t2}, 48, v{t2}
    v_add_u32 v{r.A2a}, s{S_TMP}, v{t2}
    s_sub_u32 s{S_TMP}, s{S_T0}, 1
    v_add_u32 v{t3}, s{S_TMP}, v{r.lane}
    v_mul_u32_u24 v{t2}, 384, v{t3}
    s_waitcnt vmcnt(0) lgkmcnt(0)
    s_barrier
    """)
    stamp(a, r, 11)
    a(f"s_cmp_eq_u32 s{S_NTL}, 0\ns_cbranch_scc1 L_idle")
    a(k_reads(r, 0))
    a(f"ds_read_u8 v{t4}, v{t2} offset:{L_REC+8}")
    a(ea_read(r, 0))
    a(acc_zero(r, False))
    for i in range(0, 8, 2): a(f"v_mov_b64 {v(r.M+8+i,2)}, 0\nv_mov_b64 {v(r.S+i,2)}, 0")
    a("s_waitcnt lgkmcnt(2)")
    a(dma_addr(r) + dma_issue(r))
    a(f"""
    v_lshrrev_b32 v{r.PI}, 7, v{r.K}
    v_lshlrev_b32_sdwa v{r.NA}, 5, v{r.K} {SDWA} src1_sel:BYTE_0
    buffer_load_dwordx2 {v(r.PS,2)}, v{r.PI}, {s(SR_P4,4)}, 0 idxen
    """)
    a(pd_read(r) + k_reads(r, 1))
    a(f"""
    s_waitcnt lgkmcnt(5)
    v_and_b32 v{t4}, 0x7f, v{t4}
    v_lshrrev_b32 v{t5}, 3, v{t4}
    v_lshlrev_b32 v{t5}, 2, v{t5}
    v_add_u32 v{t5}, {L_WEND}, v{t5}
    ds_read_b32 v{t5}, v{t5}
    v_lshlrev_b32 v{t3}, 5, v{t3}
    s_waitcnt lgkmcnt(0)
    v_sub_u32 v{t5}, v{t5}, v{t3}
    v_min_u32 v{t5}, 32, v{t5}
    v_mad_u32_u24 v{t2}, v{t5}, 12, v{t2}
    ds_read_u8 v{t2}, v{t2} offset:{L_REC-4}
    v_lshl_or_b32 v{t4}, v{t5}, 16, v{t4}
    s_waitcnt lgkmcnt(0)
    v_and_b32 v{t2}, 0x7f, v{t2}
    v_lshl_or_b32 v{r.Desc}, v{t2}, 8, v{t4}
    s_nop 0
    v_readlane_b32 s{S_D}, v{r.Desc}, 1
    v_readlane_b32 s{S_ZP}, v{r.Desc}, 0
    s_nop 1
    s_and_b32 s{S_NB}, s{S_D}, 0x7c
    s_mov_b32 s{S_NBP}, s{S_NB}
    s_lshr_b32 s{S_CNT}, s{S_D}, 16
    s_bfe_u32 s{S_ZP}, s{S_ZP}, 0x80008
    s_cmp_eq_u32 s{S_T0}, 0
    s_cselect_b32 s{S_ZP}, -1, s{S_ZP}
    """)
    a(aw_reads(r, S_NB))
    a(f"s_cmp_lg_u32 s{S_MODE}, 0\ns_cbranch_scc1 L_nou")
    u_all()
    a("L_nou:\ns_waitcnt vmcnt(1)")
    a(h_reads(r))
    a("s_waitcnt lgkmcnt(0)")
    a(dma_addr(r) + dma_issue(r))
    a("s_waitcnt vmcnt(4)")
    a(geometry(r, False))
    for k in range(4): a(mfma(r.D0, r.H+4*k, r.W2+4*k, r.D0 if k else None))
    a("s_waitcnt lgkmcnt(0)")
    a(mfma(r.D0, r.XM, r.BW, r.D0))
    a(f"s_mov_b32 s{S_I}, 2\ns_add_u32 s{S_NTL}, s{S_NTL}, 1")
    if opt.prio: a(f"s_cmp_ge_u32 s{S_V}, 4\ns_cbranch_scc1 L_np\ns_setprio 1\nL_np:")
    a("s_nop 7\ns_nop 1")
    stamp(a, r, 12); stamp(a, r, 28, True)
    a(".p2align 6")
    a.label("L_loop")
    pre = k_reads(r, 2) + pd_read(r) + [f"v_readlane_b32 s{S_D}, v{r.Desc}, s{S_I}"] + s_set(r)
    PE = [int(x) for x in opt.mfe.split(",")]; PR = [int(x) for x in opt.mfr.split(",")]
    mf_exp = {PE[k]: mfma(r.D1, r.H+4*k, r.W2+16+4*k, r.D1 if k else None) for k in range(4)}
    mf_rcp = {PR[0]: mfma(r.D1, r.XM, r.BW+4, r.D1), PR[1]: mfma(r.A1, r.M+8, r.S, r.A1), PR[2]: mfma(r.A1, r.M+12, r.S+4, r.A1)}
    ins_exp = {7: [f"s_bfe_u32 s{S_TMP}, s{S_D}, 0x80008", f"s_add_u32 s{S_TMP2}, s{S_NB}, 8", f"s_and_b32 s{S_TMP3}, s{S_D}, 0x7c",
                   f"s_cmp_ge_u32 s{S_TMP}, s{S_TMP2}", f"s_cselect_b32 s{S_NBN}, s{S_TMP3}, s{S_NB}"],
               PE[3]+1: ["s_waitcnt vmcnt(1)"] + h_reads(r)}
    ins_rcp = {2: ["s_waitcnt lgkmcnt(4)"] + dma_addr(r),
               4: ["s_waitcnt lgkmcnt(0)"] + dma_issue(r),
               6: ea_read(r, 1) + [f"s_cmp_eq_u32 s{S_NBN}, s{S_NB}", "s_cbranch_scc1 L_noaw"] + aw_reads(r, S_NBN) + ["L_noaw:"],
               PR[2]+1: s_reads(r)}
    silu_stage(a, r, r.D0, r.M, mf_exp, mf_rcp, ins_exp, ins_rcp, pre)
    a(f"s_cmp_eq_u32 s{S_NB}, s{S_NBP}\ns_cbranch_scc1 L_noflush")
    if "flush" in opt.abl: a("s_branch L_noflush")
    a(retire_mask(r))
    a(f"s_cmp_lg_u32 s{S_MODE}, 0\ns_cbranch_scc1 L_flush_slow")
    a(flush_plain(r))
    a.label("L_noflush")
    pre = [f"s_mov_b32 s{S_NBP}, s{S_NB}", f"s_mov_b32 s{S_NB}, s{S_NBN}", f"s_lshr_b32 s{S_CNT}, s{S_D}, 16",
           "s_waitcnt vmcnt(4)"] + geometry(r, True)
    mf_exp = {PE[k]: mfma(r.D0, r.H+4*k, r.W2+4*k, r.D0 if k else None) for k in range(4)}
    mf_rcp = {PR[0]: mfma(r.D0, r.XM, r.BW, r.D0), PR[1]: mfma(r.A0, r.M, r.S, r.A0), PR[2]: mfma(r.A0, r.M+4, r.S+4, r.A0)}
    silu_stage(a, r, r.D1, r.M+8, mf_exp, mf_rcp, {15: ["s_waitcnt lgkmcnt(0)"]}, {}, pre)
    a(f"""
    s_sub_u32 s{S_TMP}, s{S_I}, 1
    s_add_u32 s{S_I}, s{S_I}, 1
    s_cmp_le_u32 s{S_I}, s{S_NTL}
    s_cbranch_scc1 L_loop
    v_readlane_b32 s{S_D}, v{r.Desc}, s{S_TMP}
    """)
    stamp(a, r, 13); stamp(a, r, 29, True)
    a(mfma(r.A1, r.M+8, r.S, r.A1)); a(mfma(r.A1, r.M+12, r.S+4, r.A1))
    if opt.prio: a("s_setprio 0")
    S_RML = S_TMP3; S_GL = S_NBN
    a(f"""
    s_mov_b32 s{S_RM}, 0xffff
    s_bitcmp1_b32 s{S_NBP}, 2
    s_cselect_b32 s{S_RM}, 0xffff0000, s{S_RM}
    s_bfe_u32 s{S_GL}, s{S_D}, 0x6000a
    s_lshr_b32 s{S_TMP2}, s{S_NBP}, 2
    s_cmp_lg_u32 s{S_GL}, s{S_TMP2}
    s_cselect_b32 s{S_RM}, -1, s{S_RM}
    s_mov_b32 s{S_RML}, 0xffff
    s_bitcmp1_b32 s{S_GL}, 0
    s_cselect_b32 s{S_RML}, 0xffff0000, s{S_RML}
    s_cselect_b32 s{S_CNT}, {4*ACC_ROW}, 0
    """)
    a(flush_addr(r))
    WH2 = r.W2; HU = r.W2 + 16
    def epi_prep_a():
        for j in range(8):
            a(f"v_lshlrev_b32 v{HU+2*j}, 16, v{r.HR+j}\nv_and_b32 v{HU+2*j+1}, 0xffff0000, v{r.HR+j}")
    def epi_prep_b():
        for k in range(4):
            a(f"ds_read_b64_tr_b16 {v(WH2+4*k,2)}, v{r.EH} offset:{8192+2048*k}\nds_read_b64_tr_b16 {v(WH2+4*k+2,2)}, v{r.EH} offset:{8192+2048*k+512}")
    def epi_prep(): epi_prep_a(); epi_prep_b()
    a(f"""
    s_cmp_lg_u32 s{S_MODE}, 0
    s_cbranch_scc1 L_final_slow
    s_lshl_b32 s{S_TMP}, s{S_V}, 11
    s_add_u32 s{S_TMP}, s{S_TMP}, {L_SIMG}
    v_add_u32 v{r.K}, s{S_TMP}, v{r.EX}
    s_sub_u32 s{S_TMP}, s{S_TMP}, {L_ACC}
    s_sub_u32 s{S_TMP}, s{S_TMP}, s{S_CNT}
    s_mov_b32 exec_lo, s{S_RML}
    s_mov_b32 exec_hi, s{S_RML}
    v_add_u32 v{t2}, s{S_TMP}, v{r.FlM}
    """)
    a(EX3)
    a([f"ds_write_b128 v{t2}, {v(r.A0+4*q,4)} offset:{32*q}" for q in range(8)])
    a(f"s_mov_b64 exec, -1\nds_read_b128 {v(r.PD,4)}, v{r.K}")
    epi_prep_a()
    a("s_waitcnt lgkmcnt(9)")
    a(flush_dot(r))
    epi_prep_b()
    a(f"""
    s_andn2_b32 s{S_TMP}, s{S_RM}, s{S_RML}
    s_and_b32 exec_lo, s{S_TMP}, 0x77777777
    s_mov_b32 exec_hi, 0
    ds_write_b32 v{t3}, v{t4}
    s_mov_b64 exec, -1
    s_mov_b32 s{S_RM}, s{S_RML}
    s_mul_i32 s{S_TMP}, s{S_GL}, {4*ACC_ROW}
    s_add_u32 s{S_TMP}, s{S_TMP}, {L_ACC}
    v_add_u32 v{t2}, s{S_TMP}, v{r.EX}
    s_ashr_i32 s{S_ZP}, s{S_ZP}, 2
    s_cmp_lg_u32 s{S_ZP}, s{S_GL}
    s_cbranch_scc1 L_main_end
    s_add_u32 s{S_TMP}, s{S_FI}, {L_FLAG+8}
    v_mov_b32 v{r.K}, s{S_TMP}
    v_mov_b32 v{r.PI}, 1
    ds_write_b32 v{r.K}, v{r.PI}
    L_main_end:
    """)
    stamp(a, r, 14)
    rmw_rd = [f"ds_read_b128 {v(r.D0,4)}, v{t2}", EXP, f"ds_read_b32 v{t5}, v{t3}", "s_mov_b64 exec, -1"]
    rmw_wr = ["s_waitcnt lgkmcnt(1)",
              f"v_pk_add_f32 {v(r.D0,2)}, {v(r.D0,2)}, {v(r.PD,2)}", f"v_pk_add_f32 {v(r.D0+2,2)}, {v(r.D0+2,2)}, {v(r.PD+2,2)}",
              f"ds_write_b128 v{t2}, {v(r.D0,4)}", EXP, "s_waitcnt lgkmcnt(1)", f"v_add_f32 v{t4}, v{t4}, v{t5}",
              f"ds_write_b32 v{t3}, v{t4}", "s_mov_b64 exec, -1"]
    a(f"v_mov_b32 v{r.K}, {L_FLAG+8}\ns_waitcnt vmcnt(0) lgkmcnt(0)\ns_barrier\nds_read_b64 {v(r.PS,2)}, v{r.K}")
    a(rmw_rd)
    a(f"""
    s_waitcnt lgkmcnt(2)
    v_readfirstlane_b32 s{S_TMP}, v{r.PS}
    v_readfirstlane_b32 s{S_TMP2}, v{r.PS+1}
    s_nop 3
    s_or_b32 s{S_D}, s{S_TMP}, s{S_TMP2}
    s_cbranch_scc1 L_merge_rare
    L_merge:
    s_cmp_eq_u32 s{S_NTL}, 0
    s_cbranch_scc1 L_epi
    """)
    a(rmw_wr)
    a.label("L_epi")
    if opt.stamp: a(f"s_sub_u32 s{S_ST}, s{S_NTL}, 1\ns_max_i32 s{S_ST}, s{S_ST}, 0\nv_writelane_b32 v{r.ST}, s{S_ST}, 30")
    MR = r.D0
    a(f"""
    s_mov_b32 s{S_D}, 0x{f2u(-LN2):08x}
    s_mov_b32 s{S_D+1}, 0x{f2u(-LN2):08x}
    ds_read_b32 v{r.K}, v{r.EK} offset:16
    s_waitcnt lgkmcnt(0)
    s_barrier
    """)
    stamp(a, r, 15)
    for k in range(4):
        a(f"ds_read_b128 {v(MR+8*k,4)}, v{r.EM} offset:{64*k}\nds_read_b128 {v(MR+8*k+4,4)}, v{r.EM} offset:{64*k+16}")
    a(f"ds_read_b32 v{r.PI}, v{r.EP}")
    for k in range(4):
        a(f"s_waitcnt lgkmcnt({7-2*k})")
        for j in range(4):
            a(f"v_cvt_pk_bf16_f32 v{r.H+4*k+j}, v{MR+8*k+2*j}, v{MR+8*k+2*j+1}")
        if k: a(mfma(r.U, WH2+4*(k-1), r.H+4*(k-1), r.U))
    a(f"""
    s_waitcnt lgkmcnt(0)
    v_add_f32 v{r.K}, v{r.K}, v{r.PI}
    {mfma(r.U, WH2+12, r.H+12, r.U)}
    v_cvt_pk_bf16_f32 v{r.K}, v{r.K}, v{r.K}
    buffer_store_short v{r.K}, v{r.TE}, {s(SR_OUTP,4)}, 0 offen {opt.ost}
    s_nop 9
    """)
    T = r.T; U = r.U
    for i in range(16): a(f"v_exp_f32 v{T+i}, v{U+i}")
    for i in range(0, 16, 2): a(f"v_pk_add_f32 {v(T+i,2)}, {v(T+i,2)}, {s(S_ONE,2)}")
    for i in range(0, 16, 2): a(f"v_pk_mul_f32 {v(U+i,2)}, {v(U+i,2)}, {s(S_D,2)}")
    for i in range(16): a(f"v_rcp_f32 v{T+i}, v{T+i}")
    for g in range(4):
        for i in (4*g, 4*g+2): a(f"v_pk_fma_f32 {v(T+i,2)}, {v(T+i,2)}, {v(U+i,2)}, {v(HU+i,2)}")
        for i in (4*g, 4*g+2): a(f"v_cvt_pk_bf16_f32 v{r.M+i//2}, v{T+i}, v{T+i+1}")
        a(f"ds_write_b64 v{r.EW}, {v(r.M+2*g,2)} offset:{16*g}")
    a(f"""
    """)
    if opt.thr:
        a(f"""
        s_memrealtime s[4:5]
        s_waitcnt lgkmcnt(0)
        s_sub_u32 s4, s4, s{S_ST}
        s_cmp_gt_u32 s4, {opt.thr}
        s_cselect_b32 s4, 0x10000, 0
        v_add_u32 v{r.EG}, s4, v{r.EG}
        """)
    a(f"""
    ds_read_b128 {v(r.H,4)}, v{r.ER}
    ds_read_b128 {v(r.H+4,4)}, v{r.ER} offset:1280
    s_waitcnt lgkmcnt(1)
    buffer_store_dwordx4 {v(r.H,4)}, v{r.EG}, {s(SR_OUT,4)}, 0 offen {opt.ost}
    s_waitcnt lgkmcnt(0)
    buffer_store_dwordx4 {v(r.H+4,4)}, v{r.EG}, {s(SR_OUT,4)}, 0 offen offset:2048 {opt.ost}
    """)
    if opt.stamp:
        stamp(a, r, 16); a("s_waitcnt vmcnt(0)"); stamp(a, r, 17); stamp(a, r, 31, True)
        a(f"""
        s_lshl_b32 s{S_ST}, s2, 4
        s_add_u32 s{S_ST}, s{S_ST}, s{S_V}
        s_lshl_b32 s{S_ST}, s{S_ST}, 8
        s_add_u32 s{S_ST}, s{S_ST}, {WS_STAMP}
        s_add_u32 s{S_ST}, s{P_WS}, s{S_ST}
        s_addc_u32 s{S_ST+1}, s{P_WS+1}, 0
        v_lshlrev_b32 v{t2}, 2, v{r.lane}
        global_store_dword v{t2}, v{r.ST}, {s(S_ST,2)}
        """)
    if opt.diag:
        a("s_waitcnt vmcnt(0)"); stamp(a, r, 31)
        a(f"""
        v_lshlrev_b32 v{t2}, 2, v{r.lane}
        s_mov_b64 exec, 0xffff
        global_atomic_umax v{t2}, v{r.ST}, {s(P_DBG,2)}
        """)
    a("L_done:\ns_endpgm")
    a("L_noaz:\ns_waitcnt lgkmcnt(0)\ns_branch L_azd")
    a(f"L_idle:\ns_cmp_lg_u32 s{S_MODE}, 0\ns_cbranch_scc1 L_slow_next")
    u_all()
    epi_prep()
    a("s_branch L_main_end")
    a(f"""
    L_merge_rare:
    s_cmp_lg_u32 s{S_TMP}, 0
    s_cbranch_scc1 L_final_atomic
    s_cmp_ge_u32 s{S_V}, 4
    s_cbranch_scc1 L_merge_young
    s_cmp_eq_u32 s{S_NTL}, 0
    s_cbranch_scc1 L_merge_old_done
    """)
    a(rmw_wr)
    a("L_merge_old_done:\ns_waitcnt lgkmcnt(0)\ns_barrier\ns_branch L_epi\nL_merge_young:\ns_waitcnt lgkmcnt(0)\ns_barrier")
    a(rmw_rd)
    a(f"s_branch L_merge\nL_final_atomic:\ns_cmp_eq_u32 s{S_NTL}, 0\ns_cbranch_scc1 L_epi")
    a([f"ds_add_f32 v{t2}, v{r.PD+i} offset:{4*i}" for i in range(4)])
    a([EXP, f"ds_add_f32 v{t3}, v{t4}", "s_mov_b64 exec, -1", "s_branch L_epi"])
    a.label("L_final_slow")
    a("s_waitcnt vmcnt(0) lgkmcnt(0)"); a(flush_dot(r))
    a(flush_atomic(r)); a("s_branch L_slow_next")
    a.label("L_flush_slow")
    a(flush_addr(r)); a("s_waitcnt lgkmcnt(0)"); a(flush_dot(r)); a(flush_atomic(r)); a(acc_zero(r, True))
    a("s_branch L_noflush")
    a(f"""
    L_slow:
    s_mov_b32 s{S_MODE}, 1
    s_mov_b32 s{S_SEG}, 0
    s_waitcnt vmcnt(0) lgkmcnt(0)
    s_barrier
    """)
    u_all()
    a(f"""
    L_slow_round:
    s_waitcnt lgkmcnt(0)
    s_barrier
    v_lshlrev_b32 v{t2}, 2, v0
    v_cmp_gt_u32 vcc, 256, v0
    s_and_saveexec_b64 {s(S_D,2)}, vcc
    ds_write_b32 v{t2}, v{r.Zero} offset:{L_CNT}
    s_mov_b64 exec, -1
    v_mov_b32 v{t2}, {L_FLAG}
    ds_write_b32 v{t2}, v{r.Zero}
    s_lshl_b32 s{S_TMP}, s{S_SEG}, 10
    s_add_u32 s{S_TMP}, s{S_TMP}, s{S_B4}
    buffer_load_dword v{t3}, v{r.Zero}, {s(SR_TAB,4)}, s{S_TMP} offen {opt.hl}
    s_mul_i32 s{S_TMP}, s{S_SEG}, {REC_STRIDE}
    v_mul_u32_u24 v{t5}, 12, v0
    s_waitcnt vmcnt(0)
    v_bfe_u32 v{t4}, v{t3}, 16, 15
    v_and_b32 v{t3}, 0xffff, v{t3}
    v_add_u32 v{t3}, v{t3}, v{t5}
    v_mov_b32 v{t2}, v0
    """)
    for q in range(7):
        a(f"""
        v_cmp_lt_u32 {s(S_M+2*q,2)}, v{t2}, v{t4}
        s_mov_b64 exec, {s(S_M+2*q,2)}
        buffer_load_dwordx3 {v(REC(q),3)}, v{t3}, {s(SR_REC,4)}, s{S_TMP} offen {opt.hl}
        s_mov_b64 exec, -1
        v_add_u32 v{t2}, 512, v{t2}
        s_add_u32 s{S_TMP}, s{S_TMP}, {512*12}
        """)
    for q in range(7, 16): a(f"s_mov_b64 {s(S_M+2*q,2)}, 0")
    a(f"""
    v_mov_b32 v{ONE}, 1
    s_waitcnt vmcnt(0) lgkmcnt(0)
    s_barrier
    s_branch L_rank
    L_slow_next:
    s_add_u32 s{S_SEG}, s{S_SEG}, 1
    s_cmp_lt_u32 s{S_SEG}, {NB}
    s_cbranch_scc1 L_slow_round
    """)
    epi_prep()
    a("s_branch L_epi")
    return a.text(), r.n

def build():
    body, nv = gen()
    hdr = open("gather_scatter__cheap_equivariant_egnn__graph.s.ref").read().split("; Override")[0]
    acc = (nv + 3) // 4 * 4
    return hdr + f"""; @launch grid=({NB},1,1) block=(512,1,1) lds={LDS_BYTES}
.amdgcn_target "amdgcn-amd-amdhsa--gfx950"
.text
.globl {KNAME}
.p2align 8
.type {KNAME},@function
""" + body + f""".section .rodata,"a"
.p2align 6
.amdhsa_kernel {KNAME}
  .amdhsa_next_free_vgpr {nv}
  .amdhsa_next_free_sgpr 102
  .amdhsa_accum_offset {acc}
  .amdhsa_group_segment_fixed_size 0
  .amdhsa_kernarg_size 88
  .amdhsa_user_sgpr_count 2
  .amdhsa_user_sgpr_kernarg_segment_ptr 1
  .amdhsa_system_sgpr_workgroup_id_x 1
  .amdhsa_float_denorm_mode_32 3
.end_amdhsa_kernel
"""

if __name__ == "__main__":
    for arg in sys.argv[2:]:
        k, val = arg.split("=")
        cur = getattr(opt, k)
        setattr(opt, k, (val not in ("0", "False")) if isinstance(cur, bool) else type(cur)(val.replace("_", " ").replace("none", "")))
    open(sys.argv[1], "w").write(build())
    print("lds", LDS_BYTES, "vgprs", alloc().n)
```

```python
import sys, struct

N = 25000; E = 800000; NB = 256; BN = 98; CH = 3136
REC_STRIDE = CH * 12
WS_TAB = NB * REC_STRIDE
WS_P4 = WS_TAB + NB * 1024
WS_B = 11010048
WS_STAMP = 64 << 20
OUT_POS = N * 128
KNAME = "gather_scatter__cheap_equivariant_egnn__graph_kernel"

def f2u(x): return struct.unpack("<I", struct.pack("<f", x))[0]
LOG2E = 1.4426950408889634
LN2 = 0.6931471805599453

class Opt:
    split = 43
    prio = 1
    ld = "nt"
    st = "sc1"
    hl = "sc1"
    ost = ""
    slide = True
    late = 1
    pf = 0
    warm = 0
    abl = ""
    stamp = False
    pub = "sc1"
    rl = "sc1"
    slp = 2
    fine = False
    thr = 0
    tw = 0
    mfe = "2,8"
    hpos = 12
    mfr = "0,5,10"
    padd = 1
    pmul = 1
    ilv = 0
    spread = 0
    tprio = 0
    diag = False
opt = Opt()

class Asm:
    def __init__(self): self.L = []
    def __call__(self, s):
        if isinstance(s, (list, tuple)):
            for x in s: self(x)
            return
        for x in s.strip("\n").split("\n"):
            x = x.strip()
            if not x: continue
            self.L.append(x if x.endswith(":") else "    " + x)
    def label(self, n): self.L.append(n + ":")
    def text(self): return "\n".join(self.L) + "\n"

def v(i, n=1): return f"v{i}" if n == 1 else f"v[{i}:{i+n-1}]"
def s(i, n=1): return f"s{i}" if n == 1 else f"s[{i}:{i+n-1}]"
def srd(d, p, size, off=None):
    if off is None: b = f"s_mov_b32 s{d}, s{p}\ns_mov_b32 s{d+1}, s{p+1}\n"
    else: b = f"s_add_u32 s{d}, s{p}, {off}\ns_addc_u32 s{d+1}, s{p+1}, 0\n"
    return b + f"s_mov_b32 s{d+2}, {size}\ns_mov_b32 s{d+3}, 0x00020000"
def wave_scan(r):
    o = []
    for sh in (1, 2, 4, 8):
        o.append(f"s_nop 1\nv_add_u32_dpp v{r}, v{r}, v{r} row_shr:{sh} row_mask:0xf bank_mask:0xf bound_ctrl:0")
    o.append(f"s_nop 1\nv_add_u32_dpp v{r}, v{r}, v{r} row_bcast:15 row_mask:0xa bank_mask:0xf")
    o.append(f"s_nop 1\nv_add_u32_dpp v{r}, v{r}, v{r} row_bcast:31 row_mask:0xc bank_mask:0xf")
    return o
def mfma(d, a_, b_, c=None):
    cc = "0" if c is None else v(c, 16)
    return f"v_mfma_f32_32x32x16_bf16 {v(d,16)}, {v(a_,4)}, {v(b_,4)}, {cc}"
SDWA = "dst_sel:DWORD dst_unused:UNUSED_PAD src0_sel:DWORD"

CAPT = 112
L_NT = 0
L_CNT = 8192
L_OFF = L_CNT + 1024
L_REC = L_OFF + 1024
L_RING = L_REC + CAPT * 384
L_SIMG = L_RING + 8 * 4096
L_AT = L_SIMG + 8 * 2048
L_ACC = L_AT + 13 * 1024
ACC_ROW = 272
L_WX = L_ACC + 112 * ACC_ROW
L_FLAG = L_WX + 256
L_WEND = L_FLAG + 16
L_WH1 = L_WEND + 64 + 48
L_WH2 = L_WH1 + 8192
L_HIST = L_WH1
L_OFFA = L_HIST + 1024
LDS_BYTES = L_WH2 + 8192
L_STG = L_REC
L_HST = L_RING + 8192
L_W2S = L_RING + 24576
L_WE = L_ACC + 8192
assert L_STG + CH * 16 <= L_HST and L_WE + 17408 <= L_WX and L_SIMG % 64 == 0 and LDS_BYTES <= 163840
assert L_HIST % 16 == 0 and L_ACC % 16 == 0

class R: pass
def alloc():
    r = R(); n = [1]
    def al(cnt, align=1):
        n[0] = (n[0] + align - 1) // align * align
        x = n[0]; n[0] += cnt; return x
    r.lane = al(1); r.t0 = al(1); r.t1 = al(1)
    r.D0 = al(16, 4); r.D1 = al(16); r.A0 = al(16); r.A1 = al(16)
    r.W2 = al(32); r.BW = al(8); r.H = al(16)
    r.XM = al(4); r.S = al(8); r.K4 = al(4)
    r.M = al(16); r.T = al(16); r.U = al(16); r.HU = al(16); r.HR = r.HU + 8
    r.PD = al(4); r.PS = al(2); r.PQ = al(2); r.HA = al(4); r.XK = al(4)
    for nm in "A1a A2a SB TR0 TR1 AWl Desc Zero FlM FlP WXa ML K PI NA SA t2 t3 t4 t5 ST V4 V8 V16 L16 TE EM EK EP EW ER EG EH EX DM".split():
        setattr(r, nm, al(1))
    r.n = n[0]
    return r

P_H, P_POS, P_EA, P_SRC, P_DST, P_WE, P_WX, P_WH, P_OUT, P_DBG, P_WS = range(4, 26, 2)
SR_HD = 28; SR_P4 = 32; SR_REC = 36; SR_TAB = 40; SR_OUT = 44; SR_OUTP = 48
S_V = 52; S_RT = 53; S_T = 54; S_B4 = 55; S_MODE = 56; S_SEG = 57
S_C = 58; S_ONE = 60; S_D = 62; S_TMP = 63; S_TMP2 = 64; S_T0 = 65; S_NTL = 66; S_I = 67; S_CNT = 68; S_TMP3 = 69
S_M = 70
S_NL = 4; S_NH = 5; S_MSK = 6; S_SO0 = 7; S_SO1 = 8; S_SO2 = 9
S_NB = 10; S_NBP = 11; S_NBN = 12; S_ZP = 13; S_RM = 14; S_PADM = 15; S_HI = 16
S_FI = 18; SR_WH = 20; S_ST = 26
TS = [72 + 4 * k for k in range(7)] + [SR_OUTP]

DIAG = {0: 0, 3: 1, 4: 2, 7: 3, 10: 4, 12: 5, 13: 6, 31: 7}
def stamp(a, r, i, real=False):
    if opt.diag:
        if i in DIAG: a(f"s_waitcnt lgkmcnt(0)\ns_memrealtime {s(S_ST,2)}\ns_waitcnt lgkmcnt(0)\nv_writelane_b32 v{r.ST}, s{S_ST}, {DIAG[i]}\ns_not_b32 s{S_ST}, s{S_ST}\nv_writelane_b32 v{r.ST}, s{S_ST}, {DIAG[i]+8}")
        return
    if not opt.stamp: return
    a(f"s_waitcnt lgkmcnt(0)\n{'s_memrealtime' if real else 's_memtime'} {s(S_ST,2)}\ns_waitcnt lgkmcnt(0)\nv_writelane_b32 v{r.ST}, s{S_ST}, {i}")

def silu_stage(a0, r, D, Mo, mf_exp, mf_rcp, ins_exp, ins_rcp, pre=()):
    T = r.T
    def a(x, core=False):
        for y in ([x] if isinstance(x, str) else x):
            for z in y.split("\n"):
                z = z.strip()
                if "vmem" in opt.abl and (z.startswith("buffer_") or "vmcnt" in z): continue
                if "lds" in opt.abl and (z.startswith("ds_") or "lgkmcnt" in z): continue
                if "mfma" in opt.abl and z.startswith("v_mfma"): continue
                if "g2" in opt.abl and z.startswith("v_mfma") and (f"v[{r.A0}:" in z or f"v[{r.A1}:" in z): continue
                if "hm" in opt.abl and z.startswith("v_mfma") and any(f", v[{r.H+4*k}:" in z for k in (1, 2, 3)): continue
                if "trans" in opt.abl and (z.startswith("v_exp") or z.startswith("v_rcp")): z = z.replace("v_exp_f32", "v_mov_b32").replace("v_rcp_f32", "v_mov_b32"); a0(z)
                if "misc" in opt.abl and z.startswith("v_") and not core and not z.startswith("v_readlane"): continue
                a0(z)
    pre = list(pre)
    if opt.spread:
        keep = []; grp = None
        for x in pre:
            if grp is not None:
                grp.append(x)
                if x == "s_mov_b64 exec, -1": keep.append("\n".join(grp)); grp = None
            elif " exec," in x: grp = [x]
            elif x.startswith("s_nop"): continue
            else: keep.append(x)
        pre_map = {}
        per = opt.spread
        for j, x in enumerate(keep): pre_map.setdefault(j // per, []).append(x)
    else:
        a(pre); pre_map = {}
    for i in range(16):
        if i in mf_exp: a(mf_exp[i], True)
        a(f"v_exp_f32 v{T+i}, v{D+i}", True)
        a(pre_map.get(i, ()))
        a(ins_exp.get(i, ()))
    if opt.tprio: a(f"s_setprio {opt.tprio}")
    for i in range(0, 16, 2):
        if opt.padd: a(f"v_pk_add_f32 {v(T+i,2)}, {v(T+i,2)}, {s(S_ONE,2)}", True)
        else: a(f"v_add_f32 v{T+i}, 1.0, v{T+i}\nv_add_f32 v{T+i+1}, 1.0, v{T+i+1}", True)
    if opt.tprio: a(f"s_setprio 0")
    for i in range(16):
        if i in mf_rcp: a(mf_rcp[i], True)
        a(f"v_rcp_f32 v{T+i}, v{T+i}", True)
        a(ins_rcp.get(i, ()))
    def mul(i):
        if opt.pmul: a(f"v_pk_mul_f32 {v(T+i,2)}, {v(T+i,2)}, {v(D+i,2)}", True)
        else: a(f"v_mul_f32 v{T+i}, v{T+i}, v{D+i}\nv_mul_f32 v{T+i+1}, v{T+i+1}, v{D+i+1}", True)
    def cvt(i): a(f"v_cvt_pk_bf16_f32 v{Mo+i//2}, v{T+i}, v{T+i+1}", True)
    if opt.tprio: a(f"s_setprio {opt.tprio}")
    if opt.ilv:
        for i in range(0, 16, 2):
            mul(i)
            if i: cvt(i - 2)
        cvt(14)
    else:
        for i in range(0, 16, 2): mul(i)
        if opt.tprio: a(f"s_setprio 0")
        for i in range(0, 16, 2): cvt(i)

def geometry(r, advance):
    o = [
        f"v_dot2_f32_bf16 v{r.t2}, v{r.PS}, s{S_NL}, v{r.PD}",
        f"v_dot2_f32_bf16 v{r.t3}, v{r.PS}, s{S_NH}, v{r.PD+1}",
        f"v_dot2_f32_bf16 v{r.t4}, v{r.PS+1}, s{S_NL}, v{r.PD+2}",
        f"v_xor_b32 v{r.SA}, v{r.SB}, v{r.PD+3}",
        f"v_lshrrev_b32 v{r.PI}, 7, v{r.K}",
        f"buffer_load_dwordx2 {v(r.PS,2)}, v{r.PI}, {s(SR_P4,4)}, 0 idxen",
        f"v_cvt_pk_bf16_f32 v{r.PQ}, v{r.t2}, v{r.t3}",
        f"v_cvt_pk_bf16_f32 v{r.t5}, v{r.t4}, 0",
        f"v_cvt_pk_bf16_f32 v{r.PQ+1}, v{r.t4}, 1.0",
        f"v_dot2_f32_bf16 v{r.t2}, v{r.PQ}, v{r.PQ}, 0",
        f"v_dot2_f32_bf16 v{r.t2}, v{r.t5}, v{r.t5}, v{r.t2}",
    ]
    if advance:
        o += [f"v_add_u32 v{r.A1a}, 384, v{r.A1a}", f"v_add_u32 v{r.A2a}, 384, v{r.A2a}", "s_nop 0"]
    else:
        o += ["s_nop 2"]
    o += [
        f"v_cvt_pk_bf16_f32 v{r.XM+2}, v{r.t2}, v{r.t2}",
        f"s_mov_b64 exec, {s(S_HI,2)}",
        f"ds_read_b128 {v(r.XM,4)}, v{r.NA}",
        "s_mov_b64 exec, -1",
        f"v_lshlrev_b32_sdwa v{r.NA}, 5, v{r.K} {SDWA} src1_sel:BYTE_0",
    ]
    return o
def k_reads(r, tile_off):
    o = tile_off * 384 + 8
    return [f"ds_read_b32 v{r.K}, v{r.A1a} offset:{o}",
            f"ds_read2_b32 {v(r.K4,2)}, v{r.A2a} offset0:{o//4} offset1:{o//4+3}",
            f"ds_read2_b32 {v(r.K4+2,2)}, v{r.A2a} offset0:{o//4+6} offset1:{o//4+9}"]
def pd_read(r): return [f"ds_read_b128 {v(r.PD,4)}, v{r.NA} offset:16"]
def dma_addr(r): return [f"v_and_or_b32 v{r.K4+k}, v{r.K4+k}, s{S_MSK}, v{r.XK+k}" for k in range(4)]
def dma_issue(r):
    so = [f"s{S_SO0}", f"s{S_SO1}", f"s{S_SO2}", "0"]
    return [f"buffer_load_dwordx4 v{r.K4+k}, {s(SR_HD,4)}, {so[k]} offen offset:{1024*k} lds" for k in range(4)]
def h_reads(r): return [f"ds_read_b128 {v(r.H+4*k,4)}, v{r.HA+k}" for k in range(4)]
def ea_read(r, tile_off):
    o = tile_off * 96
    return [f"ds_read2_b32 {v(r.XM,2)}, v{r.A1a} offset0:{o} offset1:{o+1}"]
def aw_reads(r, nb):
    return [f"s_add_u32 s{S_TMP}, s{nb}, 4",
            f"s_lshr_b32 s{S_TMP}, s{S_TMP}, 3",
            f"s_lshl_b32 s{S_TMP}, s{S_TMP}, 10",
            f"s_lshr_b32 s{S_TMP2}, s{nb}, 3",
            f"s_lshl_b32 s{S_TMP2}, s{S_TMP2}, 10",
            f"v_add_u32 v{r.t2}, s{S_TMP}, v{r.AWl}",
            f"v_add_u32 v{r.t3}, s{S_TMP2}, v{r.AWl}",
            f"s_mov_b64 exec, {s(S_HI,2)}",
            f"ds_read_b64 {v(r.BW,2)}, v{r.t2}",
            f"ds_read_b64 {v(r.BW+2,2)}, v{r.t3} offset:8",
            f"ds_read_b64 {v(r.BW+4,2)}, v{r.t2} offset:512",
            f"ds_read_b64 {v(r.BW+6,2)}, v{r.t3} offset:520",
            "s_mov_b64 exec, -1"]
def s_set(r):
    return [f"s_bfm_b64 exec, s{S_CNT}, 0", f"ds_write_b64 v{r.SA}, {v(r.PQ,2)}", "s_mov_b64 exec, -1"]
def s_reads(r):
    return [f"ds_read_b64_tr_b16 {v(r.S,2)}, v{r.TR0}",
            f"ds_read_b64_tr_b16 {v(r.S+2,2)}, v{r.TR1}",
            f"ds_read_b64_tr_b16 {v(r.S+4,2)}, v{r.TR0} offset:1024",
            f"ds_read_b64_tr_b16 {v(r.S+6,2)}, v{r.TR1} offset:1024",
            f"ds_write2_b32 v{r.SA}, v{r.Zero}, v{r.Zero} offset0:0 offset1:1"]

def flush_addr(r):
    o = [f"ds_read_b128 {v(r.T+4*q,4)}, v{r.WXa} offset:{16*q}" for q in range(4)]
    o += [f"ds_read_b128 {v(r.D0+4*q,4)}, v{r.WXa} offset:{64+16*q}" for q in range(4)]
    o += [f"s_lshr_b32 s{S_TMP}, s{S_NBP}, 3",
          f"s_mul_i32 s{S_TMP}, s{S_TMP}, {8*ACC_ROW}",
          f"s_bitcmp1_b32 s{S_NBP}, 2",
          f"s_cselect_b32 s{S_TMP2}, {8*ACC_ROW}, 0",
          f"v_and_b32 v{r.t3}, s{S_TMP2}, v{r.ML}",
          f"v_add3_u32 v{r.t2}, v{r.FlM}, v{r.t3}, s{S_TMP}",
          f"v_add3_u32 v{r.t3}, v{r.FlP}, v{r.t3}, s{S_TMP}"]
    return o
def flush_dot(r):
    o = [f"v_pk_mul_f32 {v(r.T,2)}, {v(r.T,2)}, {v(r.A0,2)}", f"v_pk_mul_f32 {v(r.D0,2)}, {v(r.D0,2)}, {v(r.A1,2)}"]
    for i in range(2, 16, 2):
        o.append(f"v_pk_fma_f32 {v(r.T,2)}, {v(r.T+i,2)}, {v(r.A0+i,2)}, {v(r.T,2)}")
        o.append(f"v_pk_fma_f32 {v(r.D0,2)}, {v(r.D0+i,2)}, {v(r.A1+i,2)}, {v(r.D0,2)}")
    o += [f"v_pk_add_f32 {v(r.T,2)}, {v(r.T,2)}, {v(r.D0,2)}",
          f"v_add_f32 v{r.t4}, v{r.T}, v{r.T+1}", f"v_add_f32 v{r.t5}, v{r.T}, v{r.T+1}", "s_nop 1",
          f"v_permlane32_swap_b32 v{r.t4}, v{r.t5}", "s_nop 1", f"v_add_f32 v{r.t4}, v{r.t4}, v{r.t5}"]
    return o
EX3 = f"s_and_b32 exec_lo, s{S_RM}, 0x88888888\ns_mov_b32 exec_hi, exec_lo"
EXP = f"s_and_b32 exec_lo, s{S_RM}, 0x77777777\ns_mov_b32 exec_hi, 0"
def acc_zero(r, masked):
    o = [f"s_mov_b32 exec_lo, s{S_RM}\ns_mov_b32 exec_hi, s{S_RM}"] if masked else []
    o += [f"v_mov_b64 {v(r.A0+i,2)}, 0" for i in range(0, 32, 2)]
    if masked: o.append("s_mov_b64 exec, -1")
    return o
def flush_plain(r):
    o = flush_addr(r) + [EX3]
    o += [f"ds_write_b128 v{r.t2}, {v(r.A0+4*q,4)} offset:{32*q}" for q in range(8)]
    o += ["s_mov_b64 exec, -1", "s_waitcnt lgkmcnt(8)"] + flush_dot(r)
    o += [EXP, f"ds_write_b32 v{r.t3}, v{r.t4}"] + acc_zero(r, True)
    return o
def flush_atomic(r):
    o = [EX3]
    for t, A in ((0, r.A0), (1, r.A1)):
        for i in range(16):
            o.append(f"ds_add_f32 v{r.t2}, v{A+i} offset:{(32*t + 8*(i>>2) + (i&3))*4}")
    o += [EXP, f"ds_add_f32 v{r.t3}, v{r.t4}", "s_mov_b64 exec, -1"]
    return o
def rmw_reads(r):
    return [EX3] + [f"ds_read_b128 {v(r.D0+4*q,4)}, v{r.t2} offset:{32*q}" for q in range(8)] + \
           [EXP, f"ds_read_b32 v{r.t5}, v{r.t3}", "s_mov_b64 exec, -1"]
def rmw_writes(r):
    o = [EX3]
    for q in range(8):
        o += ["s_waitcnt lgkmcnt(8)",
              f"v_pk_add_f32 {v(r.D0+4*q,2)}, {v(r.D0+4*q,2)}, {v(r.A0+4*q,2)}",
              f"v_pk_add_f32 {v(r.D0+4*q+2,2)}, {v(r.D0+4*q+2,2)}, {v(r.A0+4*q+2,2)}",
              f"ds_write_b128 v{r.t2}, {v(r.D0+4*q,4)} offset:{32*q}"]
    o += [EXP, "s_waitcnt lgkmcnt(8)", f"v_add_f32 v{r.t4}, v{r.t4}, v{r.t5}", f"ds_write_b32 v{r.t3}, v{r.t4}", "s_mov_b64 exec, -1"]
    return o
def retire_mask(r):
    return [f"s_mov_b32 s{S_RM}, 0xffff",
            f"s_bitcmp1_b32 s{S_NBP}, 2",
            f"s_cselect_b32 s{S_RM}, 0xffff0000, s{S_RM}",
            f"s_add_u32 s{S_TMP}, s{S_NBP}, 4",
            f"s_cmp_eq_u32 s{S_TMP}, s{S_NB}",
            f"s_cselect_b32 s{S_RM}, s{S_RM}, -1"]

def gen():
    a = Asm(); r = alloc()
    t0, t1, t2, t3, t4, t5 = r.t0, r.t1, r.t2, r.t3, r.t4, r.t5
    T_DST, T_SRC, T_EA, T_POS, T_WE, T_WH, T_H, T_X = TS
    a.label(KNAME)
    DST = r.D0; SRC = r.D0 + 8; EA = r.D0 + 16; BINA = r.D0 + 32; RNK = r.D0 + 40
    V16, V32, L16 = r.V16, r.V8, r.L16
    POSR = r.PD
    S_CN = S_T0; S_O4 = S_NTL; S_O8 = S_CNT; S_N0 = S_SEG; S_NN = S_D; S_BUD = S_I
    MA = [80, 82, 84, 86]
    e_, hh_ = t0, t1
    a(f"""
    s_cmp_ge_u32 s2, {NB}
    s_cbranch_scc1 L_done
    """)
    if opt.thr: a(f"s_memrealtime {s(S_ST,2)}")
    a(f"""
    s_load_dwordx16 s[4:19], s[0:1], 0
    s_and_b32 s3, s2, 7
    s_lshl_b32 s3, s3, 5
    s_lshr_b32 s2, s2, 3
    s_or_b32 s2, s2, s3
    s_load_dwordx4 s[20:23], s[0:1], 64
    s_load_dwordx2 s[24:25], s[0:1], 80
    v_lshrrev_b32 v{t0}, 6, v0
    v_and_b32 v{r.lane}, 63, v0
    v_readfirstlane_b32 s{S_V}, v{t0}
    v_mov_b32 v{r.Zero}, 0
    v_lshlrev_b32 v{V16}, 4, v0
    v_lshlrev_b32 v{V32}, 5, v0
    v_lshlrev_b32 v{L16}, 4, v{r.lane}
    v_mov_b64 {v(r.T,2)}, 0
    v_mov_b64 {v(r.T+2,2)}, 0
    s_mul_i32 s{S_O4}, s2, {CH*4}
    s_lshl_b32 s{S_O8}, s{S_O4}, 1
    s_mov_b32 s{S_CN}, {CH}
    s_cmp_eq_u32 s2, {NB-1}
    s_cselect_b32 s{S_CN}, {E-(NB-1)*CH}, s{S_CN}
    s_lshl_b32 s3, s{S_CN}, 2
    s_add_u32 s3, s3, s{S_O4}
    s_lshl_b32 s{S_TMP3}, s3, 1
    s_add_u32 s{S_TMP}, s{S_O4}, 8192
    s_add_u32 s{S_TMP2}, s{S_O8}, 16384
    s_lshl_b32 s{S_MODE}, s2, 10
    s_mul_i32 s{S_N0}, s2, {BN}
    v_and_b32 v{t2}, 127, v0
    v_add_u32 v{t2}, s{S_N0}, v{t2}
    v_mul_u32_u24 v{t2}, 6, v{t2}
    v_and_b32 v{POSR+2}, 2, v{t2}
    v_lshlrev_b32 v{POSR+2}, 3, v{POSR+2}
    v_and_b32 v{t2}, -4, v{t2}
    v_and_b32 v{t4}, 3, v{r.lane}
    v_bfe_u32 v{t5}, v{r.lane}, 2, 3
    v_lshl_or_b32 v{t4}, v{t5}, 3, v{t4}
    v_lshrrev_b32 v{t5}, 5, v{r.lane}
    v_lshl_or_b32 v{t4}, v{t5}, 2, v{t4}
    v_lshlrev_b32 v{t4}, 1, v{t4}
    s_waitcnt lgkmcnt(0)
    """)
    if opt.tw:
        a(f"""
        s_cmp_lg_u32 s{S_V}, 7
        s_cbranch_scc1 L_notw
        v_min_u32 v{t2}, 6, v{r.lane}
        v_lshlrev_b32 v{t2}, 21, v{t2}
        v_mov_b32 v{t4}, {10300000 & ~127}
        v_cmp_eq_u32 vcc, 5, v{r.lane}
        s_mul_i32 s{S_D}, s2, {BN*128}
        s_nop 0
        v_cndmask_b32 v{t2}, v{t2}, v{t4}, vcc
        v_mov_b32 v{t4}, {14500000 & ~127}
        v_cmp_le_u32 vcc, 6, v{r.lane}
        v_and_b32 v{t5}, 1, v{r.lane}
        s_nop 0
        v_cndmask_b32 v{t2}, v{t2}, v{t4}, vcc
        global_load_dword v{r.DM}, v{t2}, {s(P_WS,2)} sc1
        v_mul_u32_u24 v{t2}, 3199872, v{t5}
        global_load_dword v{r.DM}, v{t2}, {s(P_H,2)}
        v_mov_b32 v{t4}, s{S_D}
        v_cmp_eq_u32 vcc, 0, v{t5}
        v_mov_b32 v{t2}, 3349888
        s_nop 0
        v_cndmask_b32 v{t2}, v{t2}, v{t4}, vcc
        global_load_dword v{r.DM}, v{t2}, {s(P_OUT,2)} sc1
        L_notw:
        """)
    a(srd(SR_TAB, P_WS, NB * 1024, WS_TAB))
    a(f"s_cmp_lg_u32 s{S_V}, 0\ns_cbranch_scc1 L_noclr\nbuffer_store_dwordx4 {v(r.T,4)}, v{L16}, {s(SR_TAB,4)}, s{S_MODE} offen {opt.st}\nL_noclr:")
    a(srd(T_POS, P_POS, N * 6)); a(srd(T_X, P_WX, 128))
    a(f"""
    s_cmp_gt_u32 s{S_V}, 4
    s_cbranch_scc1 L_nopos
    s_cmp_eq_u32 s{S_V}, 4
    s_cbranch_scc1 L_wx
    buffer_load_dwordx2 {v(POSR,2)}, v{t2}, {s(T_POS,4)}, 0 offen
    s_branch L_nopos
    L_wx:
    buffer_load_ushort v{POSR+3}, v{t4}, {s(T_X,4)}, 0 offen
    L_nopos:
    """)
    a(srd(T_DST, P_DST, "s3"))
    a(f"""
    v_lshlrev_b32 v{r.V4}, 3, v0
    s_add_u32 s{S_TMP2}, s{S_O4}, 4096
    buffer_load_dwordx2 {v(DST,2)}, v{r.V4}, {s(T_DST,4)}, s{S_O4} offen {opt.ld}
    buffer_load_dwordx2 {v(DST+2,2)}, v{r.V4}, {s(T_DST,4)}, s{S_TMP2} offen {opt.ld}
    s_add_u32 s{S_TMP2}, s{S_TMP}, 4096
    buffer_load_dwordx2 {v(DST+4,2)}, v{r.V4}, {s(T_DST,4)}, s{S_TMP} offen {opt.ld}
    buffer_load_dwordx2 {v(DST+6,2)}, v{r.V4}, {s(T_DST,4)}, s{S_TMP2} offen {opt.ld}
    """)
    a(srd(T_SRC, P_SRC, "s3")); a(srd(T_EA, P_EA, f"s{S_TMP3}"))
    if not opt.late:
        a(f"""
        buffer_load_dwordx2 {v(SRC+0,2)}, v{r.V4}, {s(T_SRC,4)}, s{S_O4} offen {opt.ld}
        buffer_load_dwordx4 {v(EA+0,4)}, v{V16}, {s(T_EA,4)}, s{S_O8} offen {opt.ld}
        s_add_u32 s{S_O4}, s{S_O4}, 4096
        s_add_u32 s{S_O8}, s{S_O8}, 8192
        buffer_load_dwordx2 {v(SRC+2,2)}, v{r.V4}, {s(T_SRC,4)}, s{S_O4} offen {opt.ld}
        buffer_load_dwordx4 {v(EA+4,4)}, v{V16}, {s(T_EA,4)}, s{S_O8} offen {opt.ld}
        s_add_u32 s{S_O4}, s{S_O4}, 4096
        s_add_u32 s{S_O8}, s{S_O8}, 8192
        buffer_load_dwordx2 {v(SRC+4,2)}, v{r.V4}, {s(T_SRC,4)}, s{S_O4} offen {opt.ld}
        buffer_load_dwordx4 {v(EA+8,4)}, v{V16}, {s(T_EA,4)}, s{S_O8} offen {opt.ld}
        s_add_u32 s{S_O4}, s{S_O4}, 4096
        s_add_u32 s{S_O8}, s{S_O8}, 8192
        buffer_load_dwordx2 {v(SRC+6,2)}, v{r.V4}, {s(T_SRC,4)}, s{S_O4} offen {opt.ld}
        buffer_load_dwordx4 {v(EA+12,4)}, v{V16}, {s(T_EA,4)}, s{S_O8} offen {opt.ld}
        """)
    if opt.stamp or opt.diag: a(f"v_mov_b32 v{r.ST}, 0")
    stamp(a, r, 0, True); stamp(a, r, 1)
    a(f"""
    v_add_u32 v{t3}, {L_HIST}, v{L16}
    ds_write_b128 v{t3}, {v(r.T,4)}
    s_lshl_b32 s{S_B4}, s2, 2
    s_lshr_b32 s{S_RT}, s{S_V}, 1
    s_and_b32 s{S_T}, s{S_V}, 1
    """)
    NY = 10
    a(f"""
    s_add_u32 s{SR_HD}, s{P_WS}, {WS_B-3072}
    s_addc_u32 s{SR_HD+1}, s{P_WS+1}, 0
    s_mov_b32 s{SR_HD+2}, {N*128+3072}
    s_mov_b32 s{SR_HD+3}, 0x00020000
    """)
    a(srd(SR_REC, P_WS, NB * REC_STRIDE)); a(srd(SR_P4, P_WS, N, WS_P4))
    a(f"""
    s_and_b32 s{SR_P4+1}, s{SR_P4+1}, 0xffff
    s_or_b32 s{SR_P4+1}, s{SR_P4+1}, 0x80000
    s_sub_u32 s{S_NN}, {N}, s{S_N0}
    s_min_u32 s{S_NN}, s{S_NN}, {BN}
    s_lshl_b32 s{S_TMP}, s{S_N0}, 7
    s_lshl_b32 s{S_TMP2}, s{S_NN}, 7
    """)
    a(srd(SR_OUT, P_OUT, f"s{S_TMP2}", f"s{S_TMP}"))
    a(f"s_mul_i32 s{S_TMP}, s{S_N0}, 6\ns_add_u32 s{S_TMP}, s{S_TMP}, {OUT_POS}\ns_mul_i32 s{S_TMP2}, s{S_NN}, 6")
    a(srd(SR_OUTP, P_OUT, f"s{S_TMP2}", f"s{S_TMP}"))
    T_RO = T_DST; T_DBG = T_SRC
    if opt.late:
        a(f"""
        buffer_load_dwordx2 {v(SRC+0,2)}, v{r.V4}, {s(T_SRC,4)}, s{S_O4} offen {opt.ld}
        buffer_load_dwordx4 {v(EA+0,4)}, v{V16}, {s(T_EA,4)}, s{S_O8} offen {opt.ld}
        s_add_u32 s{S_O4}, s{S_O4}, 4096
        s_add_u32 s{S_O8}, s{S_O8}, 8192
        buffer_load_dwordx2 {v(SRC+2,2)}, v{r.V4}, {s(T_SRC,4)}, s{S_O4} offen {opt.ld}
        buffer_load_dwordx4 {v(EA+4,4)}, v{V16}, {s(T_EA,4)}, s{S_O8} offen {opt.ld}
        s_add_u32 s{S_O4}, s{S_O4}, 4096
        s_add_u32 s{S_O8}, s{S_O8}, 8192
        buffer_load_dwordx2 {v(SRC+4,2)}, v{r.V4}, {s(T_SRC,4)}, s{S_O4} offen {opt.ld}
        buffer_load_dwordx4 {v(EA+8,4)}, v{V16}, {s(T_EA,4)}, s{S_O8} offen {opt.ld}
        s_add_u32 s{S_O4}, s{S_O4}, 4096
        s_add_u32 s{S_O8}, s{S_O8}, 8192
        buffer_load_dwordx2 {v(SRC+6,2)}, v{r.V4}, {s(T_SRC,4)}, s{S_O4} offen {opt.ld}
        buffer_load_dwordx4 {v(EA+12,4)}, v{V16}, {s(T_EA,4)}, s{S_O8} offen {opt.ld}
        """)
    a(f"s_mul_i32 s{S_TMP}, s2, {REC_STRIDE}\ns_mul_i32 s{S_TMP2}, s{S_CN}, 12")
    a(srd(T_RO, P_WS, f"s{S_TMP2}", f"s{S_TMP}")); a(srd(T_DBG, P_DBG, 256))
    ONE = r.PQ
    a(f"""
    v_mov_b32 v{ONE}, 1
    s_lshr_b32 s3, s{S_CN}, 1
    v_cmp_gt_u32 {s(MA[0],2)}, s3, v0
    v_add_u32 v{t2}, 512, v0
    v_cmp_gt_u32 {s(MA[1],2)}, s3, v{t2}
    v_add_u32 v{t2}, 1024, v0
    v_cmp_gt_u32 {s(MA[2],2)}, s3, v{t2}
    v_add_u32 v{t2}, 1536, v0
    v_cmp_gt_u32 {s(MA[3],2)}, s3, v{t2}
    """)
    a(f"""
    s_mov_b32 s{S_C}, 0x{f2u(-LOG2E):08x}
    s_mov_b32 s{S_C+1}, 0x{f2u(-LOG2E):08x}
    s_mov_b32 s{S_ONE}, 1.0
    s_mov_b32 s{S_ONE+1}, 1.0
    s_mov_b32 s{S_MODE}, 0
    s_mov_b32 s{S_BUD}, 0x40000
    """)
    nonlocal_z = [r.T]
    def zero_region(base, size):
        assert base % 16 == 0 and size % 16 == 0
        full = size // 8192; rem = size % 8192
        a(f"v_add_u32 v{t3}, {base}, v{V16}")
        for k in range(full):
            a(f"ds_write_b128 v{t3}, {v(nonlocal_z[0],4)} offset:{k*8192}")
        if rem:
            a(f"v_cmp_gt_u32 vcc, {rem//16}, v0\ns_and_saveexec_b64 {s(S_D,2)}, vcc")
            a(f"ds_write_b128 v{t3}, {v(nonlocal_z[0],4)} offset:{full*8192}\ns_mov_b64 exec, -1")
    a(f"""
    ds_write_b128 v{L16}, {v(nonlocal_z[0],4)} offset:{L_CNT}
    v_mov_b32 v{t3}, {L_FLAG}
    ds_write_b128 v{t3}, {v(nonlocal_z[0],4)}
    """)
    zero_region(L_SIMG, 8 * 2048)
    JJ = r.SA; LB = r.HA + 0; J16 = r.HA + 1
    a(f"""
    v_and_b32 v{e_}, 31, v{r.lane}
    v_lshrrev_b32 v{hh_}, 5, v{r.lane}
    s_lshl_b32 s{S_TMP}, s{S_V}, 12
    s_add_u32 s{S_TMP}, s{S_TMP}, {L_RING}
    s_mov_b32 m0, s{S_TMP}
    v_and_b32 v{t2}, 3, v{e_}
    v_lshlrev_b32 v{t3}, 10, v{t2}
    v_lshrrev_b32 v{t4}, 2, v{e_}
    v_lshl_add_u32 v{t3}, v{t4}, 7, v{t3}
    v_add_u32 v{t3}, s{S_TMP}, v{t3}
    v_bfe_u32 v{t4}, v{e_}, 3, 1
    v_lshl_or_b32 v{t2}, v{t4}, 2, v{t2}
    v_xor_b32 v{t2}, v{t2}, v{hh_}
    """)
    for k in range(4):
        a(f"v_xor_b32 v{t4}, {2*k}, v{t2}\nv_lshl_add_u32 v{r.HA+k}, v{t4}, 4, v{t3}")
    a(f"""
    v_and_b32 v{t2}, 7, v{r.lane}
    v_bfe_u32 v{t3}, v{r.lane}, 4, 1
    v_lshlrev_b32 v{t3}, 2, v{t3}
    v_xor_b32 v{t2}, v{t2}, v{t3}
    """)
    for k in range(4):
        a(f"v_xor_b32 v{t4}, {k}, v{t2}\nv_lshlrev_b32 v{r.XK+k}, 4, v{t4}")
    JJ = r.SA; LB = r.A1a; J16 = r.A2a; MX = r.NA; TA = r.Desc
    LP = r.K; LPT = r.PI
    a(f"""
    s_lshl_b32 s{S_TMP}, s{S_V}, 11
    s_add_u32 s{S_TMP}, s{S_TMP}, {L_SIMG}
    v_bfe_u32 v{t2}, v{e_}, 1, 3
    v_lshlrev_b32 v{t2}, 3, v{t2}
    v_lshl_add_u32 v{t2}, v{e_}, 6, v{t2}
    v_add_u32 v{r.SB}, s{S_TMP}, v{t2}
    v_bfe_u32 v{t2}, v{r.lane}, 2, 2
    v_lshl_add_u32 v{t2}, v{hh_}, 2, v{t2}
    v_bfe_u32 v{t3}, v{r.lane}, 4, 1
    v_and_b32 v{t4}, 3, v{r.lane}
    v_lshl_or_b32 v{t3}, v{t3}, 2, v{t4}
    v_lshlrev_b32 v{LP}, 3, v{t3}
    v_bfe_u32 v{t4}, v{r.lane}, 2, 2
    v_lshl_add_u32 v{LP}, v{t4}, 7, v{LP}
    v_lshrrev_b32 v{t4}, 1, v{t2}
    v_xor_b32 v{t3}, v{t3}, v{t4}
    v_lshlrev_b32 v{t2}, 6, v{t2}
    v_add_u32 v{t2}, s{S_TMP}, v{t2}
    v_lshl_add_u32 v{r.TR0}, v{t3}, 3, v{t2}
    v_xor_b32 v{t3}, 4, v{t3}
    v_lshl_add_u32 v{r.TR1}, v{t3}, 3, v{t2}
    v_add_u32 v{r.TR1}, 512, v{r.TR1}
    v_lshlrev_b32 v{t2}, 4, v{e_}
    v_add_u32 v{r.AWl}, {L_AT}, v{t2}
    v_lshrrev_b32 v{t2}, 2, v{e_}
    v_mul_u32_u24 v{t2}, {ACC_ROW}, v{t2}
    v_add_u32 v{t2}, {L_ACC}, v{t2}
    v_lshl_add_u32 v{r.FlM}, v{hh_}, 4, v{t2}
    v_and_b32 v{t3}, 3, v{e_}
    v_lshl_add_u32 v{r.FlP}, v{t3}, 2, v{t2}
    v_add_u32 v{r.FlP}, 256, v{r.FlP}
    v_lshlrev_b32 v{t2}, 7, v{hh_}
    v_add_u32 v{r.WXa}, {L_WX}, v{t2}
    v_bfe_u32 v{t2}, v{e_}, 4, 1
    v_add_u32 v{r.ML}, -1, v{t2}
    v_lshrrev_b32 v{t5}, 4, v0
    v_lshlrev_b32 v{TA}, 10, v{t5}
    v_and_b32 v{t2}, 15, v0
    v_add_u32 v{JJ}, 0x8000, v{t2}
    v_add_u32 v{J16}, 0x8010, v{t2}
    s_mov_b32 s{S_TMP}, {REC_STRIDE}
    v_mul_lo_u32 v{LB}, v{t5}, s{S_TMP}
    v_mad_u32_u24 v{LB}, v{t2}, 12, v{LB}
    v_mov_b32 v{MX}, 0
    v_lshrrev_b32 v{t2}, 3, v{r.lane}
    v_and_b32 v{t3}, 7, v{r.lane}
    v_lshrrev_b32 v{t4}, 4, v{r.lane}
    s_lshl_b32 s3, s{S_T}, 2
    v_or_b32 v{t4}, s3, v{t4}
    v_xor_b32 v{t3}, v{t3}, v{t4}
    v_lshlrev_b32 v{t3}, 4, v{t3}
    v_lshl_add_u32 v{r.HR}, v{t2}, 7, v{t3}
    """)
    a(f"s_add_u32 s3, s{S_N0}, 104\ns_min_u32 s3, s3, {N}\ns_lshl_b32 s3, s3, 7")
    a(srd(T_WE, P_WE, 133 * 128)); a(srd(SR_WH, P_WH, 128 * 128)); a(srd(T_H, P_H, "s3"))
    a(f"""
    s_mov_b32 s{S_TMP}, 5350
    s_mov_b32 s{S_TMP2}, {BN}
    s_mov_b32 s3, {L_HIST}
    s_waitcnt lgkmcnt(0)
    s_barrier
    s_cmp_lg_u32 s{S_V}, 0
    s_cbranch_scc1 L_noflag
    v_mov_b32 v{t3}, s2
    s_waitcnt vmcnt(13)
    s_mov_b64 exec, 1
    buffer_store_byte v{ONE}, v{t3}, {s(T_DBG,4)}, 0 offen sc1
    s_mov_b64 exec, -1
    L_noflag:
    """)
    stamp(a, r, 2)
    for half in range(4):
        a(f"s_waitcnt vmcnt({11 - half})\ns_mov_b64 exec, {s(MA[half],2)}")
        for k in range(2 * half, 2 * half + 2):
            a(f"""
            v_mul_u32_u24 v{BINA+k}, s{S_TMP}, v{DST+k}
            v_lshrrev_b32 v{BINA+k}, 19, v{BINA+k}
            v_mul_u32_u24 v{t2}, s{S_TMP2}, v{BINA+k}
            v_lshl_add_u32 v{BINA+k}, v{BINA+k}, 2, s3
            ds_add_rtn_u32 v{RNK+k}, v{BINA+k}, v{ONE}
            v_sub_u32 v{DST+k}, v{DST+k}, v{t2}
            """)
    C = r.T; TE = r.M
    a(f"""
    s_mov_b64 exec, -1
    v_add_u32 v{t2}, {L_HIST}, v{L16}
    s_waitcnt lgkmcnt(0)
    s_barrier
    """)
    stamp(a, r, 3)
    a(f"""
    ds_read_b128 {v(C,4)}, v{t2}
    s_lshl_b32 s{S_TMP}, s{S_V}, 10
    s_add_u32 s{S_TMP2}, s{S_TMP}, 8192
    s_cmp_lg_u32 s{S_V}, 1
    s_cbranch_scc1 L_nowe
    s_mov_b32 m0, {L_WE+16384}
    s_mov_b32 s3, 16384
    buffer_load_dwordx4 v{L16}, {s(T_WE,4)}, s3 offen lds
    L_nowe:
    s_add_u32 m0, s{S_TMP}, {L_WE}
    s_lshl_b32 s3, s{S_N0}, 7
    buffer_load_dwordx4 v{L16}, {s(T_WE,4)}, s{S_TMP} offen lds
    s_add_u32 m0, s{S_TMP}, {L_WE+8192}
    s_add_u32 s3, s3, s{S_TMP}
    buffer_load_dwordx4 v{L16}, {s(T_WE,4)}, s{S_TMP2} offen lds
    s_add_u32 m0, s{S_TMP}, {L_HST}
    s_add_u32 s{S_TMP3}, s3, 8192
    buffer_load_dwordx4 v{r.HR}, {s(T_H,4)}, s3 offen lds
    s_add_u32 m0, s{S_TMP}, {L_HST+8192}
    s_lshl_b32 s{S_TMP}, s{S_V}, 12
    buffer_load_dwordx4 v{r.HR}, {s(T_H,4)}, s{S_TMP3} offen lds
    s_add_u32 m0, s{S_TMP}, {L_RING}
    s_waitcnt lgkmcnt(0)
    v_add_u32 v{C+5}, v{C}, v{C+1}
    v_add_u32 v{C+6}, v{C+5}, v{C+2}
    v_add_u32 v{C+7}, v{C+6}, v{C+3}
    v_mov_b32 v{C+4}, v{C+7}
    """)
    a(wave_scan(C + 4))
    a(f"""
    v_sub_u32 v{C+8}, v{C+4}, v{C+7}
    v_add_u32 v{C+9}, v{C+8}, v{C}
    v_add_u32 v{C+10}, v{C+8}, v{C+5}
    v_add_u32 v{C+11}, v{C+8}, v{C+6}
    ds_write_b128 v{t2}, {v(C+8,4)} offset:1024
    """)
    for half in range(4):
        a(f"s_mov_b64 exec, {s(MA[half],2)}")
        for k in range(2 * half, 2 * half + 2):
            a(f"ds_read_b32 v{BINA+k}, v{BINA+k} offset:1024")
    TEV = r.A1 + 12
    a("s_mov_b64 exec, -1")
    for k in range(4):
        a(f"v_mul_u32_u24 v{TEV+k}, 12, v{C+8+k}\nv_lshl_or_b32 v{TEV+k}, v{C+k}, 16, v{TEV+k}\nv_or_b32 v{TEV+k}, 0x80000000, v{TEV+k}")
    if opt.fine: stamp(a, r, 18); stamp(a, r, 19)
    for half in range(4):
        a(f"s_waitcnt vmcnt({10 - 2*half}) lgkmcnt({6 + 2*half})\ns_mov_b64 exec, {s(MA[half],2)}")
        for k in range(2 * half, 2 * half + 2):
            a(f"""
            v_add_lshl_u32 v{BINA+k}, v{BINA+k}, v{RNK+k}, 4
            v_lshl_or_b32 v{SRC+k}, v{SRC+k}, 7, v{DST+k}
            ds_write_b64 v{BINA+k}, {v(EA+2*k,2)} offset:{L_STG}
            ds_write_b32 v{BINA+k}, v{SRC+k} offset:{L_STG+8}
            """)
    if opt.fine: stamp(a, r, 20)
    a("s_mov_b64 exec, -1")
    a(f"""
    s_mov_b32 s{S_NL}, 0x0000bf80
    s_mov_b32 s{S_NH}, 0xbf800000
    s_mov_b32 s{S_MSK}, 0xffffff80
    s_mov_b32 s{S_SO0}, 3072
    s_mov_b32 s{S_SO1}, 2048
    s_mov_b32 s{S_SO2}, 1024
    s_mov_b32 s{S_HI}, 0
    s_mov_b32 s{S_HI+1}, -1
    v_mul_u32_u24 v{t2}, 12, v0
    v_add_u32 v{t5}, {L_WE + 128*128}, v{LP}
    v_lshl_add_u32 v{LP}, v{hh_}, 10, v{LP}
    s_lshl_b32 s{S_TMP}, s{S_T}, 6
    s_add_u32 s{S_TMP}, s{S_TMP}, {L_ACC}
    v_add_u32 v{LPT}, s{S_TMP}, v{LP}
    s_lshl_b32 s{S_TMP2}, s{S_RT}, 11
    v_add_u32 v{t4}, s{S_TMP2}, v{LPT}
    """)
    if opt.fine: stamp(a, r, 21)
    a("s_waitcnt lgkmcnt(0)\ns_barrier")
    stamp(a, r, 4)
    CO = r.D0; DBGV = r.A1 + 8
    for k in range(7):
        a(f"ds_read_b96 {v(CO+4*k,3)}, v{V16} offset:{L_STG + k*8192}")
    for k in range(7):
        a(f"s_mov_b32 s3, {k*6144}\ns_waitcnt lgkmcnt({6-k})")
        a(f"buffer_store_dwordx3 {v(CO+4*k,3)}, v{t2}, {s(T_RO,4)}, s3 offen {opt.st}")
    a(f"v_lshlrev_b32 v{DBGV+1}, 2, v{r.lane}\ns_cmp_lg_u32 s{S_V}, 0\ns_cbranch_scc1 L_nodbg\nbuffer_load_dword v{DBGV}, v{DBGV+1}, {s(T_DBG,4)}, 0 offen sc1\nL_nodbg:")
    stamp(a, r, 5)
    UP = r.W2 + 4; Q5 = r.W2 + 16; NTD = r.W2 + 24; W1F = r.T; AD = r.XM; ID = r.W2 + 16
    HAD = r.U; W2F = r.M; BD = r.XM; BO = r.W2; T_BO = 80
    a(f"""
    s_lshl_b32 s{S_TMP}, s{S_RT}, 12
    s_add_u32 s{S_TMP}, s{S_TMP}, {L_HST}
    v_lshlrev_b32 v{t2}, 7, v{e_}
    v_add_u32 v{t2}, s{S_TMP}, v{t2}
    v_bfe_u32 v{t3}, v{e_}, 1, 3
    v_xor_b32 v{t4}, v{t3}, v{hh_}
    """)
    for k in range(4):
        a(f"v_xor_b32 v{HAD+k}, {2*k}, v{t4}\nv_lshl_add_u32 v{HAD+k}, v{HAD+k}, 4, v{t2}")
    a(f"s_lshl_b32 s{S_TMP}, s{S_T}, 2\nv_xor_b32 v{t4}, s{S_TMP}, v{t3}\nv_lshl_add_u32 v{t2}, v{hh_}, 3, v{t2}")
    for g in range(4):
        a(f"v_xor_b32 v{HAD+4+g}, {g}, v{t4}\nv_lshl_add_u32 v{HAD+4+g}, v{HAD+4+g}, 4, v{t2}")
    a(f"""
    s_mul_i32 s{S_TMP}, s{S_RT}, {32*144}
    s_lshl_b32 s{S_TMP2}, s{S_T}, 6
    s_add_u32 s{S_TMP}, s{S_TMP}, s{S_TMP2}
    v_mul_u32_u24 v{t2}, 144, v{e_}
    v_lshl_add_u32 v{t2}, v{hh_}, 3, v{t2}
    v_add_u32 v{HAD+8}, s{S_TMP}, v{t2}
    s_mul_i32 s{S_TMP}, s{S_V}, {16*144}
    v_lshrrev_b32 v{t2}, 3, v{r.lane}
    v_mul_u32_u24 v{t2}, 144, v{t2}
    v_and_b32 v{t3}, 7, v{r.lane}
    v_lshl_add_u32 v{t2}, v{t3}, 4, v{t2}
    v_add_u32 v{HAD+9}, s{S_TMP}, v{t2}
    s_lshl_b32 s{S_TMP}, s{S_N0}, 7
    s_add_u32 s{S_TMP}, s{S_TMP}, {WS_B}
    """)
    a(srd(T_BO, P_WS, f"s{SR_OUT+2}", f"s{S_TMP}"))
    a(f"s_lshl_b32 s3, s{S_V}, 11\ns_waitcnt vmcnt(7)\ns_barrier")
    for k in range(4):
        a(f"ds_read_b128 {v(r.H+4*k,4)}, v{HAD+k}")
        a(f"ds_read_b64_tr_b16 {v(W2F+4*k,2)}, v{LPT} offset:{16384+2048*k}\nds_read_b64_tr_b16 {v(W2F+4*k+2,2)}, v{LPT} offset:{16384+2048*k+512}")
    for k in range(4):
        a(f"s_waitcnt lgkmcnt({9-3*k})")
        a(mfma(BD, W2F+4*k, r.H+4*k, BD if k else None))
    for t in range(2):
        a(f"ds_read_b64_tr_b16 {v(Q5+4*t,2)}, v{t5} offset:{128+64*t}\nds_read_b64_tr_b16 {v(Q5+4*t+2,2)}, v{t5} offset:{64*t}")
    for g in range(4):
        a(f"ds_read_b64 {v(r.HR+2*g,2)}, v{HAD+4+g}")
    a("s_nop 3")
    for g in range(4):
        x = BD + 4 * g
        a(f"""
        v_pk_mul_f32 {v(x,2)}, {v(x,2)}, {s(S_C,2)}
        v_pk_mul_f32 {v(x+2,2)}, {v(x+2,2)}, {s(S_C,2)}
        v_cvt_pk_bf16_f32 v{x}, v{x}, v{x+1}
        v_cvt_pk_bf16_f32 v{x+1}, v{x+2}, v{x+3}
        ds_write_b64 v{HAD+8}, {v(x,2)} offset:{L_REC+16*g}
        """)
    a(f"""
    s_waitcnt lgkmcnt(0)
    s_barrier
    ds_read_b128 {v(BO,4)}, v{HAD+9} offset:{L_REC}
    ds_read_b128 {v(BO+4,4)}, v{HAD+9} offset:{L_REC+8*144}
    s_waitcnt lgkmcnt(1)
    buffer_store_dwordx4 {v(BO,4)}, v{L16}, {s(T_BO,4)}, s3 offen {opt.st}
    s_waitcnt lgkmcnt(0)
    buffer_store_dwordx4 {v(BO+4,4)}, v{L16}, {s(T_BO,4)}, s3 offen offset:1024 {opt.st}
    """)
    for k in range(4):
        a(f"ds_read_b64_tr_b16 {v(W1F+4*k,2)}, v{LPT} offset:{8192+2048*k}\nds_read_b64_tr_b16 {v(W1F+4*k+2,2)}, v{LPT} offset:{8192+2048*k+512}")
    a(f"""
    v_alignbit_b32 v{r.PS}, v{POSR+1}, v{POSR}, v{POSR+2}
    v_lshrrev_b32 v{r.PS+1}, v{POSR+2}, v{POSR+1}
    v_and_b32 v{r.PS+1}, 0xffff, v{r.PS+1}
    v_add_u32 v{t3}, s{S_N0}, v0
    v_cmp_gt_u32 vcc, {BN}, v0
    s_and_saveexec_b64 {s(S_D,2)}, vcc
    buffer_store_dwordx2 {v(r.PS,2)}, v{t3}, {s(SR_P4,4)}, 0 idxen {opt.st}
    s_mov_b64 exec, -1
    v_and_b32 v{t2}, 1, v0
    v_lshlrev_b32 v{t2}, 4, v{t2}
    v_mov_b32 v{t3}, 0x3f80
    v_lshlrev_b32 v{t2}, v{t2}, v{t3}
    v_bfe_u32 v{t3}, v0, 1, 2
    """)
    for d in range(4):
        a(f"v_cmp_eq_u32 vcc, {d}, v{t3}\ns_nop 1\nv_cndmask_b32 v{NTD+d}, 0, v{t2}, vcc")
    a(f"""
    v_lshlrev_b32 v{NTD+4}, 16, v{r.PS}
    v_and_b32 v{NTD+5}, 0xffff0000, v{r.PS}
    v_lshlrev_b32 v{NTD+6}, 16, v{r.PS+1}
    v_and_b32 v{t3}, 7, v0
    v_lshlrev_b32 v{NTD+7}, 3, v{t3}
    v_lshlrev_b32 v{POSR+3}, 16, v{POSR+3}
    v_mul_f32 v{POSR+3}, 0x{f2u(-LN2):08x}, v{POSR+3}
    v_lshlrev_b32 v{t3}, 2, v{r.lane}
    v_add_u32 v{t3}, {L_WX}, v{t3}
    s_cmp_lg_u32 s{S_V}, 4
    s_cbranch_scc1 L_nowx
    ds_write_b32 v{t3}, v{POSR+3}
    L_nowx:
    s_cmp_ge_u32 s{S_V}, 4
    s_cbranch_scc1 L_nont
    ds_write_b128 v{V32}, {v(NTD,4)}
    ds_write_b128 v{V32}, {v(NTD+4,4)} offset:16
    L_nont:
    """)
    for t in range(2):
        x = Q5 + 4 * t; B = r.BW + 4 * t
        a(f"""
        v_lshlrev_b32 v{UP}, 16, v{x}
        v_and_b32 v{UP+1}, 0xffff0000, v{x}
        v_lshlrev_b32 v{UP+2}, 16, v{x+1}
        v_and_b32 v{UP+3}, 0xffff0000, v{x+1}
        v_lshlrev_b32 v{UP+4}, 16, v{x+2}
        v_pk_mul_f32 {v(UP,2)}, {v(UP,2)}, {s(S_C,2)}
        v_pk_mul_f32 {v(UP+2,2)}, {v(UP+2,2)}, {s(S_C,2)}
        v_mul_f32 v{UP+4}, s{S_C}, v{UP+4}
        v_cvt_pk_bf16_f32 v{B}, v{UP}, v{UP+1}
        v_cvt_pk_bf16_f32 v{B+1}, v{UP+2}, v{UP+3}
        v_cvt_pk_bf16_f32 v{UP+5}, v{UP+4}, v{UP+4}
        v_lshlrev_b32 v{UP+5}, 16, v{UP+5}
        v_sub_f32 v{UP+5}, v{UP+4}, v{UP+5}
        v_cvt_pk_bf16_f32 v{B+2}, v{UP+4}, v{UP+5}
        v_mov_b32 v{B+3}, 0
        """)
    a(f"v_lshrrev_b32 v{t2}, 3, v{e_}\nv_sub_u32 v{t2}, v{t2}, v{hh_}")
    for st in range(2):
        a(f"v_cmp_eq_u32 vcc, {2*st}, v{t2}\ns_nop 1")
        for d in range(4): a(f"v_cndmask_b32 v{ID+4*st+d}, 0, v{NTD+d}, vcc")
    stamp(a, r, 6)
    a(f"""
    s_lshl_b32 s3, s2, 10
    s_mov_b32 s{S_TMP}, 0x01010101
    s_waitcnt vmcnt(0) lgkmcnt(0)
    s_cmp_lg_u32 s{S_V}, 0
    s_cbranch_scc1 L_chkd
    L_chk:
    v_cmp_ne_u32 vcc, s{S_TMP}, v{DBGV}
    s_cbranch_vccz L_chkd
    s_sub_u32 s{S_BUD}, s{S_BUD}, 1
    s_cbranch_scc1 L_chkd
    s_sleep 8
    buffer_load_dword v{DBGV}, v{DBGV+1}, {s(T_DBG,4)}, 0 offen sc1
    s_waitcnt vmcnt(0)
    s_branch L_chk
    L_chkd:
    s_barrier
    s_cmp_lg_u32 s{S_V}, 0
    s_cbranch_scc1 L_nopub
    buffer_store_dwordx4 {v(TEV,4)}, v{L16}, {s(SR_TAB,4)}, s3 offen {opt.pub}
    L_nopub:
    s_mov_b32 s{S_TMP}, s{S_B4}
    """)
    stamp(a, r, 7)
    def REC(q): return r.D0 + 4 * q
    TABV = r.M; ADR = r.T
    for rr in range(8):
        a(f"buffer_load_dword v{TABV+rr}, v{TA}, {s(SR_TAB,4)}, s{S_TMP} offen {opt.hl}")
        if rr < 7: a(f"s_add_u32 s{S_TMP}, s{S_TMP}, 32768")
    for k in range(4): a(mfma(AD, r.H+4*k, W1F+4*k, AD if k else None))
    a("s_nop 3")
    a(f"""
    s_lshl_b32 s{S_TMP}, s{S_RT}, 12
    s_lshl_b32 s{S_TMP2}, s{S_T}, 9
    s_add_u32 s{S_TMP}, s{S_TMP}, s{S_TMP2}
    s_add_u32 s{S_TMP}, s{S_TMP}, {L_AT}
    v_lshlrev_b32 v{t2}, 4, v{e_}
    v_lshl_add_u32 v{t2}, v{hh_}, 3, v{t2}
    v_add_u32 v{t2}, s{S_TMP}, v{t2}
    s_nop 0
    """)
    for g in range(4):
        x = AD + 4 * g
        if g == 1: a(f"s_cmp_eq_u32 s{S_RT}, 3\ns_cbranch_scc1 L_at_done")
        a(f"""
        v_pk_mul_f32 {v(x,2)}, {v(x,2)}, {s(S_C,2)}
        v_pk_mul_f32 {v(x+2,2)}, {v(x+2,2)}, {s(S_C,2)}
        v_cvt_pk_bf16_f32 v{x}, v{x}, v{x+1}
        v_cvt_pk_bf16_f32 v{x+1}, v{x+2}, v{x+3}
        ds_write_b64 v{t2}, {v(x,2)} offset:{g*1024}
        """)
    a.label("L_at_done")
    a(f"v_mov_b32 v{r.XM+3}, 0")
    for j in range(8):
        if j < 7: a(f"v_lshlrev_b32 v{r.HU+2*j}, 16, v{r.HR+j}\nv_and_b32 v{r.HU+2*j+1}, 0xffff0000, v{r.HR+j}")
        else: a(f"v_lshlrev_b32 v{r.HU+2*j}, 16, v{r.HR+j}\nv_and_b32 v{r.HU+2*j+1}, 0xffff0000, v{r.HR+j}")
    for i in range(2, 8, 2): a(f"v_mov_b64 {v(r.S+i,2)}, 0")
    a(f"""
    v_add_u32 v{r.EH}, {L_WH1 - L_ACC}, v{LPT}
    s_mul_i32 s{S_TMP}, s{S_RT}, {32*ACC_ROW}
    s_add_u32 s{S_TMP}, s{S_TMP}, {L_ACC}
    v_mul_u32_u24 v{t2}, {ACC_ROW}, v{e_}
    v_lshl_add_u32 v{t2}, v{hh_}, 5, v{t2}
    v_add_u32 v{r.EM}, s{S_TMP}, v{t2}
    v_min_u32 v{t3}, 311, v0
    v_mul_u32_u24 v{t4}, 171, v{t3}
    v_lshrrev_b32 v{t4}, 9, v{t4}
    v_mul_u32_u24 v{t5}, 3, v{t4}
    v_sub_u32 v{t5}, v{t3}, v{t5}
    v_lshlrev_b32 v{t5}, 2, v{t5}
    v_lshl_add_u32 v{r.EK}, v{t4}, 5, v{t5}
    v_mul_u32_u24 v{r.EP}, {ACC_ROW}, v{t4}
    v_add_u32 v{r.EP}, v{r.EP}, v{t5}
    v_add_u32 v{r.EP}, {L_ACC+256}, v{r.EP}
    s_lshl_b32 s{S_TMP}, s{S_V}, 12
    s_add_u32 s{S_TMP}, s{S_TMP}, {L_RING}
    v_mul_u32_u24 v{t2}, 80, v{e_}
    v_lshl_add_u32 v{t2}, v{hh_}, 3, v{t2}
    v_add_u32 v{r.EW}, s{S_TMP}, v{t2}
    v_lshrrev_b32 v{t3}, 2, v{r.lane}
    v_and_b32 v{t4}, 3, v{r.lane}
    v_lshlrev_b32 v{t4}, 4, v{t4}
    v_lshl_add_u32 v{t5}, v{t3}, 7, v{t4}
    v_mul_u32_u24 v{t3}, 80, v{t3}
    v_add3_u32 v{r.ER}, v{t3}, v{t4}, s{S_TMP}
    s_lshl_b32 s{S_TMP}, s{S_RT}, 12
    s_lshl_b32 s{S_TMP2}, s{S_T}, 6
    s_add_u32 s{S_TMP}, s{S_TMP}, s{S_TMP2}
    v_add_u32 v{r.EG}, s{S_TMP}, v{t5}
    v_lshlrev_b32 v{r.TE}, 1, v0
    v_lshrrev_b32 v{t3}, 4, v{r.lane}
    v_mul_u32_u24 v{t3}, {ACC_ROW}, v{t3}
    v_and_b32 v{t4}, 15, v{r.lane}
    v_lshl_add_u32 v{r.EX}, v{t4}, 4, v{t3}
    """)
    for rr in range(8):
        a(f"""
        s_waitcnt vmcnt({7 + rr})
        L_w{rr}:
        v_cmp_le_i32 vcc, 0, v{TABV+rr}
        s_cbranch_vccz L_g{rr}
        s_sub_u32 s{S_BUD}, s{S_BUD}, 1
        s_cbranch_scc1 L_g{rr}
        s_sleep {opt.slp}
        """)
        for r2 in range(rr, 8):
            a(f"s_add_u32 s{S_TMP}, s{S_B4}, {r2*32768}\nbuffer_load_dword v{TABV+r2}, v{TA}, {s(SR_TAB,4)}, s{S_TMP} offen {opt.hl}")
        a(f"""
        s_waitcnt vmcnt(0)
        s_branch L_w{rr}
        L_g{rr}:
        v_cmp_lt_u32_sdwa {s(S_M+2*rr,2)}, v{JJ}, v{TABV+rr} src0_sel:DWORD src1_sel:WORD_1
        v_cmp_lt_u32_sdwa {s(S_M+16+2*rr,2)}, v{J16}, v{TABV+rr} src0_sel:DWORD src1_sel:WORD_1
        v_max_u32 v{MX}, v{MX}, v{TABV+rr}
        v_add_u32_sdwa v{ADR+rr}, v{LB}, v{TABV+rr} {SDWA} src1_sel:WORD_0
        s_mov_b32 s{S_TMP}, {rr*32*REC_STRIDE}
        s_mov_b64 exec, {s(S_M+2*rr,2)}
        buffer_load_dwordx3 {v(REC(rr),3)}, v{ADR+rr}, {s(SR_REC,4)}, s{S_TMP} offen {opt.rl}
        s_mov_b64 exec, {s(S_M+16+2*rr,2)}
        buffer_load_dwordx3 {v(REC(8+rr),3)}, v{ADR+rr}, {s(SR_REC,4)}, s{S_TMP} offen offset:192 {opt.rl}
        s_mov_b64 exec, -1
        """)
    stamp(a, r, 8)
    def u_reads():
        for k in range(4):
            a(f"ds_read_b64_tr_b16 {v(r.T+4*k,2)}, v{r.EH} offset:{2048*k}\nds_read_b64_tr_b16 {v(r.T+4*k+2,2)}, v{r.EH} offset:{2048*k+512}")
    def u_gemm():
        for k in range(4): a(mfma(r.U, r.T+4*k, r.H+4*k, r.U if k else None))
    def u_scale():
        for i in range(0, 16, 2): a(f"v_pk_mul_f32 {v(r.U+i,2)}, {v(r.U+i,2)}, {s(S_C,2)}")
    def u_all():
        u_reads(); a("s_waitcnt lgkmcnt(0)"); u_gemm(); a("s_nop 7\ns_nop 3"); u_scale()
    stamp(a, r, 9)
    if opt.warm:
        a(f"""
        s_lshr_b32 s{S_TMP}, s2, 3
        s_lshl_b32 s{S_TMP}, s{S_TMP}, 3
        s_add_u32 s{S_TMP}, s{S_TMP}, s{S_V}
        s_mul_i32 s{S_TMP}, s{S_TMP}, {opt.warm*1024}
        s_add_u32 s{S_TMP}, s{S_TMP}, 3072
        v_lshlrev_b32 v{t2}, 4, v{r.lane}
        """)
        for k in range(opt.warm):
            if k and k % 4 == 0: a(f"s_add_u32 s{S_TMP}, s{S_TMP}, 4096")
            a(f"buffer_load_dwordx4 {v(r.H+12,4)}, v{t2}, {s(SR_HD,4)}, s{S_TMP} offen offset:{(k%4)*1024}")
    a(f"""
    v_cmp_lt_u32 vcc, 0x{((0x8000+33)<<16)-1:08x}, v{MX}
    s_and_saveexec_b64 {s(S_D,2)}, vcc
    v_mov_b32 v{t2}, {L_FLAG}
    ds_write_b32 v{t2}, v{ONE}
    s_mov_b64 exec, -1
    """)
    order = [x for rr in range(8) for x in (rr, 8 + rr)]
    a.label("L_rank")
    for n_, q in enumerate(order):
        if q < 8: a(f"s_waitcnt vmcnt({14 - n_})")
        else: a(f"s_cmp_eq_u64 {s(S_M+2*q,2)}, 0\ns_cbranch_scc1 L_rk{q}")
        a(f"""
        s_mov_b64 exec, {s(S_M+2*q,2)}
        v_lshlrev_b32_sdwa v{ADR+q}, 2, v{REC(q)+2} {SDWA} src1_sel:BYTE_0
        ds_add_rtn_u32 v{REC(q)+3}, v{ADR+q}, v{ONE} offset:{L_CNT}
        """)
        if q < 8 and opt.pf: a(f"buffer_load_ubyte v{r.V4}, v{REC(q)+2}, {s(SR_HD,4)}, s{S_SO0} offen")
        if q >= 8: a.label(f"L_rk{q}")
    a(f"""
    s_mov_b64 exec, -1
    v_lshlrev_b32 v{t2}, 3, v{r.lane}
    v_mov_b32 v{t3}, {L_FLAG}
    s_mov_b32 s{S_PADM}, {0 if opt.slide else 31}
    s_cmp_lg_u32 s{S_MODE}, 0
    s_cselect_b32 s{S_PADM}, 31, s{S_PADM}
    s_waitcnt lgkmcnt(0)
    s_barrier
    """)
    stamp(a, r, 10)
    CA = r.M; CB = r.M + 2; FL = r.M + 4; SS = r.M + 5; TT = r.M + 6; PADR = r.M + 7; O = r.M + 8; INC = r.M + 12; SP = r.M + 13; N1 = r.M + 14
    a(f"""
    ds_read_b64 {v(CA,2)}, v{t2} offset:{L_CNT}
    ds_read_b64 {v(CB,2)}, v{t2} offset:{L_CNT+512}
    ds_read_b32 v{FL}, v{t3}
    v_and_b32 v{t4}, 3, v{r.lane}
    v_cmp_eq_u32 {s(S_NB,2)}, 3, v{t4}
    """)
    a(f"s_cmp_lg_u32 s{S_MODE}, 0\ns_cbranch_scc1 L_noaz")
    a(f"""
    s_lshl_b32 s{S_TMP}, s{S_V}, 10
    s_add_u32 s{S_TMP2}, s{S_TMP}, 8192
    s_add_u32 m0, s{S_TMP}, {L_WH1}
    s_lshl_b32 s{S_TMP3}, s{S_V}, 12
    buffer_load_dwordx4 v{L16}, {s(SR_WH,4)}, s{S_TMP} offen lds
    s_add_u32 m0, s{S_TMP}, {L_WH2}
    s_nop 0
    buffer_load_dwordx4 v{L16}, {s(SR_WH,4)}, s{S_TMP2} offen lds
    s_add_u32 m0, s{S_TMP3}, {L_RING}
    """)
    nonlocal_z[0] = r.S + 4
    zero_region(L_ACC, 112 * ACC_ROW)
    a("s_waitcnt lgkmcnt(4)\nL_azd:")
    a(f"""
    v_add_u32 v{N1}, v{CA}, v{CB}
    v_add3_u32 v{SS}, v{N1}, v{CA+1}, v{CB+1}
    v_readfirstlane_b32 s{S_TMP3}, v{FL}
    s_nop 0
    v_add_u32_dpp v{TT}, v{SS}, v{SS} quad_perm:[1,0,3,2] row_mask:0xf bank_mask:0xf
    s_nop 1
    v_add_u32_dpp v{TT}, v{TT}, v{TT} quad_perm:[2,3,0,1] row_mask:0xf bank_mask:0xf
    L_scan:
    v_sub_u32 v{PADR}, 0, v{TT}
    v_and_b32 v{PADR}, s{S_PADM}, v{PADR}
    v_cndmask_b32 v{PADR}, 0, v{PADR}, {s(S_NB,2)}
    v_add_u32 v{SP}, v{SS}, v{PADR}
    v_mov_b32 v{INC}, v{SP}
    """)
    a(wave_scan(INC))
    a(f"""
    s_nop 0
    v_readlane_b32 s{S_TMP}, v{INC}, 63
    v_sub_u32 v{O}, v{INC}, v{SP}
    s_cmp_lg_u32 s{S_PADM}, 0
    s_cbranch_scc1 L_scan_pad
    v_mov_b32_dpp v{PADR}, v{INC} quad_perm:[1,1,3,3] row_mask:0xf bank_mask:0xf
    v_add_u32 v{t4}, -1, v{O}
    v_xor_b32 v{t4}, v{t4}, v{PADR}
    v_cmp_gt_u32 vcc, 32, v{t4}
    v_cmp_gt_u32 {s(S_NBN,2)}, s{S_TMP}, v{PADR}
    s_and_b64 vcc, vcc, {s(S_NBN,2)}
    s_and_b32 vcc_lo, vcc_lo, 0x55555555
    s_and_b32 vcc_hi, vcc_hi, 0x55555555
    v_mov_b32 v{PADR}, s{S_TMP}
    s_cmp_eq_u64 vcc, 0
    s_cbranch_scc1 L_scan_done
    s_mov_b32 s{S_PADM}, 31
    s_branch L_scan
    L_scan_pad:
    v_mov_b32_dpp v{PADR}, v{O} quad_perm:[0,0,0,0] row_mask:0xf bank_mask:0xf
    v_add_u32 v{PADR}, v{PADR}, v{TT}
    v_mov_b64 {v(r.K4,2)}, 0
    v_mov_b64 {v(r.K4+2,2)}, 0
    ds_write_b128 v{V16}, {v(r.K4,4)} offset:{L_REC}
    ds_write_b128 v{V16}, {v(r.K4,4)} offset:{L_REC+8192}
    ds_write_b128 v{V16}, {v(r.K4,4)} offset:{L_REC+16384}
    ds_write_b128 v{V16}, {v(r.K4,4)} offset:{L_REC+24576}
    ds_write_b128 v{V16}, {v(r.K4,4)} offset:{L_REC+32768}
    ds_write_b128 v{V16}, {v(r.K4,4)} offset:{L_REC+40960}
    s_waitcnt lgkmcnt(0)
    s_barrier
    L_scan_done:
    v_lshrrev_b32 v{t3}, 1, v{r.lane}
    v_add_u32 v{t4}, s{S_TMP}, v{t3}
    v_mul_u32_u24 v{t4}, 12, v{t4}
    v_add_u32 v{t4}, {L_REC}, v{t4}
    ds_write2_b32 v{t4}, v{r.Zero}, v{r.Zero} offset0:0 offset1:1
    ds_write_b32 v{t4}, v{r.Zero} offset:8
    v_add_u32 v{O+1}, v{O}, v{N1}
    v_add_u32 v{O+2}, v{O}, v{CA}
    v_add_u32 v{O+3}, v{O+1}, v{CA+1}
    ds_write_b64 v{t2}, {v(O,2)} offset:{L_OFF}
    ds_write_b64 v{t2}, {v(O+2,2)} offset:{L_OFF+512}
    v_and_b32 v{t3}, 60, v{r.lane}
    v_add_u32 v{t3}, {L_WEND}, v{t3}
    ds_write_b32 v{t3}, v{PADR}
    s_add_u32 s{S_TMP}, s{S_TMP}, 31
    s_lshr_b32 s{S_TMP}, s{S_TMP}, 5
    s_cmp_gt_u32 s{S_TMP}, {CAPT}
    s_cselect_b32 s{S_TMP3}, 1, s{S_TMP3}
    s_cmp_lg_u32 s{S_TMP3}, 0
    s_cbranch_scc1 L_slow
    """)
    if opt.fine: stamp(a, r, 22)
    for q in order:
        if q >= 8: a(f"s_cmp_eq_u64 {s(S_M+2*q,2)}, 0\ns_cbranch_scc1 L_pa{q}")
        a(f"s_mov_b64 exec, {s(S_M+2*q,2)}\nds_read_b32 v{ADR+q}, v{ADR+q} offset:{L_OFF}")
        if q >= 8: a.label(f"L_pa{q}")
    a(f"""
    s_and_b32 s{S_T0}, s{S_V}, 3
    s_mul_i32 s{S_T0}, s{S_T0}, s{S_TMP}
    s_add_u32 s{S_NTL}, s{S_T0}, s{S_TMP}
    s_lshr_b32 s{S_T0}, s{S_T0}, 2
    s_lshr_b32 s{S_NTL}, s{S_NTL}, 2
    s_sub_u32 s{S_TMP}, s{S_NTL}, s{S_T0}
    s_mul_i32 s{S_TMP}, s{S_TMP}, {opt.split}
    s_add_u32 s{S_TMP}, s{S_TMP}, 32
    s_lshr_b32 s{S_TMP}, s{S_TMP}, 6
    s_add_u32 s{S_TMP}, s{S_TMP}, s{S_T0}
    s_and_b32 s{S_FI}, s{S_V}, 4
    s_cmp_eq_u32 s{S_TMP}, s{S_T0}
    s_cselect_b32 s{S_FI}, 0, s{S_FI}
    s_cmp_lt_u32 s{S_V}, 4
    s_cselect_b32 s{S_NTL}, s{S_TMP}, s{S_NTL}
    s_cselect_b32 s{S_T0}, s{S_T0}, s{S_TMP}
    s_sub_u32 s{S_NTL}, s{S_NTL}, s{S_T0}
    s_mov_b32 s{S_TMP2}, {L_REC}
    s_waitcnt lgkmcnt(0)
    """)
    if opt.fine: stamp(a, r, 23)
    for q in order:
        if q >= 8: a(f"s_cmp_eq_u64 {s(S_M+2*q,2)}, 0\ns_cbranch_scc1 L_pb{q}")
        a(f"""
        s_mov_b64 exec, {s(S_M+2*q,2)}
        v_add_u32 v{ADR+q}, v{ADR+q}, v{REC(q)+3}
        v_mad_u32_u24 v{ADR+q}, v{ADR+q}, 12, s{S_TMP2}
        ds_write_b32 v{ADR+q}, v{REC(q)+2} offset:8
        ds_write2_b32 v{ADR+q}, v{REC(q)}, v{REC(q)+1} offset0:0 offset1:1
        """)
        if q >= 8: a.label(f"L_pb{q}")
    a(f"""
    s_mov_b64 exec, -1
    """)
    if opt.fine: stamp(a, r, 24)
    a(f"""
    s_mul_i32 s{S_TMP}, s{S_T0}, 384
    s_add_u32 s{S_TMP}, s{S_TMP}, {L_REC}
    v_and_b32 v{t2}, 31, v{r.lane}
    v_mul_u32_u24 v{t2}, 12, v{t2}
    v_add_u32 v{r.A1a}, s{S_TMP}, v{t2}
    v_lshrrev_b32 v{t2}, 3, v{r.lane}
    v_mul_u32_u24 v{t2}, 48, v{t2}
    v_add_u32 v{r.A2a}, s{S_TMP}, v{t2}
    s_sub_u32 s{S_TMP}, s{S_T0}, 1
    v_add_u32 v{t3}, s{S_TMP}, v{r.lane}
    v_mul_u32_u24 v{t2}, 384, v{t3}
    s_waitcnt vmcnt(0) lgkmcnt(0)
    s_barrier
    """)
    stamp(a, r, 11)
    a(f"s_cmp_eq_u32 s{S_NTL}, 0\ns_cbranch_scc1 L_idle")
    a(k_reads(r, 0))
    a(f"ds_read_u8 v{t4}, v{t2} offset:{L_REC+8}")
    a(ea_read(r, 0))
    a(acc_zero(r, False))
    for i in range(0, 8, 2): a(f"v_mov_b64 {v(r.M+8+i,2)}, 0\nv_mov_b64 {v(r.S+i,2)}, 0")
    a("s_waitcnt lgkmcnt(2)")
    a(dma_addr(r) + dma_issue(r))
    a(f"""
    v_lshrrev_b32 v{r.PI}, 7, v{r.K}
    v_lshlrev_b32_sdwa v{r.NA}, 5, v{r.K} {SDWA} src1_sel:BYTE_0
    buffer_load_dwordx2 {v(r.PS,2)}, v{r.PI}, {s(SR_P4,4)}, 0 idxen
    """)
    a(pd_read(r) + k_reads(r, 1))
    a(f"""
    s_waitcnt lgkmcnt(5)
    v_and_b32 v{t4}, 0x7f, v{t4}
    v_lshrrev_b32 v{t5}, 3, v{t4}
    v_lshlrev_b32 v{t5}, 2, v{t5}
    v_add_u32 v{t5}, {L_WEND}, v{t5}
    ds_read_b32 v{t5}, v{t5}
    v_lshlrev_b32 v{t3}, 5, v{t3}
    s_waitcnt lgkmcnt(0)
    v_sub_u32 v{t5}, v{t5}, v{t3}
    v_min_u32 v{t5}, 32, v{t5}
    v_mad_u32_u24 v{t2}, v{t5}, 12, v{t2}
    ds_read_u8 v{t2}, v{t2} offset:{L_REC-4}
    v_lshl_or_b32 v{t4}, v{t5}, 16, v{t4}
    s_waitcnt lgkmcnt(0)
    v_and_b32 v{t2}, 0x7f, v{t2}
    v_lshl_or_b32 v{r.Desc}, v{t2}, 8, v{t4}
    s_nop 0
    v_readlane_b32 s{S_D}, v{r.Desc}, 1
    v_readlane_b32 s{S_ZP}, v{r.Desc}, 0
    s_nop 1
    s_and_b32 s{S_NB}, s{S_D}, 0x7c
    s_mov_b32 s{S_NBP}, s{S_NB}
    s_lshr_b32 s{S_CNT}, s{S_D}, 16
    s_bfe_u32 s{S_ZP}, s{S_ZP}, 0x80008
    s_cmp_eq_u32 s{S_T0}, 0
    s_cselect_b32 s{S_ZP}, -1, s{S_ZP}
    """)
    a(aw_reads(r, S_NB))
    a(f"s_cmp_lg_u32 s{S_MODE}, 0\ns_cbranch_scc1 L_nou")
    u_all()
    a("L_nou:\ns_waitcnt vmcnt(1)")
    a(h_reads(r))
    a("s_waitcnt lgkmcnt(0)")
    a(dma_addr(r) + dma_issue(r))
    a("s_waitcnt vmcnt(4)")
    a(geometry(r, False))
    for k in range(2): a(mfma(r.D0, r.H+4*k, ID+4*k, r.D0 if k else None))
    a("s_waitcnt lgkmcnt(0)")
    a(mfma(r.D0, r.XM, r.BW, r.D0))
    a(f"s_mov_b32 s{S_I}, 2\ns_add_u32 s{S_NTL}, s{S_NTL}, 1")
    if opt.prio: a(f"s_cmp_ge_u32 s{S_V}, 4\ns_cbranch_scc1 L_np\ns_setprio 1\nL_np:")
    a("s_nop 7\ns_nop 1")
    stamp(a, r, 12); stamp(a, r, 28, True)
    a(".p2align 6")
    a.label("L_loop")
    pre = k_reads(r, 2) + pd_read(r) + [f"v_readlane_b32 s{S_D}, v{r.Desc}, s{S_I}"] + s_set(r)
    PE = [int(x) for x in opt.mfe.split(",")]; PR = [int(x) for x in opt.mfr.split(",")]
    mf_exp = {PE[k]: mfma(r.D1, r.H+8+4*k, ID+4*k, r.D1 if k else None) for k in range(2)}
    mf_rcp = {PR[0]: mfma(r.D1, r.XM, r.BW+4, r.D1), PR[1]: mfma(r.A1, r.M+8, r.S, r.A1), PR[2]: mfma(r.A1, r.M+12, r.S+4, r.A1)}
    ins_exp = {7: [f"s_bfe_u32 s{S_TMP}, s{S_D}, 0x80008", f"s_add_u32 s{S_TMP2}, s{S_NB}, 8", f"s_and_b32 s{S_TMP3}, s{S_D}, 0x7c",
                   f"s_cmp_ge_u32 s{S_TMP}, s{S_TMP2}", f"s_cselect_b32 s{S_NBN}, s{S_TMP3}, s{S_NB}"],
               opt.hpos: ["s_waitcnt vmcnt(1)"] + h_reads(r)}
    ins_rcp = {2: ["s_waitcnt lgkmcnt(4)"] + dma_addr(r),
               4: ["s_waitcnt lgkmcnt(0)"] + dma_issue(r),
               6: ea_read(r, 1) + [f"s_cmp_eq_u32 s{S_NBN}, s{S_NB}", "s_cbranch_scc1 L_noaw"] + aw_reads(r, S_NBN) + ["L_noaw:"],
               PR[2]+1: s_reads(r)}
    silu_stage(a, r, r.D0, r.M, mf_exp, mf_rcp, ins_exp, ins_rcp, pre)
    a(f"s_cmp_eq_u32 s{S_NB}, s{S_NBP}\ns_cbranch_scc1 L_noflush")
    if "flush" in opt.abl: a("s_branch L_noflush")
    a(retire_mask(r))
    a(f"s_cmp_lg_u32 s{S_MODE}, 0\ns_cbranch_scc1 L_flush_slow")
    a(flush_plain(r))
    a.label("L_noflush")
    pre = [f"s_mov_b32 s{S_NBP}, s{S_NB}", f"s_mov_b32 s{S_NB}, s{S_NBN}", f"s_lshr_b32 s{S_CNT}, s{S_D}, 16",
           "s_waitcnt vmcnt(4)"] + geometry(r, True)
    mf_exp = {PE[k]: mfma(r.D0, r.H+4*k, ID+4*k, r.D0 if k else None) for k in range(2)}
    mf_rcp = {PR[0]: mfma(r.D0, r.XM, r.BW, r.D0), PR[1]: mfma(r.A0, r.M, r.S, r.A0), PR[2]: mfma(r.A0, r.M+4, r.S+4, r.A0)}
    silu_stage(a, r, r.D1, r.M+8, mf_exp, mf_rcp, {15: ["s_waitcnt lgkmcnt(0)"]}, {}, pre)
    a(f"""
    s_sub_u32 s{S_TMP}, s{S_I}, 1
    s_add_u32 s{S_I}, s{S_I}, 1
    s_cmp_le_u32 s{S_I}, s{S_NTL}
    s_cbranch_scc1 L_loop
    v_readlane_b32 s{S_D}, v{r.Desc}, s{S_TMP}
    """)
    stamp(a, r, 13); stamp(a, r, 29, True)
    a(mfma(r.A1, r.M+8, r.S, r.A1)); a(mfma(r.A1, r.M+12, r.S+4, r.A1))
    if opt.prio: a("s_setprio 0")
    S_RML = S_TMP3; S_GL = S_NBN
    a(f"""
    s_mov_b32 s{S_RM}, 0xffff
    s_bitcmp1_b32 s{S_NBP}, 2
    s_cselect_b32 s{S_RM}, 0xffff0000, s{S_RM}
    s_bfe_u32 s{S_GL}, s{S_D}, 0x6000a
    s_lshr_b32 s{S_TMP2}, s{S_NBP}, 2
    s_cmp_lg_u32 s{S_GL}, s{S_TMP2}
    s_cselect_b32 s{S_RM}, -1, s{S_RM}
    s_mov_b32 s{S_RML}, 0xffff
    s_bitcmp1_b32 s{S_GL}, 0
    s_cselect_b32 s{S_RML}, 0xffff0000, s{S_RML}
    s_cselect_b32 s{S_CNT}, {4*ACC_ROW}, 0
    """)
    a(flush_addr(r))
    WH2 = r.W2; HU = r.HU
    def epi_prep_a(): pass
    def epi_prep_b():
        for k in range(4):
            a(f"ds_read_b64_tr_b16 {v(WH2+4*k,2)}, v{r.EH} offset:{8192+2048*k}\nds_read_b64_tr_b16 {v(WH2+4*k+2,2)}, v{r.EH} offset:{8192+2048*k+512}")
    def epi_prep(): epi_prep_a(); epi_prep_b()
    a(f"""
    s_cmp_lg_u32 s{S_MODE}, 0
    s_cbranch_scc1 L_final_slow
    s_lshl_b32 s{S_TMP}, s{S_V}, 11
    s_add_u32 s{S_TMP}, s{S_TMP}, {L_SIMG}
    v_add_u32 v{r.K}, s{S_TMP}, v{r.EX}
    s_sub_u32 s{S_TMP}, s{S_TMP}, {L_ACC}
    s_sub_u32 s{S_TMP}, s{S_TMP}, s{S_CNT}
    s_mov_b32 exec_lo, s{S_RML}
    s_mov_b32 exec_hi, s{S_RML}
    v_add_u32 v{t2}, s{S_TMP}, v{r.FlM}
    """)
    a(EX3)
    a([f"ds_write_b128 v{t2}, {v(r.A0+4*q,4)} offset:{32*q}" for q in range(8)])
    a(f"s_mov_b64 exec, -1\nds_read_b128 {v(r.PD,4)}, v{r.K}")
    epi_prep_a()
    a("s_waitcnt lgkmcnt(9)")
    a(flush_dot(r))
    epi_prep_b()
    a(f"""
    s_andn2_b32 s{S_TMP}, s{S_RM}, s{S_RML}
    s_and_b32 exec_lo, s{S_TMP}, 0x77777777
    s_mov_b32 exec_hi, 0
    ds_write_b32 v{t3}, v{t4}
    s_mov_b64 exec, -1
    s_mov_b32 s{S_RM}, s{S_RML}
    s_mul_i32 s{S_TMP}, s{S_GL}, {4*ACC_ROW}
    s_add_u32 s{S_TMP}, s{S_TMP}, {L_ACC}
    v_add_u32 v{t2}, s{S_TMP}, v{r.EX}
    s_ashr_i32 s{S_ZP}, s{S_ZP}, 2
    s_cmp_lg_u32 s{S_ZP}, s{S_GL}
    s_cbranch_scc1 L_main_end
    s_add_u32 s{S_TMP}, s{S_FI}, {L_FLAG+8}
    v_mov_b32 v{r.K}, s{S_TMP}
    v_mov_b32 v{r.PI}, 1
    ds_write_b32 v{r.K}, v{r.PI}
    L_main_end:
    """)
    stamp(a, r, 14)
    rmw_rd = [f"ds_read_b128 {v(r.D0,4)}, v{t2}", EXP, f"ds_read_b32 v{t5}, v{t3}", "s_mov_b64 exec, -1"]
    rmw_wr = ["s_waitcnt lgkmcnt(1)",
              f"v_pk_add_f32 {v(r.D0,2)}, {v(r.D0,2)}, {v(r.PD,2)}", f"v_pk_add_f32 {v(r.D0+2,2)}, {v(r.D0+2,2)}, {v(r.PD+2,2)}",
              f"ds_write_b128 v{t2}, {v(r.D0,4)}", EXP, "s_waitcnt lgkmcnt(1)", f"v_add_f32 v{t4}, v{t4}, v{t5}",
              f"ds_write_b32 v{t3}, v{t4}", "s_mov_b64 exec, -1"]
    a(f"v_mov_b32 v{r.K}, {L_FLAG+8}\ns_waitcnt vmcnt(0) lgkmcnt(0)\ns_barrier\nds_read_b64 {v(r.PS,2)}, v{r.K}")
    a(rmw_rd)
    a(f"""
    s_waitcnt lgkmcnt(2)
    v_readfirstlane_b32 s{S_TMP}, v{r.PS}
    v_readfirstlane_b32 s{S_TMP2}, v{r.PS+1}
    s_nop 3
    s_or_b32 s{S_D}, s{S_TMP}, s{S_TMP2}
    s_cbranch_scc1 L_merge_rare
    L_merge:
    s_cmp_eq_u32 s{S_NTL}, 0
    s_cbranch_scc1 L_epi
    """)
    a(rmw_wr)
    a.label("L_epi")
    if opt.stamp: a(f"s_sub_u32 s{S_ST}, s{S_NTL}, 1\ns_max_i32 s{S_ST}, s{S_ST}, 0\nv_writelane_b32 v{r.ST}, s{S_ST}, 30")
    MR = r.D0
    a(f"""
    s_mov_b32 s{S_D}, 0x{f2u(-LN2):08x}
    s_mov_b32 s{S_D+1}, 0x{f2u(-LN2):08x}
    ds_read_b32 v{r.K}, v{r.EK} offset:16
    s_waitcnt lgkmcnt(0)
    s_barrier
    """)
    stamp(a, r, 15)
    for k in range(4):
        a(f"ds_read_b128 {v(MR+8*k,4)}, v{r.EM} offset:{64*k}\nds_read_b128 {v(MR+8*k+4,4)}, v{r.EM} offset:{64*k+16}")
    a(f"ds_read_b32 v{r.PI}, v{r.EP}")
    for k in range(4):
        a(f"s_waitcnt lgkmcnt({7-2*k})")
        for j in range(4):
            a(f"v_cvt_pk_bf16_f32 v{r.H+4*k+j}, v{MR+8*k+2*j}, v{MR+8*k+2*j+1}")
        if k: a(mfma(r.U, WH2+4*(k-1), r.H+4*(k-1), r.U))
    a(f"""
    s_waitcnt lgkmcnt(0)
    v_add_f32 v{r.K}, v{r.K}, v{r.PI}
    {mfma(r.U, WH2+12, r.H+12, r.U)}
    v_cvt_pk_bf16_f32 v{r.K}, v{r.K}, v{r.K}
    buffer_store_short v{r.K}, v{r.TE}, {s(SR_OUTP,4)}, 0 offen {opt.ost}
    s_nop 9
    """)
    T = r.T; U = r.U
    for i in range(16): a(f"v_exp_f32 v{T+i}, v{U+i}")
    for i in range(0, 16, 2): a(f"v_pk_add_f32 {v(T+i,2)}, {v(T+i,2)}, {s(S_ONE,2)}")
    for i in range(0, 16, 2): a(f"v_pk_mul_f32 {v(U+i,2)}, {v(U+i,2)}, {s(S_D,2)}")
    for i in range(16): a(f"v_rcp_f32 v{T+i}, v{T+i}")
    for g in range(4):
        for i in (4*g, 4*g+2): a(f"v_pk_fma_f32 {v(T+i,2)}, {v(T+i,2)}, {v(U+i,2)}, {v(HU+i,2)}")
        for i in (4*g, 4*g+2): a(f"v_cvt_pk_bf16_f32 v{r.M+i//2}, v{T+i}, v{T+i+1}")
        a(f"ds_write_b64 v{r.EW}, {v(r.M+2*g,2)} offset:{16*g}")
    a(f"""
    """)
    if opt.thr:
        a(f"""
        s_memrealtime s[4:5]
        s_waitcnt lgkmcnt(0)
        s_sub_u32 s4, s4, s{S_ST}
        s_cmp_gt_u32 s4, {opt.thr}
        s_cselect_b32 s4, 0x10000, 0
        v_add_u32 v{r.EG}, s4, v{r.EG}
        """)
    a(f"""
    ds_read_b128 {v(r.H,4)}, v{r.ER}
    ds_read_b128 {v(r.H+4,4)}, v{r.ER} offset:1280
    s_waitcnt lgkmcnt(1)
    buffer_store_dwordx4 {v(r.H,4)}, v{r.EG}, {s(SR_OUT,4)}, 0 offen {opt.ost}
    s_waitcnt lgkmcnt(0)
    buffer_store_dwordx4 {v(r.H+4,4)}, v{r.EG}, {s(SR_OUT,4)}, 0 offen offset:2048 {opt.ost}
    """)
    if opt.stamp:
        stamp(a, r, 16); a("s_waitcnt vmcnt(0)"); stamp(a, r, 17); stamp(a, r, 31, True)
        a(f"""
        s_lshl_b32 s{S_ST}, s2, 4
        s_add_u32 s{S_ST}, s{S_ST}, s{S_V}
        s_lshl_b32 s{S_ST}, s{S_ST}, 8
        s_add_u32 s{S_ST}, s{S_ST}, {WS_STAMP}
        s_add_u32 s{S_ST}, s{P_WS}, s{S_ST}
        s_addc_u32 s{S_ST+1}, s{P_WS+1}, 0
        v_lshlrev_b32 v{t2}, 2, v{r.lane}
        global_store_dword v{t2}, v{r.ST}, {s(S_ST,2)}
        """)
    if opt.diag:
        a("s_waitcnt vmcnt(0)"); stamp(a, r, 31)
        a(f"""
        v_lshlrev_b32 v{t2}, 2, v{r.lane}
        s_mov_b64 exec, 0xffff
        global_atomic_umax v{t2}, v{r.ST}, {s(P_DBG,2)}
        """)
    a("L_done:\ns_endpgm")
    a("L_noaz:\ns_waitcnt lgkmcnt(0)\ns_branch L_azd")
    a(f"L_idle:\ns_cmp_lg_u32 s{S_MODE}, 0\ns_cbranch_scc1 L_slow_next")
    u_all()
    epi_prep()
    a("s_branch L_main_end")
    a(f"""
    L_merge_rare:
    s_cmp_lg_u32 s{S_TMP}, 0
    s_cbranch_scc1 L_final_atomic
    s_cmp_ge_u32 s{S_V}, 4
    s_cbranch_scc1 L_merge_young
    s_cmp_eq_u32 s{S_NTL}, 0
    s_cbranch_scc1 L_merge_old_done
    """)
    a(rmw_wr)
    a("L_merge_old_done:\ns_waitcnt lgkmcnt(0)\ns_barrier\ns_branch L_epi\nL_merge_young:\ns_waitcnt lgkmcnt(0)\ns_barrier")
    a(rmw_rd)
    a(f"s_branch L_merge\nL_final_atomic:\ns_cmp_eq_u32 s{S_NTL}, 0\ns_cbranch_scc1 L_epi")
    a([f"ds_add_f32 v{t2}, v{r.PD+i} offset:{4*i}" for i in range(4)])
    a([EXP, f"ds_add_f32 v{t3}, v{t4}", "s_mov_b64 exec, -1", "s_branch L_epi"])
    a.label("L_final_slow")
    a("s_waitcnt vmcnt(0) lgkmcnt(0)"); a(flush_dot(r))
    a(flush_atomic(r)); a("s_branch L_slow_next")
    a.label("L_flush_slow")
    a(flush_addr(r)); a("s_waitcnt lgkmcnt(0)"); a(flush_dot(r)); a(flush_atomic(r)); a(acc_zero(r, True))
    a("s_branch L_noflush")
    a(f"""
    L_slow:
    s_mov_b32 s{S_MODE}, 1
    s_mov_b32 s{S_SEG}, 0
    s_waitcnt vmcnt(0) lgkmcnt(0)
    s_barrier
    """)
    u_all()
    a(f"""
    L_slow_round:
    s_waitcnt lgkmcnt(0)
    s_barrier
    v_lshlrev_b32 v{t2}, 2, v0
    v_cmp_gt_u32 vcc, 256, v0
    s_and_saveexec_b64 {s(S_D,2)}, vcc
    ds_write_b32 v{t2}, v{r.Zero} offset:{L_CNT}
    s_mov_b64 exec, -1
    v_mov_b32 v{t2}, {L_FLAG}
    ds_write_b32 v{t2}, v{r.Zero}
    s_lshl_b32 s{S_TMP}, s{S_SEG}, 10
    s_add_u32 s{S_TMP}, s{S_TMP}, s{S_B4}
    buffer_load_dword v{t3}, v{r.Zero}, {s(SR_TAB,4)}, s{S_TMP} offen {opt.hl}
    s_mul_i32 s{S_TMP}, s{S_SEG}, {REC_STRIDE}
    v_mul_u32_u24 v{t5}, 12, v0
    s_waitcnt vmcnt(0)
    v_bfe_u32 v{t4}, v{t3}, 16, 15
    v_and_b32 v{t3}, 0xffff, v{t3}
    v_add_u32 v{t3}, v{t3}, v{t5}
    v_mov_b32 v{t2}, v0
    """)
    for q in range(7):
        a(f"""
        v_cmp_lt_u32 {s(S_M+2*q,2)}, v{t2}, v{t4}
        s_mov_b64 exec, {s(S_M+2*q,2)}
        buffer_load_dwordx3 {v(REC(q),3)}, v{t3}, {s(SR_REC,4)}, s{S_TMP} offen {opt.hl}
        s_mov_b64 exec, -1
        v_add_u32 v{t2}, 512, v{t2}
        s_add_u32 s{S_TMP}, s{S_TMP}, {512*12}
        """)
    for q in range(7, 16): a(f"s_mov_b64 {s(S_M+2*q,2)}, 0")
    a(f"""
    v_mov_b32 v{ONE}, 1
    s_waitcnt vmcnt(0) lgkmcnt(0)
    s_barrier
    s_branch L_rank
    L_slow_next:
    s_add_u32 s{S_SEG}, s{S_SEG}, 1
    s_cmp_lt_u32 s{S_SEG}, {NB}
    s_cbranch_scc1 L_slow_round
    """)
    epi_prep()
    a("s_branch L_epi")
    return a.text(), r.n

def build():
    body, nv = gen()
    hdr = open("gather_scatter__cheap_equivariant_egnn__graph.s.ref").read().split("; Override")[0]
    acc = (nv + 3) // 4 * 4
    return hdr + f"""; @launch grid=({NB},1,1) block=(512,1,1) lds={LDS_BYTES}
.amdgcn_target "amdgcn-amd-amdhsa--gfx950"
.text
.globl {KNAME}
.p2align 8
.type {KNAME},@function
""" + body + f""".section .rodata,"a"
.p2align 6
.amdhsa_kernel {KNAME}
  .amdhsa_next_free_vgpr {nv}
  .amdhsa_next_free_sgpr 102
  .amdhsa_accum_offset {acc}
  .amdhsa_group_segment_fixed_size 0
  .amdhsa_kernarg_size 88
  .amdhsa_user_sgpr_count 2
  .amdhsa_user_sgpr_kernarg_segment_ptr 1
  .amdhsa_system_sgpr_workgroup_id_x 1
  .amdhsa_float_denorm_mode_32 3
.end_amdhsa_kernel
"""

if __name__ == "__main__":
    for arg in sys.argv[2:]:
        k, val = arg.split("=")
        cur = getattr(opt, k)
        setattr(opt, k, (val not in ("0", "False")) if isinstance(cur, bool) else type(cur)(val.replace("_", " ").replace("none", "")))
    open(sys.argv[1], "w").write(build())
    print("lds", LDS_BYTES, "vgprs", alloc().n)
```

```python
import sys, struct

N = 25000; E = 800000; NB = 256; BN = 98; CH = 3136
REC_STRIDE = CH * 12
WS_TAB = NB * REC_STRIDE
WS_P4 = WS_TAB + NB * 1024
WS_B = 11010048
WS_STAMP = 64 << 20
OUT_POS = N * 128
KNAME = "gather_scatter__cheap_equivariant_egnn__graph_kernel"

def f2u(x): return struct.unpack("<I", struct.pack("<f", x))[0]
LOG2E = 1.4426950408889634
LN2 = 0.6931471805599453

class Opt:
    split = 44
    prio = 1
    ld = "nt"
    st = "sc1"
    hl = "sc1"
    ost = ""
    slide = True
    late = 1
    pf = 0
    warm = 0
    abl = ""
    stamp = False
    pub = "sc1"
    rl = "sc1"
    slp = 2
    fine = False
    thr = 0
    tw = 0
    mfe = "2,8"
    hpos = 12
    mfr = "0,5,10"
    padd = 1
    pmul = 1
    ilv = 0
    spread = 0
    tprio = 0
    diag = False
opt = Opt()

class Asm:
    def __init__(self): self.L = []
    def __call__(self, s):
        if isinstance(s, (list, tuple)):
            for x in s: self(x)
            return
        for x in s.strip("\n").split("\n"):
            x = x.strip()
            if not x: continue
            self.L.append(x if x.endswith(":") else "    " + x)
    def label(self, n): self.L.append(n + ":")
    def text(self): return "\n".join(self.L) + "\n"

def v(i, n=1): return f"v{i}" if n == 1 else f"v[{i}:{i+n-1}]"
def s(i, n=1): return f"s{i}" if n == 1 else f"s[{i}:{i+n-1}]"
def srd(d, p, size, off=None):
    if off is None: b = f"s_mov_b32 s{d}, s{p}\ns_mov_b32 s{d+1}, s{p+1}\n"
    else: b = f"s_add_u32 s{d}, s{p}, {off}\ns_addc_u32 s{d+1}, s{p+1}, 0\n"
    return b + f"s_mov_b32 s{d+2}, {size}\ns_mov_b32 s{d+3}, 0x00020000"
def wave_scan(r):
    o = []
    for sh in (1, 2, 4, 8):
        o.append(f"s_nop 1\nv_add_u32_dpp v{r}, v{r}, v{r} row_shr:{sh} row_mask:0xf bank_mask:0xf bound_ctrl:0")
    o.append(f"s_nop 1\nv_add_u32_dpp v{r}, v{r}, v{r} row_bcast:15 row_mask:0xa bank_mask:0xf")
    o.append(f"s_nop 1\nv_add_u32_dpp v{r}, v{r}, v{r} row_bcast:31 row_mask:0xc bank_mask:0xf")
    return o
def mfma(d, a_, b_, c=None):
    cc = "0" if c is None else v(c, 16)
    return f"v_mfma_f32_32x32x16_bf16 {v(d,16)}, {v(a_,4)}, {v(b_,4)}, {cc}"
SDWA = "dst_sel:DWORD dst_unused:UNUSED_PAD src0_sel:DWORD"

CAPT = 112
L_NT = 0
L_CNT = 8192
L_OFF = L_CNT + 1024
L_REC = L_OFF + 1024
L_RING = L_REC + CAPT * 384
L_SIMG = L_RING + 8 * 4096
L_AT = L_SIMG + 8 * 2048
L_ACC = L_AT + 13 * 1024
ACC_ROW = 272
L_WX = L_ACC + 112 * ACC_ROW
L_FLAG = L_WX + 256
L_WEND = L_FLAG + 16
L_WH1 = L_WEND + 64 + 48
L_WH2 = L_WH1 + 8192
L_HIST = L_WH1
L_OFFA = L_HIST + 1024
LDS_BYTES = L_WH2 + 8192
L_STG = L_REC
L_HST = L_RING + 8192
L_W2S = L_RING + 24576
L_WE = L_ACC + 8192
assert L_STG + CH * 16 <= L_HST and L_WE + 17408 <= L_WX and L_SIMG % 64 == 0 and LDS_BYTES <= 163840
assert L_HIST % 16 == 0 and L_ACC % 16 == 0

class R: pass
def alloc():
    r = R(); n = [1]
    def al(cnt, align=1):
        n[0] = (n[0] + align - 1) // align * align
        x = n[0]; n[0] += cnt; return x
    r.lane = al(1); r.t2 = al(1); r.t3 = al(1)
    r.D0 = al(16, 4); r.D1 = al(16); r.A0 = al(16); r.A1 = al(16)
    r.W2 = al(40); r.BW = al(8); r.H = al(16)
    r.XM = al(4); r.S = al(8); r.K4 = al(4)
    r.M = al(16); r.T = al(16); r.U = al(16); r.HU = al(16); r.HR = r.HU + 8
    r.PD = al(4); r.PS = al(2); r.PQ = al(2); r.HA = al(4); r.XK = al(4)
    for nm in "A1a A2a SB TR0 TR1 AWl Desc Zero FlM FlP ML K PI NA SA t4 t5 TE EM EK EP EW ER EG EH EX".split():
        setattr(r, nm, al(1))
    r.ST = al(1) if (opt.stamp or opt.diag) else None
    r.t0, r.t1, r.V4, r.V8, r.V16, r.L16, r.DM, r.WXa = [r.W2 + 10 + k for k in range(6)] + [r.W2 + 8, r.W2 + 9]
    r.n = n[0]
    return r

P_H, P_POS, P_EA, P_SRC, P_DST, P_WE, P_WX, P_WH, P_OUT, P_DBG, P_WS = range(4, 26, 2)
SR_HD = 28; SR_P4 = 32; SR_REC = 36; SR_TAB = 40; SR_OUT = 44; SR_OUTP = 48
S_V = 52; S_RT = 53; S_T = 54; S_B4 = 55; S_MODE = 56; S_SEG = 57
S_C = 58; S_ONE = 60; S_D = 62; S_TMP = 63; S_TMP2 = 64; S_T0 = 65; S_NTL = 66; S_I = 67; S_CNT = 68; S_TMP3 = 69
S_M = 70
S_NL = 4; S_NH = 5; S_MSK = 6; S_SO0 = 7; S_SO1 = 8; S_SO2 = 9
S_NB = 10; S_NBP = 11; S_NBN = 12; S_ZP = 13; S_RM = 14; S_PADM = 15; S_HI = 16
S_FI = 18; SR_WH = 20; S_ST = 26
TS = [72 + 4 * k for k in range(7)] + [SR_OUTP]

DIAG = {0: 0, 3: 1, 4: 2, 7: 3, 10: 4, 12: 5, 13: 6, 31: 7}
def stamp(a, r, i, real=False):
    if opt.diag:
        if i in DIAG: a(f"s_waitcnt lgkmcnt(0)\ns_memrealtime {s(S_ST,2)}\ns_waitcnt lgkmcnt(0)\nv_writelane_b32 v{r.ST}, s{S_ST}, {DIAG[i]}\ns_not_b32 s{S_ST}, s{S_ST}\nv_writelane_b32 v{r.ST}, s{S_ST}, {DIAG[i]+8}")
        return
    if not opt.stamp: return
    a(f"s_waitcnt lgkmcnt(0)\n{'s_memrealtime' if real else 's_memtime'} {s(S_ST,2)}\ns_waitcnt lgkmcnt(0)\nv_writelane_b32 v{r.ST}, s{S_ST}, {i}")

def silu_stage(a0, r, D, Mo, mf_exp, mf_rcp, ins_exp, ins_rcp, pre=()):
    T = r.T
    def a(x, core=False):
        for y in ([x] if isinstance(x, str) else x):
            for z in y.split("\n"):
                z = z.strip()
                if "vmem" in opt.abl and (z.startswith("buffer_") or "vmcnt" in z): continue
                if "lds" in opt.abl and (z.startswith("ds_") or "lgkmcnt" in z): continue
                if "mfma" in opt.abl and z.startswith("v_mfma"): continue
                if "g2" in opt.abl and z.startswith("v_mfma") and (f"v[{r.A0}:" in z or f"v[{r.A1}:" in z): continue
                if "hm" in opt.abl and z.startswith("v_mfma") and any(f", v[{r.H+4*k}:" in z for k in (1, 2, 3)): continue
                if "trans" in opt.abl and (z.startswith("v_exp") or z.startswith("v_rcp")): z = z.replace("v_exp_f32", "v_mov_b32").replace("v_rcp_f32", "v_mov_b32"); a0(z)
                if "misc" in opt.abl and z.startswith("v_") and not core and not z.startswith("v_readlane"): continue
                a0(z)
    pre = list(pre)
    if opt.spread:
        keep = []; grp = None
        for x in pre:
            if grp is not None:
                grp.append(x)
                if x == "s_mov_b64 exec, -1": keep.append("\n".join(grp)); grp = None
            elif " exec," in x: grp = [x]
            elif x.startswith("s_nop"): continue
            else: keep.append(x)
        pre_map = {}
        per = opt.spread
        for j, x in enumerate(keep): pre_map.setdefault(j // per, []).append(x)
    else:
        a(pre); pre_map = {}
    for i in range(16):
        if i in mf_exp: a(mf_exp[i], True)
        a(f"v_exp_f32 v{T+i}, v{D+i}", True)
        a(pre_map.get(i, ()))
        a(ins_exp.get(i, ()))
    if opt.tprio: a(f"s_setprio {opt.tprio}")
    for i in range(0, 16, 2):
        if opt.padd: a(f"v_pk_add_f32 {v(T+i,2)}, {v(T+i,2)}, {s(S_ONE,2)}", True)
        else: a(f"v_add_f32 v{T+i}, 1.0, v{T+i}\nv_add_f32 v{T+i+1}, 1.0, v{T+i+1}", True)
    if opt.tprio: a(f"s_setprio 0")
    for i in range(16):
        if i in mf_rcp: a(mf_rcp[i], True)
        a(f"v_rcp_f32 v{T+i}, v{T+i}", True)
        a(ins_rcp.get(i, ()))
    def mul(i):
        if opt.pmul: a(f"v_pk_mul_f32 {v(T+i,2)}, {v(T+i,2)}, {v(D+i,2)}", True)
        else: a(f"v_mul_f32 v{T+i}, v{T+i}, v{D+i}\nv_mul_f32 v{T+i+1}, v{T+i+1}, v{D+i+1}", True)
    def cvt(i): a(f"v_cvt_pk_bf16_f32 v{Mo+i//2}, v{T+i}, v{T+i+1}", True)
    if opt.tprio: a(f"s_setprio {opt.tprio}")
    if opt.ilv:
        for i in range(0, 16, 2):
            mul(i)
            if i: cvt(i - 2)
        cvt(14)
    else:
        for i in range(0, 16, 2): mul(i)
        if opt.tprio: a(f"s_setprio 0")
        for i in range(0, 16, 2): cvt(i)

def geometry(r, advance):
    o = [
        f"v_dot2_f32_bf16 v{r.t2}, v{r.PS}, s{S_NL}, v{r.PD}",
        f"v_dot2_f32_bf16 v{r.t3}, v{r.PS}, s{S_NH}, v{r.PD+1}",
        f"v_dot2_f32_bf16 v{r.t4}, v{r.PS+1}, s{S_NL}, v{r.PD+2}",
        f"v_xor_b32 v{r.SA}, v{r.SB}, v{r.PD+3}",
        f"v_lshrrev_b32 v{r.PI}, 7, v{r.K}",
        f"buffer_load_dwordx2 {v(r.PS,2)}, v{r.PI}, {s(SR_P4,4)}, 0 idxen",
        f"v_cvt_pk_bf16_f32 v{r.PQ}, v{r.t2}, v{r.t3}",
        f"v_cvt_pk_bf16_f32 v{r.t5}, v{r.t4}, 0",
        f"v_cvt_pk_bf16_f32 v{r.PQ+1}, v{r.t4}, 1.0",
        f"v_dot2_f32_bf16 v{r.t2}, v{r.PQ}, v{r.PQ}, 0",
        f"v_dot2_f32_bf16 v{r.t2}, v{r.t5}, v{r.t5}, v{r.t2}",
    ]
    if advance:
        o += [f"v_add_u32 v{r.A1a}, 384, v{r.A1a}", f"v_add_u32 v{r.A2a}, 384, v{r.A2a}", "s_nop 0"]
    else:
        o += ["s_nop 2"]
    o += [
        f"v_cvt_pk_bf16_f32 v{r.XM+2}, v{r.t2}, v{r.t2}",
        f"s_mov_b64 exec, {s(S_HI,2)}",
        f"ds_read_b128 {v(r.XM,4)}, v{r.NA}",
        "s_mov_b64 exec, -1",
        f"v_lshlrev_b32_sdwa v{r.NA}, 5, v{r.K} {SDWA} src1_sel:BYTE_0",
    ]
    return o
def k_reads(r, tile_off):
    o = tile_off * 384 + 8
    return [f"ds_read_b32 v{r.K}, v{r.A1a} offset:{o}",
            f"ds_read2_b32 {v(r.K4,2)}, v{r.A2a} offset0:{o//4} offset1:{o//4+3}",
            f"ds_read2_b32 {v(r.K4+2,2)}, v{r.A2a} offset0:{o//4+6} offset1:{o//4+9}"]
def pd_read(r): return [f"ds_read_b128 {v(r.PD,4)}, v{r.NA} offset:16"]
def dma_addr(r): return [f"v_and_or_b32 v{r.K4+k}, v{r.K4+k}, s{S_MSK}, v{r.XK+k}" for k in range(4)]
def dma_issue(r):
    so = [f"s{S_SO0}", f"s{S_SO1}", f"s{S_SO2}", "0"]
    return [f"buffer_load_dwordx4 v{r.K4+k}, {s(SR_HD,4)}, {so[k]} offen offset:{1024*k} lds" for k in range(4)]
def h_reads(r): return [f"ds_read_b128 {v(r.H+4*k,4)}, v{r.HA+k}" for k in range(4)]
def ea_read(r, tile_off):
    o = tile_off * 96
    return [f"ds_read2_b32 {v(r.XM,2)}, v{r.A1a} offset0:{o} offset1:{o+1}"]
def aw_reads(r, nb):
    return [f"s_add_u32 s{S_TMP}, s{nb}, 4",
            f"s_lshr_b32 s{S_TMP}, s{S_TMP}, 3",
            f"s_lshl_b32 s{S_TMP}, s{S_TMP}, 10",
            f"s_lshr_b32 s{S_TMP2}, s{nb}, 3",
            f"s_lshl_b32 s{S_TMP2}, s{S_TMP2}, 10",
            f"v_add_u32 v{r.t2}, s{S_TMP}, v{r.AWl}",
            f"v_add_u32 v{r.t3}, s{S_TMP2}, v{r.AWl}",
            f"s_mov_b64 exec, {s(S_HI,2)}",
            f"ds_read_b64 {v(r.BW,2)}, v{r.t2}",
            f"ds_read_b64 {v(r.BW+2,2)}, v{r.t3} offset:8",
            f"ds_read_b64 {v(r.BW+4,2)}, v{r.t2} offset:512",
            f"ds_read_b64 {v(r.BW+6,2)}, v{r.t3} offset:520",
            "s_mov_b64 exec, -1"]
def s_set(r):
    return [f"s_bfm_b64 exec, s{S_CNT}, 0", f"ds_write_b64 v{r.SA}, {v(r.PQ,2)}", "s_mov_b64 exec, -1"]
def s_reads(r):
    return [f"ds_read_b64_tr_b16 {v(r.S,2)}, v{r.TR0}",
            f"ds_read_b64_tr_b16 {v(r.S+2,2)}, v{r.TR1}",
            f"ds_read_b64_tr_b16 {v(r.S+4,2)}, v{r.TR0} offset:1024",
            f"ds_read_b64_tr_b16 {v(r.S+6,2)}, v{r.TR1} offset:1024",
            f"ds_write2_b32 v{r.SA}, v{r.Zero}, v{r.Zero} offset0:0 offset1:1"]

def flush_addr(r):
    return [f"s_lshr_b32 s{S_TMP}, s{S_NBP}, 3",
          f"s_mul_i32 s{S_TMP}, s{S_TMP}, {8*ACC_ROW}",
          f"s_bitcmp1_b32 s{S_NBP}, 2",
          f"s_cselect_b32 s{S_TMP2}, {8*ACC_ROW}, 0",
          f"v_and_b32 v{r.t3}, s{S_TMP2}, v{r.ML}",
          f"v_add3_u32 v{r.t2}, v{r.FlM}, v{r.t3}, s{S_TMP}",
          f"v_add3_u32 v{r.t3}, v{r.FlP}, v{r.t3}, s{S_TMP}"]
def flush_dot(r):
    W = r.W2
    o = [f"v_pk_mul_f32 {v(r.T,2)}, {v(W,2)}, {v(r.A0,2)}", f"v_pk_mul_f32 {v(r.T+2,2)}, {v(W+16,2)}, {v(r.A1,2)}"]
    for i in range(2, 16, 2):
        o.append(f"v_pk_fma_f32 {v(r.T,2)}, {v(W+i,2)}, {v(r.A0+i,2)}, {v(r.T,2)}")
        o.append(f"v_pk_fma_f32 {v(r.T+2,2)}, {v(W+16+i,2)}, {v(r.A1+i,2)}, {v(r.T+2,2)}")
    o += [f"v_pk_add_f32 {v(r.T,2)}, {v(r.T,2)}, {v(r.T+2,2)}",
          f"v_add_f32 v{r.t4}, v{r.T}, v{r.T+1}", f"v_add_f32 v{r.t5}, v{r.T}, v{r.T+1}", "s_nop 1",
          f"v_permlane32_swap_b32 v{r.t4}, v{r.t5}", "s_nop 1", f"v_add_f32 v{r.t4}, v{r.t4}, v{r.t5}"]
    return o
EX3 = f"s_and_b32 exec_lo, s{S_RM}, 0x88888888\ns_mov_b32 exec_hi, exec_lo"
EXP = f"s_and_b32 exec_lo, s{S_RM}, 0x77777777\ns_mov_b32 exec_hi, 0"
def acc_zero(r, masked):
    o = [f"s_mov_b32 exec_lo, s{S_RM}\ns_mov_b32 exec_hi, s{S_RM}"] if masked else []
    o += [f"v_mov_b64 {v(r.A0+i,2)}, 0" for i in range(0, 32, 2)]
    if masked: o.append("s_mov_b64 exec, -1")
    return o
def flush_plain(r):
    o = flush_addr(r) + [EX3]
    o += [f"ds_write_b128 v{r.t2}, {v(r.A0+4*q,4)} offset:{32*q}" for q in range(8)]
    o += ["s_mov_b64 exec, -1"] + flush_dot(r)
    o += [EXP, f"ds_write_b32 v{r.t3}, v{r.t4}"] + acc_zero(r, True)
    return o
def flush_atomic(r):
    o = [EX3]
    for t, A in ((0, r.A0), (1, r.A1)):
        for i in range(16):
            o.append(f"ds_add_f32 v{r.t2}, v{A+i} offset:{(32*t + 8*(i>>2) + (i&3))*4}")
    o += [EXP, f"ds_add_f32 v{r.t3}, v{r.t4}", "s_mov_b64 exec, -1"]
    return o
def rmw_reads(r):
    return [EX3] + [f"ds_read_b128 {v(r.D0+4*q,4)}, v{r.t2} offset:{32*q}" for q in range(8)] + \
           [EXP, f"ds_read_b32 v{r.t5}, v{r.t3}", "s_mov_b64 exec, -1"]
def rmw_writes(r):
    o = [EX3]
    for q in range(8):
        o += ["s_waitcnt lgkmcnt(8)",
              f"v_pk_add_f32 {v(r.D0+4*q,2)}, {v(r.D0+4*q,2)}, {v(r.A0+4*q,2)}",
              f"v_pk_add_f32 {v(r.D0+4*q+2,2)}, {v(r.D0+4*q+2,2)}, {v(r.A0+4*q+2,2)}",
              f"ds_write_b128 v{r.t2}, {v(r.D0+4*q,4)} offset:{32*q}"]
    o += [EXP, "s_waitcnt lgkmcnt(8)", f"v_add_f32 v{r.t4}, v{r.t4}, v{r.t5}", f"ds_write_b32 v{r.t3}, v{r.t4}", "s_mov_b64 exec, -1"]
    return o
def retire_mask(r):
    return [f"s_mov_b32 s{S_RM}, 0xffff",
            f"s_bitcmp1_b32 s{S_NBP}, 2",
            f"s_cselect_b32 s{S_RM}, 0xffff0000, s{S_RM}",
            f"s_add_u32 s{S_TMP}, s{S_NBP}, 4",
            f"s_cmp_eq_u32 s{S_TMP}, s{S_NB}",
            f"s_cselect_b32 s{S_RM}, s{S_RM}, -1"]

def gen():
    a = Asm(); r = alloc()
    t0, t1, t2, t3, t4, t5 = r.t0, r.t1, r.t2, r.t3, r.t4, r.t5
    T_DST, T_SRC, T_EA, T_POS, T_WE, T_WH, T_H, T_X = TS
    a.label(KNAME)
    DST = r.D0; SRC = r.D0 + 8; EA = r.D0 + 16; BINA = r.D0 + 32; RNK = r.D0 + 40
    V16, V32, L16 = r.V16, r.V8, r.L16
    POSR = r.PD
    S_CN = S_T0; S_O4 = S_NTL; S_O8 = S_CNT; S_N0 = S_SEG; S_NN = S_D; S_BUD = S_I
    MA = [80, 82, 84, 86]
    e_, hh_ = t0, t1
    a(f"""
    s_cmp_ge_u32 s2, {NB}
    s_cbranch_scc1 L_done
    """)
    if opt.thr: a(f"s_memrealtime {s(S_ST,2)}")
    a(f"""
    s_load_dwordx16 s[4:19], s[0:1], 0
    s_and_b32 s3, s2, 7
    s_lshl_b32 s3, s3, 5
    s_lshr_b32 s2, s2, 3
    s_or_b32 s2, s2, s3
    s_load_dwordx4 s[20:23], s[0:1], 64
    s_load_dwordx2 s[24:25], s[0:1], 80
    v_lshrrev_b32 v{t0}, 6, v0
    v_and_b32 v{r.lane}, 63, v0
    v_readfirstlane_b32 s{S_V}, v{t0}
    v_mov_b32 v{r.Zero}, 0
    v_lshlrev_b32 v{V16}, 4, v0
    v_lshlrev_b32 v{V32}, 5, v0
    v_lshlrev_b32 v{L16}, 4, v{r.lane}
    v_mov_b64 {v(r.T,2)}, 0
    v_mov_b64 {v(r.T+2,2)}, 0
    s_mul_i32 s{S_O4}, s2, {CH*4}
    s_lshl_b32 s{S_O8}, s{S_O4}, 1
    s_mov_b32 s{S_CN}, {CH}
    s_cmp_eq_u32 s2, {NB-1}
    s_cselect_b32 s{S_CN}, {E-(NB-1)*CH}, s{S_CN}
    s_lshl_b32 s3, s{S_CN}, 2
    s_add_u32 s3, s3, s{S_O4}
    s_lshl_b32 s{S_TMP3}, s3, 1
    s_add_u32 s{S_TMP}, s{S_O4}, 8192
    s_add_u32 s{S_TMP2}, s{S_O8}, 16384
    s_lshl_b32 s{S_MODE}, s2, 10
    s_mul_i32 s{S_N0}, s2, {BN}
    v_and_b32 v{t2}, 127, v0
    v_add_u32 v{t2}, s{S_N0}, v{t2}
    v_mul_u32_u24 v{t2}, 6, v{t2}
    v_and_b32 v{POSR+2}, 2, v{t2}
    v_lshlrev_b32 v{POSR+2}, 3, v{POSR+2}
    v_and_b32 v{t2}, -4, v{t2}
    v_and_b32 v{t4}, 3, v{r.lane}
    v_bfe_u32 v{t5}, v{r.lane}, 2, 3
    v_lshl_or_b32 v{t4}, v{t5}, 3, v{t4}
    v_lshrrev_b32 v{t5}, 5, v{r.lane}
    v_lshl_or_b32 v{t4}, v{t5}, 2, v{t4}
    v_lshlrev_b32 v{t4}, 1, v{t4}
    s_waitcnt lgkmcnt(0)
    """)
    if opt.tw:
        a(f"""
        s_cmp_lg_u32 s{S_V}, 7
        s_cbranch_scc1 L_notw
        v_min_u32 v{t2}, 6, v{r.lane}
        v_lshlrev_b32 v{t2}, 21, v{t2}
        v_mov_b32 v{t4}, {10300000 & ~127}
        v_cmp_eq_u32 vcc, 5, v{r.lane}
        s_mul_i32 s{S_D}, s2, {BN*128}
        s_nop 0
        v_cndmask_b32 v{t2}, v{t2}, v{t4}, vcc
        v_mov_b32 v{t4}, {14500000 & ~127}
        v_cmp_le_u32 vcc, 6, v{r.lane}
        v_and_b32 v{t5}, 1, v{r.lane}
        s_nop 0
        v_cndmask_b32 v{t2}, v{t2}, v{t4}, vcc
        global_load_dword v{r.DM}, v{t2}, {s(P_WS,2)} sc1
        v_mul_u32_u24 v{t2}, 3199872, v{t5}
        global_load_dword v{r.DM}, v{t2}, {s(P_H,2)}
        v_mov_b32 v{t4}, s{S_D}
        v_cmp_eq_u32 vcc, 0, v{t5}
        v_mov_b32 v{t2}, 3349888
        s_nop 0
        v_cndmask_b32 v{t2}, v{t2}, v{t4}, vcc
        global_load_dword v{r.DM}, v{t2}, {s(P_OUT,2)} sc1
        L_notw:
        """)
    a(srd(SR_TAB, P_WS, NB * 1024, WS_TAB))
    a(f"s_cmp_lg_u32 s{S_V}, 0\ns_cbranch_scc1 L_noclr\nbuffer_store_dwordx4 {v(r.T,4)}, v{L16}, {s(SR_TAB,4)}, s{S_MODE} offen {opt.st}\nL_noclr:")
    a(srd(T_POS, P_POS, N * 6)); a(srd(T_X, P_WX, 128))
    a(f"""
    s_cmp_gt_u32 s{S_V}, 4
    s_cbranch_scc1 L_nopos
    s_cmp_eq_u32 s{S_V}, 4
    s_cbranch_scc1 L_wx
    buffer_load_dwordx2 {v(POSR,2)}, v{t2}, {s(T_POS,4)}, 0 offen
    s_branch L_nopos
    L_wx:
    buffer_load_ushort v{POSR+3}, v{t4}, {s(T_X,4)}, 0 offen
    L_nopos:
    """)
    a(srd(T_DST, P_DST, "s3"))
    a(f"""
    v_lshlrev_b32 v{r.V4}, 3, v0
    s_add_u32 s{S_TMP2}, s{S_O4}, 4096
    buffer_load_dwordx2 {v(DST,2)}, v{r.V4}, {s(T_DST,4)}, s{S_O4} offen {opt.ld}
    buffer_load_dwordx2 {v(DST+2,2)}, v{r.V4}, {s(T_DST,4)}, s{S_TMP2} offen {opt.ld}
    s_add_u32 s{S_TMP2}, s{S_TMP}, 4096
    buffer_load_dwordx2 {v(DST+4,2)}, v{r.V4}, {s(T_DST,4)}, s{S_TMP} offen {opt.ld}
    buffer_load_dwordx2 {v(DST+6,2)}, v{r.V4}, {s(T_DST,4)}, s{S_TMP2} offen {opt.ld}
    """)
    a(srd(T_SRC, P_SRC, "s3")); a(srd(T_EA, P_EA, f"s{S_TMP3}"))
    if not opt.late:
        a(f"""
        buffer_load_dwordx2 {v(SRC+0,2)}, v{r.V4}, {s(T_SRC,4)}, s{S_O4} offen {opt.ld}
        buffer_load_dwordx4 {v(EA+0,4)}, v{V16}, {s(T_EA,4)}, s{S_O8} offen {opt.ld}
        s_add_u32 s{S_O4}, s{S_O4}, 4096
        s_add_u32 s{S_O8}, s{S_O8}, 8192
        buffer_load_dwordx2 {v(SRC+2,2)}, v{r.V4}, {s(T_SRC,4)}, s{S_O4} offen {opt.ld}
        buffer_load_dwordx4 {v(EA+4,4)}, v{V16}, {s(T_EA,4)}, s{S_O8} offen {opt.ld}
        s_add_u32 s{S_O4}, s{S_O4}, 4096
        s_add_u32 s{S_O8}, s{S_O8}, 8192
        buffer_load_dwordx2 {v(SRC+4,2)}, v{r.V4}, {s(T_SRC,4)}, s{S_O4} offen {opt.ld}
        buffer_load_dwordx4 {v(EA+8,4)}, v{V16}, {s(T_EA,4)}, s{S_O8} offen {opt.ld}
        s_add_u32 s{S_O4}, s{S_O4}, 4096
        s_add_u32 s{S_O8}, s{S_O8}, 8192
        buffer_load_dwordx2 {v(SRC+6,2)}, v{r.V4}, {s(T_SRC,4)}, s{S_O4} offen {opt.ld}
        buffer_load_dwordx4 {v(EA+12,4)}, v{V16}, {s(T_EA,4)}, s{S_O8} offen {opt.ld}
        """)
    if opt.stamp or opt.diag: a(f"v_mov_b32 v{r.ST}, 0")
    stamp(a, r, 0, True); stamp(a, r, 1)
    a(f"""
    v_add_u32 v{t3}, {L_HIST}, v{L16}
    ds_write_b128 v{t3}, {v(r.T,4)}
    s_lshl_b32 s{S_B4}, s2, 2
    s_lshr_b32 s{S_RT}, s{S_V}, 1
    s_and_b32 s{S_T}, s{S_V}, 1
    """)
    NY = 10
    a(f"""
    s_add_u32 s{SR_HD}, s{P_WS}, {WS_B-3072}
    s_addc_u32 s{SR_HD+1}, s{P_WS+1}, 0
    s_mov_b32 s{SR_HD+2}, {N*128+3072}
    s_mov_b32 s{SR_HD+3}, 0x00020000
    """)
    a(srd(SR_REC, P_WS, NB * REC_STRIDE)); a(srd(SR_P4, P_WS, N, WS_P4))
    a(f"""
    s_and_b32 s{SR_P4+1}, s{SR_P4+1}, 0xffff
    s_or_b32 s{SR_P4+1}, s{SR_P4+1}, 0x80000
    s_sub_u32 s{S_NN}, {N}, s{S_N0}
    s_min_u32 s{S_NN}, s{S_NN}, {BN}
    s_lshl_b32 s{S_TMP}, s{S_N0}, 7
    s_lshl_b32 s{S_TMP2}, s{S_NN}, 7
    """)
    a(srd(SR_OUT, P_OUT, f"s{S_TMP2}", f"s{S_TMP}"))
    a(f"s_mul_i32 s{S_TMP}, s{S_N0}, 6\ns_add_u32 s{S_TMP}, s{S_TMP}, {OUT_POS}\ns_mul_i32 s{S_TMP2}, s{S_NN}, 6")
    a(srd(SR_OUTP, P_OUT, f"s{S_TMP2}", f"s{S_TMP}"))
    T_RO = T_DST; T_DBG = T_SRC
    if opt.late:
        a(f"""
        buffer_load_dwordx2 {v(SRC+0,2)}, v{r.V4}, {s(T_SRC,4)}, s{S_O4} offen {opt.ld}
        buffer_load_dwordx4 {v(EA+0,4)}, v{V16}, {s(T_EA,4)}, s{S_O8} offen {opt.ld}
        s_add_u32 s{S_O4}, s{S_O4}, 4096
        s_add_u32 s{S_O8}, s{S_O8}, 8192
        buffer_load_dwordx2 {v(SRC+2,2)}, v{r.V4}, {s(T_SRC,4)}, s{S_O4} offen {opt.ld}
        buffer_load_dwordx4 {v(EA+4,4)}, v{V16}, {s(T_EA,4)}, s{S_O8} offen {opt.ld}
        s_add_u32 s{S_O4}, s{S_O4}, 4096
        s_add_u32 s{S_O8}, s{S_O8}, 8192
        buffer_load_dwordx2 {v(SRC+4,2)}, v{r.V4}, {s(T_SRC,4)}, s{S_O4} offen {opt.ld}
        buffer_load_dwordx4 {v(EA+8,4)}, v{V16}, {s(T_EA,4)}, s{S_O8} offen {opt.ld}
        s_add_u32 s{S_O4}, s{S_O4}, 4096
        s_add_u32 s{S_O8}, s{S_O8}, 8192
        buffer_load_dwordx2 {v(SRC+6,2)}, v{r.V4}, {s(T_SRC,4)}, s{S_O4} offen {opt.ld}
        buffer_load_dwordx4 {v(EA+12,4)}, v{V16}, {s(T_EA,4)}, s{S_O8} offen {opt.ld}
        """)
    a(f"s_mul_i32 s{S_TMP}, s2, {REC_STRIDE}\ns_mul_i32 s{S_TMP2}, s{S_CN}, 12")
    a(srd(T_RO, P_WS, f"s{S_TMP2}", f"s{S_TMP}")); a(srd(T_DBG, P_DBG, 256))
    ONE = r.PQ
    a(f"""
    v_mov_b32 v{ONE}, 1
    s_lshr_b32 s3, s{S_CN}, 1
    v_cmp_gt_u32 {s(MA[0],2)}, s3, v0
    v_add_u32 v{t2}, 512, v0
    v_cmp_gt_u32 {s(MA[1],2)}, s3, v{t2}
    v_add_u32 v{t2}, 1024, v0
    v_cmp_gt_u32 {s(MA[2],2)}, s3, v{t2}
    v_add_u32 v{t2}, 1536, v0
    v_cmp_gt_u32 {s(MA[3],2)}, s3, v{t2}
    """)
    a(f"""
    s_mov_b32 s{S_C}, 0x{f2u(-LOG2E):08x}
    s_mov_b32 s{S_C+1}, 0x{f2u(-LOG2E):08x}
    s_mov_b32 s{S_ONE}, 1.0
    s_mov_b32 s{S_ONE+1}, 1.0
    s_mov_b32 s{S_MODE}, 0
    s_mov_b32 s{S_BUD}, 0x40000
    """)
    nonlocal_z = [r.T]
    def zero_region(base, size):
        assert base % 16 == 0 and size % 16 == 0
        full = size // 8192; rem = size % 8192
        a(f"v_add_u32 v{t3}, {base}, v{V16}")
        for k in range(full):
            a(f"ds_write_b128 v{t3}, {v(nonlocal_z[0],4)} offset:{k*8192}")
        if rem:
            a(f"v_cmp_gt_u32 vcc, {rem//16}, v0\ns_and_saveexec_b64 {s(S_D,2)}, vcc")
            a(f"ds_write_b128 v{t3}, {v(nonlocal_z[0],4)} offset:{full*8192}\ns_mov_b64 exec, -1")
    a(f"""
    ds_write_b128 v{L16}, {v(nonlocal_z[0],4)} offset:{L_CNT}
    v_mov_b32 v{t3}, {L_FLAG}
    ds_write_b128 v{t3}, {v(nonlocal_z[0],4)}
    """)
    zero_region(L_SIMG, 8 * 2048)
    JJ = r.SA; LB = r.HA + 0; J16 = r.HA + 1
    a(f"""
    v_and_b32 v{e_}, 31, v{r.lane}
    v_lshrrev_b32 v{hh_}, 5, v{r.lane}
    s_lshl_b32 s{S_TMP}, s{S_V}, 12
    s_add_u32 s{S_TMP}, s{S_TMP}, {L_RING}
    s_mov_b32 m0, s{S_TMP}
    v_and_b32 v{t2}, 3, v{e_}
    v_lshlrev_b32 v{t3}, 10, v{t2}
    v_lshrrev_b32 v{t4}, 2, v{e_}
    v_lshl_add_u32 v{t3}, v{t4}, 7, v{t3}
    v_add_u32 v{t3}, s{S_TMP}, v{t3}
    v_bfe_u32 v{t4}, v{e_}, 3, 1
    v_lshl_or_b32 v{t2}, v{t4}, 2, v{t2}
    v_xor_b32 v{t2}, v{t2}, v{hh_}
    """)
    for k in range(4):
        a(f"v_xor_b32 v{t4}, {2*k}, v{t2}\nv_lshl_add_u32 v{r.HA+k}, v{t4}, 4, v{t3}")
    a(f"""
    v_and_b32 v{t2}, 7, v{r.lane}
    v_bfe_u32 v{t3}, v{r.lane}, 4, 1
    v_lshlrev_b32 v{t3}, 2, v{t3}
    v_xor_b32 v{t2}, v{t2}, v{t3}
    """)
    for k in range(4):
        a(f"v_xor_b32 v{t4}, {k}, v{t2}\nv_lshlrev_b32 v{r.XK+k}, 4, v{t4}")
    JJ = r.SA; LB = r.A1a; J16 = r.A2a; MX = r.NA; TA = r.Desc
    LP = r.K; LPT = r.PI
    a(f"""
    s_lshl_b32 s{S_TMP}, s{S_V}, 11
    s_add_u32 s{S_TMP}, s{S_TMP}, {L_SIMG}
    v_bfe_u32 v{t2}, v{e_}, 1, 3
    v_lshlrev_b32 v{t2}, 3, v{t2}
    v_lshl_add_u32 v{t2}, v{e_}, 6, v{t2}
    v_add_u32 v{r.SB}, s{S_TMP}, v{t2}
    v_bfe_u32 v{t2}, v{r.lane}, 2, 2
    v_lshl_add_u32 v{t2}, v{hh_}, 2, v{t2}
    v_bfe_u32 v{t3}, v{r.lane}, 4, 1
    v_and_b32 v{t4}, 3, v{r.lane}
    v_lshl_or_b32 v{t3}, v{t3}, 2, v{t4}
    v_lshlrev_b32 v{LP}, 3, v{t3}
    v_bfe_u32 v{t4}, v{r.lane}, 2, 2
    v_lshl_add_u32 v{LP}, v{t4}, 7, v{LP}
    v_lshrrev_b32 v{t4}, 1, v{t2}
    v_xor_b32 v{t3}, v{t3}, v{t4}
    v_lshlrev_b32 v{t2}, 6, v{t2}
    v_add_u32 v{t2}, s{S_TMP}, v{t2}
    v_lshl_add_u32 v{r.TR0}, v{t3}, 3, v{t2}
    v_xor_b32 v{t3}, 4, v{t3}
    v_lshl_add_u32 v{r.TR1}, v{t3}, 3, v{t2}
    v_add_u32 v{r.TR1}, 512, v{r.TR1}
    v_lshlrev_b32 v{t2}, 4, v{e_}
    v_add_u32 v{r.AWl}, {L_AT}, v{t2}
    v_lshrrev_b32 v{t2}, 2, v{e_}
    v_mul_u32_u24 v{t2}, {ACC_ROW}, v{t2}
    v_add_u32 v{t2}, {L_ACC}, v{t2}
    v_lshl_add_u32 v{r.FlM}, v{hh_}, 4, v{t2}
    v_and_b32 v{t3}, 3, v{e_}
    v_lshl_add_u32 v{r.FlP}, v{t3}, 2, v{t2}
    v_add_u32 v{r.FlP}, 256, v{r.FlP}
    v_bfe_u32 v{t2}, v{e_}, 4, 1
    v_add_u32 v{r.ML}, -1, v{t2}
    v_lshrrev_b32 v{t5}, 4, v0
    v_lshlrev_b32 v{TA}, 10, v{t5}
    v_and_b32 v{t2}, 15, v0
    v_add_u32 v{JJ}, 0x8000, v{t2}
    v_add_u32 v{J16}, 0x8010, v{t2}
    s_mov_b32 s{S_TMP}, {REC_STRIDE}
    v_mul_lo_u32 v{LB}, v{t5}, s{S_TMP}
    v_mad_u32_u24 v{LB}, v{t2}, 12, v{LB}
    v_mov_b32 v{MX}, 0
    v_lshrrev_b32 v{t2}, 3, v{r.lane}
    v_and_b32 v{t3}, 7, v{r.lane}
    v_lshrrev_b32 v{t4}, 4, v{r.lane}
    s_lshl_b32 s3, s{S_T}, 2
    v_or_b32 v{t4}, s3, v{t4}
    v_xor_b32 v{t3}, v{t3}, v{t4}
    v_lshlrev_b32 v{t3}, 4, v{t3}
    v_lshl_add_u32 v{r.HR}, v{t2}, 7, v{t3}
    """)
    a(f"s_add_u32 s3, s{S_N0}, 104\ns_min_u32 s3, s3, {N}\ns_lshl_b32 s3, s3, 7")
    a(srd(T_WE, P_WE, 133 * 128)); a(srd(SR_WH, P_WH, 128 * 128)); a(srd(T_H, P_H, "s3"))
    a(f"""
    s_mov_b32 s{S_TMP}, 5350
    s_mov_b32 s{S_TMP2}, {BN}
    s_mov_b32 s3, {L_HIST}
    s_waitcnt lgkmcnt(0)
    s_barrier
    s_cmp_lg_u32 s{S_V}, 0
    s_cbranch_scc1 L_noflag
    v_mov_b32 v{t3}, s2
    s_waitcnt vmcnt(13)
    s_mov_b64 exec, 1
    buffer_store_byte v{ONE}, v{t3}, {s(T_DBG,4)}, 0 offen sc1
    s_mov_b64 exec, -1
    L_noflag:
    """)
    stamp(a, r, 2)
    for half in range(4):
        a(f"s_waitcnt vmcnt({11 - half})\ns_mov_b64 exec, {s(MA[half],2)}")
        for k in range(2 * half, 2 * half + 2):
            a(f"""
            v_mul_u32_u24 v{BINA+k}, s{S_TMP}, v{DST+k}
            v_lshrrev_b32 v{BINA+k}, 19, v{BINA+k}
            v_mul_u32_u24 v{t2}, s{S_TMP2}, v{BINA+k}
            v_lshl_add_u32 v{BINA+k}, v{BINA+k}, 2, s3
            ds_add_rtn_u32 v{RNK+k}, v{BINA+k}, v{ONE}
            v_sub_u32 v{DST+k}, v{DST+k}, v{t2}
            """)
    C = r.T; TE = r.M
    a(f"""
    s_mov_b64 exec, -1
    v_add_u32 v{t2}, {L_HIST}, v{L16}
    s_waitcnt lgkmcnt(0)
    s_barrier
    """)
    stamp(a, r, 3)
    a(f"""
    ds_read_b128 {v(C,4)}, v{t2}
    s_lshl_b32 s{S_TMP}, s{S_V}, 10
    s_add_u32 s{S_TMP2}, s{S_TMP}, 8192
    s_cmp_lg_u32 s{S_V}, 1
    s_cbranch_scc1 L_nowe
    s_mov_b32 m0, {L_WE+16384}
    s_mov_b32 s3, 16384
    buffer_load_dwordx4 v{L16}, {s(T_WE,4)}, s3 offen lds
    L_nowe:
    s_add_u32 m0, s{S_TMP}, {L_WE}
    s_lshl_b32 s3, s{S_N0}, 7
    buffer_load_dwordx4 v{L16}, {s(T_WE,4)}, s{S_TMP} offen lds
    s_add_u32 m0, s{S_TMP}, {L_WE+8192}
    s_add_u32 s3, s3, s{S_TMP}
    buffer_load_dwordx4 v{L16}, {s(T_WE,4)}, s{S_TMP2} offen lds
    s_add_u32 m0, s{S_TMP}, {L_HST}
    s_add_u32 s{S_TMP3}, s3, 8192
    buffer_load_dwordx4 v{r.HR}, {s(T_H,4)}, s3 offen lds
    s_add_u32 m0, s{S_TMP}, {L_HST+8192}
    s_lshl_b32 s{S_TMP}, s{S_V}, 12
    buffer_load_dwordx4 v{r.HR}, {s(T_H,4)}, s{S_TMP3} offen lds
    s_add_u32 m0, s{S_TMP}, {L_RING}
    s_waitcnt lgkmcnt(0)
    v_add_u32 v{C+5}, v{C}, v{C+1}
    v_add_u32 v{C+6}, v{C+5}, v{C+2}
    v_add_u32 v{C+7}, v{C+6}, v{C+3}
    v_mov_b32 v{C+4}, v{C+7}
    """)
    a(wave_scan(C + 4))
    a(f"""
    v_sub_u32 v{C+8}, v{C+4}, v{C+7}
    v_add_u32 v{C+9}, v{C+8}, v{C}
    v_add_u32 v{C+10}, v{C+8}, v{C+5}
    v_add_u32 v{C+11}, v{C+8}, v{C+6}
    ds_write_b128 v{t2}, {v(C+8,4)} offset:1024
    """)
    for half in range(4):
        a(f"s_mov_b64 exec, {s(MA[half],2)}")
        for k in range(2 * half, 2 * half + 2):
            a(f"ds_read_b32 v{BINA+k}, v{BINA+k} offset:1024")
    TEV = r.A1 + 12
    a("s_mov_b64 exec, -1")
    for k in range(4):
        a(f"v_mul_u32_u24 v{TEV+k}, 12, v{C+8+k}\nv_lshl_or_b32 v{TEV+k}, v{C+k}, 16, v{TEV+k}\nv_or_b32 v{TEV+k}, 0x80000000, v{TEV+k}")
    if opt.fine: stamp(a, r, 18); stamp(a, r, 19)
    for half in range(4):
        a(f"s_waitcnt vmcnt({10 - 2*half}) lgkmcnt({6 + 2*half})\ns_mov_b64 exec, {s(MA[half],2)}")
        for k in range(2 * half, 2 * half + 2):
            a(f"""
            v_add_lshl_u32 v{BINA+k}, v{BINA+k}, v{RNK+k}, 4
            v_lshl_or_b32 v{SRC+k}, v{SRC+k}, 7, v{DST+k}
            ds_write_b64 v{BINA+k}, {v(EA+2*k,2)} offset:{L_STG}
            ds_write_b32 v{BINA+k}, v{SRC+k} offset:{L_STG+8}
            """)
    if opt.fine: stamp(a, r, 20)
    a("s_mov_b64 exec, -1")
    a(f"""
    s_mov_b32 s{S_NL}, 0x0000bf80
    s_mov_b32 s{S_NH}, 0xbf800000
    s_mov_b32 s{S_MSK}, 0xffffff80
    s_mov_b32 s{S_SO0}, 3072
    s_mov_b32 s{S_SO1}, 2048
    s_mov_b32 s{S_SO2}, 1024
    s_mov_b32 s{S_HI}, 0
    s_mov_b32 s{S_HI+1}, -1
    v_mul_u32_u24 v{t2}, 12, v0
    v_add_u32 v{t5}, {L_WE + 128*128}, v{LP}
    v_lshl_add_u32 v{LP}, v{hh_}, 10, v{LP}
    s_lshl_b32 s{S_TMP}, s{S_T}, 6
    s_add_u32 s{S_TMP}, s{S_TMP}, {L_ACC}
    v_add_u32 v{LPT}, s{S_TMP}, v{LP}
    s_lshl_b32 s{S_TMP2}, s{S_RT}, 11
    v_add_u32 v{t4}, s{S_TMP2}, v{LPT}
    """)
    if opt.fine: stamp(a, r, 21)
    a("s_waitcnt lgkmcnt(0)\ns_barrier")
    stamp(a, r, 4)
    CO = r.D0; DBGV = r.A1 + 8
    for k in range(7):
        a(f"ds_read_b96 {v(CO+4*k,3)}, v{V16} offset:{L_STG + k*8192}")
    for k in range(7):
        a(f"s_mov_b32 s3, {k*6144}\ns_waitcnt lgkmcnt({6-k})")
        a(f"buffer_store_dwordx3 {v(CO+4*k,3)}, v{t2}, {s(T_RO,4)}, s3 offen {opt.st}")
    a(f"v_lshlrev_b32 v{DBGV+1}, 2, v{r.lane}\ns_cmp_lg_u32 s{S_V}, 0\ns_cbranch_scc1 L_nodbg\nbuffer_load_dword v{DBGV}, v{DBGV+1}, {s(T_DBG,4)}, 0 offen sc1\nL_nodbg:")
    stamp(a, r, 5)
    UP = r.W2 + 2; Q5 = r.W2 + 16; NTD = r.W2 + 24; W1F = r.T; AD = r.XM; ID = r.W2 + 32
    HAD = r.U; W2F = r.M; BD = r.XM; BO = r.W2; T_BO = 80
    a(f"""
    s_lshl_b32 s{S_TMP}, s{S_RT}, 12
    s_add_u32 s{S_TMP}, s{S_TMP}, {L_HST}
    v_lshlrev_b32 v{t2}, 7, v{e_}
    v_add_u32 v{t2}, s{S_TMP}, v{t2}
    v_bfe_u32 v{t3}, v{e_}, 1, 3
    v_xor_b32 v{t4}, v{t3}, v{hh_}
    """)
    for k in range(4):
        a(f"v_xor_b32 v{HAD+k}, {2*k}, v{t4}\nv_lshl_add_u32 v{HAD+k}, v{HAD+k}, 4, v{t2}")
    a(f"s_lshl_b32 s{S_TMP}, s{S_T}, 2\nv_xor_b32 v{t4}, s{S_TMP}, v{t3}\nv_lshl_add_u32 v{t2}, v{hh_}, 3, v{t2}")
    for g in range(4):
        a(f"v_xor_b32 v{HAD+4+g}, {g}, v{t4}\nv_lshl_add_u32 v{HAD+4+g}, v{HAD+4+g}, 4, v{t2}")
    a(f"""
    s_mul_i32 s{S_TMP}, s{S_RT}, {32*144}
    s_lshl_b32 s{S_TMP2}, s{S_T}, 6
    s_add_u32 s{S_TMP}, s{S_TMP}, s{S_TMP2}
    v_mul_u32_u24 v{t2}, 144, v{e_}
    v_lshl_add_u32 v{t2}, v{hh_}, 3, v{t2}
    v_add_u32 v{HAD+8}, s{S_TMP}, v{t2}
    s_mul_i32 s{S_TMP}, s{S_V}, {16*144}
    v_lshrrev_b32 v{t2}, 3, v{r.lane}
    v_mul_u32_u24 v{t2}, 144, v{t2}
    v_and_b32 v{t3}, 7, v{r.lane}
    v_lshl_add_u32 v{t2}, v{t3}, 4, v{t2}
    v_add_u32 v{HAD+9}, s{S_TMP}, v{t2}
    s_lshl_b32 s{S_TMP}, s{S_N0}, 7
    s_add_u32 s{S_TMP}, s{S_TMP}, {WS_B}
    """)
    a(srd(T_BO, P_WS, f"s{SR_OUT+2}", f"s{S_TMP}"))
    a(f"s_lshl_b32 s3, s{S_V}, 11\ns_waitcnt vmcnt(7)\ns_barrier")
    for k in range(4):
        a(f"ds_read_b128 {v(r.H+4*k,4)}, v{HAD+k}")
        a(f"ds_read_b64_tr_b16 {v(W2F+4*k,2)}, v{LPT} offset:{16384+2048*k}\nds_read_b64_tr_b16 {v(W2F+4*k+2,2)}, v{LPT} offset:{16384+2048*k+512}")
    for k in range(4):
        a(f"s_waitcnt lgkmcnt({9-3*k})")
        a(mfma(BD, W2F+4*k, r.H+4*k, BD if k else None))
    for t in range(2):
        a(f"ds_read_b64_tr_b16 {v(Q5+4*t,2)}, v{t5} offset:{128+64*t}\nds_read_b64_tr_b16 {v(Q5+4*t+2,2)}, v{t5} offset:{64*t}")
    for g in range(4):
        a(f"ds_read_b64 {v(r.HR+2*g,2)}, v{HAD+4+g}")
    a("s_nop 3")
    for g in range(4):
        x = BD + 4 * g
        a(f"""
        v_pk_mul_f32 {v(x,2)}, {v(x,2)}, {s(S_C,2)}
        v_pk_mul_f32 {v(x+2,2)}, {v(x+2,2)}, {s(S_C,2)}
        v_cvt_pk_bf16_f32 v{x}, v{x}, v{x+1}
        v_cvt_pk_bf16_f32 v{x+1}, v{x+2}, v{x+3}
        ds_write_b64 v{HAD+8}, {v(x,2)} offset:{L_REC+16*g}
        """)
    a(f"""
    s_waitcnt lgkmcnt(0)
    s_barrier
    ds_read_b128 {v(BO,4)}, v{HAD+9} offset:{L_REC}
    ds_read_b128 {v(BO+4,4)}, v{HAD+9} offset:{L_REC+8*144}
    s_waitcnt lgkmcnt(1)
    buffer_store_dwordx4 {v(BO,4)}, v{L16}, {s(T_BO,4)}, s3 offen {opt.st}
    s_waitcnt lgkmcnt(0)
    buffer_store_dwordx4 {v(BO+4,4)}, v{L16}, {s(T_BO,4)}, s3 offen offset:1024 {opt.st}
    """)
    for k in range(4):
        a(f"ds_read_b64_tr_b16 {v(W1F+4*k,2)}, v{LPT} offset:{8192+2048*k}\nds_read_b64_tr_b16 {v(W1F+4*k+2,2)}, v{LPT} offset:{8192+2048*k+512}")
    a(f"""
    v_alignbit_b32 v{r.PS}, v{POSR+1}, v{POSR}, v{POSR+2}
    v_lshrrev_b32 v{r.PS+1}, v{POSR+2}, v{POSR+1}
    v_and_b32 v{r.PS+1}, 0xffff, v{r.PS+1}
    v_add_u32 v{t3}, s{S_N0}, v0
    v_cmp_gt_u32 vcc, {BN}, v0
    s_and_saveexec_b64 {s(S_D,2)}, vcc
    buffer_store_dwordx2 {v(r.PS,2)}, v{t3}, {s(SR_P4,4)}, 0 idxen {opt.st}
    s_mov_b64 exec, -1
    v_and_b32 v{t2}, 1, v0
    v_lshlrev_b32 v{t2}, 4, v{t2}
    v_mov_b32 v{t3}, 0x3f80
    v_lshlrev_b32 v{t2}, v{t2}, v{t3}
    v_bfe_u32 v{t3}, v0, 1, 2
    """)
    for d in range(4):
        a(f"v_cmp_eq_u32 vcc, {d}, v{t3}\ns_nop 1\nv_cndmask_b32 v{NTD+d}, 0, v{t2}, vcc")
    a(f"""
    v_lshlrev_b32 v{NTD+4}, 16, v{r.PS}
    v_and_b32 v{NTD+5}, 0xffff0000, v{r.PS}
    v_lshlrev_b32 v{NTD+6}, 16, v{r.PS+1}
    v_and_b32 v{t3}, 7, v0
    v_lshlrev_b32 v{NTD+7}, 3, v{t3}
    v_lshlrev_b32 v{POSR+3}, 16, v{POSR+3}
    v_mul_f32 v{POSR+3}, 0x{f2u(-LN2):08x}, v{POSR+3}
    v_lshlrev_b32 v{t3}, 2, v{r.lane}
    v_add_u32 v{t3}, {L_WX}, v{t3}
    s_cmp_lg_u32 s{S_V}, 4
    s_cbranch_scc1 L_nowx
    ds_write_b32 v{t3}, v{POSR+3}
    L_nowx:
    s_cmp_ge_u32 s{S_V}, 4
    s_cbranch_scc1 L_nont
    ds_write_b128 v{V32}, {v(NTD,4)}
    ds_write_b128 v{V32}, {v(NTD+4,4)} offset:16
    L_nont:
    """)
    for t in range(2):
        x = Q5 + 4 * t; B = r.BW + 4 * t
        a(f"""
        v_lshlrev_b32 v{UP}, 16, v{x}
        v_and_b32 v{UP+1}, 0xffff0000, v{x}
        v_lshlrev_b32 v{UP+2}, 16, v{x+1}
        v_and_b32 v{UP+3}, 0xffff0000, v{x+1}
        v_lshlrev_b32 v{UP+4}, 16, v{x+2}
        v_pk_mul_f32 {v(UP,2)}, {v(UP,2)}, {s(S_C,2)}
        v_pk_mul_f32 {v(UP+2,2)}, {v(UP+2,2)}, {s(S_C,2)}
        v_mul_f32 v{UP+4}, s{S_C}, v{UP+4}
        v_cvt_pk_bf16_f32 v{B}, v{UP}, v{UP+1}
        v_cvt_pk_bf16_f32 v{B+1}, v{UP+2}, v{UP+3}
        v_cvt_pk_bf16_f32 v{UP+5}, v{UP+4}, v{UP+4}
        v_lshlrev_b32 v{UP+5}, 16, v{UP+5}
        v_sub_f32 v{UP+5}, v{UP+4}, v{UP+5}
        v_cvt_pk_bf16_f32 v{B+2}, v{UP+4}, v{UP+5}
        v_mov_b32 v{B+3}, 0
        """)
    a(f"v_lshrrev_b32 v{t2}, 3, v{e_}\nv_sub_u32 v{t2}, v{t2}, v{hh_}")
    for st in range(2):
        a(f"v_cmp_eq_u32 vcc, {2*st}, v{t2}\ns_nop 1")
        for d in range(4): a(f"v_cndmask_b32 v{ID+4*st+d}, 0, v{NTD+d}, vcc")
    stamp(a, r, 6)
    a(f"""
    s_lshl_b32 s3, s2, 10
    s_mov_b32 s{S_TMP}, 0x01010101
    s_waitcnt vmcnt(0) lgkmcnt(0)
    s_cmp_lg_u32 s{S_V}, 0
    s_cbranch_scc1 L_chkd
    L_chk:
    v_cmp_ne_u32 vcc, s{S_TMP}, v{DBGV}
    s_cbranch_vccz L_chkd
    s_sub_u32 s{S_BUD}, s{S_BUD}, 1
    s_cbranch_scc1 L_chkd
    s_sleep 8
    buffer_load_dword v{DBGV}, v{DBGV+1}, {s(T_DBG,4)}, 0 offen sc1
    s_waitcnt vmcnt(0)
    s_branch L_chk
    L_chkd:
    s_barrier
    s_cmp_lg_u32 s{S_V}, 0
    s_cbranch_scc1 L_nopub
    buffer_store_dwordx4 {v(TEV,4)}, v{L16}, {s(SR_TAB,4)}, s3 offen {opt.pub}
    L_nopub:
    s_mov_b32 s{S_TMP}, s{S_B4}
    """)
    stamp(a, r, 7)
    def REC(q): return r.D0 + 4 * q
    TABV = r.M; ADR = r.T
    for rr in range(8):
        a(f"buffer_load_dword v{TABV+rr}, v{TA}, {s(SR_TAB,4)}, s{S_TMP} offen {opt.hl}")
        if rr < 7: a(f"s_add_u32 s{S_TMP}, s{S_TMP}, 32768")
    for k in range(4): a(mfma(AD, r.H+4*k, W1F+4*k, AD if k else None))
    a("s_nop 3")
    a(f"""
    s_lshl_b32 s{S_TMP}, s{S_RT}, 12
    s_lshl_b32 s{S_TMP2}, s{S_T}, 9
    s_add_u32 s{S_TMP}, s{S_TMP}, s{S_TMP2}
    s_add_u32 s{S_TMP}, s{S_TMP}, {L_AT}
    v_lshlrev_b32 v{t2}, 4, v{e_}
    v_lshl_add_u32 v{t2}, v{hh_}, 3, v{t2}
    v_add_u32 v{t2}, s{S_TMP}, v{t2}
    s_nop 0
    """)
    for g in range(4):
        x = AD + 4 * g
        if g == 1: a(f"s_cmp_eq_u32 s{S_RT}, 3\ns_cbranch_scc1 L_at_done")
        a(f"""
        v_pk_mul_f32 {v(x,2)}, {v(x,2)}, {s(S_C,2)}
        v_pk_mul_f32 {v(x+2,2)}, {v(x+2,2)}, {s(S_C,2)}
        v_cvt_pk_bf16_f32 v{x}, v{x}, v{x+1}
        v_cvt_pk_bf16_f32 v{x+1}, v{x+2}, v{x+3}
        ds_write_b64 v{t2}, {v(x,2)} offset:{g*1024}
        """)
    a.label("L_at_done")
    a(f"v_mov_b32 v{r.XM+3}, 0")
    for j in range(8):
        if j < 7: a(f"v_lshlrev_b32 v{r.HU+2*j}, 16, v{r.HR+j}\nv_and_b32 v{r.HU+2*j+1}, 0xffff0000, v{r.HR+j}")
        else: a(f"v_lshlrev_b32 v{r.HU+2*j}, 16, v{r.HR+j}\nv_and_b32 v{r.HU+2*j+1}, 0xffff0000, v{r.HR+j}")
    for i in range(2, 8, 2): a(f"v_mov_b64 {v(r.S+i,2)}, 0")
    a(f"""
    v_add_u32 v{r.EH}, {L_WH1 - L_ACC}, v{LPT}
    s_mul_i32 s{S_TMP}, s{S_RT}, {32*ACC_ROW}
    s_add_u32 s{S_TMP}, s{S_TMP}, {L_ACC}
    v_mul_u32_u24 v{t2}, {ACC_ROW}, v{e_}
    v_lshl_add_u32 v{t2}, v{hh_}, 5, v{t2}
    v_add_u32 v{r.EM}, s{S_TMP}, v{t2}
    v_min_u32 v{t3}, 311, v0
    v_mul_u32_u24 v{t4}, 171, v{t3}
    v_lshrrev_b32 v{t4}, 9, v{t4}
    v_mul_u32_u24 v{t5}, 3, v{t4}
    v_sub_u32 v{t5}, v{t3}, v{t5}
    v_lshlrev_b32 v{t5}, 2, v{t5}
    v_lshl_add_u32 v{r.EK}, v{t4}, 5, v{t5}
    v_mul_u32_u24 v{r.EP}, {ACC_ROW}, v{t4}
    v_add_u32 v{r.EP}, v{r.EP}, v{t5}
    v_add_u32 v{r.EP}, {L_ACC+256}, v{r.EP}
    s_lshl_b32 s{S_TMP}, s{S_V}, 12
    s_add_u32 s{S_TMP}, s{S_TMP}, {L_RING}
    v_mul_u32_u24 v{t2}, 80, v{e_}
    v_lshl_add_u32 v{t2}, v{hh_}, 3, v{t2}
    v_add_u32 v{r.EW}, s{S_TMP}, v{t2}
    v_lshrrev_b32 v{t3}, 2, v{r.lane}
    v_and_b32 v{t4}, 3, v{r.lane}
    v_lshlrev_b32 v{t4}, 4, v{t4}
    v_lshl_add_u32 v{t5}, v{t3}, 7, v{t4}
    v_mul_u32_u24 v{t3}, 80, v{t3}
    v_add3_u32 v{r.ER}, v{t3}, v{t4}, s{S_TMP}
    s_lshl_b32 s{S_TMP}, s{S_RT}, 12
    s_lshl_b32 s{S_TMP2}, s{S_T}, 6
    s_add_u32 s{S_TMP}, s{S_TMP}, s{S_TMP2}
    v_add_u32 v{r.EG}, s{S_TMP}, v{t5}
    v_lshlrev_b32 v{r.TE}, 1, v0
    v_lshrrev_b32 v{t3}, 4, v{r.lane}
    v_mul_u32_u24 v{t3}, {ACC_ROW}, v{t3}
    v_and_b32 v{t4}, 15, v{r.lane}
    v_lshl_add_u32 v{r.EX}, v{t4}, 4, v{t3}
    """)
    for rr in range(8):
        a(f"""
        s_waitcnt vmcnt({7 + rr})
        L_w{rr}:
        v_cmp_le_i32 vcc, 0, v{TABV+rr}
        s_cbranch_vccz L_g{rr}
        s_sub_u32 s{S_BUD}, s{S_BUD}, 1
        s_cbranch_scc1 L_g{rr}
        s_sleep {opt.slp}
        """)
        for r2 in range(rr, 8):
            a(f"s_add_u32 s{S_TMP}, s{S_B4}, {r2*32768}\nbuffer_load_dword v{TABV+r2}, v{TA}, {s(SR_TAB,4)}, s{S_TMP} offen {opt.hl}")
        a(f"""
        s_waitcnt vmcnt(0)
        s_branch L_w{rr}
        L_g{rr}:
        v_cmp_lt_u32_sdwa {s(S_M+2*rr,2)}, v{JJ}, v{TABV+rr} src0_sel:DWORD src1_sel:WORD_1
        v_cmp_lt_u32_sdwa {s(S_M+16+2*rr,2)}, v{J16}, v{TABV+rr} src0_sel:DWORD src1_sel:WORD_1
        v_max_u32 v{MX}, v{MX}, v{TABV+rr}
        v_add_u32_sdwa v{ADR+rr}, v{LB}, v{TABV+rr} {SDWA} src1_sel:WORD_0
        s_mov_b32 s{S_TMP}, {rr*32*REC_STRIDE}
        s_mov_b64 exec, {s(S_M+2*rr,2)}
        buffer_load_dwordx3 {v(REC(rr),3)}, v{ADR+rr}, {s(SR_REC,4)}, s{S_TMP} offen {opt.rl}
        s_mov_b64 exec, {s(S_M+16+2*rr,2)}
        buffer_load_dwordx3 {v(REC(8+rr),3)}, v{ADR+rr}, {s(SR_REC,4)}, s{S_TMP} offen offset:192 {opt.rl}
        s_mov_b64 exec, -1
        """)
    stamp(a, r, 8)
    def u_reads():
        for k in range(4):
            a(f"ds_read_b64_tr_b16 {v(r.T+4*k,2)}, v{r.EH} offset:{2048*k}\nds_read_b64_tr_b16 {v(r.T+4*k+2,2)}, v{r.EH} offset:{2048*k+512}")
    def u_gemm():
        for k in range(4): a(mfma(r.U, r.T+4*k, r.H+4*k, r.U if k else None))
    def u_scale():
        for i in range(0, 16, 2): a(f"v_pk_mul_f32 {v(r.U+i,2)}, {v(r.U+i,2)}, {s(S_C,2)}")
    def u_all():
        u_reads(); a("s_waitcnt lgkmcnt(0)"); u_gemm(); a("s_nop 7\ns_nop 3"); u_scale()
    stamp(a, r, 9)
    if opt.warm:
        a(f"""
        s_lshr_b32 s{S_TMP}, s2, 3
        s_lshl_b32 s{S_TMP}, s{S_TMP}, 3
        s_add_u32 s{S_TMP}, s{S_TMP}, s{S_V}
        s_mul_i32 s{S_TMP}, s{S_TMP}, {opt.warm*1024}
        s_add_u32 s{S_TMP}, s{S_TMP}, 3072
        v_lshlrev_b32 v{t2}, 4, v{r.lane}
        """)
        for k in range(opt.warm):
            if k and k % 4 == 0: a(f"s_add_u32 s{S_TMP}, s{S_TMP}, 4096")
            a(f"buffer_load_dwordx4 {v(r.H+12,4)}, v{t2}, {s(SR_HD,4)}, s{S_TMP} offen offset:{(k%4)*1024}")
    a(f"""
    v_cmp_lt_u32 vcc, 0x{((0x8000+33)<<16)-1:08x}, v{MX}
    s_and_saveexec_b64 {s(S_D,2)}, vcc
    v_mov_b32 v{t2}, {L_FLAG}
    ds_write_b32 v{t2}, v{ONE}
    s_mov_b64 exec, -1
    """)
    order = [x for rr in range(8) for x in (rr, 8 + rr)]
    a.label("L_rank")
    for n_, q in enumerate(order):
        if q < 8: a(f"s_waitcnt vmcnt({14 - n_})")
        else: a(f"s_cmp_eq_u64 {s(S_M+2*q,2)}, 0\ns_cbranch_scc1 L_rk{q}")
        a(f"""
        s_mov_b64 exec, {s(S_M+2*q,2)}
        v_lshlrev_b32_sdwa v{ADR+q}, 2, v{REC(q)+2} {SDWA} src1_sel:BYTE_0
        ds_add_rtn_u32 v{REC(q)+3}, v{ADR+q}, v{ONE} offset:{L_CNT}
        """)
        if q < 8 and opt.pf: a(f"buffer_load_ubyte v{r.V4}, v{REC(q)+2}, {s(SR_HD,4)}, s{S_SO0} offen")
        if q >= 8: a.label(f"L_rk{q}")
    a(f"""
    s_mov_b64 exec, -1
    v_lshlrev_b32 v{t2}, 3, v{r.lane}
    v_mov_b32 v{t3}, {L_FLAG}
    s_mov_b32 s{S_PADM}, {0 if opt.slide else 31}
    s_cmp_lg_u32 s{S_MODE}, 0
    s_cselect_b32 s{S_PADM}, 31, s{S_PADM}
    s_waitcnt lgkmcnt(0)
    s_barrier
    """)
    stamp(a, r, 10)
    CA = r.M; CB = r.M + 2; FL = r.M + 4; SS = r.M + 5; TT = r.M + 6; PADR = r.M + 7; O = r.M + 8; INC = r.M + 12; SP = r.M + 13; N1 = r.M + 14
    a(f"""
    ds_read_b64 {v(CA,2)}, v{t2} offset:{L_CNT}
    ds_read_b64 {v(CB,2)}, v{t2} offset:{L_CNT+512}
    ds_read_b32 v{FL}, v{t3}
    v_and_b32 v{t4}, 3, v{r.lane}
    v_cmp_eq_u32 {s(S_NB,2)}, 3, v{t4}
    """)
    a(f"s_cmp_lg_u32 s{S_MODE}, 0\ns_cbranch_scc1 L_noaz")
    a(f"""
    s_lshl_b32 s{S_TMP}, s{S_V}, 10
    s_add_u32 s{S_TMP2}, s{S_TMP}, 8192
    s_add_u32 m0, s{S_TMP}, {L_WH1}
    s_lshl_b32 s{S_TMP3}, s{S_V}, 12
    buffer_load_dwordx4 v{L16}, {s(SR_WH,4)}, s{S_TMP} offen lds
    s_add_u32 m0, s{S_TMP}, {L_WH2}
    s_nop 0
    buffer_load_dwordx4 v{L16}, {s(SR_WH,4)}, s{S_TMP2} offen lds
    s_add_u32 m0, s{S_TMP3}, {L_RING}
    """)
    nonlocal_z[0] = r.S + 4
    zero_region(L_ACC, 112 * ACC_ROW)
    a("s_waitcnt lgkmcnt(4)\nL_azd:")
    a(f"""
    v_add_u32 v{N1}, v{CA}, v{CB}
    v_add3_u32 v{SS}, v{N1}, v{CA+1}, v{CB+1}
    v_readfirstlane_b32 s{S_TMP3}, v{FL}
    s_nop 0
    v_add_u32_dpp v{TT}, v{SS}, v{SS} quad_perm:[1,0,3,2] row_mask:0xf bank_mask:0xf
    s_nop 1
    v_add_u32_dpp v{TT}, v{TT}, v{TT} quad_perm:[2,3,0,1] row_mask:0xf bank_mask:0xf
    L_scan:
    v_sub_u32 v{PADR}, 0, v{TT}
    v_and_b32 v{PADR}, s{S_PADM}, v{PADR}
    v_cndmask_b32 v{PADR}, 0, v{PADR}, {s(S_NB,2)}
    v_add_u32 v{SP}, v{SS}, v{PADR}
    v_mov_b32 v{INC}, v{SP}
    """)
    a(wave_scan(INC))
    a(f"""
    s_nop 0
    v_readlane_b32 s{S_TMP}, v{INC}, 63
    v_sub_u32 v{O}, v{INC}, v{SP}
    s_cmp_lg_u32 s{S_PADM}, 0
    s_cbranch_scc1 L_scan_pad
    v_mov_b32_dpp v{PADR}, v{INC} quad_perm:[1,1,3,3] row_mask:0xf bank_mask:0xf
    v_add_u32 v{t4}, -1, v{O}
    v_xor_b32 v{t4}, v{t4}, v{PADR}
    v_cmp_gt_u32 vcc, 32, v{t4}
    v_cmp_gt_u32 {s(S_NBN,2)}, s{S_TMP}, v{PADR}
    s_and_b64 vcc, vcc, {s(S_NBN,2)}
    s_and_b32 vcc_lo, vcc_lo, 0x55555555
    s_and_b32 vcc_hi, vcc_hi, 0x55555555
    v_mov_b32 v{PADR}, s{S_TMP}
    s_cmp_eq_u64 vcc, 0
    s_cbranch_scc1 L_scan_done
    s_mov_b32 s{S_PADM}, 31
    s_branch L_scan
    L_scan_pad:
    v_mov_b32_dpp v{PADR}, v{O} quad_perm:[0,0,0,0] row_mask:0xf bank_mask:0xf
    v_add_u32 v{PADR}, v{PADR}, v{TT}
    v_mov_b64 {v(r.K4,2)}, 0
    v_mov_b64 {v(r.K4+2,2)}, 0
    v_lshlrev_b32 v{t3}, 4, v0
    ds_write_b128 v{t3}, {v(r.K4,4)} offset:{L_REC}
    ds_write_b128 v{t3}, {v(r.K4,4)} offset:{L_REC+8192}
    ds_write_b128 v{t3}, {v(r.K4,4)} offset:{L_REC+16384}
    ds_write_b128 v{t3}, {v(r.K4,4)} offset:{L_REC+24576}
    ds_write_b128 v{t3}, {v(r.K4,4)} offset:{L_REC+32768}
    ds_write_b128 v{t3}, {v(r.K4,4)} offset:{L_REC+40960}
    s_waitcnt lgkmcnt(0)
    s_barrier
    L_scan_done:
    v_lshrrev_b32 v{t3}, 1, v{r.lane}
    v_add_u32 v{t4}, s{S_TMP}, v{t3}
    v_mul_u32_u24 v{t4}, 12, v{t4}
    v_add_u32 v{t4}, {L_REC}, v{t4}
    ds_write2_b32 v{t4}, v{r.Zero}, v{r.Zero} offset0:0 offset1:1
    ds_write_b32 v{t4}, v{r.Zero} offset:8
    v_add_u32 v{O+1}, v{O}, v{N1}
    v_add_u32 v{O+2}, v{O}, v{CA}
    v_add_u32 v{O+3}, v{O+1}, v{CA+1}
    ds_write_b64 v{t2}, {v(O,2)} offset:{L_OFF}
    ds_write_b64 v{t2}, {v(O+2,2)} offset:{L_OFF+512}
    v_and_b32 v{t3}, 60, v{r.lane}
    v_add_u32 v{t3}, {L_WEND}, v{t3}
    ds_write_b32 v{t3}, v{PADR}
    s_add_u32 s{S_TMP}, s{S_TMP}, 31
    s_lshr_b32 s{S_TMP}, s{S_TMP}, 5
    s_cmp_gt_u32 s{S_TMP}, {CAPT}
    s_cselect_b32 s{S_TMP3}, 1, s{S_TMP3}
    s_cmp_lg_u32 s{S_TMP3}, 0
    s_cbranch_scc1 L_slow
    """)
    if opt.fine: stamp(a, r, 22)
    for q in order:
        if q >= 8: a(f"s_cmp_eq_u64 {s(S_M+2*q,2)}, 0\ns_cbranch_scc1 L_pa{q}")
        a(f"s_mov_b64 exec, {s(S_M+2*q,2)}\nds_read_b32 v{ADR+q}, v{ADR+q} offset:{L_OFF}")
        if q >= 8: a.label(f"L_pa{q}")
    a(f"""
    s_and_b32 s{S_T0}, s{S_V}, 3
    s_mul_i32 s{S_T0}, s{S_T0}, s{S_TMP}
    s_add_u32 s{S_NTL}, s{S_T0}, s{S_TMP}
    s_lshr_b32 s{S_T0}, s{S_T0}, 2
    s_lshr_b32 s{S_NTL}, s{S_NTL}, 2
    s_sub_u32 s{S_TMP}, s{S_NTL}, s{S_T0}
    s_mul_i32 s{S_TMP}, s{S_TMP}, {opt.split}
    s_add_u32 s{S_TMP}, s{S_TMP}, 32
    s_lshr_b32 s{S_TMP}, s{S_TMP}, 6
    s_add_u32 s{S_TMP}, s{S_TMP}, s{S_T0}
    s_and_b32 s{S_FI}, s{S_V}, 4
    s_cmp_eq_u32 s{S_TMP}, s{S_T0}
    s_cselect_b32 s{S_FI}, 0, s{S_FI}
    s_cmp_lt_u32 s{S_V}, 4
    s_cselect_b32 s{S_NTL}, s{S_TMP}, s{S_NTL}
    s_cselect_b32 s{S_T0}, s{S_T0}, s{S_TMP}
    s_sub_u32 s{S_NTL}, s{S_NTL}, s{S_T0}
    s_mov_b32 s{S_TMP2}, {L_REC}
    s_waitcnt lgkmcnt(0)
    """)
    if opt.fine: stamp(a, r, 23)
    for q in order:
        if q >= 8: a(f"s_cmp_eq_u64 {s(S_M+2*q,2)}, 0\ns_cbranch_scc1 L_pb{q}")
        a(f"""
        s_mov_b64 exec, {s(S_M+2*q,2)}
        v_add_u32 v{ADR+q}, v{ADR+q}, v{REC(q)+3}
        v_mad_u32_u24 v{ADR+q}, v{ADR+q}, 12, s{S_TMP2}
        ds_write_b32 v{ADR+q}, v{REC(q)+2} offset:8
        ds_write2_b32 v{ADR+q}, v{REC(q)}, v{REC(q)+1} offset0:0 offset1:1
        """)
        if q >= 8: a.label(f"L_pb{q}")
    a(f"""
    s_mov_b64 exec, -1
    """)
    if opt.fine: stamp(a, r, 24)
    a(f"""
    s_mul_i32 s{S_TMP}, s{S_T0}, 384
    s_add_u32 s{S_TMP}, s{S_TMP}, {L_REC}
    v_and_b32 v{t2}, 31, v{r.lane}
    v_mul_u32_u24 v{t2}, 12, v{t2}
    v_add_u32 v{r.A1a}, s{S_TMP}, v{t2}
    v_lshrrev_b32 v{t2}, 3, v{r.lane}
    v_mul_u32_u24 v{t2}, 48, v{t2}
    v_add_u32 v{r.A2a}, s{S_TMP}, v{t2}
    s_sub_u32 s{S_TMP}, s{S_T0}, 1
    v_add_u32 v{t3}, s{S_TMP}, v{r.lane}
    v_mul_u32_u24 v{t2}, 384, v{t3}
    s_waitcnt vmcnt(0) lgkmcnt(0)
    s_barrier
    """)
    stamp(a, r, 11)
    a(f"s_cmp_eq_u32 s{S_NTL}, 0\ns_cbranch_scc1 L_idle")
    wx_reads = [f"v_lshrrev_b32 v{t5}, 5, v{r.lane}", f"v_lshlrev_b32 v{t5}, 7, v{t5}", f"v_add_u32 v{t5}, {L_WX}, v{t5}"] + \
               [f"ds_read_b128 {v(r.W2+4*q,4)}, v{t5} offset:{16*q}" for q in range(8)]
    a(k_reads(r, 0))
    a(f"ds_read_u8 v{t4}, v{t2} offset:{L_REC+8}")
    a(ea_read(r, 0))
    a(acc_zero(r, False))
    for i in range(0, 8, 2): a(f"v_mov_b64 {v(r.M+8+i,2)}, 0\nv_mov_b64 {v(r.S+i,2)}, 0")
    a("s_waitcnt lgkmcnt(2)")
    a(dma_addr(r) + dma_issue(r))
    a(f"""
    v_lshrrev_b32 v{r.PI}, 7, v{r.K}
    v_lshlrev_b32_sdwa v{r.NA}, 5, v{r.K} {SDWA} src1_sel:BYTE_0
    buffer_load_dwordx2 {v(r.PS,2)}, v{r.PI}, {s(SR_P4,4)}, 0 idxen
    """)
    a(pd_read(r) + k_reads(r, 1))
    a(f"""
    s_waitcnt lgkmcnt(5)
    v_and_b32 v{t4}, 0x7f, v{t4}
    v_lshrrev_b32 v{t5}, 3, v{t4}
    v_lshlrev_b32 v{t5}, 2, v{t5}
    v_add_u32 v{t5}, {L_WEND}, v{t5}
    ds_read_b32 v{t5}, v{t5}
    v_lshlrev_b32 v{t3}, 5, v{t3}
    s_waitcnt lgkmcnt(0)
    v_sub_u32 v{t5}, v{t5}, v{t3}
    v_min_u32 v{t5}, 32, v{t5}
    v_mad_u32_u24 v{t2}, v{t5}, 12, v{t2}
    ds_read_u8 v{t2}, v{t2} offset:{L_REC-4}
    v_lshl_or_b32 v{t4}, v{t5}, 16, v{t4}
    s_waitcnt lgkmcnt(0)
    v_and_b32 v{t2}, 0x7f, v{t2}
    v_lshl_or_b32 v{r.Desc}, v{t2}, 8, v{t4}
    s_nop 0
    v_readlane_b32 s{S_D}, v{r.Desc}, 1
    v_readlane_b32 s{S_ZP}, v{r.Desc}, 0
    s_nop 1
    s_and_b32 s{S_NB}, s{S_D}, 0x7c
    s_mov_b32 s{S_NBP}, s{S_NB}
    s_lshr_b32 s{S_CNT}, s{S_D}, 16
    s_bfe_u32 s{S_ZP}, s{S_ZP}, 0x80008
    s_cmp_eq_u32 s{S_T0}, 0
    s_cselect_b32 s{S_ZP}, -1, s{S_ZP}
    """)
    a(aw_reads(r, S_NB))
    a(wx_reads)
    a(f"s_cmp_lg_u32 s{S_MODE}, 0\ns_cbranch_scc1 L_nou")
    u_all()
    a("L_nou:\ns_waitcnt vmcnt(1)")
    a(h_reads(r))
    a("s_waitcnt lgkmcnt(0)")
    a(dma_addr(r) + dma_issue(r))
    a("s_waitcnt vmcnt(4)")
    a(geometry(r, False))
    for k in range(2): a(mfma(r.D0, r.H+4*k, ID+4*k, r.D0 if k else None))
    a("s_waitcnt lgkmcnt(0)")
    a(mfma(r.D0, r.XM, r.BW, r.D0))
    a(f"s_mov_b32 s{S_I}, 2\ns_add_u32 s{S_NTL}, s{S_NTL}, 1")
    if opt.prio: a(f"s_cmp_ge_u32 s{S_V}, 4\ns_cbranch_scc1 L_np\ns_setprio 1\nL_np:")
    a("s_nop 7\ns_nop 1")
    stamp(a, r, 12); stamp(a, r, 28, True)
    a(".p2align 6")
    a.label("L_loop")
    pre = k_reads(r, 2) + pd_read(r) + [f"v_readlane_b32 s{S_D}, v{r.Desc}, s{S_I}"] + s_set(r)
    PE = [int(x) for x in opt.mfe.split(",")]; PR = [int(x) for x in opt.mfr.split(",")]
    mf_exp = {PE[k]: mfma(r.D1, r.H+8+4*k, ID+4*k, r.D1 if k else None) for k in range(2)}
    mf_rcp = {PR[0]: mfma(r.D1, r.XM, r.BW+4, r.D1), PR[1]: mfma(r.A1, r.M+8, r.S, r.A1), PR[2]: mfma(r.A1, r.M+12, r.S+4, r.A1)}
    ins_exp = {7: [f"s_bfe_u32 s{S_TMP}, s{S_D}, 0x80008", f"s_add_u32 s{S_TMP2}, s{S_NB}, 8", f"s_and_b32 s{S_TMP3}, s{S_D}, 0x7c",
                   f"s_cmp_ge_u32 s{S_TMP}, s{S_TMP2}", f"s_cselect_b32 s{S_NBN}, s{S_TMP3}, s{S_NB}"],
               opt.hpos: ["s_waitcnt vmcnt(1)"] + h_reads(r)}
    ins_rcp = {2: ["s_waitcnt lgkmcnt(4)"] + dma_addr(r),
               4: ["s_waitcnt lgkmcnt(0)"] + dma_issue(r),
               6: ea_read(r, 1) + [f"s_cmp_eq_u32 s{S_NBN}, s{S_NB}", "s_cbranch_scc1 L_noaw"] + aw_reads(r, S_NBN) + ["L_noaw:"],
               PR[2]+1: s_reads(r)}
    silu_stage(a, r, r.D0, r.M, mf_exp, mf_rcp, ins_exp, ins_rcp, pre)
    a(f"s_cmp_eq_u32 s{S_NB}, s{S_NBP}\ns_cbranch_scc1 L_noflush")
    if "flush" in opt.abl: a("s_branch L_noflush")
    a(retire_mask(r))
    a(f"s_cmp_lg_u32 s{S_MODE}, 0\ns_cbranch_scc1 L_flush_slow")
    a(flush_plain(r))
    a.label("L_noflush")
    pre = [f"s_mov_b32 s{S_NBP}, s{S_NB}", f"s_mov_b32 s{S_NB}, s{S_NBN}", f"s_lshr_b32 s{S_CNT}, s{S_D}, 16",
           "s_waitcnt vmcnt(4)"] + geometry(r, True)
    mf_exp = {PE[k]: mfma(r.D0, r.H+4*k, ID+4*k, r.D0 if k else None) for k in range(2)}
    mf_rcp = {PR[0]: mfma(r.D0, r.XM, r.BW, r.D0), PR[1]: mfma(r.A0, r.M, r.S, r.A0), PR[2]: mfma(r.A0, r.M+4, r.S+4, r.A0)}
    silu_stage(a, r, r.D1, r.M+8, mf_exp, mf_rcp, {15: ["s_waitcnt lgkmcnt(0)"]}, {}, pre)
    a(f"""
    s_sub_u32 s{S_TMP}, s{S_I}, 1
    s_add_u32 s{S_I}, s{S_I}, 1
    s_cmp_le_u32 s{S_I}, s{S_NTL}
    s_cbranch_scc1 L_loop
    v_readlane_b32 s{S_D}, v{r.Desc}, s{S_TMP}
    """)
    stamp(a, r, 13); stamp(a, r, 29, True)
    a(mfma(r.A1, r.M+8, r.S, r.A1)); a(mfma(r.A1, r.M+12, r.S+4, r.A1))
    if opt.prio: a("s_setprio 0")
    S_RML = S_TMP3; S_GL = S_NBN
    a(f"""
    s_mov_b32 s{S_RM}, 0xffff
    s_bitcmp1_b32 s{S_NBP}, 2
    s_cselect_b32 s{S_RM}, 0xffff0000, s{S_RM}
    s_bfe_u32 s{S_GL}, s{S_D}, 0x6000a
    s_lshr_b32 s{S_TMP2}, s{S_NBP}, 2
    s_cmp_lg_u32 s{S_GL}, s{S_TMP2}
    s_cselect_b32 s{S_RM}, -1, s{S_RM}
    s_mov_b32 s{S_RML}, 0xffff
    s_bitcmp1_b32 s{S_GL}, 0
    s_cselect_b32 s{S_RML}, 0xffff0000, s{S_RML}
    s_cselect_b32 s{S_CNT}, {4*ACC_ROW}, 0
    """)
    a(flush_addr(r))
    WH2 = r.W2; HU = r.HU
    def epi_prep_a(): pass
    def epi_prep_b():
        for k in range(4):
            a(f"ds_read_b64_tr_b16 {v(WH2+4*k,2)}, v{r.EH} offset:{8192+2048*k}\nds_read_b64_tr_b16 {v(WH2+4*k+2,2)}, v{r.EH} offset:{8192+2048*k+512}")
    def epi_prep(): epi_prep_a(); epi_prep_b()
    a(f"""
    s_cmp_lg_u32 s{S_MODE}, 0
    s_cbranch_scc1 L_final_slow
    s_lshl_b32 s{S_TMP}, s{S_V}, 11
    s_add_u32 s{S_TMP}, s{S_TMP}, {L_SIMG}
    v_add_u32 v{r.K}, s{S_TMP}, v{r.EX}
    s_sub_u32 s{S_TMP}, s{S_TMP}, {L_ACC}
    s_sub_u32 s{S_TMP}, s{S_TMP}, s{S_CNT}
    s_mov_b32 exec_lo, s{S_RML}
    s_mov_b32 exec_hi, s{S_RML}
    v_add_u32 v{t2}, s{S_TMP}, v{r.FlM}
    """)
    a(EX3)
    a([f"ds_write_b128 v{t2}, {v(r.A0+4*q,4)} offset:{32*q}" for q in range(8)])
    a(f"s_mov_b64 exec, -1\nds_read_b128 {v(r.PD,4)}, v{r.K}")
    epi_prep_a()
    a(flush_dot(r))
    epi_prep_b()
    a(f"""
    s_andn2_b32 s{S_TMP}, s{S_RM}, s{S_RML}
    s_and_b32 exec_lo, s{S_TMP}, 0x77777777
    s_mov_b32 exec_hi, 0
    ds_write_b32 v{t3}, v{t4}
    s_mov_b64 exec, -1
    s_mov_b32 s{S_RM}, s{S_RML}
    s_mul_i32 s{S_TMP}, s{S_GL}, {4*ACC_ROW}
    s_add_u32 s{S_TMP}, s{S_TMP}, {L_ACC}
    v_add_u32 v{t2}, s{S_TMP}, v{r.EX}
    s_ashr_i32 s{S_ZP}, s{S_ZP}, 2
    s_cmp_lg_u32 s{S_ZP}, s{S_GL}
    s_cbranch_scc1 L_main_end
    s_add_u32 s{S_TMP}, s{S_FI}, {L_FLAG+8}
    v_mov_b32 v{r.K}, s{S_TMP}
    v_mov_b32 v{r.PI}, 1
    ds_write_b32 v{r.K}, v{r.PI}
    L_main_end:
    """)
    stamp(a, r, 14)
    rmw_rd = [f"ds_read_b128 {v(r.D0,4)}, v{t2}", EXP, f"ds_read_b32 v{t5}, v{t3}", "s_mov_b64 exec, -1"]
    rmw_wr = ["s_waitcnt lgkmcnt(1)",
              f"v_pk_add_f32 {v(r.D0,2)}, {v(r.D0,2)}, {v(r.PD,2)}", f"v_pk_add_f32 {v(r.D0+2,2)}, {v(r.D0+2,2)}, {v(r.PD+2,2)}",
              f"ds_write_b128 v{t2}, {v(r.D0,4)}", EXP, "s_waitcnt lgkmcnt(1)", f"v_add_f32 v{t4}, v{t4}, v{t5}",
              f"ds_write_b32 v{t3}, v{t4}", "s_mov_b64 exec, -1"]
    a(f"v_mov_b32 v{r.K}, {L_FLAG+8}\ns_waitcnt vmcnt(0) lgkmcnt(0)\ns_barrier\nds_read_b64 {v(r.PS,2)}, v{r.K}")
    a(rmw_rd)
    a(f"""
    s_waitcnt lgkmcnt(2)
    v_readfirstlane_b32 s{S_TMP}, v{r.PS}
    v_readfirstlane_b32 s{S_TMP2}, v{r.PS+1}
    s_nop 3
    s_or_b32 s{S_D}, s{S_TMP}, s{S_TMP2}
    s_cbranch_scc1 L_merge_rare
    L_merge:
    s_cmp_eq_u32 s{S_NTL}, 0
    s_cbranch_scc1 L_epi
    """)
    a(rmw_wr)
    a.label("L_epi")
    if opt.stamp: a(f"s_sub_u32 s{S_ST}, s{S_NTL}, 1\ns_max_i32 s{S_ST}, s{S_ST}, 0\nv_writelane_b32 v{r.ST}, s{S_ST}, 30")
    MR = r.D0
    a(f"""
    s_mov_b32 s{S_D}, 0x{f2u(-LN2):08x}
    s_mov_b32 s{S_D+1}, 0x{f2u(-LN2):08x}
    ds_read_b32 v{r.K}, v{r.EK} offset:16
    s_waitcnt lgkmcnt(0)
    s_barrier
    """)
    stamp(a, r, 15)
    for k in range(4):
        a(f"ds_read_b128 {v(MR+8*k,4)}, v{r.EM} offset:{64*k}\nds_read_b128 {v(MR+8*k+4,4)}, v{r.EM} offset:{64*k+16}")
    a(f"ds_read_b32 v{r.PI}, v{r.EP}")
    for k in range(4):
        a(f"s_waitcnt lgkmcnt({7-2*k})")
        for j in range(4):
            a(f"v_cvt_pk_bf16_f32 v{r.H+4*k+j}, v{MR+8*k+2*j}, v{MR+8*k+2*j+1}")
        if k: a(mfma(r.U, WH2+4*(k-1), r.H+4*(k-1), r.U))
    a(f"""
    s_waitcnt lgkmcnt(0)
    v_add_f32 v{r.K}, v{r.K}, v{r.PI}
    {mfma(r.U, WH2+12, r.H+12, r.U)}
    v_cvt_pk_bf16_f32 v{r.K}, v{r.K}, v{r.K}
    buffer_store_short v{r.K}, v{r.TE}, {s(SR_OUTP,4)}, 0 offen {opt.ost}
    s_nop 9
    """)
    T = r.T; U = r.U
    for i in range(16): a(f"v_exp_f32 v{T+i}, v{U+i}")
    for i in range(0, 16, 2): a(f"v_pk_add_f32 {v(T+i,2)}, {v(T+i,2)}, {s(S_ONE,2)}")
    for i in range(0, 16, 2): a(f"v_pk_mul_f32 {v(U+i,2)}, {v(U+i,2)}, {s(S_D,2)}")
    for i in range(16): a(f"v_rcp_f32 v{T+i}, v{T+i}")
    for g in range(4):
        for i in (4*g, 4*g+2): a(f"v_pk_fma_f32 {v(T+i,2)}, {v(T+i,2)}, {v(U+i,2)}, {v(HU+i,2)}")
        for i in (4*g, 4*g+2): a(f"v_cvt_pk_bf16_f32 v{r.M+i//2}, v{T+i}, v{T+i+1}")
        a(f"ds_write_b64 v{r.EW}, {v(r.M+2*g,2)} offset:{16*g}")
    a(f"""
    """)
    if opt.thr:
        a(f"""
        s_memrealtime s[4:5]
        s_waitcnt lgkmcnt(0)
        s_sub_u32 s4, s4, s{S_ST}
        s_cmp_gt_u32 s4, {opt.thr}
        s_cselect_b32 s4, 0x10000, 0
        v_add_u32 v{r.EG}, s4, v{r.EG}
        """)
    a(f"""
    ds_read_b128 {v(r.H,4)}, v{r.ER}
    ds_read_b128 {v(r.H+4,4)}, v{r.ER} offset:1280
    s_waitcnt lgkmcnt(1)
    buffer_store_dwordx4 {v(r.H,4)}, v{r.EG}, {s(SR_OUT,4)}, 0 offen {opt.ost}
    s_waitcnt lgkmcnt(0)
    buffer_store_dwordx4 {v(r.H+4,4)}, v{r.EG}, {s(SR_OUT,4)}, 0 offen offset:2048 {opt.ost}
    """)
    if opt.stamp:
        stamp(a, r, 16); a("s_waitcnt vmcnt(0)"); stamp(a, r, 17); stamp(a, r, 31, True)
        a(f"""
        s_lshl_b32 s{S_ST}, s2, 4
        s_add_u32 s{S_ST}, s{S_ST}, s{S_V}
        s_lshl_b32 s{S_ST}, s{S_ST}, 8
        s_add_u32 s{S_ST}, s{S_ST}, {WS_STAMP}
        s_add_u32 s{S_ST}, s{P_WS}, s{S_ST}
        s_addc_u32 s{S_ST+1}, s{P_WS+1}, 0
        v_lshlrev_b32 v{t2}, 2, v{r.lane}
        global_store_dword v{t2}, v{r.ST}, {s(S_ST,2)}
        """)
    if opt.diag:
        a("s_waitcnt vmcnt(0)"); stamp(a, r, 31)
        a(f"""
        v_lshlrev_b32 v{t2}, 2, v{r.lane}
        s_mov_b64 exec, 0xffff
        global_atomic_umax v{t2}, v{r.ST}, {s(P_DBG,2)}
        """)
    a("L_done:\ns_endpgm")
    a("L_noaz:\ns_waitcnt lgkmcnt(0)\ns_branch L_azd")
    a(f"L_idle:\ns_cmp_lg_u32 s{S_MODE}, 0\ns_cbranch_scc1 L_slow_next")
    u_all()
    epi_prep()
    a("s_branch L_main_end")
    a(f"""
    L_merge_rare:
    s_cmp_lg_u32 s{S_TMP}, 0
    s_cbranch_scc1 L_final_atomic
    s_cmp_ge_u32 s{S_V}, 4
    s_cbranch_scc1 L_merge_young
    s_cmp_eq_u32 s{S_NTL}, 0
    s_cbranch_scc1 L_merge_old_done
    """)
    a(rmw_wr)
    a("L_merge_old_done:\ns_waitcnt lgkmcnt(0)\ns_barrier\ns_branch L_epi\nL_merge_young:\ns_waitcnt lgkmcnt(0)\ns_barrier")
    a(rmw_rd)
    a(f"s_branch L_merge\nL_final_atomic:\ns_cmp_eq_u32 s{S_NTL}, 0\ns_cbranch_scc1 L_epi")
    a([f"ds_add_f32 v{t2}, v{r.PD+i} offset:{4*i}" for i in range(4)])
    a([EXP, f"ds_add_f32 v{t3}, v{t4}", "s_mov_b64 exec, -1", "s_branch L_epi"])
    a.label("L_final_slow")
    a("s_waitcnt vmcnt(0) lgkmcnt(0)"); a(flush_dot(r))
    a(flush_atomic(r)); a("s_branch L_slow_next")
    a.label("L_flush_slow")
    a(flush_addr(r)); a("s_waitcnt lgkmcnt(0)"); a(flush_dot(r)); a(flush_atomic(r)); a(acc_zero(r, True))
    a("s_branch L_noflush")
    a(f"""
    L_slow:
    s_mov_b32 s{S_MODE}, 1
    s_mov_b32 s{S_SEG}, 0
    s_waitcnt vmcnt(0) lgkmcnt(0)
    s_barrier
    """)
    u_all()
    a(f"""
    L_slow_round:
    s_waitcnt lgkmcnt(0)
    s_barrier
    v_lshlrev_b32 v{t2}, 2, v0
    v_cmp_gt_u32 vcc, 256, v0
    s_and_saveexec_b64 {s(S_D,2)}, vcc
    ds_write_b32 v{t2}, v{r.Zero} offset:{L_CNT}
    s_mov_b64 exec, -1
    v_mov_b32 v{t2}, {L_FLAG}
    ds_write_b32 v{t2}, v{r.Zero}
    s_lshl_b32 s{S_TMP}, s{S_SEG}, 10
    s_add_u32 s{S_TMP}, s{S_TMP}, s{S_B4}
    buffer_load_dword v{t3}, v{r.Zero}, {s(SR_TAB,4)}, s{S_TMP} offen {opt.hl}
    s_mul_i32 s{S_TMP}, s{S_SEG}, {REC_STRIDE}
    v_mul_u32_u24 v{t5}, 12, v0
    s_waitcnt vmcnt(0)
    v_bfe_u32 v{t4}, v{t3}, 16, 15
    v_and_b32 v{t3}, 0xffff, v{t3}
    v_add_u32 v{t3}, v{t3}, v{t5}
    v_mov_b32 v{t2}, v0
    """)
    for q in range(7):
        a(f"""
        v_cmp_lt_u32 {s(S_M+2*q,2)}, v{t2}, v{t4}
        s_mov_b64 exec, {s(S_M+2*q,2)}
        buffer_load_dwordx3 {v(REC(q),3)}, v{t3}, {s(SR_REC,4)}, s{S_TMP} offen {opt.hl}
        s_mov_b64 exec, -1
        v_add_u32 v{t2}, 512, v{t2}
        s_add_u32 s{S_TMP}, s{S_TMP}, {512*12}
        """)
    for q in range(7, 16): a(f"s_mov_b64 {s(S_M+2*q,2)}, 0")
    a(f"""
    v_mov_b32 v{ONE}, 1
    s_waitcnt vmcnt(0) lgkmcnt(0)
    s_barrier
    s_branch L_rank
    L_slow_next:
    s_add_u32 s{S_SEG}, s{S_SEG}, 1
    s_cmp_lt_u32 s{S_SEG}, {NB}
    s_cbranch_scc1 L_slow_round
    """)
    epi_prep()
    a("s_branch L_epi")
    return a.text(), r.n

def build():
    body, nv = gen()
    hdr = open("gather_scatter__cheap_equivariant_egnn__graph.s.ref").read().split("; Override")[0]
    acc = (nv + 3) // 4 * 4
    return hdr + f"""; @launch grid=({NB},1,1) block=(512,1,1) lds={LDS_BYTES}
.amdgcn_target "amdgcn-amd-amdhsa--gfx950"
.text
.globl {KNAME}
.p2align 8
.type {KNAME},@function
""" + body + f""".section .rodata,"a"
.p2align 6
.amdhsa_kernel {KNAME}
  .amdhsa_next_free_vgpr {nv}
  .amdhsa_next_free_sgpr 102
  .amdhsa_accum_offset {acc}
  .amdhsa_group_segment_fixed_size 0
  .amdhsa_kernarg_size 88
  .amdhsa_user_sgpr_count 2
  .amdhsa_user_sgpr_kernarg_segment_ptr 1
  .amdhsa_system_sgpr_workgroup_id_x 1
  .amdhsa_float_denorm_mode_32 3
.end_amdhsa_kernel
"""

if __name__ == "__main__":
    for arg in sys.argv[2:]:
        k, val = arg.split("=")
        cur = getattr(opt, k)
        setattr(opt, k, (val not in ("0", "False")) if isinstance(cur, bool) else type(cur)(val.replace("_", " ").replace("none", "")))
    open(sys.argv[1], "w").write(build())
    print("lds", LDS_BYTES, "vgprs", alloc().n)
```

```python
import sys, struct

N = 25000; E = 800000; NB = 256; BN = 98; CH = 3136
REC_STRIDE = CH * 12
WS_TAB = NB * REC_STRIDE
WS_P4 = WS_TAB + NB * 1024
WS_B = 11010048
WS_STAMP = 64 << 20
OUT_POS = N * 128
KNAME = "gather_scatter__cheap_equivariant_egnn__graph_kernel"

def f2u(x): return struct.unpack("<I", struct.pack("<f", x))[0]
LOG2E = 1.4426950408889634
LN2 = 0.6931471805599453

class Opt:
    split = 44
    prio = 1
    ld = "nt"
    st = "sc1"
    hl = "sc1"
    ost = ""
    slide = True
    late = 1
    pf = 0
    warm = 0
    abl = ""
    stamp = False
    pfb = 0
    pub = "sc1"
    rl = "sc1"
    slp = 2
    fine = False
    thr = 0
    tw = 0
    mfe = "2,8"
    hpos = 12
    mfr = "0,5,10"
    padd = 1
    pmul = 1
    ilv = 0
    spread = 0
    tprio = 0
    diag = False
opt = Opt()

class Asm:
    def __init__(self): self.L = []
    def __call__(self, s):
        if isinstance(s, (list, tuple)):
            for x in s: self(x)
            return
        for x in s.strip("\n").split("\n"):
            x = x.strip()
            if not x: continue
            self.L.append(x if x.endswith(":") else "    " + x)
    def label(self, n): self.L.append(n + ":")
    def text(self): return "\n".join(self.L) + "\n"

def v(i, n=1): return f"v{i}" if n == 1 else f"v[{i}:{i+n-1}]"
def s(i, n=1): return f"s{i}" if n == 1 else f"s[{i}:{i+n-1}]"
def srd(d, p, size, off=None):
    if off is None: b = f"s_mov_b32 s{d}, s{p}\ns_mov_b32 s{d+1}, s{p+1}\n"
    else: b = f"s_add_u32 s{d}, s{p}, {off}\ns_addc_u32 s{d+1}, s{p+1}, 0\n"
    return b + f"s_mov_b32 s{d+2}, {size}\ns_mov_b32 s{d+3}, 0x00020000"
def wave_scan(r):
    o = []
    for sh in (1, 2, 4, 8):
        o.append(f"s_nop 1\nv_add_u32_dpp v{r}, v{r}, v{r} row_shr:{sh} row_mask:0xf bank_mask:0xf bound_ctrl:0")
    o.append(f"s_nop 1\nv_add_u32_dpp v{r}, v{r}, v{r} row_bcast:15 row_mask:0xa bank_mask:0xf")
    o.append(f"s_nop 1\nv_add_u32_dpp v{r}, v{r}, v{r} row_bcast:31 row_mask:0xc bank_mask:0xf")
    return o
def mfma(d, a_, b_, c=None):
    cc = "0" if c is None else v(c, 16)
    return f"v_mfma_f32_32x32x16_bf16 {v(d,16)}, {v(a_,4)}, {v(b_,4)}, {cc}"
SDWA = "dst_sel:DWORD dst_unused:UNUSED_PAD src0_sel:DWORD"

CAPT = 112
L_NT = 0
L_CNT = 8192
L_OFF = L_CNT + 1024
L_REC = L_OFF + 1024
L_RING = L_REC + CAPT * 384
L_SIMG = L_RING + 8 * 4096
L_AT = L_SIMG + 8 * 2048
L_ACC = L_AT + 13 * 1024
ACC_ROW = 272
L_WX = L_ACC + 112 * ACC_ROW
L_FLAG = L_WX + 256
L_WEND = L_FLAG + 16
L_WH1 = L_WEND + 64 + 48
L_WH2 = L_WH1 + 8192
L_HIST = L_WH1
L_OFFA = L_HIST + 1024
LDS_BYTES = L_WH2 + 8192
L_STG = L_REC
L_HST = L_RING + 8192
L_W2S = L_RING + 24576
L_WE = L_ACC + 8192
assert L_STG + CH * 16 <= L_HST and L_WE + 17408 <= L_WX and L_SIMG % 64 == 0 and LDS_BYTES <= 163840
assert L_HIST % 16 == 0 and L_ACC % 16 == 0

class R: pass
def alloc():
    r = R(); n = [1]
    def al(cnt, align=1):
        n[0] = (n[0] + align - 1) // align * align
        x = n[0]; n[0] += cnt; return x
    r.lane = al(1); r.t2 = al(1); r.t3 = al(1)
    r.D0 = al(16, 4); r.D1 = al(16); r.A0 = al(16); r.A1 = al(16)
    r.W2 = al(40); r.BW = al(8); r.H = al(16)
    r.XM = al(4); r.S = al(8); r.K4 = al(4)
    r.M = al(16); r.T = al(16); r.U = al(16); r.HU = al(16); r.HR = r.HU + 8
    r.PD = al(4); r.PS = al(2); r.PQ = al(2); r.HA = al(4); r.XK = al(4)
    for nm in "A1a A2a SB TR0 TR1 AWl Desc Zero FlM FlP ML K PI NA SA t4 t5 TE EM EK EP EW ER EG EH EX".split():
        setattr(r, nm, al(1))
    r.ST = al(1) if (opt.stamp or opt.diag) else None
    r.t0, r.t1, r.V4, r.V8, r.V16, r.L16, r.DM, r.WXa = [r.W2 + 10 + k for k in range(6)] + [r.W2 + 8, r.W2 + 9]
    r.n = n[0]
    return r

P_H, P_POS, P_EA, P_SRC, P_DST, P_WE, P_WX, P_WH, P_OUT, P_DBG, P_WS = range(4, 26, 2)
SR_HD = 28; SR_P4 = 32; SR_REC = 36; SR_TAB = 40; SR_OUT = 44; SR_OUTP = 48
S_V = 52; S_RT = 53; S_T = 54; S_B4 = 55; S_MODE = 56; S_SEG = 57
S_C = 58; S_ONE = 60; S_D = 62; S_TMP = 63; S_TMP2 = 64; S_T0 = 65; S_NTL = 66; S_I = 67; S_CNT = 68; S_TMP3 = 69
S_M = 70
S_NL = 4; S_NH = 5; S_MSK = 6; S_SO0 = 7; S_SO1 = 8; S_SO2 = 9
S_NB = 10; S_NBP = 11; S_NBN = 12; S_ZP = 13; S_RM = 14; S_PADM = 15; S_HI = 16
S_FI = 18; SR_WH = 20; S_ST = 26
TS = [72 + 4 * k for k in range(7)] + [SR_OUTP]

DIAG = {0: 0, 3: 1, 4: 2, 7: 3, 10: 4, 12: 5, 13: 6, 31: 7}
def stamp(a, r, i, real=False):
    if opt.diag:
        if i in DIAG: a(f"s_waitcnt lgkmcnt(0)\ns_memrealtime {s(S_ST,2)}\ns_waitcnt lgkmcnt(0)\nv_writelane_b32 v{r.ST}, s{S_ST}, {DIAG[i]}\ns_not_b32 s{S_ST}, s{S_ST}\nv_writelane_b32 v{r.ST}, s{S_ST}, {DIAG[i]+8}")
        return
    if not opt.stamp: return
    a(f"s_waitcnt lgkmcnt(0)\n{'s_memrealtime' if real else 's_memtime'} {s(S_ST,2)}\ns_waitcnt lgkmcnt(0)\nv_writelane_b32 v{r.ST}, s{S_ST}, {i}")

def silu_stage(a0, r, D, Mo, mf_exp, mf_rcp, ins_exp, ins_rcp, pre=()):
    T = r.T
    def a(x, core=False):
        for y in ([x] if isinstance(x, str) else x):
            for z in y.split("\n"):
                z = z.strip()
                if "vmem" in opt.abl and (z.startswith("buffer_") or "vmcnt" in z): continue
                if "lds" in opt.abl and (z.startswith("ds_") or "lgkmcnt" in z): continue
                if "mfma" in opt.abl and z.startswith("v_mfma"): continue
                if "g2" in opt.abl and z.startswith("v_mfma") and (f"v[{r.A0}:" in z or f"v[{r.A1}:" in z): continue
                if "hm" in opt.abl and z.startswith("v_mfma") and any(f", v[{r.H+4*k}:" in z for k in (1, 2, 3)): continue
                if "trans" in opt.abl and (z.startswith("v_exp") or z.startswith("v_rcp")): z = z.replace("v_exp_f32", "v_mov_b32").replace("v_rcp_f32", "v_mov_b32"); a0(z)
                if "misc" in opt.abl and z.startswith("v_") and not core and not z.startswith("v_readlane"): continue
                a0(z)
    pre = list(pre)
    if opt.spread:
        keep = []; grp = None
        for x in pre:
            if grp is not None:
                grp.append(x)
                if x == "s_mov_b64 exec, -1": keep.append("\n".join(grp)); grp = None
            elif " exec," in x: grp = [x]
            elif x.startswith("s_nop"): continue
            else: keep.append(x)
        pre_map = {}
        per = opt.spread
        for j, x in enumerate(keep): pre_map.setdefault(j // per, []).append(x)
    else:
        a(pre); pre_map = {}
    for i in range(16):
        if i in mf_exp: a(mf_exp[i], True)
        a(f"v_exp_f32 v{T+i}, v{D+i}", True)
        a(pre_map.get(i, ()))
        a(ins_exp.get(i, ()))
    if opt.tprio: a(f"s_setprio {opt.tprio}")
    for i in range(0, 16, 2):
        if opt.padd: a(f"v_pk_add_f32 {v(T+i,2)}, {v(T+i,2)}, {s(S_ONE,2)}", True)
        else: a(f"v_add_f32 v{T+i}, 1.0, v{T+i}\nv_add_f32 v{T+i+1}, 1.0, v{T+i+1}", True)
    if opt.tprio: a(f"s_setprio 0")
    for i in range(16):
        if i in mf_rcp: a(mf_rcp[i], True)
        a(f"v_rcp_f32 v{T+i}, v{T+i}", True)
        a(ins_rcp.get(i, ()))
    def mul(i):
        if opt.pmul: a(f"v_pk_mul_f32 {v(T+i,2)}, {v(T+i,2)}, {v(D+i,2)}", True)
        else: a(f"v_mul_f32 v{T+i}, v{T+i}, v{D+i}\nv_mul_f32 v{T+i+1}, v{T+i+1}, v{D+i+1}", True)
    def cvt(i): a(f"v_cvt_pk_bf16_f32 v{Mo+i//2}, v{T+i}, v{T+i+1}", True)
    if opt.tprio: a(f"s_setprio {opt.tprio}")
    if opt.ilv:
        for i in range(0, 16, 2):
            mul(i)
            if i: cvt(i - 2)
        cvt(14)
    else:
        for i in range(0, 16, 2): mul(i)
        if opt.tprio: a(f"s_setprio 0")
        for i in range(0, 16, 2): cvt(i)

def geometry(r, advance):
    o = [
        f"v_dot2_f32_bf16 v{r.t2}, v{r.PS}, s{S_NL}, v{r.PD}",
        f"v_dot2_f32_bf16 v{r.t3}, v{r.PS}, s{S_NH}, v{r.PD+1}",
        f"v_dot2_f32_bf16 v{r.t4}, v{r.PS+1}, s{S_NL}, v{r.PD+2}",
        f"v_xor_b32 v{r.SA}, v{r.SB}, v{r.PD+3}",
        f"v_lshrrev_b32 v{r.PI}, 7, v{r.K}",
        f"buffer_load_dwordx2 {v(r.PS,2)}, v{r.PI}, {s(SR_P4,4)}, 0 idxen",
        f"v_cvt_pk_bf16_f32 v{r.PQ}, v{r.t2}, v{r.t3}",
        f"v_cvt_pk_bf16_f32 v{r.t5}, v{r.t4}, 0",
        f"v_cvt_pk_bf16_f32 v{r.PQ+1}, v{r.t4}, 1.0",
        f"v_dot2_f32_bf16 v{r.t2}, v{r.PQ}, v{r.PQ}, 0",
        f"v_dot2_f32_bf16 v{r.t2}, v{r.t5}, v{r.t5}, v{r.t2}",
    ]
    if advance:
        o += [f"v_add_u32 v{r.A1a}, 384, v{r.A1a}", f"v_add_u32 v{r.A2a}, 384, v{r.A2a}", "s_nop 0"]
    else:
        o += ["s_nop 2"]
    o += [
        f"v_cvt_pk_bf16_f32 v{r.XM+2}, v{r.t2}, v{r.t2}",
        f"s_mov_b64 exec, {s(S_HI,2)}",
        f"ds_read_b128 {v(r.XM,4)}, v{r.NA}",
        "s_mov_b64 exec, -1",
        f"v_lshlrev_b32_sdwa v{r.NA}, 5, v{r.K} {SDWA} src1_sel:BYTE_0",
    ]
    return o
def k_reads(r, tile_off):
    o = tile_off * 384 + 8
    return [f"ds_read_b32 v{r.K}, v{r.A1a} offset:{o}",
            f"ds_read2_b32 {v(r.K4,2)}, v{r.A2a} offset0:{o//4} offset1:{o//4+3}",
            f"ds_read2_b32 {v(r.K4+2,2)}, v{r.A2a} offset0:{o//4+6} offset1:{o//4+9}"]
def pd_read(r): return [f"ds_read_b128 {v(r.PD,4)}, v{r.NA} offset:16"]
def dma_addr(r): return [f"v_and_or_b32 v{r.K4+k}, v{r.K4+k}, s{S_MSK}, v{r.XK+k}" for k in range(4)]
def dma_issue(r):
    so = [f"s{S_SO0}", f"s{S_SO1}", f"s{S_SO2}", "0"]
    return [f"buffer_load_dwordx4 v{r.K4+k}, {s(SR_HD,4)}, {so[k]} offen offset:{1024*k} lds" for k in range(4)]
def h_reads(r): return [f"ds_read_b128 {v(r.H+4*k,4)}, v{r.HA+k}" for k in range(4)]
def ea_read(r, tile_off):
    o = tile_off * 96
    return [f"ds_read2_b32 {v(r.XM,2)}, v{r.A1a} offset0:{o} offset1:{o+1}"]
def aw_reads(r, nb):
    return [f"s_add_u32 s{S_TMP}, s{nb}, 4",
            f"s_lshr_b32 s{S_TMP}, s{S_TMP}, 3",
            f"s_lshl_b32 s{S_TMP}, s{S_TMP}, 10",
            f"s_lshr_b32 s{S_TMP2}, s{nb}, 3",
            f"s_lshl_b32 s{S_TMP2}, s{S_TMP2}, 10",
            f"v_add_u32 v{r.t2}, s{S_TMP}, v{r.AWl}",
            f"v_add_u32 v{r.t3}, s{S_TMP2}, v{r.AWl}",
            f"s_mov_b64 exec, {s(S_HI,2)}",
            f"ds_read_b64 {v(r.BW,2)}, v{r.t2}",
            f"ds_read_b64 {v(r.BW+2,2)}, v{r.t3} offset:8",
            f"ds_read_b64 {v(r.BW+4,2)}, v{r.t2} offset:512",
            f"ds_read_b64 {v(r.BW+6,2)}, v{r.t3} offset:520",
            "s_mov_b64 exec, -1"]
def s_set(r):
    return [f"s_bfm_b64 exec, s{S_CNT}, 0", f"ds_write_b64 v{r.SA}, {v(r.PQ,2)}", "s_mov_b64 exec, -1"]
def s_reads(r):
    return [f"ds_read_b64_tr_b16 {v(r.S,2)}, v{r.TR0}",
            f"ds_read_b64_tr_b16 {v(r.S+2,2)}, v{r.TR1}",
            f"ds_read_b64_tr_b16 {v(r.S+4,2)}, v{r.TR0} offset:1024",
            f"ds_read_b64_tr_b16 {v(r.S+6,2)}, v{r.TR1} offset:1024",
            f"ds_write2_b32 v{r.SA}, v{r.Zero}, v{r.Zero} offset0:0 offset1:1"]

def flush_addr(r):
    return [f"s_lshr_b32 s{S_TMP}, s{S_NBP}, 3",
          f"s_mul_i32 s{S_TMP}, s{S_TMP}, {8*ACC_ROW}",
          f"s_bitcmp1_b32 s{S_NBP}, 2",
          f"s_cselect_b32 s{S_TMP2}, {8*ACC_ROW}, 0",
          f"v_and_b32 v{r.t3}, s{S_TMP2}, v{r.ML}",
          f"v_add3_u32 v{r.t2}, v{r.FlM}, v{r.t3}, s{S_TMP}",
          f"v_add3_u32 v{r.t3}, v{r.FlP}, v{r.t3}, s{S_TMP}"]
def flush_dot(r):
    W = r.W2
    o = [f"v_pk_mul_f32 {v(r.T,2)}, {v(W,2)}, {v(r.A0,2)}", f"v_pk_mul_f32 {v(r.T+2,2)}, {v(W+16,2)}, {v(r.A1,2)}"]
    for i in range(2, 16, 2):
        o.append(f"v_pk_fma_f32 {v(r.T,2)}, {v(W+i,2)}, {v(r.A0+i,2)}, {v(r.T,2)}")
        o.append(f"v_pk_fma_f32 {v(r.T+2,2)}, {v(W+16+i,2)}, {v(r.A1+i,2)}, {v(r.T+2,2)}")
    o += [f"v_pk_add_f32 {v(r.T,2)}, {v(r.T,2)}, {v(r.T+2,2)}",
          f"v_add_f32 v{r.t4}, v{r.T}, v{r.T+1}", f"v_add_f32 v{r.t5}, v{r.T}, v{r.T+1}", "s_nop 1",
          f"v_permlane32_swap_b32 v{r.t4}, v{r.t5}", "s_nop 1", f"v_add_f32 v{r.t4}, v{r.t4}, v{r.t5}"]
    return o
EX3 = f"s_and_b32 exec_lo, s{S_RM}, 0x88888888\ns_mov_b32 exec_hi, exec_lo"
EXP = f"s_and_b32 exec_lo, s{S_RM}, 0x77777777\ns_mov_b32 exec_hi, 0"
def acc_zero(r, masked):
    o = [f"s_mov_b32 exec_lo, s{S_RM}\ns_mov_b32 exec_hi, s{S_RM}"] if masked else []
    o += [f"v_mov_b64 {v(r.A0+i,2)}, 0" for i in range(0, 32, 2)]
    if masked: o.append("s_mov_b64 exec, -1")
    return o
def flush_plain(r):
    o = flush_addr(r) + [EX3]
    o += [f"ds_write_b128 v{r.t2}, {v(r.A0+4*q,4)} offset:{32*q}" for q in range(8)]
    o += ["s_mov_b64 exec, -1"] + flush_dot(r)
    o += [EXP, f"ds_write_b32 v{r.t3}, v{r.t4}"] + acc_zero(r, True)
    return o
def flush_atomic(r):
    o = [EX3]
    for t, A in ((0, r.A0), (1, r.A1)):
        for i in range(16):
            o.append(f"ds_add_f32 v{r.t2}, v{A+i} offset:{(32*t + 8*(i>>2) + (i&3))*4}")
    o += [EXP, f"ds_add_f32 v{r.t3}, v{r.t4}", "s_mov_b64 exec, -1"]
    return o
def rmw_reads(r):
    return [EX3] + [f"ds_read_b128 {v(r.D0+4*q,4)}, v{r.t2} offset:{32*q}" for q in range(8)] + \
           [EXP, f"ds_read_b32 v{r.t5}, v{r.t3}", "s_mov_b64 exec, -1"]
def rmw_writes(r):
    o = [EX3]
    for q in range(8):
        o += ["s_waitcnt lgkmcnt(8)",
              f"v_pk_add_f32 {v(r.D0+4*q,2)}, {v(r.D0+4*q,2)}, {v(r.A0+4*q,2)}",
              f"v_pk_add_f32 {v(r.D0+4*q+2,2)}, {v(r.D0+4*q+2,2)}, {v(r.A0+4*q+2,2)}",
              f"ds_write_b128 v{r.t2}, {v(r.D0+4*q,4)} offset:{32*q}"]
    o += [EXP, "s_waitcnt lgkmcnt(8)", f"v_add_f32 v{r.t4}, v{r.t4}, v{r.t5}", f"ds_write_b32 v{r.t3}, v{r.t4}", "s_mov_b64 exec, -1"]
    return o
def retire_mask(r):
    return [f"s_mov_b32 s{S_RM}, 0xffff",
            f"s_bitcmp1_b32 s{S_NBP}, 2",
            f"s_cselect_b32 s{S_RM}, 0xffff0000, s{S_RM}",
            f"s_add_u32 s{S_TMP}, s{S_NBP}, 4",
            f"s_cmp_eq_u32 s{S_TMP}, s{S_NB}",
            f"s_cselect_b32 s{S_RM}, s{S_RM}, -1"]

def gen():
    a = Asm(); r = alloc()
    t0, t1, t2, t3, t4, t5 = r.t0, r.t1, r.t2, r.t3, r.t4, r.t5
    T_DST, T_SRC, T_EA, T_POS, T_WE, T_WH, T_H, T_X = TS
    a.label(KNAME)
    DST = r.D0; SRC = r.D0 + 8; EA = r.D0 + 16; BINA = r.D0 + 32; RNK = r.D0 + 40
    V16, V32, L16 = r.V16, r.V8, r.L16
    POSR = r.PD
    S_CN = S_T0; S_O4 = S_NTL; S_O8 = S_CNT; S_N0 = S_SEG; S_NN = S_D; S_BUD = S_I
    MA = [80, 82, 84, 86]
    e_, hh_ = t0, t1
    a(f"""
    s_cmp_ge_u32 s2, {NB}
    s_cbranch_scc1 L_done
    """)
    if opt.thr: a(f"s_memrealtime {s(S_ST,2)}")
    a(f"""
    s_load_dwordx16 s[4:19], s[0:1], 0
    s_and_b32 s3, s2, 7
    s_lshl_b32 s3, s3, 5
    s_lshr_b32 s2, s2, 3
    s_or_b32 s2, s2, s3
    s_load_dwordx4 s[20:23], s[0:1], 64
    s_load_dwordx2 s[24:25], s[0:1], 80
    v_lshrrev_b32 v{t0}, 6, v0
    v_and_b32 v{r.lane}, 63, v0
    v_readfirstlane_b32 s{S_V}, v{t0}
    v_mov_b32 v{r.Zero}, 0
    v_lshlrev_b32 v{V16}, 4, v0
    v_lshlrev_b32 v{V32}, 5, v0
    v_lshlrev_b32 v{L16}, 4, v{r.lane}
    v_mov_b64 {v(r.T,2)}, 0
    v_mov_b64 {v(r.T+2,2)}, 0
    s_mul_i32 s{S_O4}, s2, {CH*4}
    s_lshl_b32 s{S_O8}, s{S_O4}, 1
    s_mov_b32 s{S_CN}, {CH}
    s_cmp_eq_u32 s2, {NB-1}
    s_cselect_b32 s{S_CN}, {E-(NB-1)*CH}, s{S_CN}
    s_lshl_b32 s3, s{S_CN}, 2
    s_add_u32 s3, s3, s{S_O4}
    s_lshl_b32 s{S_TMP3}, s3, 1
    s_add_u32 s{S_TMP}, s{S_O4}, 8192
    s_add_u32 s{S_TMP2}, s{S_O8}, 16384
    s_lshl_b32 s{S_MODE}, s2, 10
    s_mul_i32 s{S_N0}, s2, {BN}
    v_and_b32 v{t2}, 127, v0
    v_add_u32 v{t2}, s{S_N0}, v{t2}
    v_mul_u32_u24 v{t2}, 6, v{t2}
    v_and_b32 v{POSR+2}, 2, v{t2}
    v_lshlrev_b32 v{POSR+2}, 3, v{POSR+2}
    v_and_b32 v{t2}, -4, v{t2}
    v_and_b32 v{t4}, 3, v{r.lane}
    v_bfe_u32 v{t5}, v{r.lane}, 2, 3
    v_lshl_or_b32 v{t4}, v{t5}, 3, v{t4}
    v_lshrrev_b32 v{t5}, 5, v{r.lane}
    v_lshl_or_b32 v{t4}, v{t5}, 2, v{t4}
    v_lshlrev_b32 v{t4}, 1, v{t4}
    s_waitcnt lgkmcnt(0)
    """)
    if opt.tw:
        a(f"""
        s_cmp_lg_u32 s{S_V}, 7
        s_cbranch_scc1 L_notw
        v_min_u32 v{t2}, 6, v{r.lane}
        v_lshlrev_b32 v{t2}, 21, v{t2}
        v_mov_b32 v{t4}, {10300000 & ~127}
        v_cmp_eq_u32 vcc, 5, v{r.lane}
        s_mul_i32 s{S_D}, s2, {BN*128}
        s_nop 0
        v_cndmask_b32 v{t2}, v{t2}, v{t4}, vcc
        v_mov_b32 v{t4}, {14500000 & ~127}
        v_cmp_le_u32 vcc, 6, v{r.lane}
        v_and_b32 v{t5}, 1, v{r.lane}
        s_nop 0
        v_cndmask_b32 v{t2}, v{t2}, v{t4}, vcc
        global_load_dword v{r.DM}, v{t2}, {s(P_WS,2)} sc1
        v_mul_u32_u24 v{t2}, 3199872, v{t5}
        global_load_dword v{r.DM}, v{t2}, {s(P_H,2)}
        v_mov_b32 v{t4}, s{S_D}
        v_cmp_eq_u32 vcc, 0, v{t5}
        v_mov_b32 v{t2}, 3349888
        s_nop 0
        v_cndmask_b32 v{t2}, v{t2}, v{t4}, vcc
        global_load_dword v{r.DM}, v{t2}, {s(P_OUT,2)} sc1
        L_notw:
        """)
    a(srd(SR_TAB, P_WS, NB * 1024, WS_TAB))
    a(f"s_cmp_lg_u32 s{S_V}, 0\ns_cbranch_scc1 L_noclr\nbuffer_store_dwordx4 {v(r.T,4)}, v{L16}, {s(SR_TAB,4)}, s{S_MODE} offen {opt.st}\nL_noclr:")
    a(srd(T_POS, P_POS, N * 6)); a(srd(T_X, P_WX, 128))
    a(f"""
    s_cmp_gt_u32 s{S_V}, 4
    s_cbranch_scc1 L_nopos
    s_cmp_eq_u32 s{S_V}, 4
    s_cbranch_scc1 L_wx
    buffer_load_dwordx2 {v(POSR,2)}, v{t2}, {s(T_POS,4)}, 0 offen
    s_branch L_nopos
    L_wx:
    buffer_load_ushort v{POSR+3}, v{t4}, {s(T_X,4)}, 0 offen
    L_nopos:
    """)
    a(srd(T_DST, P_DST, "s3"))
    a(f"""
    v_lshlrev_b32 v{r.V4}, 3, v0
    s_add_u32 s{S_TMP2}, s{S_O4}, 4096
    buffer_load_dwordx2 {v(DST,2)}, v{r.V4}, {s(T_DST,4)}, s{S_O4} offen {opt.ld}
    buffer_load_dwordx2 {v(DST+2,2)}, v{r.V4}, {s(T_DST,4)}, s{S_TMP2} offen {opt.ld}
    s_add_u32 s{S_TMP2}, s{S_TMP}, 4096
    buffer_load_dwordx2 {v(DST+4,2)}, v{r.V4}, {s(T_DST,4)}, s{S_TMP} offen {opt.ld}
    buffer_load_dwordx2 {v(DST+6,2)}, v{r.V4}, {s(T_DST,4)}, s{S_TMP2} offen {opt.ld}
    """)
    a(srd(T_SRC, P_SRC, "s3")); a(srd(T_EA, P_EA, f"s{S_TMP3}"))
    if not opt.late:
        a(f"""
        buffer_load_dwordx2 {v(SRC+0,2)}, v{r.V4}, {s(T_SRC,4)}, s{S_O4} offen {opt.ld}
        buffer_load_dwordx4 {v(EA+0,4)}, v{V16}, {s(T_EA,4)}, s{S_O8} offen {opt.ld}
        s_add_u32 s{S_O4}, s{S_O4}, 4096
        s_add_u32 s{S_O8}, s{S_O8}, 8192
        buffer_load_dwordx2 {v(SRC+2,2)}, v{r.V4}, {s(T_SRC,4)}, s{S_O4} offen {opt.ld}
        buffer_load_dwordx4 {v(EA+4,4)}, v{V16}, {s(T_EA,4)}, s{S_O8} offen {opt.ld}
        s_add_u32 s{S_O4}, s{S_O4}, 4096
        s_add_u32 s{S_O8}, s{S_O8}, 8192
        buffer_load_dwordx2 {v(SRC+4,2)}, v{r.V4}, {s(T_SRC,4)}, s{S_O4} offen {opt.ld}
        buffer_load_dwordx4 {v(EA+8,4)}, v{V16}, {s(T_EA,4)}, s{S_O8} offen {opt.ld}
        s_add_u32 s{S_O4}, s{S_O4}, 4096
        s_add_u32 s{S_O8}, s{S_O8}, 8192
        buffer_load_dwordx2 {v(SRC+6,2)}, v{r.V4}, {s(T_SRC,4)}, s{S_O4} offen {opt.ld}
        buffer_load_dwordx4 {v(EA+12,4)}, v{V16}, {s(T_EA,4)}, s{S_O8} offen {opt.ld}
        """)
    if opt.stamp or opt.diag: a(f"v_mov_b32 v{r.ST}, 0")
    stamp(a, r, 0, True); stamp(a, r, 1)
    a(f"""
    v_add_u32 v{t3}, {L_HIST}, v{L16}
    ds_write_b128 v{t3}, {v(r.T,4)}
    s_lshl_b32 s{S_B4}, s2, 2
    s_lshr_b32 s{S_RT}, s{S_V}, 1
    s_and_b32 s{S_T}, s{S_V}, 1
    """)
    NY = 10
    a(f"""
    s_add_u32 s{SR_HD}, s{P_WS}, {WS_B-3072}
    s_addc_u32 s{SR_HD+1}, s{P_WS+1}, 0
    s_mov_b32 s{SR_HD+2}, {N*128+3072}
    s_mov_b32 s{SR_HD+3}, 0x00020000
    """)
    a(srd(SR_REC, P_WS, NB * REC_STRIDE)); a(srd(SR_P4, P_WS, N, WS_P4))
    a(f"""
    s_and_b32 s{SR_P4+1}, s{SR_P4+1}, 0xffff
    s_or_b32 s{SR_P4+1}, s{SR_P4+1}, 0x80000
    s_sub_u32 s{S_NN}, {N}, s{S_N0}
    s_min_u32 s{S_NN}, s{S_NN}, {BN}
    s_lshl_b32 s{S_TMP}, s{S_N0}, 7
    s_lshl_b32 s{S_TMP2}, s{S_NN}, 7
    """)
    a(srd(SR_OUT, P_OUT, f"s{S_TMP2}", f"s{S_TMP}"))
    a(f"s_mul_i32 s{S_TMP}, s{S_N0}, 6\ns_add_u32 s{S_TMP}, s{S_TMP}, {OUT_POS}\ns_mul_i32 s{S_TMP2}, s{S_NN}, 6")
    a(srd(SR_OUTP, P_OUT, f"s{S_TMP2}", f"s{S_TMP}"))
    T_RO = T_DST; T_DBG = T_SRC
    if opt.late:
        a(f"""
        buffer_load_dwordx2 {v(SRC+0,2)}, v{r.V4}, {s(T_SRC,4)}, s{S_O4} offen {opt.ld}
        buffer_load_dwordx4 {v(EA+0,4)}, v{V16}, {s(T_EA,4)}, s{S_O8} offen {opt.ld}
        s_add_u32 s{S_O4}, s{S_O4}, 4096
        s_add_u32 s{S_O8}, s{S_O8}, 8192
        buffer_load_dwordx2 {v(SRC+2,2)}, v{r.V4}, {s(T_SRC,4)}, s{S_O4} offen {opt.ld}
        buffer_load_dwordx4 {v(EA+4,4)}, v{V16}, {s(T_EA,4)}, s{S_O8} offen {opt.ld}
        s_add_u32 s{S_O4}, s{S_O4}, 4096
        s_add_u32 s{S_O8}, s{S_O8}, 8192
        buffer_load_dwordx2 {v(SRC+4,2)}, v{r.V4}, {s(T_SRC,4)}, s{S_O4} offen {opt.ld}
        buffer_load_dwordx4 {v(EA+8,4)}, v{V16}, {s(T_EA,4)}, s{S_O8} offen {opt.ld}
        s_add_u32 s{S_O4}, s{S_O4}, 4096
        s_add_u32 s{S_O8}, s{S_O8}, 8192
        buffer_load_dwordx2 {v(SRC+6,2)}, v{r.V4}, {s(T_SRC,4)}, s{S_O4} offen {opt.ld}
        buffer_load_dwordx4 {v(EA+12,4)}, v{V16}, {s(T_EA,4)}, s{S_O8} offen {opt.ld}
        """)
    a(f"s_mul_i32 s{S_TMP}, s2, {REC_STRIDE}\ns_mul_i32 s{S_TMP2}, s{S_CN}, 12")
    a(srd(T_RO, P_WS, f"s{S_TMP2}", f"s{S_TMP}")); a(srd(T_DBG, P_DBG, 256))
    ONE = r.PQ
    a(f"""
    v_mov_b32 v{ONE}, 1
    s_lshr_b32 s3, s{S_CN}, 1
    v_cmp_gt_u32 {s(MA[0],2)}, s3, v0
    v_add_u32 v{t2}, 512, v0
    v_cmp_gt_u32 {s(MA[1],2)}, s3, v{t2}
    v_add_u32 v{t2}, 1024, v0
    v_cmp_gt_u32 {s(MA[2],2)}, s3, v{t2}
    v_add_u32 v{t2}, 1536, v0
    v_cmp_gt_u32 {s(MA[3],2)}, s3, v{t2}
    """)
    a(f"""
    s_mov_b32 s{S_C}, 0x{f2u(-LOG2E):08x}
    s_mov_b32 s{S_C+1}, 0x{f2u(-LOG2E):08x}
    s_mov_b32 s{S_ONE}, 1.0
    s_mov_b32 s{S_ONE+1}, 1.0
    s_mov_b32 s{S_MODE}, 0
    s_mov_b32 s{S_BUD}, 0x40000
    """)
    nonlocal_z = [r.T]
    def zero_region(base, size):
        assert base % 16 == 0 and size % 16 == 0
        full = size // 8192; rem = size % 8192
        a(f"v_add_u32 v{t3}, {base}, v{V16}")
        for k in range(full):
            a(f"ds_write_b128 v{t3}, {v(nonlocal_z[0],4)} offset:{k*8192}")
        if rem:
            a(f"v_cmp_gt_u32 vcc, {rem//16}, v0\ns_and_saveexec_b64 {s(S_D,2)}, vcc")
            a(f"ds_write_b128 v{t3}, {v(nonlocal_z[0],4)} offset:{full*8192}\ns_mov_b64 exec, -1")
    a(f"""
    ds_write_b128 v{L16}, {v(nonlocal_z[0],4)} offset:{L_CNT}
    v_mov_b32 v{t3}, {L_FLAG}
    ds_write_b128 v{t3}, {v(nonlocal_z[0],4)}
    """)
    zero_region(L_SIMG, 8 * 2048)
    JJ = r.SA; LB = r.HA + 0; J16 = r.HA + 1
    a(f"""
    v_and_b32 v{e_}, 31, v{r.lane}
    v_lshrrev_b32 v{hh_}, 5, v{r.lane}
    s_lshl_b32 s{S_TMP}, s{S_V}, 12
    s_add_u32 s{S_TMP}, s{S_TMP}, {L_RING}
    s_mov_b32 m0, s{S_TMP}
    v_and_b32 v{t2}, 3, v{e_}
    v_lshlrev_b32 v{t3}, 10, v{t2}
    v_lshrrev_b32 v{t4}, 2, v{e_}
    v_lshl_add_u32 v{t3}, v{t4}, 7, v{t3}
    v_add_u32 v{t3}, s{S_TMP}, v{t3}
    v_bfe_u32 v{t4}, v{e_}, 3, 1
    v_lshl_or_b32 v{t2}, v{t4}, 2, v{t2}
    v_xor_b32 v{t2}, v{t2}, v{hh_}
    """)
    for k in range(4):
        a(f"v_xor_b32 v{t4}, {2*k}, v{t2}\nv_lshl_add_u32 v{r.HA+k}, v{t4}, 4, v{t3}")
    a(f"""
    v_and_b32 v{t2}, 7, v{r.lane}
    v_bfe_u32 v{t3}, v{r.lane}, 4, 1
    v_lshlrev_b32 v{t3}, 2, v{t3}
    v_xor_b32 v{t2}, v{t2}, v{t3}
    """)
    for k in range(4):
        a(f"v_xor_b32 v{t4}, {k}, v{t2}\nv_lshlrev_b32 v{r.XK+k}, 4, v{t4}")
    JJ = r.SA; LB = r.A1a; J16 = r.A2a; MX = r.NA; TA = r.Desc
    LP = r.K; LPT = r.PI
    a(f"""
    s_lshl_b32 s{S_TMP}, s{S_V}, 11
    s_add_u32 s{S_TMP}, s{S_TMP}, {L_SIMG}
    v_bfe_u32 v{t2}, v{e_}, 1, 3
    v_lshlrev_b32 v{t2}, 3, v{t2}
    v_lshl_add_u32 v{t2}, v{e_}, 6, v{t2}
    v_add_u32 v{r.SB}, s{S_TMP}, v{t2}
    v_bfe_u32 v{t2}, v{r.lane}, 2, 2
    v_lshl_add_u32 v{t2}, v{hh_}, 2, v{t2}
    v_bfe_u32 v{t3}, v{r.lane}, 4, 1
    v_and_b32 v{t4}, 3, v{r.lane}
    v_lshl_or_b32 v{t3}, v{t3}, 2, v{t4}
    v_lshlrev_b32 v{LP}, 3, v{t3}
    v_bfe_u32 v{t4}, v{r.lane}, 2, 2
    v_lshl_add_u32 v{LP}, v{t4}, 7, v{LP}
    v_lshrrev_b32 v{t4}, 1, v{t2}
    v_xor_b32 v{t3}, v{t3}, v{t4}
    v_lshlrev_b32 v{t2}, 6, v{t2}
    v_add_u32 v{t2}, s{S_TMP}, v{t2}
    v_lshl_add_u32 v{r.TR0}, v{t3}, 3, v{t2}
    v_xor_b32 v{t3}, 4, v{t3}
    v_lshl_add_u32 v{r.TR1}, v{t3}, 3, v{t2}
    v_add_u32 v{r.TR1}, 512, v{r.TR1}
    v_lshlrev_b32 v{t2}, 4, v{e_}
    v_add_u32 v{r.AWl}, {L_AT}, v{t2}
    v_lshrrev_b32 v{t2}, 2, v{e_}
    v_mul_u32_u24 v{t2}, {ACC_ROW}, v{t2}
    v_add_u32 v{t2}, {L_ACC}, v{t2}
    v_lshl_add_u32 v{r.FlM}, v{hh_}, 4, v{t2}
    v_and_b32 v{t3}, 3, v{e_}
    v_lshl_add_u32 v{r.FlP}, v{t3}, 2, v{t2}
    v_add_u32 v{r.FlP}, 256, v{r.FlP}
    v_bfe_u32 v{t2}, v{e_}, 4, 1
    v_add_u32 v{r.ML}, -1, v{t2}
    v_lshrrev_b32 v{t5}, 4, v0
    v_lshlrev_b32 v{TA}, 10, v{t5}
    v_and_b32 v{t2}, 15, v0
    v_add_u32 v{JJ}, 0x8000, v{t2}
    v_add_u32 v{J16}, 0x8010, v{t2}
    s_mov_b32 s{S_TMP}, {REC_STRIDE}
    v_mul_lo_u32 v{LB}, v{t5}, s{S_TMP}
    v_mad_u32_u24 v{LB}, v{t2}, 12, v{LB}
    v_mov_b32 v{MX}, 0
    v_lshrrev_b32 v{t2}, 3, v{r.lane}
    v_and_b32 v{t3}, 7, v{r.lane}
    v_lshrrev_b32 v{t4}, 4, v{r.lane}
    s_lshl_b32 s3, s{S_T}, 2
    v_or_b32 v{t4}, s3, v{t4}
    v_xor_b32 v{t3}, v{t3}, v{t4}
    v_lshlrev_b32 v{t3}, 4, v{t3}
    v_lshl_add_u32 v{r.HR}, v{t2}, 7, v{t3}
    """)
    a(f"s_add_u32 s3, s{S_N0}, 104\ns_min_u32 s3, s3, {N}\ns_lshl_b32 s3, s3, 7")
    a(srd(T_WE, P_WE, 133 * 128)); a(srd(SR_WH, P_WH, 128 * 128)); a(srd(T_H, P_H, "s3"))
    a(f"""
    s_mov_b32 s{S_TMP}, 5350
    s_mov_b32 s{S_TMP2}, {BN}
    s_mov_b32 s3, {L_HIST}
    s_waitcnt lgkmcnt(0)
    s_barrier
    s_cmp_lg_u32 s{S_V}, 0
    s_cbranch_scc1 L_noflag
    v_mov_b32 v{t3}, s2
    s_waitcnt vmcnt(13)
    s_mov_b64 exec, 1
    buffer_store_byte v{ONE}, v{t3}, {s(T_DBG,4)}, 0 offen sc1
    s_mov_b64 exec, -1
    L_noflag:
    """)
    stamp(a, r, 2)
    for half in range(4):
        a(f"s_waitcnt vmcnt({11 - half})\ns_mov_b64 exec, {s(MA[half],2)}")
        for k in range(2 * half, 2 * half + 2):
            a(f"""
            v_mul_u32_u24 v{BINA+k}, s{S_TMP}, v{DST+k}
            v_lshrrev_b32 v{BINA+k}, 19, v{BINA+k}
            v_mul_u32_u24 v{t2}, s{S_TMP2}, v{BINA+k}
            v_lshl_add_u32 v{BINA+k}, v{BINA+k}, 2, s3
            ds_add_rtn_u32 v{RNK+k}, v{BINA+k}, v{ONE}
            v_sub_u32 v{DST+k}, v{DST+k}, v{t2}
            """)
    C = r.T; TE = r.M
    a(f"""
    s_mov_b64 exec, -1
    v_add_u32 v{t2}, {L_HIST}, v{L16}
    s_waitcnt lgkmcnt(0)
    s_barrier
    """)
    stamp(a, r, 3)
    a(f"""
    ds_read_b128 {v(C,4)}, v{t2}
    s_lshl_b32 s{S_TMP}, s{S_V}, 10
    s_add_u32 s{S_TMP2}, s{S_TMP}, 8192
    s_cmp_lg_u32 s{S_V}, 1
    s_cbranch_scc1 L_nowe
    s_mov_b32 m0, {L_WE+16384}
    s_mov_b32 s3, 16384
    buffer_load_dwordx4 v{L16}, {s(T_WE,4)}, s3 offen lds
    L_nowe:
    s_add_u32 m0, s{S_TMP}, {L_WE}
    s_lshl_b32 s3, s{S_N0}, 7
    buffer_load_dwordx4 v{L16}, {s(T_WE,4)}, s{S_TMP} offen lds
    s_add_u32 m0, s{S_TMP}, {L_WE+8192}
    s_add_u32 s3, s3, s{S_TMP}
    buffer_load_dwordx4 v{L16}, {s(T_WE,4)}, s{S_TMP2} offen lds
    s_add_u32 m0, s{S_TMP}, {L_HST}
    s_add_u32 s{S_TMP3}, s3, 8192
    buffer_load_dwordx4 v{r.HR}, {s(T_H,4)}, s3 offen lds
    s_add_u32 m0, s{S_TMP}, {L_HST+8192}
    s_lshl_b32 s{S_TMP}, s{S_V}, 12
    buffer_load_dwordx4 v{r.HR}, {s(T_H,4)}, s{S_TMP3} offen lds
    s_add_u32 m0, s{S_TMP}, {L_RING}
    s_waitcnt lgkmcnt(0)
    v_add_u32 v{C+5}, v{C}, v{C+1}
    v_add_u32 v{C+6}, v{C+5}, v{C+2}
    v_add_u32 v{C+7}, v{C+6}, v{C+3}
    v_mov_b32 v{C+4}, v{C+7}
    """)
    a(wave_scan(C + 4))
    a(f"""
    v_sub_u32 v{C+8}, v{C+4}, v{C+7}
    v_add_u32 v{C+9}, v{C+8}, v{C}
    v_add_u32 v{C+10}, v{C+8}, v{C+5}
    v_add_u32 v{C+11}, v{C+8}, v{C+6}
    ds_write_b128 v{t2}, {v(C+8,4)} offset:1024
    """)
    for half in range(4):
        a(f"s_mov_b64 exec, {s(MA[half],2)}")
        for k in range(2 * half, 2 * half + 2):
            a(f"ds_read_b32 v{BINA+k}, v{BINA+k} offset:1024")
    TEV = r.A1 + 12
    a("s_mov_b64 exec, -1")
    for k in range(4):
        a(f"v_mul_u32_u24 v{TEV+k}, 12, v{C+8+k}\nv_lshl_or_b32 v{TEV+k}, v{C+k}, 16, v{TEV+k}\nv_or_b32 v{TEV+k}, 0x80000000, v{TEV+k}")
    if opt.fine: stamp(a, r, 18); stamp(a, r, 19)
    for half in range(4):
        a(f"s_waitcnt vmcnt({10 - 2*half}) lgkmcnt({6 + 2*half})\ns_mov_b64 exec, {s(MA[half],2)}")
        for k in range(2 * half, 2 * half + 2):
            a(f"""
            v_add_lshl_u32 v{BINA+k}, v{BINA+k}, v{RNK+k}, 4
            v_lshl_or_b32 v{SRC+k}, v{SRC+k}, 7, v{DST+k}
            ds_write_b64 v{BINA+k}, {v(EA+2*k,2)} offset:{L_STG}
            ds_write_b32 v{BINA+k}, v{SRC+k} offset:{L_STG+8}
            """)
    if opt.fine: stamp(a, r, 20)
    a("s_mov_b64 exec, -1")
    a(f"""
    s_mov_b32 s{S_NL}, 0x0000bf80
    s_mov_b32 s{S_NH}, 0xbf800000
    s_mov_b32 s{S_MSK}, 0xffffff80
    s_mov_b32 s{S_SO0}, 3072
    s_mov_b32 s{S_SO1}, 2048
    s_mov_b32 s{S_SO2}, 1024
    s_mov_b32 s{S_HI}, 0
    s_mov_b32 s{S_HI+1}, -1
    v_mul_u32_u24 v{t2}, 12, v0
    v_add_u32 v{t5}, {L_WE + 128*128}, v{LP}
    v_lshl_add_u32 v{LP}, v{hh_}, 10, v{LP}
    s_lshl_b32 s{S_TMP}, s{S_T}, 6
    s_add_u32 s{S_TMP}, s{S_TMP}, {L_ACC}
    v_add_u32 v{LPT}, s{S_TMP}, v{LP}
    s_lshl_b32 s{S_TMP2}, s{S_RT}, 11
    v_add_u32 v{t4}, s{S_TMP2}, v{LPT}
    """)
    if opt.fine: stamp(a, r, 21)
    a("s_waitcnt lgkmcnt(0)\ns_barrier")
    stamp(a, r, 4)
    CO = r.D0; DBGV = r.A1 + 8
    for k in range(7):
        a(f"ds_read_b96 {v(CO+4*k,3)}, v{V16} offset:{L_STG + k*8192}")
    for k in range(7):
        a(f"s_mov_b32 s3, {k*6144}\ns_waitcnt lgkmcnt({6-k})")
        a(f"buffer_store_dwordx3 {v(CO+4*k,3)}, v{t2}, {s(T_RO,4)}, s3 offen {opt.st}")
    a(f"v_lshlrev_b32 v{DBGV+1}, 2, v{r.lane}\ns_cmp_lg_u32 s{S_V}, 0\ns_cbranch_scc1 L_nodbg\nbuffer_load_dword v{DBGV}, v{DBGV+1}, {s(T_DBG,4)}, 0 offen sc1\nL_nodbg:")
    stamp(a, r, 5)
    UP = r.W2 + 2; Q5 = r.W2 + 16; NTD = r.W2 + 24; W1F = r.T; AD = r.XM; ID = r.W2 + 32
    HAD = r.U; W2F = r.M; BD = r.XM; BO = r.W2; T_BO = 80
    a(f"""
    s_lshl_b32 s{S_TMP}, s{S_RT}, 12
    s_add_u32 s{S_TMP}, s{S_TMP}, {L_HST}
    v_lshlrev_b32 v{t2}, 7, v{e_}
    v_add_u32 v{t2}, s{S_TMP}, v{t2}
    v_bfe_u32 v{t3}, v{e_}, 1, 3
    v_xor_b32 v{t4}, v{t3}, v{hh_}
    """)
    for k in range(4):
        a(f"v_xor_b32 v{HAD+k}, {2*k}, v{t4}\nv_lshl_add_u32 v{HAD+k}, v{HAD+k}, 4, v{t2}")
    a(f"s_lshl_b32 s{S_TMP}, s{S_T}, 2\nv_xor_b32 v{t4}, s{S_TMP}, v{t3}\nv_lshl_add_u32 v{t2}, v{hh_}, 3, v{t2}")
    for g in range(4):
        a(f"v_xor_b32 v{HAD+4+g}, {g}, v{t4}\nv_lshl_add_u32 v{HAD+4+g}, v{HAD+4+g}, 4, v{t2}")
    a(f"""
    s_mul_i32 s{S_TMP}, s{S_RT}, {32*144}
    s_lshl_b32 s{S_TMP2}, s{S_T}, 6
    s_add_u32 s{S_TMP}, s{S_TMP}, s{S_TMP2}
    v_mul_u32_u24 v{t2}, 144, v{e_}
    v_lshl_add_u32 v{t2}, v{hh_}, 3, v{t2}
    v_add_u32 v{HAD+8}, s{S_TMP}, v{t2}
    s_mul_i32 s{S_TMP}, s{S_V}, {16*144}
    v_lshrrev_b32 v{t2}, 3, v{r.lane}
    v_mul_u32_u24 v{t2}, 144, v{t2}
    v_and_b32 v{t3}, 7, v{r.lane}
    v_lshl_add_u32 v{t2}, v{t3}, 4, v{t2}
    v_add_u32 v{HAD+9}, s{S_TMP}, v{t2}
    s_lshl_b32 s{S_TMP}, s{S_N0}, 7
    s_add_u32 s{S_TMP}, s{S_TMP}, {WS_B}
    """)
    a(srd(T_BO, P_WS, f"s{SR_OUT+2}", f"s{S_TMP}"))
    a(f"s_lshl_b32 s3, s{S_V}, 11\ns_waitcnt vmcnt(7)\ns_barrier")
    for k in range(4):
        a(f"ds_read_b128 {v(r.H+4*k,4)}, v{HAD+k}")
        a(f"ds_read_b64_tr_b16 {v(W2F+4*k,2)}, v{LPT} offset:{16384+2048*k}\nds_read_b64_tr_b16 {v(W2F+4*k+2,2)}, v{LPT} offset:{16384+2048*k+512}")
    for k in range(4):
        a(f"s_waitcnt lgkmcnt({9-3*k})")
        a(mfma(BD, W2F+4*k, r.H+4*k, BD if k else None))
    for t in range(2):
        a(f"ds_read_b64_tr_b16 {v(Q5+4*t,2)}, v{t5} offset:{128+64*t}\nds_read_b64_tr_b16 {v(Q5+4*t+2,2)}, v{t5} offset:{64*t}")
    for g in range(4):
        a(f"ds_read_b64 {v(r.HR+2*g,2)}, v{HAD+4+g}")
    a("s_nop 3")
    for g in range(4):
        x = BD + 4 * g
        a(f"""
        v_pk_mul_f32 {v(x,2)}, {v(x,2)}, {s(S_C,2)}
        v_pk_mul_f32 {v(x+2,2)}, {v(x+2,2)}, {s(S_C,2)}
        v_cvt_pk_bf16_f32 v{x}, v{x}, v{x+1}
        v_cvt_pk_bf16_f32 v{x+1}, v{x+2}, v{x+3}
        ds_write_b64 v{HAD+8}, {v(x,2)} offset:{L_REC+16*g}
        """)
    a(f"""
    s_waitcnt lgkmcnt(0)
    s_barrier
    ds_read_b128 {v(BO,4)}, v{HAD+9} offset:{L_REC}
    ds_read_b128 {v(BO+4,4)}, v{HAD+9} offset:{L_REC+8*144}
    s_waitcnt lgkmcnt(1)
    buffer_store_dwordx4 {v(BO,4)}, v{L16}, {s(T_BO,4)}, s3 offen {opt.st}
    s_waitcnt lgkmcnt(0)
    buffer_store_dwordx4 {v(BO+4,4)}, v{L16}, {s(T_BO,4)}, s3 offen offset:1024 {opt.st}
    """)
    for k in range(4):
        a(f"ds_read_b64_tr_b16 {v(W1F+4*k,2)}, v{LPT} offset:{8192+2048*k}\nds_read_b64_tr_b16 {v(W1F+4*k+2,2)}, v{LPT} offset:{8192+2048*k+512}")
    a(f"""
    v_alignbit_b32 v{r.PS}, v{POSR+1}, v{POSR}, v{POSR+2}
    v_lshrrev_b32 v{r.PS+1}, v{POSR+2}, v{POSR+1}
    v_and_b32 v{r.PS+1}, 0xffff, v{r.PS+1}
    v_add_u32 v{t3}, s{S_N0}, v0
    v_cmp_gt_u32 vcc, {BN}, v0
    s_and_saveexec_b64 {s(S_D,2)}, vcc
    buffer_store_dwordx2 {v(r.PS,2)}, v{t3}, {s(SR_P4,4)}, 0 idxen {opt.st}
    s_mov_b64 exec, -1
    v_and_b32 v{t2}, 1, v0
    v_lshlrev_b32 v{t2}, 4, v{t2}
    v_mov_b32 v{t3}, 0x3f80
    v_lshlrev_b32 v{t2}, v{t2}, v{t3}
    v_bfe_u32 v{t3}, v0, 1, 2
    """)
    for d in range(4):
        a(f"v_cmp_eq_u32 vcc, {d}, v{t3}\ns_nop 1\nv_cndmask_b32 v{NTD+d}, 0, v{t2}, vcc")
    a(f"""
    v_lshlrev_b32 v{NTD+4}, 16, v{r.PS}
    v_and_b32 v{NTD+5}, 0xffff0000, v{r.PS}
    v_lshlrev_b32 v{NTD+6}, 16, v{r.PS+1}
    v_and_b32 v{t3}, 7, v0
    v_lshlrev_b32 v{NTD+7}, 3, v{t3}
    v_lshlrev_b32 v{POSR+3}, 16, v{POSR+3}
    v_mul_f32 v{POSR+3}, 0x{f2u(-LN2):08x}, v{POSR+3}
    v_lshlrev_b32 v{t3}, 2, v{r.lane}
    v_add_u32 v{t3}, {L_WX}, v{t3}
    s_cmp_lg_u32 s{S_V}, 4
    s_cbranch_scc1 L_nowx
    ds_write_b32 v{t3}, v{POSR+3}
    L_nowx:
    s_cmp_ge_u32 s{S_V}, 4
    s_cbranch_scc1 L_nont
    ds_write_b128 v{V32}, {v(NTD,4)}
    ds_write_b128 v{V32}, {v(NTD+4,4)} offset:16
    L_nont:
    """)
    for t in range(2):
        x = Q5 + 4 * t; B = r.BW + 4 * t
        a(f"""
        v_lshlrev_b32 v{UP}, 16, v{x}
        v_and_b32 v{UP+1}, 0xffff0000, v{x}
        v_lshlrev_b32 v{UP+2}, 16, v{x+1}
        v_and_b32 v{UP+3}, 0xffff0000, v{x+1}
        v_lshlrev_b32 v{UP+4}, 16, v{x+2}
        v_pk_mul_f32 {v(UP,2)}, {v(UP,2)}, {s(S_C,2)}
        v_pk_mul_f32 {v(UP+2,2)}, {v(UP+2,2)}, {s(S_C,2)}
        v_mul_f32 v{UP+4}, s{S_C}, v{UP+4}
        v_cvt_pk_bf16_f32 v{B}, v{UP}, v{UP+1}
        v_cvt_pk_bf16_f32 v{B+1}, v{UP+2}, v{UP+3}
        v_cvt_pk_bf16_f32 v{UP+5}, v{UP+4}, v{UP+4}
        v_lshlrev_b32 v{UP+5}, 16, v{UP+5}
        v_sub_f32 v{UP+5}, v{UP+4}, v{UP+5}
        v_cvt_pk_bf16_f32 v{B+2}, v{UP+4}, v{UP+5}
        v_mov_b32 v{B+3}, 0
        """)
    a(f"v_lshrrev_b32 v{t2}, 3, v{e_}\nv_sub_u32 v{t2}, v{t2}, v{hh_}")
    for st in range(2):
        a(f"v_cmp_eq_u32 vcc, {2*st}, v{t2}\ns_nop 1")
        for d in range(4): a(f"v_cndmask_b32 v{ID+4*st+d}, 0, v{NTD+d}, vcc")
    stamp(a, r, 6)
    a(f"""
    s_lshl_b32 s3, s2, 10
    s_mov_b32 s{S_TMP}, 0x01010101
    s_waitcnt vmcnt(0) lgkmcnt(0)
    s_cmp_lg_u32 s{S_V}, 0
    s_cbranch_scc1 L_chkd
    L_chk:
    v_cmp_ne_u32 vcc, s{S_TMP}, v{DBGV}
    s_cbranch_vccz L_chkd
    s_sub_u32 s{S_BUD}, s{S_BUD}, 1
    s_cbranch_scc1 L_chkd
    s_sleep 8
    buffer_load_dword v{DBGV}, v{DBGV+1}, {s(T_DBG,4)}, 0 offen sc1
    s_waitcnt vmcnt(0)
    s_branch L_chk
    L_chkd:
    s_barrier
    s_cmp_lg_u32 s{S_V}, 0
    s_cbranch_scc1 L_nopub
    buffer_store_dwordx4 {v(TEV,4)}, v{L16}, {s(SR_TAB,4)}, s3 offen {opt.pub}
    L_nopub:
    s_mov_b32 s{S_TMP}, s{S_B4}
    """)
    stamp(a, r, 7)
    def REC(q): return r.D0 + 4 * q
    TABV = r.M; ADR = r.T
    for rr in range(8):
        a(f"buffer_load_dword v{TABV+rr}, v{TA}, {s(SR_TAB,4)}, s{S_TMP} offen {opt.hl}")
        if rr < 7: a(f"s_add_u32 s{S_TMP}, s{S_TMP}, 32768")
    for k in range(4): a(mfma(AD, r.H+4*k, W1F+4*k, AD if k else None))
    a("s_nop 3")
    a(f"""
    s_lshl_b32 s{S_TMP}, s{S_RT}, 12
    s_lshl_b32 s{S_TMP2}, s{S_T}, 9
    s_add_u32 s{S_TMP}, s{S_TMP}, s{S_TMP2}
    s_add_u32 s{S_TMP}, s{S_TMP}, {L_AT}
    v_lshlrev_b32 v{t2}, 4, v{e_}
    v_lshl_add_u32 v{t2}, v{hh_}, 3, v{t2}
    v_add_u32 v{t2}, s{S_TMP}, v{t2}
    s_nop 0
    """)
    for g in range(4):
        x = AD + 4 * g
        if g == 1: a(f"s_cmp_eq_u32 s{S_RT}, 3\ns_cbranch_scc1 L_at_done")
        a(f"""
        v_pk_mul_f32 {v(x,2)}, {v(x,2)}, {s(S_C,2)}
        v_pk_mul_f32 {v(x+2,2)}, {v(x+2,2)}, {s(S_C,2)}
        v_cvt_pk_bf16_f32 v{x}, v{x}, v{x+1}
        v_cvt_pk_bf16_f32 v{x+1}, v{x+2}, v{x+3}
        ds_write_b64 v{t2}, {v(x,2)} offset:{g*1024}
        """)
    a.label("L_at_done")
    a(f"v_mov_b32 v{r.XM+3}, 0")
    for j in range(8):
        if j < 7: a(f"v_lshlrev_b32 v{r.HU+2*j}, 16, v{r.HR+j}\nv_and_b32 v{r.HU+2*j+1}, 0xffff0000, v{r.HR+j}")
        else: a(f"v_lshlrev_b32 v{r.HU+2*j}, 16, v{r.HR+j}\nv_and_b32 v{r.HU+2*j+1}, 0xffff0000, v{r.HR+j}")
    for i in range(2, 8, 2): a(f"v_mov_b64 {v(r.S+i,2)}, 0")
    a(f"""
    v_add_u32 v{r.EH}, {L_WH1 - L_ACC}, v{LPT}
    s_mul_i32 s{S_TMP}, s{S_RT}, {32*ACC_ROW}
    s_add_u32 s{S_TMP}, s{S_TMP}, {L_ACC}
    v_mul_u32_u24 v{t2}, {ACC_ROW}, v{e_}
    v_lshl_add_u32 v{t2}, v{hh_}, 5, v{t2}
    v_add_u32 v{r.EM}, s{S_TMP}, v{t2}
    v_min_u32 v{t3}, 311, v0
    v_mul_u32_u24 v{t4}, 171, v{t3}
    v_lshrrev_b32 v{t4}, 9, v{t4}
    v_mul_u32_u24 v{t5}, 3, v{t4}
    v_sub_u32 v{t5}, v{t3}, v{t5}
    v_lshlrev_b32 v{t5}, 2, v{t5}
    v_lshl_add_u32 v{r.EK}, v{t4}, 5, v{t5}
    v_mul_u32_u24 v{r.EP}, {ACC_ROW}, v{t4}
    v_add_u32 v{r.EP}, v{r.EP}, v{t5}
    v_add_u32 v{r.EP}, {L_ACC+256}, v{r.EP}
    s_lshl_b32 s{S_TMP}, s{S_V}, 12
    s_add_u32 s{S_TMP}, s{S_TMP}, {L_RING}
    v_mul_u32_u24 v{t2}, 80, v{e_}
    v_lshl_add_u32 v{t2}, v{hh_}, 3, v{t2}
    v_add_u32 v{r.EW}, s{S_TMP}, v{t2}
    v_lshrrev_b32 v{t3}, 2, v{r.lane}
    v_and_b32 v{t4}, 3, v{r.lane}
    v_lshlrev_b32 v{t4}, 4, v{t4}
    v_lshl_add_u32 v{t5}, v{t3}, 7, v{t4}
    v_mul_u32_u24 v{t3}, 80, v{t3}
    v_add3_u32 v{r.ER}, v{t3}, v{t4}, s{S_TMP}
    s_lshl_b32 s{S_TMP}, s{S_RT}, 12
    s_lshl_b32 s{S_TMP2}, s{S_T}, 6
    s_add_u32 s{S_TMP}, s{S_TMP}, s{S_TMP2}
    v_add_u32 v{r.EG}, s{S_TMP}, v{t5}
    v_lshlrev_b32 v{r.TE}, 1, v0
    v_lshrrev_b32 v{t3}, 4, v{r.lane}
    v_mul_u32_u24 v{t3}, {ACC_ROW}, v{t3}
    v_and_b32 v{t4}, 15, v{r.lane}
    v_lshl_add_u32 v{r.EX}, v{t4}, 4, v{t3}
    """)
    for rr in range(8):
        a(f"""
        s_waitcnt vmcnt({7 + rr})
        L_w{rr}:
        v_cmp_le_i32 vcc, 0, v{TABV+rr}
        s_cbranch_vccz L_g{rr}
        s_sub_u32 s{S_BUD}, s{S_BUD}, 1
        s_cbranch_scc1 L_g{rr}
        s_sleep {opt.slp}
        """)
        for r2 in range(rr, 8):
            a(f"s_add_u32 s{S_TMP}, s{S_B4}, {r2*32768}\nbuffer_load_dword v{TABV+r2}, v{TA}, {s(SR_TAB,4)}, s{S_TMP} offen {opt.hl}")
        a(f"""
        s_waitcnt vmcnt(0)
        s_branch L_w{rr}
        L_g{rr}:
        v_cmp_lt_u32_sdwa {s(S_M+2*rr,2)}, v{JJ}, v{TABV+rr} src0_sel:DWORD src1_sel:WORD_1
        v_cmp_lt_u32_sdwa {s(S_M+16+2*rr,2)}, v{J16}, v{TABV+rr} src0_sel:DWORD src1_sel:WORD_1
        v_max_u32 v{MX}, v{MX}, v{TABV+rr}
        v_add_u32_sdwa v{ADR+rr}, v{LB}, v{TABV+rr} {SDWA} src1_sel:WORD_0
        s_mov_b32 s{S_TMP}, {rr*32*REC_STRIDE}
        s_mov_b64 exec, {s(S_M+2*rr,2)}
        buffer_load_dwordx3 {v(REC(rr),3)}, v{ADR+rr}, {s(SR_REC,4)}, s{S_TMP} offen {opt.rl}
        s_mov_b64 exec, {s(S_M+16+2*rr,2)}
        buffer_load_dwordx3 {v(REC(8+rr),3)}, v{ADR+rr}, {s(SR_REC,4)}, s{S_TMP} offen offset:192 {opt.rl}
        s_mov_b64 exec, -1
        """)
    stamp(a, r, 8)
    def u_reads():
        for k in range(4):
            a(f"ds_read_b64_tr_b16 {v(r.T+4*k,2)}, v{r.EH} offset:{2048*k}\nds_read_b64_tr_b16 {v(r.T+4*k+2,2)}, v{r.EH} offset:{2048*k+512}")
    def u_gemm():
        for k in range(4): a(mfma(r.U, r.T+4*k, r.H+4*k, r.U if k else None))
    def u_scale():
        for i in range(0, 16, 2): a(f"v_pk_mul_f32 {v(r.U+i,2)}, {v(r.U+i,2)}, {s(S_C,2)}")
    def u_all():
        u_reads(); a("s_waitcnt lgkmcnt(0)"); u_gemm(); a("s_nop 7\ns_nop 3"); u_scale()
    stamp(a, r, 9)
    if opt.warm:
        a(f"""
        s_lshr_b32 s{S_TMP}, s2, 3
        s_lshl_b32 s{S_TMP}, s{S_TMP}, 3
        s_add_u32 s{S_TMP}, s{S_TMP}, s{S_V}
        s_mul_i32 s{S_TMP}, s{S_TMP}, {opt.warm*1024}
        s_add_u32 s{S_TMP}, s{S_TMP}, 3072
        v_lshlrev_b32 v{t2}, 4, v{r.lane}
        """)
        for k in range(opt.warm):
            if k and k % 4 == 0: a(f"s_add_u32 s{S_TMP}, s{S_TMP}, 4096")
            a(f"buffer_load_dwordx4 {v(r.H+12,4)}, v{t2}, {s(SR_HD,4)}, s{S_TMP} offen offset:{(k%4)*1024}")
    a(f"""
    v_cmp_lt_u32 vcc, 0x{((0x8000+33)<<16)-1:08x}, v{MX}
    s_and_saveexec_b64 {s(S_D,2)}, vcc
    v_mov_b32 v{t2}, {L_FLAG}
    ds_write_b32 v{t2}, v{ONE}
    s_mov_b64 exec, -1
    """)
    order = [x for rr in range(8) for x in (rr, 8 + rr)]
    a.label("L_rank")
    for n_, q in enumerate(order):
        if q < 8: a(f"s_waitcnt vmcnt({14 - n_})")
        else: a(f"s_cmp_eq_u64 {s(S_M+2*q,2)}, 0\ns_cbranch_scc1 L_rk{q}")
        a(f"""
        s_mov_b64 exec, {s(S_M+2*q,2)}
        v_lshlrev_b32_sdwa v{ADR+q}, 2, v{REC(q)+2} {SDWA} src1_sel:BYTE_0
        ds_add_rtn_u32 v{REC(q)+3}, v{ADR+q}, v{ONE} offset:{L_CNT}
        """)
        if q < 8 and opt.pf: a(f"buffer_load_ubyte v{r.V4}, v{REC(q)+2}, {s(SR_HD,4)}, s{S_SO0} offen")
        if q >= 8: a.label(f"L_rk{q}")
    a(f"""
    s_mov_b64 exec, -1
    v_lshlrev_b32 v{t2}, 3, v{r.lane}
    v_mov_b32 v{t3}, {L_FLAG}
    s_mov_b32 s{S_PADM}, {0 if opt.slide else 31}
    s_cmp_lg_u32 s{S_MODE}, 0
    s_cselect_b32 s{S_PADM}, 31, s{S_PADM}
    s_waitcnt lgkmcnt(0)
    s_barrier
    """)
    stamp(a, r, 10)
    CA = r.M; CB = r.M + 2; FL = r.M + 4; SS = r.M + 5; TT = r.M + 6; PADR = r.M + 7; O = r.M + 8; INC = r.M + 12; SP = r.M + 13; N1 = r.M + 14
    a(f"""
    ds_read_b64 {v(CA,2)}, v{t2} offset:{L_CNT}
    ds_read_b64 {v(CB,2)}, v{t2} offset:{L_CNT+512}
    ds_read_b32 v{FL}, v{t3}
    v_and_b32 v{t4}, 3, v{r.lane}
    v_cmp_eq_u32 {s(S_NB,2)}, 3, v{t4}
    """)
    a(f"s_cmp_lg_u32 s{S_MODE}, 0\ns_cbranch_scc1 L_noaz")
    a(f"""
    s_lshl_b32 s{S_TMP}, s{S_V}, 10
    s_add_u32 s{S_TMP2}, s{S_TMP}, 8192
    s_add_u32 m0, s{S_TMP}, {L_WH1}
    s_lshl_b32 s{S_TMP3}, s{S_V}, 12
    buffer_load_dwordx4 v{L16}, {s(SR_WH,4)}, s{S_TMP} offen lds
    s_add_u32 m0, s{S_TMP}, {L_WH2}
    s_nop 0
    buffer_load_dwordx4 v{L16}, {s(SR_WH,4)}, s{S_TMP2} offen lds
    s_add_u32 m0, s{S_TMP3}, {L_RING}
    """)
    if opt.pfb:
        a(f"""
        s_and_b32 s{S_TMP}, s2, 31
        s_lshl_b32 s{S_TMP}, s{S_TMP}, 3
        s_add_u32 s{S_TMP}, s{S_TMP}, s{S_V}
        s_mul_i32 s{S_TMP}, s{S_TMP}, {98*128}
        s_add_u32 s{S_TMP}, s{S_TMP}, 3072
        v_lshlrev_b32 v{t4}, 7, v{r.lane}
        buffer_load_dword v{r.PF}, v{t4}, {s(SR_HD,4)}, s{S_TMP} offen
        """)
        if opt.pfb > 1:
            a(f"""
            s_add_u32 s{S_TMP}, s{S_TMP}, 8192
            s_mov_b32 exec_hi, 3
            buffer_load_dword v{r.PF}, v{t4}, {s(SR_HD,4)}, s{S_TMP} offen
            s_mov_b64 exec, -1
            """)
    nonlocal_z[0] = r.S + 4
    zero_region(L_ACC, 112 * ACC_ROW)
    a("s_waitcnt lgkmcnt(4)\nL_azd:")
    a(f"""
    v_add_u32 v{N1}, v{CA}, v{CB}
    v_add3_u32 v{SS}, v{N1}, v{CA+1}, v{CB+1}
    v_readfirstlane_b32 s{S_TMP3}, v{FL}
    s_nop 0
    v_add_u32_dpp v{TT}, v{SS}, v{SS} quad_perm:[1,0,3,2] row_mask:0xf bank_mask:0xf
    s_nop 1
    v_add_u32_dpp v{TT}, v{TT}, v{TT} quad_perm:[2,3,0,1] row_mask:0xf bank_mask:0xf
    L_scan:
    v_sub_u32 v{PADR}, 0, v{TT}
    v_and_b32 v{PADR}, s{S_PADM}, v{PADR}
    v_cndmask_b32 v{PADR}, 0, v{PADR}, {s(S_NB,2)}
    v_add_u32 v{SP}, v{SS}, v{PADR}
    v_mov_b32 v{INC}, v{SP}
    """)
    a(wave_scan(INC))
    a(f"""
    s_nop 0
    v_readlane_b32 s{S_TMP}, v{INC}, 63
    v_sub_u32 v{O}, v{INC}, v{SP}
    s_cmp_lg_u32 s{S_PADM}, 0
    s_cbranch_scc1 L_scan_pad
    v_mov_b32_dpp v{PADR}, v{INC} quad_perm:[1,1,3,3] row_mask:0xf bank_mask:0xf
    v_add_u32 v{t4}, -1, v{O}
    v_xor_b32 v{t4}, v{t4}, v{PADR}
    v_cmp_gt_u32 vcc, 32, v{t4}
    v_cmp_gt_u32 {s(S_NBN,2)}, s{S_TMP}, v{PADR}
    s_and_b64 vcc, vcc, {s(S_NBN,2)}
    s_and_b32 vcc_lo, vcc_lo, 0x55555555
    s_and_b32 vcc_hi, vcc_hi, 0x55555555
    v_mov_b32 v{PADR}, s{S_TMP}
    s_cmp_eq_u64 vcc, 0
    s_cbranch_scc1 L_scan_done
    s_mov_b32 s{S_PADM}, 31
    s_branch L_scan
    L_scan_pad:
    v_mov_b32_dpp v{PADR}, v{O} quad_perm:[0,0,0,0] row_mask:0xf bank_mask:0xf
    v_add_u32 v{PADR}, v{PADR}, v{TT}
    v_mov_b64 {v(r.K4,2)}, 0
    v_mov_b64 {v(r.K4+2,2)}, 0
    v_lshlrev_b32 v{t3}, 4, v0
    ds_write_b128 v{t3}, {v(r.K4,4)} offset:{L_REC}
    ds_write_b128 v{t3}, {v(r.K4,4)} offset:{L_REC+8192}
    ds_write_b128 v{t3}, {v(r.K4,4)} offset:{L_REC+16384}
    ds_write_b128 v{t3}, {v(r.K4,4)} offset:{L_REC+24576}
    ds_write_b128 v{t3}, {v(r.K4,4)} offset:{L_REC+32768}
    ds_write_b128 v{t3}, {v(r.K4,4)} offset:{L_REC+40960}
    s_waitcnt lgkmcnt(0)
    s_barrier
    L_scan_done:
    v_lshrrev_b32 v{t3}, 1, v{r.lane}
    v_add_u32 v{t4}, s{S_TMP}, v{t3}
    v_mul_u32_u24 v{t4}, 12, v{t4}
    v_add_u32 v{t4}, {L_REC}, v{t4}
    v_add_u32 v{O+1}, v{O}, v{N1}
    v_add_u32 v{O+2}, v{O}, v{CA}
    v_add_u32 v{O+3}, v{O+1}, v{CA+1}
    ds_write_b64 v{t2}, {v(O,2)} offset:{L_OFF}
    ds_write_b64 v{t2}, {v(O+2,2)} offset:{L_OFF+512}
    v_and_b32 v{t3}, 60, v{r.lane}
    v_add_u32 v{t3}, {L_WEND}, v{t3}
    ds_write_b32 v{t3}, v{PADR}
    s_add_u32 s{S_TMP}, s{S_TMP}, 31
    s_lshr_b32 s{S_TMP}, s{S_TMP}, 5
    s_cmp_gt_u32 s{S_TMP}, {CAPT}
    s_cselect_b32 s{S_TMP3}, 1, s{S_TMP3}
    s_cmp_lg_u32 s{S_TMP3}, 0
    s_cbranch_scc1 L_slow
    ds_write2_b32 v{t4}, v{r.Zero}, v{r.Zero} offset0:0 offset1:1
    ds_write_b32 v{t4}, v{r.Zero} offset:8
    """)
    if opt.fine: stamp(a, r, 22)
    for q in order:
        if q >= 8: a(f"s_cmp_eq_u64 {s(S_M+2*q,2)}, 0\ns_cbranch_scc1 L_pa{q}")
        a(f"s_mov_b64 exec, {s(S_M+2*q,2)}\nds_read_b32 v{ADR+q}, v{ADR+q} offset:{L_OFF}")
        if q >= 8: a.label(f"L_pa{q}")
    a(f"""
    s_and_b32 s{S_T0}, s{S_V}, 3
    s_mul_i32 s{S_T0}, s{S_T0}, s{S_TMP}
    s_add_u32 s{S_NTL}, s{S_T0}, s{S_TMP}
    s_lshr_b32 s{S_T0}, s{S_T0}, 2
    s_lshr_b32 s{S_NTL}, s{S_NTL}, 2
    s_sub_u32 s{S_TMP}, s{S_NTL}, s{S_T0}
    s_mul_i32 s{S_TMP}, s{S_TMP}, {opt.split}
    s_add_u32 s{S_TMP}, s{S_TMP}, 32
    s_lshr_b32 s{S_TMP}, s{S_TMP}, 6
    s_add_u32 s{S_TMP}, s{S_TMP}, s{S_T0}
    s_and_b32 s{S_FI}, s{S_V}, 4
    s_cmp_eq_u32 s{S_TMP}, s{S_T0}
    s_cselect_b32 s{S_FI}, 0, s{S_FI}
    s_cmp_lt_u32 s{S_V}, 4
    s_cselect_b32 s{S_NTL}, s{S_TMP}, s{S_NTL}
    s_cselect_b32 s{S_T0}, s{S_T0}, s{S_TMP}
    s_sub_u32 s{S_NTL}, s{S_NTL}, s{S_T0}
    s_mov_b32 s{S_TMP2}, {L_REC}
    s_waitcnt lgkmcnt(0)
    """)
    if opt.fine: stamp(a, r, 23)
    for q in order:
        if q >= 8: a(f"s_cmp_eq_u64 {s(S_M+2*q,2)}, 0\ns_cbranch_scc1 L_pb{q}")
        a(f"""
        s_mov_b64 exec, {s(S_M+2*q,2)}
        v_add_u32 v{ADR+q}, v{ADR+q}, v{REC(q)+3}
        v_mad_u32_u24 v{ADR+q}, v{ADR+q}, 12, s{S_TMP2}
        ds_write_b32 v{ADR+q}, v{REC(q)+2} offset:8
        ds_write2_b32 v{ADR+q}, v{REC(q)}, v{REC(q)+1} offset0:0 offset1:1
        """)
        if q >= 8: a.label(f"L_pb{q}")
    a(f"""
    s_mov_b64 exec, -1
    """)
    if opt.fine: stamp(a, r, 24)
    a(f"""
    s_mul_i32 s{S_TMP}, s{S_T0}, 384
    s_add_u32 s{S_TMP}, s{S_TMP}, {L_REC}
    v_and_b32 v{t2}, 31, v{r.lane}
    v_mul_u32_u24 v{t2}, 12, v{t2}
    v_add_u32 v{r.A1a}, s{S_TMP}, v{t2}
    v_lshrrev_b32 v{t2}, 3, v{r.lane}
    v_mul_u32_u24 v{t2}, 48, v{t2}
    v_add_u32 v{r.A2a}, s{S_TMP}, v{t2}
    s_sub_u32 s{S_TMP}, s{S_T0}, 1
    v_add_u32 v{t3}, s{S_TMP}, v{r.lane}
    v_mul_u32_u24 v{t2}, 384, v{t3}
    s_waitcnt vmcnt({opt.pfb}) lgkmcnt(0)
    s_barrier
    """)
    stamp(a, r, 11)
    a(f"s_cmp_eq_u32 s{S_NTL}, 0\ns_cbranch_scc1 L_idle")
    wx_reads = [f"v_lshrrev_b32 v{t5}, 5, v{r.lane}", f"v_lshlrev_b32 v{t5}, 7, v{t5}", f"v_add_u32 v{t5}, {L_WX}, v{t5}"] + \
               [f"ds_read_b128 {v(r.W2+4*q,4)}, v{t5} offset:{16*q}" for q in range(8)]
    a(k_reads(r, 0))
    a(f"ds_read_u8 v{t4}, v{t2} offset:{L_REC+8}")
    a(ea_read(r, 0))
    a(acc_zero(r, False))
    for i in range(0, 8, 2): a(f"v_mov_b64 {v(r.M+8+i,2)}, 0\nv_mov_b64 {v(r.S+i,2)}, 0")
    a("s_waitcnt lgkmcnt(2)")
    a(dma_addr(r) + dma_issue(r))
    a(f"""
    v_lshrrev_b32 v{r.PI}, 7, v{r.K}
    v_lshlrev_b32_sdwa v{r.NA}, 5, v{r.K} {SDWA} src1_sel:BYTE_0
    buffer_load_dwordx2 {v(r.PS,2)}, v{r.PI}, {s(SR_P4,4)}, 0 idxen
    """)
    a(pd_read(r) + k_reads(r, 1))
    a(f"""
    s_waitcnt lgkmcnt(5)
    v_and_b32 v{t4}, 0x7f, v{t4}
    v_lshrrev_b32 v{t5}, 3, v{t4}
    v_lshlrev_b32 v{t5}, 2, v{t5}
    v_add_u32 v{t5}, {L_WEND}, v{t5}
    ds_read_b32 v{t5}, v{t5}
    v_lshlrev_b32 v{t3}, 5, v{t3}
    s_waitcnt lgkmcnt(0)
    v_sub_u32 v{t5}, v{t5}, v{t3}
    v_min_u32 v{t5}, 32, v{t5}
    v_mad_u32_u24 v{t2}, v{t5}, 12, v{t2}
    ds_read_u8 v{t2}, v{t2} offset:{L_REC-4}
    v_lshl_or_b32 v{t4}, v{t5}, 16, v{t4}
    s_waitcnt lgkmcnt(0)
    v_and_b32 v{t2}, 0x7f, v{t2}
    v_lshl_or_b32 v{r.Desc}, v{t2}, 8, v{t4}
    s_nop 0
    v_readlane_b32 s{S_D}, v{r.Desc}, 1
    v_readlane_b32 s{S_ZP}, v{r.Desc}, 0
    s_nop 1
    s_and_b32 s{S_NB}, s{S_D}, 0x7c
    s_mov_b32 s{S_NBP}, s{S_NB}
    s_lshr_b32 s{S_CNT}, s{S_D}, 16
    s_bfe_u32 s{S_ZP}, s{S_ZP}, 0x80008
    s_cmp_eq_u32 s{S_T0}, 0
    s_cselect_b32 s{S_ZP}, -1, s{S_ZP}
    """)
    a(aw_reads(r, S_NB))
    a(wx_reads)
    a(f"s_cmp_lg_u32 s{S_MODE}, 0\ns_cbranch_scc1 L_nou")
    u_all()
    a("L_nou:\ns_waitcnt vmcnt(1)")
    a(h_reads(r))
    a("s_waitcnt lgkmcnt(0)")
    a(dma_addr(r) + dma_issue(r))
    a("s_waitcnt vmcnt(4)")
    a(geometry(r, False))
    for k in range(2): a(mfma(r.D0, r.H+4*k, ID+4*k, r.D0 if k else None))
    a("s_waitcnt lgkmcnt(0)")
    a(mfma(r.D0, r.XM, r.BW, r.D0))
    a(f"s_mov_b32 s{S_I}, 2\ns_add_u32 s{S_NTL}, s{S_NTL}, 1")
    if opt.prio: a(f"s_cmp_ge_u32 s{S_V}, 4\ns_cbranch_scc1 L_np\ns_setprio 1\nL_np:")
    a("s_nop 7\ns_nop 1")
    stamp(a, r, 12); stamp(a, r, 28, True)
    a(".p2align 6")
    a.label("L_loop")
    pre = k_reads(r, 2) + pd_read(r) + [f"v_readlane_b32 s{S_D}, v{r.Desc}, s{S_I}"] + s_set(r)
    PE = [int(x) for x in opt.mfe.split(",")]; PR = [int(x) for x in opt.mfr.split(",")]
    mf_exp = {PE[k]: mfma(r.D1, r.H+8+4*k, ID+4*k, r.D1 if k else None) for k in range(2)}
    mf_rcp = {PR[0]: mfma(r.D1, r.XM, r.BW+4, r.D1), PR[1]: mfma(r.A1, r.M+8, r.S, r.A1), PR[2]: mfma(r.A1, r.M+12, r.S+4, r.A1)}
    ins_exp = {7: [f"s_bfe_u32 s{S_TMP}, s{S_D}, 0x80008", f"s_add_u32 s{S_TMP2}, s{S_NB}, 8", f"s_and_b32 s{S_TMP3}, s{S_D}, 0x7c",
                   f"s_cmp_ge_u32 s{S_TMP}, s{S_TMP2}", f"s_cselect_b32 s{S_NBN}, s{S_TMP3}, s{S_NB}"],
               opt.hpos: ["s_waitcnt vmcnt(1)"] + h_reads(r)}
    ins_rcp = {2: ["s_waitcnt lgkmcnt(4)"] + dma_addr(r),
               4: ["s_waitcnt lgkmcnt(0)"] + dma_issue(r),
               6: ea_read(r, 1) + [f"s_cmp_eq_u32 s{S_NBN}, s{S_NB}", "s_cbranch_scc1 L_noaw"] + aw_reads(r, S_NBN) + ["L_noaw:"],
               PR[2]+1: s_reads(r)}
    silu_stage(a, r, r.D0, r.M, mf_exp, mf_rcp, ins_exp, ins_rcp, pre)
    a(f"s_cmp_eq_u32 s{S_NB}, s{S_NBP}\ns_cbranch_scc1 L_noflush")
    if "flush" in opt.abl: a("s_branch L_noflush")
    a(retire_mask(r))
    a(f"s_cmp_lg_u32 s{S_MODE}, 0\ns_cbranch_scc1 L_flush_slow")
    a(flush_plain(r))
    a.label("L_noflush")
    pre = [f"s_mov_b32 s{S_NBP}, s{S_NB}", f"s_mov_b32 s{S_NB}, s{S_NBN}", f"s_lshr_b32 s{S_CNT}, s{S_D}, 16",
           "s_waitcnt vmcnt(4)"] + geometry(r, True)
    mf_exp = {PE[k]: mfma(r.D0, r.H+4*k, ID+4*k, r.D0 if k else None) for k in range(2)}
    mf_rcp = {PR[0]: mfma(r.D0, r.XM, r.BW, r.D0), PR[1]: mfma(r.A0, r.M, r.S, r.A0), PR[2]: mfma(r.A0, r.M+4, r.S+4, r.A0)}
    silu_stage(a, r, r.D1, r.M+8, mf_exp, mf_rcp, {15: ["s_waitcnt lgkmcnt(0)"]}, {}, pre)
    a(f"""
    s_sub_u32 s{S_TMP}, s{S_I}, 1
    s_add_u32 s{S_I}, s{S_I}, 1
    s_cmp_le_u32 s{S_I}, s{S_NTL}
    s_cbranch_scc1 L_loop
    v_readlane_b32 s{S_D}, v{r.Desc}, s{S_TMP}
    """)
    stamp(a, r, 13); stamp(a, r, 29, True)
    a(mfma(r.A1, r.M+8, r.S, r.A1)); a(mfma(r.A1, r.M+12, r.S+4, r.A1))
    if opt.prio: a("s_setprio 0")
    S_RML = S_TMP3; S_GL = S_NBN
    a(f"""
    s_mov_b32 s{S_RM}, 0xffff
    s_bitcmp1_b32 s{S_NBP}, 2
    s_cselect_b32 s{S_RM}, 0xffff0000, s{S_RM}
    s_bfe_u32 s{S_GL}, s{S_D}, 0x6000a
    s_lshr_b32 s{S_TMP2}, s{S_NBP}, 2
    s_cmp_lg_u32 s{S_GL}, s{S_TMP2}
    s_cselect_b32 s{S_RM}, -1, s{S_RM}
    s_mov_b32 s{S_RML}, 0xffff
    s_bitcmp1_b32 s{S_GL}, 0
    s_cselect_b32 s{S_RML}, 0xffff0000, s{S_RML}
    s_cselect_b32 s{S_CNT}, {4*ACC_ROW}, 0
    """)
    a(flush_addr(r))
    WH2 = r.W2; HU = r.HU
    def epi_prep_a(): pass
    def epi_prep_b():
        for k in range(4):
            a(f"ds_read_b64_tr_b16 {v(WH2+4*k,2)}, v{r.EH} offset:{8192+2048*k}\nds_read_b64_tr_b16 {v(WH2+4*k+2,2)}, v{r.EH} offset:{8192+2048*k+512}")
    def epi_prep(): epi_prep_a(); epi_prep_b()
    a(f"""
    s_cmp_lg_u32 s{S_MODE}, 0
    s_cbranch_scc1 L_final_slow
    s_lshl_b32 s{S_TMP}, s{S_V}, 11
    s_add_u32 s{S_TMP}, s{S_TMP}, {L_SIMG}
    v_add_u32 v{r.K}, s{S_TMP}, v{r.EX}
    s_sub_u32 s{S_TMP}, s{S_TMP}, {L_ACC}
    s_sub_u32 s{S_TMP}, s{S_TMP}, s{S_CNT}
    s_mov_b32 exec_lo, s{S_RML}
    s_mov_b32 exec_hi, s{S_RML}
    v_add_u32 v{t2}, s{S_TMP}, v{r.FlM}
    """)
    a(EX3)
    a([f"ds_write_b128 v{t2}, {v(r.A0+4*q,4)} offset:{32*q}" for q in range(8)])
    a(f"s_mov_b64 exec, -1\nds_read_b128 {v(r.PD,4)}, v{r.K}")
    epi_prep_a()
    a(flush_dot(r))
    epi_prep_b()
    a(f"""
    s_andn2_b32 s{S_TMP}, s{S_RM}, s{S_RML}
    s_and_b32 exec_lo, s{S_TMP}, 0x77777777
    s_mov_b32 exec_hi, 0
    ds_write_b32 v{t3}, v{t4}
    s_mov_b64 exec, -1
    s_mov_b32 s{S_RM}, s{S_RML}
    s_mul_i32 s{S_TMP}, s{S_GL}, {4*ACC_ROW}
    s_add_u32 s{S_TMP}, s{S_TMP}, {L_ACC}
    v_add_u32 v{t2}, s{S_TMP}, v{r.EX}
    s_ashr_i32 s{S_ZP}, s{S_ZP}, 2
    s_cmp_lg_u32 s{S_ZP}, s{S_GL}
    s_cbranch_scc1 L_main_end
    s_add_u32 s{S_TMP}, s{S_FI}, {L_FLAG+8}
    v_mov_b32 v{r.K}, s{S_TMP}
    v_mov_b32 v{r.PI}, 1
    ds_write_b32 v{r.K}, v{r.PI}
    L_main_end:
    """)
    stamp(a, r, 14)
    rmw_rd = [f"ds_read_b128 {v(r.D0,4)}, v{t2}", EXP, f"ds_read_b32 v{t5}, v{t3}", "s_mov_b64 exec, -1"]
    rmw_wr = ["s_waitcnt lgkmcnt(1)",
              f"v_pk_add_f32 {v(r.D0,2)}, {v(r.D0,2)}, {v(r.PD,2)}", f"v_pk_add_f32 {v(r.D0+2,2)}, {v(r.D0+2,2)}, {v(r.PD+2,2)}",
              f"ds_write_b128 v{t2}, {v(r.D0,4)}", EXP, "s_waitcnt lgkmcnt(1)", f"v_add_f32 v{t4}, v{t4}, v{t5}",
              f"ds_write_b32 v{t3}, v{t4}", "s_mov_b64 exec, -1"]
    a(f"v_mov_b32 v{r.K}, {L_FLAG+8}\ns_waitcnt vmcnt(0) lgkmcnt(0)\ns_barrier\nds_read_b64 {v(r.PS,2)}, v{r.K}")
    a(rmw_rd)
    a(f"""
    s_waitcnt lgkmcnt(2)
    v_readfirstlane_b32 s{S_TMP}, v{r.PS}
    v_readfirstlane_b32 s{S_TMP2}, v{r.PS+1}
    s_nop 3
    s_or_b32 s{S_D}, s{S_TMP}, s{S_TMP2}
    s_cbranch_scc1 L_merge_rare
    L_merge:
    s_cmp_eq_u32 s{S_NTL}, 0
    s_cbranch_scc1 L_epi
    """)
    a(rmw_wr)
    a.label("L_epi")
    if opt.stamp: a(f"s_sub_u32 s{S_ST}, s{S_NTL}, 1\ns_max_i32 s{S_ST}, s{S_ST}, 0\nv_writelane_b32 v{r.ST}, s{S_ST}, 30")
    MR = r.D0
    a(f"""
    s_mov_b32 s{S_D}, 0x{f2u(-LN2):08x}
    s_mov_b32 s{S_D+1}, 0x{f2u(-LN2):08x}
    ds_read_b32 v{r.K}, v{r.EK} offset:16
    s_waitcnt lgkmcnt(0)
    s_barrier
    """)
    stamp(a, r, 15)
    for k in range(4):
        a(f"ds_read_b128 {v(MR+8*k,4)}, v{r.EM} offset:{64*k}\nds_read_b128 {v(MR+8*k+4,4)}, v{r.EM} offset:{64*k+16}")
    a(f"ds_read_b32 v{r.PI}, v{r.EP}")
    for k in range(4):
        a(f"s_waitcnt lgkmcnt({7-2*k})")
        for j in range(4):
            a(f"v_cvt_pk_bf16_f32 v{r.H+4*k+j}, v{MR+8*k+2*j}, v{MR+8*k+2*j+1}")
        if k: a(mfma(r.U, WH2+4*(k-1), r.H+4*(k-1), r.U))
    a(f"""
    s_waitcnt lgkmcnt(0)
    v_add_f32 v{r.K}, v{r.K}, v{r.PI}
    {mfma(r.U, WH2+12, r.H+12, r.U)}
    v_cvt_pk_bf16_f32 v{r.K}, v{r.K}, v{r.K}
    buffer_store_short v{r.K}, v{r.TE}, {s(SR_OUTP,4)}, 0 offen {opt.ost}
    s_nop 9
    """)
    T = r.T; U = r.U
    for i in range(16): a(f"v_exp_f32 v{T+i}, v{U+i}")
    for i in range(0, 16, 2): a(f"v_pk_add_f32 {v(T+i,2)}, {v(T+i,2)}, {s(S_ONE,2)}")
    for i in range(0, 16, 2): a(f"v_pk_mul_f32 {v(U+i,2)}, {v(U+i,2)}, {s(S_D,2)}")
    for i in range(16): a(f"v_rcp_f32 v{T+i}, v{T+i}")
    for g in range(4):
        for i in (4*g, 4*g+2): a(f"v_pk_fma_f32 {v(T+i,2)}, {v(T+i,2)}, {v(U+i,2)}, {v(HU+i,2)}")
        for i in (4*g, 4*g+2): a(f"v_cvt_pk_bf16_f32 v{r.M+i//2}, v{T+i}, v{T+i+1}")
        a(f"ds_write_b64 v{r.EW}, {v(r.M+2*g,2)} offset:{16*g}")
    a(f"""
    """)
    if opt.thr:
        a(f"""
        s_memrealtime s[4:5]
        s_waitcnt lgkmcnt(0)
        s_sub_u32 s4, s4, s{S_ST}
        s_cmp_gt_u32 s4, {opt.thr}
        s_cselect_b32 s4, 0x10000, 0
        v_add_u32 v{r.EG}, s4, v{r.EG}
        """)
    a(f"""
    ds_read_b128 {v(r.H,4)}, v{r.ER}
    ds_read_b128 {v(r.H+4,4)}, v{r.ER} offset:1280
    s_waitcnt lgkmcnt(1)
    buffer_store_dwordx4 {v(r.H,4)}, v{r.EG}, {s(SR_OUT,4)}, 0 offen {opt.ost}
    s_waitcnt lgkmcnt(0)
    buffer_store_dwordx4 {v(r.H+4,4)}, v{r.EG}, {s(SR_OUT,4)}, 0 offen offset:2048 {opt.ost}
    """)
    if opt.stamp:
        stamp(a, r, 16); a("s_waitcnt vmcnt(0)"); stamp(a, r, 17); stamp(a, r, 31, True)
        a(f"""
        s_lshl_b32 s{S_ST}, s2, 4
        s_add_u32 s{S_ST}, s{S_ST}, s{S_V}
        s_lshl_b32 s{S_ST}, s{S_ST}, 8
        s_add_u32 s{S_ST}, s{S_ST}, {WS_STAMP}
        s_add_u32 s{S_ST}, s{P_WS}, s{S_ST}
        s_addc_u32 s{S_ST+1}, s{P_WS+1}, 0
        v_lshlrev_b32 v{t2}, 2, v{r.lane}
        global_store_dword v{t2}, v{r.ST}, {s(S_ST,2)}
        """)
    if opt.diag:
        a("s_waitcnt vmcnt(0)"); stamp(a, r, 31)
        a(f"""
        v_lshlrev_b32 v{t2}, 2, v{r.lane}
        s_mov_b64 exec, 0xffff
        global_atomic_umax v{t2}, v{r.ST}, {s(P_DBG,2)}
        """)
    a("L_done:\ns_endpgm")
    a("L_noaz:\ns_waitcnt lgkmcnt(0)\ns_branch L_azd")
    a(f"L_idle:\ns_cmp_lg_u32 s{S_MODE}, 0\ns_cbranch_scc1 L_slow_next")
    u_all()
    epi_prep()
    a("s_branch L_main_end")
    a(f"""
    L_merge_rare:
    s_cmp_lg_u32 s{S_TMP}, 0
    s_cbranch_scc1 L_final_atomic
    s_cmp_ge_u32 s{S_V}, 4
    s_cbranch_scc1 L_merge_young
    s_cmp_eq_u32 s{S_NTL}, 0
    s_cbranch_scc1 L_merge_old_done
    """)
    a(rmw_wr)
    a("L_merge_old_done:\ns_waitcnt lgkmcnt(0)\ns_barrier\ns_branch L_epi\nL_merge_young:\ns_waitcnt lgkmcnt(0)\ns_barrier")
    a(rmw_rd)
    a(f"s_branch L_merge\nL_final_atomic:\ns_cmp_eq_u32 s{S_NTL}, 0\ns_cbranch_scc1 L_epi")
    a([f"ds_add_f32 v{t2}, v{r.PD+i} offset:{4*i}" for i in range(4)])
    a([EXP, f"ds_add_f32 v{t3}, v{t4}", "s_mov_b64 exec, -1", "s_branch L_epi"])
    a.label("L_final_slow")
    a("s_waitcnt vmcnt(0) lgkmcnt(0)"); a(flush_dot(r))
    a(flush_atomic(r)); a("s_branch L_slow_next")
    a.label("L_flush_slow")
    a(flush_addr(r)); a("s_waitcnt lgkmcnt(0)"); a(flush_dot(r)); a(flush_atomic(r)); a(acc_zero(r, True))
    a("s_branch L_noflush")
    a(f"""
    L_slow:
    s_mov_b32 s{S_MODE}, 1
    s_mov_b32 s{S_SEG}, 0
    s_waitcnt vmcnt(0) lgkmcnt(0)
    s_barrier
    """)
    u_all()
    a(f"""
    L_slow_round:
    s_waitcnt lgkmcnt(0)
    s_barrier
    v_lshlrev_b32 v{t2}, 2, v0
    v_cmp_gt_u32 vcc, 256, v0
    s_and_saveexec_b64 {s(S_D,2)}, vcc
    ds_write_b32 v{t2}, v{r.Zero} offset:{L_CNT}
    s_mov_b64 exec, -1
    v_mov_b32 v{t2}, {L_FLAG}
    ds_write_b32 v{t2}, v{r.Zero}
    s_lshl_b32 s{S_TMP}, s{S_SEG}, 10
    s_add_u32 s{S_TMP}, s{S_TMP}, s{S_B4}
    buffer_load_dword v{t3}, v{r.Zero}, {s(SR_TAB,4)}, s{S_TMP} offen {opt.hl}
    s_mul_i32 s{S_TMP}, s{S_SEG}, {REC_STRIDE}
    v_mul_u32_u24 v{t5}, 12, v0
    s_waitcnt vmcnt(0)
    v_bfe_u32 v{t4}, v{t3}, 16, 15
    v_and_b32 v{t3}, 0xffff, v{t3}
    v_add_u32 v{t3}, v{t3}, v{t5}
    v_mov_b32 v{t2}, v0
    """)
    for q in range(7):
        a(f"""
        v_cmp_lt_u32 {s(S_M+2*q,2)}, v{t2}, v{t4}
        s_mov_b64 exec, {s(S_M+2*q,2)}
        buffer_load_dwordx3 {v(REC(q),3)}, v{t3}, {s(SR_REC,4)}, s{S_TMP} offen {opt.hl}
        s_mov_b64 exec, -1
        v_add_u32 v{t2}, 512, v{t2}
        s_add_u32 s{S_TMP}, s{S_TMP}, {512*12}
        """)
    for q in range(7, 16): a(f"s_mov_b64 {s(S_M+2*q,2)}, 0")
    a(f"""
    v_mov_b32 v{ONE}, 1
    s_waitcnt vmcnt(0) lgkmcnt(0)
    s_barrier
    s_branch L_rank
    L_slow_next:
    s_add_u32 s{S_SEG}, s{S_SEG}, 1
    s_cmp_lt_u32 s{S_SEG}, {NB}
    s_cbranch_scc1 L_slow_round
    """)
    epi_prep()
    a("s_branch L_epi")
    return a.text(), r.n

def build():
    body, nv = gen()
    hdr = open("gather_scatter__cheap_equivariant_egnn__graph.s.ref").read().split("; Override")[0]
    acc = (nv + 3) // 4 * 4
    return hdr + f"""; @launch grid=({NB},1,1) block=(512,1,1) lds={LDS_BYTES}
.amdgcn_target "amdgcn-amd-amdhsa--gfx950"
.text
.globl {KNAME}
.p2align 8
.type {KNAME},@function
""" + body + f""".section .rodata,"a"
.p2align 6
.amdhsa_kernel {KNAME}
  .amdhsa_next_free_vgpr {nv}
  .amdhsa_next_free_sgpr 102
  .amdhsa_accum_offset {acc}
  .amdhsa_group_segment_fixed_size 0
  .amdhsa_kernarg_size 88
  .amdhsa_user_sgpr_count 2
  .amdhsa_user_sgpr_kernarg_segment_ptr 1
  .amdhsa_system_sgpr_workgroup_id_x 1
  .amdhsa_float_denorm_mode_32 3
.end_amdhsa_kernel
"""

if __name__ == "__main__":
    for arg in sys.argv[2:]:
        k, val = arg.split("=")
        cur = getattr(opt, k)
        setattr(opt, k, (val not in ("0", "False")) if isinstance(cur, bool) else type(cur)(val.replace("_", " ").replace("none", "")))
    open(sys.argv[1], "w").write(build())
    print("lds", LDS_BYTES, "vgprs", alloc().n)
```

```python
import sys, struct

N = 25000; E = 800000; NB = 256; BN = 98; CH = 3136
REC_STRIDE = CH * 12
WS_TAB = NB * REC_STRIDE
WS_P4 = WS_TAB + NB * 1024
WS_B = 11010048
WS_STAMP = 64 << 20
OUT_POS = N * 128
KNAME = "gather_scatter__cheap_equivariant_egnn__graph_kernel"

def f2u(x): return struct.unpack("<I", struct.pack("<f", x))[0]
LOG2E = 1.4426950408889634
LN2 = 0.6931471805599453

class Opt:
    split = 44
    prio = 1
    ld = "nt"
    st = "sc1"
    hl = "sc1"
    ost = ""
    slide = True
    late = 1
    pf = 0
    warm = 0
    abl = ""
    stamp = False
    pfb = 0
    pub = "sc1"
    rl = "sc1"
    slp = 2
    fine = False
    thr = 0
    tw = 0
    mfe = "2,8"
    hpos = 12
    mfr = "0,5,10"
    padd = 1
    pmul = 1
    ilv = 0
    spread = 0
    tprio = 0
    diag = False
opt = Opt()

class Asm:
    def __init__(self): self.L = []
    def __call__(self, s):
        if isinstance(s, (list, tuple)):
            for x in s: self(x)
            return
        for x in s.strip("\n").split("\n"):
            x = x.strip()
            if not x: continue
            self.L.append(x if x.endswith(":") else "    " + x)
    def label(self, n): self.L.append(n + ":")
    def text(self): return "\n".join(self.L) + "\n"

def v(i, n=1): return f"v{i}" if n == 1 else f"v[{i}:{i+n-1}]"
def s(i, n=1): return f"s{i}" if n == 1 else f"s[{i}:{i+n-1}]"
def srd(d, p, size, off=None):
    if off is None: b = f"s_mov_b32 s{d}, s{p}\ns_mov_b32 s{d+1}, s{p+1}\n"
    else: b = f"s_add_u32 s{d}, s{p}, {off}\ns_addc_u32 s{d+1}, s{p+1}, 0\n"
    return b + f"s_mov_b32 s{d+2}, {size}\ns_mov_b32 s{d+3}, 0x00020000"
def wave_scan(r):
    o = []
    for sh in (1, 2, 4, 8):
        o.append(f"s_nop 1\nv_add_u32_dpp v{r}, v{r}, v{r} row_shr:{sh} row_mask:0xf bank_mask:0xf bound_ctrl:0")
    o.append(f"s_nop 1\nv_add_u32_dpp v{r}, v{r}, v{r} row_bcast:15 row_mask:0xa bank_mask:0xf")
    o.append(f"s_nop 1\nv_add_u32_dpp v{r}, v{r}, v{r} row_bcast:31 row_mask:0xc bank_mask:0xf")
    return o
def mfma(d, a_, b_, c=None):
    cc = "0" if c is None else v(c, 16)
    return f"v_mfma_f32_32x32x16_bf16 {v(d,16)}, {v(a_,4)}, {v(b_,4)}, {cc}"
SDWA = "dst_sel:DWORD dst_unused:UNUSED_PAD src0_sel:DWORD"

CAPT = 112
L_NT = 0
L_CNT = 8192
L_OFF = L_CNT + 1024
L_REC = L_OFF + 1024
L_RING = L_REC + CAPT * 384
L_SIMG = L_RING + 8 * 4096
L_AT = L_SIMG + 8 * 2048
L_ACC = L_AT + 13 * 1024
ACC_ROW = 272
L_WX = L_ACC + 112 * ACC_ROW
L_FLAG = L_WX + 256
L_WEND = L_FLAG + 16
L_WH1 = L_WEND + 64 + 48
L_WH2 = L_WH1 + 8192
L_HIST = L_WH1
L_OFFA = L_HIST + 1024
LDS_BYTES = L_WH2 + 8192
L_STG = L_REC
L_HST = L_RING + 8192
L_W2S = L_RING + 24576
L_WE = L_ACC + 8192
assert L_STG + CH * 16 <= L_HST and L_WE + 17408 <= L_WX and L_SIMG % 64 == 0 and LDS_BYTES <= 163840
assert L_HIST % 16 == 0 and L_ACC % 16 == 0

class R: pass
def alloc():
    r = R(); n = [1]
    def al(cnt, align=1):
        n[0] = (n[0] + align - 1) // align * align
        x = n[0]; n[0] += cnt; return x
    r.lane = al(1); r.t2 = al(1); r.t3 = al(1)
    r.D0 = al(16, 4); r.D1 = al(16); r.A0 = al(16); r.A1 = al(16)
    r.W2 = al(40); r.BW = al(8); r.H = al(16)
    r.XM = al(4); r.S = al(8); r.K4 = al(4)
    r.M = al(16); r.T = al(16); r.U = al(16); r.HU = al(16); r.HR = r.HU + 8
    r.PD = al(4); r.PS = al(2); r.PQ = al(2); r.HA = al(4); r.XK = al(4)
    for nm in "A1a A2a SB TR0 TR1 AWl Desc Zero FlM FlP ML K PI NA SA t4 t5 TE EM EK EP EW ER EG EH EX".split():
        setattr(r, nm, al(1))
    r.ST = al(1) if (opt.stamp or opt.diag) else None
    r.t0, r.t1, r.V4, r.V8, r.V16, r.L16, r.DM, r.WXa = [r.W2 + 10 + k for k in range(6)] + [r.W2 + 8, r.W2 + 9]
    r.n = n[0]
    return r

P_H, P_POS, P_EA, P_SRC, P_DST, P_WE, P_WX, P_WH, P_OUT, P_DBG, P_WS = range(4, 26, 2)
SR_HD = 28; SR_P4 = 32; SR_REC = 36; SR_TAB = 40; SR_OUT = 44; SR_OUTP = 48
S_V = 52; S_RT = 53; S_T = 54; S_B4 = 55; S_MODE = 56; S_SEG = 57
S_C = 58; S_ONE = 60; S_D = 62; S_TMP = 63; S_TMP2 = 64; S_T0 = 65; S_NTL = 66; S_I = 67; S_CNT = 68; S_TMP3 = 69
S_M = 70
S_NL = 4; S_NH = 5; S_MSK = 6; S_SO0 = 7; S_SO1 = 8; S_SO2 = 9
S_NB = 10; S_NBP = 11; S_NBN = 12; S_ZP = 13; S_RM = 14; S_PADM = 15; S_HI = 16
S_FI = 18; SR_WH = 20; S_ST = 26
TS = [72 + 4 * k for k in range(7)] + [SR_OUTP]

DIAG = {0: 0, 3: 1, 4: 2, 7: 3, 10: 4, 12: 5, 13: 6, 31: 7}
def stamp(a, r, i, real=False):
    if opt.diag:
        if i in DIAG: a(f"s_waitcnt lgkmcnt(0)\ns_memrealtime {s(S_ST,2)}\ns_waitcnt lgkmcnt(0)\nv_writelane_b32 v{r.ST}, s{S_ST}, {DIAG[i]}\ns_not_b32 s{S_ST}, s{S_ST}\nv_writelane_b32 v{r.ST}, s{S_ST}, {DIAG[i]+8}")
        return
    if not opt.stamp: return
    a(f"s_waitcnt lgkmcnt(0)\n{'s_memrealtime' if real else 's_memtime'} {s(S_ST,2)}\ns_waitcnt lgkmcnt(0)\nv_writelane_b32 v{r.ST}, s{S_ST}, {i}")

def silu_stage(a0, r, D, Mo, mf_exp, mf_rcp, ins_exp, ins_rcp, pre=()):
    T = r.T
    def a(x, core=False):
        for y in ([x] if isinstance(x, str) else x):
            for z in y.split("\n"):
                z = z.strip()
                if "vmem" in opt.abl and (z.startswith("buffer_") or "vmcnt" in z): continue
                if "lds" in opt.abl and (z.startswith("ds_") or "lgkmcnt" in z): continue
                if "mfma" in opt.abl and z.startswith("v_mfma"): continue
                if "g2" in opt.abl and z.startswith("v_mfma") and (f"v[{r.A0}:" in z or f"v[{r.A1}:" in z): continue
                if "hm" in opt.abl and z.startswith("v_mfma") and any(f", v[{r.H+4*k}:" in z for k in (1, 2, 3)): continue
                if "trans" in opt.abl and (z.startswith("v_exp") or z.startswith("v_rcp")): z = z.replace("v_exp_f32", "v_mov_b32").replace("v_rcp_f32", "v_mov_b32"); a0(z)
                if "misc" in opt.abl and z.startswith("v_") and not core and not z.startswith("v_readlane"): continue
                a0(z)
    pre = list(pre)
    if opt.spread:
        keep = []; grp = None
        for x in pre:
            if grp is not None:
                grp.append(x)
                if x == "s_mov_b64 exec, -1": keep.append("\n".join(grp)); grp = None
            elif " exec," in x: grp = [x]
            elif x.startswith("s_nop"): continue
            else: keep.append(x)
        pre_map = {}
        per = opt.spread
        for j, x in enumerate(keep): pre_map.setdefault(j // per, []).append(x)
    else:
        a(pre); pre_map = {}
    for i in range(16):
        if i in mf_exp: a(mf_exp[i], True)
        a(f"v_exp_f32 v{T+i}, v{D+i}", True)
        a(pre_map.get(i, ()))
        a(ins_exp.get(i, ()))
    if opt.tprio: a(f"s_setprio {opt.tprio}")
    for i in range(0, 16, 2):
        if opt.padd: a(f"v_pk_add_f32 {v(T+i,2)}, {v(T+i,2)}, {s(S_ONE,2)}", True)
        else: a(f"v_add_f32 v{T+i}, 1.0, v{T+i}\nv_add_f32 v{T+i+1}, 1.0, v{T+i+1}", True)
    if opt.tprio: a(f"s_setprio 0")
    for i in range(16):
        if i in mf_rcp: a(mf_rcp[i], True)
        a(f"v_rcp_f32 v{T+i}, v{T+i}", True)
        a(ins_rcp.get(i, ()))
    def mul(i):
        if opt.pmul: a(f"v_pk_mul_f32 {v(T+i,2)}, {v(T+i,2)}, {v(D+i,2)}", True)
        else: a(f"v_mul_f32 v{T+i}, v{T+i}, v{D+i}\nv_mul_f32 v{T+i+1}, v{T+i+1}, v{D+i+1}", True)
    def cvt(i): a(f"v_cvt_pk_bf16_f32 v{Mo+i//2}, v{T+i}, v{T+i+1}", True)
    if opt.tprio: a(f"s_setprio {opt.tprio}")
    if opt.ilv:
        for i in range(0, 16, 2):
            mul(i)
            if i: cvt(i - 2)
        cvt(14)
    else:
        for i in range(0, 16, 2): mul(i)
        if opt.tprio: a(f"s_setprio 0")
        for i in range(0, 16, 2): cvt(i)

def geometry(r, advance):
    o = [
        f"v_dot2_f32_bf16 v{r.t2}, v{r.PS}, s{S_NL}, v{r.PD}",
        f"v_dot2_f32_bf16 v{r.t3}, v{r.PS}, s{S_NH}, v{r.PD+1}",
        f"v_dot2_f32_bf16 v{r.t4}, v{r.PS+1}, s{S_NL}, v{r.PD+2}",
        f"v_xor_b32 v{r.SA}, v{r.SB}, v{r.PD+3}",
        f"v_lshrrev_b32 v{r.PI}, 7, v{r.K}",
        f"buffer_load_dwordx2 {v(r.PS,2)}, v{r.PI}, {s(SR_P4,4)}, 0 idxen",
        f"v_cvt_pk_bf16_f32 v{r.PQ}, v{r.t2}, v{r.t3}",
        f"v_cvt_pk_bf16_f32 v{r.t5}, v{r.t4}, 0",
        f"v_cvt_pk_bf16_f32 v{r.PQ+1}, v{r.t4}, 1.0",
        f"v_dot2_f32_bf16 v{r.t2}, v{r.PQ}, v{r.PQ}, 0",
        f"v_dot2_f32_bf16 v{r.t2}, v{r.t5}, v{r.t5}, v{r.t2}",
    ]
    if advance:
        o += [f"v_add_u32 v{r.A1a}, 384, v{r.A1a}", f"v_add_u32 v{r.A2a}, 384, v{r.A2a}", "s_nop 0"]
    else:
        o += ["s_nop 2"]
    o += [
        f"v_cvt_pk_bf16_f32 v{r.XM+2}, v{r.t2}, v{r.t2}",
        f"s_mov_b64 exec, {s(S_HI,2)}",
        f"ds_read_b128 {v(r.XM,4)}, v{r.NA}",
        "s_mov_b64 exec, -1",
        f"v_lshlrev_b32_sdwa v{r.NA}, 5, v{r.K} {SDWA} src1_sel:BYTE_0",
    ]
    return o
def k_reads(r, tile_off):
    o = tile_off * 384 + 8
    return [f"ds_read_b32 v{r.K}, v{r.A1a} offset:{o}",
            f"ds_read2_b32 {v(r.K4,2)}, v{r.A2a} offset0:{o//4} offset1:{o//4+3}",
            f"ds_read2_b32 {v(r.K4+2,2)}, v{r.A2a} offset0:{o//4+6} offset1:{o//4+9}"]
def pd_read(r): return [f"ds_read_b128 {v(r.PD,4)}, v{r.NA} offset:16"]
def dma_addr(r): return [f"v_and_or_b32 v{r.K4+k}, v{r.K4+k}, s{S_MSK}, v{r.XK+k}" for k in range(4)]
def dma_issue(r):
    so = [f"s{S_SO0}", f"s{S_SO1}", f"s{S_SO2}", "0"]
    return [f"buffer_load_dwordx4 v{r.K4+k}, {s(SR_HD,4)}, {so[k]} offen offset:{1024*k} lds" for k in range(4)]
def h_reads(r): return [f"ds_read_b128 {v(r.H+4*k,4)}, v{r.HA+k}" for k in range(4)]
def ea_read(r, tile_off):
    o = tile_off * 96
    return [f"ds_read2_b32 {v(r.XM,2)}, v{r.A1a} offset0:{o} offset1:{o+1}"]
def aw_reads(r, nb):
    return [f"s_add_u32 s{S_TMP}, s{nb}, 4",
            f"s_lshr_b32 s{S_TMP}, s{S_TMP}, 3",
            f"s_lshl_b32 s{S_TMP}, s{S_TMP}, 10",
            f"s_lshr_b32 s{S_TMP2}, s{nb}, 3",
            f"s_lshl_b32 s{S_TMP2}, s{S_TMP2}, 10",
            f"v_add_u32 v{r.t2}, s{S_TMP}, v{r.AWl}",
            f"v_add_u32 v{r.t3}, s{S_TMP2}, v{r.AWl}",
            f"s_mov_b64 exec, {s(S_HI,2)}",
            f"ds_read_b64 {v(r.BW,2)}, v{r.t2}",
            f"ds_read_b64 {v(r.BW+2,2)}, v{r.t3} offset:8",
            f"ds_read_b64 {v(r.BW+4,2)}, v{r.t2} offset:512",
            f"ds_read_b64 {v(r.BW+6,2)}, v{r.t3} offset:520",
            "s_mov_b64 exec, -1"]
def s_set(r):
    return [f"s_bfm_b64 exec, s{S_CNT}, 0", f"ds_write_b64 v{r.SA}, {v(r.PQ,2)}", "s_mov_b64 exec, -1"]
def s_reads(r):
    return [f"ds_read_b64_tr_b16 {v(r.S,2)}, v{r.TR0}",
            f"ds_read_b64_tr_b16 {v(r.S+2,2)}, v{r.TR1}",
            f"ds_read_b64_tr_b16 {v(r.S+4,2)}, v{r.TR0} offset:1024",
            f"ds_read_b64_tr_b16 {v(r.S+6,2)}, v{r.TR1} offset:1024",
            f"ds_write2_b32 v{r.SA}, v{r.Zero}, v{r.Zero} offset0:0 offset1:1"]

def flush_addr(r):
    return [f"s_lshr_b32 s{S_TMP}, s{S_NBP}, 3",
          f"s_mul_i32 s{S_TMP}, s{S_TMP}, {8*ACC_ROW}",
          f"s_bitcmp1_b32 s{S_NBP}, 2",
          f"s_cselect_b32 s{S_TMP2}, {8*ACC_ROW}, 0",
          f"v_and_b32 v{r.t3}, s{S_TMP2}, v{r.ML}",
          f"v_add3_u32 v{r.t2}, v{r.FlM}, v{r.t3}, s{S_TMP}",
          f"v_add3_u32 v{r.t3}, v{r.FlP}, v{r.t3}, s{S_TMP}"]
def flush_dot(r):
    W = r.W2
    o = [f"v_pk_mul_f32 {v(r.T,2)}, {v(W,2)}, {v(r.A0,2)}", f"v_pk_mul_f32 {v(r.T+2,2)}, {v(W+16,2)}, {v(r.A1,2)}"]
    for i in range(2, 16, 2):
        o.append(f"v_pk_fma_f32 {v(r.T,2)}, {v(W+i,2)}, {v(r.A0+i,2)}, {v(r.T,2)}")
        o.append(f"v_pk_fma_f32 {v(r.T+2,2)}, {v(W+16+i,2)}, {v(r.A1+i,2)}, {v(r.T+2,2)}")
    o += [f"v_pk_add_f32 {v(r.T,2)}, {v(r.T,2)}, {v(r.T+2,2)}",
          f"v_add_f32 v{r.t4}, v{r.T}, v{r.T+1}", f"v_add_f32 v{r.t5}, v{r.T}, v{r.T+1}", "s_nop 1",
          f"v_permlane32_swap_b32 v{r.t4}, v{r.t5}", "s_nop 1", f"v_add_f32 v{r.t4}, v{r.t4}, v{r.t5}"]
    return o
EX3 = f"s_and_b32 exec_lo, s{S_RM}, 0x88888888\ns_mov_b32 exec_hi, exec_lo"
EXP = f"s_and_b32 exec_lo, s{S_RM}, 0x77777777\ns_mov_b32 exec_hi, 0"
def acc_zero(r, masked):
    o = [f"s_mov_b32 exec_lo, s{S_RM}\ns_mov_b32 exec_hi, s{S_RM}"] if masked else []
    o += [f"v_mov_b64 {v(r.A0+i,2)}, 0" for i in range(0, 32, 2)]
    if masked: o.append("s_mov_b64 exec, -1")
    return o
def flush_plain(r):
    o = flush_addr(r) + [EX3]
    o += [f"ds_write_b128 v{r.t2}, {v(r.A0+4*q,4)} offset:{32*q}" for q in range(8)]
    o += ["s_mov_b64 exec, -1"] + flush_dot(r)
    o += [EXP, f"ds_write_b32 v{r.t3}, v{r.t4}"] + acc_zero(r, True)
    return o
def flush_atomic(r):
    o = [EX3]
    for t, A in ((0, r.A0), (1, r.A1)):
        for i in range(16):
            o.append(f"ds_add_f32 v{r.t2}, v{A+i} offset:{(32*t + 8*(i>>2) + (i&3))*4}")
    o += [EXP, f"ds_add_f32 v{r.t3}, v{r.t4}", "s_mov_b64 exec, -1"]
    return o
def rmw_reads(r):
    return [EX3] + [f"ds_read_b128 {v(r.D0+4*q,4)}, v{r.t2} offset:{32*q}" for q in range(8)] + \
           [EXP, f"ds_read_b32 v{r.t5}, v{r.t3}", "s_mov_b64 exec, -1"]
def rmw_writes(r):
    o = [EX3]
    for q in range(8):
        o += ["s_waitcnt lgkmcnt(8)",
              f"v_pk_add_f32 {v(r.D0+4*q,2)}, {v(r.D0+4*q,2)}, {v(r.A0+4*q,2)}",
              f"v_pk_add_f32 {v(r.D0+4*q+2,2)}, {v(r.D0+4*q+2,2)}, {v(r.A0+4*q+2,2)}",
              f"ds_write_b128 v{r.t2}, {v(r.D0+4*q,4)} offset:{32*q}"]
    o += [EXP, "s_waitcnt lgkmcnt(8)", f"v_add_f32 v{r.t4}, v{r.t4}, v{r.t5}", f"ds_write_b32 v{r.t3}, v{r.t4}", "s_mov_b64 exec, -1"]
    return o
def retire_mask(r):
    return [f"s_mov_b32 s{S_RM}, 0xffff",
            f"s_bitcmp1_b32 s{S_NBP}, 2",
            f"s_cselect_b32 s{S_RM}, 0xffff0000, s{S_RM}",
            f"s_add_u32 s{S_TMP}, s{S_NBP}, 4",
            f"s_cmp_eq_u32 s{S_TMP}, s{S_NB}",
            f"s_cselect_b32 s{S_RM}, s{S_RM}, -1"]

def gen():
    a = Asm(); r = alloc()
    t0, t1, t2, t3, t4, t5 = r.t0, r.t1, r.t2, r.t3, r.t4, r.t5
    T_DST, T_SRC, T_EA, T_POS, T_WE, T_WH, T_H, T_X = TS
    a.label(KNAME)
    DST = r.D0; SRC = r.D0 + 8; EA = r.D0 + 16; BINA = r.D0 + 32; RNK = r.D0 + 40
    V16, V32, L16 = r.V16, r.V8, r.L16
    POSR = r.PD
    S_CN = S_T0; S_O4 = S_NTL; S_O8 = S_CNT; S_N0 = S_SEG; S_NN = S_D; S_BUD = S_I
    MA = [80, 82, 84, 86]
    e_, hh_ = t0, t1
    a(f"""
    s_cmp_ge_u32 s2, {NB}
    s_cbranch_scc1 L_done
    """)
    if opt.thr: a(f"s_memrealtime {s(S_ST,2)}")
    a(f"""
    s_load_dwordx16 s[4:19], s[0:1], 0
    s_and_b32 s3, s2, 7
    s_lshl_b32 s3, s3, 5
    s_lshr_b32 s2, s2, 3
    s_or_b32 s2, s2, s3
    s_load_dwordx4 s[20:23], s[0:1], 64
    s_load_dwordx2 s[24:25], s[0:1], 80
    v_lshrrev_b32 v{t0}, 6, v0
    v_and_b32 v{r.lane}, 63, v0
    v_readfirstlane_b32 s{S_V}, v{t0}
    v_mov_b32 v{r.Zero}, 0
    v_lshlrev_b32 v{V16}, 4, v0
    v_lshlrev_b32 v{V32}, 5, v0
    v_lshlrev_b32 v{L16}, 4, v{r.lane}
    v_mov_b64 {v(r.T,2)}, 0
    v_mov_b64 {v(r.T+2,2)}, 0
    s_mul_i32 s{S_O4}, s2, {CH*4}
    s_lshl_b32 s{S_O8}, s{S_O4}, 1
    s_mov_b32 s{S_CN}, {CH}
    s_cmp_eq_u32 s2, {NB-1}
    s_cselect_b32 s{S_CN}, {E-(NB-1)*CH}, s{S_CN}
    s_lshl_b32 s3, s{S_CN}, 2
    s_add_u32 s3, s3, s{S_O4}
    s_lshl_b32 s{S_TMP3}, s3, 1
    s_add_u32 s{S_TMP}, s{S_O4}, 8192
    s_add_u32 s{S_TMP2}, s{S_O8}, 16384
    s_lshl_b32 s{S_MODE}, s2, 10
    s_mul_i32 s{S_N0}, s2, {BN}
    v_and_b32 v{t2}, 127, v0
    v_add_u32 v{t2}, s{S_N0}, v{t2}
    v_mul_u32_u24 v{t2}, 6, v{t2}
    v_and_b32 v{POSR+2}, 2, v{t2}
    v_lshlrev_b32 v{POSR+2}, 3, v{POSR+2}
    v_and_b32 v{t2}, -4, v{t2}
    v_and_b32 v{t4}, 3, v{r.lane}
    v_bfe_u32 v{t5}, v{r.lane}, 2, 3
    v_lshl_or_b32 v{t4}, v{t5}, 3, v{t4}
    v_lshrrev_b32 v{t5}, 5, v{r.lane}
    v_lshl_or_b32 v{t4}, v{t5}, 2, v{t4}
    v_lshlrev_b32 v{t4}, 1, v{t4}
    s_waitcnt lgkmcnt(0)
    """)
    if opt.tw:
        a(f"""
        s_cmp_lg_u32 s{S_V}, 7
        s_cbranch_scc1 L_notw
        v_min_u32 v{t2}, 6, v{r.lane}
        v_lshlrev_b32 v{t2}, 21, v{t2}
        v_mov_b32 v{t4}, {10300000 & ~127}
        v_cmp_eq_u32 vcc, 5, v{r.lane}
        s_mul_i32 s{S_D}, s2, {BN*128}
        s_nop 0
        v_cndmask_b32 v{t2}, v{t2}, v{t4}, vcc
        v_mov_b32 v{t4}, {14500000 & ~127}
        v_cmp_le_u32 vcc, 6, v{r.lane}
        v_and_b32 v{t5}, 1, v{r.lane}
        s_nop 0
        v_cndmask_b32 v{t2}, v{t2}, v{t4}, vcc
        global_load_dword v{r.DM}, v{t2}, {s(P_WS,2)} sc1
        v_mul_u32_u24 v{t2}, 3199872, v{t5}
        global_load_dword v{r.DM}, v{t2}, {s(P_H,2)}
        v_mov_b32 v{t4}, s{S_D}
        v_cmp_eq_u32 vcc, 0, v{t5}
        v_mov_b32 v{t2}, 3349888
        s_nop 0
        v_cndmask_b32 v{t2}, v{t2}, v{t4}, vcc
        global_load_dword v{r.DM}, v{t2}, {s(P_OUT,2)} sc1
        L_notw:
        """)
    a(srd(SR_TAB, P_WS, NB * 1024, WS_TAB))
    a(f"s_cmp_lg_u32 s{S_V}, 0\ns_cbranch_scc1 L_noclr\nbuffer_store_dwordx4 {v(r.T,4)}, v{L16}, {s(SR_TAB,4)}, s{S_MODE} offen {opt.st}\nL_noclr:")
    a(srd(T_POS, P_POS, N * 6)); a(srd(T_X, P_WX, 128))
    a(f"""
    s_cmp_gt_u32 s{S_V}, 4
    s_cbranch_scc1 L_nopos
    s_cmp_eq_u32 s{S_V}, 4
    s_cbranch_scc1 L_wx
    buffer_load_dwordx2 {v(POSR,2)}, v{t2}, {s(T_POS,4)}, 0 offen
    s_branch L_nopos
    L_wx:
    buffer_load_ushort v{POSR+3}, v{t4}, {s(T_X,4)}, 0 offen
    L_nopos:
    """)
    a(srd(T_DST, P_DST, "s3"))
    a(f"""
    v_lshlrev_b32 v{r.V4}, 3, v0
    s_add_u32 s{S_TMP2}, s{S_O4}, 4096
    buffer_load_dwordx2 {v(DST,2)}, v{r.V4}, {s(T_DST,4)}, s{S_O4} offen {opt.ld}
    buffer_load_dwordx2 {v(DST+2,2)}, v{r.V4}, {s(T_DST,4)}, s{S_TMP2} offen {opt.ld}
    s_add_u32 s{S_TMP2}, s{S_TMP}, 4096
    buffer_load_dwordx2 {v(DST+4,2)}, v{r.V4}, {s(T_DST,4)}, s{S_TMP} offen {opt.ld}
    buffer_load_dwordx2 {v(DST+6,2)}, v{r.V4}, {s(T_DST,4)}, s{S_TMP2} offen {opt.ld}
    """)
    a(srd(T_SRC, P_SRC, "s3")); a(srd(T_EA, P_EA, f"s{S_TMP3}"))
    if not opt.late:
        a(f"""
        buffer_load_dwordx2 {v(SRC+0,2)}, v{r.V4}, {s(T_SRC,4)}, s{S_O4} offen {opt.ld}
        buffer_load_dwordx4 {v(EA+0,4)}, v{V16}, {s(T_EA,4)}, s{S_O8} offen {opt.ld}
        s_add_u32 s{S_O4}, s{S_O4}, 4096
        s_add_u32 s{S_O8}, s{S_O8}, 8192
        buffer_load_dwordx2 {v(SRC+2,2)}, v{r.V4}, {s(T_SRC,4)}, s{S_O4} offen {opt.ld}
        buffer_load_dwordx4 {v(EA+4,4)}, v{V16}, {s(T_EA,4)}, s{S_O8} offen {opt.ld}
        s_add_u32 s{S_O4}, s{S_O4}, 4096
        s_add_u32 s{S_O8}, s{S_O8}, 8192
        buffer_load_dwordx2 {v(SRC+4,2)}, v{r.V4}, {s(T_SRC,4)}, s{S_O4} offen {opt.ld}
        buffer_load_dwordx4 {v(EA+8,4)}, v{V16}, {s(T_EA,4)}, s{S_O8} offen {opt.ld}
        s_add_u32 s{S_O4}, s{S_O4}, 4096
        s_add_u32 s{S_O8}, s{S_O8}, 8192
        buffer_load_dwordx2 {v(SRC+6,2)}, v{r.V4}, {s(T_SRC,4)}, s{S_O4} offen {opt.ld}
        buffer_load_dwordx4 {v(EA+12,4)}, v{V16}, {s(T_EA,4)}, s{S_O8} offen {opt.ld}
        """)
    if opt.stamp or opt.diag: a(f"v_mov_b32 v{r.ST}, 0")
    stamp(a, r, 0, True); stamp(a, r, 1)
    a(f"""
    v_add_u32 v{t3}, {L_HIST}, v{L16}
    ds_write_b128 v{t3}, {v(r.T,4)}
    s_lshl_b32 s{S_B4}, s2, 2
    s_lshr_b32 s{S_RT}, s{S_V}, 1
    s_and_b32 s{S_T}, s{S_V}, 1
    """)
    NY = 10
    a(f"""
    s_add_u32 s{SR_HD}, s{P_WS}, {WS_B-3072}
    s_addc_u32 s{SR_HD+1}, s{P_WS+1}, 0
    s_mov_b32 s{SR_HD+2}, {N*128+3072}
    s_mov_b32 s{SR_HD+3}, 0x00020000
    """)
    a(srd(SR_REC, P_WS, NB * REC_STRIDE)); a(srd(SR_P4, P_WS, N, WS_P4))
    a(f"""
    s_and_b32 s{SR_P4+1}, s{SR_P4+1}, 0xffff
    s_or_b32 s{SR_P4+1}, s{SR_P4+1}, 0x80000
    s_sub_u32 s{S_NN}, {N}, s{S_N0}
    s_min_u32 s{S_NN}, s{S_NN}, {BN}
    s_lshl_b32 s{S_TMP}, s{S_N0}, 7
    s_lshl_b32 s{S_TMP2}, s{S_NN}, 7
    """)
    a(srd(SR_OUT, P_OUT, f"s{S_TMP2}", f"s{S_TMP}"))
    a(f"s_mul_i32 s{S_TMP}, s{S_N0}, 6\ns_add_u32 s{S_TMP}, s{S_TMP}, {OUT_POS}\ns_mul_i32 s{S_TMP2}, s{S_NN}, 6")
    a(srd(SR_OUTP, P_OUT, f"s{S_TMP2}", f"s{S_TMP}"))
    T_RO = T_DST; T_DBG = T_SRC
    if opt.late:
        a(f"""
        buffer_load_dwordx2 {v(SRC+0,2)}, v{r.V4}, {s(T_SRC,4)}, s{S_O4} offen {opt.ld}
        buffer_load_dwordx4 {v(EA+0,4)}, v{V16}, {s(T_EA,4)}, s{S_O8} offen {opt.ld}
        s_add_u32 s{S_O4}, s{S_O4}, 4096
        s_add_u32 s{S_O8}, s{S_O8}, 8192
        buffer_load_dwordx2 {v(SRC+2,2)}, v{r.V4}, {s(T_SRC,4)}, s{S_O4} offen {opt.ld}
        buffer_load_dwordx4 {v(EA+4,4)}, v{V16}, {s(T_EA,4)}, s{S_O8} offen {opt.ld}
        s_add_u32 s{S_O4}, s{S_O4}, 4096
        s_add_u32 s{S_O8}, s{S_O8}, 8192
        buffer_load_dwordx2 {v(SRC+4,2)}, v{r.V4}, {s(T_SRC,4)}, s{S_O4} offen {opt.ld}
        buffer_load_dwordx4 {v(EA+8,4)}, v{V16}, {s(T_EA,4)}, s{S_O8} offen {opt.ld}
        s_add_u32 s{S_O4}, s{S_O4}, 4096
        s_add_u32 s{S_O8}, s{S_O8}, 8192
        buffer_load_dwordx2 {v(SRC+6,2)}, v{r.V4}, {s(T_SRC,4)}, s{S_O4} offen {opt.ld}
        buffer_load_dwordx4 {v(EA+12,4)}, v{V16}, {s(T_EA,4)}, s{S_O8} offen {opt.ld}
        """)
    a(f"s_mul_i32 s{S_TMP}, s2, {REC_STRIDE}\ns_mul_i32 s{S_TMP2}, s{S_CN}, 12")
    a(srd(T_RO, P_WS, f"s{S_TMP2}", f"s{S_TMP}")); a(srd(T_DBG, P_DBG, 256))
    ONE = r.PQ
    a(f"""
    v_mov_b32 v{ONE}, 1
    s_lshr_b32 s3, s{S_CN}, 1
    v_cmp_gt_u32 {s(MA[0],2)}, s3, v0
    v_add_u32 v{t2}, 512, v0
    v_cmp_gt_u32 {s(MA[1],2)}, s3, v{t2}
    v_add_u32 v{t2}, 1024, v0
    v_cmp_gt_u32 {s(MA[2],2)}, s3, v{t2}
    v_add_u32 v{t2}, 1536, v0
    v_cmp_gt_u32 {s(MA[3],2)}, s3, v{t2}
    """)
    a(f"""
    s_mov_b32 s{S_C}, 0x{f2u(-LOG2E):08x}
    s_mov_b32 s{S_C+1}, 0x{f2u(-LOG2E):08x}
    s_mov_b32 s{S_ONE}, 1.0
    s_mov_b32 s{S_ONE+1}, 1.0
    s_mov_b32 s{S_MODE}, 0
    s_mov_b32 s{S_BUD}, 0x40000
    """)
    nonlocal_z = [r.T]
    def zero_region(base, size):
        assert base % 16 == 0 and size % 16 == 0
        full = size // 8192; rem = size % 8192
        a(f"v_add_u32 v{t3}, {base}, v{V16}")
        for k in range(full):
            a(f"ds_write_b128 v{t3}, {v(nonlocal_z[0],4)} offset:{k*8192}")
        if rem:
            a(f"v_cmp_gt_u32 vcc, {rem//16}, v0\ns_and_saveexec_b64 {s(S_D,2)}, vcc")
            a(f"ds_write_b128 v{t3}, {v(nonlocal_z[0],4)} offset:{full*8192}\ns_mov_b64 exec, -1")
    a(f"""
    ds_write_b128 v{L16}, {v(nonlocal_z[0],4)} offset:{L_CNT}
    v_mov_b32 v{t3}, {L_FLAG}
    ds_write_b128 v{t3}, {v(nonlocal_z[0],4)}
    """)
    zero_region(L_SIMG, 8 * 2048)
    JJ = r.SA; LB = r.HA + 0; J16 = r.HA + 1
    a(f"""
    v_and_b32 v{e_}, 31, v{r.lane}
    v_lshrrev_b32 v{hh_}, 5, v{r.lane}
    s_lshl_b32 s{S_TMP}, s{S_V}, 12
    s_add_u32 s{S_TMP}, s{S_TMP}, {L_RING}
    s_mov_b32 m0, s{S_TMP}
    v_and_b32 v{t2}, 3, v{e_}
    v_lshlrev_b32 v{t3}, 10, v{t2}
    v_lshrrev_b32 v{t4}, 2, v{e_}
    v_lshl_add_u32 v{t3}, v{t4}, 7, v{t3}
    v_add_u32 v{t3}, s{S_TMP}, v{t3}
    v_bfe_u32 v{t4}, v{e_}, 3, 1
    v_lshl_or_b32 v{t2}, v{t4}, 2, v{t2}
    v_xor_b32 v{t2}, v{t2}, v{hh_}
    """)
    for k in range(4):
        a(f"v_xor_b32 v{t4}, {2*k}, v{t2}\nv_lshl_add_u32 v{r.HA+k}, v{t4}, 4, v{t3}")
    a(f"""
    v_and_b32 v{t2}, 7, v{r.lane}
    v_bfe_u32 v{t3}, v{r.lane}, 4, 1
    v_lshlrev_b32 v{t3}, 2, v{t3}
    v_xor_b32 v{t2}, v{t2}, v{t3}
    """)
    for k in range(4):
        a(f"v_xor_b32 v{t4}, {k}, v{t2}\nv_lshlrev_b32 v{r.XK+k}, 4, v{t4}")
    JJ = r.SA; LB = r.A1a; J16 = r.A2a; MX = r.NA; TA = r.Desc
    LP = r.K; LPT = r.PI
    a(f"""
    s_lshl_b32 s{S_TMP}, s{S_V}, 11
    s_add_u32 s{S_TMP}, s{S_TMP}, {L_SIMG}
    v_bfe_u32 v{t2}, v{e_}, 1, 3
    v_lshlrev_b32 v{t2}, 3, v{t2}
    v_lshl_add_u32 v{t2}, v{e_}, 6, v{t2}
    v_add_u32 v{r.SB}, s{S_TMP}, v{t2}
    v_bfe_u32 v{t2}, v{r.lane}, 2, 2
    v_lshl_add_u32 v{t2}, v{hh_}, 2, v{t2}
    v_bfe_u32 v{t3}, v{r.lane}, 4, 1
    v_and_b32 v{t4}, 3, v{r.lane}
    v_lshl_or_b32 v{t3}, v{t3}, 2, v{t4}
    v_lshlrev_b32 v{LP}, 3, v{t3}
    v_bfe_u32 v{t4}, v{r.lane}, 2, 2
    v_lshl_add_u32 v{LP}, v{t4}, 7, v{LP}
    v_lshrrev_b32 v{t4}, 1, v{t2}
    v_xor_b32 v{t3}, v{t3}, v{t4}
    v_lshlrev_b32 v{t2}, 6, v{t2}
    v_add_u32 v{t2}, s{S_TMP}, v{t2}
    v_lshl_add_u32 v{r.TR0}, v{t3}, 3, v{t2}
    v_xor_b32 v{t3}, 4, v{t3}
    v_lshl_add_u32 v{r.TR1}, v{t3}, 3, v{t2}
    v_add_u32 v{r.TR1}, 512, v{r.TR1}
    v_lshlrev_b32 v{t2}, 4, v{e_}
    v_add_u32 v{r.AWl}, {L_AT}, v{t2}
    v_lshrrev_b32 v{t2}, 2, v{e_}
    v_mul_u32_u24 v{t2}, {ACC_ROW}, v{t2}
    v_add_u32 v{t2}, {L_ACC}, v{t2}
    v_lshl_add_u32 v{r.FlM}, v{hh_}, 4, v{t2}
    v_and_b32 v{t3}, 3, v{e_}
    v_lshl_add_u32 v{r.FlP}, v{t3}, 2, v{t2}
    v_add_u32 v{r.FlP}, 256, v{r.FlP}
    v_bfe_u32 v{t2}, v{e_}, 4, 1
    v_add_u32 v{r.ML}, -1, v{t2}
    v_lshrrev_b32 v{t5}, 4, v0
    v_lshlrev_b32 v{TA}, 10, v{t5}
    v_and_b32 v{t2}, 15, v0
    v_add_u32 v{JJ}, 0x8000, v{t2}
    v_add_u32 v{J16}, 0x8010, v{t2}
    s_mov_b32 s{S_TMP}, {REC_STRIDE}
    v_mul_lo_u32 v{LB}, v{t5}, s{S_TMP}
    v_mad_u32_u24 v{LB}, v{t2}, 12, v{LB}
    v_mov_b32 v{MX}, 0
    v_lshrrev_b32 v{t2}, 3, v{r.lane}
    v_and_b32 v{t3}, 7, v{r.lane}
    v_lshrrev_b32 v{t4}, 4, v{r.lane}
    s_lshl_b32 s3, s{S_T}, 2
    v_or_b32 v{t4}, s3, v{t4}
    v_xor_b32 v{t3}, v{t3}, v{t4}
    v_lshlrev_b32 v{t3}, 4, v{t3}
    v_lshl_add_u32 v{r.HR}, v{t2}, 7, v{t3}
    """)
    a(f"s_add_u32 s3, s{S_N0}, 104\ns_min_u32 s3, s3, {N}\ns_lshl_b32 s3, s3, 7")
    a(srd(T_WE, P_WE, 133 * 128)); a(srd(SR_WH, P_WH, 128 * 128)); a(srd(T_H, P_H, "s3"))
    a(f"""
    s_mov_b32 s{S_TMP}, 5350
    s_mov_b32 s{S_TMP2}, {BN}
    s_mov_b32 s3, {L_HIST}
    s_waitcnt lgkmcnt(0)
    s_barrier
    s_cmp_lg_u32 s{S_V}, 0
    s_cbranch_scc1 L_noflag
    v_mov_b32 v{t3}, s2
    s_waitcnt vmcnt(13)
    s_mov_b64 exec, 1
    buffer_store_byte v{ONE}, v{t3}, {s(T_DBG,4)}, 0 offen sc1
    s_mov_b64 exec, -1
    L_noflag:
    """)
    stamp(a, r, 2)
    for half in range(4):
        a(f"s_waitcnt vmcnt({11 - half})\ns_mov_b64 exec, {s(MA[half],2)}")
        for k in range(2 * half, 2 * half + 2):
            a(f"""
            v_mul_u32_u24 v{BINA+k}, s{S_TMP}, v{DST+k}
            v_lshrrev_b32 v{BINA+k}, 19, v{BINA+k}
            v_mul_u32_u24 v{t2}, s{S_TMP2}, v{BINA+k}
            v_lshl_add_u32 v{BINA+k}, v{BINA+k}, 2, s3
            ds_add_rtn_u32 v{RNK+k}, v{BINA+k}, v{ONE}
            v_sub_u32 v{DST+k}, v{DST+k}, v{t2}
            """)
    C = r.T; TE = r.M
    a(f"""
    s_mov_b64 exec, -1
    v_add_u32 v{t2}, {L_HIST}, v{L16}
    s_waitcnt lgkmcnt(0)
    s_barrier
    """)
    stamp(a, r, 3)
    a(f"""
    ds_read_b128 {v(C,4)}, v{t2}
    s_lshl_b32 s{S_TMP}, s{S_V}, 10
    s_add_u32 s{S_TMP2}, s{S_TMP}, 8192
    s_cmp_lg_u32 s{S_V}, 1
    s_cbranch_scc1 L_nowe
    s_mov_b32 m0, {L_WE+16384}
    s_mov_b32 s3, 16384
    buffer_load_dwordx4 v{L16}, {s(T_WE,4)}, s3 offen lds
    L_nowe:
    s_add_u32 m0, s{S_TMP}, {L_WE}
    s_lshl_b32 s3, s{S_N0}, 7
    buffer_load_dwordx4 v{L16}, {s(T_WE,4)}, s{S_TMP} offen lds
    s_add_u32 m0, s{S_TMP}, {L_WE+8192}
    s_add_u32 s3, s3, s{S_TMP}
    buffer_load_dwordx4 v{L16}, {s(T_WE,4)}, s{S_TMP2} offen lds
    s_add_u32 m0, s{S_TMP}, {L_HST}
    s_add_u32 s{S_TMP3}, s3, 8192
    buffer_load_dwordx4 v{r.HR}, {s(T_H,4)}, s3 offen lds
    s_add_u32 m0, s{S_TMP}, {L_HST+8192}
    s_lshl_b32 s{S_TMP}, s{S_V}, 12
    buffer_load_dwordx4 v{r.HR}, {s(T_H,4)}, s{S_TMP3} offen lds
    s_add_u32 m0, s{S_TMP}, {L_RING}
    s_waitcnt lgkmcnt(0)
    v_add_u32 v{C+5}, v{C}, v{C+1}
    v_add_u32 v{C+6}, v{C+5}, v{C+2}
    v_add_u32 v{C+7}, v{C+6}, v{C+3}
    v_mov_b32 v{C+4}, v{C+7}
    """)
    a(wave_scan(C + 4))
    a(f"""
    v_sub_u32 v{C+8}, v{C+4}, v{C+7}
    v_add_u32 v{C+9}, v{C+8}, v{C}
    v_add_u32 v{C+10}, v{C+8}, v{C+5}
    v_add_u32 v{C+11}, v{C+8}, v{C+6}
    ds_write_b128 v{t2}, {v(C+8,4)} offset:1024
    """)
    for half in range(4):
        a(f"s_mov_b64 exec, {s(MA[half],2)}")
        for k in range(2 * half, 2 * half + 2):
            a(f"ds_read_b32 v{BINA+k}, v{BINA+k} offset:1024")
    TEV = r.A1 + 12
    a("s_mov_b64 exec, -1")
    for k in range(4):
        a(f"v_mul_u32_u24 v{TEV+k}, 12, v{C+8+k}\nv_lshl_or_b32 v{TEV+k}, v{C+k}, 16, v{TEV+k}\nv_or_b32 v{TEV+k}, 0x80000000, v{TEV+k}")
    if opt.fine: stamp(a, r, 18); stamp(a, r, 19)
    for half in range(4):
        a(f"s_waitcnt vmcnt({10 - 2*half}) lgkmcnt({6 + 2*half})\ns_mov_b64 exec, {s(MA[half],2)}")
        for k in range(2 * half, 2 * half + 2):
            a(f"""
            v_add_lshl_u32 v{BINA+k}, v{BINA+k}, v{RNK+k}, 4
            v_lshl_or_b32 v{SRC+k}, v{SRC+k}, 7, v{DST+k}
            ds_write_b64 v{BINA+k}, {v(EA+2*k,2)} offset:{L_STG}
            ds_write_b32 v{BINA+k}, v{SRC+k} offset:{L_STG+8}
            """)
    if opt.fine: stamp(a, r, 20)
    a("s_mov_b64 exec, -1")
    a(f"""
    s_mov_b32 s{S_NL}, 0x0000bf80
    s_mov_b32 s{S_NH}, 0xbf800000
    s_mov_b32 s{S_MSK}, 0xffffff80
    s_mov_b32 s{S_SO0}, 3072
    s_mov_b32 s{S_SO1}, 2048
    s_mov_b32 s{S_SO2}, 1024
    s_mov_b32 s{S_HI}, 0
    s_mov_b32 s{S_HI+1}, -1
    v_mul_u32_u24 v{t2}, 12, v0
    v_add_u32 v{t5}, {L_WE + 128*128}, v{LP}
    v_lshl_add_u32 v{LP}, v{hh_}, 10, v{LP}
    s_lshl_b32 s{S_TMP}, s{S_T}, 6
    s_add_u32 s{S_TMP}, s{S_TMP}, {L_ACC}
    v_add_u32 v{LPT}, s{S_TMP}, v{LP}
    s_lshl_b32 s{S_TMP2}, s{S_RT}, 11
    v_add_u32 v{t4}, s{S_TMP2}, v{LPT}
    """)
    if opt.fine: stamp(a, r, 21)
    a("s_waitcnt lgkmcnt(0)\ns_barrier")
    stamp(a, r, 4)
    CO = r.D0; DBGV = r.A1 + 8
    for k in range(7):
        a(f"ds_read_b96 {v(CO+4*k,3)}, v{V16} offset:{L_STG + k*8192}")
    for k in range(7):
        a(f"s_mov_b32 s3, {k*6144}\ns_waitcnt lgkmcnt({6-k})")
        a(f"buffer_store_dwordx3 {v(CO+4*k,3)}, v{t2}, {s(T_RO,4)}, s3 offen {opt.st}")
    a(f"v_lshlrev_b32 v{DBGV+1}, 2, v{r.lane}\ns_cmp_lg_u32 s{S_V}, 0\ns_cbranch_scc1 L_nodbg\nbuffer_load_dword v{DBGV}, v{DBGV+1}, {s(T_DBG,4)}, 0 offen sc1\nL_nodbg:")
    stamp(a, r, 5)
    UP = r.W2 + 2; Q5 = r.W2 + 16; NTD = r.W2 + 24; W1F = r.T; AD = r.XM; ID = r.W2 + 32
    HAD = r.U; W2F = r.M; BD = r.XM; BO = r.W2; T_BO = 80
    a(f"""
    s_lshl_b32 s{S_TMP}, s{S_RT}, 12
    s_add_u32 s{S_TMP}, s{S_TMP}, {L_HST}
    v_lshlrev_b32 v{t2}, 7, v{e_}
    v_add_u32 v{t2}, s{S_TMP}, v{t2}
    v_bfe_u32 v{t3}, v{e_}, 1, 3
    v_xor_b32 v{t4}, v{t3}, v{hh_}
    """)
    for k in range(4):
        a(f"v_xor_b32 v{HAD+k}, {2*k}, v{t4}\nv_lshl_add_u32 v{HAD+k}, v{HAD+k}, 4, v{t2}")
    a(f"s_lshl_b32 s{S_TMP}, s{S_T}, 2\nv_xor_b32 v{t4}, s{S_TMP}, v{t3}\nv_lshl_add_u32 v{t2}, v{hh_}, 3, v{t2}")
    for g in range(4):
        a(f"v_xor_b32 v{HAD+4+g}, {g}, v{t4}\nv_lshl_add_u32 v{HAD+4+g}, v{HAD+4+g}, 4, v{t2}")
    a(f"""
    s_mul_i32 s{S_TMP}, s{S_RT}, {32*144}
    s_lshl_b32 s{S_TMP2}, s{S_T}, 6
    s_add_u32 s{S_TMP}, s{S_TMP}, s{S_TMP2}
    v_mul_u32_u24 v{t2}, 144, v{e_}
    v_lshl_add_u32 v{t2}, v{hh_}, 3, v{t2}
    v_add_u32 v{HAD+8}, s{S_TMP}, v{t2}
    s_mul_i32 s{S_TMP}, s{S_V}, {16*144}
    v_lshrrev_b32 v{t2}, 3, v{r.lane}
    v_mul_u32_u24 v{t2}, 144, v{t2}
    v_and_b32 v{t3}, 7, v{r.lane}
    v_lshl_add_u32 v{t2}, v{t3}, 4, v{t2}
    v_add_u32 v{HAD+9}, s{S_TMP}, v{t2}
    s_lshl_b32 s{S_TMP}, s{S_N0}, 7
    s_add_u32 s{S_TMP}, s{S_TMP}, {WS_B}
    """)
    a(srd(T_BO, P_WS, f"s{SR_OUT+2}", f"s{S_TMP}"))
    a(f"s_lshl_b32 s3, s{S_V}, 11\ns_waitcnt vmcnt(7)\ns_barrier")
    for k in range(4):
        a(f"ds_read_b128 {v(r.H+4*k,4)}, v{HAD+k}")
        a(f"ds_read_b64_tr_b16 {v(W2F+4*k,2)}, v{LPT} offset:{16384+2048*k}\nds_read_b64_tr_b16 {v(W2F+4*k+2,2)}, v{LPT} offset:{16384+2048*k+512}")
    for k in range(4):
        a(f"s_waitcnt lgkmcnt({9-3*k})")
        a(mfma(BD, W2F+4*k, r.H+4*k, BD if k else None))
    for t in range(2):
        a(f"ds_read_b64_tr_b16 {v(Q5+4*t,2)}, v{t5} offset:{128+64*t}\nds_read_b64_tr_b16 {v(Q5+4*t+2,2)}, v{t5} offset:{64*t}")
    for g in range(4):
        a(f"ds_read_b64 {v(r.HR+2*g,2)}, v{HAD+4+g}")
    a("s_nop 3")
    for g in range(4):
        x = BD + 4 * g
        a(f"""
        v_pk_mul_f32 {v(x,2)}, {v(x,2)}, {s(S_C,2)}
        v_pk_mul_f32 {v(x+2,2)}, {v(x+2,2)}, {s(S_C,2)}
        v_cvt_pk_bf16_f32 v{x}, v{x}, v{x+1}
        v_cvt_pk_bf16_f32 v{x+1}, v{x+2}, v{x+3}
        ds_write_b64 v{HAD+8}, {v(x,2)} offset:{L_REC+16*g}
        """)
    a(f"""
    s_waitcnt lgkmcnt(0)
    s_barrier
    ds_read_b128 {v(BO,4)}, v{HAD+9} offset:{L_REC}
    ds_read_b128 {v(BO+4,4)}, v{HAD+9} offset:{L_REC+8*144}
    s_waitcnt lgkmcnt(1)
    buffer_store_dwordx4 {v(BO,4)}, v{L16}, {s(T_BO,4)}, s3 offen {opt.st}
    s_waitcnt lgkmcnt(0)
    buffer_store_dwordx4 {v(BO+4,4)}, v{L16}, {s(T_BO,4)}, s3 offen offset:1024 {opt.st}
    """)
    for k in range(4):
        a(f"ds_read_b64_tr_b16 {v(W1F+4*k,2)}, v{LPT} offset:{8192+2048*k}\nds_read_b64_tr_b16 {v(W1F+4*k+2,2)}, v{LPT} offset:{8192+2048*k+512}")
    a(f"""
    v_alignbit_b32 v{r.PS}, v{POSR+1}, v{POSR}, v{POSR+2}
    v_lshrrev_b32 v{r.PS+1}, v{POSR+2}, v{POSR+1}
    v_and_b32 v{r.PS+1}, 0xffff, v{r.PS+1}
    v_add_u32 v{t3}, s{S_N0}, v0
    v_cmp_gt_u32 vcc, {BN}, v0
    s_and_saveexec_b64 {s(S_D,2)}, vcc
    buffer_store_dwordx2 {v(r.PS,2)}, v{t3}, {s(SR_P4,4)}, 0 idxen {opt.st}
    s_mov_b64 exec, -1
    v_and_b32 v{t2}, 1, v0
    v_lshlrev_b32 v{t2}, 4, v{t2}
    v_mov_b32 v{t3}, 0x3f80
    v_lshlrev_b32 v{t2}, v{t2}, v{t3}
    v_bfe_u32 v{t3}, v0, 1, 2
    """)
    for d in range(4):
        a(f"v_cmp_eq_u32 vcc, {d}, v{t3}\ns_nop 1\nv_cndmask_b32 v{NTD+d}, 0, v{t2}, vcc")
    a(f"""
    v_lshlrev_b32 v{NTD+4}, 16, v{r.PS}
    v_and_b32 v{NTD+5}, 0xffff0000, v{r.PS}
    v_lshlrev_b32 v{NTD+6}, 16, v{r.PS+1}
    v_and_b32 v{t3}, 7, v0
    v_lshlrev_b32 v{NTD+7}, 3, v{t3}
    v_lshlrev_b32 v{POSR+3}, 16, v{POSR+3}
    v_mul_f32 v{POSR+3}, 0x{f2u(-LN2):08x}, v{POSR+3}
    v_lshlrev_b32 v{t3}, 2, v{r.lane}
    v_add_u32 v{t3}, {L_WX}, v{t3}
    s_cmp_lg_u32 s{S_V}, 4
    s_cbranch_scc1 L_nowx
    ds_write_b32 v{t3}, v{POSR+3}
    L_nowx:
    s_cmp_ge_u32 s{S_V}, 4
    s_cbranch_scc1 L_nont
    ds_write_b128 v{V32}, {v(NTD,4)}
    ds_write_b128 v{V32}, {v(NTD+4,4)} offset:16
    L_nont:
    """)
    for t in range(2):
        x = Q5 + 4 * t; B = r.BW + 4 * t
        a(f"""
        v_lshlrev_b32 v{UP}, 16, v{x}
        v_and_b32 v{UP+1}, 0xffff0000, v{x}
        v_lshlrev_b32 v{UP+2}, 16, v{x+1}
        v_and_b32 v{UP+3}, 0xffff0000, v{x+1}
        v_lshlrev_b32 v{UP+4}, 16, v{x+2}
        v_pk_mul_f32 {v(UP,2)}, {v(UP,2)}, {s(S_C,2)}
        v_pk_mul_f32 {v(UP+2,2)}, {v(UP+2,2)}, {s(S_C,2)}
        v_mul_f32 v{UP+4}, s{S_C}, v{UP+4}
        v_cvt_pk_bf16_f32 v{B}, v{UP}, v{UP+1}
        v_cvt_pk_bf16_f32 v{B+1}, v{UP+2}, v{UP+3}
        v_cvt_pk_bf16_f32 v{UP+5}, v{UP+4}, v{UP+4}
        v_lshlrev_b32 v{UP+5}, 16, v{UP+5}
        v_sub_f32 v{UP+5}, v{UP+4}, v{UP+5}
        v_cvt_pk_bf16_f32 v{B+2}, v{UP+4}, v{UP+5}
        v_mov_b32 v{B+3}, 0
        """)
    a(f"v_lshrrev_b32 v{t2}, 3, v{e_}\nv_sub_u32 v{t2}, v{t2}, v{hh_}")
    for st in range(2):
        a(f"v_cmp_eq_u32 vcc, {2*st}, v{t2}\ns_nop 1")
        for d in range(4): a(f"v_cndmask_b32 v{ID+4*st+d}, 0, v{NTD+d}, vcc")
    stamp(a, r, 6)
    a(f"""
    s_lshl_b32 s3, s2, 10
    s_mov_b32 s{S_TMP}, 0x01010101
    s_waitcnt vmcnt(0) lgkmcnt(0)
    s_cmp_lg_u32 s{S_V}, 0
    s_cbranch_scc1 L_chkd
    L_chk:
    v_cmp_ne_u32 vcc, s{S_TMP}, v{DBGV}
    s_cbranch_vccz L_chkd
    s_sub_u32 s{S_BUD}, s{S_BUD}, 1
    s_cbranch_scc1 L_chkd
    s_sleep 8
    buffer_load_dword v{DBGV}, v{DBGV+1}, {s(T_DBG,4)}, 0 offen sc1
    s_waitcnt vmcnt(0)
    s_branch L_chk
    L_chkd:
    s_barrier
    s_cmp_lg_u32 s{S_V}, 0
    s_cbranch_scc1 L_nopub
    buffer_store_dwordx4 {v(TEV,4)}, v{L16}, {s(SR_TAB,4)}, s3 offen {opt.pub}
    L_nopub:
    s_mov_b32 s{S_TMP}, s{S_B4}
    """)
    stamp(a, r, 7)
    def REC(q): return r.D0 + 4 * q
    TABV = r.M; ADR = r.T
    for rr in range(8):
        a(f"buffer_load_dword v{TABV+rr}, v{TA}, {s(SR_TAB,4)}, s{S_TMP} offen {opt.hl}")
        if rr < 7: a(f"s_add_u32 s{S_TMP}, s{S_TMP}, 32768")
    for k in range(4): a(mfma(AD, r.H+4*k, W1F+4*k, AD if k else None))
    a("s_nop 3")
    a(f"""
    s_lshl_b32 s{S_TMP}, s{S_RT}, 12
    s_lshl_b32 s{S_TMP2}, s{S_T}, 9
    s_add_u32 s{S_TMP}, s{S_TMP}, s{S_TMP2}
    s_add_u32 s{S_TMP}, s{S_TMP}, {L_AT}
    v_lshlrev_b32 v{t2}, 4, v{e_}
    v_lshl_add_u32 v{t2}, v{hh_}, 3, v{t2}
    v_add_u32 v{t2}, s{S_TMP}, v{t2}
    s_nop 0
    """)
    for g in range(4):
        x = AD + 4 * g
        if g == 1: a(f"s_cmp_eq_u32 s{S_RT}, 3\ns_cbranch_scc1 L_at_done")
        a(f"""
        v_pk_mul_f32 {v(x,2)}, {v(x,2)}, {s(S_C,2)}
        v_pk_mul_f32 {v(x+2,2)}, {v(x+2,2)}, {s(S_C,2)}
        v_cvt_pk_bf16_f32 v{x}, v{x}, v{x+1}
        v_cvt_pk_bf16_f32 v{x+1}, v{x+2}, v{x+3}
        ds_write_b64 v{t2}, {v(x,2)} offset:{g*1024}
        """)
    a.label("L_at_done")
    a(f"v_mov_b32 v{r.XM+3}, 0")
    for j in range(8):
        if j < 7: a(f"v_lshlrev_b32 v{r.HU+2*j}, 16, v{r.HR+j}\nv_and_b32 v{r.HU+2*j+1}, 0xffff0000, v{r.HR+j}")
        else: a(f"v_lshlrev_b32 v{r.HU+2*j}, 16, v{r.HR+j}\nv_and_b32 v{r.HU+2*j+1}, 0xffff0000, v{r.HR+j}")
    for i in range(2, 8, 2): a(f"v_mov_b64 {v(r.S+i,2)}, 0")
    a(f"""
    v_add_u32 v{r.EH}, {L_WH1 - L_ACC}, v{LPT}
    s_mul_i32 s{S_TMP}, s{S_RT}, {32*ACC_ROW}
    s_add_u32 s{S_TMP}, s{S_TMP}, {L_ACC}
    v_mul_u32_u24 v{t2}, {ACC_ROW}, v{e_}
    v_lshl_add_u32 v{t2}, v{hh_}, 5, v{t2}
    v_add_u32 v{r.EM}, s{S_TMP}, v{t2}
    v_min_u32 v{t3}, 311, v0
    v_mul_u32_u24 v{t4}, 171, v{t3}
    v_lshrrev_b32 v{t4}, 9, v{t4}
    v_mul_u32_u24 v{t5}, 3, v{t4}
    v_sub_u32 v{t5}, v{t3}, v{t5}
    v_lshlrev_b32 v{t5}, 2, v{t5}
    v_lshl_add_u32 v{r.EK}, v{t4}, 5, v{t5}
    v_mul_u32_u24 v{r.EP}, {ACC_ROW}, v{t4}
    v_add_u32 v{r.EP}, v{r.EP}, v{t5}
    v_add_u32 v{r.EP}, {L_ACC+256}, v{r.EP}
    s_lshl_b32 s{S_TMP}, s{S_V}, 12
    s_add_u32 s{S_TMP}, s{S_TMP}, {L_RING}
    v_mul_u32_u24 v{t2}, 80, v{e_}
    v_lshl_add_u32 v{t2}, v{hh_}, 3, v{t2}
    v_add_u32 v{r.EW}, s{S_TMP}, v{t2}
    v_lshrrev_b32 v{t3}, 2, v{r.lane}
    v_and_b32 v{t4}, 3, v{r.lane}
    v_lshlrev_b32 v{t4}, 4, v{t4}
    v_lshl_add_u32 v{t5}, v{t3}, 7, v{t4}
    v_mul_u32_u24 v{t3}, 80, v{t3}
    v_add3_u32 v{r.ER}, v{t3}, v{t4}, s{S_TMP}
    s_lshl_b32 s{S_TMP}, s{S_RT}, 12
    s_lshl_b32 s{S_TMP2}, s{S_T}, 6
    s_add_u32 s{S_TMP}, s{S_TMP}, s{S_TMP2}
    v_add_u32 v{r.EG}, s{S_TMP}, v{t5}
    v_lshlrev_b32 v{r.TE}, 1, v0
    v_lshrrev_b32 v{t3}, 4, v{r.lane}
    v_mul_u32_u24 v{t3}, {ACC_ROW}, v{t3}
    v_and_b32 v{t4}, 15, v{r.lane}
    v_lshl_add_u32 v{r.EX}, v{t4}, 4, v{t3}
    """)
    for rr in range(8):
        a(f"""
        s_waitcnt vmcnt({7 + rr})
        L_w{rr}:
        v_cmp_le_i32 vcc, 0, v{TABV+rr}
        s_cbranch_vccz L_g{rr}
        s_sub_u32 s{S_BUD}, s{S_BUD}, 1
        s_cbranch_scc1 L_g{rr}
        s_sleep {opt.slp}
        """)
        for r2 in range(rr, 8):
            a(f"s_add_u32 s{S_TMP}, s{S_B4}, {r2*32768}\nbuffer_load_dword v{TABV+r2}, v{TA}, {s(SR_TAB,4)}, s{S_TMP} offen {opt.hl}")
        a(f"""
        s_waitcnt vmcnt(0)
        s_branch L_w{rr}
        L_g{rr}:
        v_cmp_lt_u32_sdwa {s(S_M+2*rr,2)}, v{JJ}, v{TABV+rr} src0_sel:DWORD src1_sel:WORD_1
        v_cmp_lt_u32_sdwa {s(S_M+16+2*rr,2)}, v{J16}, v{TABV+rr} src0_sel:DWORD src1_sel:WORD_1
        v_max_u32 v{MX}, v{MX}, v{TABV+rr}
        v_add_u32_sdwa v{ADR+rr}, v{LB}, v{TABV+rr} {SDWA} src1_sel:WORD_0
        s_mov_b32 s{S_TMP}, {rr*32*REC_STRIDE}
        s_mov_b64 exec, {s(S_M+2*rr,2)}
        buffer_load_dwordx3 {v(REC(rr),3)}, v{ADR+rr}, {s(SR_REC,4)}, s{S_TMP} offen {opt.rl}
        s_mov_b64 exec, {s(S_M+16+2*rr,2)}
        buffer_load_dwordx3 {v(REC(8+rr),3)}, v{ADR+rr}, {s(SR_REC,4)}, s{S_TMP} offen offset:192 {opt.rl}
        s_mov_b64 exec, -1
        """)
    stamp(a, r, 8)
    def u_reads():
        for k in range(4):
            a(f"ds_read_b64_tr_b16 {v(r.T+4*k,2)}, v{r.EH} offset:{2048*k}\nds_read_b64_tr_b16 {v(r.T+4*k+2,2)}, v{r.EH} offset:{2048*k+512}")
    def u_gemm():
        for k in range(4): a(mfma(r.U, r.T+4*k, r.H+4*k, r.U if k else None))
    def u_scale():
        for i in range(0, 16, 2): a(f"v_pk_mul_f32 {v(r.U+i,2)}, {v(r.U+i,2)}, {s(S_C,2)}")
    def u_all():
        u_reads(); a("s_waitcnt lgkmcnt(0)"); u_gemm(); a("s_nop 7\ns_nop 3"); u_scale()
    stamp(a, r, 9)
    if opt.warm:
        a(f"""
        s_lshr_b32 s{S_TMP}, s2, 3
        s_lshl_b32 s{S_TMP}, s{S_TMP}, 3
        s_add_u32 s{S_TMP}, s{S_TMP}, s{S_V}
        s_mul_i32 s{S_TMP}, s{S_TMP}, {opt.warm*1024}
        s_add_u32 s{S_TMP}, s{S_TMP}, 3072
        v_lshlrev_b32 v{t2}, 4, v{r.lane}
        """)
        for k in range(opt.warm):
            if k and k % 4 == 0: a(f"s_add_u32 s{S_TMP}, s{S_TMP}, 4096")
            a(f"buffer_load_dwordx4 {v(r.H+12,4)}, v{t2}, {s(SR_HD,4)}, s{S_TMP} offen offset:{(k%4)*1024}")
    a(f"""
    v_cmp_lt_u32 vcc, 0x{((0x8000+33)<<16)-1:08x}, v{MX}
    s_and_saveexec_b64 {s(S_D,2)}, vcc
    v_mov_b32 v{t2}, {L_FLAG}
    ds_write_b32 v{t2}, v{ONE}
    s_mov_b64 exec, -1
    """)
    order = [x for rr in range(8) for x in (rr, 8 + rr)]
    a.label("L_rank")
    for n_, q in enumerate(order):
        if q < 8: a(f"s_waitcnt vmcnt({14 - n_})")
        else: a(f"s_cmp_eq_u64 {s(S_M+2*q,2)}, 0\ns_cbranch_scc1 L_rk{q}")
        a(f"""
        s_mov_b64 exec, {s(S_M+2*q,2)}
        v_lshlrev_b32_sdwa v{ADR+q}, 2, v{REC(q)+2} {SDWA} src1_sel:BYTE_0
        ds_add_rtn_u32 v{REC(q)+3}, v{ADR+q}, v{ONE} offset:{L_CNT}
        """)
        if q < 8 and opt.pf: a(f"buffer_load_ubyte v{r.V4}, v{REC(q)+2}, {s(SR_HD,4)}, s{S_SO0} offen")
        if q >= 8: a.label(f"L_rk{q}")
    a(f"""
    s_mov_b64 exec, -1
    v_lshlrev_b32 v{t2}, 3, v{r.lane}
    v_mov_b32 v{t3}, {L_FLAG}
    s_mov_b32 s{S_PADM}, {0 if opt.slide else 31}
    s_cmp_lg_u32 s{S_MODE}, 0
    s_cselect_b32 s{S_PADM}, 31, s{S_PADM}
    s_waitcnt lgkmcnt(0)
    s_barrier
    """)
    stamp(a, r, 10)
    CA = r.M; CB = r.M + 2; FL = r.M + 4; SS = r.M + 5; TT = r.M + 6; PADR = r.M + 7; O = r.M + 8; INC = r.M + 12; SP = r.M + 13; N1 = r.M + 14
    a(f"""
    ds_read_b64 {v(CA,2)}, v{t2} offset:{L_CNT}
    ds_read_b64 {v(CB,2)}, v{t2} offset:{L_CNT+512}
    ds_read_b32 v{FL}, v{t3}
    v_and_b32 v{t4}, 3, v{r.lane}
    v_cmp_eq_u32 {s(S_NB,2)}, 3, v{t4}
    """)
    a(f"s_cmp_lg_u32 s{S_MODE}, 0\ns_cbranch_scc1 L_noaz")
    a(f"""
    s_lshl_b32 s{S_TMP}, s{S_V}, 10
    s_add_u32 s{S_TMP2}, s{S_TMP}, 8192
    s_add_u32 m0, s{S_TMP}, {L_WH1}
    s_lshl_b32 s{S_TMP3}, s{S_V}, 12
    buffer_load_dwordx4 v{L16}, {s(SR_WH,4)}, s{S_TMP} offen lds
    s_add_u32 m0, s{S_TMP}, {L_WH2}
    s_nop 0
    buffer_load_dwordx4 v{L16}, {s(SR_WH,4)}, s{S_TMP2} offen lds
    s_add_u32 m0, s{S_TMP3}, {L_RING}
    """)
    if opt.pfb:
        a(f"""
        s_and_b32 s{S_TMP}, s2, 31
        s_lshl_b32 s{S_TMP}, s{S_TMP}, 3
        s_add_u32 s{S_TMP}, s{S_TMP}, s{S_V}
        s_mul_i32 s{S_TMP}, s{S_TMP}, {98*128}
        s_add_u32 s{S_TMP}, s{S_TMP}, 3072
        v_lshlrev_b32 v{t4}, 7, v{r.lane}
        buffer_load_dword v{r.PF}, v{t4}, {s(SR_HD,4)}, s{S_TMP} offen
        """)
        if opt.pfb > 1:
            a(f"""
            s_add_u32 s{S_TMP}, s{S_TMP}, 8192
            s_mov_b32 exec_hi, 3
            buffer_load_dword v{r.PF}, v{t4}, {s(SR_HD,4)}, s{S_TMP} offen
            s_mov_b64 exec, -1
            """)
    nonlocal_z[0] = r.S + 4
    zero_region(L_ACC, 112 * ACC_ROW)
    a("s_waitcnt lgkmcnt(4)\nL_azd:")
    a(f"""
    v_add_u32 v{N1}, v{CA}, v{CB}
    v_add3_u32 v{SS}, v{N1}, v{CA+1}, v{CB+1}
    v_readfirstlane_b32 s{S_TMP3}, v{FL}
    s_nop 0
    v_add_u32_dpp v{TT}, v{SS}, v{SS} quad_perm:[1,0,3,2] row_mask:0xf bank_mask:0xf
    s_nop 1
    v_add_u32_dpp v{TT}, v{TT}, v{TT} quad_perm:[2,3,0,1] row_mask:0xf bank_mask:0xf
    L_scan:
    v_sub_u32 v{PADR}, 0, v{TT}
    v_and_b32 v{PADR}, s{S_PADM}, v{PADR}
    v_cndmask_b32 v{PADR}, 0, v{PADR}, {s(S_NB,2)}
    v_add_u32 v{SP}, v{SS}, v{PADR}
    v_mov_b32 v{INC}, v{SP}
    """)
    a(wave_scan(INC))
    a(f"""
    s_nop 0
    v_readlane_b32 s{S_TMP}, v{INC}, 63
    v_sub_u32 v{O}, v{INC}, v{SP}
    s_cmp_lg_u32 s{S_PADM}, 0
    s_cbranch_scc1 L_scan_pad
    v_mov_b32_dpp v{PADR}, v{INC} quad_perm:[1,1,3,3] row_mask:0xf bank_mask:0xf
    v_add_u32 v{t4}, -1, v{O}
    v_xor_b32 v{t4}, v{t4}, v{PADR}
    v_cmp_gt_u32 vcc, 32, v{t4}
    v_cmp_gt_u32 {s(S_NBN,2)}, s{S_TMP}, v{PADR}
    s_and_b64 vcc, vcc, {s(S_NBN,2)}
    s_and_b32 vcc_lo, vcc_lo, 0x55555555
    s_and_b32 vcc_hi, vcc_hi, 0x55555555
    v_mov_b32 v{PADR}, s{S_TMP}
    s_cmp_eq_u64 vcc, 0
    s_cbranch_scc1 L_scan_done
    s_mov_b32 s{S_PADM}, 31
    s_branch L_scan
    L_scan_pad:
    v_mov_b32_dpp v{PADR}, v{O} quad_perm:[0,0,0,0] row_mask:0xf bank_mask:0xf
    v_add_u32 v{PADR}, v{PADR}, v{TT}
    v_mov_b64 {v(r.K4,2)}, 0
    v_mov_b64 {v(r.K4+2,2)}, 0
    v_lshlrev_b32 v{t3}, 4, v0
    ds_write_b128 v{t3}, {v(r.K4,4)} offset:{L_REC}
    ds_write_b128 v{t3}, {v(r.K4,4)} offset:{L_REC+8192}
    ds_write_b128 v{t3}, {v(r.K4,4)} offset:{L_REC+16384}
    ds_write_b128 v{t3}, {v(r.K4,4)} offset:{L_REC+24576}
    ds_write_b128 v{t3}, {v(r.K4,4)} offset:{L_REC+32768}
    ds_write_b128 v{t3}, {v(r.K4,4)} offset:{L_REC+40960}
    s_waitcnt lgkmcnt(0)
    s_barrier
    L_scan_done:
    v_lshrrev_b32 v{t3}, 1, v{r.lane}
    v_add_u32 v{t4}, s{S_TMP}, v{t3}
    v_mul_u32_u24 v{t4}, 12, v{t4}
    v_add_u32 v{t4}, {L_REC}, v{t4}
    v_add_u32 v{O+1}, v{O}, v{N1}
    v_add_u32 v{O+2}, v{O}, v{CA}
    v_add_u32 v{O+3}, v{O+1}, v{CA+1}
    ds_write_b64 v{t2}, {v(O,2)} offset:{L_OFF}
    ds_write_b64 v{t2}, {v(O+2,2)} offset:{L_OFF+512}
    v_and_b32 v{t3}, 60, v{r.lane}
    v_add_u32 v{t3}, {L_WEND}, v{t3}
    ds_write_b32 v{t3}, v{PADR}
    s_add_u32 s{S_TMP}, s{S_TMP}, 31
    s_lshr_b32 s{S_TMP}, s{S_TMP}, 5
    s_cmp_gt_u32 s{S_TMP}, {CAPT}
    s_cselect_b32 s{S_TMP3}, 1, s{S_TMP3}
    s_cmp_lg_u32 s{S_TMP3}, 0
    s_cbranch_scc1 L_slow
    ds_write2_b32 v{t4}, v{r.Zero}, v{r.Zero} offset0:0 offset1:1
    ds_write_b32 v{t4}, v{r.Zero} offset:8
    """)
    if opt.fine: stamp(a, r, 22)
    for q in order:
        if q >= 8: a(f"s_cmp_eq_u64 {s(S_M+2*q,2)}, 0\ns_cbranch_scc1 L_pa{q}")
        a(f"s_mov_b64 exec, {s(S_M+2*q,2)}\nds_read_b32 v{ADR+q}, v{ADR+q} offset:{L_OFF}")
        if q >= 8: a.label(f"L_pa{q}")
    a(f"""
    s_and_b32 s{S_T0}, s{S_V}, 3
    s_mul_i32 s{S_T0}, s{S_T0}, s{S_TMP}
    s_add_u32 s{S_NTL}, s{S_T0}, s{S_TMP}
    s_lshr_b32 s{S_T0}, s{S_T0}, 2
    s_lshr_b32 s{S_NTL}, s{S_NTL}, 2
    s_sub_u32 s{S_TMP}, s{S_NTL}, s{S_T0}
    s_mul_i32 s{S_TMP}, s{S_TMP}, {opt.split}
    s_add_u32 s{S_TMP}, s{S_TMP}, 32
    s_lshr_b32 s{S_TMP}, s{S_TMP}, 6
    s_add_u32 s{S_TMP}, s{S_TMP}, s{S_T0}
    s_and_b32 s{S_FI}, s{S_V}, 4
    s_cmp_eq_u32 s{S_TMP}, s{S_T0}
    s_cselect_b32 s{S_FI}, 0, s{S_FI}
    s_cmp_lt_u32 s{S_V}, 4
    s_cselect_b32 s{S_NTL}, s{S_TMP}, s{S_NTL}
    s_cselect_b32 s{S_T0}, s{S_T0}, s{S_TMP}
    s_sub_u32 s{S_NTL}, s{S_NTL}, s{S_T0}
    s_mov_b32 s{S_TMP2}, {L_REC}
    s_waitcnt lgkmcnt(0)
    """)
    if opt.fine: stamp(a, r, 23)
    for q in order:
        if q >= 8: a(f"s_cmp_eq_u64 {s(S_M+2*q,2)}, 0\ns_cbranch_scc1 L_pb{q}")
        a(f"""
        s_mov_b64 exec, {s(S_M+2*q,2)}
        v_add_u32 v{ADR+q}, v{ADR+q}, v{REC(q)+3}
        v_mad_u32_u24 v{ADR+q}, v{ADR+q}, 12, s{S_TMP2}
        ds_write_b32 v{ADR+q}, v{REC(q)+2} offset:8
        ds_write2_b32 v{ADR+q}, v{REC(q)}, v{REC(q)+1} offset0:0 offset1:1
        """)
        if q >= 8: a.label(f"L_pb{q}")
    a(f"""
    s_mov_b64 exec, -1
    """)
    if opt.fine: stamp(a, r, 24)
    a(f"""
    s_mul_i32 s{S_TMP}, s{S_T0}, 384
    s_add_u32 s{S_TMP}, s{S_TMP}, {L_REC}
    v_and_b32 v{t2}, 31, v{r.lane}
    v_mul_u32_u24 v{t2}, 12, v{t2}
    v_add_u32 v{r.A1a}, s{S_TMP}, v{t2}
    v_lshrrev_b32 v{t2}, 3, v{r.lane}
    v_mul_u32_u24 v{t2}, 48, v{t2}
    v_add_u32 v{r.A2a}, s{S_TMP}, v{t2}
    s_sub_u32 s{S_TMP}, s{S_T0}, 1
    v_add_u32 v{t3}, s{S_TMP}, v{r.lane}
    v_mul_u32_u24 v{t2}, 384, v{t3}
    s_waitcnt vmcnt({opt.pfb}) lgkmcnt(0)
    s_barrier
    """)
    stamp(a, r, 11)
    a(f"s_cmp_eq_u32 s{S_NTL}, 0\ns_cbranch_scc1 L_idle")
    wx_reads = [f"v_lshrrev_b32 v{t5}, 5, v{r.lane}", f"v_lshlrev_b32 v{t5}, 7, v{t5}", f"v_add_u32 v{t5}, {L_WX}, v{t5}"] + \
               [f"ds_read_b128 {v(r.W2+4*q,4)}, v{t5} offset:{16*q}" for q in range(8)]
    a(k_reads(r, 0))
    a(f"ds_read_u8 v{t4}, v{t2} offset:{L_REC+8}")
    a(ea_read(r, 0))
    a(acc_zero(r, False))
    for i in range(0, 8, 2): a(f"v_mov_b64 {v(r.M+8+i,2)}, 0\nv_mov_b64 {v(r.S+i,2)}, 0")
    a("s_waitcnt lgkmcnt(2)")
    a(dma_addr(r) + dma_issue(r))
    a(f"""
    v_lshrrev_b32 v{r.PI}, 7, v{r.K}
    v_lshlrev_b32_sdwa v{r.NA}, 5, v{r.K} {SDWA} src1_sel:BYTE_0
    buffer_load_dwordx2 {v(r.PS,2)}, v{r.PI}, {s(SR_P4,4)}, 0 idxen
    """)
    a(pd_read(r) + k_reads(r, 1))
    a(f"""
    s_waitcnt lgkmcnt(5)
    v_and_b32 v{t4}, 0x7f, v{t4}
    v_lshrrev_b32 v{t5}, 3, v{t4}
    v_lshlrev_b32 v{t5}, 2, v{t5}
    v_add_u32 v{t5}, {L_WEND}, v{t5}
    ds_read_b32 v{t5}, v{t5}
    v_lshlrev_b32 v{t3}, 5, v{t3}
    s_waitcnt lgkmcnt(0)
    v_sub_u32 v{t5}, v{t5}, v{t3}
    v_min_u32 v{t5}, 32, v{t5}
    v_mad_u32_u24 v{t2}, v{t5}, 12, v{t2}
    ds_read_u8 v{t2}, v{t2} offset:{L_REC-4}
    v_lshl_or_b32 v{t4}, v{t5}, 16, v{t4}
    s_waitcnt lgkmcnt(0)
    v_and_b32 v{t2}, 0x7f, v{t2}
    v_lshl_or_b32 v{r.Desc}, v{t2}, 8, v{t4}
    s_nop 0
    v_readlane_b32 s{S_D}, v{r.Desc}, 1
    v_readlane_b32 s{S_ZP}, v{r.Desc}, 0
    s_nop 1
    s_and_b32 s{S_NB}, s{S_D}, 0x7c
    s_mov_b32 s{S_NBP}, s{S_NB}
    s_lshr_b32 s{S_CNT}, s{S_D}, 16
    s_bfe_u32 s{S_ZP}, s{S_ZP}, 0x80008
    s_cmp_eq_u32 s{S_T0}, 0
    s_cselect_b32 s{S_ZP}, -1, s{S_ZP}
    """)
    a(aw_reads(r, S_NB))
    a(wx_reads)
    a(f"s_cmp_lg_u32 s{S_MODE}, 0\ns_cbranch_scc1 L_nou")
    u_all()
    a("L_nou:\ns_waitcnt vmcnt(1)")
    a(h_reads(r))
    a("s_waitcnt lgkmcnt(0)")
    a(dma_addr(r) + dma_issue(r))
    a("s_waitcnt vmcnt(4)")
    a(geometry(r, False))
    for k in range(2): a(mfma(r.D0, r.H+4*k, ID+4*k, r.D0 if k else None))
    a("s_waitcnt lgkmcnt(0)")
    a(mfma(r.D0, r.XM, r.BW, r.D0))
    a(f"s_mov_b32 s{S_I}, 2\ns_add_u32 s{S_NTL}, s{S_NTL}, 1")
    if opt.prio: a(f"s_cmp_ge_u32 s{S_V}, 4\ns_cbranch_scc1 L_np\ns_setprio 1\nL_np:")
    a("s_nop 7\ns_nop 1")
    stamp(a, r, 12); stamp(a, r, 28, True)
    a(".p2align 6")
    a.label("L_loop")
    pre = k_reads(r, 2) + pd_read(r) + [f"v_readlane_b32 s{S_D}, v{r.Desc}, s{S_I}"] + s_set(r)
    PE = [int(x) for x in opt.mfe.split(",")]; PR = [int(x) for x in opt.mfr.split(",")]
    mf_exp = {PE[k]: mfma(r.D1, r.H+8+4*k, ID+4*k, r.D1 if k else None) for k in range(2)}
    mf_rcp = {PR[0]: mfma(r.D1, r.XM, r.BW+4, r.D1), PR[1]: mfma(r.A1, r.M+8, r.S, r.A1), PR[2]: mfma(r.A1, r.M+12, r.S+4, r.A1)}
    ins_exp = {7: [f"s_bfe_u32 s{S_TMP}, s{S_D}, 0x80008", f"s_add_u32 s{S_TMP2}, s{S_NB}, 8", f"s_and_b32 s{S_TMP3}, s{S_D}, 0x7c",
                   f"s_cmp_ge_u32 s{S_TMP}, s{S_TMP2}", f"s_cselect_b32 s{S_NBN}, s{S_TMP3}, s{S_NB}"],
               opt.hpos: ["s_waitcnt vmcnt(1)"] + h_reads(r)}
    ins_rcp = {2: ["s_waitcnt lgkmcnt(4)"] + dma_addr(r),
               4: ["s_waitcnt lgkmcnt(0)"] + dma_issue(r),
               6: ea_read(r, 1) + [f"s_cmp_eq_u32 s{S_NBN}, s{S_NB}", "s_cbranch_scc1 L_noaw"] + aw_reads(r, S_NBN) + ["L_noaw:"],
               PR[2]+1: s_reads(r)}
    silu_stage(a, r, r.D0, r.M, mf_exp, mf_rcp, ins_exp, ins_rcp, pre)
    a(f"s_cmp_eq_u32 s{S_NB}, s{S_NBP}\ns_cbranch_scc1 L_noflush")
    if "flush" in opt.abl: a("s_branch L_noflush")
    a(retire_mask(r))
    a(f"s_cmp_lg_u32 s{S_MODE}, 0\ns_cbranch_scc1 L_flush_slow")
    a(flush_plain(r))
    a.label("L_noflush")
    pre = [f"s_mov_b32 s{S_NBP}, s{S_NB}", f"s_mov_b32 s{S_NB}, s{S_NBN}", f"s_lshr_b32 s{S_CNT}, s{S_D}, 16",
           "s_waitcnt vmcnt(4)"] + geometry(r, True)
    mf_exp = {PE[k]: mfma(r.D0, r.H+4*k, ID+4*k, r.D0 if k else None) for k in range(2)}
    mf_rcp = {PR[0]: mfma(r.D0, r.XM, r.BW, r.D0), PR[1]: mfma(r.A0, r.M, r.S, r.A0), PR[2]: mfma(r.A0, r.M+4, r.S+4, r.A0)}
    silu_stage(a, r, r.D1, r.M+8, mf_exp, mf_rcp, {15: ["s_waitcnt lgkmcnt(0)"]}, {}, pre)
    a(f"""
    s_sub_u32 s{S_TMP}, s{S_I}, 1
    s_add_u32 s{S_I}, s{S_I}, 1
    s_cmp_le_u32 s{S_I}, s{S_NTL}
    s_cbranch_scc1 L_loop
    v_readlane_b32 s{S_D}, v{r.Desc}, s{S_TMP}
    """)
    stamp(a, r, 13); stamp(a, r, 29, True)
    a(mfma(r.A1, r.M+8, r.S, r.A1)); a(mfma(r.A1, r.M+12, r.S+4, r.A1))
    if opt.prio: a("s_setprio 0")
    S_RML = S_TMP3; S_GL = S_NBN
    a(f"""
    s_mov_b32 s{S_RM}, 0xffff
    s_bitcmp1_b32 s{S_NBP}, 2
    s_cselect_b32 s{S_RM}, 0xffff0000, s{S_RM}
    s_bfe_u32 s{S_GL}, s{S_D}, 0x6000a
    s_lshr_b32 s{S_TMP2}, s{S_NBP}, 2
    s_cmp_lg_u32 s{S_GL}, s{S_TMP2}
    s_cselect_b32 s{S_RM}, -1, s{S_RM}
    s_mov_b32 s{S_RML}, 0xffff
    s_bitcmp1_b32 s{S_GL}, 0
    s_cselect_b32 s{S_RML}, 0xffff0000, s{S_RML}
    s_cselect_b32 s{S_CNT}, {4*ACC_ROW}, 0
    """)
    a(flush_addr(r))
    WH2 = r.W2; HU = r.HU
    def epi_prep_a(): pass
    def epi_prep_b():
        for k in range(4):
            a(f"ds_read_b64_tr_b16 {v(WH2+4*k,2)}, v{r.EH} offset:{8192+2048*k}\nds_read_b64_tr_b16 {v(WH2+4*k+2,2)}, v{r.EH} offset:{8192+2048*k+512}")
    def epi_prep(): epi_prep_a(); epi_prep_b()
    a(f"""
    s_cmp_lg_u32 s{S_MODE}, 0
    s_cbranch_scc1 L_final_slow
    s_lshl_b32 s{S_TMP}, s{S_V}, 11
    s_add_u32 s{S_TMP}, s{S_TMP}, {L_SIMG}
    v_add_u32 v{r.K}, s{S_TMP}, v{r.EX}
    s_sub_u32 s{S_TMP}, s{S_TMP}, {L_ACC}
    s_sub_u32 s{S_TMP}, s{S_TMP}, s{S_CNT}
    s_mov_b32 exec_lo, s{S_RML}
    s_mov_b32 exec_hi, s{S_RML}
    v_add_u32 v{t2}, s{S_TMP}, v{r.FlM}
    """)
    a(EX3)
    a([f"ds_write_b128 v{t2}, {v(r.A0+4*q,4)} offset:{32*q}" for q in range(8)])
    a(f"s_mov_b64 exec, -1\nds_read_b128 {v(r.PD,4)}, v{r.K}")
    epi_prep_a()
    a(flush_dot(r))
    epi_prep_b()
    a(f"""
    s_andn2_b32 s{S_TMP}, s{S_RM}, s{S_RML}
    s_and_b32 exec_lo, s{S_TMP}, 0x77777777
    s_mov_b32 exec_hi, 0
    ds_write_b32 v{t3}, v{t4}
    s_mov_b64 exec, -1
    s_mov_b32 s{S_RM}, s{S_RML}
    s_mul_i32 s{S_TMP}, s{S_GL}, {4*ACC_ROW}
    s_add_u32 s{S_TMP}, s{S_TMP}, {L_ACC}
    v_add_u32 v{t2}, s{S_TMP}, v{r.EX}
    s_ashr_i32 s{S_ZP}, s{S_ZP}, 2
    s_cmp_lg_u32 s{S_ZP}, s{S_GL}
    s_cbranch_scc1 L_main_end
    s_add_u32 s{S_TMP}, s{S_FI}, {L_FLAG+8}
    v_mov_b32 v{r.K}, s{S_TMP}
    v_mov_b32 v{r.PI}, 1
    ds_write_b32 v{r.K}, v{r.PI}
    L_main_end:
    """)
    stamp(a, r, 14)
    rmw_rd = [f"ds_read_b128 {v(r.D0,4)}, v{t2}", EXP, f"ds_read_b32 v{t5}, v{t3}", "s_mov_b64 exec, -1"]
    rmw_wr = ["s_waitcnt lgkmcnt(1)",
              f"v_pk_add_f32 {v(r.D0,2)}, {v(r.D0,2)}, {v(r.PD,2)}", f"v_pk_add_f32 {v(r.D0+2,2)}, {v(r.D0+2,2)}, {v(r.PD+2,2)}",
              f"ds_write_b128 v{t2}, {v(r.D0,4)}", EXP, "s_waitcnt lgkmcnt(1)", f"v_add_f32 v{t4}, v{t4}, v{t5}",
              f"ds_write_b32 v{t3}, v{t4}", "s_mov_b64 exec, -1"]
    a(f"v_mov_b32 v{r.K}, {L_FLAG+8}\ns_waitcnt vmcnt(0) lgkmcnt(0)\ns_barrier\nds_read_b64 {v(r.PS,2)}, v{r.K}")
    a(rmw_rd)
    a(f"""
    s_waitcnt lgkmcnt(2)
    v_readfirstlane_b32 s{S_TMP}, v{r.PS}
    v_readfirstlane_b32 s{S_TMP2}, v{r.PS+1}
    s_nop 3
    s_or_b32 s{S_D}, s{S_TMP}, s{S_TMP2}
    s_cbranch_scc1 L_merge_rare
    L_merge:
    s_cmp_eq_u32 s{S_NTL}, 0
    s_cbranch_scc1 L_epi
    """)
    a(rmw_wr)
    a.label("L_epi")
    if opt.stamp: a(f"s_sub_u32 s{S_ST}, s{S_NTL}, 1\ns_max_i32 s{S_ST}, s{S_ST}, 0\nv_writelane_b32 v{r.ST}, s{S_ST}, 30")
    MR = r.D0
    a(f"""
    s_mov_b32 s{S_D}, 0x{f2u(-LN2):08x}
    s_mov_b32 s{S_D+1}, 0x{f2u(-LN2):08x}
    ds_read_b32 v{r.K}, v{r.EK} offset:16
    s_waitcnt lgkmcnt(0)
    s_barrier
    """)
    stamp(a, r, 15)
    for k in range(4):
        a(f"ds_read_b128 {v(MR+8*k,4)}, v{r.EM} offset:{64*k}\nds_read_b128 {v(MR+8*k+4,4)}, v{r.EM} offset:{64*k+16}")
    a(f"ds_read_b32 v{r.PI}, v{r.EP}")
    for k in range(4):
        a(f"s_waitcnt lgkmcnt({7-2*k})")
        for j in range(4):
            a(f"v_cvt_pk_bf16_f32 v{r.H+4*k+j}, v{MR+8*k+2*j}, v{MR+8*k+2*j+1}")
        if k: a(mfma(r.U, WH2+4*(k-1), r.H+4*(k-1), r.U))
    a(f"""
    s_waitcnt lgkmcnt(0)
    v_add_f32 v{r.K}, v{r.K}, v{r.PI}
    {mfma(r.U, WH2+12, r.H+12, r.U)}
    v_cvt_pk_bf16_f32 v{r.K}, v{r.K}, v{r.K}
    buffer_store_short v{r.K}, v{r.TE}, {s(SR_OUTP,4)}, 0 offen {opt.ost}
    s_nop 9
    """)
    T = r.T; U = r.U
    for i in range(16): a(f"v_exp_f32 v{T+i}, v{U+i}")
    for i in range(0, 16, 2): a(f"v_pk_add_f32 {v(T+i,2)}, {v(T+i,2)}, {s(S_ONE,2)}")
    for i in range(0, 16, 2): a(f"v_pk_mul_f32 {v(U+i,2)}, {v(U+i,2)}, {s(S_D,2)}")
    for i in range(16): a(f"v_rcp_f32 v{T+i}, v{T+i}")
    for g in range(4):
        for i in (4*g, 4*g+2): a(f"v_pk_fma_f32 {v(T+i,2)}, {v(T+i,2)}, {v(U+i,2)}, {v(HU+i,2)}")
        for i in (4*g, 4*g+2): a(f"v_cvt_pk_bf16_f32 v{r.M+i//2}, v{T+i}, v{T+i+1}")
        a(f"ds_write_b64 v{r.EW}, {v(r.M+2*g,2)} offset:{16*g}")
    a(f"""
    """)
    if opt.thr:
        a(f"""
        s_memrealtime s[4:5]
        s_waitcnt lgkmcnt(0)
        s_sub_u32 s4, s4, s{S_ST}
        s_cmp_gt_u32 s4, {opt.thr}
        s_cselect_b32 s4, 0x10000, 0
        v_add_u32 v{r.EG}, s4, v{r.EG}
        """)
    a(f"""
    ds_read_b128 {v(r.H,4)}, v{r.ER}
    ds_read_b128 {v(r.H+4,4)}, v{r.ER} offset:1280
    s_waitcnt lgkmcnt(1)
    buffer_store_dwordx4 {v(r.H,4)}, v{r.EG}, {s(SR_OUT,4)}, 0 offen {opt.ost}
    s_waitcnt lgkmcnt(0)
    buffer_store_dwordx4 {v(r.H+4,4)}, v{r.EG}, {s(SR_OUT,4)}, 0 offen offset:2048 {opt.ost}
    """)
    if opt.stamp:
        stamp(a, r, 16); a("s_waitcnt vmcnt(0)"); stamp(a, r, 17); stamp(a, r, 31, True)
        a(f"""
        s_lshl_b32 s{S_ST}, s2, 4
        s_add_u32 s{S_ST}, s{S_ST}, s{S_V}
        s_lshl_b32 s{S_ST}, s{S_ST}, 8
        s_add_u32 s{S_ST}, s{S_ST}, {WS_STAMP}
        s_add_u32 s{S_ST}, s{P_WS}, s{S_ST}
        s_addc_u32 s{S_ST+1}, s{P_WS+1}, 0
        v_lshlrev_b32 v{t2}, 2, v{r.lane}
        global_store_dword v{t2}, v{r.ST}, {s(S_ST,2)}
        """)
    if opt.diag:
        a("s_waitcnt vmcnt(0)"); stamp(a, r, 31)
        a(f"""
        v_lshlrev_b32 v{t2}, 2, v{r.lane}
        s_mov_b64 exec, 0xffff
        global_atomic_umax v{t2}, v{r.ST}, {s(P_DBG,2)}
        """)
    a("L_done:\ns_endpgm")
    a("L_noaz:\ns_waitcnt lgkmcnt(0)\ns_branch L_azd")
    a(f"L_idle:\ns_cmp_lg_u32 s{S_MODE}, 0\ns_cbranch_scc1 L_slow_next")
    u_all()
    epi_prep()
    a("s_branch L_main_end")
    a(f"""
    L_merge_rare:
    s_cmp_lg_u32 s{S_TMP}, 0
    s_cbranch_scc1 L_final_atomic
    s_cmp_ge_u32 s{S_V}, 4
    s_cbranch_scc1 L_merge_young
    s_cmp_eq_u32 s{S_NTL}, 0
    s_cbranch_scc1 L_merge_old_done
    """)
    a(rmw_wr)
    a("L_merge_old_done:\ns_waitcnt lgkmcnt(0)\ns_barrier\ns_branch L_epi\nL_merge_young:\ns_waitcnt lgkmcnt(0)\ns_barrier")
    a(rmw_rd)
    a(f"s_branch L_merge\nL_final_atomic:\ns_cmp_eq_u32 s{S_NTL}, 0\ns_cbranch_scc1 L_epi")
    a([f"ds_add_f32 v{t2}, v{r.PD+i} offset:{4*i}" for i in range(4)])
    a([EXP, f"ds_add_f32 v{t3}, v{t4}", "s_mov_b64 exec, -1", "s_branch L_epi"])
    a.label("L_final_slow")
    a("s_waitcnt vmcnt(0) lgkmcnt(0)"); a(flush_dot(r))
    a(flush_atomic(r)); a("s_branch L_slow_next")
    a.label("L_flush_slow")
    a(flush_addr(r)); a("s_waitcnt lgkmcnt(0)"); a(flush_dot(r)); a(flush_atomic(r)); a(acc_zero(r, True))
    a("s_branch L_noflush")
    a(f"""
    L_slow:
    s_mov_b32 s{S_MODE}, 1
    s_mov_b32 s{S_SEG}, 0
    s_waitcnt vmcnt(0) lgkmcnt(0)
    s_barrier
    """)
    u_all()
    a(f"""
    L_slow_round:
    s_waitcnt lgkmcnt(0)
    s_barrier
    v_lshlrev_b32 v{t2}, 2, v0
    v_cmp_gt_u32 vcc, 256, v0
    s_and_saveexec_b64 {s(S_D,2)}, vcc
    ds_write_b32 v{t2}, v{r.Zero} offset:{L_CNT}
    s_mov_b64 exec, -1
    v_mov_b32 v{t2}, {L_FLAG}
    ds_write_b32 v{t2}, v{r.Zero}
    s_lshl_b32 s{S_TMP}, s{S_SEG}, 10
    s_add_u32 s{S_TMP}, s{S_TMP}, s{S_B4}
    buffer_load_dword v{t3}, v{r.Zero}, {s(SR_TAB,4)}, s{S_TMP} offen {opt.hl}
    s_mul_i32 s{S_TMP}, s{S_SEG}, {REC_STRIDE}
    v_mul_u32_u24 v{t5}, 12, v0
    s_waitcnt vmcnt(0)
    v_bfe_u32 v{t4}, v{t3}, 16, 15
    v_and_b32 v{t3}, 0xffff, v{t3}
    v_add_u32 v{t3}, v{t3}, v{t5}
    v_mov_b32 v{t2}, v0
    """)
    for q in range(7):
        a(f"""
        v_cmp_lt_u32 {s(S_M+2*q,2)}, v{t2}, v{t4}
        s_mov_b64 exec, {s(S_M+2*q,2)}
        buffer_load_dwordx3 {v(REC(q),3)}, v{t3}, {s(SR_REC,4)}, s{S_TMP} offen {opt.hl}
        s_mov_b64 exec, -1
        v_add_u32 v{t2}, 512, v{t2}
        s_add_u32 s{S_TMP}, s{S_TMP}, {512*12}
        """)
    for q in range(7, 16): a(f"s_mov_b64 {s(S_M+2*q,2)}, 0")
    a(f"""
    v_mov_b32 v{ONE}, 1
    s_waitcnt vmcnt(0) lgkmcnt(0)
    s_barrier
    s_branch L_rank
    L_slow_next:
    s_add_u32 s{S_SEG}, s{S_SEG}, 1
    s_cmp_lt_u32 s{S_SEG}, {NB}
    s_cbranch_scc1 L_slow_round
    """)
    epi_prep()
    a("s_branch L_epi")
    return a.text(), r.n

def build():
    body, nv = gen()
    hdr = open("gather_scatter__cheap_equivariant_egnn__graph.s.ref").read().split("; Override")[0]
    acc = (nv + 3) // 4 * 4
    return hdr + f"""; @launch grid=({NB},1,1) block=(512,1,1) lds={LDS_BYTES}
.amdgcn_target "amdgcn-amd-amdhsa--gfx950"
; Generated by gen/gen16.py (hand-written generator).  One launch, 256 co-resident workgroups of 8 waves.
;  phase A  each workgroup counting-sorts 3136 edges by destination bin (98 nodes) in LDS and publishes
;           12-byte records, a table row (start|count|valid), padded pos rows and B' = -log2e * h@W2 of its
;           own nodes with write-through stores; table rows are cleared first (flag bytes in d_debug).
;  phase B  each workgroup collects the records of its bin as the rows become valid, sorts them by node,
;           and runs tiles of 32 edges: t = B'[src] + A'[dst] + W5'.(e_attr, dist2) on MFMA,
;           m = t / (1 + 2^t), one-hot MFMA segment sum (m and diff-weighted m) over a rolling window of
;           8 nodes, then the node update.  Skewed inputs take a general path (one segment per round).
.text
.globl {KNAME}
.p2align 8
.type {KNAME},@function
""" + body + f""".section .rodata,"a"
.p2align 6
.amdhsa_kernel {KNAME}
  .amdhsa_next_free_vgpr {nv}
  .amdhsa_next_free_sgpr 102
  .amdhsa_accum_offset {acc}
  .amdhsa_group_segment_fixed_size 0
  .amdhsa_kernarg_size 88
  .amdhsa_user_sgpr_count 2
  .amdhsa_user_sgpr_kernarg_segment_ptr 1
  .amdhsa_system_sgpr_workgroup_id_x 1
  .amdhsa_float_denorm_mode_32 3
.end_amdhsa_kernel
"""

if __name__ == "__main__":
    for arg in sys.argv[2:]:
        k, val = arg.split("=")
        cur = getattr(opt, k)
        setattr(opt, k, (val not in ("0", "False")) if isinstance(cur, bool) else type(cur)(val.replace("_", " ").replace("none", "")))
    open(sys.argv[1], "w").write(build())
    print("lds", LDS_BYTES, "vgprs", alloc().n)
```
